```python
import torch

def _softmax(x, axis=-1):
    return torch.softmax(x, dim=axis)
def _gelu(x):
    return torch.nn.functional.gelu(x, approximate="tanh")
def _silu(x):
    return torch.nn.functional.silu(x)
def _sigmoid(x):
    return torch.sigmoid(x)
def _layernorm(x, axis=-1, eps=1e-5):
    m = x.mean(dim=axis, keepdim=True)
    v = x.var(dim=axis, keepdim=True, unbiased=False)
    return (x - m) / torch.sqrt(v + eps)
def _scatter_add(tgt, idx, src, axis=0):
    return tgt.clone().index_add_(axis, idx, src)
def _segment_sum(src, seg, n):
    out = torch.zeros((n,) + src.shape[1:], dtype=src.dtype)
    return out.index_add_(0, seg, src)
def _pad(x, pw):
    flat = tuple(v for pair in reversed(pw) for v in pair)
    return torch.nn.functional.pad(x, flat)

kernel_name = 'concat_heads__softmax_full_mha__ssm_conv_h3__prompt'

def setup_inputs():

    _w = (lambda a: (lambda t: t.to(torch.bfloat16) if t.is_floating_point() else t)(torch.as_tensor(a)))
    def _A_setup():
        B, S, D = 1, 2048, 640
        return {
            "x": _w((lambda *s: torch.randn(*s, dtype=torch.bfloat16) * 0.2)(B, S, D)),
            "wqkv": _w((lambda *s: torch.randn(*s, dtype=torch.bfloat16) * 0.2)(D, 3 * D)),
            "wo": _w((lambda *s: torch.randn(*s, dtype=torch.bfloat16) * 0.05)(D, D)),
        }
    _A_in = _A_setup()

    def _B_setup():
        B, S, D = 1, 2048, 640
        ks = 4
        return {
            "q": _w((lambda *s: torch.randn(*s, dtype=torch.bfloat16) * 0.05)(B, S, D)),
            "k": _w((lambda *s: torch.randn(*s, dtype=torch.bfloat16) * 0.4)(B, S, D)),
            "v": _w((lambda *s: torch.randn(*s, dtype=torch.bfloat16) * 0.4)(B, S, D)),
            "shift_k": _w((lambda *s: torch.randn(*s, dtype=torch.bfloat16) * 0.4)(D, ks) * 0.5),
            "ssm_k": _w((lambda *s: torch.randn(*s, dtype=torch.bfloat16) * 1.6)(D, S) * (1.0 / S ** 0.5)),
            "ssm_D": _w((lambda *s: torch.randn(*s, dtype=torch.bfloat16) * 0.4)(D)),
        }
    _B_in = _B_setup()

    return {
        "A_x": _A_in["x"],
        "A_wqkv": _A_in["wqkv"],
        "A_wo": _A_in["wo"],
        "B_q": _B_in["q"],
        "B_k": _B_in["k"],
        "B_v": _B_in["v"],
        "B_shift_k": _B_in["shift_k"],
        "B_ssm_k": _B_in["ssm_k"],
        "B_ssm_D": _B_in["ssm_D"],
    }

def reference(A_x, A_wqkv, A_wo, B_q, B_k, B_v, B_shift_k, B_ssm_k, B_ssm_D):
    def _A_ref(x, wqkv, wo):
        B, S, D = x.shape
        H = 32; Dh = D // H
        qkv = (lambda x, *d: x.permute(*d))((x @ wqkv).reshape(B, S, 3, H, Dh), 2, 0, 3, 1, 4)
        q, k, v = qkv[0], qkv[1], qkv[2]
        scale = Dh ** -0.5
        scores = torch.einsum("bhqd,bhkd->bhqk", q, k) * scale
        p = _softmax(scores, axis=-1)
        o = torch.einsum("bhqk,bhkd->bhqd", p, v)
        return (lambda x, *d: x.permute(*d))(o, 0, 2, 1, 3).reshape(B, S, D) @ wo

    def _B_ref(q, k, v, shift_k, ssm_k, ssm_D):
        B, S, D = q.shape
        ks = shift_k.shape[-1]
        k_pad = _pad(k, ((0, 0), (ks - 1, 0), (0, 0)))
        k_shift = torch.zeros_like(k)
        for t in range(ks):
            k_shift = k_shift + k_pad[:, t:t + S, :] * shift_k[:, ks - 1 - t][None, None, :]
        kv = k_shift * v
        L = 2 * S
        kv_pad = _pad(kv, ((0, 0), (0, S), (0, 0)))
        kf_pad = _pad(ssm_k, ((0, 0), (0, S)))
        kv_f = (lambda x, axes=(-2,-1): torch.fft.rfft2(x.float(), dim=axes))(kv_pad[:, None, :, :], axes=(1, 2))
        kf_f = (lambda x, axes=(-2,-1): torch.fft.rfft2(x.float(), dim=axes))(kf_pad[:, None, :], axes=(1, 2))
        kf_f = (lambda x, *d: x.permute(*d))(kf_f, 1, 2, 0)
        y_f = kv_f * kf_f[None, :, :, :]
        y = (lambda x, s, axes=(-2,-1): torch.fft.irfft2(x, s=s, dim=axes).to(torch.bfloat16))(y_f, (1, L), axes=(1, 2))[:, 0, :S, :]
        y = y + kv * ssm_D[None, None, :]
        return q * y

    a = _A_ref(A_x, A_wqkv, A_wo)
    b = _B_ref(B_q, B_k, B_v, B_shift_k, B_ssm_k, B_ssm_D)
    return torch.concatenate([a, b], axis=-1)
```

```python
class Asm:
    def __init__(self):
        self.lines = []
        self.uid = 0
    def __call__(self, s=""):
        for l in s.split("\n"):
            l = l.strip()
            if l == "":
                continue
            if l.endswith(":") or l.startswith("."):
                self.lines.append(l)
            elif l.startswith(";"):
                self.lines.append("    " + l)
            else:
                self.lines.append("    " + l)
    def c(self, s):
        self.lines.append("    ; " + s)
    def label(self, name):
        self.lines.append(name + ":")
    def newlabel(self, base):
        self.uid += 1
        return f"L_{base}_{self.uid}"
    def text(self):
        return "\n".join(self.lines) + "\n"

def v(i, n=1):
    return f"v{i}" if n == 1 else f"v[{i}:{i+n-1}]"
def s(i, n=1):
    return f"s{i}" if n == 1 else f"s[{i}:{i+n-1}]"
def a(i, n=1):
    return f"a{i}" if n == 1 else f"a[{i}:{i+n-1}]"

def srd(A, dst, ptr, nbytes, add=0):
    if add:
        A(f"s_add_u32 s{dst}, s{ptr}, {hex(add)}")
        A(f"s_addc_u32 s{dst+1}, s{ptr+1}, 0")
    else:
        A(f"s_mov_b32 s{dst}, s{ptr}")
        A(f"s_mov_b32 s{dst+1}, s{ptr+1}")
    A(f"s_mov_b32 s{dst+2}, {hex(nbytes)}")
    A(f"s_mov_b32 s{dst+3}, 0x00020000")
```

```python
from asmlib import *

WS_Q  = 0x000000
WS_KV = 0x300000
WS_U  = 0x900000
WS_Z  = 0xC00000
WS_O  = 0xF00000
WS_BYTES = 0x1200000
REC = 2624
QT = 1280
QSCALE = 0x3ea52ba5

import struct, math
def f32bits(x):
    return struct.unpack("<I", struct.pack("<f", x))[0]
QSCALE = f32bits(20 ** -0.5 * math.log2(math.e))

def gen_k1(A, name="qkv_kernel"):
    A(f".globl {name}")
    A(".p2align 8")
    A(f".type {name},@function")
    A.label(name)
    L_exit = f"L_{name}_exit"
    L_pre = f"L_{name}_pre"
    A(f"""
    s_cmp_ge_u32 s2, 256
    s_cbranch_scc1 {L_exit}
    s_load_dwordx4 s[4:7], s[0:1], 0
    s_load_dwordx4 s[8:11], s[0:1], 32
    s_load_dwordx2 s[12:13], s[0:1], 48
    s_load_dwordx2 s[14:15], s[0:1], 88
    v_lshrrev_b32 v1, 6, v0
    v_and_b32 v0, 63, v0
    v_readfirstlane_b32 s40, v1
    s_and_b32 s41, s2, 7
    s_lshr_b32 s42, s2, 3
    s_waitcnt lgkmcnt(0)
    """)
    srd(A, 24, 14, WS_BYTES)
    A(f"""
    s_cmp_ge_u32 s40, 4
    s_cbranch_scc1 {L_pre}
    """)
    A("""
    s_lshr_b32 s43, s41, 1
    s_lshl_b32 s43, s43, 2
    s_and_b32 s44, s42, 3
    s_add_u32 s43, s43, s44        ; s43 = rb
    s_and_b32 s44, s41, 1
    s_lshl_b32 s44, s44, 3
    s_lshr_b32 s45, s42, 2
    s_add_u32 s44, s44, s45        ; s44 = cb
    s_cmp_ge_u32 s44, 15
    """)
    A(f"s_cbranch_scc1 {L_exit}")
    srd(A, 16, 4, 2048 * 640 * 2)
    srd(A, 20, 6, 640 * 1920 * 2)
    A("""
    s_lshr_b32 s46, s40, 1
    s_and_b32 s47, s40, 1
    s_lshl_b32 s48, s40, 12        ; sM0 = w*4096
    s_mul_i32 s49, s40, 61440
    v_lshrrev_b32 v2, 3, v0        ; L/8
    v_lshrrev_b32 v3, 4, v0        ; L/16
    v_and_b32 v4, 7, v0
    v_xor_b32 v4, v4, v3           ; (L%8)^(L/16)
    s_lshl_b32 s50, s43, 7
    s_lshl_b32 s51, s40, 5
    s_add_u32 s50, s50, s51        ; T0 + 32w
    v_add_u32 v2, s50, v2
    v_mul_u32_u24 v2, 1280, v2
    v_lshl_add_u32 v10, v4, 4, v2  ; vXe
    v_xor_b32 v11, 64, v10         ; vXo
    v_and_b32 v4, 15, v0
    v_lshlrev_b32 v5, 2, v3
    v_xor_b32 v4, v4, v5           ; (L%16)^(4*(L/16))
    v_mul_u32_u24 v5, 3840, v3
    v_lshl_add_u32 v12, v4, 4, v5
    s_lshl_b32 s50, s44, 8         ; F0*2
    v_add_u32 v12, s50, v12        ; vW
    """)
    VXE, VXO, VW = 10, 11, 12
    def dma_stage(st, pieces=None):
        slot = st % 4
        out = []
        for i in range(4):
            out.append(f"""
            s_add_u32 m0, s48, {slot*32768 + i*1024}
            s_mov_b32 s52, {st*128 + i*10240}
            buffer_load_dwordx4 v{VXO if i % 2 else VXE}, s[16:19], s52 offen lds""")
        for i in range(4):
            out.append(f"""
            s_add_u32 m0, s48, {slot*32768 + 16384 + i*1024}
            s_add_u32 s52, s49, {st*245760 + i*15360}
            buffer_load_dwordx4 v{VW}, s[20:23], s52 offen lds""")
        return out
    for st in range(4):
        for c in dma_stage(st):
            A(c)
    A("""
    v_and_b32 v2, 31, v0           ; n
    v_lshrrev_b32 v3, 5, v0        ; h
    v_bfe_u32 v4, v0, 1, 3         ; (l>>1)&7
    s_lshl_b32 s50, s46, 6
    v_add_u32 v5, s50, v2
    v_lshlrev_b32 v5, 7, v5        ; token_local*128
    """)
    for ks in range(4):
        A(f"""
        v_add_u32 v6, {2*ks}, v3
        v_xor_b32 v6, v6, v4
        v_lshl_add_u32 v{16+ks}, v6, 4, v5
        v_add_u32 v{20+ks}, 0x10000, v{16+ks}""")
    A("""
    v_lshrrev_b32 v2, 4, v0        ; g
    v_bfe_u32 v3, v0, 2, 2         ; r
    v_and_b32 v4, 3, v0            ; c4
    v_lshrrev_b32 v5, 1, v2        ; g>>1
    v_lshl_add_u32 v5, v5, 3, v3   ; k_local = 8*(g>>1)+r
    v_lshlrev_b32 v5, 8, v5        ; *256
    v_and_b32 v6, 1, v4
    v_lshl_add_u32 v5, v6, 3, v5   ; + (c4&1)*8
    v_add_u32 v5, 16384, v5
    v_and_b32 v6, 1, v2
    v_lshlrev_b32 v6, 1, v6        ; 2*(g&1)
    v_lshrrev_b32 v7, 1, v4        ; c4>>1
    v_add_u32 v6, v6, v7
    s_lshl_b32 s50, s47, 3
    v_add_u32 v6, s50, v6          ; c (ft=0)
    v_lshlrev_b32 v7, 2, v3        ; 4r
    """)
    for ft in range(2):
        A(f"""
        v_add_u32 v8, {4*ft}, v6
        v_xor_b32 v8, v8, v7
        v_lshl_add_u32 v{24+ft}, v8, 4, v5
        v_add_u32 v{26+ft}, 0x10000, v{24+ft}""")
    FR = [dict(X=[32, 36], W=[40, 44]), dict(X=[48, 52], W=[56, 60])]
    ACC = lambda ft, tt: 64 + 16 * (2 * ft + tt)
    def reads(st, ks, setid):
        slot = st % 4
        hi = slot >= 2
        so = (slot % 2) * 32768
        xa = (20 if hi else 16) + ks
        wa = (26 if hi else 24)
        F = FR[setid]
        r = []
        r.append(f"ds_read_b128 {v(F['X'][0],4)}, v{xa} offset:{so}")
        r.append(f"ds_read_b64_tr_b16 {v(F['W'][0],2)}, v{wa} offset:{so + ks*4096}")
        r.append(f"ds_read_b64_tr_b16 {v(F['W'][0]+2,2)}, v{wa} offset:{so + ks*4096 + 1024}")
        r.append(f"ds_read_b128 {v(F['X'][1],4)}, v{xa} offset:{so + 4096}")
        r.append(f"ds_read_b64_tr_b16 {v(F['W'][1],2)}, v{wa+1} offset:{so + ks*4096}")
        r.append(f"ds_read_b64_tr_b16 {v(F['W'][1]+2,2)}, v{wa+1} offset:{so + ks*4096 + 1024}")
        return r
    def mfmas(setid, first, vmode):
        F = FR[setid]
        m = []
        for (ft, tt) in [(0, 0), (0, 1), (1, 0), (1, 1)]:
            d = ACC(ft, tt)
            c = "0" if first else v(d, 16)
            if vmode:
                m.append(f"v_mfma_f32_32x32x16_bf16 {v(d,16)}, {v(F['X'][tt],4)}, {v(F['W'][ft],4)}, {c}")
            else:
                m.append(f"v_mfma_f32_32x32x16_bf16 {v(d,16)}, {v(F['W'][ft],4)}, {v(F['X'][tt],4)}, {c}")
        return m
    def main_loop(vmode):
        A("s_waitcnt vmcnt(24)")
        A("s_barrier")
        for r in reads(0, 0, 0):
            A(r)
        n = 0
        for st in range(10):
            for ks in range(4):
                setid = n % 2
                m = mfmas(setid, n == 0, vmode)
                if ks < 3:
                    A("s_waitcnt lgkmcnt(0)")
                    A(m[0])
                    for r in reads(st, ks + 1, 1 - setid):
                        A(r)
                    A(m[1]); A(m[2]); A(m[3])
                else:
                    if st < 9:
                        nout = min(3, 9 - st)
                        A(f"s_waitcnt vmcnt({8*(nout-1)}) lgkmcnt(0)")
                        A("s_barrier")
                        A(m[0])
                        for r in reads(st + 1, 0, 1 - setid):
                            A(r)
                        d = dma_stage(st + 4) if st + 4 < 10 else []
                        A(m[1])
                        for c in d[:3]: A(c)
                        A(m[2])
                        for c in d[3:6]: A(c)
                        A(m[3])
                        for c in d[6:]: A(c)
                    else:
                        A("s_waitcnt lgkmcnt(0)")
                        for x in m: A(x)
                n += 1
    L_vpath = A.newlabel("vpath")
    A(f"""
    s_cmp_ge_u32 s44, 10
    s_cbranch_scc1 {L_vpath}
    ; ================= Q/K path =================
    s_cmp_ge_u32 s44, 5
    s_cselect_b32 s53, 5, 0
    s_sub_u32 s53, s44, s53        ; cb'
    s_mov_b32 s54, {64*QT}
    s_mov_b32 s55, {QT}
    s_mov_b32 s56, {WS_Q}
    s_mov_b32 s57, 0
    s_mov_b32 s58, {hex(QSCALE)}
    s_cmp_ge_u32 s44, 5
    s_cmov_b32 s54, {64*REC}
    s_cmov_b32 s55, {REC}
    s_cmov_b32 s56, {WS_KV}
    s_cmov_b32 s57, 62
    s_cmov_b32 s58, 0x3f800000
    s_mov_b32 s59, s58
    s_lshl_b32 s50, s43, 2
    s_lshl_b32 s51, s46, 1
    s_add_u32 s50, s50, s51
    s_add_u32 s50, s50, s57
    s_and_b32 s50, s50, 63         ; rec0
    s_mul_i32 s50, s50, s55
    s_add_u32 s60, s50, s56
    s_add_u32 s61, s60, s55
    s_lshl_b32 s50, s53, 5
    s_lshl_b32 s51, s47, 4
    s_add_u32 s50, s50, s51
    v_lshrrev_b32 v3, 5, v0        ; h
    v_and_b32 v2, 31, v0           ; n
    v_add_u32 v3, s50, v3          ; g4 base + h
    """)
    for ft in range(2):
        for a_ in range(4):
            d = 128 + ft*4 + a_
            A(f"""
            v_add_u32 v4, {8*ft + 2*a_}, v3     ; g4
            v_mul_u32_u24 v5, 52429, v4
            v_lshrrev_b32 v5, 18, v5            ; head
            v_mul_u32_u24 v6, 5, v5
            v_sub_u32 v6, v4, v6                ; sub
            v_lshrrev_b32 v7, 1, v6
            v_lshlrev_b32 v7, 9, v7
            v_and_b32 v8, 1, v6
            v_lshl_add_u32 v7, v8, 3, v7        ; +(sub&1)*8
            v_cmp_eq_u32 vcc, 4, v6
            v_mul_lo_u32 v5, v5, s54
            v_lshlrev_b32 v8, 4, v2
            v_lshlrev_b32 v9, 3, v2
            v_cndmask_b32 v8, v8, v9, vcc       ; n*16 or n*8
            v_add3_u32 v{d}, v5, v7, v8""")
    main_loop(False)
    A("s_nop 15")
    for ft in range(2):
        for tt in range(2):
            d = ACC(ft, tt)
            for i in range(0, 16, 2):
                A(f"v_pk_mul_f32 {v(d+i,2)}, {v(d+i,2)}, s[58:59]")
            for a_ in range(4):
                A(f"v_cvt_pk_bf16_f32 v{d+4*a_}, v{d+4*a_}, v{d+4*a_+1}")
                A(f"v_cvt_pk_bf16_f32 v{d+4*a_+1}, v{d+4*a_+2}, v{d+4*a_+3}")
            for a_ in range(4):
                A(f"buffer_store_dwordx2 {v(d+4*a_,2)}, v{128+ft*4+a_}, s[24:27], s{60+tt} offen")
    A("s_endpgm")
    A.label(L_vpath)
    A(f"""
    s_sub_u32 s53, s44, 10
    s_lshl_b32 s50, s43, 2
    s_lshl_b32 s51, s46, 1
    s_add_u32 s50, s50, s51        ; tile
    s_mul_i32 s50, s50, {REC}
    s_add_u32 s60, s50, {WS_KV}
    s_lshl_b32 s50, s53, 7
    s_lshl_b32 s51, s47, 6
    s_add_u32 s50, s50, s51        ; 128cb''+64wc
    v_and_b32 v2, 31, v0
    v_lshrrev_b32 v3, 5, v0
    v_mul_u32_u24 v3, 336, v3
    v_add_u32 v3, 1280, v3
    v_add_u32 v2, s50, v2
    s_mov_b32 s54, {64*REC}
    """)
    for ft in range(2):
        A(f"""
        v_add_u32 v4, {32*ft}, v2          ; Fv
        v_mul_u32_u24 v5, 52429, v4
        v_lshrrev_b32 v5, 20, v5           ; head
        v_mul_u32_u24 v6, 20, v5
        v_sub_u32 v6, v4, v6               ; m
        v_mul_lo_u32 v5, v5, s54
        v_lshl_add_u32 v5, v6, 4, v5
        v_add_u32 v{128+ft}, v5, v3
        v_cmp_eq_u32 s[{62+2*ft}:{63+2*ft}], 19, v6""")
    main_loop(True)
    A("s_nop 15")
    A("""
    v_mov_b32 v32, 0x3f803f80
    v_mov_b32 v33, 0x3f803f80
    v_mov_b32 v34, 0x3f803f80
    v_mov_b32 v35, 0x3f803f80
    """)
    for ft in range(2):
        for tt in range(2):
            d = ACC(ft, tt)
            for f in range(2):
                for i in range(4):
                    A(f"v_cvt_pk_bf16_f32 v{d+8*f+i}, v{d+8*f+2*i}, v{d+8*f+2*i+1}")
                A(f"buffer_store_dwordx4 {v(d+8*f,4)}, v{128+ft}, s[24:27], s60 offen offset:{tt*REC + f*672}")
    for ft in range(2):
        A(f"s_mov_b64 exec, s[{62+2*ft}:{63+2*ft}]")
        lab = A.newlabel("noones")
        A(f"s_cbranch_execz {lab}")
        for tt in range(2):
            for f in range(2):
                A(f"buffer_store_dwordx4 v[32:35], v{128+ft}, s[24:27], s60 offen offset:{tt*REC + f*672 + 16}")
        A.label(lab)
    A("s_endpgm")

    A.label(L_pre)
    L_t6 = A.newlabel("t6"); L_tgo = A.newlabel("tgo")
    A(f"""
    s_cmp_eq_u32 s40, 6
    s_cbranch_scc1 {L_t6}
    s_lshl_b32 s43, s2, 1
    s_sub_u32 s44, s40, 4
    s_add_u32 s43, s43, s44
    s_branch {L_tgo}
    """)
    A.label(L_t6)
    A(f"""
    s_cmp_ge_u32 s2, 128
    s_cbranch_scc1 {L_exit}
    s_add_u32 s43, s2, 512
    """)
    A.label(L_tgo)
    A("""
    s_mul_i32 s44, s43, 52429
    s_lshr_b32 s44, s44, 19        ; tblk
    s_mul_i32 s45, s44, 10
    s_sub_u32 s45, s43, s45        ; dblk
    """)
    srd(A, 28, 8, 2048 * 640 * 2)
    srd(A, 32, 10, 2048 * 640 * 2)
    srd(A, 36, 12, 640 * 4 * 2)
    A("""
    v_and_b32 v2, 7, v0            ; dg
    v_lshrrev_b32 v3, 3, v0        ; tg
    s_lshl_b32 s46, s45, 6
    v_lshl_add_u32 v2, v2, 3, s46  ; d0
    s_lshl_b32 s47, s44, 5
    v_lshl_add_u32 v3, v3, 2, s47  ; t0
    v_mul_u32_u24 v4, 1280, v3
    v_lshl_add_u32 v4, v2, 1, v4   ; vKb = t0*1280 + 2*d0
    v_subrev_u32 v5, 3840, v4
    v_subrev_u32 v6, 2560, v4
    v_subrev_u32 v7, 1280, v4
    v_lshlrev_b32 v8, 3, v2        ; d0*8
    v_lshlrev_b32 v9, 12, v2
    v_lshl_add_u32 v9, v3, 1, v9   ; vU = d0*4096 + 2*t0
    v_add_u32 v9, %d, v9
    """ % WS_U)
    A("buffer_load_dwordx4 v[16:19], v5, s[28:31], 0 offen")
    A("buffer_load_dwordx4 v[20:23], v6, s[28:31], 0 offen")
    A("buffer_load_dwordx4 v[24:27], v7, s[28:31], 0 offen")
    for j in range(4):
        A(f"buffer_load_dwordx4 {v(28+4*j,4)}, v4, s[28:31], 0 offen offset:{1280*j}")
    for j in range(4):
        A(f"buffer_load_dwordx4 {v(44+4*j,4)}, v4, s[32:35], 0 offen offset:{1280*j}")
    for j in range(4):
        A(f"buffer_load_dwordx4 {v(60+4*j,4)}, v8, s[36:39], 0 offen offset:{16*j}")
    A("s_barrier")
    A("s_waitcnt vmcnt(0)")
    for q in range(4):
        for j in range(7):
            A(f"v_lshlrev_b32 v{80+2*j}, 16, v{16+4*j+q}")
            A(f"v_and_b32 v{81+2*j}, 0xffff0000, v{16+4*j+q}")
        for t in range(4):
            A(f"v_lshlrev_b32 v{94+2*t}, 16, v{44+4*t+q}")
            A(f"v_and_b32 v{95+2*t}, 0xffff0000, v{44+4*t+q}")
        for u in range(2):
            b = 60 + 4*q + 2*u
            A(f"v_lshlrev_b32 v{102+u}, 16, v{b}")
            A(f"v_and_b32 v{104+u}, 0xffff0000, v{b}")
            A(f"v_lshlrev_b32 v{106+u}, 16, v{b+1}")
            A(f"v_and_b32 v{108+u}, 0xffff0000, v{b+1}")
        for t in range(4):
            acc = 110 + 2*t
            A(f"v_pk_mul_f32 {v(acc,2)}, {v(80+2*(t+0),2)}, {v(108,2)}")
            A(f"v_pk_fma_f32 {v(acc,2)}, {v(80+2*(t+1),2)}, {v(106,2)}, {v(acc,2)}")
            A(f"v_pk_fma_f32 {v(acc,2)}, {v(80+2*(t+2),2)}, {v(104,2)}, {v(acc,2)}")
            A(f"v_pk_fma_f32 {v(acc,2)}, {v(80+2*(t+3),2)}, {v(102,2)}, {v(acc,2)}")
            A(f"v_pk_mul_f32 {v(acc,2)}, {v(acc,2)}, {v(94+2*t,2)}")
        for u in range(2):
            o = 120 + 4*q + 2*u
            A(f"v_cvt_pk_bf16_f32 v{o}, v{110+u}, v{112+u}")
            A(f"v_cvt_pk_bf16_f32 v{o+1}, v{114+u}, v{116+u}")
        for u in range(2):
            o = 120 + 4*q + 2*u
            ch = 2*q + u
            A(f"s_mov_b32 s50, {ch*4096}")
            A(f"buffer_store_dwordx2 {v(o,2)}, v9, s[24:27], s50 offen")
        if q == 1:
            A("s_barrier")
    A.label(L_exit)
    A("s_endpgm")

def kd(name, vgpr, sgpr=102):
    return f""".section .rodata,"a"
.p2align 6
.amdhsa_kernel {name}
  .amdhsa_next_free_vgpr {vgpr}
  .amdhsa_next_free_sgpr {sgpr}
  .amdhsa_accum_offset {((vgpr+3)//4)*4}
  .amdhsa_group_segment_fixed_size 0
  .amdhsa_kernarg_size 96
  .amdhsa_user_sgpr_count 2
  .amdhsa_user_sgpr_kernarg_segment_ptr 1
  .amdhsa_system_sgpr_workgroup_id_x 1
  .amdhsa_float_denorm_mode_32 3
.end_amdhsa_kernel
.text
"""
```

```python
from asmlib import *
from gen_k1 import WS_Q, WS_KV, WS_U, WS_Z, WS_O, WS_BYTES, REC, QT, f32bits

CHUNK = 16 * REC
NPIECE = CHUNK // 1024
CONV_BASE = 2 * CHUNK
COPY = 4160
CONV_SZ = 4 * COPY + 4608
LDS = CONV_BASE + 3 * CONV_SZ
LAUNCH = f"; @launch kernel=attn_kernel grid=(256,1,1) block=(704,1,1) lds={LDS}"
VGPRS = 128

def gen_k2(A, name="attn_kernel"):
    A(f".globl {name}")
    A(".p2align 8")
    A(f".type {name},@function")
    A.label(name)
    L_exit = f"L_{name}_exit"
    L_conv = f"L_{name}_conv"
    A(f"""
    s_cmp_ge_u32 s2, 256
    s_cbranch_scc1 {L_exit}
    s_load_dwordx4 s[4:7], s[0:1], 56
    s_load_dwordx2 s[14:15], s[0:1], 88    ; ws
    v_lshrrev_b32 v1, 6, v0
    v_and_b32 v0, 63, v0
    v_readfirstlane_b32 s40, v1
    s_and_b32 s41, s2, 7
    s_lshr_b32 s42, s2, 3
    s_waitcnt lgkmcnt(0)
    """)
    srd(A, 24, 14, WS_BYTES)
    A(f"""
    s_cmp_ge_u32 s40, 8
    s_cbranch_scc1 {L_conv}
    """)
    Q1, Q2 = 4, 8
    O = 16
    S = [32, 48]
    P = [64, 72]
    KA, KB, V0, V1 = 80, 84, 88, 92
    AK = [96, 99]; AK2 = [97, 100]; AV = [98, 101]
    KA0, KB0 = 104, 108
    A(f"""
    s_lshl_b32 s43, s41, 2
    s_lshr_b32 s44, s42, 3
    s_add_u32 s43, s43, s44        ; head
    s_and_b32 s44, s42, 7          ; qb
    s_mul_i32 s45, s43, {64*REC}
    s_add_u32 s45, s45, {WS_KV}
    s_lshl_b32 s46, s44, 3
    s_add_u32 s46, s46, s40        ; q tile
    s_lshl_b32 s47, s43, 6
    s_add_u32 s47, s47, s46
    s_mul_i32 s47, s47, {QT}
    s_add_u32 s47, s47, {WS_Q}
    v_lshlrev_b32 v2, 4, v0        ; l*16
    v_and_b32 v3, 31, v0           ; n
    v_lshlrev_b32 v1, 3, v3        ; n*8
    v_add_u32 v1, 1024, v1         ; 1024 + n*8
    buffer_load_dwordx4 {v(Q1,4)}, v2, s[24:27], s47 offen
    buffer_load_dwordx2 {v(Q2,2)}, v1, s[24:27], s47 offen
    s_add_u32 s48, s45, {62*REC}
    buffer_load_dwordx4 {v(KA0,4)}, v2, s[24:27], s48 offen
    buffer_load_dwordx2 {v(KB0,2)}, v1, s[24:27], s48 offen
    s_add_u32 s48, s45, {63*REC}
    buffer_load_dwordx4 {v(KA,4)}, v2, s[24:27], s48 offen
    buffer_load_dwordx2 {v(KB,2)}, v1, s[24:27], s48 offen
    s_lshl_b32 s49, s40, 10        ; w*1024
    s_add_u32 s50, s45, s49
    """)
    def dma_piece(chunk, i):
        slot = chunk % 2
        code = f"""
        s_add_u32 m0, s49, {slot*CHUNK + i*8192}
        s_add_u32 s51, s50, {chunk*CHUNK + i*8192}
        buffer_load_dwordx4 v2, s[24:27], s51 offen lds"""
        if i == 5:
            lab = A.newlabel("skip5")
            code = f"""
            s_cmp_lg_u32 s40, 0
            s_cbranch_scc1 {lab}""" + code + f"\n{lab}:"
        return code
    for i in range(6):
        A(dma_piece(0, i))
    for i in range(6):
        A(dma_piece(1, i))
    A(f"""
    s_mov_b32 s60, 0
    v_cmp_gt_u32 vcc, 32, v0       ; h==0 lanes
    v_lshrrev_b32 v12, 5, v0       ; h
    v_mul_u32_u24 v13, 336, v12
    v_lshl_add_u32 v13, v3, 4, v13
    v_add_u32 v{AV[0]}, 1280, v13
    v_mov_b32 v{AK[0]}, v2
    v_mov_b32 v{AK2[0]}, v1
    v_add_u32 v{AV[1]}, {CHUNK}, v{AV[0]}
    v_add_u32 v{AK[1]}, {CHUNK}, v{AK[0]}
    v_add_u32 v{AK2[1]}, {CHUNK}, v{AK2[0]}
    v_mov_b32 v{Q2+2}, 0
    v_mov_b32 v{Q2+3}, 0
    v_mov_b32 v{KB+2}, 0
    v_mov_b32 v{KB+3}, 0
    v_mov_b32 v{KB0+2}, 0
    v_mov_b32 v{KB0+3}, 0
    s_waitcnt vmcnt(5)
    v_cndmask_b32 v{Q2}, 0, v{Q2}, vcc
    v_cndmask_b32 v{Q2+1}, 0, v{Q2+1}, vcc
    s_barrier
    """)
    A(f"v_mfma_f32_32x32x16_bf16 {v(S[0],16)}, {v(KA0,4)}, {v(Q1,4)}, 0")
    A(f"v_mfma_f32_32x32x16_bf16 {v(S[0],16)}, {v(KB0,4)}, {v(Q2,4)}, {v(S[0],16)}")
    A("s_nop 7")
    A("s_nop 7")
    for J in range(64):
        c = J // 16; slot = c % 2; j = J % 16
        Sc, Sn = S[J % 2], S[(J + 1) % 2]
        Pc, Pp = P[J % 2], P[(J + 1) % 2]
        off = j * REC
        if j == 0 and J > 0:
            A("s_waitcnt vmcnt(0) lgkmcnt(0)")
            A("s_barrier")
        def E(i): return f"v_exp_f32 v{Sc+i}, v{Sc+i}"
        def C(i): return f"v_cvt_pk_bf16_f32 v{Pc+i}, v{Sc+2*i}, v{Sc+2*i+1}"
        if J > 0 and j != 0:
            A("s_waitcnt lgkmcnt(2)")
        if J < 63:
            A(f"v_mfma_f32_32x32x16_bf16 {v(Sn,16)}, {v(KA,4)}, {v(Q1,4)}, 0")
        if J < 62:
            A(f"ds_read_b128 {v(KA,4)}, v{AK[slot]} offset:{off}")
        for x in (E(0), E(1), E(2), E(3), C(0), C(1)): A(x)
        if J < 63:
            A(f"v_mfma_f32_32x32x16_bf16 {v(Sn,16)}, {v(KB,4)}, {v(Q2,4)}, {v(Sn,16)}")
        if J < 62:
            A(f"ds_read_b64 {v(KB,2)}, v{AK2[slot]} offset:{off}")
        for x in (E(4), E(5), E(6), E(7), C(2), C(3)): A(x)
        if J > 0:
            if J < 62:
                A("s_waitcnt lgkmcnt(2)")
            else:
                A("s_waitcnt lgkmcnt(0)")
            cc = "0" if J == 1 else v(O, 16)
            A(f"v_mfma_f32_32x32x16_bf16 {v(O,16)}, {v(V0,4)}, {v(Pp,4)}, {cc}")
        A(f"ds_read_b128 {v(V0,4)}, v{AV[slot]} offset:{off}")
        for x in (E(8), E(9), E(10), E(11), C(4), C(5)): A(x)
        if J > 0:
            A(f"v_mfma_f32_32x32x16_bf16 {v(O,16)}, {v(V1,4)}, {v(Pp+4,4)}, {v(O,16)}")
        A(f"ds_read_b128 {v(V1,4)}, v{AV[slot]} offset:{off + 672}")
        if c in (1, 2) and j < 6:
            A(dma_piece(c + 1, j))
        for x in (E(12), E(13), E(14), E(15), C(6), C(7)): A(x)
    Pl = P[63 % 2]
    A("s_waitcnt lgkmcnt(0)")
    A(f"v_mfma_f32_32x32x16_bf16 {v(O,16)}, {v(V0,4)}, {v(Pl,4)}, {v(O,16)}")
    A(f"v_mfma_f32_32x32x16_bf16 {v(O,16)}, {v(V1,4)}, {v(Pl+4,4)}, {v(O,16)}")
    L_fin = A.newlabel("fin"); L_slow = A.newlabel("slow")
    def addr_calc():
        A(f"""
        s_mul_i32 s52, s43, 5
        v_lshrrev_b32 v12, 5, v0           ; h
        v_bfe_u32 v13, v0, 4, 1            ; (n>>4)
        s_lshl_b32 s53, s46, 1             ; 2*qtile
        v_add_u32 v13, s53, v13            ; T
        v_mul_u32_u24 v13, 20480, v13      ; T*20*1024
        v_and_b32 v14, 15, v0              ; n16
        v_lshlrev_b32 v14, 4, v14          ; n16*16
        v_add_u32 v13, v13, v14
        v_add_u32 v13, {WS_O}, v13
        """)
        for pi, sub0 in enumerate((0, 2, 4)):
            hterm = "v12" if pi < 2 else "0"
            A(f"""
            v_add_u32 v14, s52, v12
            """ if pi < 2 else "v_mov_b32 v14, s52")
            A(f"""
            v_add_u32 v14, {sub0}, v14         ; k4
            v_lshrrev_b32 v15, 3, v14          ; s
            v_lshlrev_b32 v15, 10, v15
            v_and_b32 v1, 3, v14
            v_lshl_add_u32 v15, v1, 8, v15     ; + (w8&3)*256
            v_bfe_u32 v1, v14, 2, 1
            v_lshl_add_u32 v15, v1, 3, v15     ; + (w8>>2)*8
            v_add_u32 v{104+pi}, v13, v15
            """)
    addr_calc()
    A.label(L_fin)
    A("s_nop 7")
    A(f"""
    v_mov_b32 v110, v{O+8}
    v_mov_b32 v111, v{O+8}
    s_nop 1
    v_permlane32_swap_b32 v110, v111
    s_nop 1
    v_rcp_f32 v112, v111
    s_nop 0
    """)
    for i in range(0, 12, 2):
        A(f"v_pk_mul_f32 {v(O+i,2)}, {v(O+i,2)}, v[112:113] op_sel_hi:[1,0]")
    A(f"""
    v_add_f32 v113, abs(v{O}), abs(v{O+1})
    v_add_f32 v114, abs(v{O+8}), abs(v{O+9})
    """)
    for i in range(2, 8):
        A(f"v_add_f32 v113, v113, abs(v{O+i})")
    A(f"""
    v_add_f32 v114, v114, abs(v{O+10})
    v_add_f32 v114, v114, abs(v{O+11})
    v_cmp_gt_u32 vcc, 32, v0
    v_mov_b32 v115, 0x21800000         ; 2^-60
    v_mov_b32 v116, 0x5d800000         ; 2^60
    v_cndmask_b32 v114, 0, v114, vcc
    v_add_f32 v113, v113, v114
    v_mov_b32 v114, 0x7f800000
    v_cmp_nlt_f32 s[54:55], v113, v114
    v_cmp_ngt_f32 s[56:57], v111, v115   ; !(l > 2^-60)
    v_cmp_nlt_f32 vcc, v111, v116        ; !(l < 2^60)
    s_nop 1
    s_or_b64 s[54:55], s[54:55], s[56:57]
    s_or_b64 s[54:55], s[54:55], vcc
    s_cmp_lg_u64 s[54:55], 0
    s_cselect_b32 s61, 1, 0
    s_andn2_b32 s61, s61, s60
    s_cmp_lg_u32 s61, 0
    s_cbranch_scc1 {L_slow}
    """)
    for g in range(3):
        A(f"v_cvt_pk_bf16_f32 v{O+4*g}, v{O+4*g}, v{O+4*g+1}")
        A(f"v_cvt_pk_bf16_f32 v{O+4*g+1}, v{O+4*g+2}, v{O+4*g+3}")
    A(f"buffer_store_dwordx2 {v(O,2)}, v104, s[24:27], 0 offen")
    A(f"buffer_store_dwordx2 {v(O+4,2)}, v105, s[24:27], 0 offen")
    A("s_mov_b32 exec_hi, 0")
    A(f"buffer_store_dwordx2 {v(O+8,2)}, v106, s[24:27], 0 offen")
    A("s_endpgm")
    A.label(L_slow)
    L1 = A.newlabel("p1"); L2 = A.newlabel("p2")
    A(f"""
    s_mov_b32 s60, 1
    v_lshlrev_b32 v2, 4, v0
    v_and_b32 v3, 31, v0
    v_lshlrev_b32 v1, 3, v3
    v_add_u32 v1, 1024, v1
    v_lshrrev_b32 v12, 5, v0
    v_mul_u32_u24 v13, 336, v12
    v_lshl_add_u32 v13, v3, 4, v13
    v_add_u32 v13, 1280, v13
    v_mov_b32 v114, 0xff800000         ; m = -inf
    s_mov_b32 s52, 0
    """)
    A.label(L1)
    A(f"""
    s_mul_i32 s53, s52, {REC}
    s_add_u32 s53, s53, s45
    buffer_load_dwordx4 {v(KA,4)}, v2, s[24:27], s53 offen
    buffer_load_dwordx2 {v(KB,2)}, v1, s[24:27], s53 offen
    s_waitcnt vmcnt(0)
    v_mfma_f32_32x32x16_bf16 {v(S[0],16)}, {v(KA,4)}, {v(Q1,4)}, 0
    v_mfma_f32_32x32x16_bf16 {v(S[0],16)}, {v(KB,4)}, {v(Q2,4)}, {v(S[0],16)}
    s_nop 7
    s_nop 7
    """)
    for i in range(0, 16, 2):
        A(f"v_max3_f32 v114, v114, v{S[0]+i}, v{S[0]+i+1}")
    A(f"""
    s_add_u32 s52, s52, 1
    s_cmp_lt_u32 s52, 64
    s_cbranch_scc1 {L1}
    v_mov_b32 v115, v114
    v_mov_b32 v116, v114
    s_nop 1
    v_permlane32_swap_b32 v115, v116
    s_nop 1
    v_max_f32 v114, v115, v116
    v_max_f32 v114, v114, v114
    """)
    for i in range(16):
        A(f"v_mov_b32 v{O+i}, 0")
    A("s_mov_b32 s52, 0")
    A.label(L2)
    A(f"""
    s_add_u32 s53, s52, 62
    s_and_b32 s53, s53, 63
    s_mul_i32 s53, s53, {REC}
    s_add_u32 s53, s53, s45
    s_mul_i32 s54, s52, {REC}
    s_add_u32 s54, s54, s45
    buffer_load_dwordx4 {v(KA,4)}, v2, s[24:27], s53 offen
    buffer_load_dwordx2 {v(KB,2)}, v1, s[24:27], s53 offen
    buffer_load_dwordx4 {v(V0,4)}, v13, s[24:27], s54 offen
    buffer_load_dwordx4 {v(V1,4)}, v13, s[24:27], s54 offen offset:672
    s_waitcnt vmcnt(0)
    v_mfma_f32_32x32x16_bf16 {v(S[0],16)}, {v(KA,4)}, {v(Q1,4)}, 0
    v_mfma_f32_32x32x16_bf16 {v(S[0],16)}, {v(KB,4)}, {v(Q2,4)}, {v(S[0],16)}
    s_nop 7
    s_nop 7
    """)
    for i in range(16):
        A(f"v_sub_f32 v{S[0]+i}, v{S[0]+i}, v114")
    for i in range(16):
        A(f"v_exp_f32 v{S[0]+i}, v{S[0]+i}")
    A("s_nop 0")
    for i in range(8):
        A(f"v_cvt_pk_bf16_f32 v{P[0]+i}, v{S[0]+2*i}, v{S[0]+2*i+1}")
    A(f"""
    s_nop 1
    v_mfma_f32_32x32x16_bf16 {v(O,16)}, {v(V0,4)}, {v(P[0],4)}, {v(O,16)}
    v_mfma_f32_32x32x16_bf16 {v(O,16)}, {v(V1,4)}, {v(P[0]+4,4)}, {v(O,16)}
    s_add_u32 s52, s52, 1
    s_cmp_lt_u32 s52, 64
    s_cbranch_scc1 {L2}
    s_nop 7
    s_nop 7
    """)
    addr_calc()
    A(f"s_branch {L_fin}")

    A.label(L_conv)
    L_c10 = A.newlabel("c10"); L_cgo = A.newlabel("cgo")
    A(f"""
    s_cmp_eq_u32 s40, 10
    s_cbranch_scc1 {L_c10}
    s_lshl_b32 s43, s2, 1
    s_sub_u32 s44, s40, 8
    s_add_u32 s43, s43, s44        ; channel
    s_branch {L_cgo}
    """)
    A.label(L_c10)
    A(f"""
    s_cmp_ge_u32 s2, 128
    s_cbranch_scc1 {L_exit}
    s_add_u32 s43, s2, 512
    """)
    A.label(L_cgo)
    A("s_setprio 3")
    srd(A, 16, 4, 640 * 4096)
    A(f"""
    s_sub_u32 s44, s40, 8
    s_mul_i32 s44, s44, {CONV_SZ}
    s_add_u32 s44, s44, {CONV_BASE}
    s_lshl_b32 s45, s43, 12             ; d*4096
    s_lshr_b32 s46, s43, 1
    s_lshl_b32 s46, s46, 2
    s_load_dword s47, s[6:7], s46
    v_lshlrev_b32 v2, 4, v0             ; l*16
    v_add_u32 v3, s45, v2               ; d*4096 + l*16
    """)
    for r in range(4):
        for p in range(4):
            dlt = 1024*p - 2*r
            if dlt >= 0:
                A(f"v_add_u32 v4, {dlt}, v3")
            else:
                A(f"v_subrev_u32 v4, {-dlt}, v3")
            A(f"""
            s_add_u32 m0, s44, {r*COPY + 32 + p*1024}
            s_nop 0
            buffer_load_dwordx4 v4, s[16:19], 0 offen lds""")
    A(f"s_add_u32 s49, s45, {WS_U}")
    for p in range(4):
        A(f"""
        s_add_u32 m0, s44, {4*COPY + 480 + p*1024}
        s_add_u32 s48, s49, {p*1024}
        buffer_load_dwordx4 v2, s[24:27], s48 offen lds""")
    A(f"""
    v_mov_b32 v5, s45
    buffer_load_dwordx4 v[8:11], v5, s[16:19], 0 offen
    v_mov_b32 v12, 0
    v_mov_b32 v13, 0
    v_mov_b32 v14, 0
    v_mov_b32 v15, 0
    v_lshlrev_b32 v6, 3, v0
    v_add_u32 v6, s44, v6
    v_add_u32 v6, {4*COPY}, v6          ; u base + l*8
    v_cmp_gt_u32 vcc, 60, v0
    s_and_saveexec_b64 s[50:51], vcc
    ds_write_b64 v6, v[12:13]
    s_mov_b64 exec, s[50:51]
    v_and_b32 v6, 1, v0
    v_lshlrev_b32 v6, 4, v6
    v_lshrrev_b32 v7, 1, v0
    v_mul_u32_u24 v7, {COPY}, v7
    v_add3_u32 v6, v6, v7, s44
    v_cmp_gt_u32 vcc, 8, v0
    s_and_saveexec_b64 s[50:51], vcc
    ds_write_b128 v6, v[12:15]
    s_mov_b64 exec, s[50:51]
    s_barrier
    s_waitcnt vmcnt(0) lgkmcnt(0)
    v_lshlrev_b32 v16, 16, v8
    v_alignbit_b32 v17, v9, v8, 16
    v_alignbit_b32 v18, v10, v9, 16
    v_alignbit_b32 v19, v11, v10, 16
    v_mov_b32 v20, 0
    v_mov_b32 v21, v8
    v_mov_b32 v22, v9
    v_mov_b32 v23, v10
    v_mov_b32 v24, 0
    v_mov_b32 v25, v16
    v_mov_b32 v26, v17
    v_mov_b32 v27, v18
    v_mov_b32 v6, s44
    s_mov_b64 exec, 1
    ds_write_b128 v6, v[16:19] offset:{1*COPY + 32}
    ds_write_b128 v6, v[20:23] offset:{2*COPY + 32}
    ds_write_b128 v6, v[24:27] offset:{3*COPY + 32}
    s_mov_b64 exec, -1
    s_and_b32 s48, s43, 1
    s_lshl_b32 s48, s48, 4
    s_lshr_b32 s47, s47, s48
    s_lshl_b32 s47, s47, 16
    v_lshrrev_b32 v6, 4, v0             ; kg
    v_bfe_u32 v7, v0, 2, 2              ; r
    v_and_b32 v8, 3, v0                 ; c
    v_mul_u32_u24 v7, {COPY}, v7
    v_lshlrev_b32 v8, 3, v8             ; 2*4c
    v_lshlrev_b32 v9, 4, v6             ; 2*8kg
    v_sub_u32 v8, v8, v9
    v_add_u32 v8, 56, v8                ; 2*(32-4)
    v_add3_u32 v4, v7, v8, s44          ; vA
    v_and_b32 v7, 15, v0
    v_lshlrev_b32 v7, 5, v7
    v_lshl_add_u32 v7, v6, 4, v7
    v_add_u32 v7, {4*COPY}, v7
    v_add_u32 v5, s44, v7               ; vB
    s_waitcnt lgkmcnt(0)
    """)
    Y = 32; AT = 64; BT = 96
    for rho in range(8):
        for p in range(8):
            mu = rho + 8 * p
            A(f"ds_read_b64_tr_b16 {v(AT+4*p,2)}, v4 offset:{64*mu + 8}")
            A(f"ds_read_b64_tr_b16 {v(AT+4*p+2,2)}, v4 offset:{64*mu}")
            if p % 4 == 3:
                A("s_waitcnt lgkmcnt(0)")
        for q in range(8):
            j = 8 * q - rho
            A(f"ds_read_b128 {v(BT+4*q,4)}, v5 offset:{64*(j+7)}")
        A("s_waitcnt lgkmcnt(0)")
        for p in range(8):
            for q in range(8 - p):
                i = p + q
                cc = "0" if (rho == 0 and p == 0) else v(Y+4*i, 4)
                A(f"v_mfma_f32_16x16x32_bf16 {v(Y+4*i,4)}, {v(AT+4*p,4)}, {v(BT+4*q,4)}, {cc}")
        if rho in (2, 5):
            A("s_barrier")
    A(f"""
    v_and_b32 v7, 15, v0                ; n
    v_lshrrev_b32 v6, 4, v0             ; g
    v_lshlrev_b32 v7, 5, v7
    v_lshl_add_u32 v7, v6, 3, v7        ; 32n + 8g
    v_add_u32 v8, s44, v7
    v_add_u32 v8, {4*COPY + 480}, v8
    s_add_u32 s49, s45, {WS_Z}
    """)
    for i in range(8):
        A(f"ds_read_b64 {v(AT+2*i,2)}, v8 offset:{512*i}")
    A("s_waitcnt lgkmcnt(0)")
    A("s_nop 3")
    for i in range(8):
        u0, u1 = AT + 2*i, AT + 2*i + 1
        y = Y + 4*i
        A(f"""
        v_lshlrev_b32 v96, 16, v{u0}
        v_and_b32 v97, 0xffff0000, v{u0}
        v_lshlrev_b32 v98, 16, v{u1}
        v_and_b32 v99, 0xffff0000, v{u1}
        v_fma_f32 v{y}, v96, s47, v{y}
        v_fma_f32 v{y+1}, v97, s47, v{y+1}
        v_fma_f32 v{y+2}, v98, s47, v{y+2}
        v_fma_f32 v{y+3}, v99, s47, v{y+3}
        v_cvt_pk_bf16_f32 v{y}, v{y}, v{y+1}
        v_cvt_pk_bf16_f32 v{y+1}, v{y+2}, v{y+3}
        buffer_store_dwordx2 {v(y,2)}, v7, s[24:27], s49 offen offset:{512*i}""")
    A("s_barrier")
    A.label(L_exit)
    A("s_endpgm")
```

```python
from asmlib import *
from gen_k1 import WS_Q, WS_KV, WS_U, WS_Z, WS_O, WS_BYTES

LDS = 102400
LAUNCH = f"; @launch kernel=oproj_kernel grid=(256,1,1) block=(448,1,1) lds={LDS}"
VGPRS = 176

def gen_k3(A, name="oproj_kernel"):
    A(f".globl {name}")
    A(".p2align 8")
    A(f".type {name},@function")
    A.label(name)
    L_exit = f"L_{name}_exit"
    L_post = f"L_{name}_post"
    A(f"""
    s_cmp_ge_u32 s2, 256
    s_cbranch_scc1 {L_exit}
    s_load_dwordx4 s[4:7], s[0:1], 16      ; wo, B_q
    s_load_dwordx2 s[8:9], s[0:1], 72      ; out
    s_load_dwordx2 s[14:15], s[0:1], 88    ; ws
    v_lshrrev_b32 v1, 6, v0
    v_and_b32 v0, 63, v0
    v_readfirstlane_b32 s40, v1
    s_and_b32 s41, s2, 7
    s_lshr_b32 s42, s2, 3
    s_waitcnt lgkmcnt(0)
    """)
    srd(A, 24, 14, WS_BYTES)
    srd(A, 20, 8, 2048 * 1280 * 2)
    A(f"""
    s_cmp_ge_u32 s40, 4
    s_cbranch_scc1 {L_post}
    """)
    srd(A, 16, 4, 640 * 640 * 2)
    A(f"""
    s_lshl_b32 s43, s41, 2
    s_lshr_b32 s44, s42, 3
    s_add_u32 s43, s43, s44
    s_and_b32 s44, s42, 7
    s_lshl_b32 s45, s43, 2
    s_add_u32 s45, s45, s40
    s_mul_i32 s46, s45, 20480
    s_add_u32 s46, s46, {WS_O}
    v_lshlrev_b32 v2, 4, v0        ; l*16
    """)
    OF = 32
    A("s_mul_i32 s47, s44, 160")
    for b in range(5):
        A(f"""
        v_add_u32 v3, {64*b}, v0
        v_mul_u32_u24 v4, 52429, v3
        v_lshrrev_b32 v4, 19, v4          ; id/10
        v_mul_u32_u24 v5, 10, v4
        v_sub_u32 v5, v3, v5              ; id%10
        v_mul_u32_u24 v4, 1280, v4
        v_lshl_add_u32 v4, v5, 4, v4
        v_add_u32 v{8+b}, s47, v4""")
    A("s_mul_i32 s48, s40, 5120")
    A("s_mul_i32 s49, s40, 40960")
    for ai in range(5):
        for b in range(5):
            A(f"""
            s_add_u32 m0, s48, {ai*4*5120 + b*1024}
            s_add_u32 s50, s49, {ai*4*40960}
            buffer_load_dwordx4 v{8+b}, s[16:19], s50 offen lds""")
    for st in range(20):
        A(f"s_add_u32 s50, s46, {st*1024}" if st % 4 == 0 else "")
        A(f"buffer_load_dwordx4 {v(OF+4*st,4)}, v2, s[24:27], s50 offen offset:{(st%4)*1024}")
    A(f"""
    v_lshrrev_b32 v3, 4, v0         ; kg
    v_bfe_u32 v4, v0, 2, 2          ; r
    v_lshl_add_u32 v3, v3, 2, v4
    v_mul_u32_u24 v3, 160, v3
    v_and_b32 v4, 3, v0
    v_lshl_add_u32 v14, v4, 3, v3
    v_add_u32 v15, 61440, v14
    v_and_b32 v3, 15, v0
    s_lshl_b32 s50, s45, 4
    v_add_u32 v3, s50, v3
    v_mul_u32_u24 v3, 2560, v3
    v_lshrrev_b32 v4, 4, v0
    v_lshl_add_u32 v3, v4, 3, v3
    v_add_u32 v16, s47, v3          ; + fb*160
    s_waitcnt vmcnt(20)
    s_barrier
    """)
    ACC = 112
    WF = [132, 152]
    def reads(st, setid):
        base = 14 if st < 12 else 15
        so = st * 5120 - (61440 if st >= 12 else 0)
        r = []
        for T in range(5):
            r.append(f"ds_read_b64_tr_b16 {v(WF[setid]+4*T,2)}, v{base} offset:{so + 32*T}")
            r.append(f"ds_read_b64_tr_b16 {v(WF[setid]+4*T+2,2)}, v{base} offset:{so + 32*T + 2560}")
        return r
    for r in reads(0, 0): A(r)
    for st in range(20):
        setid = st % 2
        A(f"s_waitcnt vmcnt({19-st}) lgkmcnt(0)")
        rs = reads(st + 1, 1 - setid) if st < 19 else []
        for T in range(5):
            cc = "0" if st == 0 else v(ACC+4*T, 4)
            A(f"v_mfma_f32_16x16x32_bf16 {v(ACC+4*T,4)}, {v(WF[setid]+4*T,4)}, {v(OF+4*st,4)}, {cc}")
            for r in rs[2*T:2*T+2]: A(r)
    A("s_nop 7")
    for T in range(5):
        d = ACC + 4*T
        A(f"v_cvt_pk_bf16_f32 v{d}, v{d}, v{d+1}")
        A(f"v_cvt_pk_bf16_f32 v{d+1}, v{d+2}, v{d+3}")
        A(f"buffer_store_dwordx2 {v(d,2)}, v16, s[20:23], 0 offen offset:{32*T}")
    A("s_endpgm")

    A.label(L_post)
    L_t6 = A.newlabel("t6"); L_tgo = A.newlabel("tgo")
    A(f"""
    s_cmp_eq_u32 s40, 6
    s_cbranch_scc1 {L_t6}
    s_lshl_b32 s43, s2, 1
    s_sub_u32 s44, s40, 4
    s_add_u32 s43, s43, s44
    s_branch {L_tgo}
    """)
    A.label(L_t6)
    A(f"""
    s_cmp_ge_u32 s2, 128
    s_cbranch_scc1 {L_exit}
    s_add_u32 s43, s2, 512
    """)
    A.label(L_tgo)
    A("""
    s_mul_i32 s44, s43, 52429
    s_lshr_b32 s44, s44, 19        ; tblk
    s_mul_i32 s45, s44, 10
    s_sub_u32 s45, s43, s45        ; dblk
    """)
    srd(A, 28, 6, 2048 * 640 * 2)
    A(f"""
    v_and_b32 v2, 7, v0            ; dg
    v_lshrrev_b32 v3, 3, v0        ; tg
    s_lshl_b32 s46, s45, 6
    v_lshl_add_u32 v2, v2, 3, s46  ; d0
    s_lshl_b32 s47, s44, 5
    v_lshl_add_u32 v3, v3, 2, s47  ; t0
    v_mul_u32_u24 v4, 1280, v3
    v_lshl_add_u32 v4, v2, 1, v4   ; q off = t0*1280 + 2*d0
    v_lshlrev_b32 v5, 12, v2
    v_lshl_add_u32 v5, v3, 1, v5   ; z off = d0*4096 + 2*t0
    v_add_u32 v5, {WS_Z}, v5
    v_mul_u32_u24 v6, 2560, v3
    v_lshl_add_u32 v6, v2, 1, v6
    v_add_u32 v6, 1280, v6
    """)
    for i in range(8):
        A(f"s_mov_b32 s50, {i*4096}")
        A(f"buffer_load_dwordx2 {v(16+2*i,2)}, v5, s[24:27], s50 offen")
    for j in range(4):
        A(f"buffer_load_dwordx4 {v(32+4*j,4)}, v4, s[28:31], 0 offen offset:{1280*j}")
    A("s_barrier")
    A("s_waitcnt vmcnt(0)")
    for j in range(4):
        for q in range(4):
            za = 16 + 2*(2*q) + j//2; zb = 16 + 2*(2*q+1) + j//2
            if j % 2 == 0:
                A(f"v_lshlrev_b32 v48, 16, v{za}")
                A(f"v_lshlrev_b32 v49, 16, v{zb}")
            else:
                A(f"v_and_b32 v48, 0xffff0000, v{za}")
                A(f"v_and_b32 v49, 0xffff0000, v{zb}")
            qq = 32 + 4*j + q
            A(f"v_lshlrev_b32 v50, 16, v{qq}")
            A(f"v_and_b32 v51, 0xffff0000, v{qq}")
            A(f"v_pk_mul_f32 v[48:49], v[48:49], v[50:51]")
            A(f"v_cvt_pk_bf16_f32 v{52+4*j+q}, v48, v49")
        A(f"s_mov_b32 s50, {j*2560}")
        A(f"buffer_store_dwordx4 {v(52+4*j,4)}, v6, s[20:23], s50 offen")
    A.label(L_exit)
    A("s_endpgm")
```

```python
import sys
from asmlib import *
import gen_k1
NAME = "concat_heads__softmax_full_mha__ssm_conv_h3__prompt"
HEADER = open("cdna_kernels/" + NAME + ".s.ref").read().split("; Override launch geometry")[0]

def build(kernels):
    A = Asm()
    launches = []
    kds = []
    body = Asm()
    for k in kernels:
        if k == "k1":
            gen_k1.gen_k1(body, "qkv_kernel")
            launches.append("; @launch kernel=qkv_kernel grid=(256,1,1) block=(448,1,1) lds=131072")
            kds.append(gen_k1.kd("qkv_kernel", 256))
        elif k == "k2":
            import gen_k2
            gen_k2.gen_k2(body, "attn_kernel")
            launches.append(gen_k2.LAUNCH)
            kds.append(gen_k1.kd("attn_kernel", gen_k2.VGPRS))
        elif k == "k3":
            import gen_k3
            gen_k3.gen_k3(body, "oproj_kernel")
            launches.append(gen_k3.LAUNCH)
            kds.append(gen_k1.kd("oproj_kernel", gen_k3.VGPRS))
    out = HEADER + "\n".join(launches) + "\n"
    out += '.amdgcn_target "amdgcn-amd-amdhsa--gfx950"\n.text\n'
    out += body.text()
    out += "".join(kds)
    return out

if __name__ == "__main__":
    ks = sys.argv[2].split(",") if len(sys.argv) > 2 else ["k1", "k2", "k3"]
    open(sys.argv[1], "w").write(build(ks))
```

```python
class Asm:
    def __init__(self):
        self.lines = []
        self.uid = 0
    def __call__(self, s=""):
        for l in s.split("\n"):
            l = l.strip()
            if l == "":
                continue
            if l.endswith(":") or l.startswith("."):
                self.lines.append(l)
            elif l.startswith(";"):
                self.lines.append("    " + l)
            else:
                self.lines.append("    " + l)
    def c(self, s):
        self.lines.append("    ; " + s)
    def label(self, name):
        self.lines.append(name + ":")
    def newlabel(self, base):
        self.uid += 1
        return f"L_{base}_{self.uid}"
    def text(self):
        return "\n".join(self.lines) + "\n"

def v(i, n=1):
    return f"v{i}" if n == 1 else f"v[{i}:{i+n-1}]"
def s(i, n=1):
    return f"s{i}" if n == 1 else f"s[{i}:{i+n-1}]"
def a(i, n=1):
    return f"a{i}" if n == 1 else f"a[{i}:{i+n-1}]"

def srd(A, dst, ptr, nbytes, add=0):
    if add:
        A(f"s_add_u32 s{dst}, s{ptr}, {hex(add)}")
        A(f"s_addc_u32 s{dst+1}, s{ptr+1}, 0")
    else:
        A(f"s_mov_b32 s{dst}, s{ptr}")
        A(f"s_mov_b32 s{dst+1}, s{ptr+1}")
    A(f"s_mov_b32 s{dst+2}, {hex(nbytes)}")
    A(f"s_mov_b32 s{dst+3}, 0x00020000")

import os
PROF = int(os.environ.get("PROF", "0"))
PROF_BASE = 0x2000000
NSTAMP = 8
def stamp(A, idx):
    if PROF:
        A(f"s_memtime s[{80+2*idx}:{81+2*idx}]")
def prof_init(A):
    if PROF:
        for i in range(NSTAMP):
            A(f"s_mov_b64 s[{80+2*i}:{81+2*i}], 0")
        A("s_memrealtime s[68:69]")
        stamp(A, 0)
def prof_dump(A, kidx, wsptr=14, wave_s=40):
    if not PROF:
        return
    A("s_mov_b64 exec, -1")
    stamp(A, NSTAMP - 1)
    A("s_memrealtime s[70:71]")
    A("s_waitcnt lgkmcnt(0)")
    A(f"s_lshl_b32 s96, s2, 4")
    A(f"s_add_u32 s96, s96, s{wave_s}")
    A(f"s_add_u32 s96, s96, {kidx*256*16}")
    A(f"s_lshl_b32 s96, s96, 7")
    A(f"s_add_u32 s96, s96, {PROF_BASE}")
    A(f"s_add_u32 s98, s{wsptr}, s96")
    A(f"s_addc_u32 s99, s{wsptr+1}, 0")
    A("v_mov_b32 v0, 0")
    regs = [80+2*i for i in range(NSTAMP)] + [68, 70]
    for i, r in enumerate(regs):
        A(f"v_mov_b32 v2, s{r}")
        A(f"v_mov_b32 v3, s{r+1}")
        A("s_mov_b64 exec, 1")
        A(f"global_store_dwordx2 v0, v[2:3], s[98:99] offset:{8*i}")
        A("s_mov_b64 exec, -1")
        A("s_nop 1")
```

```python
import itertools
def pos_of(head, sub):
    if head == 19: return (sub + 4) % 5
    if head == 25: return [0, 1, 4, 2, 3][sub]
    return sub
def block_items(cb):
    d = {}
    for g in range(32 * cb, 32 * cb + 32):
        h, s = divmod(g, 5)
        d[(h, pos_of(h, s))] = g - 32 * cb
    pairs, singles = [], []
    for h in sorted(set(k[0] for k in d)):
        for ab in range(2):
            lo, hi = d.get((h, 2 * ab)), d.get((h, 2 * ab + 1))
            assert (lo is None) == (hi is None), (cb, h, ab)
            if lo is not None: pairs.append((lo, hi, h, ab))
        if (h, 4) in d: singles.append((d[(h, 4)], h))
    return pairs, singles
def assign(cb):
    pairs, singles = block_items(cb)
    ns = len(singles) // 2
    assert len(pairs) + ns == 16
    def pairings(lst):
        if not lst: yield []; return
        a = lst[0]
        for i in range(1, len(lst)):
            for rest in pairings(lst[1:i] + lst[i+1:]):
                yield [(a, lst[i])] + rest
    for sp in pairings(singles):
        sitems = [("S", a[0], b[0], a[1], b[1]) for a, b in sp]
        pitems = [("P", lo, hi, h, ab) for lo, hi, h, ab in pairs]
        tiles = [[] for _ in range(4)]; res = [set() for _ in range(4)]
        ok = True
        for t, it in enumerate(sitems):
            r = {it[1] % 8, it[2] % 8}
            if len(r) < 2: ok = False; break
            res[t] = set(r); tiles[t] = [it]
        if not ok: continue
        def rec(i):
            if i == len(pitems): return True
            it = pitems[i]; r = {it[1] % 8, it[2] % 8}
            if len(r) < 2: return False
            for t in range(4):
                if len(tiles[t]) < 4 and not (res[t] & r):
                    tiles[t].append(it); res[t] |= r
                    if rec(i + 1): return True
                    tiles[t].pop(); res[t] -= r
            return False
        if rec(0):
            out = []
            for t in range(4):
                its = tiles[t]
                s = [x for x in its if x[0] == "S"]; p = [x for x in its if x[0] == "P"]
                out.append(p + s)
            return out
    raise RuntimeError("no assignment")
ASSIGN = [assign(cb) for cb in range(5)]
HALF = [0] * 32
for cb in range(5):
    for t in ASSIGN[cb]:
        for it in t:
            if it[0] == "S":
                HALF[it[3]] = 0; HALF[it[4]] = 1
HALF_MASK = sum(b << h for h, b in enumerate(HALF))
def sub_at_pos(head):
    inv = [0] * 5
    for s in range(5): inv[pos_of(head, s)] = s
    return inv
if __name__ == "__main__":
    for cb in range(5):
        print(cb, ASSIGN[cb])
    print(hex(HALF_MASK))
```

```python
import os, sys, struct, math
from asmlib import *

NAME = "concat_heads__softmax_full_mha__ssm_conv_h3__prompt"
KNAME = NAME + "_kernel"

WS_Q  = 0x000000
WS_KV = 0x300000
WS_U  = 0x900000
WS_Z  = 0xC00000
WS_O  = 0xF00000
SYNC  = 0x1200000
WS_BYTES = 0x1202000
REC = 3072
QT = 1536
CHUNK = 16 * REC
COPY = 4160
CONV_SZ = 4 * COPY + 4608
CONV_BASE = 98304
CNT = CONV_BASE + 3 * CONV_SZ
LDS = CNT + 256
WO_A = 98304
WO_BROW = 340
RED = CHUNK
VGPRS = 256
POLL_MAX = 40000
SC = os.environ.get("SCF", " sc1")
L_QKV, L_U, L_Z, L_O = 0, 16, 24, 32
from slots import ASSIGN

def f32bits(x):
    return struct.unpack("<I", struct.pack("<f", x))[0]
QSCALE = f32bits(20 ** -0.5 * math.log2(math.e))

P_X, P_W, P_WO, P_BQ, P_BK, P_BV, P_SH, P_SK, P_SD, P_OUT, P_DBG, P_WS = 4, 6, 8, 10, 12, 14, 16, 18, 20, 22, 24, 26
R_WS = 28
R_A, R_B, R_C = 32, 36, 44
S_WAVE, S_XCD, S_J, S_RB, S_CB = 40, 41, 42, 43, 48

class VM:
    def __init__(self): self.q = []
    def issue(self, tag, cond=False): self.q.append((tag, cond))
    def wait_for(self, tag):
        ids = [i for i, (t, c) in enumerate(self.q) if t == tag]
        if not ids:
            return min(63, sum(1 for (t, c) in self.q if not c))
        idx = max(ids)
        n = sum(1 for (t, c) in self.q[idx+1:] if not c)
        self.q = self.q[idx+1:]
        assert n <= 63
        return n

def poll(A, addr_v, thr_v, tmp, sleep=4, base=None):
    base = P_WS if base is None else base
    L = A.newlabel("poll"); D = A.newlabel("polld")
    A(f"""
    v_cmp_ne_u32 vcc, 0, v{thr_v}
    s_mov_b32 s66, {POLL_MAX}
    s_nop 1
    s_mov_b64 exec, vcc
    {L}:
    global_load_dword v{tmp}, v{addr_v}, s[{base}:{base+1}] sc1
    s_waitcnt vmcnt(0)
    v_cmp_ge_u32 vcc, v{tmp}, v{thr_v}
    s_nop 3
    s_cmp_eq_u64 vcc, exec
    s_cbranch_scc1 {D}
    s_sleep {int(os.environ.get("PSLEEP", sleep))}
    s_sub_u32 s66, s66, 1
    s_cmp_lg_u32 s66, 0
    s_cbranch_scc1 {L}
    {D}:
    s_mov_b64 exec, -1
    """)

def poll_lines(A, line0, nlines, val, t_addr, t_thr, tmp, sleep=4):
    A(f"""
    v_lshlrev_b32 v{t_addr}, 7, v0
    v_add_u32 v{t_addr}, {SYNC + 128*line0}, v{t_addr}
    v_cmp_gt_u32 vcc, {nlines}, v0
    v_mov_b32 v{tmp}, {val}
    s_nop 0
    v_cndmask_b32 v{t_thr}, 0, v{tmp}, vcc
    """)
    poll(A, t_addr, t_thr, tmp, sleep)

def init_issue(A, dst, tmp):
    A(f"""
    v_mov_b32 v{tmp}, 0
    global_load_dword v{dst}, v{tmp}, s[{P_DBG}:{P_DBG+1}] sc1
    """)

def init_check(A, src_v, t0, t1, t2):
    D = A.newlabel("initok")
    A(f"""
    v_readfirstlane_b32 s66, v{src_v}
    s_nop 3
    s_cmp_lg_u32 s66, 0
    s_cbranch_scc1 {D}
    v_mov_b32 v{t0}, 0
    v_mov_b32 v{t1}, 1
    """)
    poll(A, t0, t1, t2, sleep=8, base=P_DBG)
    A.label(D)

def lds_flag_set(A, off, t0, t1):
    A(f"""
    v_mov_b32 v{t0}, {CNT + off}
    v_mov_b32 v{t1}, 1
    ds_write_b32 v{t0}, v{t1}
    """)

def lds_flag_wait(A, off, t0, t1, sleep=2):
    L = A.newlabel("lw"); D = A.newlabel("lwd")
    A(f"""
    v_mov_b32 v{t0}, {CNT + off}
    s_mov_b32 s66, {POLL_MAX*8}
    {L}:
    ds_read_b32 v{t1}, v{t0}
    s_waitcnt lgkmcnt(0)
    v_readfirstlane_b32 s67, v{t1}
    s_nop 3
    s_cmp_lg_u32 s67, 0
    s_cbranch_scc1 {D}
    s_sleep {sleep}
    s_sub_u32 s66, s66, 1
    s_cmp_lg_u32 s66, 0
    s_cbranch_scc1 {L}
    {D}:
    """)

def signal(A, cnt_off, n_s, line_s, t0, t1):
    L = A.newlabel("sig")
    A(f"""
    v_mov_b32 v{t0}, {CNT + cnt_off}
    v_mov_b32 v{t1}, 1
    s_mov_b64 exec, 1
    ds_add_rtn_u32 v{t1}, v{t0}, v{t1}
    s_waitcnt lgkmcnt(0)
    s_mov_b64 exec, -1
    v_readfirstlane_b32 s66, v{t1}
    s_nop 3
    s_add_u32 s66, s66, 1
    s_cmp_lg_u32 s66, {n_s}
    s_cbranch_scc1 {L}
    s_lshl_b32 s66, {line_s}, 7
    s_add_u32 s66, s66, {SYNC}
    v_mov_b32 v{t0}, s66
    v_mov_b32 v{t1}, 1
    s_mov_b64 exec, 1
    global_atomic_add v{t0}, v{t1}, s[{P_WS}:{P_WS+1}] sc1
    s_mov_b64 exec, -1
    {L}:
    """)

def task_id(A, first_wave, dst, exit_lab):
    pass

STAMPS = dict(x.split(":") for x in os.environ.get("STAMPS", "b0:1,gend:2,uok:2,p2a:3,att0:4,att1:5,p3a:6").split(","))
def stp(A, name):
    if name in STAMPS:
        stamp(A, int(STAMPS[name]))

def gen(A):
    name = KNAME
    A(f".globl {name}")
    A(".p2align 8")
    A(f".type {name},@function")
    A.label(name)
    L_exit = "L_exit"
    A(f"""
    s_cmp_ge_u32 s2, 256
    s_cbranch_scc1 {L_exit}
    s_load_dwordx16 s[4:19], s[0:1], 0
    s_load_dwordx8 s[20:27], s[0:1], 64
    v_lshrrev_b32 v1, 6, v0
    v_and_b32 v0, 63, v0
    v_readfirstlane_b32 s{S_WAVE}, v1
    s_and_b32 s{S_XCD}, s2, 7
    s_lshr_b32 s{S_J}, s2, 3
    s_lshr_b32 s{S_RB}, s{S_XCD}, 1
    s_lshl_b32 s{S_RB}, s{S_RB}, 2
    s_and_b32 s49, s{S_J}, 3
    s_add_u32 s{S_RB}, s{S_RB}, s49        ; rb
    s_and_b32 s{S_CB}, s{S_XCD}, 1
    s_lshl_b32 s{S_CB}, s{S_CB}, 3
    s_lshr_b32 s49, s{S_J}, 2
    s_add_u32 s{S_CB}, s{S_CB}, s49        ; cb
    v_mov_b32 v2, {CNT}
    v_mov_b32 v4, 0
    v_mov_b32 v5, 0
    v_mov_b32 v6, 0
    v_mov_b32 v7, 0
    ds_write_b128 v2, v[4:7]
    ds_write_b128 v2, v[4:7] offset:16
    s_waitcnt lgkmcnt(0)
    """)
    srd(A, R_WS, P_WS, WS_BYTES)
    prof_init(A)
    L_nog = "L_nogemm"; L_bpath = "L_bpath"; L_conv = "L_convc"; L_p2a = "L_p2a"; L_gwait = "L_gwait"
    A(f"""
    s_cmp_ge_u32 s{S_CB}, 15
    s_cbranch_scc1 {L_nog}
    """)
    srd(A, R_A, P_X, 2048 * 640 * 2)
    srd(A, R_B, P_W, 640 * 1920 * 2)
    VX0, VX1, VW = 10, 11, 12
    A(f"""
    s_lshl_b32 s49, s{S_WAVE}, 11
    s_mul_i32 s53, s{S_WAVE}, 30720
    ; rot = (cb + 3*(rb&3)) % 10
    s_and_b32 s50, s{S_RB}, 3
    s_mul_i32 s50, s50, 3
    s_add_u32 s50, s50, s{S_CB}
    s_cmp_ge_u32 s50, 20
    s_cselect_b32 s51, 20, 0
    s_sub_u32 s50, s50, s51
    s_cmp_ge_u32 s50, 10
    s_cselect_b32 s51, 10, 0
    s_sub_u32 s50, s50, s51                ; kstep
    s_lshl_b32 s51, s50, 7
    s_mul_i32 s52, s50, 245760
    s_add_u32 s52, s52, s53
    v_lshrrev_b32 v2, 3, v0        ; L/8
    v_lshrrev_b32 v3, 4, v0        ; L/16
    v_and_b32 v4, 7, v0
    v_xor_b32 v4, v4, v3
    s_lshl_b32 s54, s{S_RB}, 7
    s_lshl_b32 s55, s{S_WAVE}, 4
    s_add_u32 s54, s54, s55        ; T0 + 16w
    v_add_u32 v2, s54, v2
    v_mul_u32_u24 v2, 1280, v2
    v_lshl_add_u32 v{VX0}, v4, 4, v2
    v_xor_b32 v{VX1}, 64, v{VX0}
    v_add_u32 v{VX1}, 10240, v{VX1}
    v_and_b32 v4, 15, v0
    v_lshlrev_b32 v5, 2, v3
    v_xor_b32 v4, v4, v5
    v_mul_u32_u24 v5, 3840, v3
    v_lshl_add_u32 v{VW}, v4, 4, v5
    s_lshl_b32 s54, s{S_CB}, 8
    v_add_u32 v{VW}, s54, v{VW}
    """)
    slot_of = lambda st: (st + 2) % 3
    def dma_stage(st):
        so = slot_of(st) * 32768
        return [f"""
            s_add_u32 m0, s49, {so}
            s_add_u32 s54, s52, 15360
            buffer_load_dwordx4 v{VX0}, s[{R_A}:{R_A+3}], s51 offen lds""", f"""
            s_add_u32 m0, s49, {so + 1024}
            s_nop 0
            buffer_load_dwordx4 v{VX1}, s[{R_A}:{R_A+3}], s51 offen lds""", f"""
            s_add_u32 m0, s49, {so + 16384}
            s_nop 0
            buffer_load_dwordx4 v{VW}, s[{R_B}:{R_B+3}], s52 offen lds""", f"""
            s_add_u32 m0, s49, {so + 16384 + 1024}
            s_add_u32 s50, s50, 1
            buffer_load_dwordx4 v{VW}, s[{R_B}:{R_B+3}], s54 offen lds
            s_cmp_eq_u32 s50, 10
            s_cselect_b32 s50, 0, s50
            s_lshl_b32 s51, s50, 7
            s_mul_i32 s52, s50, 245760
            s_add_u32 s52, s52, s53"""]
    for st in range(3):
        for c in dma_stage(st): A(c)
    A(f"""
    s_cmp_ge_u32 s{S_WAVE}, 4
    s_cbranch_scc1 {L_bpath}
    """)
    A(f"""
    s_lshr_b32 s56, s{S_WAVE}, 1       ; wr
    s_and_b32 s57, s{S_WAVE}, 1        ; wc
    v_and_b32 v2, 31, v0           ; n
    v_lshrrev_b32 v3, 5, v0        ; h
    v_bfe_u32 v4, v0, 1, 3         ; (l>>1)&7
    s_lshl_b32 s54, s56, 6
    v_add_u32 v5, s54, v2
    v_lshlrev_b32 v5, 7, v5        ; token_local*128
    """)
    for ks in range(4):
        A(f"""
        v_add_u32 v6, {2*ks}, v3
        v_xor_b32 v6, v6, v4
        v_lshl_add_u32 v{16+ks}, v6, 4, v5
        v_add_u32 v{20+ks}, 0x10000, v{16+ks}""")
    def w_addr():
        A(f"""
        v_lshrrev_b32 v2, 4, v0        ; g
        v_bfe_u32 v3, v0, 2, 2         ; r
        v_and_b32 v4, 3, v0            ; c4
        v_lshrrev_b32 v5, 1, v2
        v_lshl_add_u32 v5, v5, 3, v3   ; k_local
        v_lshlrev_b32 v5, 8, v5
        v_add_u32 v5, 16384, v5
        v_and_b32 v6, 1, v2
        v_lshl_add_u32 v6, v6, 2, v4   ; rg = 4*(g&1) + c4
        v_mul_u32_u24 v6, 5, v6        ; 5*rg
        v_lshlrev_b32 v7, 2, v3        ; 4r
        """)
        for ft in range(2):
            A(f"""
            v_lshrrev_b64 v[8:9], v6, s[{60+2*ft}:{61+2*ft}]
            v_and_b32 v8, 31, v8           ; group
            v_lshrrev_b32 v9, 1, v8
            v_xor_b32 v9, v9, v7
            v_and_b32 v8, 1, v8
            v_lshlrev_b32 v8, 3, v8
            v_lshl_add_u32 v8, v9, 4, v8
            v_add_u32 v{24+ft}, v5, v8
            v_add_u32 v{26+ft}, 0x10000, v{24+ft}""")
    FR = [dict(X=[32, 36], W=[40, 44]), dict(X=[48, 52], W=[56, 60])]
    ACC = lambda ft, tt: 64 + 16 * (2 * ft + tt)
    def reads(st, ks, setid):
        slot = slot_of(st)
        hi = slot == 2
        so = 0 if hi else slot * 32768
        xa = (20 if hi else 16) + ks
        wa = (26 if hi else 24)
        F = FR[setid]
        return [f"ds_read_b128 {v(F['X'][0],4)}, v{xa} offset:{so}",
                f"ds_read_b64_tr_b16 {v(F['W'][0],2)}, v{wa} offset:{so + ks*4096}",
                f"ds_read_b64_tr_b16 {v(F['W'][0]+2,2)}, v{wa} offset:{so + ks*4096 + 1024}",
                f"ds_read_b128 {v(F['X'][1],4)}, v{xa} offset:{so + 4096}",
                f"ds_read_b64_tr_b16 {v(F['W'][1],2)}, v{wa+1} offset:{so + ks*4096}",
                f"ds_read_b64_tr_b16 {v(F['W'][1]+2,2)}, v{wa+1} offset:{so + ks*4096 + 1024}"]
    def mfmas(setid, first, vmode):
        F = FR[setid]; m = []
        for (ft, tt) in [(0, 0), (0, 1), (1, 0), (1, 1)]:
            d = ACC(ft, tt); c = "0" if first else v(d, 16)
            if vmode:
                m.append(f"v_mfma_f32_32x32x16_bf16 {v(d,16)}, {v(F['X'][tt],4)}, {v(F['W'][ft],4)}, {c}")
            else:
                m.append(f"v_mfma_f32_32x32x16_bf16 {v(d,16)}, {v(F['W'][ft],4)}, {v(F['X'][tt],4)}, {c}")
        return m
    def main_loop(vmode):
        A("s_waitcnt vmcnt(8)")
        A("s_barrier")
        stp(A, "b0")
        for r in reads(0, 0, 0): A(r)
        n = 0
        for st in range(10):
            for ks in range(4):
                setid = n % 2
                m = mfmas(setid, n == 0, vmode)
                if ks < 3:
                    A("s_waitcnt lgkmcnt(0)")
                    A(m[0])
                    for r in reads(st, ks + 1, 1 - setid): A(r)
                    A(m[1]); A(m[2]); A(m[3])
                elif st < 9:
                    A(f"s_waitcnt vmcnt({4 if st + 2 <= 9 else 0}) lgkmcnt(0)")
                    A("s_barrier")
                    A(m[0])
                    for r in reads(st + 1, 0, 1 - setid): A(r)
                    d = dma_stage(st + 3) if st + 3 < 10 else []
                    A(m[1])
                    for c in d[:2]: A(c)
                    A(m[2])
                    for c in d[2:]: A(c)
                    A(m[3])
                else:
                    A("s_waitcnt lgkmcnt(0)")
                    for x in m: A(x)
                n += 1
        stp(A, "gend")
    L_vpath = A.newlabel("vpath")
    A(f"""
    s_mov_b32 s67, s{S_CB}
    s_cmp_ge_u32 s{S_CB}, 10
    s_cbranch_scc1 {L_vpath}
    ; ---------- Q/K ----------
    s_cmp_ge_u32 s{S_CB}, 5
    s_cselect_b32 s55, 5, 0
    s_sub_u32 s55, s{S_CB}, s55        ; cb'
    s_lshl_b32 s55, s55, 1
    s_add_u32 s55, s55, s57
    """)
    L_vdone = A.newlabel("vdone")
    for var in range(10):
        cbp, wc = divmod(var, 2)
        T = []; D = []; DUP = 0
        for ft in range(2):
            tile = ASSIGN[cbp][2*wc + ft]
            tab = [0]*8; dw = 0
            for si, it in enumerate(tile):
                ap, h = divmod(si, 2)
                tab[4*ap + h] = it[1]; tab[4*ap + 2 + h] = it[2]
                head, region = (it[3], it[4]) if it[0] == "P" else (it[3], 2)
                dw |= ((head << 2) | region) << (8*si)
                if it[0] == "S":
                    assert si == 3
                    DUP |= ((it[4] << 1) | 1) << (8*ft)
            T.append(sum(g << (5*i) for i, g in enumerate(tab))); D.append(dw)
        nxt = A.newlabel("var")
        A(f"""
        s_cmp_lg_u32 s55, {var}
        s_cbranch_scc1 {nxt}
        s_mov_b32 s60, {hex(T[0] & 0xffffffff)}
        s_mov_b32 s61, {hex(T[0] >> 32)}
        s_mov_b32 s62, {hex(T[1] & 0xffffffff)}
        s_mov_b32 s63, {hex(T[1] >> 32)}
        s_mov_b32 s64, {hex(D[0])}
        s_mov_b32 s65, {hex(D[1])}
        s_mov_b32 s54, {hex(DUP)}
        s_branch {L_vdone}
        {nxt}:""")
    A(f"""
    s_mov_b64 s[60:61], 0
    s_mov_b64 s[62:63], 0
    s_mov_b64 s[64:65], 0
    s_mov_b32 s54, 0
    {L_vdone}:
    """)
    w_addr()
    A(f"""
    s_mov_b32 s61, {64*QT}
    s_mov_b32 s62, {QT}
    s_mov_b32 s63, {WS_Q}
    s_mov_b32 s60, 0
    s_mov_b32 s58, {hex(QSCALE)}
    s_cmp_ge_u32 s{S_CB}, 5
    s_cmov_b32 s61, {64*REC}
    s_cmov_b32 s62, {REC}
    s_cmov_b32 s63, {WS_KV}
    s_cmov_b32 s60, 62
    s_cmov_b32 s58, 0x3f800000
    s_mov_b32 s59, s58
    v_lshrrev_b32 v3, 5, v0        ; h
    v_and_b32 v2, 31, v0           ; n
    v_lshlrev_b32 v2, 4, v2        ; n*16
    v_lshlrev_b32 v4, 3, v3        ; 8*h
    """)
    for ft in range(2):
        for ap in range(2):
            A(f"""
            v_add_u32 v5, {16*ap}, v4
            v_lshrrev_b32 v6, v5, s{64+ft}
            v_and_b32 v6, 0xff, v6
            v_lshrrev_b32 v7, 2, v6            ; head
            v_and_b32 v6, 3, v6                ; region
            v_mul_lo_u32 v7, v7, s61
            v_lshl_add_u32 v7, v6, 9, v7
            v_add_u32 v{128+2*ft+ap}, v7, v2""")
        A(f"""
        s_bfe_u32 s55, s54, {hex((7 << 16) | (8*ft + 1))}   ; head B
        s_mul_i32 s55, s55, s61
        s_add_u32 s55, s55, 1024
        s_bfe_u32 s66, s54, {hex((1 << 16) | (8*ft))}       ; valid
        v_add_u32 v6, s55, v2
        v_mov_b32 v7, 0x7fff0000
        v_and_b32 v8, s66, v3                               ; valid & h
        v_cmp_ne_u32 vcc, 0, v8
        s_nop 1
        v_cndmask_b32 v{132+ft}, v7, v6, vcc""")
    A(f"""
    s_lshl_b32 s54, s{S_RB}, 2
    s_lshl_b32 s55, s56, 1
    s_add_u32 s54, s54, s55
    s_add_u32 s54, s54, s60
    s_and_b32 s54, s54, 63
    s_mul_i32 s54, s54, s62
    s_add_u32 s64, s54, s63
    s_add_u32 s65, s64, s62
    """)
    main_loop(False)
    init_issue(A, 136, 137)
    A("s_nop 15")
    for ft in range(2):
        for tt in range(2):
            d = ACC(ft, tt)
            for i in range(0, 16, 2):
                A(f"v_pk_mul_f32 {v(d+i,2)}, {v(d+i,2)}, s[58:59]")
            for ap in range(2):
                for i in range(4):
                    A(f"v_cvt_pk_bf16_f32 v{d+8*ap+i}, v{d+8*ap+2*i}, v{d+8*ap+2*i+1}")
                A(f"buffer_store_dwordx4 {v(d+8*ap,4)}, v{128+2*ft+ap}, s[{R_WS}:{R_WS+3}], s{64+tt} offen{SC}")
            A(f"buffer_store_dwordx4 {v(d+8,4)}, v{132+ft}, s[{R_WS}:{R_WS+3}], s{64+tt} offen{SC}")
    L_gsig = A.newlabel("gsig")
    A(f"s_branch {L_gsig}")
    A.label(L_vpath)
    nat = sum(i << (5*i) for i in range(8))
    rep = sum(1 << (5*i) for i in range(8))
    A(f"""
    s_lshl_b32 s54, s57, 4
    s_mul_i32 s55, s54, {hex(rep & 0xffffffff)}
    s_mul_hi_u32 s61, s54, {hex(rep & 0xffffffff)}
    s_mul_i32 s66, s54, {hex(rep >> 32)}
    s_add_u32 s61, s61, s66
    s_add_u32 s60, s55, {hex(nat & 0xffffffff)}
    s_addc_u32 s61, s61, {hex(nat >> 32)}
    s_add_u32 s62, s60, {hex((8*rep) & 0xffffffff)}
    s_addc_u32 s63, s61, {hex((8*rep) >> 32)}
    """)
    w_addr()
    A(f"""
    s_sub_u32 s60, s{S_CB}, 10
    s_lshl_b32 s54, s{S_RB}, 2
    s_lshl_b32 s55, s56, 1
    s_add_u32 s54, s54, s55
    s_mul_i32 s54, s54, {REC}
    s_add_u32 s64, s54, {WS_KV}
    s_lshl_b32 s54, s60, 7
    s_lshl_b32 s55, s57, 6
    s_add_u32 s54, s54, s55
    v_and_b32 v2, 31, v0
    v_lshrrev_b32 v3, 5, v0
    v_mul_u32_u24 v3, 384, v3
    v_add_u32 v3, 1536, v3
    v_add_u32 v2, s54, v2
    s_mov_b32 s61, {64*REC}
    """)
    for ft in range(2):
        A(f"""
        v_add_u32 v4, {32*ft}, v2
        v_mul_u32_u24 v5, 52429, v4
        v_lshrrev_b32 v5, 20, v5
        v_mul_u32_u24 v6, 20, v5
        v_sub_u32 v6, v4, v6               ; m
        v_mul_lo_u32 v5, v5, s61
        v_lshl_add_u32 v5, v6, 4, v5
        v_add_u32 v{128+ft}, v5, v3
        v_cmp_eq_u32 vcc, 16, v6
        v_mov_b32 v7, 0x3f803f80
        v_cmp_le_u32 s[{58+4*ft}:{59+4*ft}], 16, v6
        v_cndmask_b32 v{130+ft}, 0, v7, vcc""")
    main_loop(True)
    init_issue(A, 136, 137)
    A("s_nop 15")
    for ft in range(2):
        for i in range(4):
            A(f"v_mov_b32 v{32+4*ft+i}, v{130+ft}")
    for ft in range(2):
        for tt in range(2):
            d = ACC(ft, tt)
            for f in range(2):
                for i in range(4):
                    A(f"v_cvt_pk_bf16_f32 v{d+8*f+i}, v{d+8*f+2*i}, v{d+8*f+2*i+1}")
                A(f"buffer_store_dwordx4 {v(d+8*f,4)}, v{128+ft}, s[{R_WS}:{R_WS+3}], s64 offen offset:{tt*REC + f*768}{SC}")
    for ft in range(2):
        A(f"s_mov_b64 exec, s[{58+4*ft}:{59+4*ft}]")
        lab = A.newlabel("noones")
        A(f"s_cbranch_execz {lab}")
        for tt in range(2):
            for f in range(2):
                A(f"buffer_store_dwordx4 {v(32+4*ft,4)}, v{128+ft}, s[{R_WS}:{R_WS+3}], s64 offen offset:{tt*REC + f*768 + 64}{SC}")
        A.label(lab)
    A("s_mov_b64 exec, -1")
    A.label(L_gsig)
    stp(A, "gstored")
    A("s_waitcnt vmcnt(0)")
    stp(A, "gdrained")
    init_check(A, 136, 2, 3, 4)
    signal(A, 0, 4, "s67", 2, 3)
    stp(A, "gsig")
    A(f"s_branch {L_gwait}")

    A.label(L_nog)
    L_noz = A.newlabel("noz")
    A(f"""
    s_cmp_lg_u32 s2, 225
    s_cbranch_scc1 {L_noz}
    s_cmp_lg_u32 s{S_WAVE}, 7
    s_cbranch_scc1 {L_noz}
    v_lshlrev_b32 v2, 4, v0
    v_add_u32 v2, {SYNC}, v2
    v_mov_b32 v4, 0
    v_mov_b32 v5, 0
    v_mov_b32 v6, 0
    v_mov_b32 v7, 0
    """)
    for i in range(5):
        A(f"s_mov_b32 s54, {1024*i}")
        A(f"buffer_store_dwordx4 v[4:7], v2, s[{R_WS}:{R_WS+3}], s54 offen sc1")
    A(f"""
    s_waitcnt vmcnt(0)
    v_mov_b32 v2, 0
    v_mov_b32 v3, 1
    s_mov_b64 exec, 1
    global_store_dword v2, v3, s[{P_DBG}:{P_DBG+1}] sc1
    s_mov_b64 exec, -1
    {L_noz}:
    """)
    A("s_barrier")
    L_nog_b = A.newlabel("nogb")
    A(f"""
    s_cmp_ge_u32 s{S_WAVE}, 4
    s_cbranch_scc1 {L_nog_b}
    s_cmp_lg_u32 s{S_WAVE}, 0
    s_cbranch_scc1 {L_p2a}
    v_mov_b32 v2, 0
    v_mov_b32 v3, 1
    """)
    poll(A, 2, 3, 4, sleep=16, base=P_DBG)
    A.label(L_gwait)
    A(f"""
    s_cmp_lg_u32 s{S_WAVE}, 0
    s_cbranch_scc1 {L_p2a}
    s_lshl_b32 s54, s{S_XCD}, 2
    s_lshr_b32 s55, s{S_J}, 3
    s_add_u32 s54, s54, s55            ; head
    s_mul_i32 s54, s54, 5
    s_add_u32 s55, s54, 4
    s_lshr_b32 s54, s54, 5             ; c0
    s_lshr_b32 s55, s55, 5             ; c1
    v_and_b32 v2, 1, v0
    v_cmp_eq_u32 vcc, 1, v2
    v_mov_b32 v3, s54
    v_mov_b32 v4, s55
    v_cndmask_b32 v3, v3, v4, vcc
    v_lshrrev_b32 v2, 1, v0
    v_mul_u32_u24 v2, 5, v2
    v_add_u32 v2, v2, v3               ; cb
    v_lshlrev_b32 v2, 7, v2
    v_add_u32 v2, {SYNC + 128*L_QKV}, v2
    v_cmp_gt_u32 vcc, 6, v0
    v_mov_b32 v3, 16
    s_nop 0
    v_cndmask_b32 v4, 0, v3, vcc
    """)
    poll(A, 2, 4, 3)
    stp(A, "qkvok")
    A(f"s_branch {L_p2a}")

    def bpre_setup(notask_lab):
        L6 = A.newlabel("t6"); Lgo = A.newlabel("tgo")
        A(f"""
        s_cmp_eq_u32 s{S_WAVE}, 7
        s_cbranch_scc1 {notask_lab}
        s_cmp_eq_u32 s{S_WAVE}, 6
        s_cbranch_scc1 {L6}
        s_lshl_b32 s56, s2, 1
        s_sub_u32 s57, s{S_WAVE}, 4
        s_add_u32 s56, s56, s57
        s_branch {Lgo}
        {L6}:
        s_cmp_ge_u32 s2, 128
        s_cbranch_scc1 {notask_lab}
        s_add_u32 s56, s2, 512
        {Lgo}:
        s_mul_i32 s57, s56, 52429
        s_lshr_b32 s57, s57, 19        ; tblk
        s_mul_i32 s58, s57, 10
        s_sub_u32 s58, s56, s58        ; dblk
        """)
    def bpre_loads(vm):
        srd(A, R_C, P_BK, 2048 * 640 * 2)
        srd(A, 60, P_BV, 2048 * 640 * 2)
        A(f"""
        v_and_b32 v2, 7, v0            ; dg
        v_lshrrev_b32 v3, 3, v0        ; tg
        s_lshl_b32 s54, s58, 6
        v_lshl_add_u32 v2, v2, 3, s54  ; d0
        s_lshl_b32 s55, s57, 5
        v_lshl_add_u32 v3, v3, 2, s55  ; t0
        v_mul_u32_u24 v4, 1280, v3
        v_lshl_add_u32 v4, v2, 1, v4
        v_subrev_u32 v5, 3840, v4
        v_subrev_u32 v6, 2560, v4
        v_subrev_u32 v7, 1280, v4
        v_lshlrev_b32 v8, 3, v2
        v_lshlrev_b32 v9, 12, v2
        v_lshl_add_u32 v9, v3, 1, v9
        v_add_u32 v9, {WS_U}, v9
        buffer_load_dwordx4 v[16:19], v5, s[{R_C}:{R_C+3}], 0 offen
        buffer_load_dwordx4 v[20:23], v6, s[{R_C}:{R_C+3}], 0 offen
        buffer_load_dwordx4 v[24:27], v7, s[{R_C}:{R_C+3}], 0 offen
        """)
        for j in range(4):
            A(f"buffer_load_dwordx4 {v(28+4*j,4)}, v4, s[{R_C}:{R_C+3}], 0 offen offset:{1280*j}")
        for j in range(4):
            A(f"buffer_load_dwordx4 {v(44+4*j,4)}, v4, s[60:63], 0 offen offset:{1280*j}")
        srd(A, R_C, P_SH, 640 * 4 * 2)
        for j in range(4):
            A(f"buffer_load_dwordx4 {v(60+4*j,4)}, v8, s[{R_C}:{R_C+3}], 0 offen offset:{16*j}")
        for _ in range(15): vm.issue("bl")
    def bpre_compute(q, vm):
        if q == 0:
            init_issue(A, 136, 137); vm.issue("ini")
        for j in range(7):
            A(f"v_lshlrev_b32 v{80+2*j}, 16, v{16+4*j+q}")
            A(f"v_and_b32 v{81+2*j}, 0xffff0000, v{16+4*j+q}")
        for t in range(4):
            A(f"v_lshlrev_b32 v{94+2*t}, 16, v{44+4*t+q}")
            A(f"v_and_b32 v{95+2*t}, 0xffff0000, v{44+4*t+q}")
        for u in range(2):
            b = 60 + 4*q + 2*u
            A(f"v_lshlrev_b32 v{102+u}, 16, v{b}")
            A(f"v_and_b32 v{104+u}, 0xffff0000, v{b}")
            A(f"v_lshlrev_b32 v{106+u}, 16, v{b+1}")
            A(f"v_and_b32 v{108+u}, 0xffff0000, v{b+1}")
        for t in range(4):
            acc = 110 + 2*t
            A(f"v_pk_mul_f32 {v(acc,2)}, {v(80+2*(t+0),2)}, {v(108,2)}")
            A(f"v_pk_fma_f32 {v(acc,2)}, {v(80+2*(t+1),2)}, {v(106,2)}, {v(acc,2)}")
            A(f"v_pk_fma_f32 {v(acc,2)}, {v(80+2*(t+2),2)}, {v(104,2)}, {v(acc,2)}")
            A(f"v_pk_fma_f32 {v(acc,2)}, {v(80+2*(t+3),2)}, {v(102,2)}, {v(acc,2)}")
            A(f"v_pk_mul_f32 {v(acc,2)}, {v(acc,2)}, {v(94+2*t,2)}")
        for u in range(2):
            o = 120 + 4*q + 2*u
            A(f"v_cvt_pk_bf16_f32 v{o}, v{110+u}, v{112+u}")
            A(f"v_cvt_pk_bf16_f32 v{o+1}, v{114+u}, v{116+u}")
        for u in range(2):
            o = 120 + 4*q + 2*u
            A(f"s_mov_b32 s54, {(2*q+u)*4096}")
            A(f"buffer_store_dwordx2 {v(o,2)}, v9, s[{R_WS}:{R_WS+3}], s54 offen{SC}")
            vm.issue("us")
    def u_signal():
        init_check(A, 136, 2, 3, 4)
        A(f"""
        s_cmp_lt_u32 s2, 128
        s_cselect_b32 s64, 3, 2
        s_and_b32 s65, s2, 7
        s_add_u32 s65, s65, {L_U}
        """)
        signal(A, 4, "s64", "s65", 2, 3)
    def hcopy_dma(vm):
        srd(A, R_C, P_SK, 640 * 4096)
        A(f"""
        s_sub_u32 s57, s{S_WAVE}, 4
        s_mul_i32 s57, s57, {CONV_SZ}
        s_add_u32 s57, s57, {CONV_BASE}
        s_lshl_b32 s58, s56, 12             ; d*4096
        v_lshlrev_b32 v13, 4, v0
        v_add_u32 v13, s58, v13
        """)
        for r in range(4):
            for p in range(4):
                dlt = 1024*p - 2*r
                A(f"v_add_u32 v14, {dlt}, v13" if dlt >= 0 else f"v_subrev_u32 v14, {-dlt}, v13")
                A(f"""
                s_add_u32 m0, s57, {r*COPY + 32 + p*1024}
                s_nop 0
                buffer_load_dwordx4 v14, s[{R_C}:{R_C+3}], 0 offen lds""")
                vm.issue("h")
        A(f"""
        v_mov_b32 v14, s58
        buffer_load_dwordx4 v[132:135], v14, s[{R_C}:{R_C+3}], 0 offen
        """)
        vm.issue("h")

    A.label(L_bpath)
    L_bnt = A.newlabel("bnt")
    bpre_setup(L_bnt)
    vm = VM()
    for st in range(3):
        for _ in range(4): vm.issue(f"st{st}")
    bpre_loads(vm)
    def bar(st_need):
        A(f"s_waitcnt vmcnt({vm.wait_for(f'st{st_need}')})")
        A("s_barrier")
    def dma(st):
        for c in dma_stage(st):
            A(c); vm.issue(f"st{st}")
    bar(0)
    stp(A, "b0")
    bar(1); dma(3)
    bar(2); dma(4)
    A(f"s_waitcnt vmcnt({vm.wait_for('bl')})")
    bpre_compute(0, vm); bpre_compute(1, vm)
    bar(3); dma(5)
    bpre_compute(2, vm); bpre_compute(3, vm)
    bar(4); dma(6)
    A(f"s_waitcnt vmcnt({vm.wait_for('us')})")
    u_signal()
    hcopy_dma(vm)
    bar(5); dma(7)
    bar(6); dma(8)
    bar(7); dma(9)
    bar(8)
    bar(9)
    stp(A, "b9")
    A(f"s_branch {L_conv}")
    A.label(L_bnt)
    vm = VM()
    for st in range(3):
        for _ in range(4): vm.issue(f"st{st}")
    bar(0)
    for st in range(1, 10):
        bar(st)
        if st + 2 < 10: dma(st + 2)
    A(f"s_branch {L_p2a}")
    A.label(L_nog_b)
    bpre_setup(L_p2a)
    vm = VM()
    bpre_loads(vm)
    A("s_waitcnt vmcnt(0)")
    for q in range(4): bpre_compute(q, vm)
    A("s_waitcnt vmcnt(0)")
    u_signal()
    hcopy_dma(vm)

    A.label(L_conv)
    A(f"""
    s_lshr_b32 s59, s56, 1
    s_lshl_b32 s59, s59, 2
    s_load_dword s60, s[{P_SD}:{P_SD+1}], s59
    v_mov_b32 v12, 0
    v_mov_b32 v13, 0
    v_mov_b32 v14, 0
    v_mov_b32 v15, 0
    v_lshlrev_b32 v6, 3, v0
    v_add_u32 v6, s57, v6
    v_add_u32 v6, {4*COPY}, v6
    v_cmp_gt_u32 vcc, 60, v0
    s_and_saveexec_b64 s[54:55], vcc
    ds_write_b64 v6, v[12:13]
    s_mov_b64 exec, s[54:55]
    v_and_b32 v6, 1, v0
    v_lshlrev_b32 v6, 4, v6
    v_lshrrev_b32 v7, 1, v0
    v_mul_u32_u24 v7, {COPY}, v7
    v_add3_u32 v6, v6, v7, s57
    v_cmp_gt_u32 vcc, 8, v0
    s_and_saveexec_b64 s[54:55], vcc
    ds_write_b128 v6, v[12:15]
    s_mov_b64 exec, s[54:55]
    """)
    L_uw = A.newlabel("uw"); L_ud = A.newlabel("ud")
    A(f"""
    s_cmp_lg_u32 s{S_WAVE}, 4
    s_cbranch_scc1 {L_uw}
    """)
    poll_lines(A, L_U, 8, 32, 2, 4, 3, sleep=16)
    lds_flag_set(A, 16, 2, 3)
    A(f"s_branch {L_ud}")
    A.label(L_uw)
    lds_flag_wait(A, 16, 2, 3)
    A("s_waitcnt vmcnt(0)")
    A.label(L_ud)
    stp(A, "uok")
    A(f"""
    v_lshlrev_b32 v2, 4, v0
    s_add_u32 s61, s58, {WS_U}
    """)
    for p in range(4):
        A(f"""
        s_add_u32 m0, s57, {4*COPY + 480 + p*1024}
        s_add_u32 s54, s61, {p*1024}
        buffer_load_dwordx4 v2, s[{R_WS}:{R_WS+3}], s54 offen{SC} lds""")
    A(f"""
    v_lshlrev_b32 v16, 16, v132
    v_alignbit_b32 v17, v133, v132, 16
    v_alignbit_b32 v18, v134, v133, 16
    v_alignbit_b32 v19, v135, v134, 16
    v_mov_b32 v20, 0
    v_mov_b32 v21, v132
    v_mov_b32 v22, v133
    v_mov_b32 v23, v134
    v_mov_b32 v24, 0
    v_mov_b32 v25, v16
    v_mov_b32 v26, v17
    v_mov_b32 v27, v18
    v_mov_b32 v6, s57
    s_mov_b64 exec, 1
    ds_write_b128 v6, v[16:19] offset:{1*COPY + 32}
    ds_write_b128 v6, v[20:23] offset:{2*COPY + 32}
    ds_write_b128 v6, v[24:27] offset:{3*COPY + 32}
    s_mov_b64 exec, -1
    v_lshrrev_b32 v6, 4, v0             ; kg
    v_bfe_u32 v7, v0, 2, 2              ; r
    v_and_b32 v8, 3, v0                 ; c
    v_mul_u32_u24 v7, {COPY}, v7
    v_lshlrev_b32 v8, 3, v8
    v_lshlrev_b32 v9, 4, v6
    v_sub_u32 v8, v8, v9
    v_add_u32 v8, 56, v8
    v_add3_u32 v4, v7, v8, s57          ; vA
    v_and_b32 v7, 15, v0
    v_lshlrev_b32 v7, 5, v7
    v_lshl_add_u32 v7, v6, 4, v7
    v_add_u32 v7, {4*COPY}, v7
    v_add_u32 v5, s57, v7               ; vB
    s_waitcnt vmcnt(0) lgkmcnt(0)
    s_and_b32 s54, s56, 1
    s_lshl_b32 s54, s54, 4
    s_lshr_b32 s60, s60, s54
    s_lshl_b32 s60, s60, 16             ; D as f32
    """)
    stp(A, "conv0")
    Y = 32; AT = 64; BT = 96
    for rho in range(8):
        for p in range(8):
            mu = rho + 8 * p
            A(f"ds_read_b64_tr_b16 {v(AT+4*p,2)}, v4 offset:{64*mu + 8}")
            A(f"ds_read_b64_tr_b16 {v(AT+4*p+2,2)}, v4 offset:{64*mu}")
            if p % 4 == 3 and p < 7:
                A("s_waitcnt lgkmcnt(4)")
        A("s_waitcnt lgkmcnt(6)")
        for q in range(8):
            j = 8 * q - rho
            A(f"ds_read_b128 {v(BT+4*q,4)}, v5 offset:{64*(j+7)}")
        A("s_waitcnt lgkmcnt(0)")
        for p in range(8):
            for q in range(8 - p):
                i = p + q
                cc = "0" if (rho == 0 and p == 0) else v(Y+4*i, 4)
                A(f"v_mfma_f32_16x16x32_bf16 {v(Y+4*i,4)}, {v(AT+4*p,4)}, {v(BT+4*q,4)}, {cc}")
    stp(A, "conv1")
    A(f"""
    v_and_b32 v7, 15, v0
    v_lshrrev_b32 v6, 4, v0
    v_lshlrev_b32 v7, 5, v7
    v_lshl_add_u32 v7, v6, 3, v7        ; 32n + 8g
    v_add_u32 v8, s57, v7
    v_add_u32 v8, {4*COPY + 480}, v8
    s_add_u32 s61, s58, {WS_Z}
    """)
    for i in range(8):
        A(f"ds_read_b64 {v(AT+2*i,2)}, v8 offset:{512*i}")
    A("s_waitcnt lgkmcnt(0)")
    A("s_nop 3")
    for i in range(8):
        u0, u1 = AT + 2*i, AT + 2*i + 1
        y = Y + 4*i
        A(f"""
        v_lshlrev_b32 v96, 16, v{u0}
        v_and_b32 v97, 0xffff0000, v{u0}
        v_lshlrev_b32 v98, 16, v{u1}
        v_and_b32 v99, 0xffff0000, v{u1}
        v_fma_f32 v{y}, v96, s60, v{y}
        v_fma_f32 v{y+1}, v97, s60, v{y+1}
        v_fma_f32 v{y+2}, v98, s60, v{y+2}
        v_fma_f32 v{y+3}, v99, s60, v{y+3}
        v_cvt_pk_bf16_f32 v{y}, v{y}, v{y+1}
        v_cvt_pk_bf16_f32 v{y+1}, v{y+2}, v{y+3}
        buffer_store_dwordx2 {v(y,2)}, v7, s[{R_WS}:{R_WS+3}], s61 offen offset:{512*i}{SC}""")
    A("s_waitcnt vmcnt(0)")
    stp(A, "zdrained")
    A(f"""
    s_cmp_lt_u32 s2, 128
    s_cselect_b32 s64, 3, 2
    s_and_b32 s65, s2, 7
    s_add_u32 s65, s65, {L_Z}
    """)
    signal(A, 8, "s64", "s65", 2, 3)

    A.label(L_p2a)
    A("s_barrier")
    stp(A, "p2a")
    Q1, Q2 = 4, 8
    O = 16
    S = [32, 48]
    P = [64, 72]
    KA, KB, V0, V1 = 80, 84, 88, 92
    AK = [96, 99]; AK2 = [97, 100]; AV = [98, 101]
    KA0, KB0 = 104, 108
    WOV = 120
    A(f"""
    s_lshl_b32 s43, s{S_XCD}, 2
    s_lshr_b32 s44, s{S_J}, 3
    s_add_u32 s43, s43, s44        ; head
    s_and_b32 s44, s{S_J}, 7       ; qb
    s_mul_i32 s45, s43, {64*REC}
    s_add_u32 s45, s45, {WS_KV}
    s_lshl_b32 s46, s44, 3
    s_add_u32 s46, s46, s{S_WAVE}  ; q tile
    s_lshl_b32 s47, s43, 6
    s_add_u32 s47, s47, s46
    s_mul_i32 s47, s47, {QT}
    s_add_u32 s47, s47, {WS_Q}
    v_lshlrev_b32 v2, 4, v0
    v_and_b32 v3, 31, v0
    v_lshlrev_b32 v1, 4, v3
    s_and_b32 s48, s43, 1
    s_lshl_b32 s48, s48, 3
    s_add_u32 s48, s48, 1024
    v_add_u32 v1, s48, v1
    buffer_load_dwordx4 {v(Q1,4)}, v2, s[{R_WS}:{R_WS+3}], s47 offen{SC}
    buffer_load_dwordx2 {v(Q2,2)}, v1, s[{R_WS}:{R_WS+3}], s47 offen{SC}
    s_add_u32 s48, s45, {62*REC}
    buffer_load_dwordx4 {v(KA0,4)}, v2, s[{R_WS}:{R_WS+3}], s48 offen{SC}
    buffer_load_dwordx2 {v(KB0,2)}, v1, s[{R_WS}:{R_WS+3}], s48 offen{SC}
    s_add_u32 s48, s45, {63*REC}
    buffer_load_dwordx4 {v(KA,4)}, v2, s[{R_WS}:{R_WS+3}], s48 offen{SC}
    buffer_load_dwordx2 {v(KB,2)}, v1, s[{R_WS}:{R_WS+3}], s48 offen{SC}
    s_lshl_b32 s49, s{S_WAVE}, 10
    s_add_u32 s50, s45, s49
    """)
    def kv_piece(chunk, i):
        slot = chunk % 2
        code = f"""
        s_add_u32 m0, s49, {slot*CHUNK + i*8192}
        s_add_u32 s51, s50, {chunk*CHUNK + i*8192}
        buffer_load_dwordx4 v2, s[{R_WS}:{R_WS+3}], s51 offen{SC} lds"""
        return code
    for i in range(6): A(kv_piece(0, i))
    for i in range(6): A(kv_piece(1, i))
    srd(A, R_A, P_WO, 640 * 640 * 2)
    A(f"s_and_b32 s52, s{S_J}, 7")
    A("s_mul_i32 s52, s52, 160")
    for b in range(5):
        A(f"""
        v_add_u32 v12, {64*b}, v0
        v_mul_u32_u24 v13, 52429, v12
        v_lshrrev_b32 v13, 19, v13
        v_mul_u32_u24 v14, 10, v13
        v_sub_u32 v14, v12, v14
        v_mul_u32_u24 v13, 1280, v13
        v_lshl_add_u32 v13, v14, 4, v13
        v_add_u32 v{WOV+b}, s52, v13""")
    A(f"""
    s_mul_i32 s53, s{S_WAVE}, 5120
    s_mul_i32 s62, s{S_WAVE}, 40960
    s_mov_b32 s60, 0
    v_cmp_gt_u32 vcc, 32, v0
    v_lshrrev_b32 v12, 5, v0
    v_mul_u32_u24 v13, 384, v12
    v_lshl_add_u32 v13, v3, 4, v13
    v_add_u32 v{AV[0]}, 1536, v13
    v_mov_b32 v{AK[0]}, v2
    v_mov_b32 v{AK2[0]}, v1
    v_add_u32 v{AV[1]}, {CHUNK}, v{AV[0]}
    v_add_u32 v{AK[1]}, {CHUNK}, v{AK[0]}
    v_add_u32 v{AK2[1]}, {CHUNK}, v{AK2[0]}
    v_mov_b32 v{Q2+2}, 0
    v_mov_b32 v{Q2+3}, 0
    v_mov_b32 v{KB+2}, 0
    v_mov_b32 v{KB+3}, 0
    v_mov_b32 v{KB0+2}, 0
    v_mov_b32 v{KB0+3}, 0
    s_waitcnt vmcnt(6)
    v_cndmask_b32 v{Q2}, 0, v{Q2}, vcc
    v_cndmask_b32 v{Q2+1}, 0, v{Q2+1}, vcc
    v_cmp_lt_u32 vcc, 20, v3
    v_mov_b32 v12, 0x30000
    s_nop 1
    v_cndmask_b32 v{AV[0]}, v{AV[0]}, v12, vcc
    v_cndmask_b32 v{AV[1]}, v{AV[1]}, v12, vcc
    s_barrier
    """)
    stp(A, "att0")
    def wo_piece(kind, b):
        if kind == 0:
            return f"""
            s_add_u32 m0, s53, {WO_A + b*1024}
            s_nop 0
            buffer_load_dwordx4 v{WOV+b}, s[{R_A}:{R_A+3}], s62 offen lds"""
        if kind == 2:
            return f"""
            s_add_u32 m0, s53, {b*1024}
            s_add_u32 s51, s62, {WO_BROW*1280}
            buffer_load_dwordx4 v{WOV+b}, s[{R_A}:{R_A+3}], s51 offen lds"""
        lab = A.newlabel("wos")
        if kind == 1:
            lim, ldso, go = 3, WO_A + 8*5120, 8*40960
        else:
            lim, ldso, go = (2 if b < 2 else 1), 8*5120, WO_BROW*1280 + 8*40960
        return f"""
            s_cmp_ge_u32 s{S_WAVE}, {lim}
            s_cbranch_scc1 {lab}
            s_add_u32 m0, s53, {ldso + b*1024}
            s_add_u32 s51, s62, {go}
            buffer_load_dwordx4 v{WOV+b}, s[{R_A}:{R_A+3}], s51 offen lds
            {lab}:"""
    A(f"v_mfma_f32_32x32x16_bf16 {v(S[0],16)}, {v(KA0,4)}, {v(Q1,4)}, 0")
    A(f"v_mfma_f32_32x32x16_bf16 {v(S[0],16)}, {v(KB0,4)}, {v(Q2,4)}, {v(S[0],16)}")
    A("s_nop 7")
    A("s_nop 7")
    for J in range(64):
        c = J // 16; slot = c % 2; j = J % 16
        Sc, Sn = S[J % 2], S[(J + 1) % 2]
        Pc, Pp = P[J % 2], P[(J + 1) % 2]
        off = j * REC
        if j == 0 and J > 0:
            A("s_waitcnt vmcnt(0) lgkmcnt(0)")
            A("s_barrier")
        E = lambda i: f"v_exp_f32 v{Sc+i}, v{Sc+i}"
        C = lambda i: f"v_cvt_pk_bf16_f32 v{Pc+i}, v{Sc+2*i}, v{Sc+2*i+1}"
        G = [(E(0),E(1),E(2),E(3),C(0),C(1)), (E(4),E(5),E(6),E(7),C(2),C(3)), (E(8),E(9),E(10),E(11),C(4),C(5)), (E(12),E(13),E(14),E(15),C(6),C(7))]
        if j in (0, 9, 13, 15):
            A(f"s_setprio {dict([(0,3),(9,2),(13,1),(15,0)])[j]}")
        if J > 0 and j != 0:
            A("s_waitcnt lgkmcnt(2)")
        if J < 63:
            A(f"v_mfma_f32_32x32x16_bf16 {v(Sn,16)}, {v(KA,4)}, {v(Q1,4)}, 0")
        if J < 62:
            A(f"ds_read_b128 {v(KA,4)}, v{AK[slot]} offset:{off}")
        for x in G[0]: A(x)
        if J < 63:
            A(f"v_mfma_f32_32x32x16_bf16 {v(Sn,16)}, {v(KB,4)}, {v(Q2,4)}, {v(Sn,16)}")
        if J < 62:
            A(f"ds_read_b64 {v(KB,2)}, v{AK2[slot]} offset:{off}")
        for x in G[1]: A(x)
        if J > 0:
            A("s_waitcnt lgkmcnt(2)" if J < 62 else "s_waitcnt lgkmcnt(0)")
            cc = "0" if J == 1 else v(O, 16)
            A(f"v_mfma_f32_32x32x16_bf16 {v(O,16)}, {v(V0,4)}, {v(Pp,4)}, {cc}")
        A(f"ds_read_b128 {v(V0,4)}, v{AV[slot]} offset:{off}")
        for x in G[2]: A(x)
        if J > 0:
            A(f"v_mfma_f32_32x32x16_bf16 {v(O,16)}, {v(V1,4)}, {v(Pp+4,4)}, {v(O,16)}")
        A(f"ds_read_b128 {v(V1,4)}, v{AV[slot]} offset:{off + 768}")
        if c in (1, 2) and j < 6:
            A(kv_piece(c + 1, j))
        if c == 0 and 2 <= j < 7: A(wo_piece(0, j - 2))
        if c == 0 and 8 <= j < 13: A(wo_piece(1, j - 8))
        if c == 3 and 1 <= j < 6: A(wo_piece(2, j - 1))
        if c == 3 and 6 <= j < 11: A(wo_piece(3, j - 6))
        for x in G[3]: A(x)
    stp(A, "att1")
    Pl = P[63 % 2]
    A("s_waitcnt lgkmcnt(0)")
    A(f"v_mfma_f32_32x32x16_bf16 {v(O,16)}, {v(V0,4)}, {v(Pl,4)}, {v(O,16)}")
    A(f"v_mfma_f32_32x32x16_bf16 {v(O,16)}, {v(V1,4)}, {v(Pl+4,4)}, {v(O,16)}")
    A("s_setprio 0")
    L_fin = A.newlabel("fin"); L_slow = A.newlabel("slow"); L_odone = A.newlabel("odone")
    def addr_calc():
        A(f"""
        s_mul_i32 s52, s43, 3
        v_lshrrev_b32 v12, 5, v0
        v_bfe_u32 v13, v0, 4, 1
        s_lshl_b32 s63, s46, 1
        v_add_u32 v13, s63, v13
        v_mul_u32_u24 v13, 24576, v13
        v_and_b32 v14, 15, v0
        v_lshlrev_b32 v14, 4, v14
        v_add_u32 v13, v13, v14
        v_add_u32 v13, {WS_O}, v13
        v_add_u32 v14, s52, v12
        v_lshrrev_b32 v15, 2, v14
        v_lshlrev_b32 v15, 10, v15
        v_and_b32 v1, 3, v14
        v_lshl_add_u32 v15, v1, 8, v15
        v_add_u32 v104, v13, v15
        s_add_u32 s52, s52, 2
        s_lshr_b32 s63, s52, 2
        s_lshl_b32 s63, s63, 10
        s_and_b32 s52, s52, 3
        s_lshl_b32 s52, s52, 8
        s_add_u32 s52, s52, s63
        v_add_u32 v105, s52, v13
        """)
    addr_calc()
    A.label(L_fin)
    A("s_nop 7")
    A(f"""
    v_mov_b32 v110, v{O+8}
    v_mov_b32 v111, v{O+8}
    s_nop 1
    v_permlane32_swap_b32 v110, v111
    s_nop 1
    v_rcp_f32 v112, v111
    s_nop 0
    """)
    for i in range(0, 12, 2):
        A(f"v_pk_mul_f32 {v(O+i,2)}, {v(O+i,2)}, v[112:113] op_sel_hi:[1,0]")
    A(f"""
    v_add_f32 v113, abs(v{O}), abs(v{O+1})
    v_add_f32 v114, abs(v{O+8}), abs(v{O+9})
    """)
    for i in range(2, 8):
        A(f"v_add_f32 v113, v113, abs(v{O+i})")
    A(f"""
    v_add_f32 v114, v114, abs(v{O+10})
    v_add_f32 v114, v114, abs(v{O+11})
    v_cmp_gt_u32 vcc, 32, v0
    v_mov_b32 v115, 0x21800000         ; 2^-60
    v_mov_b32 v116, 0x5d800000         ; 2^60
    v_cndmask_b32 v114, 0, v114, vcc
    v_add_f32 v113, v113, v114
    v_mov_b32 v114, 0x7f800000
    v_cmp_nlt_f32 s[54:55], v113, v114
    v_cmp_ngt_f32 s[56:57], v111, v115
    v_cmp_nlt_f32 vcc, v111, v116
    s_nop 1
    s_or_b64 s[54:55], s[54:55], s[56:57]
    s_or_b64 s[54:55], s[54:55], vcc
    s_cmp_lg_u64 s[54:55], 0
    s_cselect_b32 s61, 1, 0
    s_andn2_b32 s61, s61, s60
    s_cmp_lg_u32 s61, 0
    s_cbranch_scc1 {L_slow}
    """)
    for i in range(4):
        A(f"v_cvt_pk_bf16_f32 v{O+i}, v{O+2*i}, v{O+2*i+1}")
    A(f"v_cvt_pk_bf16_f32 v{O+8}, v{O+8}, v{O+9}")
    A(f"v_cvt_pk_bf16_f32 v{O+9}, v{O+10}, v{O+11}")
    A(f"v_mov_b32 v{O+10}, 0")
    A(f"v_mov_b32 v{O+11}, 0")
    A(f"buffer_store_dwordx4 {v(O,4)}, v104, s[{R_WS}:{R_WS+3}], 0 offen{SC}")
    A("s_mov_b32 exec_hi, 0")
    A(f"buffer_store_dwordx4 {v(O+8,4)}, v105, s[{R_WS}:{R_WS+3}], 0 offen{SC}")
    A("s_mov_b64 exec, -1")
    A(f"s_branch {L_odone}")
    A.label(L_slow)
    L1 = A.newlabel("p1"); L2 = A.newlabel("p2")
    A(f"""
    s_mov_b32 s60, 1
    v_lshlrev_b32 v2, 4, v0
    v_and_b32 v3, 31, v0
    v_lshlrev_b32 v1, 4, v3
    s_and_b32 s63, s43, 1
    s_lshl_b32 s63, s63, 3
    s_add_u32 s63, s63, 1024
    v_add_u32 v1, s63, v1
    v_lshrrev_b32 v12, 5, v0
    v_mul_u32_u24 v13, 384, v12
    v_lshl_add_u32 v13, v3, 4, v13
    v_add_u32 v13, 1536, v13
    v_mov_b32 v114, 0xff800000
    s_mov_b32 s52, 0
    {L1}:
    s_mul_i32 s63, s52, {REC}
    s_add_u32 s63, s63, s45
    buffer_load_dwordx4 {v(KA,4)}, v2, s[{R_WS}:{R_WS+3}], s63 offen{SC}
    buffer_load_dwordx2 {v(KB,2)}, v1, s[{R_WS}:{R_WS+3}], s63 offen{SC}
    s_waitcnt vmcnt(0)
    v_mfma_f32_32x32x16_bf16 {v(S[0],16)}, {v(KA,4)}, {v(Q1,4)}, 0
    v_mfma_f32_32x32x16_bf16 {v(S[0],16)}, {v(KB,4)}, {v(Q2,4)}, {v(S[0],16)}
    s_nop 7
    s_nop 7
    """)
    for i in range(0, 16, 2):
        A(f"v_max3_f32 v114, v114, v{S[0]+i}, v{S[0]+i+1}")
    A(f"""
    s_add_u32 s52, s52, 1
    s_cmp_lt_u32 s52, 64
    s_cbranch_scc1 {L1}
    v_mov_b32 v115, v114
    v_mov_b32 v116, v114
    s_nop 1
    v_permlane32_swap_b32 v115, v116
    s_nop 1
    v_max_f32 v114, v115, v116
    """)
    for i in range(16):
        A(f"v_mov_b32 v{O+i}, 0")
    A("s_mov_b32 s52, 0")
    A.label(L2)
    A(f"""
    s_add_u32 s63, s52, 62
    s_and_b32 s63, s63, 63
    s_mul_i32 s63, s63, {REC}
    s_add_u32 s63, s63, s45
    s_mul_i32 s54, s52, {REC}
    s_add_u32 s54, s54, s45
    buffer_load_dwordx4 {v(KA,4)}, v2, s[{R_WS}:{R_WS+3}], s63 offen{SC}
    buffer_load_dwordx2 {v(KB,2)}, v1, s[{R_WS}:{R_WS+3}], s63 offen{SC}
    buffer_load_dwordx4 {v(V0,4)}, v13, s[{R_WS}:{R_WS+3}], s54 offen{SC}
    buffer_load_dwordx4 {v(V1,4)}, v13, s[{R_WS}:{R_WS+3}], s54 offen offset:768{SC}
    s_waitcnt vmcnt(0)
    v_mfma_f32_32x32x16_bf16 {v(S[0],16)}, {v(KA,4)}, {v(Q1,4)}, 0
    v_mfma_f32_32x32x16_bf16 {v(S[0],16)}, {v(KB,4)}, {v(Q2,4)}, {v(S[0],16)}
    s_nop 7
    s_nop 7
    """)
    for i in range(16):
        A(f"v_sub_f32 v{S[0]+i}, v{S[0]+i}, v114")
    for i in range(16):
        A(f"v_exp_f32 v{S[0]+i}, v{S[0]+i}")
    A("s_nop 0")
    for i in range(8):
        A(f"v_cvt_pk_bf16_f32 v{P[0]+i}, v{S[0]+2*i}, v{S[0]+2*i+1}")
    A(f"""
    s_nop 1
    v_mfma_f32_32x32x16_bf16 {v(O,16)}, {v(V0,4)}, {v(P[0],4)}, {v(O,16)}
    v_mfma_f32_32x32x16_bf16 {v(O,16)}, {v(V1,4)}, {v(P[0]+4,4)}, {v(O,16)}
    s_add_u32 s52, s52, 1
    s_cmp_lt_u32 s52, 64
    s_cbranch_scc1 {L2}
    s_nop 7
    s_nop 7
    """)
    addr_calc()
    A(f"s_branch {L_fin}")

    A.label(L_odone)
    stp(A, "ostored")
    A("s_waitcnt vmcnt(0)")
    stp(A, "odrained")
    A(f"""
    s_add_u32 s65, s44, {L_O}
    """)
    signal(A, 12, 8, "s65", 2, 3)
    L_p3a = A.newlabel("p3a"); L_post = A.newlabel("post"); L_t3 = A.newlabel("t3"); L_tgo = A.newlabel("tgo")
    srd(A, R_B, P_OUT, 2048 * 1280 * 2)
    A(f"""
    s_cmp_eq_u32 s{S_WAVE}, 0
    s_cbranch_scc0 {L_post}
    s_lshl_b32 s54, s{S_XCD}, 7
    s_add_u32 s54, s54, {SYNC + 128*L_O}
    v_mov_b32 v2, s54
    v_cmp_eq_u32 vcc, 0, v0
    v_mov_b32 v3, 32
    s_nop 0
    v_cndmask_b32 v4, 0, v3, vcc
    """)
    poll(A, 2, 4, 3)
    stp(A, "ook")
    A(f"s_branch {L_p3a}")
    A.label(L_post)
    A(f"""
    s_cmp_ge_u32 s{S_WAVE}, 4
    s_cbranch_scc1 {L_p3a}
    s_cmp_eq_u32 s{S_WAVE}, 3
    s_cbranch_scc1 {L_t3}
    s_lshl_b32 s56, s2, 1
    s_sub_u32 s57, s{S_WAVE}, 1
    s_add_u32 s56, s56, s57
    s_branch {L_tgo}
    {L_t3}:
    s_cmp_ge_u32 s2, 128
    s_cbranch_scc1 {L_p3a}
    s_add_u32 s56, s2, 512
    {L_tgo}:
    s_mul_i32 s57, s56, 52429
    s_lshr_b32 s57, s57, 19
    s_mul_i32 s58, s57, 10
    s_sub_u32 s58, s56, s58
    """)
    srd(A, R_C, P_BQ, 2048 * 640 * 2)
    A(f"""
    v_and_b32 v2, 7, v0
    v_lshrrev_b32 v3, 3, v0
    s_lshl_b32 s54, s58, 6
    v_lshl_add_u32 v2, v2, 3, s54
    s_lshl_b32 s55, s57, 5
    v_lshl_add_u32 v3, v3, 2, s55
    v_mul_u32_u24 v4, 1280, v3
    v_lshl_add_u32 v8, v2, 1, v4
    v_lshlrev_b32 v5, 12, v2
    v_lshl_add_u32 v5, v3, 1, v5
    v_add_u32 v9, {WS_Z}, v5
    v_mul_u32_u24 v6, 2560, v3
    v_lshl_add_u32 v6, v2, 1, v6
    v_add_u32 v10, 1280, v6
    """)
    for j in range(4):
        A(f"buffer_load_dwordx4 {v(32+4*j,4)}, v8, s[{R_C}:{R_C+3}], 0 offen offset:{1280*j}")
    poll_lines(A, L_Z, 8, 32, 2, 4, 3)
    for i in range(8):
        A(f"s_mov_b32 s54, {i*4096}")
        A(f"buffer_load_dwordx2 {v(16+2*i,2)}, v9, s[{R_WS}:{R_WS+3}], s54 offen{SC}")
    A("s_waitcnt vmcnt(0)")
    for j in range(4):
        for q in range(4):
            za = 16 + 2*(2*q) + j//2; zb = 16 + 2*(2*q+1) + j//2
            if j % 2 == 0:
                A(f"v_lshlrev_b32 v48, 16, v{za}")
                A(f"v_lshlrev_b32 v49, 16, v{zb}")
            else:
                A(f"v_and_b32 v48, 0xffff0000, v{za}")
                A(f"v_and_b32 v49, 0xffff0000, v{zb}")
            qq = 32 + 4*j + q
            A(f"v_lshlrev_b32 v50, 16, v{qq}")
            A(f"v_and_b32 v51, 0xffff0000, v{qq}")
            A(f"v_pk_mul_f32 v[48:49], v[48:49], v[50:51]")
            A(f"v_cvt_pk_bf16_f32 v{52+4*j+q}, v48, v49")
        A(f"s_mov_b32 s54, {j*2560}")
        A(f"buffer_store_dwordx4 {v(52+4*j,4)}, v10, s[{R_B}:{R_B+3}], s54 offen")
    A.label(L_p3a)
    stp(A, "prep3a")
    A("s_barrier")
    stp(A, "p3a")
    OF = 32; ACC3 = 96; WF = [116, 136]; AD = 160
    L_hi = A.newlabel("p3hi")
    A(f"""
    s_lshl_b32 s54, s{S_XCD}, 2
    s_lshr_b32 s55, s{S_J}, 3
    s_add_u32 s54, s54, s55        ; tb
    s_lshl_b32 s54, s54, 2
    s_and_b32 s55, s{S_WAVE}, 3
    s_add_u32 s54, s54, s55        ; T
    s_mul_i32 s56, s54, 24576
    s_add_u32 s56, s56, {WS_O}
    s_lshr_b32 s57, s{S_WAVE}, 2
    s_mul_i32 s57, s57, 12288
    s_add_u32 s56, s56, s57
    v_lshlrev_b32 v2, 4, v0
    """)
    for st in range(12):
        if st % 4 == 0: A(f"s_add_u32 s58, s56, {st*1024}")
        A(f"buffer_load_dwordx4 {v(OF+4*st,4)}, v2, s[{R_WS}:{R_WS+3}], s58 offen offset:{(st%4)*1024}{SC}")
    A(f"""
    v_and_b32 v3, 15, v0
    s_lshl_b32 s55, s54, 4
    v_add_u32 v3, s55, v3
    v_mul_u32_u24 v3, 2560, v3
    v_lshrrev_b32 v4, 4, v0
    v_lshl_add_u32 v3, v4, 3, v3
    s_and_b32 s55, s{S_J}, 7
    s_mul_i32 s55, s55, 160
    v_add_u32 v16, s55, v3
    v_lshlrev_b32 v17, 4, v0
    s_and_b32 s55, s{S_WAVE}, 3
    s_mul_i32 s55, s55, 5120
    s_add_u32 s55, s55, {RED}
    v_add_u32 v17, s55, v17
    v_lshrrev_b32 v5, 4, v0            ; kg
    v_bfe_u32 v6, v0, 2, 2             ; r
    v_and_b32 v7, 3, v0
    v_lshlrev_b32 v7, 3, v7            ; 8*c4
    """)
    def row_addr(dst0, s, force_region=None):
        A(f"""
        v_add_u32 v8, {4*s}, v5            ; q
        v_mul_u32_u24 v9, 21846, v8
        v_lshrrev_b32 v9, 16, v9           ; head = q/3
        v_mul_u32_u24 v10, 3, v9
        v_sub_u32 v10, v8, v10             ; part
        v_mul_u32_u24 v9, 20, v9
        v_add_u32 v9, v9, v6               ; 20*head + r
        v_lshlrev_b32 v11, 2, v10          ; 4*part  (0,4,8)
        v_cmp_eq_u32 vcc, 2, v10
        v_add_u32 v12, 8, v11              ; hh=1 : 8,12,(16)
        v_lshlrev_b32 v13, 1, v11          ; part 2 : 16
        v_cndmask_b32 v11, v11, v13, vcc   ; hh=0 : 0,4,16
        v_add_u32 v11, v11, v9
        v_add_u32 v12, v12, v9
        """)
        for hh, rv in enumerate((11, 12)):
            if force_region == "A":
                A(f"v_mul_u32_u24 v13, 160, v{rv}\nv_add3_u32 v{dst0+hh}, v13, v7, s59")
            elif force_region == "B":
                A(f"v_subrev_u32 v13, {WO_BROW}, v{rv}\nv_mul_u32_u24 v13, 160, v13\nv_add_u32 v{dst0+hh}, v13, v7")
            else:
                A(f"""
                v_mul_u32_u24 v13, 160, v{rv}
                v_add3_u32 v14, v13, v7, s59
                v_subrev_u32 v13, {WO_BROW*160}, v13
                v_add_u32 v13, v13, v7
                v_cmp_gt_u32 vcc, {WO_BROW}, v{rv}
                s_nop 1
                v_cndmask_b32 v{dst0+hh}, v13, v14, vcc""")
    def p3_loop(hi):
        A(f"s_mov_b32 s59, {WO_A}")
        if not hi:
            for c in range(3): row_addr(AD + 2*c, c, "A")
            sel = lambda st: (AD + 2*(st % 3), (st // 3) * 12800)
        else:
            row_addr(AD + 6, 12, None)
            for c in range(3): row_addr(AD + 2*c, 13 + c, "B")
            sel = lambda st: (AD + 6, 0) if st == 0 else (AD + 2*((st - 1) % 3), ((st - 1) // 3) * 12800)
        def rd(st, setid):
            base, so = sel(st)
            r = []
            for T in range(5):
                r.append(f"ds_read_b64_tr_b16 {v(WF[setid]+4*T,2)}, v{base} offset:{so + 32*T}")
                r.append(f"ds_read_b64_tr_b16 {v(WF[setid]+4*T+2,2)}, v{base+1} offset:{so + 32*T}")
            return r
        for r in rd(0, 0): A(r)
        for st in range(12):
            setid = st % 2
            A(f"s_waitcnt vmcnt({11-st}) lgkmcnt(0)")
            rs = rd(st + 1, 1 - setid) if st < 11 else []
            for T in range(5):
                cc = "0" if st == 0 else v(ACC3+4*T, 4)
                A(f"v_mfma_f32_16x16x32_bf16 {v(ACC3+4*T,4)}, {v(WF[setid]+4*T,4)}, {v(OF+4*st,4)}, {cc}")
                for r in rs[2*T:2*T+2]: A(r)
        A("s_nop 7")
    A(f"""
    s_cmp_ge_u32 s{S_WAVE}, 4
    s_cbranch_scc1 {L_hi}
    """)
    p3_loop(False)
    A("s_barrier")
    for T in range(5):
        A(f"ds_read_b128 {v(32+4*T,4)}, v17 offset:{1024*T}")
    A("s_waitcnt lgkmcnt(0)")
    for T in range(5):
        d = ACC3 + 4*T
        A(f"v_pk_add_f32 {v(d,2)}, {v(d,2)}, {v(32+4*T,2)}")
        A(f"v_pk_add_f32 {v(d+2,2)}, {v(d+2,2)}, {v(34+4*T,2)}")
        A(f"v_cvt_pk_bf16_f32 v{d}, v{d}, v{d+1}")
        A(f"v_cvt_pk_bf16_f32 v{d+1}, v{d+2}, v{d+3}")
        A(f"buffer_store_dwordx2 {v(d,2)}, v16, s[{R_B}:{R_B+3}], 0 offen offset:{32*T}")
    prof_dump(A, 0, wsptr=P_WS)
    A("s_endpgm")
    A.label(L_hi)
    p3_loop(True)
    for T in range(5):
        A(f"ds_write_b128 v17, {v(ACC3+4*T,4)} offset:{1024*T}")
    A("s_waitcnt lgkmcnt(0)")
    A("s_barrier")
    prof_dump(A, 0, wsptr=P_WS)
    A("s_endpgm")
    A.label(L_exit)
    A("s_endpgm")

def build():
    hdr = open("cdna_kernels/" + NAME + ".s.ref").read().split("; Override launch geometry")[0]
    A = Asm()
    gen(A)
    out = hdr + f"; @launch grid=(256,1,1) block=(512,1,1) lds={LDS}\n"
    out += '.amdgcn_target "amdgcn-amd-amdhsa--gfx950"\n.text\n' + A.text()
    out += f""".section .rodata,"a"
.p2align 6
.amdhsa_kernel {KNAME}
  .amdhsa_next_free_vgpr {VGPRS}
  .amdhsa_next_free_sgpr 102
  .amdhsa_accum_offset {VGPRS}
  .amdhsa_group_segment_fixed_size 0
  .amdhsa_kernarg_size 96
  .amdhsa_user_sgpr_count 2
  .amdhsa_user_sgpr_kernarg_segment_ptr 1
  .amdhsa_system_sgpr_workgroup_id_x 1
  .amdhsa_float_denorm_mode_32 3
.end_amdhsa_kernel
"""
    return out

if __name__ == "__main__":
    open(sys.argv[1], "w").write(build())
```

```python
import itertools
def pos_of(head, sub):
    if head == 19: return (sub + 4) % 5
    if head == 25: return [0, 1, 4, 2, 3][sub]
    return sub
def block_items(cb):
    d = {}
    for g in range(32 * cb, 32 * cb + 32):
        h, s = divmod(g, 5)
        d[(h, pos_of(h, s))] = g - 32 * cb
    pairs, singles = [], []
    for h in sorted(set(k[0] for k in d)):
        for ab in range(2):
            lo, hi = d.get((h, 2 * ab)), d.get((h, 2 * ab + 1))
            assert (lo is None) == (hi is None), (cb, h, ab)
            if lo is not None: pairs.append((lo, hi, h, ab))
        if (h, 4) in d: singles.append((d[(h, 4)], h))
    return pairs, singles
def assign(cb):
    pairs, singles = block_items(cb)
    ns = len(singles) // 2
    assert len(pairs) + ns == 16
    def pairings(lst):
        if not lst: yield []; return
        a = lst[0]
        for i in range(1, len(lst)):
            for rest in pairings(lst[1:i] + lst[i+1:]):
                yield [(a, lst[i])] + rest
    for sp in pairings(singles):
        sitems = [("S", a[0], b[0], a[1], b[1]) for a, b in sp]
        pitems = [("P", lo, hi, h, ab) for lo, hi, h, ab in pairs]
        tiles = [[] for _ in range(4)]; res = [set() for _ in range(4)]
        ok = True
        for t, it in enumerate(sitems):
            r = {it[1] % 8, it[2] % 8}
            if len(r) < 2: ok = False; break
            res[t] = set(r); tiles[t] = [it]
        if not ok: continue
        def rec(i):
            if i == len(pitems): return True
            it = pitems[i]; r = {it[1] % 8, it[2] % 8}
            if len(r) < 2: return False
            for t in range(4):
                if len(tiles[t]) < 4 and not (res[t] & r):
                    tiles[t].append(it); res[t] |= r
                    if rec(i + 1): return True
                    tiles[t].pop(); res[t] -= r
            return False
        if rec(0):
            out = []
            for t in range(4):
                its = tiles[t]
                s = [x for x in its if x[0] == "S"]; p = [x for x in its if x[0] == "P"]
                out.append(p + s)
            return out
    raise RuntimeError("no assignment")
ASSIGN = [assign(cb) for cb in range(5)]
HALF = [0] * 32
for cb in range(5):
    for t in ASSIGN[cb]:
        for it in t:
            if it[0] == "S":
                HALF[it[3]] = 0; HALF[it[4]] = 1
HALF_MASK = sum(b << h for h, b in enumerate(HALF))
def sub_at_pos(head):
    inv = [0] * 5
    for s in range(5): inv[pos_of(head, s)] = s
    return inv
if __name__ == "__main__":
    for cb in range(5):
        print(cb, ASSIGN[cb])
    print(hex(HALF_MASK))

LOC = [dict() for _ in range(32)]
for cb in range(5):
    for t4, tile in enumerate(ASSIGN[cb]):
        for si, it in enumerate(tile):
            ps = 4 * t4 + si
            if it[0] == "P":
                LOC[it[3]]["AB"[it[4]]] = (cb, ps)
            else:
                LOC[it[3]]["S"] = (cb, ps); LOC[it[4]]["S"] = (cb, ps)
HEADWORD = [ (LOC[h]["A"][0] | LOC[h]["A"][1] << 3) | (LOC[h]["B"][0] | LOC[h]["B"][1] << 3) << 7 | (LOC[h]["S"][0] | LOC[h]["S"][1] << 3) << 14 for h in range(32)]
```

```python
import os, sys, struct, math
from asmlib import *
from slots import ASSIGN, HEADWORD

NAME = "concat_heads__softmax_full_mha__ssm_conv_h3__prompt"
KNAME = NAME + "_kernel"
E = lambda k, d=0: int(os.environ.get(k, d))

TB = 8320
SEC = 64 * TB
WS_U  = 0x800000
WS_Z  = 0xB00000
WS_O  = 0xE00000
SYNC  = 0x1200000
WS_BYTES = 0x1204000
REC = 3072
CHUNK = 16 * REC
COPY = 4160
CONV_SZ = 4 * COPY + 4608
CONV_BASE = 98304
CNT = CONV_BASE + 3 * CONV_SZ
LDS = CNT + 256
WO_A = 98304
WO_BROW = 340
RED = CHUNK
VGPRS = 168
POLL_MAX = 40000
SC = os.environ.get("SCF", " sc1")
L_QKV, L_U, L_Z, L_O = 0, 16, 24, 32
FLG = 40
ZERO_WG = 225
C_QKV, C_U, C_Z, C_O, C_UOK, C_INIT, C_GO = 0, 4, 8, 12, 16, 20, 24

def f32bits(x): return struct.unpack("<I", struct.pack("<f", x))[0]
QSCALE = f32bits(20 ** -0.5 * math.log2(math.e))

P_X, P_W, P_WO, P_BQ, P_BK, P_BV, P_SH, P_SK, P_SD, P_OUT, P_DBG, P_WS = 4, 6, 8, 10, 12, 14, 16, 18, 20, 22, 24, 26
R_WS = 28
R_A, R_B, R_C = 32, 36, 44
S_WAVE, S_XCD, S_J, S_RB, S_CB = 40, 41, 42, 43, 48

STAMPS = dict(x.split(":") for x in os.environ.get("STAMPS", "b0:1,gend:2,uok:2,att0:4,att1:5,p3a:6").split(","))
def stp(A, name):
    if name in STAMPS: stamp(A, int(STAMPS[name]))

def poll(A, addr_v, thr_v, tmp, sleep=4, base=P_WS):
    L = A.newlabel("poll"); D = A.newlabel("polld")
    A(f"""
    v_cmp_ne_u32 vcc, 0, v{thr_v}
    s_mov_b32 s66, {POLL_MAX}
    s_nop 1
    s_mov_b64 exec, vcc
    {L}:
    global_load_dword v{tmp}, v{addr_v}, s[{base}:{base+1}] sc1
    s_waitcnt vmcnt(0)
    v_cmp_ge_u32 vcc, v{tmp}, v{thr_v}
    s_nop 3
    s_cmp_eq_u64 vcc, exec
    s_cbranch_scc1 {D}
    s_sleep {sleep}
    s_sub_u32 s66, s66, 1
    s_cmp_lg_u32 s66, 0
    s_cbranch_scc1 {L}
    {D}:
    s_mov_b64 exec, -1
    """)
def poll_flags(A, line0, nlines, t_addr, t_thr, tmp, sleep=4):
    A(f"""
    v_lshlrev_b32 v{t_addr}, 7, v0
    v_add_u32 v{t_addr}, {SYNC + 128*(FLG + line0)}, v{t_addr}
    v_cmp_gt_u32 vcc, {nlines}, v0
    v_mov_b32 v{tmp}, 1
    s_nop 0
    v_cndmask_b32 v{t_thr}, 0, v{tmp}, vcc
    """)
    poll(A, t_addr, t_thr, tmp, sleep)
def lds_set(A, off, t0, t1):
    A(f"""
    v_mov_b32 v{t0}, {CNT + off}
    v_mov_b32 v{t1}, 1
    ds_write_b32 v{t0}, v{t1}
    """)
def lds_add(A, off, t0, t1):
    A(f"""
    v_mov_b32 v{t0}, {CNT + off}
    v_mov_b32 v{t1}, 1
    s_mov_b64 exec, 1
    ds_add_u32 v{t0}, v{t1}
    s_mov_b64 exec, -1
    """)
def lds_wait(A, off, t0, t1, val=1, sleep=1):
    L = A.newlabel("lw"); D = A.newlabel("lwd")
    A(f"""
    v_mov_b32 v{t0}, {CNT + off}
    s_mov_b32 s66, {POLL_MAX*16}
    {L}:
    ds_read_b32 v{t1}, v{t0}
    s_waitcnt lgkmcnt(0)
    v_readfirstlane_b32 s67, v{t1}
    s_nop 3
    s_cmp_ge_u32 s67, {val}
    s_cbranch_scc1 {D}
    s_sleep {sleep}
    s_sub_u32 s66, s66, 1
    s_cmp_lg_u32 s66, 0
    s_cbranch_scc1 {L}
    {D}:
    """)
def lds_arrive_last(A, off, n_s, skip_lab, t0, t1):
    A(f"""
    v_mov_b32 v{t0}, {CNT + off}
    v_mov_b32 v{t1}, 1
    s_mov_b64 exec, 1
    ds_add_rtn_u32 v{t1}, v{t0}, v{t1}
    s_waitcnt lgkmcnt(0)
    s_mov_b64 exec, -1
    v_readfirstlane_b32 s66, v{t1}
    s_nop 3
    s_add_u32 s66, s66, 1
    s_cmp_lg_u32 s66, {n_s}
    s_cbranch_scc1 {skip_lab}
    """)
def global_arrive(A, line_s, total, t0, t1):
    L = A.newlabel("ga")
    A(f"""
    s_lshl_b32 s66, {line_s}, 7
    s_add_u32 s66, s66, {SYNC}
    v_mov_b32 v{t0}, s66
    v_mov_b32 v{t1}, 1
    s_mov_b64 exec, 1
    global_atomic_add v{t1}, v{t0}, v{t1}, s[{P_WS}:{P_WS+1}] sc0 sc1
    s_waitcnt vmcnt(0)
    s_mov_b64 exec, -1
    v_readfirstlane_b32 s66, v{t1}
    s_nop 3
    s_add_u32 s66, s66, 1
    s_cmp_lg_u32 s66, {total}
    s_cbranch_scc1 {L}
    v_add_u32 v{t0}, {128*FLG}, v{t0}
    v_mov_b32 v{t1}, 1
    s_mov_b64 exec, 1
    global_store_dword v{t0}, v{t1}, s[{P_WS}:{P_WS+1}] sc1
    s_mov_b64 exec, -1
    {L}:
    """)

def gen(A):
    A(f".globl {KNAME}")
    A(".p2align 8")
    A(f".type {KNAME},@function")
    A.label(KNAME)
    L_exit, L_nog, L_prod, L_bw, L_heads, L_conv = "L_exit", "L_nog", "L_prod", "L_bw", "L_heads", "L_conv"
    A(f"""
    s_cmp_ge_u32 s2, 256
    s_cbranch_scc1 {L_exit}
    s_load_dwordx16 s[4:19], s[0:1], 0
    s_load_dwordx8 s[20:27], s[0:1], 64
    v_lshrrev_b32 v1, 6, v0
    v_and_b32 v0, 63, v0
    v_readfirstlane_b32 s{S_WAVE}, v1
    s_and_b32 s{S_XCD}, s2, 7
    s_lshr_b32 s{S_J}, s2, 3
    s_lshr_b32 s{S_RB}, s{S_XCD}, 1
    s_lshl_b32 s{S_RB}, s{S_RB}, 2
    s_and_b32 s49, s{S_J}, 3
    s_add_u32 s{S_RB}, s{S_RB}, s49        ; rb
    s_and_b32 s{S_CB}, s{S_XCD}, 1
    s_lshl_b32 s{S_CB}, s{S_CB}, 3
    s_lshr_b32 s49, s{S_J}, 2
    s_add_u32 s{S_CB}, s{S_CB}, s49        ; cb
    v_mov_b32 v2, {CNT}
    v_mov_b32 v4, 0
    v_mov_b32 v5, 0
    v_mov_b32 v6, 0
    v_mov_b32 v7, 0
    ds_write_b128 v2, v[4:7]
    ds_write_b128 v2, v[4:7] offset:16
    s_waitcnt lgkmcnt(0)
    """)
    srd(A, R_WS, P_WS, WS_BYTES)
    prof_init(A)
    A(f"""
    s_cmp_ge_u32 s{S_WAVE}, 8
    s_cbranch_scc1 {L_bw}
    s_cmp_ge_u32 s{S_CB}, 15
    s_cbranch_scc1 {L_nog}
    s_cmp_ge_u32 s{S_WAVE}, 4
    s_cbranch_scc1 {L_prod}
    """)
    slot_of = lambda st: (st + 2) % 3

    A(f"""
    s_lshr_b32 s56, s{S_WAVE}, 1       ; wr
    s_and_b32 s57, s{S_WAVE}, 1        ; wc
    v_and_b32 v2, 31, v0           ; n
    v_lshrrev_b32 v3, 5, v0        ; h
    v_bfe_u32 v4, v0, 1, 3         ; (l>>1)&7
    s_lshl_b32 s54, s56, 6
    v_add_u32 v5, s54, v2
    v_lshlrev_b32 v5, 7, v5        ; token_local*128
    """)
    for ks in range(4):
        A(f"""
        v_add_u32 v6, {2*ks}, v3
        v_xor_b32 v6, v6, v4
        v_lshl_add_u32 v{16+ks}, v6, 4, v5
        v_add_u32 v{20+ks}, 0x10000, v{16+ks}""")
    def w_addr():
        A(f"""
        v_lshrrev_b32 v2, 4, v0        ; g
        v_bfe_u32 v3, v0, 2, 2         ; r
        v_and_b32 v4, 3, v0            ; c4
        v_lshrrev_b32 v5, 1, v2
        v_lshl_add_u32 v5, v5, 3, v3   ; k_local
        v_lshlrev_b32 v5, 8, v5
        v_add_u32 v5, 16384, v5
        v_and_b32 v6, 1, v2
        v_lshl_add_u32 v6, v6, 2, v4   ; rg = 4*(g&1) + c4
        v_mul_u32_u24 v6, 5, v6
        v_lshlrev_b32 v7, 2, v3        ; 4r
        """)
        for ft in range(2):
            A(f"""
            v_lshrrev_b64 v[8:9], v6, s[{60+2*ft}:{61+2*ft}]
            v_and_b32 v8, 31, v8
            v_lshrrev_b32 v9, 1, v8
            v_xor_b32 v9, v9, v7
            v_and_b32 v8, 1, v8
            v_lshlrev_b32 v8, 3, v8
            v_lshl_add_u32 v8, v9, 4, v8
            v_add_u32 v{24+ft}, v5, v8
            v_add_u32 v{26+ft}, 0x10000, v{24+ft}""")
    FR = [dict(X=[32, 36], W=[40, 44]), dict(X=[48, 52], W=[56, 60])]
    ACC = lambda ft, tt: 64 + 16 * (2 * ft + tt)
    def reads(st, ks, setid):
        slot = slot_of(st); hi = slot == 2
        so = 0 if hi else slot * 32768
        xa = (20 if hi else 16) + ks; wa = (26 if hi else 24); F = FR[setid]
        return [f"ds_read_b128 {v(F['X'][0],4)}, v{xa} offset:{so}",
                f"ds_read_b64_tr_b16 {v(F['W'][0],2)}, v{wa} offset:{so + ks*4096}",
                f"ds_read_b64_tr_b16 {v(F['W'][0]+2,2)}, v{wa} offset:{so + ks*4096 + 1024}",
                f"ds_read_b128 {v(F['X'][1],4)}, v{xa} offset:{so + 4096}",
                f"ds_read_b64_tr_b16 {v(F['W'][1],2)}, v{wa+1} offset:{so + ks*4096}",
                f"ds_read_b64_tr_b16 {v(F['W'][1]+2,2)}, v{wa+1} offset:{so + ks*4096 + 1024}"]
    def mfmas(setid, first, vmode):
        F = FR[setid]; m = []
        for (ft, tt) in [(0, 0), (0, 1), (1, 0), (1, 1)]:
            d = ACC(ft, tt); c = "0" if first else v(d, 16)
            a_, b_ = (F['X'][tt], F['W'][ft]) if vmode else (F['W'][ft], F['X'][tt])
            m.append(f"v_mfma_f32_32x32x16_bf16 {v(d,16)}, {v(a_,4)}, {v(b_,4)}, {c}")
        return m
    def main_loop(vmode):
        A("s_barrier")
        stp(A, "b0")
        for r in reads(0, 0, 0): A(r)
        n = 0
        for st in range(10):
            for ks in range(4):
                setid = n % 2
                m = mfmas(setid, n == 0, vmode)
                A("s_waitcnt lgkmcnt(0)")
                if ks == 3 and st < 9:
                    A("s_barrier")
                    stp(A, f"gb{st+1}")
                A(m[0])
                if ks < 3:
                    for r in reads(st, ks + 1, 1 - setid): A(r)
                elif st < 9:
                    for r in reads(st + 1, 0, 1 - setid): A(r)
                A(m[1]); A(m[2]); A(m[3])
                n += 1
        stp(A, "gend")
        A("s_nop 15")
    L_vpath = A.newlabel("vpath"); L_gsig = A.newlabel("gsig"); L_vdone = A.newlabel("vdone")
    A(f"""
    s_cmp_ge_u32 s{S_CB}, 10
    s_cbranch_scc1 {L_vpath}
    s_cmp_ge_u32 s{S_CB}, 5
    s_cselect_b32 s55, 5, 0
    s_sub_u32 s55, s{S_CB}, s55        ; cb'
    s_lshl_b32 s55, s55, 1
    s_add_u32 s55, s55, s57
    """)
    for var in range(10):
        cbp, wc = divmod(var, 2); T = []
        for ft in range(2):
            tab = [0]*8
            for si, it in enumerate(ASSIGN[cbp][2*wc + ft]):
                ap, h = divmod(si, 2)
                tab[4*ap + h] = it[1]; tab[4*ap + 2 + h] = it[2]
            T.append(sum(g << (5*i) for i, g in enumerate(tab)))
        nxt = A.newlabel("var")
        A(f"""
        s_cmp_lg_u32 s55, {var}
        s_cbranch_scc1 {nxt}
        s_mov_b32 s60, {hex(T[0] & 0xffffffff)}
        s_mov_b32 s61, {hex(T[0] >> 32)}
        s_mov_b32 s62, {hex(T[1] & 0xffffffff)}
        s_mov_b32 s63, {hex(T[1] >> 32)}
        s_branch {L_vdone}
        {nxt}:""")
    A(f"""
    s_mov_b64 s[60:61], 0
    s_mov_b64 s[62:63], 0
    {L_vdone}:
    """)
    w_addr()
    A(f"""
    s_mov_b32 s58, {hex(QSCALE)}
    s_cmp_ge_u32 s{S_CB}, 5
    s_cmov_b32 s58, 0x3f800000
    s_mov_b32 s59, s58
    v_lshlrev_b32 v128, 4, v0
    s_lshl_b32 s54, s{S_RB}, 2
    s_lshl_b32 s55, s56, 1
    s_add_u32 s54, s54, s55
    s_lshl_b32 s55, s{S_CB}, 6
    s_add_u32 s54, s54, s55
    s_mul_i32 s54, s54, {TB}
    s_lshl_b32 s55, s57, 12        ; wc*4096
    s_add_u32 s64, s54, s55
    s_add_u32 s65, s64, {TB}
    """)
    main_loop(False)
    for ft in range(2):
        for tt in range(2):
            d = ACC(ft, tt)
            for i in range(0, 16, 2):
                A(f"v_pk_mul_f32 {v(d+i,2)}, {v(d+i,2)}, s[58:59]")
            for ap in range(2):
                for i in range(4):
                    A(f"v_cvt_pk_bf16_f32 v{d+8*ap+i}, v{d+8*ap+2*i}, v{d+8*ap+2*i+1}")
                A(f"buffer_store_dwordx4 {v(d+8*ap,4)}, v128, s[{R_WS}:{R_WS+3}], s{64+tt} offen offset:{ft*2048 + ap*1024}{SC}")
    A(f"s_branch {L_gsig}")
    A.label(L_vpath)
    nat = sum(i << (5*i) for i in range(8)); rep = sum(1 << (5*i) for i in range(8))
    A(f"""
    s_lshl_b32 s54, s57, 4
    s_mul_i32 s55, s54, {hex(rep & 0xffffffff)}
    s_mul_hi_u32 s61, s54, {hex(rep & 0xffffffff)}
    s_mul_i32 s66, s54, {hex(rep >> 32)}
    s_add_u32 s61, s61, s66
    s_add_u32 s60, s55, {hex(nat & 0xffffffff)}
    s_addc_u32 s61, s61, {hex(nat >> 32)}
    s_add_u32 s62, s60, {hex((8*rep) & 0xffffffff)}
    s_addc_u32 s63, s61, {hex((8*rep) >> 32)}
    """)
    w_addr()
    A(f"""
    v_lshlrev_b32 v128, 4, v0
    s_lshl_b32 s54, s{S_RB}, 2
    s_lshl_b32 s55, s{S_CB}, 6
    s_add_u32 s54, s54, s55
    s_add_u32 s55, s54, s{S_WAVE}
    s_mul_i32 s55, s55, {TB}
    s_add_u32 s58, s55, 8192
    s_lshl_b32 s55, s56, 1
    s_add_u32 s54, s54, s55
    s_mul_i32 s54, s54, {TB}
    s_lshl_b32 s55, s57, 11
    s_add_u32 s62, s54, s55
    s_add_u32 s63, s62, 4096
    s_add_u32 s64, s62, {TB}
    s_add_u32 s65, s64, 4096
    """)
    main_loop(True)
    for ft in range(2):
        for tt in range(2):
            d = ACC(ft, tt)
            for f in range(2):
                for i in range(4):
                    A(f"v_cvt_pk_bf16_f32 v{d+8*f+i}, v{d+8*f+2*i}, v{d+8*f+2*i+1}")
                A(f"buffer_store_dwordx4 {v(d+8*f,4)}, v128, s[{R_WS}:{R_WS+3}], s{62+2*tt+f} offen offset:{ft*1024}{SC}")
    A(f"""
    v_cmp_eq_u32 vcc, 0, v0
    v_mov_b32 v36, 0x3f803f80
    s_nop 0
    v_cndmask_b32 v32, 0, v36, vcc
    v_cndmask_b32 v33, 0, v36, vcc
    v_cndmask_b32 v34, 0, v36, vcc
    v_cndmask_b32 v35, 0, v36, vcc
    s_mov_b64 exec, 15
    buffer_store_dwordx4 v[32:35], v128, s[{R_WS}:{R_WS+3}], s58 offen{SC}
    s_mov_b64 exec, -1
    """)
    A.label(L_gsig)
    stp(A, "gstored")
    A("s_waitcnt vmcnt(0)")
    stp(A, "gdrained")
    L_qs = A.newlabel("qs")
    lds_arrive_last(A, C_QKV, 4, L_qs, 2, 3)
    lds_wait(A, C_INIT, 2, 3)
    global_arrive(A, f"s{S_CB}", 16, 2, 3)
    A.label(L_qs)
    stp(A, "gsig")
    A(f"s_branch {L_heads}")

    A.label(L_prod)
    srd(A, R_A, P_X, 2048 * 640 * 2)
    srd(A, R_B, P_W, 640 * 1920 * 2)
    VXE, VXO, VW = 10, 11, 12
    A(f"""
    s_sub_u32 s55, s{S_WAVE}, 4            ; pw
    s_lshl_b32 s49, s55, 12
    s_mul_i32 s53, s55, 61440
    s_and_b32 s50, s{S_RB}, 3
    s_mul_i32 s50, s50, 3
    s_add_u32 s50, s50, s{S_CB}
    s_cmp_ge_u32 s50, 20
    s_cselect_b32 s51, 20, 0
    s_sub_u32 s50, s50, s51
    s_cmp_ge_u32 s50, 10
    s_cselect_b32 s51, 10, 0
    s_sub_u32 s50, s50, s51
    s_lshl_b32 s51, s50, 7
    s_mul_i32 s52, s50, 245760
    s_add_u32 s52, s52, s53
    v_lshrrev_b32 v2, 3, v0
    v_lshrrev_b32 v3, 4, v0
    v_and_b32 v4, 7, v0
    v_xor_b32 v4, v4, v3
    s_lshl_b32 s54, s{S_RB}, 7
    s_lshl_b32 s55, s55, 5
    s_add_u32 s54, s54, s55
    v_add_u32 v2, s54, v2
    v_mul_u32_u24 v2, 1280, v2
    v_lshl_add_u32 v{VXE}, v4, 4, v2
    v_xor_b32 v{VXO}, 64, v{VXE}
    v_and_b32 v4, 15, v0
    v_lshlrev_b32 v5, 2, v3
    v_xor_b32 v4, v4, v5
    v_mul_u32_u24 v5, 3840, v3
    v_lshl_add_u32 v{VW}, v4, 4, v5
    s_lshl_b32 s54, s{S_CB}, 8
    v_add_u32 v{VW}, s54, v{VW}
    """)
    def dma_stage(st):
        so = slot_of(st) * 32768
        for i in range(4):
            A(f"""
            s_add_u32 m0, s49, {so + i*1024}
            s_add_u32 s54, s51, {i*10240}
            buffer_load_dwordx4 v{VXO if i % 2 else VXE}, s[{R_A}:{R_A+3}], s54 offen lds""")
        for i in range(4):
            A(f"""
            s_add_u32 m0, s49, {so + 16384 + i*1024}
            s_add_u32 s54, s52, {i*15360}
            buffer_load_dwordx4 v{VW}, s[{R_B}:{R_B+3}], s54 offen lds""")
        A("""
        s_add_u32 s50, s50, 1
        s_cmp_eq_u32 s50, 10
        s_cselect_b32 s50, 0, s50
        s_lshl_b32 s51, s50, 7
        s_mul_i32 s52, s50, 245760
        s_add_u32 s52, s52, s53""")
    for st in range(3): dma_stage(st)
    A("s_waitcnt vmcnt(16)\ns_barrier")
    stp(A, "b0")
    for s_ in range(1, 8):
        A("s_waitcnt vmcnt(8)\ns_barrier")
        dma_stage(s_ + 2)
    A("s_waitcnt vmcnt(8)\ns_barrier")
    A("s_waitcnt vmcnt(0)\ns_barrier")
    stp(A, "b9")
    A(f"s_branch {L_heads}")

    A.label(L_nog)
    A("s_barrier")
    lds_add_n = None
    A(f"""
    v_mov_b32 v2, {CNT + C_QKV}
    v_mov_b32 v3, 4
    ds_write_b32 v2, v3
    """)

    A.label(L_heads)
    Q1, Q2 = 4, 8
    O = 16
    S = [32, 48]
    P = [64, 72]
    KA, KB, V0, V1 = 80, 84, 88, 92
    AK = [96, 99]; AK2 = [97, 100]; AV = [98, 101]
    KA0, KB0 = 104, 108
    WOV = 120
    VG = [126, 127, 128]; VKP, VKS, VVF = 129, 130, 131
    A(f"""
    s_lshl_b32 s43, s{S_XCD}, 2
    s_lshr_b32 s44, s{S_J}, 3
    s_add_u32 s43, s43, s44        ; head
    s_and_b32 s44, s{S_J}, 7       ; qb
    s_lshl_b32 s46, s44, 3
    s_add_u32 s46, s46, s{S_WAVE}  ; q tile
    s_mov_b32 s47, {hex(HEADWORD[0])}
    """)
    for h in range(1, 32):
        A(f"s_cmp_eq_u32 s43, {h}\ns_cmov_b32 s47, {hex(HEADWORD[h])}")
    for k, dst in enumerate((50, 51, 52)):
        A(f"""
        s_bfe_u32 s54, s47, {hex((3 << 16) | (7*k))}
        s_bfe_u32 s55, s47, {hex((4 << 16) | (7*k + 3))}
        s_mul_i32 s54, s54, {SEC}
        s_lshl_b32 s55, s55, 9
        s_add_u32 s{dst}, s54, s55""")
    A(f"""
    v_and_b32 v3, 31, v0           ; n
    v_lshrrev_b32 v12, 5, v0       ; h
    v_lshlrev_b32 v13, 4, v3       ; n*16
    v_cmp_eq_u32 vcc, 0, v12
    v_mov_b32 v14, s50
    v_mov_b32 v15, s51
    v_cndmask_b32 v14, v15, v14, vcc
    v_add_u32 v{VKP}, v14, v13
    s_and_b32 s54, s43, 1
    s_lshl_b32 s54, s54, 3
    s_add_u32 s54, s54, s52
    v_add_u32 v{VKS}, s54, v13
    v_add_u32 v{VG[0]}, {5*SEC + 2*TB}, v{VKP}
    s_mul_i32 s53, s43, 20
    s_add_u32 s45, s53, 19
    s_lshr_b32 s45, s45, 7
    s_add_u32 s45, s45, 10
    s_mul_i32 s45, s45, {SEC}
    s_add_u32 s45, s45, 8192
    """)
    def vchunk(dst, seg_v, m_v):
        A(f"""
        v_add_u32 v5, s53, v{m_v}          ; F
        v_lshrrev_b32 v6, 7, v5
        v_add_u32 v6, 10, v6
        v_mul_u32_u24 v6, {SEC // 64}, v6
        v_lshlrev_b32 v6, 6, v6
        v_bfe_u32 v7, v5, 5, 2
        v_lshlrev_b32 v7, 10, v7
        v_add_u32 v6, v6, v7
        v_and_b32 v7, 31, v5
        v_lshl_add_u32 v6, v7, 4, v6
        v_lshrrev_b32 v7, 1, v{seg_v}
        v_lshl_add_u32 v6, v7, 12, v6
        v_and_b32 v7, 1, v{seg_v}
        v_lshl_add_u32 v6, v7, 9, v6
        v_subrev_u32 v7, 20, v{m_v}
        v_and_b32 v7, 3, v7
        v_lshlrev_b32 v7, 4, v7
        v_add_u32 v7, s45, v7
        v_cmp_gt_u32 vcc, 20, v{m_v}
        s_nop 1
        v_cndmask_b32 v{dst}, v7, v6, vcc
        """)
    A("""
    v_cmp_gt_u32 vcc, 56, v0
    v_subrev_u32 v8, 32, v0
    v_subrev_u32 v9, 56, v0
    v_cndmask_b32 v8, v9, v8, vcc          ; m
    v_mov_b32 v9, 1
    v_mov_b32 v10, 0
    v_cndmask_b32 v9, v9, v10, vcc         ; seg
    """)
    vchunk(11, 9, 8)
    A(f"""
    v_add_u32 v6, s52, v13
    v_add_u32 v6, {5*SEC + 2*TB}, v6
    v_cmp_gt_u32 vcc, 32, v0
    s_nop 1
    v_cndmask_b32 v{VG[1]}, v11, v6, vcc
    v_cmp_gt_u32 vcc, 16, v0
    v_cmp_gt_u32 s[54:55], 40, v0
    v_subrev_u32 v8, 40, v0
    v_subrev_u32 v10, 16, v0
    v_cndmask_b32 v8, v8, v10, s[54:55]
    v_add_u32 v10, 8, v0
    v_cndmask_b32 v8, v8, v10, vcc         ; m
    v_mov_b32 v9, 3
    v_mov_b32 v10, 2
    v_cndmask_b32 v9, v9, v10, s[54:55]
    v_mov_b32 v10, 1
    v_cndmask_b32 v9, v9, v10, vcc         ; seg
    """)
    vchunk(VG[2], 9, 8)
    A("v_mov_b32 v8, v3\nv_mov_b32 v9, v12")
    vchunk(VVF, 9, 8)
    srd(A, R_A, P_WO, 640 * 640 * 2)
    A(f"s_and_b32 s52, s{S_J}, 7\ns_mul_i32 s52, s52, 160")
    for b in range(5):
        A(f"""
        v_add_u32 v5, {64*b}, v0
        v_mul_u32_u24 v6, 52429, v5
        v_lshrrev_b32 v6, 19, v6
        v_mul_u32_u24 v7, 10, v6
        v_sub_u32 v7, v5, v7
        v_mul_u32_u24 v6, 1280, v6
        v_lshl_add_u32 v6, v7, 4, v6
        v_add_u32 v{WOV+b}, s52, v6""")
    A(f"""
    s_mul_i32 s53, s{S_WAVE}, 5120
    s_mul_i32 s62, s{S_WAVE}, 40960
    s_mov_b32 s60, 0
    v_lshlrev_b32 v2, 4, v0
    v_mul_u32_u24 v13, 384, v12
    v_lshl_add_u32 v13, v3, 4, v13
    v_add_u32 v{AV[0]}, 1536, v13
    v_mov_b32 v{AK[0]}, v2
    s_and_b32 s54, s43, 1
    s_lshl_b32 s54, s54, 3
    s_add_u32 s54, s54, 1024
    v_lshlrev_b32 v1, 4, v3
    v_add_u32 v{AK2[0]}, s54, v1
    v_add_u32 v{AV[1]}, {CHUNK}, v{AV[0]}
    v_add_u32 v{AK[1]}, {CHUNK}, v{AK[0]}
    v_add_u32 v{AK2[1]}, {CHUNK}, v{AK2[0]}
    v_cmp_lt_u32 vcc, 20, v3
    v_mov_b32 v5, 0x30000
    v_mov_b32 v{Q2+2}, 0
    v_cndmask_b32 v{AV[0]}, v{AV[0]}, v5, vcc
    v_cndmask_b32 v{AV[1]}, v{AV[1]}, v5, vcc
    v_mov_b32 v{Q2+3}, 0
    v_mov_b32 v{KB+2}, 0
    v_mov_b32 v{KB+3}, 0
    v_mov_b32 v{KB0+2}, 0
    v_mov_b32 v{KB0+3}, 0
    s_mul_i32 s45, s46, {TB}
    s_mul_i32 s49, s{S_WAVE}, {REC}
    s_mul_i32 s50, s{S_WAVE}, {TB}
    """)
    stp(A, "hset")
    L_gow = A.newlabel("gow"); L_go = A.newlabel("go")
    A(f"""
    s_cmp_lg_u32 s{S_WAVE}, 0
    s_cbranch_scc1 {L_gow}
    """)
    lds_wait(A, C_QKV, 5, 6, val=4)
    lds_wait(A, C_INIT, 5, 6)
    A(f"""
    s_mul_i32 s54, s43, 5
    s_add_u32 s55, s54, 4
    s_lshr_b32 s54, s54, 5             ; c0
    s_lshr_b32 s55, s55, 5             ; c1
    v_and_b32 v5, 1, v0
    v_cmp_eq_u32 vcc, 1, v5
    v_mov_b32 v6, s54
    v_mov_b32 v7, s55
    v_cndmask_b32 v6, v6, v7, vcc
    v_lshrrev_b32 v5, 1, v0
    v_mul_u32_u24 v5, 5, v5
    v_add_u32 v5, v5, v6
    v_lshlrev_b32 v5, 7, v5
    v_add_u32 v5, {SYNC + 128*(FLG + L_QKV)}, v5
    v_cmp_gt_u32 vcc, 6, v0
    v_mov_b32 v6, 1
    s_nop 0
    v_cndmask_b32 v7, 0, v6, vcc
    """)
    poll(A, 5, 7, 6, sleep=E("PS_QKV", 3))
    lds_set(A, C_GO, 5, 6)
    A(f"s_branch {L_go}")
    A.label(L_gow)
    lds_wait(A, C_GO, 5, 6)
    A.label(L_go)
    stp(A, "go")
    A(f"""
    buffer_load_dwordx4 {v(Q1,4)}, v{VKP}, s[{R_WS}:{R_WS+3}], s45 offen{SC}
    buffer_load_dwordx2 {v(Q2,2)}, v{VKS}, s[{R_WS}:{R_WS+3}], s45 offen{SC}
    s_mov_b32 s48, {5*SEC}
    buffer_load_dwordx4 {v(KA0,4)}, v{VKP}, s[{R_WS}:{R_WS+3}], s48 offen{SC}
    buffer_load_dwordx2 {v(KB0,2)}, v{VKS}, s[{R_WS}:{R_WS+3}], s48 offen{SC}
    s_mov_b32 s48, {5*SEC + TB}
    buffer_load_dwordx4 {v(KA,4)}, v{VKP}, s[{R_WS}:{R_WS+3}], s48 offen{SC}
    buffer_load_dwordx2 {v(KB,2)}, v{VKS}, s[{R_WS}:{R_WS+3}], s48 offen{SC}
    """)
    def kv_piece(chunk, i):
        slot = chunk % 2; rr, part = divmod(i, 3)
        return f"""
        s_add_u32 m0, s49, {slot*CHUNK + rr*8*REC + part*1024}
        s_add_u32 s51, s50, {(chunk*16 + rr*8)*TB}
        buffer_load_dwordx4 v{VG[part]}, s[{R_WS}:{R_WS+3}], s51 offen{SC} lds"""
    for i in range(6): A(kv_piece(0, i))
    for i in range(6): A(kv_piece(1, i))
    A(f"""
    v_cmp_gt_u32 vcc, 32, v0
    s_waitcnt vmcnt(6)
    s_nop 0
    v_cndmask_b32 v{Q2}, 0, v{Q2}, vcc
    v_cndmask_b32 v{Q2+1}, 0, v{Q2+1}, vcc
    """)
    stp(A, "kvok")
    A("s_barrier")
    stp(A, "att0")

    def wo_piece(kind, b):
        if kind == 0:
            return f"""
            s_add_u32 m0, s53, {WO_A + b*1024}
            s_nop 0
            buffer_load_dwordx4 v{WOV+b}, s[{R_A}:{R_A+3}], s62 offen lds"""
        if kind == 2:
            return f"""
            s_add_u32 m0, s53, {b*1024}
            s_add_u32 s51, s62, {WO_BROW*1280}
            buffer_load_dwordx4 v{WOV+b}, s[{R_A}:{R_A+3}], s51 offen lds"""
        lab = A.newlabel("wos")
        if kind == 1: lim, ldso, go = 3, WO_A + 8*5120, 8*40960
        else: lim, ldso, go = (2 if b < 2 else 1), 8*5120, WO_BROW*1280 + 8*40960
        return f"""
            s_cmp_ge_u32 s{S_WAVE}, {lim}
            s_cbranch_scc1 {lab}
            s_add_u32 m0, s53, {ldso + b*1024}
            s_add_u32 s51, s62, {go}
            buffer_load_dwordx4 v{WOV+b}, s[{R_A}:{R_A+3}], s51 offen lds
            {lab}:"""
    A(f"v_mfma_f32_32x32x16_bf16 {v(S[0],16)}, {v(KA0,4)}, {v(Q1,4)}, 0")
    A(f"v_mfma_f32_32x32x16_bf16 {v(S[0],16)}, {v(KB0,4)}, {v(Q2,4)}, {v(S[0],16)}")
    A("s_nop 7\ns_nop 7")
    for J in range(64):
        c = J // 16; slot = c % 2; j = J % 16
        Sc, Sn = S[J % 2], S[(J + 1) % 2]
        Pc, Pp = P[J % 2], P[(J + 1) % 2]
        off = j * REC
        if j == 0 and J > 0:
            A("s_waitcnt vmcnt(0) lgkmcnt(0)\ns_barrier")
        EX = lambda i: f"v_exp_f32 v{Sc+i}, v{Sc+i}"
        CV = lambda i: f"v_cvt_pk_bf16_f32 v{Pc+i}, v{Sc+2*i}, v{Sc+2*i+1}"
        G = [(EX(0),EX(1),EX(2),EX(3),CV(0),CV(1)), (EX(4),EX(5),EX(6),EX(7),CV(2),CV(3)), (EX(8),EX(9),EX(10),EX(11),CV(4),CV(5)), (EX(12),EX(13),EX(14),EX(15),CV(6),CV(7))]
        if j in (0, 9, 13, 15):
            A(f"s_setprio {dict([(0,3),(9,2),(13,1),(15,0)])[j]}")
        if J > 0 and j != 0: A("s_waitcnt lgkmcnt(2)")
        if J < 63: A(f"v_mfma_f32_32x32x16_bf16 {v(Sn,16)}, {v(KA,4)}, {v(Q1,4)}, 0")
        if J < 62: A(f"ds_read_b128 {v(KA,4)}, v{AK[slot]} offset:{off}")
        for x in G[0]: A(x)
        if J < 63: A(f"v_mfma_f32_32x32x16_bf16 {v(Sn,16)}, {v(KB,4)}, {v(Q2,4)}, {v(Sn,16)}")
        if J < 62: A(f"ds_read_b64 {v(KB,2)}, v{AK2[slot]} offset:{off}")
        for x in G[1]: A(x)
        if J > 0:
            A("s_waitcnt lgkmcnt(2)" if J < 62 else "s_waitcnt lgkmcnt(0)")
            cc = "0" if J == 1 else v(O, 16)
            A(f"v_mfma_f32_32x32x16_bf16 {v(O,16)}, {v(V0,4)}, {v(Pp,4)}, {cc}")
        A(f"ds_read_b128 {v(V0,4)}, v{AV[slot]} offset:{off}")
        for x in G[2]: A(x)
        if J > 0: A(f"v_mfma_f32_32x32x16_bf16 {v(O,16)}, {v(V1,4)}, {v(Pp+4,4)}, {v(O,16)}")
        A(f"ds_read_b128 {v(V1,4)}, v{AV[slot]} offset:{off + 768}")
        if c in (1, 2) and j < 6: A(kv_piece(c + 1, j))
        if c == 0 and 2 <= j < 7: A(wo_piece(0, j - 2))
        if c == 0 and 8 <= j < 13: A(wo_piece(1, j - 8))
        if c == 3 and 1 <= j < 6: A(wo_piece(2, j - 1))
        if c == 3 and 6 <= j < 11: A(wo_piece(3, j - 6))
        for x in G[3]: A(x)
    stp(A, "att1")
    Pl = P[63 % 2]
    A("s_waitcnt lgkmcnt(0)")
    A(f"v_mfma_f32_32x32x16_bf16 {v(O,16)}, {v(V0,4)}, {v(Pl,4)}, {v(O,16)}")
    A(f"v_mfma_f32_32x32x16_bf16 {v(O,16)}, {v(V1,4)}, {v(Pl+4,4)}, {v(O,16)}")
    A("s_setprio 0")
    L_fin = A.newlabel("fin"); L_slow = A.newlabel("slow"); L_odone = A.newlabel("odone")
    def addr_calc():
        A(f"""
        s_lshl_b32 s52, s43, 6
        s_add_u32 s52, s52, s46
        s_mul_i32 s52, s52, 1536
        s_add_u32 s52, s52, {WS_O}
        v_lshlrev_b32 v104, 4, v0
        """)
    addr_calc()
    A("s_nop 7")
    A.label(L_fin)
    A("s_nop 7")
    A(f"""
    v_mov_b32 v110, v{O+8}
    v_mov_b32 v111, v{O+8}
    s_nop 1
    v_permlane32_swap_b32 v110, v111
    s_nop 1
    v_rcp_f32 v112, v111
    s_nop 0
    """)
    for i in range(0, 12, 2):
        A(f"v_pk_mul_f32 {v(O+i,2)}, {v(O+i,2)}, v[112:113] op_sel_hi:[1,0]")
    A(f"""
    v_add_f32 v113, abs(v{O}), abs(v{O+1})
    v_add_f32 v114, abs(v{O+8}), abs(v{O+9})
    """)
    for i in range(2, 8): A(f"v_add_f32 v113, v113, abs(v{O+i})")
    A(f"""
    v_add_f32 v114, v114, abs(v{O+10})
    v_add_f32 v114, v114, abs(v{O+11})
    v_cmp_gt_u32 vcc, 32, v0
    v_mov_b32 v115, 0x21800000         ; 2^-60
    v_mov_b32 v116, 0x5d800000         ; 2^60
    v_cndmask_b32 v114, 0, v114, vcc
    v_add_f32 v113, v113, v114
    v_mov_b32 v114, 0x7f800000
    v_cmp_nlt_f32 s[54:55], v113, v114
    v_cmp_ngt_f32 s[56:57], v111, v115
    v_cmp_nlt_f32 vcc, v111, v116
    s_nop 1
    s_or_b64 s[54:55], s[54:55], s[56:57]
    s_or_b64 s[54:55], s[54:55], vcc
    s_cmp_lg_u64 s[54:55], 0
    s_cselect_b32 s61, 1, 0
    s_andn2_b32 s61, s61, s60
    s_cmp_lg_u32 s61, 0
    s_cbranch_scc1 {L_slow}
    """)
    for i in range(4): A(f"v_cvt_pk_bf16_f32 v{O+i}, v{O+2*i}, v{O+2*i+1}")
    A(f"""
    v_cvt_pk_bf16_f32 v{O+8}, v{O+8}, v{O+9}
    v_cvt_pk_bf16_f32 v{O+9}, v{O+10}, v{O+11}
    v_mov_b32 v{O+10}, 0
    v_mov_b32 v{O+11}, 0
    buffer_store_dwordx4 {v(O,4)}, v104, s[{R_WS}:{R_WS+3}], s52 offen{SC}
    s_mov_b32 exec_hi, 0
    buffer_store_dwordx4 {v(O+8,4)}, v104, s[{R_WS}:{R_WS+3}], s52 offen offset:1024{SC}
    s_mov_b64 exec, -1
    s_branch {L_odone}
    """)
    A.label(L_slow)
    L1 = A.newlabel("p1"); L2 = A.newlabel("p2")
    A(f"""
    s_mov_b32 s60, 1
    v_mov_b32 v110, 0xff800000
    s_mov_b32 s52, 0
    {L1}:
    s_mul_i32 s63, s52, {TB}
    s_add_u32 s63, s63, {5*SEC}
    buffer_load_dwordx4 {v(KA,4)}, v{VKP}, s[{R_WS}:{R_WS+3}], s63 offen{SC}
    buffer_load_dwordx2 {v(KB,2)}, v{VKS}, s[{R_WS}:{R_WS+3}], s63 offen{SC}
    s_waitcnt vmcnt(0)
    v_mfma_f32_32x32x16_bf16 {v(S[0],16)}, {v(KA,4)}, {v(Q1,4)}, 0
    v_mfma_f32_32x32x16_bf16 {v(S[0],16)}, {v(KB,4)}, {v(Q2,4)}, {v(S[0],16)}
    s_nop 7
    s_nop 7
    """)
    for i in range(0, 16, 2): A(f"v_max3_f32 v110, v110, v{S[0]+i}, v{S[0]+i+1}")
    A(f"""
    s_add_u32 s52, s52, 1
    s_cmp_lt_u32 s52, 64
    s_cbranch_scc1 {L1}
    v_mov_b32 v108, v110
    v_mov_b32 v109, v110
    s_nop 1
    v_permlane32_swap_b32 v108, v109
    s_nop 1
    v_max_f32 v110, v108, v109
    v_and_b32 v3, 31, v0
    v_cmp_gt_u32 vcc, 20, v3
    v_add_u32 v108, 4096, v{VVF}
    s_nop 0
    v_cndmask_b32 v109, v{VVF}, v108, vcc
    """)
    for i in range(16): A(f"v_mov_b32 v{O+i}, 0")
    A("s_mov_b32 s52, 0")
    A.label(L2)
    A(f"""
    s_mul_i32 s54, s52, {TB}
    s_add_u32 s63, s54, {5*SEC}
    buffer_load_dwordx4 {v(KA,4)}, v{VKP}, s[{R_WS}:{R_WS+3}], s63 offen{SC}
    buffer_load_dwordx2 {v(KB,2)}, v{VKS}, s[{R_WS}:{R_WS+3}], s63 offen{SC}
    buffer_load_dwordx4 {v(V0,4)}, v{VVF}, s[{R_WS}:{R_WS+3}], s54 offen{SC}
    buffer_load_dwordx4 {v(V1,4)}, v109, s[{R_WS}:{R_WS+3}], s54 offen{SC}
    s_waitcnt vmcnt(0)
    v_mfma_f32_32x32x16_bf16 {v(S[0],16)}, {v(KA,4)}, {v(Q1,4)}, 0
    v_mfma_f32_32x32x16_bf16 {v(S[0],16)}, {v(KB,4)}, {v(Q2,4)}, {v(S[0],16)}
    s_nop 7
    s_nop 7
    """)
    for i in range(16): A(f"v_sub_f32 v{S[0]+i}, v{S[0]+i}, v110")
    for i in range(16): A(f"v_exp_f32 v{S[0]+i}, v{S[0]+i}")
    A("s_nop 0")
    for i in range(8): A(f"v_cvt_pk_bf16_f32 v{P[0]+i}, v{S[0]+2*i}, v{S[0]+2*i+1}")
    A(f"""
    s_nop 1
    v_mfma_f32_32x32x16_bf16 {v(O,16)}, {v(V0,4)}, {v(P[0],4)}, {v(O,16)}
    v_mfma_f32_32x32x16_bf16 {v(O,16)}, {v(V1,4)}, {v(P[0]+4,4)}, {v(O,16)}
    s_add_u32 s52, s52, 1
    s_cmp_lt_u32 s52, 64
    s_cbranch_scc1 {L2}
    s_nop 7
    """)
    addr_calc()
    A(f"s_branch {L_fin}")

    A.label(L_odone)
    OF = 32; AD = 80; OA = 88; VOUT, VRED = 91, 92; ACC3 = 96; WF = [116, 136]
    A(f"""
    s_lshl_b32 s54, s{S_XCD}, 2
    s_lshr_b32 s55, s{S_J}, 3
    s_add_u32 s54, s54, s55        ; tb
    s_lshl_b32 s54, s54, 2
    s_and_b32 s55, s{S_WAVE}, 3
    s_add_u32 s54, s54, s55        ; T
    s_lshr_b32 s45, s54, 1
    s_mul_i32 s45, s45, 1536
    s_and_b32 s57, s54, 1
    s_lshl_b32 s57, s57, 8
    s_add_u32 s45, s45, s57
    s_add_u32 s45, s45, {WS_O}
    s_lshr_b32 s57, s{S_WAVE}, 2
    s_mul_i32 s57, s57, {16*64*1536}
    s_add_u32 s62, s45, s57
    v_lshrrev_b32 v5, 4, v0            ; kg
    v_and_b32 v6, 15, v0
    v_lshlrev_b32 v6, 4, v6
    """)
    for c in range(3):
        A(f"""
        v_add_u32 v8, {4*c}, v5
        v_mul_u32_u24 v9, 21846, v8
        v_lshrrev_b32 v9, 16, v9
        v_mul_u32_u24 v10, 3, v9
        v_sub_u32 v10, v8, v10
        v_mul_u32_u24 v9, 1536, v9
        v_lshlrev_b32 v9, 6, v9
        v_lshl_add_u32 v9, v10, 9, v9
        v_add_u32 v{OA+c}, v9, v6""")
    A(f"""
    v_and_b32 v3, 15, v0
    s_lshl_b32 s55, s54, 4
    v_add_u32 v3, s55, v3
    v_mul_u32_u24 v3, 2560, v3
    v_lshrrev_b32 v4, 4, v0
    v_lshl_add_u32 v3, v4, 3, v3
    s_and_b32 s55, s{S_J}, 7
    s_mul_i32 s55, s55, 160
    v_add_u32 v{VOUT}, s55, v3
    v_lshlrev_b32 v3, 4, v0
    s_and_b32 s55, s{S_WAVE}, 3
    s_mul_i32 s55, s55, 5120
    s_add_u32 s55, s55, {RED}
    v_add_u32 v{VRED}, s55, v3
    v_bfe_u32 v6, v0, 2, 2             ; r
    v_and_b32 v7, 3, v0
    v_lshlrev_b32 v7, 3, v7            ; 8*c4
    s_mov_b32 s59, {WO_A}
    """)
    def row_addr(dst0, s, region):
        A(f"""
        v_add_u32 v8, {4*s}, v5
        v_mul_u32_u24 v9, 21846, v8
        v_lshrrev_b32 v9, 16, v9
        v_mul_u32_u24 v10, 3, v9
        v_sub_u32 v10, v8, v10
        v_mul_u32_u24 v9, 20, v9
        v_add_u32 v9, v9, v6
        v_lshlrev_b32 v11, 2, v10
        v_cmp_eq_u32 vcc, 2, v10
        v_add_u32 v12, 8, v11
        v_lshlrev_b32 v13, 1, v11
        v_cndmask_b32 v11, v11, v13, vcc
        v_add_u32 v11, v11, v9
        v_add_u32 v12, v12, v9
        """)
        for hh, rv in enumerate((11, 12)):
            if region == "A":
                A(f"v_mul_u32_u24 v13, 160, v{rv}\nv_add3_u32 v{dst0+hh}, v13, v7, s59")
            elif region == "B":
                A(f"v_subrev_u32 v13, {WO_BROW}, v{rv}\nv_mul_u32_u24 v13, 160, v13\nv_add_u32 v{dst0+hh}, v13, v7")
            else:
                A(f"""
                v_mul_u32_u24 v13, 160, v{rv}
                v_add3_u32 v14, v13, v7, s59
                v_subrev_u32 v13, {WO_BROW*160}, v13
                v_add_u32 v13, v13, v7
                v_cmp_gt_u32 vcc, {WO_BROW}, v{rv}
                s_nop 1
                v_cndmask_b32 v{dst0+hh}, v13, v14, vcc""")
    L_ahi = A.newlabel("ahi"); L_adone = A.newlabel("adone")
    stp(A, "ostored")
    A("s_waitcnt vmcnt(0)")
    stp(A, "odrained")
    L_os = A.newlabel("os")
    lds_arrive_last(A, C_O, 8, L_os, 2, 3)
    A(f"s_add_u32 s65, s44, {L_O}")
    global_arrive(A, "s65", 32, 2, 3)
    A.label(L_os)
    A(f"""
    s_cmp_ge_u32 s{S_WAVE}, 4
    s_cbranch_scc1 {L_ahi}
    """)
    for c in range(3): row_addr(AD + 2*c, c, "A")
    A(f"s_branch {L_adone}")
    A.label(L_ahi)
    row_addr(AD + 6, 12, None)
    for c in range(3): row_addr(AD + 2*c, 13 + c, "B")
    A.label(L_adone)
    srd(A, R_B, P_OUT, 2048 * 1280 * 2)
    L_p3a = A.newlabel("p3a"); L_post = A.newlabel("post"); L_t3 = A.newlabel("t3"); L_tgo = A.newlabel("tgo")
    A(f"""
    s_cmp_eq_u32 s{S_WAVE}, 0
    s_cbranch_scc0 {L_post}
    s_lshl_b32 s54, s{S_XCD}, 7
    s_add_u32 s54, s54, {SYNC + 128*(FLG + L_O)}
    v_mov_b32 v2, s54
    v_cmp_eq_u32 vcc, 0, v0
    v_mov_b32 v3, 1
    s_nop 0
    v_cndmask_b32 v4, 0, v3, vcc
    """)
    poll(A, 2, 4, 3, sleep=E("PS_O", 3))
    stp(A, "ook")
    A(f"s_branch {L_p3a}")
    A.label(L_post)
    A(f"""
    s_cmp_ge_u32 s{S_WAVE}, 4
    s_cbranch_scc1 {L_p3a}
    s_cmp_eq_u32 s{S_WAVE}, 3
    s_cbranch_scc1 {L_t3}
    s_lshl_b32 s56, s2, 1
    s_sub_u32 s57, s{S_WAVE}, 1
    s_add_u32 s56, s56, s57
    s_branch {L_tgo}
    {L_t3}:
    s_cmp_ge_u32 s2, 128
    s_cbranch_scc1 {L_p3a}
    s_add_u32 s56, s2, 512
    {L_tgo}:
    s_mul_i32 s57, s56, 52429
    s_lshr_b32 s57, s57, 19
    s_mul_i32 s58, s57, 10
    s_sub_u32 s58, s56, s58
    """)
    srd(A, R_C, P_BQ, 2048 * 640 * 2)
    A(f"""
    v_and_b32 v2, 7, v0
    v_lshrrev_b32 v3, 3, v0
    s_lshl_b32 s54, s58, 6
    v_lshl_add_u32 v2, v2, 3, s54
    s_lshl_b32 s55, s57, 5
    v_lshl_add_u32 v3, v3, 2, s55
    v_mul_u32_u24 v4, 1280, v3
    v_lshl_add_u32 v8, v2, 1, v4
    v_lshlrev_b32 v5, 12, v2
    v_lshl_add_u32 v5, v3, 1, v5
    v_add_u32 v9, {WS_Z}, v5
    v_mul_u32_u24 v6, 2560, v3
    v_lshl_add_u32 v6, v2, 1, v6
    v_add_u32 v10, 1280, v6
    """)
    for j in range(4):
        A(f"buffer_load_dwordx4 {v(32+4*j,4)}, v8, s[{R_C}:{R_C+3}], 0 offen offset:{1280*j}")
    poll_flags(A, L_Z, 8, 2, 4, 3)
    for i in range(8):
        A(f"s_mov_b32 s54, {i*4096}")
        A(f"buffer_load_dwordx2 {v(16+2*i,2)}, v9, s[{R_WS}:{R_WS+3}], s54 offen{SC}")
    A("s_waitcnt vmcnt(0)")
    for j in range(4):
        for q in range(4):
            za = 16 + 2*(2*q) + j//2; zb = 16 + 2*(2*q+1) + j//2
            if j % 2 == 0:
                A(f"v_lshlrev_b32 v48, 16, v{za}\nv_lshlrev_b32 v49, 16, v{zb}")
            else:
                A(f"v_and_b32 v48, 0xffff0000, v{za}\nv_and_b32 v49, 0xffff0000, v{zb}")
            qq = 32 + 4*j + q
            A(f"v_lshlrev_b32 v50, 16, v{qq}\nv_and_b32 v51, 0xffff0000, v{qq}")
            A(f"v_pk_mul_f32 v[48:49], v[48:49], v[50:51]")
            A(f"v_cvt_pk_bf16_f32 v{52+4*j+q}, v48, v49")
        A(f"s_mov_b32 s54, {j*2560}")
        A(f"buffer_store_dwordx4 {v(52+4*j,4)}, v10, s[{R_B}:{R_B+3}], s54 offen")
    A.label(L_p3a)
    stp(A, "prep3a")
    A("s_barrier")
    stp(A, "p3a")
    for st in range(12):
        if st % 3 == 0: A(f"s_add_u32 s58, s62, {(st//3)*4*64*1536}")
        A(f"buffer_load_dwordx4 {v(OF+4*st,4)}, v{OA + st % 3}, s[{R_WS}:{R_WS+3}], s58 offen{SC}")
    def p3_loop(hi):
        if not hi: sel = lambda st: (AD + 2*(st % 3), (st // 3) * 12800)
        else: sel = lambda st: (AD + 6, 0) if st == 0 else (AD + 2*((st - 1) % 3), ((st - 1) // 3) * 12800)
        def rd(st, setid):
            base, so = sel(st); r = []
            for T in range(5):
                r.append(f"ds_read_b64_tr_b16 {v(WF[setid]+4*T,2)}, v{base} offset:{so + 32*T}")
                r.append(f"ds_read_b64_tr_b16 {v(WF[setid]+4*T+2,2)}, v{base+1} offset:{so + 32*T}")
            return r
        for r in rd(0, 0): A(r)
        for st in range(12):
            setid = st % 2
            A(f"s_waitcnt vmcnt({11-st}) lgkmcnt(0)")
            rs = rd(st + 1, 1 - setid) if st < 11 else []
            for T in range(5):
                cc = "0" if st == 0 else v(ACC3+4*T, 4)
                A(f"v_mfma_f32_16x16x32_bf16 {v(ACC3+4*T,4)}, {v(WF[setid]+4*T,4)}, {v(OF+4*st,4)}, {cc}")
                for r in rs[2*T:2*T+2]: A(r)
        A("s_nop 7")
    L_hi = A.newlabel("p3hi")
    A(f"""
    s_cmp_ge_u32 s{S_WAVE}, 4
    s_cbranch_scc1 {L_hi}
    """)
    p3_loop(False)
    A("s_barrier")
    for T in range(5): A(f"ds_read_b128 {v(32+4*T,4)}, v{VRED} offset:{1024*T}")
    A("s_waitcnt lgkmcnt(0)")
    for T in range(5):
        d = ACC3 + 4*T
        A(f"v_pk_add_f32 {v(d,2)}, {v(d,2)}, {v(32+4*T,2)}")
        A(f"v_pk_add_f32 {v(d+2,2)}, {v(d+2,2)}, {v(34+4*T,2)}")
        A(f"v_cvt_pk_bf16_f32 v{d}, v{d}, v{d+1}")
        A(f"v_cvt_pk_bf16_f32 v{d+1}, v{d+2}, v{d+3}")
        A(f"buffer_store_dwordx2 {v(d,2)}, v{VOUT}, s[{R_B}:{R_B+3}], 0 offen offset:{32*T}")
    prof_dump(A, 0, wsptr=P_WS)
    A("s_endpgm")
    A.label(L_hi)
    p3_loop(True)
    for T in range(5): A(f"ds_write_b128 v{VRED}, {v(ACC3+4*T,4)} offset:{1024*T}")
    A("s_waitcnt lgkmcnt(0)\ns_barrier")
    prof_dump(A, 0, wsptr=P_WS)
    A("s_endpgm")

    A.label(L_bw)
    BK, BV, BW = 16, 44, 60
    def b_setup(notask):
        L2_ = A.newlabel("b2"); Lgo = A.newlabel("bgo")
        A(f"""
        s_cmp_eq_u32 s{S_WAVE}, 11
        s_cbranch_scc1 {notask}
        s_cmp_eq_u32 s{S_WAVE}, 10
        s_cbranch_scc1 {L2_}
        s_lshl_b32 s56, s2, 1
        s_sub_u32 s57, s{S_WAVE}, 8
        s_add_u32 s56, s56, s57
        s_branch {Lgo}
        {L2_}:
        s_cmp_ge_u32 s2, 128
        s_cbranch_scc1 {notask}
        s_add_u32 s56, s2, 512
        {Lgo}:
        s_mul_i32 s57, s56, 52429
        s_lshr_b32 s57, s57, 19        ; tblk
        s_mul_i32 s58, s57, 10
        s_sub_u32 s58, s56, s58        ; dblk
        v_and_b32 v2, 7, v0            ; dg
        v_lshrrev_b32 v3, 3, v0        ; tg
        v_lshlrev_b32 v12, 6, v2
        v_lshl_add_u32 v12, v3, 3, v12
        s_lshl_b32 s54, s56, 12
        s_add_u32 s54, s54, {WS_U}
        v_add_u32 v12, s54, v12
        s_lshl_b32 s54, s58, 6
        v_lshl_add_u32 v2, v2, 3, s54  ; d0
        s_lshl_b32 s55, s57, 5
        v_lshl_add_u32 v3, v3, 2, s55  ; t0
        v_mul_u32_u24 v4, 1280, v3
        v_lshl_add_u32 v10, v2, 1, v4
        v_lshlrev_b32 v11, 3, v2
        v_subrev_u32 v5, 3840, v10
        v_subrev_u32 v6, 2560, v10
        v_subrev_u32 v7, 1280, v10
        """)
    def b_loads():
        srd(A, R_C, P_BK, 2048 * 640 * 2)
        A(f"""
        buffer_load_dwordx4 {v(BK,4)}, v5, s[{R_C}:{R_C+3}], 0 offen
        buffer_load_dwordx4 {v(BK+4,4)}, v6, s[{R_C}:{R_C+3}], 0 offen
        buffer_load_dwordx4 {v(BK+8,4)}, v7, s[{R_C}:{R_C+3}], 0 offen
        """)
        for j in range(4): A(f"buffer_load_dwordx4 {v(BK+12+4*j,4)}, v10, s[{R_C}:{R_C+3}], 0 offen offset:{1280*j}")
        srd(A, R_C, P_BV, 2048 * 640 * 2)
        for j in range(4): A(f"buffer_load_dwordx4 {v(BV+4*j,4)}, v10, s[{R_C}:{R_C+3}], 0 offen offset:{1280*j}")
        srd(A, R_C, P_SH, 640 * 4 * 2)
        for j in range(4): A(f"buffer_load_dwordx4 {v(BW+4*j,4)}, v11, s[{R_C}:{R_C+3}], 0 offen offset:{16*j}")
    def b_compute(q):
        KP, VP, WP, AC, OUT = 80, 94, 102, 110, 120
        for j in range(7):
            A(f"v_lshlrev_b32 v{KP+2*j}, 16, v{BK+4*j+q}\nv_and_b32 v{KP+1+2*j}, 0xffff0000, v{BK+4*j+q}")
        for t in range(4):
            A(f"v_lshlrev_b32 v{VP+2*t}, 16, v{BV+4*t+q}\nv_and_b32 v{VP+1+2*t}, 0xffff0000, v{BV+4*t+q}")
        for u in range(2):
            bb = BW + 4*q + 2*u
            A(f"v_lshlrev_b32 v{WP+u}, 16, v{bb}\nv_and_b32 v{WP+2+u}, 0xffff0000, v{bb}")
            A(f"v_lshlrev_b32 v{WP+4+u}, 16, v{bb+1}\nv_and_b32 v{WP+6+u}, 0xffff0000, v{bb+1}")
        for t in range(4):
            acc = AC + 2*t
            A(f"v_pk_mul_f32 {v(acc,2)}, {v(KP+2*(t+0),2)}, {v(WP+6,2)}")
            A(f"v_pk_fma_f32 {v(acc,2)}, {v(KP+2*(t+1),2)}, {v(WP+4,2)}, {v(acc,2)}")
            A(f"v_pk_fma_f32 {v(acc,2)}, {v(KP+2*(t+2),2)}, {v(WP+2,2)}, {v(acc,2)}")
            A(f"v_pk_fma_f32 {v(acc,2)}, {v(KP+2*(t+3),2)}, {v(WP,2)}, {v(acc,2)}")
            A(f"v_pk_mul_f32 {v(acc,2)}, {v(acc,2)}, {v(VP+2*t,2)}")
        for u in range(2):
            o = OUT + 4*q + 2*u
            A(f"v_cvt_pk_bf16_f32 v{o}, v{AC+u}, v{AC+2+u}\nv_cvt_pk_bf16_f32 v{o+1}, v{AC+4+u}, v{AC+6+u}")
        for u in range(2):
            o = OUT + 4*q + 2*u
            A(f"buffer_store_dwordx2 {v(o,2)}, v12, s[{R_WS}:{R_WS+3}], 0 offen offset:{(2*q+u)*512}{SC}")
    def hcopy_dma():
        srd(A, R_C, P_SK, 640 * 4096)
        A(f"""
        s_sub_u32 s57, s{S_WAVE}, 8
        s_mul_i32 s57, s57, {CONV_SZ}
        s_add_u32 s57, s57, {CONV_BASE}
        s_lshl_b32 s58, s56, 12
        v_lshlrev_b32 v13, 4, v0
        v_add_u32 v13, s58, v13
        """)
        for r in range(4):
            for p in range(4):
                dlt = 1024*p - 2*r
                A(f"v_add_u32 v14, {dlt}, v13" if dlt >= 0 else f"v_subrev_u32 v14, {-dlt}, v13")
                A(f"""
                s_add_u32 m0, s57, {r*COPY + 32 + p*1024}
                s_nop 0
                buffer_load_dwordx4 v14, s[{R_C}:{R_C+3}], 0 offen lds""")
        A(f"v_mov_b32 v14, s58\nbuffer_load_dwordx4 v[160:163], v14, s[{R_C}:{R_C+3}], 0 offen")
    L_bnog = A.newlabel("bnog"); L_bnt = A.newlabel("bnt"); L_sync = A.newlabel("sync"); L_bntn = A.newlabel("bntn")
    A(f"""
    s_cmp_ge_u32 s{S_CB}, 15
    s_cbranch_scc1 {L_bnog}
    """)
    b_setup(L_bnt)
    nb_wait = E("BWAIT", 5)
    A("s_barrier")
    stp(A, "b0")
    b_loads()
    for _ in range(nb_wait): A("s_barrier")
    A("s_waitcnt vmcnt(0)")
    stp(A, "blok")
    b_compute(0); b_compute(1)
    A("s_barrier")
    b_compute(2); b_compute(3)
    rest = 9 - nb_wait - 1
    assert rest >= 1
    A("s_barrier")
    hcopy_dma()
    for _ in range(rest - 1): A("s_barrier")
    stp(A, "b9")
    A("s_waitcnt vmcnt(17)")
    lds_add(A, C_U, 2, 3)
    A(f"s_branch {L_conv}")
    A.label(L_bnt)
    for _ in range(10): A("s_barrier")
    A(f"s_branch {L_sync}")
    A.label(L_bnog)
    L_noz = A.newlabel("noz")
    A(f"""
    s_cmp_lg_u32 s2, {ZERO_WG}
    s_cbranch_scc1 {L_noz}
    s_cmp_lg_u32 s{S_WAVE}, 11
    s_cbranch_scc1 {L_noz}
    v_lshlrev_b32 v2, 4, v0
    v_add_u32 v2, {SYNC}, v2
    v_mov_b32 v4, 0
    v_mov_b32 v5, 0
    v_mov_b32 v6, 0
    v_mov_b32 v7, 0
    """)
    for i in range(10):
        A(f"s_mov_b32 s54, {1024*i}\nbuffer_store_dwordx4 v[4:7], v2, s[{R_WS}:{R_WS+3}], s54 offen sc1")
    A(f"""
    s_waitcnt vmcnt(0)
    v_mov_b32 v2, 0
    v_mov_b32 v3, 1
    s_mov_b64 exec, 1
    global_store_dword v2, v3, s[{P_DBG}:{P_DBG+1}] sc1
    s_mov_b64 exec, -1
    {L_noz}:
    s_barrier
    """)
    b_setup(L_sync)
    b_loads()
    A("s_waitcnt vmcnt(0)")
    for q in range(4): b_compute(q)
    hcopy_dma()
    A("s_waitcnt vmcnt(17)")
    lds_add(A, C_U, 2, 3)
    A(f"s_branch {L_conv}")
    A.label(L_sync)
    A(f"""
    s_cmp_lg_u32 s{S_WAVE}, 11
    s_cbranch_scc1 {L_exit}
    v_mov_b32 v2, 0
    v_mov_b32 v3, 1
    """)
    poll(A, 2, 3, 4, sleep=8, base=P_DBG)
    lds_set(A, C_INIT, 2, 3)
    Lu3 = A.newlabel("u3"); Lud = A.newlabel("ud")
    A(f"s_cmp_lt_u32 s2, 128\ns_cbranch_scc1 {Lu3}")
    lds_wait(A, C_U, 2, 3, val=2)
    A(f"s_branch {Lud}")
    A.label(Lu3)
    lds_wait(A, C_U, 2, 3, val=3)
    A.label(Lud)
    A(f"s_and_b32 s55, s2, 7\ns_add_u32 s55, s55, {L_U}")
    global_arrive(A, "s55", 32, 2, 3)
    prof_dump(A, 0, wsptr=P_WS)
    A("s_endpgm")

    A.label(L_conv)
    A(f"""
    s_lshr_b32 s59, s56, 1
    s_lshl_b32 s59, s59, 2
    s_load_dword s60, s[{P_SD}:{P_SD+1}], s59
    v_mov_b32 v12, 0
    v_mov_b32 v13, 0
    v_mov_b32 v14, 0
    v_mov_b32 v15, 0
    v_lshlrev_b32 v6, 3, v0
    v_add_u32 v6, s57, v6
    v_add_u32 v6, {4*COPY}, v6
    v_cmp_gt_u32 vcc, 60, v0
    s_and_saveexec_b64 s[54:55], vcc
    ds_write_b64 v6, v[12:13]
    s_mov_b64 exec, s[54:55]
    v_and_b32 v6, 1, v0
    v_lshlrev_b32 v6, 4, v6
    v_lshrrev_b32 v7, 1, v0
    v_mul_u32_u24 v7, {COPY}, v7
    v_add3_u32 v6, v6, v7, s57
    v_cmp_gt_u32 vcc, 8, v0
    s_and_saveexec_b64 s[54:55], vcc
    ds_write_b128 v6, v[12:15]
    s_mov_b64 exec, s[54:55]
    s_lshr_b32 s54, s56, 6
    s_and_b32 s55, s56, 63
    s_and_b32 s61, s55, 7
    s_lshr_b32 s55, s55, 3
    s_lshl_b32 s61, s61, 9
    s_lshl_b32 s55, s55, 6
    s_add_u32 s61, s61, s55
    s_lshl_b32 s54, s54, 12
    s_add_u32 s61, s61, s54
    s_add_u32 s61, s61, {WS_U}
    v_lshrrev_b32 v8, 2, v0
    v_mul_u32_u24 v8, 40960, v8
    v_and_b32 v9, 3, v0
    v_lshl_add_u32 v8, v9, 4, v8
    """)
    L_uw = A.newlabel("uw"); L_ud = A.newlabel("ud")
    A(f"s_cmp_lg_u32 s{S_WAVE}, 8\ns_cbranch_scc1 {L_uw}")
    lds_wait(A, C_INIT, 2, 3)
    poll_flags(A, L_U, 8, 2, 4, 3, sleep=E("PS_U", 6))
    lds_set(A, C_UOK, 2, 3)
    A(f"s_branch {L_ud}")
    A.label(L_uw)
    lds_wait(A, C_UOK, 2, 3)
    A("s_waitcnt vmcnt(0)")
    A.label(L_ud)
    stp(A, "uok")
    for p in range(4):
        A(f"""
        s_add_u32 m0, s57, {4*COPY + 480 + p*1024}
        s_add_u32 s54, s61, {p*16*40960}
        buffer_load_dwordx4 v8, s[{R_WS}:{R_WS+3}], s54 offen{SC} lds""")
    A(f"""
    v_lshlrev_b32 v16, 16, v160
    v_alignbit_b32 v17, v161, v160, 16
    v_alignbit_b32 v18, v162, v161, 16
    v_alignbit_b32 v19, v163, v162, 16
    v_mov_b32 v20, 0
    v_mov_b32 v21, v160
    v_mov_b32 v22, v161
    v_mov_b32 v23, v162
    v_mov_b32 v24, 0
    v_mov_b32 v25, v16
    v_mov_b32 v26, v17
    v_mov_b32 v27, v18
    v_mov_b32 v6, s57
    s_mov_b64 exec, 1
    ds_write_b128 v6, v[16:19] offset:{1*COPY + 32}
    ds_write_b128 v6, v[20:23] offset:{2*COPY + 32}
    ds_write_b128 v6, v[24:27] offset:{3*COPY + 32}
    s_mov_b64 exec, -1
    v_lshrrev_b32 v6, 4, v0             ; kg
    v_bfe_u32 v7, v0, 2, 2              ; r
    v_and_b32 v8, 3, v0                 ; c
    v_mul_u32_u24 v7, {COPY}, v7
    v_lshlrev_b32 v8, 3, v8
    v_lshlrev_b32 v9, 4, v6
    v_sub_u32 v8, v8, v9
    v_add_u32 v8, 56, v8
    v_add3_u32 v4, v7, v8, s57          ; vA
    v_and_b32 v7, 15, v0
    v_lshlrev_b32 v7, 5, v7
    v_lshl_add_u32 v7, v6, 4, v7
    v_add_u32 v7, {4*COPY}, v7
    v_add_u32 v5, s57, v7               ; vB
    s_waitcnt vmcnt(0) lgkmcnt(0)
    s_and_b32 s54, s56, 1
    s_lshl_b32 s54, s54, 4
    s_lshr_b32 s60, s60, s54
    s_lshl_b32 s60, s60, 16             ; D as f32
    """)
    stp(A, "conv0")
    Y = 32; ATS = [64, 96]; BT = 128
    def a_reads(rho, p, sid):
        mu = rho + 8 * p
        return [f"ds_read_b64_tr_b16 {v(ATS[sid]+4*p,2)}, v4 offset:{64*mu + 8}",
                f"ds_read_b64_tr_b16 {v(ATS[sid]+4*p+2,2)}, v4 offset:{64*mu}"]
    def b_read(rho, q): return f"ds_read_b128 {v(BT+4*q,4)}, v5 offset:{64*(8*q - rho + 7)}"
    for q in range(7, -1, -1): A(b_read(0, q))
    A("s_waitcnt lgkmcnt(4)")
    for p in range(8):
        for r in a_reads(0, p, 0): A(r)
        if p == 3: A("s_waitcnt lgkmcnt(4)")
    for rho in range(8):
        sid = rho % 2
        nxtA = [x for p in range(8) for x in a_reads(rho + 1, p, 1 - sid)] if rho < 7 else []
        A("s_waitcnt lgkmcnt(0)" if rho == 0 else "s_waitcnt lgkmcnt(4)")
        for p in range(8):
            for q in range(7 - p, -1, -1):
                i = p + q
                cc = "0" if (rho == 0 and p == 0) else v(Y+4*i, 4)
                if p == 0 and rho > 0 and q <= 3:
                    A(f"s_waitcnt lgkmcnt({7 if rho < 7 else q})")
                A(f"v_mfma_f32_16x16x32_bf16 {v(Y+4*i,4)}, {v(ATS[sid]+4*p,4)}, {v(BT+4*q,4)}, {cc}")
                if nxtA: A(nxtA.pop(0))
            if rho < 7: A(b_read(rho + 1, 7 - p))
    stp(A, "conv1")
    A(f"""
    v_and_b32 v7, 15, v0
    v_lshrrev_b32 v6, 4, v0
    v_lshlrev_b32 v7, 5, v7
    v_lshl_add_u32 v7, v6, 3, v7        ; 32n + 8g
    v_add_u32 v8, s57, v7
    v_add_u32 v8, {4*COPY + 480}, v8
    s_add_u32 s61, s58, {WS_Z}
    """)
    for i in range(8): A(f"ds_read_b64 {v(64+2*i,2)}, v8 offset:{512*i}")
    A("s_waitcnt lgkmcnt(0)\ns_nop 3")
    for i in range(8):
        u0, u1 = 64 + 2*i, 64 + 2*i + 1
        y = Y + 4*i
        A(f"""
        v_lshlrev_b32 v96, 16, v{u0}
        v_and_b32 v97, 0xffff0000, v{u0}
        v_lshlrev_b32 v98, 16, v{u1}
        v_and_b32 v99, 0xffff0000, v{u1}
        v_fma_f32 v{y}, v96, s60, v{y}
        v_fma_f32 v{y+1}, v97, s60, v{y+1}
        v_fma_f32 v{y+2}, v98, s60, v{y+2}
        v_fma_f32 v{y+3}, v99, s60, v{y+3}
        v_cvt_pk_bf16_f32 v{y}, v{y}, v{y+1}
        v_cvt_pk_bf16_f32 v{y+1}, v{y+2}, v{y+3}
        buffer_store_dwordx2 {v(y,2)}, v7, s[{R_WS}:{R_WS+3}], s61 offen offset:{512*i}{SC}""")
    A("s_waitcnt vmcnt(0)")
    stp(A, "zdrained")
    L_zs = A.newlabel("zs")
    A("s_cmp_lt_u32 s2, 128\ns_cselect_b32 s64, 3, 2")
    lds_arrive_last(A, C_Z, "s64", L_zs, 2, 3)
    A(f"s_and_b32 s65, s2, 7\ns_add_u32 s65, s65, {L_Z}")
    global_arrive(A, "s65", 32, 2, 3)
    A.label(L_zs)
    prof_dump(A, 0, wsptr=P_WS)
    A.label(L_exit)
    A("s_endpgm")

def build():
    hdr = open("cdna_kernels/" + NAME + ".s.ref").read().split("; Override launch geometry")[0]
    A = Asm(); gen(A)
    out = hdr + f"; @launch grid=(256,1,1) block=(768,1,1) lds={LDS}\n"
    out += '.amdgcn_target "amdgcn-amd-amdhsa--gfx950"\n.text\n' + A.text()
    out += f""".section .rodata,"a"
.p2align 6
.amdhsa_kernel {KNAME}
  .amdhsa_next_free_vgpr {VGPRS}
  .amdhsa_next_free_sgpr 102
  .amdhsa_accum_offset {VGPRS}
  .amdhsa_group_segment_fixed_size 0
  .amdhsa_kernarg_size 96
  .amdhsa_user_sgpr_count 2
  .amdhsa_user_sgpr_kernarg_segment_ptr 1
  .amdhsa_system_sgpr_workgroup_id_x 1
  .amdhsa_float_denorm_mode_32 3
.end_amdhsa_kernel
"""
    return out

if __name__ == "__main__":
    open(sys.argv[1], "w").write(build())
```

```python
import os, sys, struct, math
from asmlib import *
from slots import ASSIGN, HEADWORD

NAME = "concat_heads__softmax_full_mha__ssm_conv_h3__prompt"
KNAME = NAME + "_kernel"
E = lambda k, d=0: int(os.environ.get(k, d))

TB = 8320
SEC = 64 * TB
WS_U  = 0x800000
WS_Z  = 0xB00000
WS_O  = 0xE00000
SYNC  = 0x1200000
WS_BYTES = 0x1204000
REC = 3072
CHUNK = 16 * REC
COPY = 4160
CONV_SZ = 4 * COPY + 4608
CONV_BASE = 98304
CNT = CONV_BASE + 3 * CONV_SZ
LDS = CNT + 256
WO_A = 98304
WO_BROW = 340
RED = CHUNK
VGPRS = 168
POLL_MAX = 40000
SC = os.environ.get("SCF", " sc1")
L_QKV, L_U, L_Z, L_O = 0, 16, 24, 32
FLG = 40
ZERO_WG = 225
C_QKV, C_U, C_Z, C_O, C_UOK, C_INIT, C_GO, C_KV, C_ISS = 0, 4, 8, 12, 16, 20, 24, 28, 32

def f32bits(x): return struct.unpack("<I", struct.pack("<f", x))[0]
QSCALE = f32bits(20 ** -0.5 * math.log2(math.e))

P_X, P_W, P_WO, P_BQ, P_BK, P_BV, P_SH, P_SK, P_SD, P_OUT, P_DBG, P_WS = 4, 6, 8, 10, 12, 14, 16, 18, 20, 22, 24, 26
R_WS = 28
R_A, R_B, R_C = 32, 36, 44
S_WAVE, S_XCD, S_J, S_RB, S_CB = 40, 41, 42, 43, 48

STAMPS = dict(x.split(":") for x in os.environ.get("STAMPS", "b0:1,gend:2,uok:2,att0:4,att1:5,p3a:6").split(","))
def stp(A, name):
    if name in STAMPS: stamp(A, int(STAMPS[name]))

def poll(A, addr_v, thr_v, tmp, sleep=4, base=P_WS):
    L = A.newlabel("poll"); D = A.newlabel("polld")
    A(f"""
    v_cmp_ne_u32 vcc, 0, v{thr_v}
    s_mov_b32 s66, {POLL_MAX}
    s_nop 1
    s_mov_b64 exec, vcc
    {L}:
    global_load_dword v{tmp}, v{addr_v}, s[{base}:{base+1}] sc1
    s_waitcnt vmcnt(0)
    v_cmp_ge_u32 vcc, v{tmp}, v{thr_v}
    s_nop 3
    s_cmp_eq_u64 vcc, exec
    s_cbranch_scc1 {D}
    s_sleep {sleep}
    s_sub_u32 s66, s66, 1
    s_cmp_lg_u32 s66, 0
    s_cbranch_scc1 {L}
    {D}:
    s_mov_b64 exec, -1
    """)
def poll_flags(A, line0, nlines, t_addr, t_thr, tmp, sleep=4):
    A(f"""
    v_lshlrev_b32 v{t_addr}, 7, v0
    v_add_u32 v{t_addr}, {SYNC + 128*(FLG + line0)}, v{t_addr}
    v_cmp_gt_u32 vcc, {nlines}, v0
    v_mov_b32 v{tmp}, 1
    s_nop 0
    v_cndmask_b32 v{t_thr}, 0, v{tmp}, vcc
    """)
    poll(A, t_addr, t_thr, tmp, sleep)
def lds_set(A, off, t0, t1):
    A(f"""
    v_mov_b32 v{t0}, {CNT + off}
    v_mov_b32 v{t1}, 1
    ds_write_b32 v{t0}, v{t1}
    """)
def lds_add(A, off, t0, t1):
    A(f"""
    v_mov_b32 v{t0}, {CNT + off}
    v_mov_b32 v{t1}, 1
    s_mov_b64 exec, 1
    ds_add_u32 v{t0}, v{t1}
    s_mov_b64 exec, -1
    """)
def lds_wait(A, off, t0, t1, val=1, sleep=1):
    L = A.newlabel("lw"); D = A.newlabel("lwd")
    A(f"""
    v_mov_b32 v{t0}, {CNT + off}
    s_mov_b32 s66, {POLL_MAX*16}
    {L}:
    ds_read_b32 v{t1}, v{t0}
    s_waitcnt lgkmcnt(0)
    v_readfirstlane_b32 s67, v{t1}
    s_nop 3
    s_cmp_ge_u32 s67, {val}
    s_cbranch_scc1 {D}
    s_sleep {sleep}
    s_sub_u32 s66, s66, 1
    s_cmp_lg_u32 s66, 0
    s_cbranch_scc1 {L}
    {D}:
    """)
def lds_arrive_last(A, off, n_s, skip_lab, t0, t1):
    A(f"""
    v_mov_b32 v{t0}, {CNT + off}
    v_mov_b32 v{t1}, 1
    s_mov_b64 exec, 1
    ds_add_rtn_u32 v{t1}, v{t0}, v{t1}
    s_waitcnt lgkmcnt(0)
    s_mov_b64 exec, -1
    v_readfirstlane_b32 s66, v{t1}
    s_nop 3
    s_add_u32 s66, s66, 1
    s_cmp_lg_u32 s66, {n_s}
    s_cbranch_scc1 {skip_lab}
    """)
def global_arrive(A, line_s, total, t0, t1):
    L = A.newlabel("ga")
    A(f"""
    s_lshl_b32 s66, {line_s}, 7
    s_add_u32 s66, s66, {SYNC}
    v_mov_b32 v{t0}, s66
    v_mov_b32 v{t1}, 1
    s_mov_b64 exec, 1
    global_atomic_add v{t1}, v{t0}, v{t1}, s[{P_WS}:{P_WS+1}] sc0 sc1
    s_waitcnt vmcnt(0)
    s_mov_b64 exec, -1
    v_readfirstlane_b32 s66, v{t1}
    s_nop 3
    s_add_u32 s66, s66, 1
    s_cmp_lg_u32 s66, {total}
    s_cbranch_scc1 {L}
    v_add_u32 v{t0}, {128*FLG}, v{t0}
    v_mov_b32 v{t1}, 1
    s_mov_b64 exec, 1
    global_store_dword v{t0}, v{t1}, s[{P_WS}:{P_WS+1}] sc1
    s_mov_b64 exec, -1
    {L}:
    """)

def gen(A):
    A(f".globl {KNAME}")
    A(".p2align 8")
    A(f".type {KNAME},@function")
    A.label(KNAME)
    L_exit, L_nog, L_prod, L_bw, L_heads, L_conv = "L_exit", "L_nog", "L_prod", "L_bw", "L_heads", "L_conv"
    A(f"""
    s_cmp_ge_u32 s2, 256
    s_cbranch_scc1 {L_exit}
    s_load_dwordx16 s[4:19], s[0:1], 0
    s_load_dwordx8 s[20:27], s[0:1], 64
    v_lshrrev_b32 v1, 6, v0
    v_and_b32 v0, 63, v0
    v_readfirstlane_b32 s{S_WAVE}, v1
    s_and_b32 s{S_XCD}, s2, 7
    s_lshr_b32 s{S_J}, s2, 3
    s_lshr_b32 s{S_RB}, s{S_XCD}, 1
    s_lshl_b32 s{S_RB}, s{S_RB}, 2
    s_and_b32 s49, s{S_J}, 3
    s_add_u32 s{S_RB}, s{S_RB}, s49        ; rb
    s_and_b32 s{S_CB}, s{S_XCD}, 1
    s_lshl_b32 s{S_CB}, s{S_CB}, 3
    s_lshr_b32 s49, s{S_J}, 2
    s_add_u32 s{S_CB}, s{S_CB}, s49        ; cb
    v_mov_b32 v2, {CNT}
    v_mov_b32 v4, 0
    v_mov_b32 v5, 0
    v_mov_b32 v6, 0
    v_mov_b32 v7, 0
    ds_write_b128 v2, v[4:7]
    ds_write_b128 v2, v[4:7] offset:16
    ds_write_b128 v2, v[4:7] offset:32
    s_waitcnt lgkmcnt(0)
    s_barrier
    """)
    srd(A, R_WS, P_WS, WS_BYTES)
    prof_init(A)
    A(f"""
    s_cmp_ge_u32 s{S_WAVE}, 8
    s_cbranch_scc1 {L_bw}
    s_cmp_ge_u32 s{S_CB}, 15
    s_cbranch_scc1 {L_nog}
    s_cmp_ge_u32 s{S_WAVE}, 4
    s_cbranch_scc1 {L_prod}
    """)
    slot_of = lambda st: (st + 2) % 3

    A(f"""
    s_lshr_b32 s56, s{S_WAVE}, 1       ; wr
    s_and_b32 s57, s{S_WAVE}, 1        ; wc
    v_and_b32 v2, 31, v0           ; n
    v_lshrrev_b32 v3, 5, v0        ; h
    v_bfe_u32 v4, v0, 1, 3         ; (l>>1)&7
    s_lshl_b32 s54, s56, 6
    v_add_u32 v5, s54, v2
    v_lshlrev_b32 v5, 7, v5        ; token_local*128
    """)
    for ks in range(4):
        A(f"""
        v_add_u32 v6, {2*ks}, v3
        v_xor_b32 v6, v6, v4
        v_lshl_add_u32 v{16+ks}, v6, 4, v5
        v_add_u32 v{20+ks}, 0x10000, v{16+ks}""")
    def w_addr():
        A(f"""
        v_lshrrev_b32 v2, 4, v0        ; g
        v_bfe_u32 v3, v0, 2, 2         ; r
        v_and_b32 v4, 3, v0            ; c4
        v_lshrrev_b32 v5, 1, v2
        v_lshl_add_u32 v5, v5, 3, v3   ; k_local
        v_lshlrev_b32 v5, 8, v5
        v_add_u32 v5, 16384, v5
        v_and_b32 v6, 1, v2
        v_lshl_add_u32 v6, v6, 2, v4   ; rg = 4*(g&1) + c4
        v_mul_u32_u24 v6, 5, v6
        v_lshlrev_b32 v7, 2, v3        ; 4r
        """)
        for ft in range(2):
            A(f"""
            v_lshrrev_b64 v[8:9], v6, s[{60+2*ft}:{61+2*ft}]
            v_and_b32 v8, 31, v8
            v_lshrrev_b32 v9, 1, v8
            v_xor_b32 v9, v9, v7
            v_and_b32 v8, 1, v8
            v_lshlrev_b32 v8, 3, v8
            v_lshl_add_u32 v8, v9, 4, v8
            v_add_u32 v{24+ft}, v5, v8
            v_add_u32 v{26+ft}, 0x10000, v{24+ft}""")
    FR = [dict(X=[32, 36], W=[40, 44]), dict(X=[48, 52], W=[56, 60])]
    ACC = lambda ft, tt: 64 + 16 * (2 * ft + tt)
    def reads(st, ks, setid):
        slot = slot_of(st); hi = slot == 2
        so = 0 if hi else slot * 32768
        xa = (20 if hi else 16) + ks; wa = (26 if hi else 24); F = FR[setid]
        return [f"ds_read_b128 {v(F['X'][0],4)}, v{xa} offset:{so}",
                f"ds_read_b64_tr_b16 {v(F['W'][0],2)}, v{wa} offset:{so + ks*4096}",
                f"ds_read_b64_tr_b16 {v(F['W'][0]+2,2)}, v{wa} offset:{so + ks*4096 + 1024}",
                f"ds_read_b128 {v(F['X'][1],4)}, v{xa} offset:{so + 4096}",
                f"ds_read_b64_tr_b16 {v(F['W'][1],2)}, v{wa+1} offset:{so + ks*4096}",
                f"ds_read_b64_tr_b16 {v(F['W'][1]+2,2)}, v{wa+1} offset:{so + ks*4096 + 1024}"]
    def mfmas(setid, first, vmode):
        F = FR[setid]; m = []
        for (ft, tt) in [(0, 0), (0, 1), (1, 0), (1, 1)]:
            d = ACC(ft, tt); c = "0" if first else v(d, 16)
            a_, b_ = (F['X'][tt], F['W'][ft]) if vmode else (F['W'][ft], F['X'][tt])
            m.append(f"v_mfma_f32_32x32x16_bf16 {v(d,16)}, {v(a_,4)}, {v(b_,4)}, {c}")
        return m
    def main_loop(vmode):
        A("s_barrier")
        stp(A, "b0")
        for r in reads(0, 0, 0): A(r)
        n = 0
        for st in range(10):
            for ks in range(4):
                setid = n % 2
                m = mfmas(setid, n == 0, vmode)
                A("s_waitcnt lgkmcnt(0)")
                if ks == 3 and st < 9:
                    A("s_barrier")
                    stp(A, f"gb{st+1}")
                A(m[0])
                if ks < 3:
                    for r in reads(st, ks + 1, 1 - setid): A(r)
                elif st < 9:
                    for r in reads(st + 1, 0, 1 - setid): A(r)
                A(m[1]); A(m[2]); A(m[3])
                n += 1
        stp(A, "gend")
        A("s_nop 15")
    L_vpath = A.newlabel("vpath"); L_gsig = A.newlabel("gsig"); L_vdone = A.newlabel("vdone")
    A(f"""
    s_cmp_ge_u32 s{S_CB}, 10
    s_cbranch_scc1 {L_vpath}
    s_cmp_ge_u32 s{S_CB}, 5
    s_cselect_b32 s55, 5, 0
    s_sub_u32 s55, s{S_CB}, s55        ; cb'
    s_lshl_b32 s55, s55, 1
    s_add_u32 s55, s55, s57
    """)
    for var in range(10):
        cbp, wc = divmod(var, 2); T = []
        for ft in range(2):
            tab = [0]*8
            for si, it in enumerate(ASSIGN[cbp][2*wc + ft]):
                ap, h = divmod(si, 2)
                tab[4*ap + h] = it[1]; tab[4*ap + 2 + h] = it[2]
            T.append(sum(g << (5*i) for i, g in enumerate(tab)))
        nxt = A.newlabel("var")
        A(f"""
        s_cmp_lg_u32 s55, {var}
        s_cbranch_scc1 {nxt}
        s_mov_b32 s60, {hex(T[0] & 0xffffffff)}
        s_mov_b32 s61, {hex(T[0] >> 32)}
        s_mov_b32 s62, {hex(T[1] & 0xffffffff)}
        s_mov_b32 s63, {hex(T[1] >> 32)}
        s_branch {L_vdone}
        {nxt}:""")
    A(f"""
    s_mov_b64 s[60:61], 0
    s_mov_b64 s[62:63], 0
    {L_vdone}:
    """)
    w_addr()
    A(f"""
    s_mov_b32 s58, {hex(QSCALE)}
    s_cmp_ge_u32 s{S_CB}, 5
    s_cmov_b32 s58, 0x3f800000
    s_mov_b32 s59, s58
    v_lshlrev_b32 v128, 4, v0
    s_lshl_b32 s54, s{S_RB}, 2
    s_lshl_b32 s55, s56, 1
    s_add_u32 s54, s54, s55
    s_lshl_b32 s55, s{S_CB}, 6
    s_add_u32 s54, s54, s55
    s_mul_i32 s54, s54, {TB}
    s_lshl_b32 s55, s57, 12        ; wc*4096
    s_add_u32 s64, s54, s55
    s_add_u32 s65, s64, {TB}
    """)
    main_loop(False)
    for ft in range(2):
        for tt in range(2):
            d = ACC(ft, tt)
            for i in range(0, 16, 2):
                A(f"v_pk_mul_f32 {v(d+i,2)}, {v(d+i,2)}, s[58:59]")
            for ap in range(2):
                for i in range(4):
                    A(f"v_cvt_pk_bf16_f32 v{d+8*ap+i}, v{d+8*ap+2*i}, v{d+8*ap+2*i+1}")
                A(f"buffer_store_dwordx4 {v(d+8*ap,4)}, v128, s[{R_WS}:{R_WS+3}], s{64+tt} offen offset:{ft*2048 + ap*1024}{SC}")
    A(f"s_branch {L_gsig}")
    A.label(L_vpath)
    nat = sum(i << (5*i) for i in range(8)); rep = sum(1 << (5*i) for i in range(8))
    A(f"""
    s_lshl_b32 s54, s57, 4
    s_mul_i32 s55, s54, {hex(rep & 0xffffffff)}
    s_mul_hi_u32 s61, s54, {hex(rep & 0xffffffff)}
    s_mul_i32 s66, s54, {hex(rep >> 32)}
    s_add_u32 s61, s61, s66
    s_add_u32 s60, s55, {hex(nat & 0xffffffff)}
    s_addc_u32 s61, s61, {hex(nat >> 32)}
    s_add_u32 s62, s60, {hex((8*rep) & 0xffffffff)}
    s_addc_u32 s63, s61, {hex((8*rep) >> 32)}
    """)
    w_addr()
    A(f"""
    v_lshlrev_b32 v128, 4, v0
    s_lshl_b32 s54, s{S_RB}, 2
    s_lshl_b32 s55, s{S_CB}, 6
    s_add_u32 s54, s54, s55
    s_add_u32 s55, s54, s{S_WAVE}
    s_mul_i32 s55, s55, {TB}
    s_add_u32 s58, s55, 8192
    s_lshl_b32 s55, s56, 1
    s_add_u32 s54, s54, s55
    s_mul_i32 s54, s54, {TB}
    s_lshl_b32 s55, s57, 11
    s_add_u32 s62, s54, s55
    s_add_u32 s63, s62, 4096
    s_add_u32 s64, s62, {TB}
    s_add_u32 s65, s64, 4096
    """)
    main_loop(True)
    for ft in range(2):
        for tt in range(2):
            d = ACC(ft, tt)
            for f in range(2):
                for i in range(4):
                    A(f"v_cvt_pk_bf16_f32 v{d+8*f+i}, v{d+8*f+2*i}, v{d+8*f+2*i+1}")
                A(f"buffer_store_dwordx4 {v(d+8*f,4)}, v128, s[{R_WS}:{R_WS+3}], s{62+2*tt+f} offen offset:{ft*1024}{SC}")
    A(f"""
    v_cmp_eq_u32 vcc, 0, v0
    v_mov_b32 v36, 0x3f803f80
    s_nop 0
    v_cndmask_b32 v32, 0, v36, vcc
    v_cndmask_b32 v33, 0, v36, vcc
    v_cndmask_b32 v34, 0, v36, vcc
    v_cndmask_b32 v35, 0, v36, vcc
    s_mov_b64 exec, 15
    buffer_store_dwordx4 v[32:35], v128, s[{R_WS}:{R_WS+3}], s58 offen{SC}
    s_mov_b64 exec, -1
    """)
    A.label(L_gsig)
    stp(A, "gstored")
    A("s_waitcnt vmcnt(0)")
    stp(A, "gdrained")
    L_qs = A.newlabel("qs")
    lds_arrive_last(A, C_QKV, 4, L_qs, 2, 3)
    lds_wait(A, C_INIT, 2, 3)
    global_arrive(A, f"s{S_CB}", 16, 2, 3)
    A.label(L_qs)
    stp(A, "gsig")
    A(f"s_branch {L_heads}")

    A.label(L_prod)
    srd(A, R_A, P_X, 2048 * 640 * 2)
    srd(A, R_B, P_W, 640 * 1920 * 2)
    VXE, VXO, VW = 10, 11, 12
    A(f"""
    s_sub_u32 s55, s{S_WAVE}, 4            ; pw
    s_lshl_b32 s49, s55, 12
    s_mul_i32 s53, s55, 61440
    s_and_b32 s50, s{S_RB}, 3
    s_mul_i32 s50, s50, 3
    s_add_u32 s50, s50, s{S_CB}
    s_cmp_ge_u32 s50, 20
    s_cselect_b32 s51, 20, 0
    s_sub_u32 s50, s50, s51
    s_cmp_ge_u32 s50, 10
    s_cselect_b32 s51, 10, 0
    s_sub_u32 s50, s50, s51
    """)
    if not E("ROT", 1): A("s_mov_b32 s50, 0")
    A(f"""
    s_lshl_b32 s51, s50, 7
    s_mul_i32 s52, s50, 245760
    s_add_u32 s52, s52, s53
    v_lshrrev_b32 v2, 3, v0
    v_lshrrev_b32 v3, 4, v0
    v_and_b32 v4, 7, v0
    v_xor_b32 v4, v4, v3
    s_lshl_b32 s54, s{S_RB}, 7
    s_lshl_b32 s55, s55, 5
    s_add_u32 s54, s54, s55
    v_add_u32 v2, s54, v2
    v_mul_u32_u24 v2, 1280, v2
    v_lshl_add_u32 v{VXE}, v4, 4, v2
    v_xor_b32 v{VXO}, 64, v{VXE}
    v_and_b32 v4, 15, v0
    v_lshlrev_b32 v5, 2, v3
    v_xor_b32 v4, v4, v5
    v_mul_u32_u24 v5, 3840, v3
    v_lshl_add_u32 v{VW}, v4, 4, v5
    s_lshl_b32 s54, s{S_CB}, 8
    v_add_u32 v{VW}, s54, v{VW}
    """)
    def dma_stage(st):
        so = slot_of(st) * 32768
        for i in range(4):
            A(f"""
            s_add_u32 m0, s49, {so + i*1024}
            s_add_u32 s54, s51, {i*10240}
            buffer_load_dwordx4 v{VXO if i % 2 else VXE}, s[{R_A}:{R_A+3}], s54 offen lds""")
        for i in range(4):
            A(f"""
            s_add_u32 m0, s49, {so + 16384 + i*1024}
            s_add_u32 s54, s52, {i*15360}
            buffer_load_dwordx4 v{VW}, s[{R_B}:{R_B+3}], s54 offen lds""")
        A("""
        s_add_u32 s50, s50, 1
        s_cmp_eq_u32 s50, 10
        s_cselect_b32 s50, 0, s50
        s_lshl_b32 s51, s50, 7
        s_mul_i32 s52, s50, 245760
        s_add_u32 s52, s52, s53""")
    for st in range(3): dma_stage(st)
    lds_add(A, C_ISS, 2, 3)
    A("s_waitcnt vmcnt(16)\ns_barrier")
    stp(A, "b0")
    for s_ in range(1, 8):
        A("s_waitcnt vmcnt(8)\ns_barrier")
        dma_stage(s_ + 2)
    A("s_waitcnt vmcnt(8)\ns_barrier")
    A("s_waitcnt vmcnt(0)\ns_barrier")
    stp(A, "b9")
    A(f"s_branch {L_heads}")

    A.label(L_nog)
    lds_add_n = None
    A(f"""
    v_mov_b32 v2, {CNT + C_QKV}
    v_mov_b32 v3, 4
    ds_write_b32 v2, v3
    """)

    A.label(L_heads)
    Q1, Q2 = 4, 8
    O = 16
    S = [32, 48]
    P = [64, 72]
    KA, KB, V0, V1 = 80, 84, 88, 92
    AK = [96, 99]; AK2 = [97, 100]; AV = [98, 101]
    KA0, KB0 = 104, 108
    WOV = 120
    VG = [126, 127, 128]; VKP, VKS, VVF = 129, 130, 131
    A(f"""
    s_lshl_b32 s43, s{S_XCD}, 2
    s_lshr_b32 s44, s{S_J}, 3
    s_add_u32 s43, s43, s44        ; head
    s_and_b32 s44, s{S_J}, 7       ; qb
    s_lshl_b32 s46, s44, 3
    s_add_u32 s46, s46, s{S_WAVE}  ; q tile
    s_mov_b32 s47, {hex(HEADWORD[0])}
    """)
    for h in range(1, 32):
        A(f"s_cmp_eq_u32 s43, {h}\ns_cmov_b32 s47, {hex(HEADWORD[h])}")
    for k, dst in enumerate((50, 51, 52)):
        A(f"""
        s_bfe_u32 s54, s47, {hex((3 << 16) | (7*k))}
        s_bfe_u32 s55, s47, {hex((4 << 16) | (7*k + 3))}
        s_mul_i32 s54, s54, {SEC}
        s_lshl_b32 s55, s55, 9
        s_add_u32 s{dst}, s54, s55""")
    A(f"""
    v_and_b32 v3, 31, v0           ; n
    v_lshrrev_b32 v12, 5, v0       ; h
    v_lshlrev_b32 v13, 4, v3       ; n*16
    v_cmp_eq_u32 vcc, 0, v12
    v_mov_b32 v14, s50
    v_mov_b32 v15, s51
    v_cndmask_b32 v14, v15, v14, vcc
    v_add_u32 v{VKP}, v14, v13
    s_and_b32 s54, s43, 1
    s_lshl_b32 s54, s54, 3
    s_add_u32 s54, s54, s52
    v_add_u32 v{VKS}, s54, v13
    v_add_u32 v{VG[0]}, {5*SEC + 2*TB}, v{VKP}
    s_mul_i32 s53, s43, 20
    s_add_u32 s45, s53, 19
    s_lshr_b32 s45, s45, 7
    s_add_u32 s45, s45, 10
    s_mul_i32 s45, s45, {SEC}
    s_add_u32 s45, s45, 8192
    """)
    def vchunk(dst, seg_v, m_v):
        A(f"""
        v_add_u32 v5, s53, v{m_v}          ; F
        v_lshrrev_b32 v6, 7, v5
        v_add_u32 v6, 10, v6
        v_mul_u32_u24 v6, {SEC // 64}, v6
        v_lshlrev_b32 v6, 6, v6
        v_bfe_u32 v7, v5, 5, 2
        v_lshlrev_b32 v7, 10, v7
        v_add_u32 v6, v6, v7
        v_and_b32 v7, 31, v5
        v_lshl_add_u32 v6, v7, 4, v6
        v_lshrrev_b32 v7, 1, v{seg_v}
        v_lshl_add_u32 v6, v7, 12, v6
        v_and_b32 v7, 1, v{seg_v}
        v_lshl_add_u32 v6, v7, 9, v6
        v_subrev_u32 v7, 20, v{m_v}
        v_and_b32 v7, 3, v7
        v_lshlrev_b32 v7, 4, v7
        v_add_u32 v7, s45, v7
        v_cmp_gt_u32 vcc, 20, v{m_v}
        s_nop 1
        v_cndmask_b32 v{dst}, v7, v6, vcc
        """)
    A("""
    v_cmp_gt_u32 vcc, 56, v0
    v_subrev_u32 v8, 32, v0
    v_subrev_u32 v9, 56, v0
    v_cndmask_b32 v8, v9, v8, vcc          ; m
    v_mov_b32 v9, 1
    v_mov_b32 v10, 0
    v_cndmask_b32 v9, v9, v10, vcc         ; seg
    """)
    vchunk(11, 9, 8)
    A(f"""
    v_add_u32 v6, s52, v13
    v_add_u32 v6, {5*SEC + 2*TB}, v6
    v_cmp_gt_u32 vcc, 32, v0
    s_nop 1
    v_cndmask_b32 v{VG[1]}, v11, v6, vcc
    v_cmp_gt_u32 vcc, 16, v0
    v_cmp_gt_u32 s[54:55], 40, v0
    v_subrev_u32 v8, 40, v0
    v_subrev_u32 v10, 16, v0
    v_cndmask_b32 v8, v8, v10, s[54:55]
    v_add_u32 v10, 8, v0
    v_cndmask_b32 v8, v8, v10, vcc         ; m
    v_mov_b32 v9, 3
    v_mov_b32 v10, 2
    v_cndmask_b32 v9, v9, v10, s[54:55]
    v_mov_b32 v10, 1
    v_cndmask_b32 v9, v9, v10, vcc         ; seg
    """)
    vchunk(VG[2], 9, 8)
    A("v_mov_b32 v8, v3\nv_mov_b32 v9, v12")
    vchunk(VVF, 9, 8)
    srd(A, R_A, P_WO, 640 * 640 * 2)
    A(f"s_and_b32 s52, s{S_J}, 7\ns_mul_i32 s52, s52, 160")
    for b in range(5):
        A(f"""
        v_add_u32 v5, {64*b}, v0
        v_mul_u32_u24 v6, 52429, v5
        v_lshrrev_b32 v6, 19, v6
        v_mul_u32_u24 v7, 10, v6
        v_sub_u32 v7, v5, v7
        v_mul_u32_u24 v6, 1280, v6
        v_lshl_add_u32 v6, v7, 4, v6
        v_add_u32 v{WOV+b}, s52, v6""")
    A(f"""
    s_mul_i32 s53, s{S_WAVE}, 5120
    s_mul_i32 s62, s{S_WAVE}, 40960
    s_mov_b32 s60, 0
    v_lshlrev_b32 v2, 4, v0
    v_mul_u32_u24 v13, 384, v12
    v_lshl_add_u32 v13, v3, 4, v13
    v_add_u32 v{AV[0]}, 1536, v13
    v_mov_b32 v{AK[0]}, v2
    s_and_b32 s54, s43, 1
    s_lshl_b32 s54, s54, 3
    s_add_u32 s54, s54, 1024
    v_lshlrev_b32 v1, 4, v3
    v_add_u32 v{AK2[0]}, s54, v1
    v_add_u32 v{AV[1]}, {CHUNK}, v{AV[0]}
    v_add_u32 v{AK[1]}, {CHUNK}, v{AK[0]}
    v_add_u32 v{AK2[1]}, {CHUNK}, v{AK2[0]}
    v_cmp_lt_u32 vcc, 20, v3
    v_mov_b32 v5, 0x30000
    v_mov_b32 v{Q2+2}, 0
    v_cndmask_b32 v{AV[0]}, v{AV[0]}, v5, vcc
    v_cndmask_b32 v{AV[1]}, v{AV[1]}, v5, vcc
    v_mov_b32 v{Q2+3}, 0
    v_mov_b32 v{KB+2}, 0
    v_mov_b32 v{KB+3}, 0
    v_mov_b32 v{KB0+2}, 0
    v_mov_b32 v{KB0+3}, 0
    s_mul_i32 s45, s46, {TB}
    s_mul_i32 s49, s{S_WAVE}, {REC}
    s_mul_i32 s50, s{S_WAVE}, {TB}
    """)
    stp(A, "hset")
    L_gow = A.newlabel("gow"); L_go = A.newlabel("go")
    A(f"""
    s_cmp_lg_u32 s{S_WAVE}, 0
    s_cbranch_scc1 {L_gow}
    """)
    lds_wait(A, C_QKV, 5, 6, val=4)
    lds_wait(A, C_INIT, 5, 6)
    A(f"""
    s_mul_i32 s54, s43, 5
    s_add_u32 s55, s54, 4
    s_lshr_b32 s54, s54, 5             ; c0
    s_lshr_b32 s55, s55, 5             ; c1
    v_and_b32 v5, 1, v0
    v_cmp_eq_u32 vcc, 1, v5
    v_mov_b32 v6, s54
    v_mov_b32 v7, s55
    v_cndmask_b32 v6, v6, v7, vcc
    v_lshrrev_b32 v5, 1, v0
    v_mul_u32_u24 v5, 5, v5
    v_add_u32 v5, v5, v6
    v_lshlrev_b32 v5, 7, v5
    v_add_u32 v5, {SYNC + 128*(FLG + L_QKV)}, v5
    v_cmp_gt_u32 vcc, 6, v0
    v_mov_b32 v6, 1
    s_nop 0
    v_cndmask_b32 v7, 0, v6, vcc
    """)
    poll(A, 5, 7, 6, sleep=E("PS_QKV", 3))
    lds_set(A, C_GO, 5, 6)
    A(f"s_branch {L_go}")
    A.label(L_gow)
    lds_wait(A, C_GO, 5, 6)
    A.label(L_go)
    stp(A, "go")
    A(f"""
    buffer_load_dwordx4 {v(Q1,4)}, v{VKP}, s[{R_WS}:{R_WS+3}], s45 offen{SC}
    buffer_load_dwordx2 {v(Q2,2)}, v{VKS}, s[{R_WS}:{R_WS+3}], s45 offen{SC}
    s_mov_b32 s48, {5*SEC}
    buffer_load_dwordx4 {v(KA0,4)}, v{VKP}, s[{R_WS}:{R_WS+3}], s48 offen{SC}
    buffer_load_dwordx2 {v(KB0,2)}, v{VKS}, s[{R_WS}:{R_WS+3}], s48 offen{SC}
    s_mov_b32 s48, {5*SEC + TB}
    buffer_load_dwordx4 {v(KA,4)}, v{VKP}, s[{R_WS}:{R_WS+3}], s48 offen{SC}
    buffer_load_dwordx2 {v(KB,2)}, v{VKS}, s[{R_WS}:{R_WS+3}], s48 offen{SC}
    """)
    def kv_piece(chunk, i):
        slot = chunk % 2; rr, part = divmod(i, 3)
        return f"""
        s_add_u32 m0, s49, {slot*CHUNK + rr*8*REC + part*1024}
        s_add_u32 s51, s50, {(chunk*16 + rr*8)*TB}
        buffer_load_dwordx4 v{VG[part]}, s[{R_WS}:{R_WS+3}], s51 offen{SC} lds"""
    for i in range(6): A(kv_piece(0, i))
    for i in range(6): A(kv_piece(1, i))
    A(f"""
    v_cmp_gt_u32 vcc, 32, v0
    s_waitcnt vmcnt(6)
    s_nop 0
    v_cndmask_b32 v{Q2}, 0, v{Q2}, vcc
    v_cndmask_b32 v{Q2+1}, 0, v{Q2+1}, vcc
    """)
    stp(A, "kvok")
    lds_add(A, C_KV, 12, 13)
    lds_wait(A, C_KV, 12, 13, val=8, sleep=0)
    stp(A, "att0")

    def wo_piece(kind, b):
        if kind == 0:
            return f"""
            s_add_u32 m0, s53, {WO_A + b*1024}
            s_nop 0
            buffer_load_dwordx4 v{WOV+b}, s[{R_A}:{R_A+3}], s62 offen lds"""
        if kind == 2:
            return f"""
            s_add_u32 m0, s53, {b*1024}
            s_add_u32 s51, s62, {WO_BROW*1280}
            buffer_load_dwordx4 v{WOV+b}, s[{R_A}:{R_A+3}], s51 offen lds"""
        lab = A.newlabel("wos")
        if kind == 1: lim, ldso, go = 3, WO_A + 8*5120, 8*40960
        else: lim, ldso, go = (2 if b < 2 else 1), 8*5120, WO_BROW*1280 + 8*40960
        return f"""
            s_cmp_ge_u32 s{S_WAVE}, {lim}
            s_cbranch_scc1 {lab}
            s_add_u32 m0, s53, {ldso + b*1024}
            s_add_u32 s51, s62, {go}
            buffer_load_dwordx4 v{WOV+b}, s[{R_A}:{R_A+3}], s51 offen lds
            {lab}:"""
    A(f"v_mfma_f32_32x32x16_bf16 {v(S[0],16)}, {v(KA0,4)}, {v(Q1,4)}, 0")
    A(f"v_mfma_f32_32x32x16_bf16 {v(S[0],16)}, {v(KB0,4)}, {v(Q2,4)}, {v(S[0],16)}")
    A("s_nop 7\ns_nop 7")
    for J in range(64):
        c = J // 16; slot = c % 2; j = J % 16
        Sc, Sn = S[J % 2], S[(J + 1) % 2]
        Pc, Pp = P[J % 2], P[(J + 1) % 2]
        off = j * REC
        if j == 0 and J > 0:
            A(f"s_waitcnt vmcnt({5 if J == 32 else 0}) lgkmcnt(0)\ns_barrier")
        EX = lambda i: f"v_exp_f32 v{Sc+i}, v{Sc+i}"
        CV = lambda i: f"v_cvt_pk_bf16_f32 v{Pc+i}, v{Sc+2*i}, v{Sc+2*i+1}"
        G = [(EX(0),EX(1),EX(2),EX(3),CV(0),CV(1)), (EX(4),EX(5),EX(6),EX(7),CV(2),CV(3)), (EX(8),EX(9),EX(10),EX(11),CV(4),CV(5)), (EX(12),EX(13),EX(14),EX(15),CV(6),CV(7))]
        if j in (0, 9, 13, 15):
            A(f"s_setprio {dict([(0,3),(9,2),(13,1),(15,0)])[j]}")
        if J > 0 and j != 0: A("s_waitcnt lgkmcnt(2)")
        if J < 63: A(f"v_mfma_f32_32x32x16_bf16 {v(Sn,16)}, {v(KA,4)}, {v(Q1,4)}, 0")
        if J < 62: A(f"ds_read_b128 {v(KA,4)}, v{AK[slot]} offset:{off}")
        for x in G[0]: A(x)
        if J < 63: A(f"v_mfma_f32_32x32x16_bf16 {v(Sn,16)}, {v(KB,4)}, {v(Q2,4)}, {v(Sn,16)}")
        if J < 62: A(f"ds_read_b64 {v(KB,2)}, v{AK2[slot]} offset:{off}")
        for x in G[1]: A(x)
        if J > 0:
            A("s_waitcnt lgkmcnt(2)" if J < 62 else "s_waitcnt lgkmcnt(0)")
            cc = "0" if J == 1 else v(O, 16)
            A(f"v_mfma_f32_32x32x16_bf16 {v(O,16)}, {v(V0,4)}, {v(Pp,4)}, {cc}")
        A(f"ds_read_b128 {v(V0,4)}, v{AV[slot]} offset:{off}")
        for x in G[2]: A(x)
        if J > 0: A(f"v_mfma_f32_32x32x16_bf16 {v(O,16)}, {v(V1,4)}, {v(Pp+4,4)}, {v(O,16)}")
        A(f"ds_read_b128 {v(V1,4)}, v{AV[slot]} offset:{off + 768}")
        if c in (1, 2) and j < 6: A(kv_piece(c + 1, j))
        if c == 1 and 6 <= j < 11: A(wo_piece(0, j - 6))
        if c == 1 and 11 <= j < 16: A(wo_piece(1, j - 11))
        if c == 3 and 1 <= j < 6: A(wo_piece(2, j - 1))
        if c == 3 and 6 <= j < 11: A(wo_piece(3, j - 6))
        for x in G[3]: A(x)
    stp(A, "att1")
    Pl = P[63 % 2]
    A("s_waitcnt lgkmcnt(0)")
    A(f"v_mfma_f32_32x32x16_bf16 {v(O,16)}, {v(V0,4)}, {v(Pl,4)}, {v(O,16)}")
    A(f"v_mfma_f32_32x32x16_bf16 {v(O,16)}, {v(V1,4)}, {v(Pl+4,4)}, {v(O,16)}")
    A("s_setprio 0")
    L_fin = A.newlabel("fin"); L_slow = A.newlabel("slow"); L_odone = A.newlabel("odone")
    def addr_calc():
        A(f"""
        s_lshl_b32 s52, s43, 6
        s_add_u32 s52, s52, s46
        s_mul_i32 s52, s52, 1536
        s_add_u32 s52, s52, {WS_O}
        v_lshlrev_b32 v104, 4, v0
        """)
    addr_calc()
    A("s_nop 7")
    A.label(L_fin)
    A("s_nop 7")
    A(f"""
    v_mov_b32 v110, v{O+8}
    v_mov_b32 v111, v{O+8}
    s_nop 1
    v_permlane32_swap_b32 v110, v111
    s_nop 1
    v_rcp_f32 v112, v111
    s_nop 0
    """)
    for i in range(0, 12, 2):
        A(f"v_pk_mul_f32 {v(O+i,2)}, {v(O+i,2)}, v[112:113] op_sel_hi:[1,0]")
    A(f"""
    v_add_f32 v113, abs(v{O}), abs(v{O+1})
    v_add_f32 v114, abs(v{O+8}), abs(v{O+9})
    """)
    for i in range(2, 8): A(f"v_add_f32 v113, v113, abs(v{O+i})")
    A(f"""
    v_add_f32 v114, v114, abs(v{O+10})
    v_add_f32 v114, v114, abs(v{O+11})
    v_cmp_gt_u32 vcc, 32, v0
    v_mov_b32 v115, 0x21800000         ; 2^-60
    v_mov_b32 v116, 0x5d800000         ; 2^60
    v_cndmask_b32 v114, 0, v114, vcc
    v_add_f32 v113, v113, v114
    v_mov_b32 v114, 0x7f800000
    v_cmp_nlt_f32 s[54:55], v113, v114
    v_cmp_ngt_f32 s[56:57], v111, v115
    v_cmp_nlt_f32 vcc, v111, v116
    s_nop 1
    s_or_b64 s[54:55], s[54:55], s[56:57]
    s_or_b64 s[54:55], s[54:55], vcc
    s_cmp_lg_u64 s[54:55], 0
    s_cselect_b32 s61, 1, 0
    s_andn2_b32 s61, s61, s60
    s_cmp_lg_u32 s61, 0
    s_cbranch_scc1 {L_slow}
    """)
    for i in range(4): A(f"v_cvt_pk_bf16_f32 v{O+i}, v{O+2*i}, v{O+2*i+1}")
    A(f"""
    v_cvt_pk_bf16_f32 v{O+8}, v{O+8}, v{O+9}
    v_cvt_pk_bf16_f32 v{O+9}, v{O+10}, v{O+11}
    v_mov_b32 v{O+10}, 0
    v_mov_b32 v{O+11}, 0
    buffer_store_dwordx4 {v(O,4)}, v104, s[{R_WS}:{R_WS+3}], s52 offen{SC}
    s_mov_b32 exec_hi, 0
    buffer_store_dwordx4 {v(O+8,4)}, v104, s[{R_WS}:{R_WS+3}], s52 offen offset:1024{SC}
    s_mov_b64 exec, -1
    s_branch {L_odone}
    """)
    A.label(L_slow)
    L1 = A.newlabel("p1"); L2 = A.newlabel("p2")
    A(f"""
    s_mov_b32 s60, 1
    v_mov_b32 v110, 0xff800000
    s_mov_b32 s52, 0
    {L1}:
    s_mul_i32 s63, s52, {TB}
    s_add_u32 s63, s63, {5*SEC}
    buffer_load_dwordx4 {v(KA,4)}, v{VKP}, s[{R_WS}:{R_WS+3}], s63 offen{SC}
    buffer_load_dwordx2 {v(KB,2)}, v{VKS}, s[{R_WS}:{R_WS+3}], s63 offen{SC}
    s_waitcnt vmcnt(0)
    v_mfma_f32_32x32x16_bf16 {v(S[0],16)}, {v(KA,4)}, {v(Q1,4)}, 0
    v_mfma_f32_32x32x16_bf16 {v(S[0],16)}, {v(KB,4)}, {v(Q2,4)}, {v(S[0],16)}
    s_nop 7
    s_nop 7
    """)
    for i in range(0, 16, 2): A(f"v_max3_f32 v110, v110, v{S[0]+i}, v{S[0]+i+1}")
    A(f"""
    s_add_u32 s52, s52, 1
    s_cmp_lt_u32 s52, 64
    s_cbranch_scc1 {L1}
    v_mov_b32 v108, v110
    v_mov_b32 v109, v110
    s_nop 1
    v_permlane32_swap_b32 v108, v109
    s_nop 1
    v_max_f32 v110, v108, v109
    v_and_b32 v3, 31, v0
    v_cmp_gt_u32 vcc, 20, v3
    v_add_u32 v108, 4096, v{VVF}
    s_nop 0
    v_cndmask_b32 v109, v{VVF}, v108, vcc
    """)
    for i in range(16): A(f"v_mov_b32 v{O+i}, 0")
    A("s_mov_b32 s52, 0")
    A.label(L2)
    A(f"""
    s_mul_i32 s54, s52, {TB}
    s_add_u32 s63, s54, {5*SEC}
    buffer_load_dwordx4 {v(KA,4)}, v{VKP}, s[{R_WS}:{R_WS+3}], s63 offen{SC}
    buffer_load_dwordx2 {v(KB,2)}, v{VKS}, s[{R_WS}:{R_WS+3}], s63 offen{SC}
    buffer_load_dwordx4 {v(V0,4)}, v{VVF}, s[{R_WS}:{R_WS+3}], s54 offen{SC}
    buffer_load_dwordx4 {v(V1,4)}, v109, s[{R_WS}:{R_WS+3}], s54 offen{SC}
    s_waitcnt vmcnt(0)
    v_mfma_f32_32x32x16_bf16 {v(S[0],16)}, {v(KA,4)}, {v(Q1,4)}, 0
    v_mfma_f32_32x32x16_bf16 {v(S[0],16)}, {v(KB,4)}, {v(Q2,4)}, {v(S[0],16)}
    s_nop 7
    s_nop 7
    """)
    for i in range(16): A(f"v_sub_f32 v{S[0]+i}, v{S[0]+i}, v110")
    for i in range(16): A(f"v_exp_f32 v{S[0]+i}, v{S[0]+i}")
    A("s_nop 0")
    for i in range(8): A(f"v_cvt_pk_bf16_f32 v{P[0]+i}, v{S[0]+2*i}, v{S[0]+2*i+1}")
    A(f"""
    s_nop 1
    v_mfma_f32_32x32x16_bf16 {v(O,16)}, {v(V0,4)}, {v(P[0],4)}, {v(O,16)}
    v_mfma_f32_32x32x16_bf16 {v(O,16)}, {v(V1,4)}, {v(P[0]+4,4)}, {v(O,16)}
    s_add_u32 s52, s52, 1
    s_cmp_lt_u32 s52, 64
    s_cbranch_scc1 {L2}
    s_nop 7
    """)
    addr_calc()
    A(f"s_branch {L_fin}")

    A.label(L_odone)
    OF = 32; AD = 80; OA = 88; VOUT, VRED = 91, 92; ACC3 = 96; WF = [116, 136]
    A(f"""
    s_lshl_b32 s54, s{S_XCD}, 2
    s_lshr_b32 s55, s{S_J}, 3
    s_add_u32 s54, s54, s55        ; tb
    s_lshl_b32 s54, s54, 2
    s_and_b32 s55, s{S_WAVE}, 3
    s_add_u32 s54, s54, s55        ; T
    s_lshr_b32 s45, s54, 1
    s_mul_i32 s45, s45, 1536
    s_and_b32 s57, s54, 1
    s_lshl_b32 s57, s57, 8
    s_add_u32 s45, s45, s57
    s_add_u32 s45, s45, {WS_O}
    s_lshr_b32 s57, s{S_WAVE}, 2
    s_mul_i32 s57, s57, {16*64*1536}
    s_add_u32 s62, s45, s57
    v_lshrrev_b32 v5, 4, v0            ; kg
    v_and_b32 v6, 15, v0
    v_lshlrev_b32 v6, 4, v6
    """)
    for c in range(3):
        A(f"""
        v_add_u32 v8, {4*c}, v5
        v_mul_u32_u24 v9, 21846, v8
        v_lshrrev_b32 v9, 16, v9
        v_mul_u32_u24 v10, 3, v9
        v_sub_u32 v10, v8, v10
        v_mul_u32_u24 v9, 1536, v9
        v_lshlrev_b32 v9, 6, v9
        v_lshl_add_u32 v9, v10, 9, v9
        v_add_u32 v{OA+c}, v9, v6""")
    A(f"""
    v_and_b32 v3, 15, v0
    s_lshl_b32 s55, s54, 4
    v_add_u32 v3, s55, v3
    v_mul_u32_u24 v3, 2560, v3
    v_lshrrev_b32 v4, 4, v0
    v_lshl_add_u32 v3, v4, 3, v3
    s_and_b32 s55, s{S_J}, 7
    s_mul_i32 s55, s55, 160
    v_add_u32 v{VOUT}, s55, v3
    v_lshlrev_b32 v3, 4, v0
    s_and_b32 s55, s{S_WAVE}, 3
    s_mul_i32 s55, s55, 5120
    s_add_u32 s55, s55, {RED}
    v_add_u32 v{VRED}, s55, v3
    v_bfe_u32 v6, v0, 2, 2             ; r
    v_and_b32 v7, 3, v0
    v_lshlrev_b32 v7, 3, v7            ; 8*c4
    s_mov_b32 s59, {WO_A}
    """)
    def row_addr(dst0, s, region):
        A(f"""
        v_add_u32 v8, {4*s}, v5
        v_mul_u32_u24 v9, 21846, v8
        v_lshrrev_b32 v9, 16, v9
        v_mul_u32_u24 v10, 3, v9
        v_sub_u32 v10, v8, v10
        v_mul_u32_u24 v9, 20, v9
        v_add_u32 v9, v9, v6
        v_lshlrev_b32 v11, 2, v10
        v_cmp_eq_u32 vcc, 2, v10
        v_add_u32 v12, 8, v11
        v_lshlrev_b32 v13, 1, v11
        v_cndmask_b32 v11, v11, v13, vcc
        v_add_u32 v11, v11, v9
        v_add_u32 v12, v12, v9
        """)
        for hh, rv in enumerate((11, 12)):
            if region == "A":
                A(f"v_mul_u32_u24 v13, 160, v{rv}\nv_add3_u32 v{dst0+hh}, v13, v7, s59")
            elif region == "B":
                A(f"v_subrev_u32 v13, {WO_BROW}, v{rv}\nv_mul_u32_u24 v13, 160, v13\nv_add_u32 v{dst0+hh}, v13, v7")
            else:
                A(f"""
                v_mul_u32_u24 v13, 160, v{rv}
                v_add3_u32 v14, v13, v7, s59
                v_subrev_u32 v13, {WO_BROW*160}, v13
                v_add_u32 v13, v13, v7
                v_cmp_gt_u32 vcc, {WO_BROW}, v{rv}
                s_nop 1
                v_cndmask_b32 v{dst0+hh}, v13, v14, vcc""")
    L_ahi = A.newlabel("ahi"); L_adone = A.newlabel("adone")
    stp(A, "ostored")
    A("s_waitcnt vmcnt(0)")
    stp(A, "odrained")
    L_os = A.newlabel("os")
    lds_arrive_last(A, C_O, 8, L_os, 2, 3)
    A(f"s_add_u32 s65, s44, {L_O}")
    global_arrive(A, "s65", 32, 2, 3)
    A.label(L_os)
    A(f"""
    s_cmp_ge_u32 s{S_WAVE}, 4
    s_cbranch_scc1 {L_ahi}
    """)
    for c in range(3): row_addr(AD + 2*c, c, "A")
    A(f"s_branch {L_adone}")
    A.label(L_ahi)
    row_addr(AD + 6, 12, None)
    for c in range(3): row_addr(AD + 2*c, 13 + c, "B")
    A.label(L_adone)
    srd(A, R_B, P_OUT, 2048 * 1280 * 2)
    L_p3a = A.newlabel("p3a"); L_post = A.newlabel("post"); L_t3 = A.newlabel("t3"); L_tgo = A.newlabel("tgo")
    A(f"""
    s_cmp_eq_u32 s{S_WAVE}, 0
    s_cbranch_scc0 {L_post}
    s_lshl_b32 s54, s{S_XCD}, 7
    s_add_u32 s54, s54, {SYNC + 128*(FLG + L_O)}
    v_mov_b32 v2, s54
    v_cmp_eq_u32 vcc, 0, v0
    v_mov_b32 v3, 1
    s_nop 0
    v_cndmask_b32 v4, 0, v3, vcc
    """)
    poll(A, 2, 4, 3, sleep=E("PS_O", 3))
    stp(A, "ook")
    A(f"s_branch {L_p3a}")
    A.label(L_post)
    A(f"""
    s_cmp_ge_u32 s{S_WAVE}, 4
    s_cbranch_scc1 {L_p3a}
    s_cmp_eq_u32 s{S_WAVE}, 3
    s_cbranch_scc1 {L_t3}
    s_lshl_b32 s56, s2, 1
    s_sub_u32 s57, s{S_WAVE}, 1
    s_add_u32 s56, s56, s57
    s_branch {L_tgo}
    {L_t3}:
    s_cmp_ge_u32 s2, 128
    s_cbranch_scc1 {L_p3a}
    s_add_u32 s56, s2, 512
    {L_tgo}:
    s_mul_i32 s57, s56, 52429
    s_lshr_b32 s57, s57, 19
    s_mul_i32 s58, s57, 10
    s_sub_u32 s58, s56, s58
    """)
    srd(A, R_C, P_BQ, 2048 * 640 * 2)
    A(f"""
    v_and_b32 v2, 7, v0
    v_lshrrev_b32 v3, 3, v0
    s_lshl_b32 s54, s58, 6
    v_lshl_add_u32 v2, v2, 3, s54
    s_lshl_b32 s55, s57, 5
    v_lshl_add_u32 v3, v3, 2, s55
    v_mul_u32_u24 v4, 1280, v3
    v_lshl_add_u32 v8, v2, 1, v4
    v_lshlrev_b32 v5, 12, v2
    v_lshl_add_u32 v5, v3, 1, v5
    v_add_u32 v9, {WS_Z}, v5
    v_mul_u32_u24 v6, 2560, v3
    v_lshl_add_u32 v6, v2, 1, v6
    v_add_u32 v10, 1280, v6
    """)
    for j in range(4):
        A(f"buffer_load_dwordx4 {v(32+4*j,4)}, v8, s[{R_C}:{R_C+3}], 0 offen offset:{1280*j}")
    poll_flags(A, L_Z, 8, 2, 4, 3)
    for i in range(8):
        A(f"s_mov_b32 s54, {i*4096}")
        A(f"buffer_load_dwordx2 {v(16+2*i,2)}, v9, s[{R_WS}:{R_WS+3}], s54 offen{SC}")
    A("s_waitcnt vmcnt(0)")
    for j in range(4):
        for q in range(4):
            za = 16 + 2*(2*q) + j//2; zb = 16 + 2*(2*q+1) + j//2
            if j % 2 == 0:
                A(f"v_lshlrev_b32 v48, 16, v{za}\nv_lshlrev_b32 v49, 16, v{zb}")
            else:
                A(f"v_and_b32 v48, 0xffff0000, v{za}\nv_and_b32 v49, 0xffff0000, v{zb}")
            qq = 32 + 4*j + q
            A(f"v_lshlrev_b32 v50, 16, v{qq}\nv_and_b32 v51, 0xffff0000, v{qq}")
            A(f"v_pk_mul_f32 v[48:49], v[48:49], v[50:51]")
            A(f"v_cvt_pk_bf16_f32 v{52+4*j+q}, v48, v49")
        A(f"s_mov_b32 s54, {j*2560}")
        A(f"buffer_store_dwordx4 {v(52+4*j,4)}, v10, s[{R_B}:{R_B+3}], s54 offen")
    A.label(L_p3a)
    stp(A, "prep3a")
    A("s_barrier")
    stp(A, "p3a")
    for st in range(12):
        if st % 3 == 0: A(f"s_add_u32 s58, s62, {(st//3)*4*64*1536}")
        A(f"buffer_load_dwordx4 {v(OF+4*st,4)}, v{OA + st % 3}, s[{R_WS}:{R_WS+3}], s58 offen{SC}")
    def p3_loop(hi):
        if not hi: sel = lambda st: (AD + 2*(st % 3), (st // 3) * 12800)
        else: sel = lambda st: (AD + 6, 0) if st == 0 else (AD + 2*((st - 1) % 3), ((st - 1) // 3) * 12800)
        def rd(st, setid):
            base, so = sel(st); r = []
            for T in range(5):
                r.append(f"ds_read_b64_tr_b16 {v(WF[setid]+4*T,2)}, v{base} offset:{so + 32*T}")
                r.append(f"ds_read_b64_tr_b16 {v(WF[setid]+4*T+2,2)}, v{base+1} offset:{so + 32*T}")
            return r
        for r in rd(0, 0): A(r)
        for st in range(12):
            setid = st % 2
            A(f"s_waitcnt vmcnt({11-st}) lgkmcnt(0)")
            rs = rd(st + 1, 1 - setid) if st < 11 else []
            for T in range(5):
                cc = "0" if st == 0 else v(ACC3+4*T, 4)
                A(f"v_mfma_f32_16x16x32_bf16 {v(ACC3+4*T,4)}, {v(WF[setid]+4*T,4)}, {v(OF+4*st,4)}, {cc}")
                for r in rs[2*T:2*T+2]: A(r)
        A("s_nop 7")
    L_hi = A.newlabel("p3hi")
    A(f"""
    s_cmp_ge_u32 s{S_WAVE}, 4
    s_cbranch_scc1 {L_hi}
    """)
    p3_loop(False)
    A("s_barrier")
    for T in range(5): A(f"ds_read_b128 {v(32+4*T,4)}, v{VRED} offset:{1024*T}")
    A("s_waitcnt lgkmcnt(0)")
    for T in range(5):
        d = ACC3 + 4*T
        A(f"v_pk_add_f32 {v(d,2)}, {v(d,2)}, {v(32+4*T,2)}")
        A(f"v_pk_add_f32 {v(d+2,2)}, {v(d+2,2)}, {v(34+4*T,2)}")
        A(f"v_cvt_pk_bf16_f32 v{d}, v{d}, v{d+1}")
        A(f"v_cvt_pk_bf16_f32 v{d+1}, v{d+2}, v{d+3}")
        A(f"buffer_store_dwordx2 {v(d,2)}, v{VOUT}, s[{R_B}:{R_B+3}], 0 offen offset:{32*T}")
    prof_dump(A, 0, wsptr=P_WS)
    A("s_endpgm")
    A.label(L_hi)
    p3_loop(True)
    for T in range(5): A(f"ds_write_b128 v{VRED}, {v(ACC3+4*T,4)} offset:{1024*T}")
    A("s_waitcnt lgkmcnt(0)\ns_barrier")
    prof_dump(A, 0, wsptr=P_WS)
    A("s_endpgm")

    A.label(L_bw)
    BK, BV, BW = 16, 44, 60
    def b_setup(notask):
        L2_ = A.newlabel("b2"); Lgo = A.newlabel("bgo")
        A(f"""
        s_cmp_eq_u32 s{S_WAVE}, 10
        s_cbranch_scc1 {L2_}
        s_lshl_b32 s56, s2, 1
        s_sub_u32 s57, s{S_WAVE}, 8
        s_add_u32 s56, s56, s57
        s_branch {Lgo}
        {L2_}:
        s_cmp_ge_u32 s2, 128
        s_cbranch_scc1 {notask}
        s_add_u32 s56, s2, 512
        {Lgo}:
        s_mul_i32 s57, s56, 52429
        s_lshr_b32 s57, s57, 19        ; tblk
        s_mul_i32 s58, s57, 10
        s_sub_u32 s58, s56, s58        ; dblk
        v_and_b32 v2, 7, v0            ; dg
        v_lshrrev_b32 v3, 3, v0        ; tg
        v_lshlrev_b32 v12, 6, v2
        v_lshl_add_u32 v12, v3, 3, v12
        s_lshl_b32 s54, s56, 12
        s_add_u32 s54, s54, {WS_U}
        v_add_u32 v12, s54, v12
        s_lshl_b32 s54, s58, 6
        v_lshl_add_u32 v2, v2, 3, s54  ; d0
        s_lshl_b32 s55, s57, 5
        v_lshl_add_u32 v3, v3, 2, s55  ; t0
        v_mul_u32_u24 v4, 1280, v3
        v_lshl_add_u32 v10, v2, 1, v4
        v_lshlrev_b32 v11, 3, v2
        v_subrev_u32 v5, 3840, v10
        v_subrev_u32 v6, 2560, v10
        v_subrev_u32 v7, 1280, v10
        """)
    def b_loads():
        srd(A, R_C, P_BK, 2048 * 640 * 2)
        A(f"""
        buffer_load_dwordx4 {v(BK,4)}, v5, s[{R_C}:{R_C+3}], 0 offen
        buffer_load_dwordx4 {v(BK+4,4)}, v6, s[{R_C}:{R_C+3}], 0 offen
        buffer_load_dwordx4 {v(BK+8,4)}, v7, s[{R_C}:{R_C+3}], 0 offen
        """)
        for j in range(4): A(f"buffer_load_dwordx4 {v(BK+12+4*j,4)}, v10, s[{R_C}:{R_C+3}], 0 offen offset:{1280*j}")
        srd(A, R_C, P_BV, 2048 * 640 * 2)
        for j in range(4): A(f"buffer_load_dwordx4 {v(BV+4*j,4)}, v10, s[{R_C}:{R_C+3}], 0 offen offset:{1280*j}")
        srd(A, R_C, P_SH, 640 * 4 * 2)
        for j in range(4): A(f"buffer_load_dwordx4 {v(BW+4*j,4)}, v11, s[{R_C}:{R_C+3}], 0 offen offset:{16*j}")
    def b_compute(q):
        KP, VP, WP, AC, OUT = 80, 94, 102, 110, 120
        for j in range(7):
            A(f"v_lshlrev_b32 v{KP+2*j}, 16, v{BK+4*j+q}\nv_and_b32 v{KP+1+2*j}, 0xffff0000, v{BK+4*j+q}")
        for t in range(4):
            A(f"v_lshlrev_b32 v{VP+2*t}, 16, v{BV+4*t+q}\nv_and_b32 v{VP+1+2*t}, 0xffff0000, v{BV+4*t+q}")
        for u in range(2):
            bb = BW + 4*q + 2*u
            A(f"v_lshlrev_b32 v{WP+u}, 16, v{bb}\nv_and_b32 v{WP+2+u}, 0xffff0000, v{bb}")
            A(f"v_lshlrev_b32 v{WP+4+u}, 16, v{bb+1}\nv_and_b32 v{WP+6+u}, 0xffff0000, v{bb+1}")
        for t in range(4):
            acc = AC + 2*t
            A(f"v_pk_mul_f32 {v(acc,2)}, {v(KP+2*(t+0),2)}, {v(WP+6,2)}")
            A(f"v_pk_fma_f32 {v(acc,2)}, {v(KP+2*(t+1),2)}, {v(WP+4,2)}, {v(acc,2)}")
            A(f"v_pk_fma_f32 {v(acc,2)}, {v(KP+2*(t+2),2)}, {v(WP+2,2)}, {v(acc,2)}")
            A(f"v_pk_fma_f32 {v(acc,2)}, {v(KP+2*(t+3),2)}, {v(WP,2)}, {v(acc,2)}")
            A(f"v_pk_mul_f32 {v(acc,2)}, {v(acc,2)}, {v(VP+2*t,2)}")
        for u in range(2):
            o = OUT + 4*q + 2*u
            A(f"v_cvt_pk_bf16_f32 v{o}, v{AC+u}, v{AC+2+u}\nv_cvt_pk_bf16_f32 v{o+1}, v{AC+4+u}, v{AC+6+u}")
        for u in range(2):
            o = OUT + 4*q + 2*u
            A(f"buffer_store_dwordx2 {v(o,2)}, v12, s[{R_WS}:{R_WS+3}], 0 offen offset:{(2*q+u)*512}{SC}")
    def init_load():
        A(f"v_mov_b32 v2, 0\nglobal_load_dword v9, v2, s[{P_DBG}:{P_DBG+1}] sc1")
    def u_publish(n):
        A(f"s_waitcnt vmcnt({n})")
        Lok = A.newlabel("iok"); Lsk = A.newlabel("usk")
        A(f"""
        v_readfirstlane_b32 s66, v9
        s_nop 3
        s_cmp_lg_u32 s66, 0
        s_cbranch_scc1 {Lok}
        v_mov_b32 v2, 0
        v_mov_b32 v3, 1
        """)
        poll(A, 2, 3, 4, sleep=8, base=P_DBG)
        A.label(Lok)
        lds_set(A, C_INIT, 2, 3)
        A("s_cmp_lt_u32 s2, 128\ns_cselect_b32 s64, 3, 2")
        lds_arrive_last(A, C_U, "s64", Lsk, 2, 3)
        A(f"""
        s_and_b32 s66, s2, 7
        s_add_u32 s66, s66, {L_U}
        s_lshl_b32 s66, s66, 7
        s_add_u32 s66, s66, {SYNC}
        v_mov_b32 v2, s66
        v_mov_b32 v3, 1
        s_mov_b64 exec, 1
        global_atomic_add v2, v3, s[{P_WS}:{P_WS+1}] sc1
        s_mov_b64 exec, -1
        {Lsk}:
        """)
    def hcopy_setup():
        srd(A, R_C, P_SK, 640 * 4096)
        A(f"""
        s_sub_u32 s57, s{S_WAVE}, 8
        s_mul_i32 s57, s57, {CONV_SZ}
        s_add_u32 s57, s57, {CONV_BASE}
        s_lshl_b32 s58, s56, 12
        v_lshlrev_b32 v13, 4, v0
        v_add_u32 v13, s58, v13
        """)
    def hcopy_part(r):
        for p in range(4):
            dlt = 1024*p - 2*r
            A(f"v_add_u32 v14, {dlt}, v13" if dlt >= 0 else f"v_subrev_u32 v14, {-dlt}, v13")
            A(f"""
            s_add_u32 m0, s57, {r*COPY + 32 + p*1024}
            s_nop 0
            buffer_load_dwordx4 v14, s[{R_C}:{R_C+3}], 0 offen lds""")
        if r == 3:
            A(f"v_mov_b32 v14, s58\nbuffer_load_dwordx4 v[160:163], v14, s[{R_C}:{R_C+3}], 0 offen")
    def hcopy_dma():
        hcopy_setup()
        for r in range(4): hcopy_part(r)
    L_bnog = A.newlabel("bnog"); L_bnt = A.newlabel("bnt"); L_sync = A.newlabel("sync"); L_bntn = A.newlabel("bntn")
    A(f"""
    s_cmp_ge_u32 s{S_CB}, 15
    s_cbranch_scc1 {L_bnog}
    """)
    b_setup(L_bnt)
    if E("BISS", 0): lds_wait(A, C_ISS, 2, 3, val=4, sleep=1)
    b_loads()
    A("s_waitcnt vmcnt(0)")
    stp(A, "blok")
    for q in range(4): b_compute(q)
    init_load()
    npub = E("NPUB", 3)
    for _ in range(npub): A("s_barrier")
    u_publish(0)
    stp(A, "upub")
    A("s_barrier")
    hcopy_setup()
    nb = npub + 1
    for r in range(4):
        hcopy_part(r)
        A("s_barrier"); nb += 1
    for _ in range(10 - nb): A("s_barrier")
    stp(A, "b9")
    A(f"s_branch {L_conv}")
    A.label(L_bnt)
    A(f"s_branch {L_exit}")
    A.label(L_bnog)
    L_noz = A.newlabel("noz")
    A(f"""
    s_cmp_lg_u32 s2, {ZERO_WG}
    s_cbranch_scc1 {L_noz}
    s_cmp_lg_u32 s{S_WAVE}, 10
    s_cbranch_scc1 {L_noz}
    v_lshlrev_b32 v2, 4, v0
    v_add_u32 v2, {SYNC}, v2
    v_mov_b32 v4, 0
    v_mov_b32 v5, 0
    v_mov_b32 v6, 0
    v_mov_b32 v7, 0
    """)
    for i in range(10):
        A(f"s_mov_b32 s54, {1024*i}\nbuffer_store_dwordx4 v[4:7], v2, s[{R_WS}:{R_WS+3}], s54 offen sc1")
    A(f"""
    s_waitcnt vmcnt(0)
    v_mov_b32 v2, 0
    v_mov_b32 v3, 1
    s_mov_b64 exec, 1
    global_store_dword v2, v3, s[{P_DBG}:{P_DBG+1}] sc1
    s_mov_b64 exec, -1
    {L_noz}:
    """)
    b_setup(L_exit)
    b_loads()
    A("s_waitcnt vmcnt(0)")
    for q in range(4): b_compute(q)
    init_load()
    hcopy_dma()
    u_publish(17)
    A(f"s_branch {L_conv}")

    A.label(L_conv)
    A(f"""
    s_lshr_b32 s59, s56, 1
    s_lshl_b32 s59, s59, 2
    s_load_dword s60, s[{P_SD}:{P_SD+1}], s59
    v_mov_b32 v12, 0
    v_mov_b32 v13, 0
    v_mov_b32 v14, 0
    v_mov_b32 v15, 0
    v_lshlrev_b32 v6, 3, v0
    v_add_u32 v6, s57, v6
    v_add_u32 v6, {4*COPY}, v6
    v_cmp_gt_u32 vcc, 60, v0
    s_and_saveexec_b64 s[54:55], vcc
    ds_write_b64 v6, v[12:13]
    s_mov_b64 exec, s[54:55]
    v_and_b32 v6, 1, v0
    v_lshlrev_b32 v6, 4, v6
    v_lshrrev_b32 v7, 1, v0
    v_mul_u32_u24 v7, {COPY}, v7
    v_add3_u32 v6, v6, v7, s57
    v_cmp_gt_u32 vcc, 8, v0
    s_and_saveexec_b64 s[54:55], vcc
    ds_write_b128 v6, v[12:15]
    s_mov_b64 exec, s[54:55]
    s_lshr_b32 s54, s56, 6
    s_and_b32 s55, s56, 63
    s_and_b32 s61, s55, 7
    s_lshr_b32 s55, s55, 3
    s_lshl_b32 s61, s61, 9
    s_lshl_b32 s55, s55, 6
    s_add_u32 s61, s61, s55
    s_lshl_b32 s54, s54, 12
    s_add_u32 s61, s61, s54
    s_add_u32 s61, s61, {WS_U}
    v_lshrrev_b32 v8, 2, v0
    v_mul_u32_u24 v8, 40960, v8
    v_and_b32 v9, 3, v0
    v_lshl_add_u32 v8, v9, 4, v8
    """)
    L_uw = A.newlabel("uw"); L_ud = A.newlabel("ud")
    A(f"s_cmp_lg_u32 s{S_WAVE}, 8\ns_cbranch_scc1 {L_uw}")
    A(f"""
    v_lshlrev_b32 v2, 7, v0
    v_add_u32 v2, {SYNC + 128*L_U}, v2
    v_cmp_gt_u32 vcc, 8, v0
    v_mov_b32 v3, 32
    s_nop 0
    v_cndmask_b32 v4, 0, v3, vcc
    """)
    poll(A, 2, 4, 3, sleep=E("PS_U", 24))
    lds_set(A, C_UOK, 2, 3)
    A(f"s_branch {L_ud}")
    A.label(L_uw)
    lds_wait(A, C_UOK, 2, 3)
    A("s_waitcnt vmcnt(0)")
    A.label(L_ud)
    stp(A, "uok")
    for p in range(4):
        A(f"""
        s_add_u32 m0, s57, {4*COPY + 480 + p*1024}
        s_add_u32 s54, s61, {p*16*40960}
        buffer_load_dwordx4 v8, s[{R_WS}:{R_WS+3}], s54 offen{SC} lds""")
    A(f"""
    v_lshlrev_b32 v16, 16, v160
    v_alignbit_b32 v17, v161, v160, 16
    v_alignbit_b32 v18, v162, v161, 16
    v_alignbit_b32 v19, v163, v162, 16
    v_mov_b32 v20, 0
    v_mov_b32 v21, v160
    v_mov_b32 v22, v161
    v_mov_b32 v23, v162
    v_mov_b32 v24, 0
    v_mov_b32 v25, v16
    v_mov_b32 v26, v17
    v_mov_b32 v27, v18
    v_mov_b32 v6, s57
    s_mov_b64 exec, 1
    ds_write_b128 v6, v[16:19] offset:{1*COPY + 32}
    ds_write_b128 v6, v[20:23] offset:{2*COPY + 32}
    ds_write_b128 v6, v[24:27] offset:{3*COPY + 32}
    s_mov_b64 exec, -1
    v_lshrrev_b32 v6, 4, v0             ; kg
    v_bfe_u32 v7, v0, 2, 2              ; r
    v_and_b32 v8, 3, v0                 ; c
    v_mul_u32_u24 v7, {COPY}, v7
    v_lshlrev_b32 v8, 3, v8
    v_lshlrev_b32 v9, 4, v6
    v_sub_u32 v8, v8, v9
    v_add_u32 v8, 56, v8
    v_add3_u32 v4, v7, v8, s57          ; vA
    v_and_b32 v7, 15, v0
    v_lshlrev_b32 v7, 5, v7
    v_lshl_add_u32 v7, v6, 4, v7
    v_add_u32 v7, {4*COPY}, v7
    v_add_u32 v5, s57, v7               ; vB
    s_waitcnt vmcnt(0) lgkmcnt(0)
    s_and_b32 s54, s56, 1
    s_lshl_b32 s54, s54, 4
    s_lshr_b32 s60, s60, s54
    s_lshl_b32 s60, s60, 16             ; D as f32
    """)
    stp(A, "conv0")
    Y = 32; AT = 64; BT = 128
    def a_reads(rho, p):
        mu = rho + 8 * p
        return [f"ds_read_b64_tr_b16 {v(AT+4*p,2)}, v4 offset:{64*mu + 8}",
                f"ds_read_b64_tr_b16 {v(AT+4*p+2,2)}, v4 offset:{64*mu}"]
    def b_read(rho, q): return f"ds_read_b128 {v(BT+4*q,4)}, v5 offset:{64*(8*q - rho + 7)}"
    A(f"s_setprio {E('CPRIO', 0)}")
    if E("CPACE", 0):
        for q in range(7, -1, -1): A(b_read(0, q))
        for rho in range(8):
            for p in range(8):
                for r in a_reads(rho, p): A(r)
                A("s_waitcnt lgkmcnt(0)")
                for q in range(7 - p, -1, -1):
                    i = p + q
                    cc = "0" if (rho == 0 and p == 0) else v(Y+4*i, 4)
                    A(f"v_mfma_f32_16x16x32_bf16 {v(Y+4*i,4)}, {v(AT+4*p,4)}, {v(BT+4*q,4)}, {cc}")
                if rho < 7: A(b_read(rho + 1, 7 - p))
            if rho == 3:
                stp(A, "convh")
                A("s_barrier")
    else:
        ATS = [64, 96]
        def a_reads2(rho, p, sid):
            mu = rho + 8 * p
            return [f"ds_read_b64_tr_b16 {v(ATS[sid]+4*p,2)}, v4 offset:{64*mu + 8}",
                    f"ds_read_b64_tr_b16 {v(ATS[sid]+4*p+2,2)}, v4 offset:{64*mu}"]
        for q in range(7, -1, -1): A(b_read(0, q))
        A("s_waitcnt lgkmcnt(4)")
        for p in range(8):
            for r in a_reads2(0, p, 0): A(r)
            if p == 3: A("s_waitcnt lgkmcnt(4)")
        for rho in range(8):
            sid = rho % 2
            nxtA = [x for p in range(8) for x in a_reads2(rho + 1, p, 1 - sid)] if rho < 7 else []
            A("s_waitcnt lgkmcnt(0)" if rho == 0 else "s_waitcnt lgkmcnt(4)")
            for p in range(8):
                for q in range(7 - p, -1, -1):
                    i = p + q
                    cc = "0" if (rho == 0 and p == 0) else v(Y+4*i, 4)
                    if p == 0 and rho > 0 and q <= 3:
                        A(f"s_waitcnt lgkmcnt({7 if rho < 7 else q})")
                    A(f"v_mfma_f32_16x16x32_bf16 {v(Y+4*i,4)}, {v(ATS[sid]+4*p,4)}, {v(BT+4*q,4)}, {cc}")
                    if nxtA: A(nxtA.pop(0))
                if rho < 7: A(b_read(rho + 1, 7 - p))
            if rho == E("CBAR", -1):
                stp(A, "convh")
                A("s_barrier")
    stp(A, "conv1")
    A(f"""
    v_and_b32 v7, 15, v0
    v_lshrrev_b32 v6, 4, v0
    v_lshlrev_b32 v7, 5, v7
    v_lshl_add_u32 v7, v6, 3, v7        ; 32n + 8g
    v_add_u32 v8, s57, v7
    v_add_u32 v8, {4*COPY + 480}, v8
    s_add_u32 s61, s58, {WS_Z}
    """)
    for i in range(8): A(f"ds_read_b64 {v(64+2*i,2)}, v8 offset:{512*i}")
    A("s_waitcnt lgkmcnt(0)\ns_nop 3")
    for i in range(8):
        u0, u1 = 64 + 2*i, 64 + 2*i + 1
        y = Y + 4*i
        A(f"""
        v_lshlrev_b32 v96, 16, v{u0}
        v_and_b32 v97, 0xffff0000, v{u0}
        v_lshlrev_b32 v98, 16, v{u1}
        v_and_b32 v99, 0xffff0000, v{u1}
        v_fma_f32 v{y}, v96, s60, v{y}
        v_fma_f32 v{y+1}, v97, s60, v{y+1}
        v_fma_f32 v{y+2}, v98, s60, v{y+2}
        v_fma_f32 v{y+3}, v99, s60, v{y+3}
        v_cvt_pk_bf16_f32 v{y}, v{y}, v{y+1}
        v_cvt_pk_bf16_f32 v{y+1}, v{y+2}, v{y+3}
        buffer_store_dwordx2 {v(y,2)}, v7, s[{R_WS}:{R_WS+3}], s61 offen offset:{512*i}{SC}""")
    A("s_waitcnt vmcnt(0)")
    stp(A, "zdrained")
    L_zs = A.newlabel("zs")
    A("s_cmp_lt_u32 s2, 128\ns_cselect_b32 s64, 3, 2")
    lds_arrive_last(A, C_Z, "s64", L_zs, 2, 3)
    A(f"s_and_b32 s65, s2, 7\ns_add_u32 s65, s65, {L_Z}")
    global_arrive(A, "s65", 32, 2, 3)
    A.label(L_zs)
    prof_dump(A, 0, wsptr=P_WS)
    A.label(L_exit)
    A("s_endpgm")

def build():
    hdr = open("cdna_kernels/" + NAME + ".s.ref").read().split("; Override launch geometry")[0]
    A = Asm(); gen(A)
    out = hdr + f"; @launch grid=(256,1,1) block=(704,1,1) lds={LDS}\n"
    out += '.amdgcn_target "amdgcn-amd-amdhsa--gfx950"\n.text\n' + A.text()
    out += f""".section .rodata,"a"
.p2align 6
.amdhsa_kernel {KNAME}
  .amdhsa_next_free_vgpr {VGPRS}
  .amdhsa_next_free_sgpr 102
  .amdhsa_accum_offset {VGPRS}
  .amdhsa_group_segment_fixed_size 0
  .amdhsa_kernarg_size 96
  .amdhsa_user_sgpr_count 2
  .amdhsa_user_sgpr_kernarg_segment_ptr 1
  .amdhsa_system_sgpr_workgroup_id_x 1
  .amdhsa_float_denorm_mode_32 3
.end_amdhsa_kernel
"""
    return out

if __name__ == "__main__":
    open(sys.argv[1], "w").write(build())
```

```python
class Asm:
    def __init__(self):
        self.lines = []
        self.uid = 0
    def __call__(self, s=""):
        for l in s.split("\n"):
            l = l.strip()
            if l == "":
                continue
            if l.endswith(":") or l.startswith("."):
                self.lines.append(l)
            elif l.startswith(";"):
                self.lines.append("    " + l)
            else:
                self.lines.append("    " + l)
    def c(self, s):
        self.lines.append("    ; " + s)
    def label(self, name):
        self.lines.append(name + ":")
    def newlabel(self, base):
        self.uid += 1
        return f"L_{base}_{self.uid}"
    def text(self):
        return "\n".join(self.lines) + "\n"

def v(i, n=1):
    return f"v{i}" if n == 1 else f"v[{i}:{i+n-1}]"
def s(i, n=1):
    return f"s{i}" if n == 1 else f"s[{i}:{i+n-1}]"
def a(i, n=1):
    return f"a{i}" if n == 1 else f"a[{i}:{i+n-1}]"

def srd(A, dst, ptr, nbytes, add=0):
    if add:
        A(f"s_add_u32 s{dst}, s{ptr}, {hex(add)}")
        A(f"s_addc_u32 s{dst+1}, s{ptr+1}, 0")
    else:
        A(f"s_mov_b32 s{dst}, s{ptr}")
        A(f"s_mov_b32 s{dst+1}, s{ptr+1}")
    A(f"s_mov_b32 s{dst+2}, {hex(nbytes)}")
    A(f"s_mov_b32 s{dst+3}, 0x00020000")

import os
PROF = int(os.environ.get("PROF", "0"))
PROF_BASE = 0x2000000
NSTAMP = 8
def stamp(A, idx):
    if PROF:
        A(f"{'s_memrealtime' if os.environ.get('RSTAMP') else 's_memtime'} s[{80+2*idx}:{81+2*idx}]")
def prof_init(A):
    if PROF:
        for i in range(NSTAMP):
            A(f"s_mov_b64 s[{80+2*i}:{81+2*i}], 0")
        A("s_memrealtime s[68:69]")
        stamp(A, 0)
def prof_dump(A, kidx, wsptr=14, wave_s=40):
    if not PROF:
        return
    if PROF == 3:
        L = A.newlabel("nodump")
        A("s_mov_b64 exec, -1")
        A("s_memrealtime s[70:71]")
        A("s_waitcnt lgkmcnt(0)")
        A(f"s_cmp_lg_u32 s{wave_s}, 0\ns_cbranch_scc1 {L}")
        L2 = A.newlabel("d200"); L3 = A.newlabel("dgo")
        A(f"s_mov_b32 s96, 16\ns_cmp_eq_u32 s2, 0\ns_cbranch_scc1 {L3}")
        A(f"s_mov_b32 s96, 40\ns_cmp_eq_u32 s2, 200\ns_cbranch_scc0 {L}")
        A.label(L3)
        A("v_mov_b32 v0, s96")
        regs = [82, 84, 86, 88, 90, 70]
        for i, r in enumerate(regs):
            A(f"s_sub_u32 s97, s{r}, s68\nv_mov_b32 v2, s97\ns_mov_b64 exec, 1\nglobal_store_dword v0, v2, s[24:25] offset:{4*i}\ns_mov_b64 exec, -1")
        A.label(L)
        return
    A("s_mov_b64 exec, -1")
    stamp(A, NSTAMP - 1)
    A("s_memrealtime s[70:71]")
    A("s_waitcnt lgkmcnt(0)")
    A(f"s_lshl_b32 s96, s2, 4")
    A(f"s_add_u32 s96, s96, s{wave_s}")
    A(f"s_add_u32 s96, s96, {kidx*256*16}")
    A(f"s_lshl_b32 s96, s96, 7")
    A(f"s_add_u32 s96, s96, {PROF_BASE}")
    A(f"s_add_u32 s98, s{wsptr}, s96")
    A(f"s_addc_u32 s99, s{wsptr+1}, 0")
    A("v_mov_b32 v0, 0")
    regs = [80+2*i for i in range(NSTAMP)] + [68, 70]
    for i, r in enumerate(regs):
        A(f"v_mov_b32 v2, s{r}")
        A(f"v_mov_b32 v3, s{r+1}")
        A("s_mov_b64 exec, 1")
        A(f"global_store_dwordx2 v0, v[2:3], s[98:99] offset:{8*i}")
        A("s_mov_b64 exec, -1")
        A("s_nop 1")
```

```python
import os, sys, struct, math
from asmlib import *
from slots import ASSIGN, HEADWORD

NAME = "concat_heads__softmax_full_mha__ssm_conv_h3__prompt"
KNAME = NAME + "_kernel"
E = lambda k, d=0: int(os.environ.get(k, d))

TB = 8320
SEC = 64 * TB
WS_U  = 0x800000
WS_Z  = 0xB00000
WS_O  = 0xE00000
SYNC  = 0x1200000
WS_BYTES = 0x1204000
REC = 3072
CHUNK = 16 * REC
COPY = 4160
CONV_SZ = 4 * COPY + 4608
CONV_BASE = 98304
CNT = CONV_BASE + 3 * CONV_SZ
LDS = CNT + 256
WO_A = 98304
WO_BROW = 340
RED = CHUNK
VGPRS = 168
POLL_MAX = 40000
SC = os.environ.get("SCF", " sc1")
L_QKV, L_U, L_Z, L_O = 0, 16, 24, 32
FLG = 40
ZERO_WG = 225
C_QKV, C_U, C_Z, C_O, C_UOK, C_INIT, C_GO, C_KV, C_ISS = 0, 4, 8, 12, 16, 20, 24, 28, 32

def f32bits(x): return struct.unpack("<I", struct.pack("<f", x))[0]
QSCALE = f32bits(20 ** -0.5 * math.log2(math.e))

P_X, P_W, P_WO, P_BQ, P_BK, P_BV, P_SH, P_SK, P_SD, P_OUT, P_DBG, P_WS = 4, 6, 8, 10, 12, 14, 16, 18, 20, 22, 24, 26
R_WS = 28
R_A, R_B, R_C = 32, 36, 44
S_WAVE, S_XCD, S_J, S_RB, S_CB = 40, 41, 42, 43, 48

STAMPS = dict(x.split(":") for x in os.environ.get("STAMPS", "b0:1,gend:2,uok:2,att0:4,att1:5,p3a:6").split(","))
def stp(A, name):
    if name in STAMPS: stamp(A, int(STAMPS[name]))

def poll(A, addr_v, thr_v, tmp, sleep=4, base=P_WS):
    L = A.newlabel("poll"); D = A.newlabel("polld")
    A(f"""
    v_cmp_ne_u32 vcc, 0, v{thr_v}
    s_mov_b32 s66, {POLL_MAX}
    s_nop 1
    s_mov_b64 exec, vcc
    {L}:
    global_load_dword v{tmp}, v{addr_v}, s[{base}:{base+1}] sc1
    s_waitcnt vmcnt(0)
    v_cmp_ge_u32 vcc, v{tmp}, v{thr_v}
    s_nop 3
    s_cmp_eq_u64 vcc, exec
    s_cbranch_scc1 {D}
    s_sleep {sleep}
    s_sub_u32 s66, s66, 1
    s_cmp_lg_u32 s66, 0
    s_cbranch_scc1 {L}
    {D}:
    s_mov_b64 exec, -1
    """)
def poll_flags(A, line0, nlines, t_addr, t_thr, tmp, sleep=4):
    A(f"""
    v_lshlrev_b32 v{t_addr}, 7, v0
    v_add_u32 v{t_addr}, {SYNC + 128*(FLG + line0)}, v{t_addr}
    v_cmp_gt_u32 vcc, {nlines}, v0
    v_mov_b32 v{tmp}, 1
    s_nop 0
    v_cndmask_b32 v{t_thr}, 0, v{tmp}, vcc
    """)
    poll(A, t_addr, t_thr, tmp, sleep)
def lds_set(A, off, t0, t1):
    A(f"""
    v_mov_b32 v{t0}, {CNT + off}
    v_mov_b32 v{t1}, 1
    ds_write_b32 v{t0}, v{t1}
    """)
def lds_add(A, off, t0, t1):
    A(f"""
    v_mov_b32 v{t0}, {CNT + off}
    v_mov_b32 v{t1}, 1
    s_mov_b64 exec, 1
    ds_add_u32 v{t0}, v{t1}
    s_mov_b64 exec, -1
    """)
def lds_wait(A, off, t0, t1, val=1, sleep=1):
    L = A.newlabel("lw"); D = A.newlabel("lwd")
    A(f"""
    v_mov_b32 v{t0}, {CNT + off}
    s_mov_b32 s66, {POLL_MAX*16}
    {L}:
    ds_read_b32 v{t1}, v{t0}
    s_waitcnt lgkmcnt(0)
    v_readfirstlane_b32 s67, v{t1}
    s_nop 3
    s_cmp_ge_u32 s67, {val}
    s_cbranch_scc1 {D}
    s_sleep {sleep}
    s_sub_u32 s66, s66, 1
    s_cmp_lg_u32 s66, 0
    s_cbranch_scc1 {L}
    {D}:
    """)
def lds_arrive_last(A, off, n_s, skip_lab, t0, t1):
    A(f"""
    v_mov_b32 v{t0}, {CNT + off}
    v_mov_b32 v{t1}, 1
    s_mov_b64 exec, 1
    ds_add_rtn_u32 v{t1}, v{t0}, v{t1}
    s_waitcnt lgkmcnt(0)
    s_mov_b64 exec, -1
    v_readfirstlane_b32 s66, v{t1}
    s_nop 3
    s_add_u32 s66, s66, 1
    s_cmp_lg_u32 s66, {n_s}
    s_cbranch_scc1 {skip_lab}
    """)
def global_arrive(A, line_s, total, t0, t1):
    L = A.newlabel("ga")
    A(f"""
    s_lshl_b32 s66, {line_s}, 7
    s_add_u32 s66, s66, {SYNC}
    v_mov_b32 v{t0}, s66
    v_mov_b32 v{t1}, 1
    s_mov_b64 exec, 1
    global_atomic_add v{t1}, v{t0}, v{t1}, s[{P_WS}:{P_WS+1}] sc0 sc1
    s_waitcnt vmcnt(0)
    s_mov_b64 exec, -1
    v_readfirstlane_b32 s66, v{t1}
    s_nop 3
    s_add_u32 s66, s66, 1
    s_cmp_lg_u32 s66, {total}
    s_cbranch_scc1 {L}
    v_add_u32 v{t0}, {128*FLG}, v{t0}
    v_mov_b32 v{t1}, 1
    s_mov_b64 exec, 1
    global_store_dword v{t0}, v{t1}, s[{P_WS}:{P_WS+1}] sc1
    s_mov_b64 exec, -1
    {L}:
    """)

def gen(A):
    A(f".globl {KNAME}")
    A(".p2align 8")
    A(f".type {KNAME},@function")
    A.label(KNAME)
    L_exit, L_nog, L_prod, L_bw, L_heads, L_conv = "L_exit", "L_nog", "L_prod", "L_bw", "L_heads", "L_conv"
    A(f"""
    s_cmp_ge_u32 s2, 256
    s_cbranch_scc1 {L_exit}
    s_load_dwordx16 s[4:19], s[0:1], 0
    s_load_dwordx8 s[20:27], s[0:1], 64
    v_lshrrev_b32 v1, 6, v0
    v_and_b32 v0, 63, v0
    v_readfirstlane_b32 s{S_WAVE}, v1
    s_and_b32 s{S_XCD}, s2, 7
    s_lshr_b32 s{S_J}, s2, 3
    s_lshr_b32 s{S_RB}, s{S_XCD}, 1
    s_lshl_b32 s{S_RB}, s{S_RB}, 2
    s_and_b32 s49, s{S_J}, 3
    s_add_u32 s{S_RB}, s{S_RB}, s49        ; rb
    s_and_b32 s{S_CB}, s{S_XCD}, 1
    s_lshl_b32 s{S_CB}, s{S_CB}, 3
    s_lshr_b32 s49, s{S_J}, 2
    s_add_u32 s{S_CB}, s{S_CB}, s49        ; cb
    v_mov_b32 v2, {CNT}
    v_mov_b32 v4, 0
    v_mov_b32 v5, 0
    v_mov_b32 v6, 0
    v_mov_b32 v7, 0
    ds_write_b128 v2, v[4:7]
    ds_write_b128 v2, v[4:7] offset:16
    ds_write_b128 v2, v[4:7] offset:32
    s_waitcnt lgkmcnt(0)
    s_barrier
    """)
    srd(A, R_WS, P_WS, WS_BYTES)
    prof_init(A)
    A(f"""
    s_cmp_ge_u32 s{S_WAVE}, 8
    s_cbranch_scc1 {L_bw}
    s_cmp_ge_u32 s{S_CB}, 15
    s_cbranch_scc1 {L_nog}
    s_cmp_ge_u32 s{S_WAVE}, 4
    s_cbranch_scc1 {L_prod}
    """)
    slot_of = lambda st: (st + 2) % 3

    A(f"""
    s_lshr_b32 s56, s{S_WAVE}, 1       ; wr
    s_and_b32 s57, s{S_WAVE}, 1        ; wc
    v_and_b32 v2, 31, v0           ; n
    v_lshrrev_b32 v3, 5, v0        ; h
    v_bfe_u32 v4, v0, 1, 3         ; (l>>1)&7
    s_lshl_b32 s54, s56, 6
    v_add_u32 v5, s54, v2
    v_lshlrev_b32 v5, 7, v5        ; token_local*128
    """)
    for ks in range(4):
        A(f"""
        v_add_u32 v6, {2*ks}, v3
        v_xor_b32 v6, v6, v4
        v_lshl_add_u32 v{16+ks}, v6, 4, v5
        v_add_u32 v{20+ks}, 0x10000, v{16+ks}""")
    def w_addr():
        A(f"""
        v_lshrrev_b32 v2, 4, v0        ; g
        v_bfe_u32 v3, v0, 2, 2         ; r
        v_and_b32 v4, 3, v0            ; c4
        v_lshrrev_b32 v5, 1, v2
        v_lshl_add_u32 v5, v5, 3, v3   ; k_local
        v_lshlrev_b32 v5, 8, v5
        v_add_u32 v5, 16384, v5
        v_and_b32 v6, 1, v2
        v_lshl_add_u32 v6, v6, 2, v4   ; rg = 4*(g&1) + c4
        v_mul_u32_u24 v6, 5, v6
        v_lshlrev_b32 v7, 2, v3        ; 4r
        """)
        for ft in range(2):
            A(f"""
            v_lshrrev_b64 v[8:9], v6, s[{60+2*ft}:{61+2*ft}]
            v_and_b32 v8, 31, v8
            v_lshrrev_b32 v9, 1, v8
            v_xor_b32 v9, v9, v7
            v_and_b32 v8, 1, v8
            v_lshlrev_b32 v8, 3, v8
            v_lshl_add_u32 v8, v9, 4, v8
            v_add_u32 v{24+ft}, v5, v8
            v_add_u32 v{26+ft}, 0x10000, v{24+ft}""")
    FR = [dict(X=[32, 36], W=[40, 44]), dict(X=[48, 52], W=[56, 60])]
    ACC = lambda ft, tt: 64 + 16 * (2 * ft + tt)
    def reads(st, ks, setid):
        slot = slot_of(st); hi = slot == 2
        so = 0 if hi else slot * 32768
        xa = (20 if hi else 16) + ks; wa = (26 if hi else 24); F = FR[setid]
        return [f"ds_read_b128 {v(F['X'][0],4)}, v{xa} offset:{so}",
                f"ds_read_b64_tr_b16 {v(F['W'][0],2)}, v{wa} offset:{so + ks*4096}",
                f"ds_read_b64_tr_b16 {v(F['W'][0]+2,2)}, v{wa} offset:{so + ks*4096 + 1024}",
                f"ds_read_b128 {v(F['X'][1],4)}, v{xa} offset:{so + 4096}",
                f"ds_read_b64_tr_b16 {v(F['W'][1],2)}, v{wa+1} offset:{so + ks*4096}",
                f"ds_read_b64_tr_b16 {v(F['W'][1]+2,2)}, v{wa+1} offset:{so + ks*4096 + 1024}"]
    def mfmas(setid, first, vmode):
        F = FR[setid]; m = []
        for (ft, tt) in [(0, 0), (0, 1), (1, 0), (1, 1)]:
            d = ACC(ft, tt); c = "0" if first else v(d, 16)
            a_, b_ = (F['X'][tt], F['W'][ft]) if vmode else (F['W'][ft], F['X'][tt])
            m.append(f"v_mfma_f32_32x32x16_bf16 {v(d,16)}, {v(a_,4)}, {v(b_,4)}, {c}")
        return m
    def main_loop(vmode):
        A("s_barrier")
        stp(A, "b0")
        for r in reads(0, 0, 0): A(r)
        n = 0
        for st in range(10):
            for ks in range(4):
                setid = n % 2
                m = mfmas(setid, n == 0, vmode)
                A("s_waitcnt lgkmcnt(0)")
                if ks == 3 and st < 9:
                    A("s_barrier")
                    stp(A, f"gb{st+1}")
                A(m[0])
                if ks < 3:
                    for r in reads(st, ks + 1, 1 - setid): A(r)
                elif st < 9:
                    for r in reads(st + 1, 0, 1 - setid): A(r)
                A(m[1]); A(m[2]); A(m[3])
                n += 1
        stp(A, "gend")
        A("s_nop 15")
    L_vpath = A.newlabel("vpath"); L_gsig = A.newlabel("gsig"); L_vdone = A.newlabel("vdone")
    A(f"""
    s_cmp_ge_u32 s{S_CB}, 10
    s_cbranch_scc1 {L_vpath}
    s_cmp_ge_u32 s{S_CB}, 5
    s_cselect_b32 s55, 5, 0
    s_sub_u32 s55, s{S_CB}, s55        ; cb'
    s_lshl_b32 s55, s55, 1
    s_add_u32 s55, s55, s57
    """)
    for var in range(10):
        cbp, wc = divmod(var, 2); T = []
        for ft in range(2):
            tab = [0]*8
            for si, it in enumerate(ASSIGN[cbp][2*wc + ft]):
                ap, h = divmod(si, 2)
                tab[4*ap + h] = it[1]; tab[4*ap + 2 + h] = it[2]
            T.append(sum(g << (5*i) for i, g in enumerate(tab)))
        nxt = A.newlabel("var")
        A(f"""
        s_cmp_lg_u32 s55, {var}
        s_cbranch_scc1 {nxt}
        s_mov_b32 s60, {hex(T[0] & 0xffffffff)}
        s_mov_b32 s61, {hex(T[0] >> 32)}
        s_mov_b32 s62, {hex(T[1] & 0xffffffff)}
        s_mov_b32 s63, {hex(T[1] >> 32)}
        s_branch {L_vdone}
        {nxt}:""")
    A(f"""
    s_mov_b64 s[60:61], 0
    s_mov_b64 s[62:63], 0
    {L_vdone}:
    """)
    w_addr()
    A(f"""
    s_mov_b32 s58, {hex(QSCALE)}
    s_cmp_ge_u32 s{S_CB}, 5
    s_cmov_b32 s58, 0x3f800000
    s_mov_b32 s59, s58
    v_lshlrev_b32 v128, 4, v0
    s_lshl_b32 s54, s{S_RB}, 2
    s_lshl_b32 s55, s56, 1
    s_add_u32 s54, s54, s55
    s_lshl_b32 s55, s{S_CB}, 6
    s_add_u32 s54, s54, s55
    s_mul_i32 s54, s54, {TB}
    s_lshl_b32 s55, s57, 12        ; wc*4096
    s_add_u32 s64, s54, s55
    s_add_u32 s65, s64, {TB}
    """)
    main_loop(False)
    for ft in range(2):
        for tt in range(2):
            d = ACC(ft, tt)
            for i in range(0, 16, 2):
                A(f"v_pk_mul_f32 {v(d+i,2)}, {v(d+i,2)}, s[58:59]")
            for ap in range(2):
                for i in range(4):
                    A(f"v_cvt_pk_bf16_f32 v{d+8*ap+i}, v{d+8*ap+2*i}, v{d+8*ap+2*i+1}")
                A(f"buffer_store_dwordx4 {v(d+8*ap,4)}, v128, s[{R_WS}:{R_WS+3}], s{64+tt} offen offset:{ft*2048 + ap*1024}{SC}")
    A(f"s_branch {L_gsig}")
    A.label(L_vpath)
    nat = sum(i << (5*i) for i in range(8)); rep = sum(1 << (5*i) for i in range(8))
    A(f"""
    s_lshl_b32 s54, s57, 4
    s_mul_i32 s55, s54, {hex(rep & 0xffffffff)}
    s_mul_hi_u32 s61, s54, {hex(rep & 0xffffffff)}
    s_mul_i32 s66, s54, {hex(rep >> 32)}
    s_add_u32 s61, s61, s66
    s_add_u32 s60, s55, {hex(nat & 0xffffffff)}
    s_addc_u32 s61, s61, {hex(nat >> 32)}
    s_add_u32 s62, s60, {hex((8*rep) & 0xffffffff)}
    s_addc_u32 s63, s61, {hex((8*rep) >> 32)}
    """)
    w_addr()
    A(f"""
    v_lshlrev_b32 v128, 4, v0
    s_lshl_b32 s54, s{S_RB}, 2
    s_lshl_b32 s55, s{S_CB}, 6
    s_add_u32 s54, s54, s55
    s_add_u32 s55, s54, s{S_WAVE}
    s_mul_i32 s55, s55, {TB}
    s_add_u32 s58, s55, 8192
    s_lshl_b32 s55, s56, 1
    s_add_u32 s54, s54, s55
    s_mul_i32 s54, s54, {TB}
    s_lshl_b32 s55, s57, 11
    s_add_u32 s62, s54, s55
    s_add_u32 s63, s62, 4096
    s_add_u32 s64, s62, {TB}
    s_add_u32 s65, s64, 4096
    """)
    main_loop(True)
    for ft in range(2):
        for tt in range(2):
            d = ACC(ft, tt)
            for f in range(2):
                for i in range(4):
                    A(f"v_cvt_pk_bf16_f32 v{d+8*f+i}, v{d+8*f+2*i}, v{d+8*f+2*i+1}")
                A(f"buffer_store_dwordx4 {v(d+8*f,4)}, v128, s[{R_WS}:{R_WS+3}], s{62+2*tt+f} offen offset:{ft*1024}{SC}")
    A(f"""
    v_cmp_eq_u32 vcc, 0, v0
    v_mov_b32 v36, 0x3f803f80
    s_nop 0
    v_cndmask_b32 v32, 0, v36, vcc
    v_cndmask_b32 v33, 0, v36, vcc
    v_cndmask_b32 v34, 0, v36, vcc
    v_cndmask_b32 v35, 0, v36, vcc
    s_mov_b64 exec, 15
    buffer_store_dwordx4 v[32:35], v128, s[{R_WS}:{R_WS+3}], s58 offen{SC}
    s_mov_b64 exec, -1
    """)
    A.label(L_gsig)
    stp(A, "gstored")
    A("s_waitcnt vmcnt(0)")
    stp(A, "gdrained")
    L_qs = A.newlabel("qs")
    lds_arrive_last(A, C_QKV, 4, L_qs, 2, 3)
    lds_wait(A, C_INIT, 2, 3)
    global_arrive(A, f"s{S_CB}", 16, 2, 3)
    A.label(L_qs)
    stp(A, "gsig")
    A(f"s_branch {L_heads}")

    A.label(L_prod)
    srd(A, R_A, P_X, 2048 * 640 * 2)
    srd(A, R_B, P_W, 640 * 1920 * 2)
    VXE, VXO, VW = 10, 11, 12
    A(f"""
    s_sub_u32 s55, s{S_WAVE}, 4            ; pw
    s_lshl_b32 s49, s55, 12
    s_mul_i32 s53, s55, 61440
    s_and_b32 s50, s{S_RB}, 3
    s_mul_i32 s50, s50, 3
    s_add_u32 s50, s50, s{S_CB}
    s_cmp_ge_u32 s50, 20
    s_cselect_b32 s51, 20, 0
    s_sub_u32 s50, s50, s51
    s_cmp_ge_u32 s50, 10
    s_cselect_b32 s51, 10, 0
    s_sub_u32 s50, s50, s51
    """)
    if not E("ROT", 1): A("s_mov_b32 s50, 0")
    A(f"""
    s_lshl_b32 s51, s50, 7
    s_mul_i32 s52, s50, 245760
    s_add_u32 s52, s52, s53
    v_lshrrev_b32 v2, 3, v0
    v_lshrrev_b32 v3, 4, v0
    v_and_b32 v4, 7, v0
    v_xor_b32 v4, v4, v3
    s_lshl_b32 s54, s{S_RB}, 7
    s_lshl_b32 s55, s55, 5
    s_add_u32 s54, s54, s55
    v_add_u32 v2, s54, v2
    v_mul_u32_u24 v2, 1280, v2
    v_lshl_add_u32 v{VXE}, v4, 4, v2
    v_xor_b32 v{VXO}, 64, v{VXE}
    v_and_b32 v4, 15, v0
    v_lshlrev_b32 v5, 2, v3
    v_xor_b32 v4, v4, v5
    v_mul_u32_u24 v5, 3840, v3
    v_lshl_add_u32 v{VW}, v4, 4, v5
    s_lshl_b32 s54, s{S_CB}, 8
    v_add_u32 v{VW}, s54, v{VW}
    """)
    def dma_stage(st):
        so = slot_of(st) * 32768
        for i in range(4):
            A(f"""
            s_add_u32 m0, s49, {so + i*1024}
            s_add_u32 s54, s51, {i*10240}
            buffer_load_dwordx4 v{VXO if i % 2 else VXE}, s[{R_A}:{R_A+3}], s54 offen lds""")
        for i in range(4):
            A(f"""
            s_add_u32 m0, s49, {so + 16384 + i*1024}
            s_add_u32 s54, s52, {i*15360}
            buffer_load_dwordx4 v{VW}, s[{R_B}:{R_B+3}], s54 offen lds""")
        A("""
        s_add_u32 s50, s50, 1
        s_cmp_eq_u32 s50, 10
        s_cselect_b32 s50, 0, s50
        s_lshl_b32 s51, s50, 7
        s_mul_i32 s52, s50, 245760
        s_add_u32 s52, s52, s53""")
    for st in range(3): dma_stage(st)
    lds_add(A, C_ISS, 2, 3)
    A("s_waitcnt vmcnt(16)\ns_barrier")
    stp(A, "b0")
    for s_ in range(1, 8):
        A("s_waitcnt vmcnt(8)\ns_barrier")
        dma_stage(s_ + 2)
    A("s_waitcnt vmcnt(8)\ns_barrier")
    A("s_waitcnt vmcnt(0)\ns_barrier")
    stp(A, "b9")
    A(f"s_branch {L_heads}")

    A.label(L_nog)
    lds_add_n = None
    A(f"""
    v_mov_b32 v2, {CNT + C_QKV}
    v_mov_b32 v3, 4
    ds_write_b32 v2, v3
    """)

    A.label(L_heads)
    Q1, Q2 = 4, 8
    O = 16
    S = [32, 48]
    P = [64, 72]
    KA, KB, V0, V1 = 80, 84, 88, 92
    AK = [96, 99]; AK2 = [97, 100]; AV = [98, 101]
    KA0, KB0 = 104, 108
    WOV = 120
    VG = [126, 127, 128]; VKP, VKS, VVF = 129, 130, 131
    A(f"""
    s_lshl_b32 s43, s{S_XCD}, 2
    s_lshr_b32 s44, s{S_J}, 3
    s_add_u32 s43, s43, s44        ; head
    s_and_b32 s44, s{S_J}, 7       ; qb
    s_lshl_b32 s46, s44, 3
    s_add_u32 s46, s46, s{S_WAVE}  ; q tile
    s_mov_b32 s47, {hex(HEADWORD[0])}
    """)
    for h in range(1, 32):
        A(f"s_cmp_eq_u32 s43, {h}\ns_cmov_b32 s47, {hex(HEADWORD[h])}")
    for k, dst in enumerate((50, 51, 52)):
        A(f"""
        s_bfe_u32 s54, s47, {hex((3 << 16) | (7*k))}
        s_bfe_u32 s55, s47, {hex((4 << 16) | (7*k + 3))}
        s_mul_i32 s54, s54, {SEC}
        s_lshl_b32 s55, s55, 9
        s_add_u32 s{dst}, s54, s55""")
    A(f"""
    v_and_b32 v3, 31, v0           ; n
    v_lshrrev_b32 v12, 5, v0       ; h
    v_lshlrev_b32 v13, 4, v3       ; n*16
    v_cmp_eq_u32 vcc, 0, v12
    v_mov_b32 v14, s50
    v_mov_b32 v15, s51
    v_cndmask_b32 v14, v15, v14, vcc
    v_add_u32 v{VKP}, v14, v13
    s_and_b32 s54, s43, 1
    s_lshl_b32 s54, s54, 3
    s_add_u32 s54, s54, s52
    v_add_u32 v{VKS}, s54, v13
    v_add_u32 v{VG[0]}, {5*SEC + 2*TB}, v{VKP}
    s_mul_i32 s53, s43, 20
    s_add_u32 s45, s53, 19
    s_lshr_b32 s45, s45, 7
    s_add_u32 s45, s45, 10
    s_mul_i32 s45, s45, {SEC}
    s_add_u32 s45, s45, 8192
    """)
    def vchunk(dst, seg_v, m_v):
        A(f"""
        v_add_u32 v5, s53, v{m_v}          ; F
        v_lshrrev_b32 v6, 7, v5
        v_add_u32 v6, 10, v6
        v_mul_u32_u24 v6, {SEC // 64}, v6
        v_lshlrev_b32 v6, 6, v6
        v_bfe_u32 v7, v5, 5, 2
        v_lshlrev_b32 v7, 10, v7
        v_add_u32 v6, v6, v7
        v_and_b32 v7, 31, v5
        v_lshl_add_u32 v6, v7, 4, v6
        v_lshrrev_b32 v7, 1, v{seg_v}
        v_lshl_add_u32 v6, v7, 12, v6
        v_and_b32 v7, 1, v{seg_v}
        v_lshl_add_u32 v6, v7, 9, v6
        v_subrev_u32 v7, 20, v{m_v}
        v_and_b32 v7, 3, v7
        v_lshlrev_b32 v7, 4, v7
        v_add_u32 v7, s45, v7
        v_cmp_gt_u32 vcc, 20, v{m_v}
        s_nop 1
        v_cndmask_b32 v{dst}, v7, v6, vcc
        """)
    A("""
    v_cmp_gt_u32 vcc, 56, v0
    v_subrev_u32 v8, 32, v0
    v_subrev_u32 v9, 56, v0
    v_cndmask_b32 v8, v9, v8, vcc          ; m
    v_mov_b32 v9, 1
    v_mov_b32 v10, 0
    v_cndmask_b32 v9, v9, v10, vcc         ; seg
    """)
    vchunk(11, 9, 8)
    A(f"""
    v_add_u32 v6, s52, v13
    v_add_u32 v6, {5*SEC + 2*TB}, v6
    v_cmp_gt_u32 vcc, 32, v0
    s_nop 1
    v_cndmask_b32 v{VG[1]}, v11, v6, vcc
    v_cmp_gt_u32 vcc, 16, v0
    v_cmp_gt_u32 s[54:55], 40, v0
    v_subrev_u32 v8, 40, v0
    v_subrev_u32 v10, 16, v0
    v_cndmask_b32 v8, v8, v10, s[54:55]
    v_add_u32 v10, 8, v0
    v_cndmask_b32 v8, v8, v10, vcc         ; m
    v_mov_b32 v9, 3
    v_mov_b32 v10, 2
    v_cndmask_b32 v9, v9, v10, s[54:55]
    v_mov_b32 v10, 1
    v_cndmask_b32 v9, v9, v10, vcc         ; seg
    """)
    vchunk(VG[2], 9, 8)
    A("v_mov_b32 v8, v3\nv_mov_b32 v9, v12")
    vchunk(VVF, 9, 8)
    srd(A, R_A, P_WO, 640 * 640 * 2)
    A(f"s_and_b32 s52, s{S_J}, 7\ns_mul_i32 s52, s52, 160")
    for b in range(5):
        A(f"""
        v_add_u32 v5, {64*b}, v0
        v_mul_u32_u24 v6, 52429, v5
        v_lshrrev_b32 v6, 19, v6
        v_mul_u32_u24 v7, 10, v6
        v_sub_u32 v7, v5, v7
        v_mul_u32_u24 v6, 1280, v6
        v_lshl_add_u32 v6, v7, 4, v6
        v_add_u32 v{WOV+b}, s52, v6""")
    A(f"""
    s_mul_i32 s53, s{S_WAVE}, 5120
    s_mul_i32 s62, s{S_WAVE}, 40960
    s_mov_b32 s60, 0
    v_lshlrev_b32 v2, 4, v0
    v_mul_u32_u24 v13, 384, v12
    v_lshl_add_u32 v13, v3, 4, v13
    v_add_u32 v{AV[0]}, 1536, v13
    v_mov_b32 v{AK[0]}, v2
    s_and_b32 s54, s43, 1
    s_lshl_b32 s54, s54, 3
    s_add_u32 s54, s54, 1024
    v_lshlrev_b32 v1, 4, v3
    v_add_u32 v{AK2[0]}, s54, v1
    v_add_u32 v{AV[1]}, {CHUNK}, v{AV[0]}
    v_add_u32 v{AK[1]}, {CHUNK}, v{AK[0]}
    v_add_u32 v{AK2[1]}, {CHUNK}, v{AK2[0]}
    v_cmp_lt_u32 vcc, 20, v3
    v_mov_b32 v5, 0x30000
    v_mov_b32 v{Q2+2}, 0
    v_cndmask_b32 v{AV[0]}, v{AV[0]}, v5, vcc
    v_cndmask_b32 v{AV[1]}, v{AV[1]}, v5, vcc
    v_mov_b32 v{Q2+3}, 0
    v_mov_b32 v{KB+2}, 0
    v_mov_b32 v{KB+3}, 0
    v_mov_b32 v{KB0+2}, 0
    v_mov_b32 v{KB0+3}, 0
    s_mul_i32 s45, s46, {TB}
    s_mul_i32 s49, s{S_WAVE}, {REC}
    s_mul_i32 s50, s{S_WAVE}, {TB}
    """)
    stp(A, "hset")
    L_gow = A.newlabel("gow"); L_go = A.newlabel("go")
    A(f"""
    s_cmp_lg_u32 s{S_WAVE}, 0
    s_cbranch_scc1 {L_gow}
    """)
    lds_wait(A, C_QKV, 5, 6, val=4)
    lds_wait(A, C_INIT, 5, 6)
    A(f"""
    s_mul_i32 s54, s43, 5
    s_add_u32 s55, s54, 4
    s_lshr_b32 s54, s54, 5             ; c0
    s_lshr_b32 s55, s55, 5             ; c1
    v_and_b32 v5, 1, v0
    v_cmp_eq_u32 vcc, 1, v5
    v_mov_b32 v6, s54
    v_mov_b32 v7, s55
    v_cndmask_b32 v6, v6, v7, vcc
    v_lshrrev_b32 v5, 1, v0
    v_mul_u32_u24 v5, 5, v5
    v_add_u32 v5, v5, v6
    v_lshlrev_b32 v5, 7, v5
    v_add_u32 v5, {SYNC + 128*(FLG + L_QKV)}, v5
    v_cmp_gt_u32 vcc, 6, v0
    v_mov_b32 v6, 1
    s_nop 0
    v_cndmask_b32 v7, 0, v6, vcc
    """)
    poll(A, 5, 7, 6, sleep=E("PS_QKV", 3))
    lds_set(A, C_GO, 5, 6)
    A(f"s_branch {L_go}")
    A.label(L_gow)
    lds_wait(A, C_GO, 5, 6)
    A.label(L_go)
    stp(A, "go")
    A(f"""
    buffer_load_dwordx4 {v(Q1,4)}, v{VKP}, s[{R_WS}:{R_WS+3}], s45 offen{SC}
    buffer_load_dwordx2 {v(Q2,2)}, v{VKS}, s[{R_WS}:{R_WS+3}], s45 offen{SC}
    s_mov_b32 s48, {5*SEC}
    buffer_load_dwordx4 {v(KA0,4)}, v{VKP}, s[{R_WS}:{R_WS+3}], s48 offen{SC}
    buffer_load_dwordx2 {v(KB0,2)}, v{VKS}, s[{R_WS}:{R_WS+3}], s48 offen{SC}
    s_mov_b32 s48, {5*SEC + TB}
    buffer_load_dwordx4 {v(KA,4)}, v{VKP}, s[{R_WS}:{R_WS+3}], s48 offen{SC}
    buffer_load_dwordx2 {v(KB,2)}, v{VKS}, s[{R_WS}:{R_WS+3}], s48 offen{SC}
    """)
    def kv_piece(chunk, i):
        slot = chunk % 2; rr, part = divmod(i, 3)
        return f"""
        s_add_u32 m0, s49, {slot*CHUNK + rr*8*REC + part*1024}
        s_add_u32 s51, s50, {(chunk*16 + rr*8)*TB}
        buffer_load_dwordx4 v{VG[part]}, s[{R_WS}:{R_WS+3}], s51 offen{SC} lds"""
    for i in range(6): A(kv_piece(0, i))
    for i in range(6): A(kv_piece(1, i))
    A(f"""
    v_cmp_gt_u32 vcc, 32, v0
    s_waitcnt vmcnt(6)
    s_nop 0
    v_cndmask_b32 v{Q2}, 0, v{Q2}, vcc
    v_cndmask_b32 v{Q2+1}, 0, v{Q2+1}, vcc
    """)
    stp(A, "kvok")
    lds_add(A, C_KV, 12, 13)
    lds_wait(A, C_KV, 12, 13, val=8, sleep=0)
    stp(A, "att0")

    def wo_piece(kind, b):
        if kind == 0:
            return f"""
            s_add_u32 m0, s53, {WO_A + b*1024}
            s_nop 0
            buffer_load_dwordx4 v{WOV+b}, s[{R_A}:{R_A+3}], s62 offen lds"""
        if kind == 2:
            return f"""
            s_add_u32 m0, s53, {b*1024}
            s_add_u32 s51, s62, {WO_BROW*1280}
            buffer_load_dwordx4 v{WOV+b}, s[{R_A}:{R_A+3}], s51 offen lds"""
        lab = A.newlabel("wos")
        if kind == 1: lim, ldso, go = 3, WO_A + 8*5120, 8*40960
        else: lim, ldso, go = (2 if b < 2 else 1), 8*5120, WO_BROW*1280 + 8*40960
        return f"""
            s_cmp_ge_u32 s{S_WAVE}, {lim}
            s_cbranch_scc1 {lab}
            s_add_u32 m0, s53, {ldso + b*1024}
            s_add_u32 s51, s62, {go}
            buffer_load_dwordx4 v{WOV+b}, s[{R_A}:{R_A+3}], s51 offen lds
            {lab}:"""
    def qk2(Sd, Kr):
        if E("K8", 0): return f"v_mfma_f32_32x32x8bf16_1k {v(Sd,16)}, {v(Kr,2)}, {v(Q2,2)}, {v(Sd,16)}"
        return f"v_mfma_f32_32x32x16_bf16 {v(Sd,16)}, {v(Kr,4)}, {v(Q2,4)}, {v(Sd,16)}"
    A(f"v_mfma_f32_32x32x16_bf16 {v(S[0],16)}, {v(KA0,4)}, {v(Q1,4)}, 0")
    A(qk2(S[0], KB0))
    A("s_nop 7\ns_nop 7")
    for J in range(64):
        c = J // 16; slot = c % 2; j = J % 16
        Sc, Sn = S[J % 2], S[(J + 1) % 2]
        Pc, Pp = P[J % 2], P[(J + 1) % 2]
        off = j * REC
        if j == 0 and J > 0:
            A(f"s_waitcnt vmcnt({5 if J == 32 else 0}) lgkmcnt(0)\ns_barrier")
        EX = lambda i: f"v_exp_f32 v{Sc+i}, v{Sc+i}"
        CV = lambda i: f"v_cvt_pk_bf16_f32 v{Pc+i}, v{Sc+2*i}, v{Sc+2*i+1}"
        G = [(EX(0),EX(1),EX(2),EX(3),CV(0),CV(1)), (EX(4),EX(5),EX(6),EX(7),CV(2),CV(3)), (EX(8),EX(9),EX(10),EX(11),CV(4),CV(5)), (EX(12),EX(13),EX(14),EX(15),CV(6),CV(7))]
        if j in (0, 9, 13, 15):
            A(f"s_setprio {dict([(0,3),(9,2),(13,1),(15,0)])[j]}")
        if J > 0 and j != 0: A("s_waitcnt lgkmcnt(2)")
        if J < 63: A(f"v_mfma_f32_32x32x16_bf16 {v(Sn,16)}, {v(KA,4)}, {v(Q1,4)}, 0")
        if J < 62: A(f"ds_read_b128 {v(KA,4)}, v{AK[slot]} offset:{off}")
        for x in G[0]: A(x)
        if J < 63: A(qk2(Sn, KB))
        if J < 62: A(f"ds_read_b64 {v(KB,2)}, v{AK2[slot]} offset:{off}")
        for x in G[1]: A(x)
        if J > 0:
            A("s_waitcnt lgkmcnt(2)" if J < 62 else "s_waitcnt lgkmcnt(0)")
            cc = "0" if J == 1 else v(O, 16)
            A(f"v_mfma_f32_32x32x16_bf16 {v(O,16)}, {v(V0,4)}, {v(Pp,4)}, {cc}")
        A(f"ds_read_b128 {v(V0,4)}, v{AV[slot]} offset:{off}")
        for x in G[2]: A(x)
        if J > 0: A(f"v_mfma_f32_32x32x16_bf16 {v(O,16)}, {v(V1,4)}, {v(Pp+4,4)}, {v(O,16)}")
        A(f"ds_read_b128 {v(V1,4)}, v{AV[slot]} offset:{off + 768}")
        if c in (1, 2) and j < 6: A(kv_piece(c + 1, j))
        if c == 1 and 6 <= j < 11: A(wo_piece(0, j - 6))
        if c == 1 and 11 <= j < 16: A(wo_piece(1, j - 11))
        if c == 3 and 1 <= j < 6: A(wo_piece(2, j - 1))
        if c == 3 and 6 <= j < 11: A(wo_piece(3, j - 6))
        for x in G[3]: A(x)
    stp(A, "att1")
    Pl = P[63 % 2]
    A("s_waitcnt lgkmcnt(0)")
    A(f"v_mfma_f32_32x32x16_bf16 {v(O,16)}, {v(V0,4)}, {v(Pl,4)}, {v(O,16)}")
    A(f"v_mfma_f32_32x32x16_bf16 {v(O,16)}, {v(V1,4)}, {v(Pl+4,4)}, {v(O,16)}")
    A("s_setprio 0")
    L_fin = A.newlabel("fin"); L_slow = A.newlabel("slow"); L_odone = A.newlabel("odone")
    def addr_calc():
        A(f"""
        s_lshl_b32 s52, s43, 6
        s_add_u32 s52, s52, s46
        s_mul_i32 s52, s52, 1536
        s_add_u32 s52, s52, {WS_O}
        v_lshlrev_b32 v104, 4, v0
        """)
    addr_calc()
    A("s_nop 7")
    A.label(L_fin)
    A("s_nop 7")
    A(f"""
    v_mov_b32 v110, v{O+8}
    v_mov_b32 v111, v{O+8}
    s_nop 1
    v_permlane32_swap_b32 v110, v111
    s_nop 1
    v_rcp_f32 v112, v111
    s_nop 0
    """)
    for i in range(0, 12, 2):
        A(f"v_pk_mul_f32 {v(O+i,2)}, {v(O+i,2)}, v[112:113] op_sel_hi:[1,0]")
    A(f"""
    v_add_f32 v113, abs(v{O}), abs(v{O+1})
    v_add_f32 v114, abs(v{O+8}), abs(v{O+9})
    """)
    for i in range(2, 8): A(f"v_add_f32 v113, v113, abs(v{O+i})")
    A(f"""
    v_add_f32 v114, v114, abs(v{O+10})
    v_add_f32 v114, v114, abs(v{O+11})
    v_cmp_gt_u32 vcc, 32, v0
    v_mov_b32 v115, 0x21800000         ; 2^-60
    v_mov_b32 v116, 0x5d800000         ; 2^60
    v_cndmask_b32 v114, 0, v114, vcc
    v_add_f32 v113, v113, v114
    v_mov_b32 v114, 0x7f800000
    v_cmp_nlt_f32 s[54:55], v113, v114
    v_cmp_ngt_f32 s[56:57], v111, v115
    v_cmp_nlt_f32 vcc, v111, v116
    s_nop 1
    s_or_b64 s[54:55], s[54:55], s[56:57]
    s_or_b64 s[54:55], s[54:55], vcc
    s_cmp_lg_u64 s[54:55], 0
    s_cselect_b32 s61, 1, 0
    s_andn2_b32 s61, s61, s60
    s_cmp_lg_u32 s61, 0
    s_cbranch_scc1 {L_slow}
    """)
    for i in range(4): A(f"v_cvt_pk_bf16_f32 v{O+i}, v{O+2*i}, v{O+2*i+1}")
    A(f"""
    v_cvt_pk_bf16_f32 v{O+8}, v{O+8}, v{O+9}
    v_cvt_pk_bf16_f32 v{O+9}, v{O+10}, v{O+11}
    v_mov_b32 v{O+10}, 0
    v_mov_b32 v{O+11}, 0
    buffer_store_dwordx4 {v(O,4)}, v104, s[{R_WS}:{R_WS+3}], s52 offen{SC}
    s_mov_b32 exec_hi, 0
    buffer_store_dwordx4 {v(O+8,4)}, v104, s[{R_WS}:{R_WS+3}], s52 offen offset:1024{SC}
    s_mov_b64 exec, -1
    s_branch {L_odone}
    """)
    A.label(L_slow)
    L1 = A.newlabel("p1"); L2 = A.newlabel("p2")
    A(f"""
    s_mov_b32 s60, 1
    v_mov_b32 v110, 0xff800000
    s_mov_b32 s52, 0
    {L1}:
    s_mul_i32 s63, s52, {TB}
    s_add_u32 s63, s63, {5*SEC}
    buffer_load_dwordx4 {v(KA,4)}, v{VKP}, s[{R_WS}:{R_WS+3}], s63 offen{SC}
    buffer_load_dwordx2 {v(KB,2)}, v{VKS}, s[{R_WS}:{R_WS+3}], s63 offen{SC}
    s_waitcnt vmcnt(0)
    v_mfma_f32_32x32x16_bf16 {v(S[0],16)}, {v(KA,4)}, {v(Q1,4)}, 0
    v_mfma_f32_32x32x16_bf16 {v(S[0],16)}, {v(KB,4)}, {v(Q2,4)}, {v(S[0],16)}
    s_nop 7
    s_nop 7
    """)
    for i in range(0, 16, 2): A(f"v_max3_f32 v110, v110, v{S[0]+i}, v{S[0]+i+1}")
    A(f"""
    s_add_u32 s52, s52, 1
    s_cmp_lt_u32 s52, 64
    s_cbranch_scc1 {L1}
    v_mov_b32 v108, v110
    v_mov_b32 v109, v110
    s_nop 1
    v_permlane32_swap_b32 v108, v109
    s_nop 1
    v_max_f32 v110, v108, v109
    v_and_b32 v3, 31, v0
    v_cmp_gt_u32 vcc, 20, v3
    v_add_u32 v108, 4096, v{VVF}
    s_nop 0
    v_cndmask_b32 v109, v{VVF}, v108, vcc
    """)
    for i in range(16): A(f"v_mov_b32 v{O+i}, 0")
    A("s_mov_b32 s52, 0")
    A.label(L2)
    A(f"""
    s_mul_i32 s54, s52, {TB}
    s_add_u32 s63, s54, {5*SEC}
    buffer_load_dwordx4 {v(KA,4)}, v{VKP}, s[{R_WS}:{R_WS+3}], s63 offen{SC}
    buffer_load_dwordx2 {v(KB,2)}, v{VKS}, s[{R_WS}:{R_WS+3}], s63 offen{SC}
    buffer_load_dwordx4 {v(V0,4)}, v{VVF}, s[{R_WS}:{R_WS+3}], s54 offen{SC}
    buffer_load_dwordx4 {v(V1,4)}, v109, s[{R_WS}:{R_WS+3}], s54 offen{SC}
    s_waitcnt vmcnt(0)
    v_mfma_f32_32x32x16_bf16 {v(S[0],16)}, {v(KA,4)}, {v(Q1,4)}, 0
    v_mfma_f32_32x32x16_bf16 {v(S[0],16)}, {v(KB,4)}, {v(Q2,4)}, {v(S[0],16)}
    s_nop 7
    s_nop 7
    """)
    for i in range(16): A(f"v_sub_f32 v{S[0]+i}, v{S[0]+i}, v110")
    for i in range(16): A(f"v_exp_f32 v{S[0]+i}, v{S[0]+i}")
    A("s_nop 0")
    for i in range(8): A(f"v_cvt_pk_bf16_f32 v{P[0]+i}, v{S[0]+2*i}, v{S[0]+2*i+1}")
    A(f"""
    s_nop 1
    v_mfma_f32_32x32x16_bf16 {v(O,16)}, {v(V0,4)}, {v(P[0],4)}, {v(O,16)}
    v_mfma_f32_32x32x16_bf16 {v(O,16)}, {v(V1,4)}, {v(P[0]+4,4)}, {v(O,16)}
    s_add_u32 s52, s52, 1
    s_cmp_lt_u32 s52, 64
    s_cbranch_scc1 {L2}
    s_nop 7
    """)
    addr_calc()
    A(f"s_branch {L_fin}")

    A.label(L_odone)
    OF = 32; AD = 80; OA = 88; VOUT, VRED = 91, 92; ACC3 = 96; WF = [116, 136]
    A(f"""
    s_lshl_b32 s54, s{S_XCD}, 2
    s_lshr_b32 s55, s{S_J}, 3
    s_add_u32 s54, s54, s55        ; tb
    s_lshl_b32 s54, s54, 2
    s_and_b32 s55, s{S_WAVE}, 3
    s_add_u32 s54, s54, s55        ; T
    s_lshr_b32 s45, s54, 1
    s_mul_i32 s45, s45, 1536
    s_and_b32 s57, s54, 1
    s_lshl_b32 s57, s57, 8
    s_add_u32 s45, s45, s57
    s_add_u32 s45, s45, {WS_O}
    s_lshr_b32 s57, s{S_WAVE}, 2
    s_mul_i32 s57, s57, {16*64*1536}
    s_add_u32 s62, s45, s57
    v_lshrrev_b32 v5, 4, v0            ; kg
    v_and_b32 v6, 15, v0
    v_lshlrev_b32 v6, 4, v6
    """)
    for c in range(3):
        A(f"""
        v_add_u32 v8, {4*c}, v5
        v_mul_u32_u24 v9, 21846, v8
        v_lshrrev_b32 v9, 16, v9
        v_mul_u32_u24 v10, 3, v9
        v_sub_u32 v10, v8, v10
        v_mul_u32_u24 v9, 1536, v9
        v_lshlrev_b32 v9, 6, v9
        v_lshl_add_u32 v9, v10, 9, v9
        v_add_u32 v{OA+c}, v9, v6""")
    A(f"""
    v_and_b32 v3, 15, v0
    s_lshl_b32 s55, s54, 4
    v_add_u32 v3, s55, v3
    v_mul_u32_u24 v3, 2560, v3
    v_lshrrev_b32 v4, 4, v0
    v_lshl_add_u32 v3, v4, 3, v3
    s_and_b32 s55, s{S_J}, 7
    s_mul_i32 s55, s55, 160
    v_add_u32 v{VOUT}, s55, v3
    v_lshlrev_b32 v3, 4, v0
    s_and_b32 s55, s{S_WAVE}, 3
    s_mul_i32 s55, s55, 5120
    s_add_u32 s55, s55, {RED}
    v_add_u32 v{VRED}, s55, v3
    v_bfe_u32 v6, v0, 2, 2             ; r
    v_and_b32 v7, 3, v0
    v_lshlrev_b32 v7, 3, v7            ; 8*c4
    s_mov_b32 s59, {WO_A}
    """)
    def row_addr(dst0, s, region):
        A(f"""
        v_add_u32 v8, {4*s}, v5
        v_mul_u32_u24 v9, 21846, v8
        v_lshrrev_b32 v9, 16, v9
        v_mul_u32_u24 v10, 3, v9
        v_sub_u32 v10, v8, v10
        v_mul_u32_u24 v9, 20, v9
        v_add_u32 v9, v9, v6
        v_lshlrev_b32 v11, 2, v10
        v_cmp_eq_u32 vcc, 2, v10
        v_add_u32 v12, 8, v11
        v_lshlrev_b32 v13, 1, v11
        v_cndmask_b32 v11, v11, v13, vcc
        v_add_u32 v11, v11, v9
        v_add_u32 v12, v12, v9
        """)
        for hh, rv in enumerate((11, 12)):
            if region == "A":
                A(f"v_mul_u32_u24 v13, 160, v{rv}\nv_add3_u32 v{dst0+hh}, v13, v7, s59")
            elif region == "B":
                A(f"v_subrev_u32 v13, {WO_BROW}, v{rv}\nv_mul_u32_u24 v13, 160, v13\nv_add_u32 v{dst0+hh}, v13, v7")
            else:
                A(f"""
                v_mul_u32_u24 v13, 160, v{rv}
                v_add3_u32 v14, v13, v7, s59
                v_subrev_u32 v13, {WO_BROW*160}, v13
                v_add_u32 v13, v13, v7
                v_cmp_gt_u32 vcc, {WO_BROW}, v{rv}
                s_nop 1
                v_cndmask_b32 v{dst0+hh}, v13, v14, vcc""")
    L_ahi = A.newlabel("ahi"); L_adone = A.newlabel("adone")
    stp(A, "ostored")
    A("s_waitcnt vmcnt(0)")
    stp(A, "odrained")
    L_os = A.newlabel("os")
    lds_arrive_last(A, C_O, 8, L_os, 2, 3)
    A(f"s_add_u32 s65, s44, {L_O}")
    global_arrive(A, "s65", 32, 2, 3)
    A.label(L_os)
    A(f"""
    s_cmp_ge_u32 s{S_WAVE}, 4
    s_cbranch_scc1 {L_ahi}
    """)
    for c in range(3): row_addr(AD + 2*c, c, "A")
    A(f"s_branch {L_adone}")
    A.label(L_ahi)
    row_addr(AD + 6, 12, None)
    for c in range(3): row_addr(AD + 2*c, 13 + c, "B")
    A.label(L_adone)
    srd(A, R_B, P_OUT, 2048 * 1280 * 2)
    L_p3a = A.newlabel("p3a"); L_post = A.newlabel("post"); L_t3 = A.newlabel("t3"); L_tgo = A.newlabel("tgo")
    A(f"""
    s_cmp_eq_u32 s{S_WAVE}, 0
    s_cbranch_scc0 {L_post}
    s_lshl_b32 s54, s{S_XCD}, 7
    s_add_u32 s54, s54, {SYNC + 128*(FLG + L_O)}
    v_mov_b32 v2, s54
    v_cmp_eq_u32 vcc, 0, v0
    v_mov_b32 v3, 1
    s_nop 0
    v_cndmask_b32 v4, 0, v3, vcc
    """)
    poll(A, 2, 4, 3, sleep=E("PS_O", 3))
    stp(A, "ook")
    A(f"s_branch {L_p3a}")
    A.label(L_post)
    A(f"""
    s_cmp_ge_u32 s{S_WAVE}, 4
    s_cbranch_scc1 {L_p3a}
    s_cmp_eq_u32 s{S_WAVE}, 3
    s_cbranch_scc1 {L_t3}
    s_lshl_b32 s56, s2, 1
    s_sub_u32 s57, s{S_WAVE}, 1
    s_add_u32 s56, s56, s57
    s_branch {L_tgo}
    {L_t3}:
    s_cmp_ge_u32 s2, 128
    s_cbranch_scc1 {L_p3a}
    s_add_u32 s56, s2, 512
    {L_tgo}:
    s_mul_i32 s57, s56, 52429
    s_lshr_b32 s57, s57, 19
    s_mul_i32 s58, s57, 10
    s_sub_u32 s58, s56, s58
    """)
    srd(A, R_C, P_BQ, 2048 * 640 * 2)
    A(f"""
    v_and_b32 v2, 7, v0
    v_lshrrev_b32 v3, 3, v0
    s_lshl_b32 s54, s58, 6
    v_lshl_add_u32 v2, v2, 3, s54
    s_lshl_b32 s55, s57, 5
    v_lshl_add_u32 v3, v3, 2, s55
    v_mul_u32_u24 v4, 1280, v3
    v_lshl_add_u32 v8, v2, 1, v4
    v_lshlrev_b32 v5, 12, v2
    v_lshl_add_u32 v5, v3, 1, v5
    v_add_u32 v9, {WS_Z}, v5
    v_mul_u32_u24 v6, 2560, v3
    v_lshl_add_u32 v6, v2, 1, v6
    v_add_u32 v10, 1280, v6
    """)
    for j in range(4):
        A(f"buffer_load_dwordx4 {v(32+4*j,4)}, v8, s[{R_C}:{R_C+3}], 0 offen offset:{1280*j}")
    poll_flags(A, L_Z, 8, 2, 4, 3)
    for i in range(8):
        A(f"s_mov_b32 s54, {i*4096}")
        A(f"buffer_load_dwordx2 {v(16+2*i,2)}, v9, s[{R_WS}:{R_WS+3}], s54 offen{SC}")
    A("s_waitcnt vmcnt(0)")
    for j in range(4):
        for q in range(4):
            za = 16 + 2*(2*q) + j//2; zb = 16 + 2*(2*q+1) + j//2
            if j % 2 == 0:
                A(f"v_lshlrev_b32 v48, 16, v{za}\nv_lshlrev_b32 v49, 16, v{zb}")
            else:
                A(f"v_and_b32 v48, 0xffff0000, v{za}\nv_and_b32 v49, 0xffff0000, v{zb}")
            qq = 32 + 4*j + q
            A(f"v_lshlrev_b32 v50, 16, v{qq}\nv_and_b32 v51, 0xffff0000, v{qq}")
            A(f"v_pk_mul_f32 v[48:49], v[48:49], v[50:51]")
            A(f"v_cvt_pk_bf16_f32 v{52+4*j+q}, v48, v49")
        A(f"s_mov_b32 s54, {j*2560}")
        A(f"buffer_store_dwordx4 {v(52+4*j,4)}, v10, s[{R_B}:{R_B+3}], s54 offen")
    A.label(L_p3a)
    stp(A, "prep3a")
    A("s_barrier")
    stp(A, "p3a")
    for st in range(12):
        if st % 3 == 0: A(f"s_add_u32 s58, s62, {(st//3)*4*64*1536}")
        A(f"buffer_load_dwordx4 {v(OF+4*st,4)}, v{OA + st % 3}, s[{R_WS}:{R_WS+3}], s58 offen{SC}")
    def p3_loop(hi):
        if not hi: sel = lambda st: (AD + 2*(st % 3), (st // 3) * 12800)
        else: sel = lambda st: (AD + 6, 0) if st == 0 else (AD + 2*((st - 1) % 3), ((st - 1) // 3) * 12800)
        def rd(st, setid):
            base, so = sel(st); r = []
            for T in range(5):
                r.append(f"ds_read_b64_tr_b16 {v(WF[setid]+4*T,2)}, v{base} offset:{so + 32*T}")
                r.append(f"ds_read_b64_tr_b16 {v(WF[setid]+4*T+2,2)}, v{base+1} offset:{so + 32*T}")
            return r
        for r in rd(0, 0): A(r)
        for st in range(12):
            setid = st % 2
            A(f"s_waitcnt vmcnt({11-st}) lgkmcnt(0)")
            rs = rd(st + 1, 1 - setid) if st < 11 else []
            for T in range(5):
                cc = "0" if st == 0 else v(ACC3+4*T, 4)
                A(f"v_mfma_f32_16x16x32_bf16 {v(ACC3+4*T,4)}, {v(WF[setid]+4*T,4)}, {v(OF+4*st,4)}, {cc}")
                for r in rs[2*T:2*T+2]: A(r)
        A("s_nop 7")
    L_hi = A.newlabel("p3hi")
    A(f"""
    s_cmp_ge_u32 s{S_WAVE}, 4
    s_cbranch_scc1 {L_hi}
    """)
    p3_loop(False)
    A("s_barrier")
    for T in range(5): A(f"ds_read_b128 {v(32+4*T,4)}, v{VRED} offset:{1024*T}")
    A("s_waitcnt lgkmcnt(0)")
    for T in range(5):
        d = ACC3 + 4*T
        A(f"v_pk_add_f32 {v(d,2)}, {v(d,2)}, {v(32+4*T,2)}")
        A(f"v_pk_add_f32 {v(d+2,2)}, {v(d+2,2)}, {v(34+4*T,2)}")
        A(f"v_cvt_pk_bf16_f32 v{d}, v{d}, v{d+1}")
        A(f"v_cvt_pk_bf16_f32 v{d+1}, v{d+2}, v{d+3}")
        A(f"buffer_store_dwordx2 {v(d,2)}, v{VOUT}, s[{R_B}:{R_B+3}], 0 offen offset:{32*T}")
    prof_dump(A, 0, wsptr=P_WS)
    A("s_endpgm")
    A.label(L_hi)
    p3_loop(True)
    for T in range(5): A(f"ds_write_b128 v{VRED}, {v(ACC3+4*T,4)} offset:{1024*T}")
    A("s_waitcnt lgkmcnt(0)\ns_barrier")
    prof_dump(A, 0, wsptr=P_WS)
    A("s_endpgm")

    A.label(L_bw)
    BK, BV, BW = 16, 44, 60
    def b_setup(notask):
        L2_ = A.newlabel("b2"); Lgo = A.newlabel("bgo")
        A(f"""
        s_cmp_eq_u32 s{S_WAVE}, 10
        s_cbranch_scc1 {L2_}
        s_lshl_b32 s56, s2, 1
        s_sub_u32 s57, s{S_WAVE}, 8
        s_add_u32 s56, s56, s57
        s_branch {Lgo}
        {L2_}:
        s_cmp_ge_u32 s2, 128
        s_cbranch_scc1 {notask}
        s_add_u32 s56, s2, 512
        {Lgo}:
        s_mul_i32 s57, s56, 52429
        s_lshr_b32 s57, s57, 19        ; tblk
        s_mul_i32 s58, s57, 10
        s_sub_u32 s58, s56, s58        ; dblk
        v_and_b32 v2, 7, v0            ; dg
        v_lshrrev_b32 v3, 3, v0        ; tg
        v_lshlrev_b32 v12, 6, v2
        v_lshl_add_u32 v12, v3, 3, v12
        s_lshl_b32 s54, s56, 12
        s_add_u32 s54, s54, {WS_U}
        v_add_u32 v12, s54, v12
        s_lshl_b32 s54, s58, 6
        v_lshl_add_u32 v2, v2, 3, s54  ; d0
        s_lshl_b32 s55, s57, 5
        v_lshl_add_u32 v3, v3, 2, s55  ; t0
        v_mul_u32_u24 v4, 1280, v3
        v_lshl_add_u32 v10, v2, 1, v4
        v_lshlrev_b32 v11, 3, v2
        v_subrev_u32 v5, 3840, v10
        v_subrev_u32 v6, 2560, v10
        v_subrev_u32 v7, 1280, v10
        """)
    def b_loads():
        srd(A, R_C, P_BK, 2048 * 640 * 2)
        A(f"""
        buffer_load_dwordx4 {v(BK,4)}, v5, s[{R_C}:{R_C+3}], 0 offen
        buffer_load_dwordx4 {v(BK+4,4)}, v6, s[{R_C}:{R_C+3}], 0 offen
        buffer_load_dwordx4 {v(BK+8,4)}, v7, s[{R_C}:{R_C+3}], 0 offen
        """)
        for j in range(4): A(f"buffer_load_dwordx4 {v(BK+12+4*j,4)}, v10, s[{R_C}:{R_C+3}], 0 offen offset:{1280*j}")
        srd(A, R_C, P_BV, 2048 * 640 * 2)
        for j in range(4): A(f"buffer_load_dwordx4 {v(BV+4*j,4)}, v10, s[{R_C}:{R_C+3}], 0 offen offset:{1280*j}")
        srd(A, R_C, P_SH, 640 * 4 * 2)
        for j in range(4): A(f"buffer_load_dwordx4 {v(BW+4*j,4)}, v11, s[{R_C}:{R_C+3}], 0 offen offset:{16*j}")
    def b_compute(q):
        KP, VP, WP, AC, OUT = 80, 94, 102, 110, 120
        for j in range(7):
            A(f"v_lshlrev_b32 v{KP+2*j}, 16, v{BK+4*j+q}\nv_and_b32 v{KP+1+2*j}, 0xffff0000, v{BK+4*j+q}")
        for t in range(4):
            A(f"v_lshlrev_b32 v{VP+2*t}, 16, v{BV+4*t+q}\nv_and_b32 v{VP+1+2*t}, 0xffff0000, v{BV+4*t+q}")
        for u in range(2):
            bb = BW + 4*q + 2*u
            A(f"v_lshlrev_b32 v{WP+u}, 16, v{bb}\nv_and_b32 v{WP+2+u}, 0xffff0000, v{bb}")
            A(f"v_lshlrev_b32 v{WP+4+u}, 16, v{bb+1}\nv_and_b32 v{WP+6+u}, 0xffff0000, v{bb+1}")
        for t in range(4):
            acc = AC + 2*t
            A(f"v_pk_mul_f32 {v(acc,2)}, {v(KP+2*(t+0),2)}, {v(WP+6,2)}")
            A(f"v_pk_fma_f32 {v(acc,2)}, {v(KP+2*(t+1),2)}, {v(WP+4,2)}, {v(acc,2)}")
            A(f"v_pk_fma_f32 {v(acc,2)}, {v(KP+2*(t+2),2)}, {v(WP+2,2)}, {v(acc,2)}")
            A(f"v_pk_fma_f32 {v(acc,2)}, {v(KP+2*(t+3),2)}, {v(WP,2)}, {v(acc,2)}")
            A(f"v_pk_mul_f32 {v(acc,2)}, {v(acc,2)}, {v(VP+2*t,2)}")
        for u in range(2):
            o = OUT + 4*q + 2*u
            A(f"v_cvt_pk_bf16_f32 v{o}, v{AC+u}, v{AC+2+u}\nv_cvt_pk_bf16_f32 v{o+1}, v{AC+4+u}, v{AC+6+u}")
        for u in range(2):
            o = OUT + 4*q + 2*u
            A(f"buffer_store_dwordx2 {v(o,2)}, v12, s[{R_WS}:{R_WS+3}], 0 offen offset:{(2*q+u)*512}{SC}")
    def init_load():
        A(f"v_mov_b32 v2, 0\nglobal_load_dword v9, v2, s[{P_DBG}:{P_DBG+1}] sc1")
    def u_publish(n):
        A(f"s_waitcnt vmcnt({n})")
        Lok = A.newlabel("iok"); Lsk = A.newlabel("usk")
        A(f"""
        v_readfirstlane_b32 s66, v9
        s_nop 3
        s_cmp_lg_u32 s66, 0
        s_cbranch_scc1 {Lok}
        v_mov_b32 v2, 0
        v_mov_b32 v3, 1
        """)
        poll(A, 2, 3, 4, sleep=8, base=P_DBG)
        A.label(Lok)
        lds_set(A, C_INIT, 2, 3)
        A("s_cmp_lt_u32 s2, 128\ns_cselect_b32 s64, 3, 2")
        lds_arrive_last(A, C_U, "s64", Lsk, 2, 3)
        A(f"""
        s_and_b32 s66, s2, 7
        s_add_u32 s66, s66, {L_U}
        s_lshl_b32 s66, s66, 7
        s_add_u32 s66, s66, {SYNC}
        v_mov_b32 v2, s66
        v_mov_b32 v3, 1
        s_mov_b64 exec, 1
        global_atomic_add v2, v3, s[{P_WS}:{P_WS+1}] sc1
        s_mov_b64 exec, -1
        {Lsk}:
        """)
    def hcopy_setup():
        srd(A, R_C, P_SK, 640 * 4096)
        A(f"""
        s_sub_u32 s57, s{S_WAVE}, 8
        s_mul_i32 s57, s57, {CONV_SZ}
        s_add_u32 s57, s57, {CONV_BASE}
        s_lshl_b32 s58, s56, 12
        v_lshlrev_b32 v13, 4, v0
        v_add_u32 v13, s58, v13
        """)
    def hcopy_part(r):
        for p in range(4):
            dlt = 1024*p - 2*r
            A(f"v_add_u32 v14, {dlt}, v13" if dlt >= 0 else f"v_subrev_u32 v14, {-dlt}, v13")
            A(f"""
            s_add_u32 m0, s57, {r*COPY + 32 + p*1024}
            s_nop 0
            buffer_load_dwordx4 v14, s[{R_C}:{R_C+3}], 0 offen lds""")
        if r == 3:
            A(f"v_mov_b32 v14, s58\nbuffer_load_dwordx4 v[160:163], v14, s[{R_C}:{R_C+3}], 0 offen")
    def hcopy_dma():
        hcopy_setup()
        for r in range(4): hcopy_part(r)
    L_bnog = A.newlabel("bnog"); L_bnt = A.newlabel("bnt"); L_sync = A.newlabel("sync"); L_bntn = A.newlabel("bntn")
    A(f"""
    s_cmp_ge_u32 s{S_CB}, 15
    s_cbranch_scc1 {L_bnog}
    """)
    b_setup(L_bnt)
    if E("BISS", 0): lds_wait(A, C_ISS, 2, 3, val=4, sleep=1)
    b_loads()
    A("s_waitcnt vmcnt(0)")
    stp(A, "blok")
    for q in range(4): b_compute(q)
    init_load()
    npub = E("NPUB", 3)
    for _ in range(npub): A("s_barrier")
    u_publish(0)
    stp(A, "upub")
    A("s_barrier")
    hcopy_setup()
    nb = npub + 1
    for r in range(4):
        hcopy_part(r)
        A("s_barrier"); nb += 1
    for _ in range(10 - nb): A("s_barrier")
    stp(A, "b9")
    A(f"s_branch {L_conv}")
    A.label(L_bnt)
    A(f"s_branch {L_exit}")
    A.label(L_bnog)
    L_noz = A.newlabel("noz")
    A(f"""
    s_cmp_lg_u32 s2, {ZERO_WG}
    s_cbranch_scc1 {L_noz}
    s_cmp_lg_u32 s{S_WAVE}, 10
    s_cbranch_scc1 {L_noz}
    v_lshlrev_b32 v2, 4, v0
    v_add_u32 v2, {SYNC}, v2
    v_mov_b32 v4, 0
    v_mov_b32 v5, 0
    v_mov_b32 v6, 0
    v_mov_b32 v7, 0
    """)
    for i in range(10):
        A(f"s_mov_b32 s54, {1024*i}\nbuffer_store_dwordx4 v[4:7], v2, s[{R_WS}:{R_WS+3}], s54 offen sc1")
    A(f"""
    s_waitcnt vmcnt(0)
    v_mov_b32 v2, 0
    v_mov_b32 v3, 1
    s_mov_b64 exec, 1
    global_store_dword v2, v3, s[{P_DBG}:{P_DBG+1}] sc1
    s_mov_b64 exec, -1
    {L_noz}:
    """)
    b_setup(L_exit)
    b_loads()
    A("s_waitcnt vmcnt(0)")
    for q in range(4): b_compute(q)
    init_load()
    hcopy_dma()
    u_publish(17)
    A(f"s_branch {L_conv}")

    A.label(L_conv)
    A(f"""
    s_lshr_b32 s59, s56, 1
    s_lshl_b32 s59, s59, 2
    s_load_dword s60, s[{P_SD}:{P_SD+1}], s59
    v_mov_b32 v12, 0
    v_mov_b32 v13, 0
    v_mov_b32 v14, 0
    v_mov_b32 v15, 0
    v_lshlrev_b32 v6, 3, v0
    v_add_u32 v6, s57, v6
    v_add_u32 v6, {4*COPY}, v6
    v_cmp_gt_u32 vcc, 60, v0
    s_and_saveexec_b64 s[54:55], vcc
    ds_write_b64 v6, v[12:13]
    s_mov_b64 exec, s[54:55]
    v_and_b32 v6, 1, v0
    v_lshlrev_b32 v6, 4, v6
    v_lshrrev_b32 v7, 1, v0
    v_mul_u32_u24 v7, {COPY}, v7
    v_add3_u32 v6, v6, v7, s57
    v_cmp_gt_u32 vcc, 8, v0
    s_and_saveexec_b64 s[54:55], vcc
    ds_write_b128 v6, v[12:15]
    s_mov_b64 exec, s[54:55]
    s_lshr_b32 s54, s56, 6
    s_and_b32 s55, s56, 63
    s_and_b32 s61, s55, 7
    s_lshr_b32 s55, s55, 3
    s_lshl_b32 s61, s61, 9
    s_lshl_b32 s55, s55, 6
    s_add_u32 s61, s61, s55
    s_lshl_b32 s54, s54, 12
    s_add_u32 s61, s61, s54
    s_add_u32 s61, s61, {WS_U}
    v_lshrrev_b32 v8, 2, v0
    v_mul_u32_u24 v8, 40960, v8
    v_and_b32 v9, 3, v0
    v_lshl_add_u32 v8, v9, 4, v8
    """)
    L_uw = A.newlabel("uw"); L_ud = A.newlabel("ud")
    A(f"s_cmp_lg_u32 s{S_WAVE}, 8\ns_cbranch_scc1 {L_uw}")
    A(f"""
    v_lshlrev_b32 v2, 7, v0
    v_add_u32 v2, {SYNC + 128*L_U}, v2
    v_cmp_gt_u32 vcc, 8, v0
    v_mov_b32 v3, 32
    s_nop 0
    v_cndmask_b32 v4, 0, v3, vcc
    """)
    poll(A, 2, 4, 3, sleep=E("PS_U", 24))
    lds_set(A, C_UOK, 2, 3)
    A(f"s_branch {L_ud}")
    A.label(L_uw)
    lds_wait(A, C_UOK, 2, 3)
    A("s_waitcnt vmcnt(0)")
    A.label(L_ud)
    stp(A, "uok")
    for p in range(4):
        A(f"""
        s_add_u32 m0, s57, {4*COPY + 480 + p*1024}
        s_add_u32 s54, s61, {p*16*40960}
        buffer_load_dwordx4 v8, s[{R_WS}:{R_WS+3}], s54 offen{SC} lds""")
    A(f"""
    v_lshlrev_b32 v16, 16, v160
    v_alignbit_b32 v17, v161, v160, 16
    v_alignbit_b32 v18, v162, v161, 16
    v_alignbit_b32 v19, v163, v162, 16
    v_mov_b32 v20, 0
    v_mov_b32 v21, v160
    v_mov_b32 v22, v161
    v_mov_b32 v23, v162
    v_mov_b32 v24, 0
    v_mov_b32 v25, v16
    v_mov_b32 v26, v17
    v_mov_b32 v27, v18
    v_mov_b32 v6, s57
    s_mov_b64 exec, 1
    ds_write_b128 v6, v[16:19] offset:{1*COPY + 32}
    ds_write_b128 v6, v[20:23] offset:{2*COPY + 32}
    ds_write_b128 v6, v[24:27] offset:{3*COPY + 32}
    s_mov_b64 exec, -1
    v_lshrrev_b32 v6, 4, v0             ; kg
    v_bfe_u32 v7, v0, 2, 2              ; r
    v_and_b32 v8, 3, v0                 ; c
    v_mul_u32_u24 v7, {COPY}, v7
    v_lshlrev_b32 v8, 3, v8
    v_lshlrev_b32 v9, 4, v6
    v_sub_u32 v8, v8, v9
    v_add_u32 v8, 56, v8
    v_add3_u32 v4, v7, v8, s57          ; vA
    v_and_b32 v7, 15, v0
    v_lshlrev_b32 v7, 5, v7
    v_lshl_add_u32 v7, v6, 4, v7
    v_add_u32 v7, {4*COPY}, v7
    v_add_u32 v5, s57, v7               ; vB
    s_waitcnt vmcnt(0) lgkmcnt(0)
    s_and_b32 s54, s56, 1
    s_lshl_b32 s54, s54, 4
    s_lshr_b32 s60, s60, s54
    s_lshl_b32 s60, s60, 16             ; D as f32
    """)
    stp(A, "conv0")
    Y = 32; AT = 64; BT = 128
    def a_reads(rho, p):
        mu = rho + 8 * p
        return [f"ds_read_b64_tr_b16 {v(AT+4*p,2)}, v4 offset:{64*mu + 8}",
                f"ds_read_b64_tr_b16 {v(AT+4*p+2,2)}, v4 offset:{64*mu}"]
    def b_read(rho, q): return f"ds_read_b128 {v(BT+4*q,4)}, v5 offset:{64*(8*q - rho + 7)}"
    A(f"s_setprio {E('CPRIO', 0)}")
    if E("CPACE", 0):
        for q in range(7, -1, -1): A(b_read(0, q))
        for rho in range(8):
            for p in range(8):
                for r in a_reads(rho, p): A(r)
                A("s_waitcnt lgkmcnt(0)")
                for q in range(7 - p, -1, -1):
                    i = p + q
                    cc = "0" if (rho == 0 and p == 0) else v(Y+4*i, 4)
                    A(f"v_mfma_f32_16x16x32_bf16 {v(Y+4*i,4)}, {v(AT+4*p,4)}, {v(BT+4*q,4)}, {cc}")
                if rho < 7: A(b_read(rho + 1, 7 - p))
            if rho == 3:
                stp(A, "convh")
                A("s_barrier")
    else:
        ATS = [64, 96]
        def a_reads2(rho, p, sid):
            mu = rho + 8 * p
            return [f"ds_read_b64_tr_b16 {v(ATS[sid]+4*p,2)}, v4 offset:{64*mu + 8}",
                    f"ds_read_b64_tr_b16 {v(ATS[sid]+4*p+2,2)}, v4 offset:{64*mu}"]
        for q in range(7, -1, -1): A(b_read(0, q))
        A("s_waitcnt lgkmcnt(4)")
        for p in range(8):
            for r in a_reads2(0, p, 0): A(r)
            if p == 3: A("s_waitcnt lgkmcnt(4)")
        for rho in range(8):
            sid = rho % 2
            nxtA = [x for p in range(8) for x in a_reads2(rho + 1, p, 1 - sid)] if rho < 7 else []
            A("s_waitcnt lgkmcnt(0)" if rho == 0 else "s_waitcnt lgkmcnt(4)")
            for p in range(8):
                for q in range(7 - p, -1, -1):
                    i = p + q
                    cc = "0" if (rho == 0 and p == 0) else v(Y+4*i, 4)
                    if p == 0 and rho > 0 and q <= 3:
                        A(f"s_waitcnt lgkmcnt({7 if rho < 7 else q})")
                    A(f"v_mfma_f32_16x16x32_bf16 {v(Y+4*i,4)}, {v(ATS[sid]+4*p,4)}, {v(BT+4*q,4)}, {cc}")
                    if nxtA: A(nxtA.pop(0))
                if rho < 7: A(b_read(rho + 1, 7 - p))
            if rho == E("CBAR", -1):
                stp(A, "convh")
                A("s_barrier")
    stp(A, "conv1")
    A(f"""
    v_and_b32 v7, 15, v0
    v_lshrrev_b32 v6, 4, v0
    v_lshlrev_b32 v7, 5, v7
    v_lshl_add_u32 v7, v6, 3, v7        ; 32n + 8g
    v_add_u32 v8, s57, v7
    v_add_u32 v8, {4*COPY + 480}, v8
    s_add_u32 s61, s58, {WS_Z}
    """)
    for i in range(8): A(f"ds_read_b64 {v(64+2*i,2)}, v8 offset:{512*i}")
    A("s_waitcnt lgkmcnt(0)\ns_nop 3")
    for i in range(8):
        u0, u1 = 64 + 2*i, 64 + 2*i + 1
        y = Y + 4*i
        A(f"""
        v_lshlrev_b32 v96, 16, v{u0}
        v_and_b32 v97, 0xffff0000, v{u0}
        v_lshlrev_b32 v98, 16, v{u1}
        v_and_b32 v99, 0xffff0000, v{u1}
        v_fma_f32 v{y}, v96, s60, v{y}
        v_fma_f32 v{y+1}, v97, s60, v{y+1}
        v_fma_f32 v{y+2}, v98, s60, v{y+2}
        v_fma_f32 v{y+3}, v99, s60, v{y+3}
        v_cvt_pk_bf16_f32 v{y}, v{y}, v{y+1}
        v_cvt_pk_bf16_f32 v{y+1}, v{y+2}, v{y+3}
        buffer_store_dwordx2 {v(y,2)}, v7, s[{R_WS}:{R_WS+3}], s61 offen offset:{512*i}{SC}""")
    A("s_waitcnt vmcnt(0)")
    stp(A, "zdrained")
    L_zs = A.newlabel("zs")
    A("s_cmp_lt_u32 s2, 128\ns_cselect_b32 s64, 3, 2")
    lds_arrive_last(A, C_Z, "s64", L_zs, 2, 3)
    A(f"s_and_b32 s65, s2, 7\ns_add_u32 s65, s65, {L_Z}")
    global_arrive(A, "s65", 32, 2, 3)
    A.label(L_zs)
    prof_dump(A, 0, wsptr=P_WS)
    A.label(L_exit)
    A("s_endpgm")

def build():
    hdr = open("cdna_kernels/" + NAME + ".s.ref").read().split("; Override launch geometry")[0]
    A = Asm(); gen(A)
    out = hdr + f"; @launch grid=(256,1,1) block=(704,1,1) lds={LDS}\n"
    out += '.amdgcn_target "amdgcn-amd-amdhsa--gfx950"\n.text\n' + A.text()
    out += f""".section .rodata,"a"
.p2align 6
.amdhsa_kernel {KNAME}
  .amdhsa_next_free_vgpr {VGPRS}
  .amdhsa_next_free_sgpr 102
  .amdhsa_accum_offset {VGPRS}
  .amdhsa_group_segment_fixed_size 0
  .amdhsa_kernarg_size 96
  .amdhsa_user_sgpr_count 2
  .amdhsa_user_sgpr_kernarg_segment_ptr 1
  .amdhsa_system_sgpr_workgroup_id_x 1
  .amdhsa_float_denorm_mode_32 3
.end_amdhsa_kernel
"""
    return out

if __name__ == "__main__":
    open(sys.argv[1], "w").write(build())
```

```python
import os, sys, struct, math
from asmlib import *
from slots import ASSIGN, HEADWORD

NAME = "concat_heads__softmax_full_mha__ssm_conv_h3__prompt"
KNAME = NAME + "_kernel"
E = lambda k, d=0: int(os.environ.get(k, d))

TB = 8320
SEC = 64 * TB
WS_U  = 0x800000
WS_Z  = 0xB00000
WS_O  = 0xE00000
SYNC  = 0x1200000
WS_BYTES = 0x1204000
REC = 3072
CHUNK = 16 * REC
COPY = 4160
CONV_SZ = 4 * COPY + 4608
CONV_BASE = 98304
CNT = CONV_BASE + 3 * CONV_SZ
LDS = CNT + 256
WO_A = 98304
WO_BROW = 340
RED = CHUNK
VGPRS = 168
POLL_MAX = 40000
SC = os.environ.get("SCF", " sc1")
L_QKV, L_U, L_Z, L_O = 0, 16, 24, 32
FLG = 40
ZERO_WG = 225
C_QKV, C_U, C_Z, C_O, C_UOK, C_INIT, C_GO, C_KV, C_ISS = 0, 4, 8, 12, 16, 20, 24, 28, 32

def f32bits(x): return struct.unpack("<I", struct.pack("<f", x))[0]
QSCALE = f32bits(20 ** -0.5 * math.log2(math.e))

P_X, P_W, P_WO, P_BQ, P_BK, P_BV, P_SH, P_SK, P_SD, P_OUT, P_DBG, P_WS = 4, 6, 8, 10, 12, 14, 16, 18, 20, 22, 24, 26
R_WS = 28
R_A, R_B, R_C = 32, 36, 44
S_WAVE, S_XCD, S_J, S_RB, S_CB = 40, 41, 42, 43, 48

STAMPS = dict(x.split(":") for x in os.environ.get("STAMPS", "b0:1,gend:2,uok:2,att0:4,att1:5,p3a:6").split(","))
def stp(A, name):
    if name in STAMPS: stamp(A, int(STAMPS[name]))

def poll(A, addr_v, thr_v, tmp, sleep=4, base=P_WS):
    L = A.newlabel("poll"); D = A.newlabel("polld")
    A(f"""
    v_cmp_ne_u32 vcc, 0, v{thr_v}
    s_mov_b32 s66, {POLL_MAX}
    s_nop 1
    s_mov_b64 exec, vcc
    {L}:
    global_load_dword v{tmp}, v{addr_v}, s[{base}:{base+1}] sc1
    s_waitcnt vmcnt(0)
    v_cmp_ge_u32 vcc, v{tmp}, v{thr_v}
    s_nop 3
    s_cmp_eq_u64 vcc, exec
    s_cbranch_scc1 {D}
    s_sleep {sleep}
    s_sub_u32 s66, s66, 1
    s_cmp_lg_u32 s66, 0
    s_cbranch_scc1 {L}
    {D}:
    s_mov_b64 exec, -1
    """)
def poll_flags(A, line0, nlines, t_addr, t_thr, tmp, sleep=4):
    A(f"""
    v_lshlrev_b32 v{t_addr}, 7, v0
    v_add_u32 v{t_addr}, {SYNC + 128*(FLG + line0)}, v{t_addr}
    v_cmp_gt_u32 vcc, {nlines}, v0
    v_mov_b32 v{tmp}, 1
    s_nop 0
    v_cndmask_b32 v{t_thr}, 0, v{tmp}, vcc
    """)
    poll(A, t_addr, t_thr, tmp, sleep)
def lds_set(A, off, t0, t1):
    A(f"""
    v_mov_b32 v{t0}, {CNT + off}
    v_mov_b32 v{t1}, 1
    ds_write_b32 v{t0}, v{t1}
    """)
def lds_add(A, off, t0, t1):
    A(f"""
    v_mov_b32 v{t0}, {CNT + off}
    v_mov_b32 v{t1}, 1
    s_mov_b64 exec, 1
    ds_add_u32 v{t0}, v{t1}
    s_mov_b64 exec, -1
    """)
def lds_wait(A, off, t0, t1, val=1, sleep=1):
    L = A.newlabel("lw"); D = A.newlabel("lwd")
    A(f"""
    v_mov_b32 v{t0}, {CNT + off}
    s_mov_b32 s66, {POLL_MAX*16}
    {L}:
    ds_read_b32 v{t1}, v{t0}
    s_waitcnt lgkmcnt(0)
    v_readfirstlane_b32 s67, v{t1}
    s_nop 3
    s_cmp_ge_u32 s67, {val}
    s_cbranch_scc1 {D}
    s_sleep {sleep}
    s_sub_u32 s66, s66, 1
    s_cmp_lg_u32 s66, 0
    s_cbranch_scc1 {L}
    {D}:
    """)
def lds_arrive_last(A, off, n_s, skip_lab, t0, t1):
    A(f"""
    v_mov_b32 v{t0}, {CNT + off}
    v_mov_b32 v{t1}, 1
    s_mov_b64 exec, 1
    ds_add_rtn_u32 v{t1}, v{t0}, v{t1}
    s_waitcnt lgkmcnt(0)
    s_mov_b64 exec, -1
    v_readfirstlane_b32 s66, v{t1}
    s_nop 3
    s_add_u32 s66, s66, 1
    s_cmp_lg_u32 s66, {n_s}
    s_cbranch_scc1 {skip_lab}
    """)
def global_arrive(A, line_s, total, t0, t1):
    L = A.newlabel("ga")
    A(f"""
    s_lshl_b32 s66, {line_s}, 7
    s_add_u32 s66, s66, {SYNC}
    v_mov_b32 v{t0}, s66
    v_mov_b32 v{t1}, 1
    s_mov_b64 exec, 1
    global_atomic_add v{t1}, v{t0}, v{t1}, s[{P_WS}:{P_WS+1}] sc0 sc1
    s_waitcnt vmcnt(0)
    s_mov_b64 exec, -1
    v_readfirstlane_b32 s66, v{t1}
    s_nop 3
    s_add_u32 s66, s66, 1
    s_cmp_lg_u32 s66, {total}
    s_cbranch_scc1 {L}
    v_add_u32 v{t0}, {128*FLG}, v{t0}
    v_mov_b32 v{t1}, 1
    s_mov_b64 exec, 1
    global_store_dword v{t0}, v{t1}, s[{P_WS}:{P_WS+1}] sc1
    s_mov_b64 exec, -1
    {L}:
    """)

def gen(A):
    A(f".globl {KNAME}")
    A(".p2align 8")
    A(f".type {KNAME},@function")
    A.label(KNAME)
    L_exit, L_nog, L_prod, L_bw, L_heads, L_conv = "L_exit", "L_nog", "L_prod", "L_bw", "L_heads", "L_conv"
    A(f"""
    s_cmp_ge_u32 s2, 256
    s_cbranch_scc1 {L_exit}
    s_load_dwordx16 s[4:19], s[0:1], 0
    s_load_dwordx8 s[20:27], s[0:1], 64
    v_lshrrev_b32 v1, 6, v0
    v_and_b32 v0, 63, v0
    v_readfirstlane_b32 s{S_WAVE}, v1
    s_and_b32 s{S_XCD}, s2, 7
    s_lshr_b32 s{S_J}, s2, 3
    s_lshr_b32 s{S_RB}, s{S_XCD}, 1
    s_lshl_b32 s{S_RB}, s{S_RB}, 2
    s_and_b32 s49, s{S_J}, 3
    s_add_u32 s{S_RB}, s{S_RB}, s49        ; rb
    s_and_b32 s{S_CB}, s{S_XCD}, 1
    s_lshl_b32 s{S_CB}, s{S_CB}, 3
    s_lshr_b32 s49, s{S_J}, 2
    s_add_u32 s{S_CB}, s{S_CB}, s49        ; cb
    v_mov_b32 v2, {CNT}
    v_mov_b32 v4, 0
    v_mov_b32 v5, 0
    v_mov_b32 v6, 0
    v_mov_b32 v7, 0
    ds_write_b128 v2, v[4:7]
    ds_write_b128 v2, v[4:7] offset:16
    ds_write_b128 v2, v[4:7] offset:32
    s_waitcnt lgkmcnt(0)
    s_barrier
    """)
    srd(A, R_WS, P_WS, WS_BYTES)
    prof_init(A)
    A(f"""
    s_cmp_ge_u32 s{S_WAVE}, 8
    s_cbranch_scc1 {L_bw}
    s_cmp_ge_u32 s{S_CB}, 15
    s_cbranch_scc1 {L_nog}
    s_cmp_ge_u32 s{S_WAVE}, 4
    s_cbranch_scc1 {L_prod}
    """)
    slot_of = lambda st: (st + 2) % 3

    A(f"""
    s_lshr_b32 s56, s{S_WAVE}, 1       ; wr
    s_and_b32 s57, s{S_WAVE}, 1        ; wc
    v_and_b32 v2, 31, v0           ; n
    v_lshrrev_b32 v3, 5, v0        ; h
    v_bfe_u32 v4, v0, 1, 3         ; (l>>1)&7
    s_lshl_b32 s54, s56, 6
    v_add_u32 v5, s54, v2
    v_lshlrev_b32 v5, 7, v5        ; token_local*128
    """)
    for ks in range(4):
        A(f"""
        v_add_u32 v6, {2*ks}, v3
        v_xor_b32 v6, v6, v4
        v_lshl_add_u32 v{16+ks}, v6, 4, v5
        v_add_u32 v{20+ks}, 0x10000, v{16+ks}""")
    def w_addr():
        A(f"""
        v_lshrrev_b32 v2, 4, v0        ; g
        v_bfe_u32 v3, v0, 2, 2         ; r
        v_and_b32 v4, 3, v0            ; c4
        v_lshrrev_b32 v5, 1, v2
        v_lshl_add_u32 v5, v5, 3, v3   ; k_local
        v_lshlrev_b32 v5, 8, v5
        v_add_u32 v5, 16384, v5
        v_and_b32 v6, 1, v2
        v_lshl_add_u32 v6, v6, 2, v4   ; rg = 4*(g&1) + c4
        v_mul_u32_u24 v6, 5, v6
        v_lshlrev_b32 v7, 2, v3        ; 4r
        """)
        for ft in range(2):
            A(f"""
            v_lshrrev_b64 v[8:9], v6, s[{60+2*ft}:{61+2*ft}]
            v_and_b32 v8, 31, v8
            v_lshrrev_b32 v9, 1, v8
            v_xor_b32 v9, v9, v7
            v_and_b32 v8, 1, v8
            v_lshlrev_b32 v8, 3, v8
            v_lshl_add_u32 v8, v9, 4, v8
            v_add_u32 v{24+ft}, v5, v8
            v_add_u32 v{26+ft}, 0x10000, v{24+ft}""")
    FR = [dict(X=[32, 36], W=[40, 44]), dict(X=[48, 52], W=[56, 60])]
    ACC = lambda ft, tt: 64 + 16 * (2 * ft + tt)
    def reads(st, ks, setid):
        slot = slot_of(st); hi = slot == 2
        so = 0 if hi else slot * 32768
        xa = (20 if hi else 16) + ks; wa = (26 if hi else 24); F = FR[setid]
        return [f"ds_read_b128 {v(F['X'][0],4)}, v{xa} offset:{so}",
                f"ds_read_b64_tr_b16 {v(F['W'][0],2)}, v{wa} offset:{so + ks*4096}",
                f"ds_read_b64_tr_b16 {v(F['W'][0]+2,2)}, v{wa} offset:{so + ks*4096 + 1024}",
                f"ds_read_b128 {v(F['X'][1],4)}, v{xa} offset:{so + 4096}",
                f"ds_read_b64_tr_b16 {v(F['W'][1],2)}, v{wa+1} offset:{so + ks*4096}",
                f"ds_read_b64_tr_b16 {v(F['W'][1]+2,2)}, v{wa+1} offset:{so + ks*4096 + 1024}"]
    def mfmas(setid, first, vmode):
        F = FR[setid]; m = []
        for (ft, tt) in [(0, 0), (0, 1), (1, 0), (1, 1)]:
            d = ACC(ft, tt); c = "0" if first else v(d, 16)
            a_, b_ = (F['X'][tt], F['W'][ft]) if vmode else (F['W'][ft], F['X'][tt])
            m.append(f"v_mfma_f32_32x32x16_bf16 {v(d,16)}, {v(a_,4)}, {v(b_,4)}, {c}")
        return m
    def main_loop(vmode):
        A("s_barrier")
        stp(A, "b0")
        for r in reads(0, 0, 0): A(r)
        n = 0
        for st in range(10):
            for ks in range(4):
                setid = n % 2
                m = mfmas(setid, n == 0, vmode)
                A("s_waitcnt lgkmcnt(0)")
                if ks == 3 and st < 9:
                    A("s_barrier")
                    stp(A, f"gb{st+1}")
                A(m[0])
                if ks < 3:
                    for r in reads(st, ks + 1, 1 - setid): A(r)
                elif st < 9:
                    for r in reads(st + 1, 0, 1 - setid): A(r)
                A(m[1]); A(m[2]); A(m[3])
                n += 1
        stp(A, "gend")
        A("s_nop 15")
    L_vpath = A.newlabel("vpath"); L_gsig = A.newlabel("gsig"); L_vdone = A.newlabel("vdone")
    A(f"""
    s_cmp_ge_u32 s{S_CB}, 10
    s_cbranch_scc1 {L_vpath}
    s_cmp_ge_u32 s{S_CB}, 5
    s_cselect_b32 s55, 5, 0
    s_sub_u32 s55, s{S_CB}, s55        ; cb'
    s_lshl_b32 s55, s55, 1
    s_add_u32 s55, s55, s57
    """)
    for var in range(10):
        cbp, wc = divmod(var, 2); T = []
        for ft in range(2):
            tab = [0]*8
            for si, it in enumerate(ASSIGN[cbp][2*wc + ft]):
                ap, h = divmod(si, 2)
                tab[4*ap + h] = it[1]; tab[4*ap + 2 + h] = it[2]
            T.append(sum(g << (5*i) for i, g in enumerate(tab)))
        nxt = A.newlabel("var")
        A(f"""
        s_cmp_lg_u32 s55, {var}
        s_cbranch_scc1 {nxt}
        s_mov_b32 s60, {hex(T[0] & 0xffffffff)}
        s_mov_b32 s61, {hex(T[0] >> 32)}
        s_mov_b32 s62, {hex(T[1] & 0xffffffff)}
        s_mov_b32 s63, {hex(T[1] >> 32)}
        s_branch {L_vdone}
        {nxt}:""")
    A(f"""
    s_mov_b64 s[60:61], 0
    s_mov_b64 s[62:63], 0
    {L_vdone}:
    """)
    w_addr()
    A(f"""
    s_mov_b32 s58, {hex(QSCALE)}
    s_cmp_ge_u32 s{S_CB}, 5
    s_cmov_b32 s58, 0x3f800000
    s_mov_b32 s59, s58
    v_lshlrev_b32 v128, 4, v0
    s_lshl_b32 s54, s{S_RB}, 2
    s_lshl_b32 s55, s56, 1
    s_add_u32 s54, s54, s55
    s_lshl_b32 s55, s{S_CB}, 6
    s_add_u32 s54, s54, s55
    s_mul_i32 s54, s54, {TB}
    s_lshl_b32 s55, s57, 12        ; wc*4096
    s_add_u32 s64, s54, s55
    s_add_u32 s65, s64, {TB}
    """)
    main_loop(False)
    for ft in range(2):
        for tt in range(2):
            d = ACC(ft, tt)
            for i in range(0, 16, 2):
                A(f"v_pk_mul_f32 {v(d+i,2)}, {v(d+i,2)}, s[58:59]")
            for ap in range(2):
                for i in range(4):
                    A(f"v_cvt_pk_bf16_f32 v{d+8*ap+i}, v{d+8*ap+2*i}, v{d+8*ap+2*i+1}")
                A(f"buffer_store_dwordx4 {v(d+8*ap,4)}, v128, s[{R_WS}:{R_WS+3}], s{64+tt} offen offset:{ft*2048 + ap*1024}{SC}")
    A(f"s_branch {L_gsig}")
    A.label(L_vpath)
    nat = sum(i << (5*i) for i in range(8)); rep = sum(1 << (5*i) for i in range(8))
    A(f"""
    s_lshl_b32 s54, s57, 4
    s_mul_i32 s55, s54, {hex(rep & 0xffffffff)}
    s_mul_hi_u32 s61, s54, {hex(rep & 0xffffffff)}
    s_mul_i32 s66, s54, {hex(rep >> 32)}
    s_add_u32 s61, s61, s66
    s_add_u32 s60, s55, {hex(nat & 0xffffffff)}
    s_addc_u32 s61, s61, {hex(nat >> 32)}
    s_add_u32 s62, s60, {hex((8*rep) & 0xffffffff)}
    s_addc_u32 s63, s61, {hex((8*rep) >> 32)}
    """)
    w_addr()
    A(f"""
    v_lshlrev_b32 v128, 4, v0
    s_lshl_b32 s54, s{S_RB}, 2
    s_lshl_b32 s55, s{S_CB}, 6
    s_add_u32 s54, s54, s55
    s_add_u32 s55, s54, s{S_WAVE}
    s_mul_i32 s55, s55, {TB}
    s_add_u32 s58, s55, 8192
    s_lshl_b32 s55, s56, 1
    s_add_u32 s54, s54, s55
    s_mul_i32 s54, s54, {TB}
    s_lshl_b32 s55, s57, 11
    s_add_u32 s62, s54, s55
    s_add_u32 s63, s62, 4096
    s_add_u32 s64, s62, {TB}
    s_add_u32 s65, s64, 4096
    """)
    main_loop(True)
    for ft in range(2):
        for tt in range(2):
            d = ACC(ft, tt)
            for f in range(2):
                for i in range(4):
                    A(f"v_cvt_pk_bf16_f32 v{d+8*f+i}, v{d+8*f+2*i}, v{d+8*f+2*i+1}")
                A(f"buffer_store_dwordx4 {v(d+8*f,4)}, v128, s[{R_WS}:{R_WS+3}], s{62+2*tt+f} offen offset:{ft*1024}{SC}")
    A(f"""
    v_cmp_eq_u32 vcc, 0, v0
    v_mov_b32 v36, 0x3f803f80
    s_nop 0
    v_cndmask_b32 v32, 0, v36, vcc
    v_cndmask_b32 v33, 0, v36, vcc
    v_cndmask_b32 v34, 0, v36, vcc
    v_cndmask_b32 v35, 0, v36, vcc
    s_mov_b64 exec, 15
    buffer_store_dwordx4 v[32:35], v128, s[{R_WS}:{R_WS+3}], s58 offen{SC}
    s_mov_b64 exec, -1
    """)
    A.label(L_gsig)
    stp(A, "gstored")
    A("s_waitcnt vmcnt(0)")
    stp(A, "gdrained")
    L_qs = A.newlabel("qs")
    lds_arrive_last(A, C_QKV, 4, L_qs, 2, 3)
    lds_wait(A, C_INIT, 2, 3)
    global_arrive(A, f"s{S_CB}", 16, 2, 3)
    A.label(L_qs)
    stp(A, "gsig")
    A(f"s_branch {L_heads}")

    A.label(L_prod)
    srd(A, R_A, P_X, 2048 * 640 * 2)
    srd(A, R_B, P_W, 640 * 1920 * 2)
    VXE, VXO, VW = 10, 11, 12
    A(f"""
    s_sub_u32 s55, s{S_WAVE}, 4            ; pw
    s_lshl_b32 s49, s55, 12
    s_mul_i32 s53, s55, 61440
    s_and_b32 s50, s{S_RB}, 3
    s_mul_i32 s50, s50, 3
    s_add_u32 s50, s50, s{S_CB}
    s_cmp_ge_u32 s50, 20
    s_cselect_b32 s51, 20, 0
    s_sub_u32 s50, s50, s51
    s_cmp_ge_u32 s50, 10
    s_cselect_b32 s51, 10, 0
    s_sub_u32 s50, s50, s51
    """)
    if not E("ROT", 1): A("s_mov_b32 s50, 0")
    A(f"""
    s_lshl_b32 s51, s50, 7
    s_mul_i32 s52, s50, 245760
    s_add_u32 s52, s52, s53
    v_lshrrev_b32 v2, 3, v0
    v_lshrrev_b32 v3, 4, v0
    v_and_b32 v4, 7, v0
    v_xor_b32 v4, v4, v3
    s_lshl_b32 s54, s{S_RB}, 7
    s_lshl_b32 s55, s55, 5
    s_add_u32 s54, s54, s55
    v_add_u32 v2, s54, v2
    v_mul_u32_u24 v2, 1280, v2
    v_lshl_add_u32 v{VXE}, v4, 4, v2
    v_xor_b32 v{VXO}, 64, v{VXE}
    v_and_b32 v4, 15, v0
    v_lshlrev_b32 v5, 2, v3
    v_xor_b32 v4, v4, v5
    v_mul_u32_u24 v5, 3840, v3
    v_lshl_add_u32 v{VW}, v4, 4, v5
    s_lshl_b32 s54, s{S_CB}, 8
    v_add_u32 v{VW}, s54, v{VW}
    """)
    def dma_stage(st):
        so = slot_of(st) * 32768
        for i in range(4):
            A(f"""
            s_add_u32 m0, s49, {so + i*1024}
            s_add_u32 s54, s51, {i*10240}
            buffer_load_dwordx4 v{VXO if i % 2 else VXE}, s[{R_A}:{R_A+3}], s54 offen lds""")
        for i in range(4):
            A(f"""
            s_add_u32 m0, s49, {so + 16384 + i*1024}
            s_add_u32 s54, s52, {i*15360}
            buffer_load_dwordx4 v{VW}, s[{R_B}:{R_B+3}], s54 offen lds""")
        A("""
        s_add_u32 s50, s50, 1
        s_cmp_eq_u32 s50, 10
        s_cselect_b32 s50, 0, s50
        s_lshl_b32 s51, s50, 7
        s_mul_i32 s52, s50, 245760
        s_add_u32 s52, s52, s53""")
    for st in range(3): dma_stage(st)
    lds_add(A, C_ISS, 2, 3)
    A("s_waitcnt vmcnt(16)\ns_barrier")
    stp(A, "b0")
    for s_ in range(1, 8):
        A("s_waitcnt vmcnt(8)\ns_barrier")
        dma_stage(s_ + 2)
    A("s_waitcnt vmcnt(8)\ns_barrier")
    A("s_waitcnt vmcnt(0)\ns_barrier")
    stp(A, "b9")
    A(f"s_branch {L_heads}")

    A.label(L_nog)
    lds_add_n = None
    A(f"""
    v_mov_b32 v2, {CNT + C_QKV}
    v_mov_b32 v3, 4
    ds_write_b32 v2, v3
    """)

    A.label(L_heads)
    Q1, Q2 = 4, 8
    O = 16
    S = [32, 48]
    P = [64, 72]
    KA, KB, V0, V1 = 80, 84, 88, 92
    AK = [96, 99]; AK2 = [97, 100]; AV = [98, 101]
    KA0, KB0 = 104, 108
    WOV = 120
    VG = [126, 127, 128]; VKP, VKS, VVF = 129, 130, 131
    A(f"""
    s_lshl_b32 s43, s{S_XCD}, 2
    s_lshr_b32 s44, s{S_J}, 3
    s_add_u32 s43, s43, s44        ; head
    s_and_b32 s44, s{S_J}, 7       ; qb
    s_lshl_b32 s46, s44, 3
    s_add_u32 s46, s46, s{S_WAVE}  ; q tile
    s_mov_b32 s47, {hex(HEADWORD[0])}
    """)
    for h in range(1, 32):
        A(f"s_cmp_eq_u32 s43, {h}\ns_cmov_b32 s47, {hex(HEADWORD[h])}")
    for k, dst in enumerate((50, 51, 52)):
        A(f"""
        s_bfe_u32 s54, s47, {hex((3 << 16) | (7*k))}
        s_bfe_u32 s55, s47, {hex((4 << 16) | (7*k + 3))}
        s_mul_i32 s54, s54, {SEC}
        s_lshl_b32 s55, s55, 9
        s_add_u32 s{dst}, s54, s55""")
    A(f"""
    v_and_b32 v3, 31, v0           ; n
    v_lshrrev_b32 v12, 5, v0       ; h
    v_lshlrev_b32 v13, 4, v3       ; n*16
    v_cmp_eq_u32 vcc, 0, v12
    v_mov_b32 v14, s50
    v_mov_b32 v15, s51
    v_cndmask_b32 v14, v15, v14, vcc
    v_add_u32 v{VKP}, v14, v13
    s_and_b32 s54, s43, 1
    s_lshl_b32 s54, s54, 3
    s_add_u32 s54, s54, s52
    v_add_u32 v{VKS}, s54, v13
    v_add_u32 v{VG[0]}, {5*SEC + 2*TB}, v{VKP}
    s_mul_i32 s53, s43, 20
    s_add_u32 s45, s53, 19
    s_lshr_b32 s45, s45, 7
    s_add_u32 s45, s45, 10
    s_mul_i32 s45, s45, {SEC}
    s_add_u32 s45, s45, 8192
    """)
    def vchunk(dst, seg_v, m_v):
        A(f"""
        v_add_u32 v5, s53, v{m_v}          ; F
        v_lshrrev_b32 v6, 7, v5
        v_add_u32 v6, 10, v6
        v_mul_u32_u24 v6, {SEC // 64}, v6
        v_lshlrev_b32 v6, 6, v6
        v_bfe_u32 v7, v5, 5, 2
        v_lshlrev_b32 v7, 10, v7
        v_add_u32 v6, v6, v7
        v_and_b32 v7, 31, v5
        v_lshl_add_u32 v6, v7, 4, v6
        v_lshrrev_b32 v7, 1, v{seg_v}
        v_lshl_add_u32 v6, v7, 12, v6
        v_and_b32 v7, 1, v{seg_v}
        v_lshl_add_u32 v6, v7, 9, v6
        v_subrev_u32 v7, 20, v{m_v}
        v_and_b32 v7, 3, v7
        v_lshlrev_b32 v7, 4, v7
        v_add_u32 v7, s45, v7
        v_cmp_gt_u32 vcc, 20, v{m_v}
        s_nop 1
        v_cndmask_b32 v{dst}, v7, v6, vcc
        """)
    A("""
    v_cmp_gt_u32 vcc, 56, v0
    v_subrev_u32 v8, 32, v0
    v_subrev_u32 v9, 56, v0
    v_cndmask_b32 v8, v9, v8, vcc          ; m
    v_mov_b32 v9, 1
    v_mov_b32 v10, 0
    v_cndmask_b32 v9, v9, v10, vcc         ; seg
    """)
    vchunk(11, 9, 8)
    A(f"""
    v_add_u32 v6, s52, v13
    v_add_u32 v6, {5*SEC + 2*TB}, v6
    v_cmp_gt_u32 vcc, 32, v0
    s_nop 1
    v_cndmask_b32 v{VG[1]}, v11, v6, vcc
    v_cmp_gt_u32 vcc, 16, v0
    v_cmp_gt_u32 s[54:55], 40, v0
    v_subrev_u32 v8, 40, v0
    v_subrev_u32 v10, 16, v0
    v_cndmask_b32 v8, v8, v10, s[54:55]
    v_add_u32 v10, 8, v0
    v_cndmask_b32 v8, v8, v10, vcc         ; m
    v_mov_b32 v9, 3
    v_mov_b32 v10, 2
    v_cndmask_b32 v9, v9, v10, s[54:55]
    v_mov_b32 v10, 1
    v_cndmask_b32 v9, v9, v10, vcc         ; seg
    """)
    vchunk(VG[2], 9, 8)
    A("v_mov_b32 v8, v3\nv_mov_b32 v9, v12")
    vchunk(VVF, 9, 8)
    srd(A, R_A, P_WO, 640 * 640 * 2)
    A(f"s_and_b32 s52, s{S_J}, 7\ns_mul_i32 s52, s52, 160")
    for b in range(5):
        A(f"""
        v_add_u32 v5, {64*b}, v0
        v_mul_u32_u24 v6, 52429, v5
        v_lshrrev_b32 v6, 19, v6
        v_mul_u32_u24 v7, 10, v6
        v_sub_u32 v7, v5, v7
        v_mul_u32_u24 v6, 1280, v6
        v_lshl_add_u32 v6, v7, 4, v6
        v_add_u32 v{WOV+b}, s52, v6""")
    A(f"""
    s_mul_i32 s53, s{S_WAVE}, 5120
    s_mul_i32 s62, s{S_WAVE}, 40960
    s_mov_b32 s60, 0
    v_lshlrev_b32 v2, 4, v0
    v_mul_u32_u24 v13, 384, v12
    v_lshl_add_u32 v13, v3, 4, v13
    v_add_u32 v{AV[0]}, 1536, v13
    v_mov_b32 v{AK[0]}, v2
    s_and_b32 s54, s43, 1
    s_lshl_b32 s54, s54, 3
    s_add_u32 s54, s54, 1024
    v_lshlrev_b32 v1, 4, v3
    v_add_u32 v{AK2[0]}, s54, v1
    v_add_u32 v{AV[1]}, {CHUNK}, v{AV[0]}
    v_add_u32 v{AK[1]}, {CHUNK}, v{AK[0]}
    v_add_u32 v{AK2[1]}, {CHUNK}, v{AK2[0]}
    v_cmp_lt_u32 vcc, 20, v3
    v_mov_b32 v5, 0x30000
    v_mov_b32 v{Q2+2}, 0
    v_cndmask_b32 v{AV[0]}, v{AV[0]}, v5, vcc
    v_cndmask_b32 v{AV[1]}, v{AV[1]}, v5, vcc
    v_mov_b32 v{Q2+3}, 0
    v_mov_b32 v{KB+2}, 0
    v_mov_b32 v{KB+3}, 0
    v_mov_b32 v{KB0+2}, 0
    v_mov_b32 v{KB0+3}, 0
    s_mul_i32 s45, s46, {TB}
    s_mul_i32 s49, s{S_WAVE}, {REC}
    s_mul_i32 s50, s{S_WAVE}, {TB}
    """)
    stp(A, "hset")
    L_gow = A.newlabel("gow"); L_go = A.newlabel("go")
    A(f"""
    s_cmp_lg_u32 s{S_WAVE}, 0
    s_cbranch_scc1 {L_gow}
    """)
    lds_wait(A, C_QKV, 5, 6, val=4)
    lds_wait(A, C_INIT, 5, 6)
    A(f"""
    s_mul_i32 s54, s43, 5
    s_add_u32 s55, s54, 4
    s_lshr_b32 s54, s54, 5             ; c0
    s_lshr_b32 s55, s55, 5             ; c1
    v_and_b32 v5, 1, v0
    v_cmp_eq_u32 vcc, 1, v5
    v_mov_b32 v6, s54
    v_mov_b32 v7, s55
    v_cndmask_b32 v6, v6, v7, vcc
    v_lshrrev_b32 v5, 1, v0
    v_mul_u32_u24 v5, 5, v5
    v_add_u32 v5, v5, v6
    v_lshlrev_b32 v5, 7, v5
    v_add_u32 v5, {SYNC + 128*(FLG + L_QKV)}, v5
    v_cmp_gt_u32 vcc, 6, v0
    v_mov_b32 v6, 1
    s_nop 0
    v_cndmask_b32 v7, 0, v6, vcc
    """)
    poll(A, 5, 7, 6, sleep=E("PS_QKV", 3))
    lds_set(A, C_GO, 5, 6)
    A(f"s_branch {L_go}")
    A.label(L_gow)
    lds_wait(A, C_GO, 5, 6)
    A.label(L_go)
    stp(A, "go")
    A(f"""
    buffer_load_dwordx4 {v(Q1,4)}, v{VKP}, s[{R_WS}:{R_WS+3}], s45 offen{SC}
    buffer_load_dwordx2 {v(Q2,2)}, v{VKS}, s[{R_WS}:{R_WS+3}], s45 offen{SC}
    s_mov_b32 s48, {5*SEC}
    buffer_load_dwordx4 {v(KA0,4)}, v{VKP}, s[{R_WS}:{R_WS+3}], s48 offen{SC}
    buffer_load_dwordx2 {v(KB0,2)}, v{VKS}, s[{R_WS}:{R_WS+3}], s48 offen{SC}
    s_mov_b32 s48, {5*SEC + TB}
    buffer_load_dwordx4 {v(KA,4)}, v{VKP}, s[{R_WS}:{R_WS+3}], s48 offen{SC}
    buffer_load_dwordx2 {v(KB,2)}, v{VKS}, s[{R_WS}:{R_WS+3}], s48 offen{SC}
    """)
    def kv_piece(chunk, i):
        slot = chunk % 2; rr, part = divmod(i, 3)
        return f"""
        s_add_u32 m0, s49, {slot*CHUNK + rr*8*REC + part*1024}
        s_add_u32 s51, s50, {(chunk*16 + rr*8)*TB}
        buffer_load_dwordx4 v{VG[part]}, s[{R_WS}:{R_WS+3}], s51 offen{SC} lds"""
    for i in range(6): A(kv_piece(0, i))
    for i in range(6): A(kv_piece(1, i))
    A(f"""
    v_cmp_gt_u32 vcc, 32, v0
    s_waitcnt vmcnt(6)
    s_nop 0
    v_cndmask_b32 v{Q2}, 0, v{Q2}, vcc
    v_cndmask_b32 v{Q2+1}, 0, v{Q2+1}, vcc
    """)
    stp(A, "kvok")
    lds_add(A, C_KV, 12, 13)
    lds_wait(A, C_KV, 12, 13, val=8, sleep=0)
    stp(A, "att0")

    def wo_piece(kind, b):
        if kind == 0:
            return f"""
            s_add_u32 m0, s53, {WO_A + b*1024}
            s_nop 0
            buffer_load_dwordx4 v{WOV+b}, s[{R_A}:{R_A+3}], s62 offen lds"""
        if kind == 2:
            return f"""
            s_add_u32 m0, s53, {b*1024}
            s_add_u32 s51, s62, {WO_BROW*1280}
            buffer_load_dwordx4 v{WOV+b}, s[{R_A}:{R_A+3}], s51 offen lds"""
        lab = A.newlabel("wos")
        if kind == 1: lim, ldso, go = 3, WO_A + 8*5120, 8*40960
        else: lim, ldso, go = (2 if b < 2 else 1), 8*5120, WO_BROW*1280 + 8*40960
        return f"""
            s_cmp_ge_u32 s{S_WAVE}, {lim}
            s_cbranch_scc1 {lab}
            s_add_u32 m0, s53, {ldso + b*1024}
            s_add_u32 s51, s62, {go}
            buffer_load_dwordx4 v{WOV+b}, s[{R_A}:{R_A+3}], s51 offen lds
            {lab}:"""
    def qk2(Sd, Kr):
        if E("K8", 0): return f"v_mfma_f32_32x32x8bf16_1k {v(Sd,16)}, {v(Kr,2)}, {v(Q2,2)}, {v(Sd,16)}"
        return f"v_mfma_f32_32x32x16_bf16 {v(Sd,16)}, {v(Kr,4)}, {v(Q2,4)}, {v(Sd,16)}"
    A(f"v_mfma_f32_32x32x16_bf16 {v(S[0],16)}, {v(KA0,4)}, {v(Q1,4)}, 0")
    A(qk2(S[0], KB0))
    A("s_nop 7\ns_nop 7")
    for J in range(64):
        c = J // 16; slot = c % 2; j = J % 16
        Sc, Sn = S[J % 2], S[(J + 1) % 2]
        Pc, Pp = P[J % 2], P[(J + 1) % 2]
        off = j * REC
        if j == 0 and J > 0:
            A(f"s_waitcnt vmcnt({5 if J == 32 else 0}) lgkmcnt(0)\ns_barrier")
        EX = lambda i: f"v_exp_f32 v{Sc+i}, v{Sc+i}"
        CV = lambda i: f"v_cvt_pk_bf16_f32 v{Pc+i}, v{Sc+2*i}, v{Sc+2*i+1}"
        G = [(EX(0),EX(1),EX(2),EX(3),CV(0),CV(1)), (EX(4),EX(5),EX(6),EX(7),CV(2),CV(3)), (EX(8),EX(9),EX(10),EX(11),CV(4),CV(5)), (EX(12),EX(13),EX(14),EX(15),CV(6),CV(7))]
        if j in (0, 9, 13, 15):
            A(f"s_setprio {dict([(0,3),(9,2),(13,1),(15,0)])[j]}")
        if J > 0 and j != 0: A("s_waitcnt lgkmcnt(2)")
        if J < 63: A(f"v_mfma_f32_32x32x16_bf16 {v(Sn,16)}, {v(KA,4)}, {v(Q1,4)}, 0")
        if J < 62: A(f"ds_read_b128 {v(KA,4)}, v{AK[slot]} offset:{off}")
        for x in G[0]: A(x)
        if J < 63: A(qk2(Sn, KB))
        if J < 62: A(f"ds_read_b64 {v(KB,2)}, v{AK2[slot]} offset:{off}")
        for x in G[1]: A(x)
        if J > 0:
            A("s_waitcnt lgkmcnt(2)" if J < 62 else "s_waitcnt lgkmcnt(0)")
            cc = "0" if J == 1 else v(O, 16)
            A(f"v_mfma_f32_32x32x16_bf16 {v(O,16)}, {v(V0,4)}, {v(Pp,4)}, {cc}")
        A(f"ds_read_b128 {v(V0,4)}, v{AV[slot]} offset:{off}")
        for x in G[2]: A(x)
        if J > 0: A(f"v_mfma_f32_32x32x16_bf16 {v(O,16)}, {v(V1,4)}, {v(Pp+4,4)}, {v(O,16)}")
        A(f"ds_read_b128 {v(V1,4)}, v{AV[slot]} offset:{off + 768}")
        if c in (1, 2) and j < 6: A(kv_piece(c + 1, j))
        if c == 1 and 6 <= j < 11: A(wo_piece(0, j - 6))
        if c == 1 and 11 <= j < 16: A(wo_piece(1, j - 11))
        if c == 3 and 1 <= j < 6: A(wo_piece(2, j - 1))
        if c == 3 and 6 <= j < 11: A(wo_piece(3, j - 6))
        for x in G[3]: A(x)
    stp(A, "att1")
    Pl = P[63 % 2]
    A("s_waitcnt lgkmcnt(0)")
    A(f"v_mfma_f32_32x32x16_bf16 {v(O,16)}, {v(V0,4)}, {v(Pl,4)}, {v(O,16)}")
    A(f"v_mfma_f32_32x32x16_bf16 {v(O,16)}, {v(V1,4)}, {v(Pl+4,4)}, {v(O,16)}")
    A("s_setprio 0")
    L_fin = A.newlabel("fin"); L_slow = A.newlabel("slow"); L_odone = A.newlabel("odone")
    def addr_calc():
        A(f"""
        s_lshl_b32 s52, s43, 6
        s_add_u32 s52, s52, s46
        s_mul_i32 s52, s52, 1536
        s_add_u32 s52, s52, {WS_O}
        v_lshlrev_b32 v104, 4, v0
        """)
    addr_calc()
    A("s_nop 7")
    A.label(L_fin)
    A("s_nop 7")
    A(f"""
    v_mov_b32 v110, v{O+8}
    v_mov_b32 v111, v{O+8}
    s_nop 1
    v_permlane32_swap_b32 v110, v111
    s_nop 1
    v_rcp_f32 v112, v111
    s_nop 0
    """)
    for i in range(0, 12, 2):
        A(f"v_pk_mul_f32 {v(O+i,2)}, {v(O+i,2)}, v[112:113] op_sel_hi:[1,0]")
    A(f"""
    v_add_f32 v113, abs(v{O}), abs(v{O+1})
    v_add_f32 v114, abs(v{O+8}), abs(v{O+9})
    """)
    for i in range(2, 8): A(f"v_add_f32 v113, v113, abs(v{O+i})")
    A(f"""
    v_add_f32 v114, v114, abs(v{O+10})
    v_add_f32 v114, v114, abs(v{O+11})
    v_cmp_gt_u32 vcc, 32, v0
    v_mov_b32 v115, 0x21800000         ; 2^-60
    v_mov_b32 v116, 0x5d800000         ; 2^60
    v_cndmask_b32 v114, 0, v114, vcc
    v_add_f32 v113, v113, v114
    v_mov_b32 v114, 0x7f800000
    v_cmp_nlt_f32 s[54:55], v113, v114
    v_cmp_ngt_f32 s[56:57], v111, v115
    v_cmp_nlt_f32 vcc, v111, v116
    s_nop 1
    s_or_b64 s[54:55], s[54:55], s[56:57]
    s_or_b64 s[54:55], s[54:55], vcc
    s_cmp_lg_u64 s[54:55], 0
    s_cselect_b32 s61, 1, 0
    s_andn2_b32 s61, s61, s60
    s_cmp_lg_u32 s61, 0
    s_cbranch_scc1 {L_slow}
    """)
    for i in range(4): A(f"v_cvt_pk_bf16_f32 v{O+i}, v{O+2*i}, v{O+2*i+1}")
    A(f"""
    v_cvt_pk_bf16_f32 v{O+8}, v{O+8}, v{O+9}
    v_cvt_pk_bf16_f32 v{O+9}, v{O+10}, v{O+11}
    v_mov_b32 v{O+10}, 0
    v_mov_b32 v{O+11}, 0
    buffer_store_dwordx4 {v(O,4)}, v104, s[{R_WS}:{R_WS+3}], s52 offen{SC}
    s_mov_b32 exec_hi, 0
    buffer_store_dwordx4 {v(O+8,4)}, v104, s[{R_WS}:{R_WS+3}], s52 offen offset:1024{SC}
    s_mov_b64 exec, -1
    s_branch {L_odone}
    """)
    A.label(L_slow)
    L1 = A.newlabel("p1"); L2 = A.newlabel("p2")
    A(f"""
    s_mov_b32 s60, 1
    v_mov_b32 v110, 0xff800000
    s_mov_b32 s52, 0
    {L1}:
    s_mul_i32 s63, s52, {TB}
    s_add_u32 s63, s63, {5*SEC}
    buffer_load_dwordx4 {v(KA,4)}, v{VKP}, s[{R_WS}:{R_WS+3}], s63 offen{SC}
    buffer_load_dwordx2 {v(KB,2)}, v{VKS}, s[{R_WS}:{R_WS+3}], s63 offen{SC}
    s_waitcnt vmcnt(0)
    v_mfma_f32_32x32x16_bf16 {v(S[0],16)}, {v(KA,4)}, {v(Q1,4)}, 0
    v_mfma_f32_32x32x16_bf16 {v(S[0],16)}, {v(KB,4)}, {v(Q2,4)}, {v(S[0],16)}
    s_nop 7
    s_nop 7
    """)
    for i in range(0, 16, 2): A(f"v_max3_f32 v110, v110, v{S[0]+i}, v{S[0]+i+1}")
    A(f"""
    s_add_u32 s52, s52, 1
    s_cmp_lt_u32 s52, 64
    s_cbranch_scc1 {L1}
    v_mov_b32 v108, v110
    v_mov_b32 v109, v110
    s_nop 1
    v_permlane32_swap_b32 v108, v109
    s_nop 1
    v_max_f32 v110, v108, v109
    v_and_b32 v3, 31, v0
    v_cmp_gt_u32 vcc, 20, v3
    v_add_u32 v108, 4096, v{VVF}
    s_nop 0
    v_cndmask_b32 v109, v{VVF}, v108, vcc
    """)
    for i in range(16): A(f"v_mov_b32 v{O+i}, 0")
    A("s_mov_b32 s52, 0")
    A.label(L2)
    A(f"""
    s_mul_i32 s54, s52, {TB}
    s_add_u32 s63, s54, {5*SEC}
    buffer_load_dwordx4 {v(KA,4)}, v{VKP}, s[{R_WS}:{R_WS+3}], s63 offen{SC}
    buffer_load_dwordx2 {v(KB,2)}, v{VKS}, s[{R_WS}:{R_WS+3}], s63 offen{SC}
    buffer_load_dwordx4 {v(V0,4)}, v{VVF}, s[{R_WS}:{R_WS+3}], s54 offen{SC}
    buffer_load_dwordx4 {v(V1,4)}, v109, s[{R_WS}:{R_WS+3}], s54 offen{SC}
    s_waitcnt vmcnt(0)
    v_mfma_f32_32x32x16_bf16 {v(S[0],16)}, {v(KA,4)}, {v(Q1,4)}, 0
    v_mfma_f32_32x32x16_bf16 {v(S[0],16)}, {v(KB,4)}, {v(Q2,4)}, {v(S[0],16)}
    s_nop 7
    s_nop 7
    """)
    for i in range(16): A(f"v_sub_f32 v{S[0]+i}, v{S[0]+i}, v110")
    for i in range(16): A(f"v_exp_f32 v{S[0]+i}, v{S[0]+i}")
    A("s_nop 0")
    for i in range(8): A(f"v_cvt_pk_bf16_f32 v{P[0]+i}, v{S[0]+2*i}, v{S[0]+2*i+1}")
    A(f"""
    s_nop 1
    v_mfma_f32_32x32x16_bf16 {v(O,16)}, {v(V0,4)}, {v(P[0],4)}, {v(O,16)}
    v_mfma_f32_32x32x16_bf16 {v(O,16)}, {v(V1,4)}, {v(P[0]+4,4)}, {v(O,16)}
    s_add_u32 s52, s52, 1
    s_cmp_lt_u32 s52, 64
    s_cbranch_scc1 {L2}
    s_nop 7
    """)
    addr_calc()
    A(f"s_branch {L_fin}")

    A.label(L_odone)
    OF = 32; AD = 80; OA = 88; VOUT, VRED = 91, 92; ACC3 = 96; WF = [116, 136]
    A(f"""
    s_lshl_b32 s54, s{S_XCD}, 2
    s_lshr_b32 s55, s{S_J}, 3
    s_add_u32 s54, s54, s55        ; tb
    s_lshl_b32 s54, s54, 2
    s_and_b32 s55, s{S_WAVE}, 3
    s_add_u32 s54, s54, s55        ; T
    s_lshr_b32 s45, s54, 1
    s_mul_i32 s45, s45, 1536
    s_and_b32 s57, s54, 1
    s_lshl_b32 s57, s57, 8
    s_add_u32 s45, s45, s57
    s_add_u32 s45, s45, {WS_O}
    s_lshr_b32 s57, s{S_WAVE}, 2
    s_mul_i32 s57, s57, {16*64*1536}
    s_add_u32 s62, s45, s57
    v_lshrrev_b32 v5, 4, v0            ; kg
    v_and_b32 v6, 15, v0
    v_lshlrev_b32 v6, 4, v6
    """)
    for c in range(3):
        A(f"""
        v_add_u32 v8, {4*c}, v5
        v_mul_u32_u24 v9, 21846, v8
        v_lshrrev_b32 v9, 16, v9
        v_mul_u32_u24 v10, 3, v9
        v_sub_u32 v10, v8, v10
        v_mul_u32_u24 v9, 1536, v9
        v_lshlrev_b32 v9, 6, v9
        v_lshl_add_u32 v9, v10, 9, v9
        v_add_u32 v{OA+c}, v9, v6""")
    A(f"""
    v_and_b32 v3, 15, v0
    s_lshl_b32 s55, s54, 4
    v_add_u32 v3, s55, v3
    v_mul_u32_u24 v3, 2560, v3
    v_lshrrev_b32 v4, 4, v0
    v_lshl_add_u32 v3, v4, 3, v3
    s_and_b32 s55, s{S_J}, 7
    s_mul_i32 s55, s55, 160
    v_add_u32 v{VOUT}, s55, v3
    v_lshlrev_b32 v3, 4, v0
    s_and_b32 s55, s{S_WAVE}, 3
    s_mul_i32 s55, s55, 5120
    s_add_u32 s55, s55, {RED}
    v_add_u32 v{VRED}, s55, v3
    v_bfe_u32 v6, v0, 2, 2             ; r
    v_and_b32 v7, 3, v0
    v_lshlrev_b32 v7, 3, v7            ; 8*c4
    s_mov_b32 s59, {WO_A}
    """)
    def row_addr(dst0, s, region):
        A(f"""
        v_add_u32 v8, {4*s}, v5
        v_mul_u32_u24 v9, 21846, v8
        v_lshrrev_b32 v9, 16, v9
        v_mul_u32_u24 v10, 3, v9
        v_sub_u32 v10, v8, v10
        v_mul_u32_u24 v9, 20, v9
        v_add_u32 v9, v9, v6
        v_lshlrev_b32 v11, 2, v10
        v_cmp_eq_u32 vcc, 2, v10
        v_add_u32 v12, 8, v11
        v_lshlrev_b32 v13, 1, v11
        v_cndmask_b32 v11, v11, v13, vcc
        v_add_u32 v11, v11, v9
        v_add_u32 v12, v12, v9
        """)
        for hh, rv in enumerate((11, 12)):
            if region == "A":
                A(f"v_mul_u32_u24 v13, 160, v{rv}\nv_add3_u32 v{dst0+hh}, v13, v7, s59")
            elif region == "B":
                A(f"v_subrev_u32 v13, {WO_BROW}, v{rv}\nv_mul_u32_u24 v13, 160, v13\nv_add_u32 v{dst0+hh}, v13, v7")
            else:
                A(f"""
                v_mul_u32_u24 v13, 160, v{rv}
                v_add3_u32 v14, v13, v7, s59
                v_subrev_u32 v13, {WO_BROW*160}, v13
                v_add_u32 v13, v13, v7
                v_cmp_gt_u32 vcc, {WO_BROW}, v{rv}
                s_nop 1
                v_cndmask_b32 v{dst0+hh}, v13, v14, vcc""")
    L_ahi = A.newlabel("ahi"); L_adone = A.newlabel("adone")
    stp(A, "ostored")
    A("s_waitcnt vmcnt(0)")
    stp(A, "odrained")
    L_os = A.newlabel("os")
    lds_arrive_last(A, C_O, 8, L_os, 2, 3)
    A(f"s_add_u32 s65, s44, {L_O}")
    global_arrive(A, "s65", 32, 2, 3)
    A.label(L_os)
    A(f"""
    s_cmp_ge_u32 s{S_WAVE}, 4
    s_cbranch_scc1 {L_ahi}
    """)
    for c in range(3): row_addr(AD + 2*c, c, "A")
    A(f"s_branch {L_adone}")
    A.label(L_ahi)
    row_addr(AD + 6, 12, None)
    for c in range(3): row_addr(AD + 2*c, 13 + c, "B")
    A.label(L_adone)
    srd(A, R_B, P_OUT, 2048 * 1280 * 2)
    L_p3a = A.newlabel("p3a"); L_post = A.newlabel("post"); L_t3 = A.newlabel("t3"); L_tgo = A.newlabel("tgo")
    A(f"""
    s_cmp_eq_u32 s{S_WAVE}, 0
    s_cbranch_scc0 {L_post}
    s_lshl_b32 s54, s{S_XCD}, 7
    s_add_u32 s54, s54, {SYNC + 128*(FLG + L_O)}
    v_mov_b32 v2, s54
    v_cmp_eq_u32 vcc, 0, v0
    v_mov_b32 v3, 1
    s_nop 0
    v_cndmask_b32 v4, 0, v3, vcc
    """)
    poll(A, 2, 4, 3, sleep=E("PS_O", 3))
    stp(A, "ook")
    A(f"s_branch {L_p3a}")
    A.label(L_post)
    A(f"""
    s_cmp_ge_u32 s{S_WAVE}, 4
    s_cbranch_scc1 {L_p3a}
    s_cmp_eq_u32 s{S_WAVE}, 3
    s_cbranch_scc1 {L_t3}
    s_lshl_b32 s56, s2, 1
    s_sub_u32 s57, s{S_WAVE}, 1
    s_add_u32 s56, s56, s57
    s_branch {L_tgo}
    {L_t3}:
    s_cmp_ge_u32 s2, 128
    s_cbranch_scc1 {L_p3a}
    s_add_u32 s56, s2, 512
    {L_tgo}:
    s_mul_i32 s57, s56, 52429
    s_lshr_b32 s57, s57, 19
    s_mul_i32 s58, s57, 10
    s_sub_u32 s58, s56, s58
    """)
    srd(A, R_C, P_BQ, 2048 * 640 * 2)
    A(f"""
    v_and_b32 v2, 7, v0
    v_lshrrev_b32 v3, 3, v0
    s_lshl_b32 s54, s58, 6
    v_lshl_add_u32 v2, v2, 3, s54
    s_lshl_b32 s55, s57, 5
    v_lshl_add_u32 v3, v3, 2, s55
    v_mul_u32_u24 v4, 1280, v3
    v_lshl_add_u32 v8, v2, 1, v4
    v_lshlrev_b32 v5, 12, v2
    v_lshl_add_u32 v5, v3, 1, v5
    v_add_u32 v9, {WS_Z}, v5
    v_mul_u32_u24 v6, 2560, v3
    v_lshl_add_u32 v6, v2, 1, v6
    v_add_u32 v10, 1280, v6
    """)
    for j in range(4):
        A(f"buffer_load_dwordx4 {v(32+4*j,4)}, v8, s[{R_C}:{R_C+3}], 0 offen offset:{1280*j}")
    poll_flags(A, L_Z, 8, 2, 4, 3)
    for i in range(8):
        A(f"s_mov_b32 s54, {i*4096}")
        A(f"buffer_load_dwordx2 {v(16+2*i,2)}, v9, s[{R_WS}:{R_WS+3}], s54 offen{SC}")
    A("s_waitcnt vmcnt(0)")
    for j in range(4):
        for q in range(4):
            za = 16 + 2*(2*q) + j//2; zb = 16 + 2*(2*q+1) + j//2
            if j % 2 == 0:
                A(f"v_lshlrev_b32 v48, 16, v{za}\nv_lshlrev_b32 v49, 16, v{zb}")
            else:
                A(f"v_and_b32 v48, 0xffff0000, v{za}\nv_and_b32 v49, 0xffff0000, v{zb}")
            qq = 32 + 4*j + q
            A(f"v_lshlrev_b32 v50, 16, v{qq}\nv_and_b32 v51, 0xffff0000, v{qq}")
            A(f"v_pk_mul_f32 v[48:49], v[48:49], v[50:51]")
            A(f"v_cvt_pk_bf16_f32 v{52+4*j+q}, v48, v49")
        A(f"s_mov_b32 s54, {j*2560}")
        A(f"buffer_store_dwordx4 {v(52+4*j,4)}, v10, s[{R_B}:{R_B+3}], s54 offen")
    A.label(L_p3a)
    stp(A, "prep3a")
    A("s_barrier")
    stp(A, "p3a")
    for st in range(12):
        if st % 3 == 0: A(f"s_add_u32 s58, s62, {(st//3)*4*64*1536}")
        A(f"buffer_load_dwordx4 {v(OF+4*st,4)}, v{OA + st % 3}, s[{R_WS}:{R_WS+3}], s58 offen{SC}")
    def p3_loop(hi):
        if not hi: sel = lambda st: (AD + 2*(st % 3), (st // 3) * 12800)
        else: sel = lambda st: (AD + 6, 0) if st == 0 else (AD + 2*((st - 1) % 3), ((st - 1) // 3) * 12800)
        def rd(st, setid):
            base, so = sel(st); r = []
            for T in range(5):
                r.append(f"ds_read_b64_tr_b16 {v(WF[setid]+4*T,2)}, v{base} offset:{so + 32*T}")
                r.append(f"ds_read_b64_tr_b16 {v(WF[setid]+4*T+2,2)}, v{base+1} offset:{so + 32*T}")
            return r
        for r in rd(0, 0): A(r)
        for st in range(12):
            setid = st % 2
            A(f"s_waitcnt vmcnt({11-st}) lgkmcnt(0)")
            rs = rd(st + 1, 1 - setid) if st < 11 else []
            for T in range(5):
                cc = "0" if st == 0 else v(ACC3+4*T, 4)
                A(f"v_mfma_f32_16x16x32_bf16 {v(ACC3+4*T,4)}, {v(WF[setid]+4*T,4)}, {v(OF+4*st,4)}, {cc}")
                for r in rs[2*T:2*T+2]: A(r)
        A("s_nop 7")
    L_hi = A.newlabel("p3hi")
    A(f"""
    s_cmp_ge_u32 s{S_WAVE}, 4
    s_cbranch_scc1 {L_hi}
    """)
    p3_loop(False)
    A("s_barrier")
    for T in range(5): A(f"ds_read_b128 {v(32+4*T,4)}, v{VRED} offset:{1024*T}")
    A("s_waitcnt lgkmcnt(0)")
    for T in range(5):
        d = ACC3 + 4*T
        A(f"v_pk_add_f32 {v(d,2)}, {v(d,2)}, {v(32+4*T,2)}")
        A(f"v_pk_add_f32 {v(d+2,2)}, {v(d+2,2)}, {v(34+4*T,2)}")
        A(f"v_cvt_pk_bf16_f32 v{d}, v{d}, v{d+1}")
        A(f"v_cvt_pk_bf16_f32 v{d+1}, v{d+2}, v{d+3}")
        A(f"buffer_store_dwordx2 {v(d,2)}, v{VOUT}, s[{R_B}:{R_B+3}], 0 offen offset:{32*T}")
    prof_dump(A, 0, wsptr=P_WS)
    A("s_endpgm")
    A.label(L_hi)
    p3_loop(True)
    for T in range(5): A(f"ds_write_b128 v{VRED}, {v(ACC3+4*T,4)} offset:{1024*T}")
    A("s_waitcnt lgkmcnt(0)\ns_barrier")
    prof_dump(A, 0, wsptr=P_WS)
    A("s_endpgm")

    A.label(L_bw)
    BK, BV, BW = 16, 44, 60
    def b_setup(notask):
        L2_ = A.newlabel("b2"); Lgo = A.newlabel("bgo")
        A(f"""
        s_cmp_eq_u32 s{S_WAVE}, 10
        s_cbranch_scc1 {L2_}
        s_lshl_b32 s56, s2, 1
        s_sub_u32 s57, s{S_WAVE}, 8
        s_add_u32 s56, s56, s57
        s_branch {Lgo}
        {L2_}:
        s_cmp_ge_u32 s2, 128
        s_cbranch_scc1 {notask}
        s_add_u32 s56, s2, 512
        {Lgo}:
        s_mul_i32 s57, s56, 52429
        s_lshr_b32 s57, s57, 19        ; tblk
        s_mul_i32 s58, s57, 10
        s_sub_u32 s58, s56, s58        ; dblk
        v_and_b32 v2, 7, v0            ; dg
        v_lshrrev_b32 v3, 3, v0        ; tg
        v_lshlrev_b32 v12, 6, v2
        v_lshl_add_u32 v12, v3, 3, v12
        s_lshl_b32 s54, s56, 12
        s_add_u32 s54, s54, {WS_U}
        v_add_u32 v12, s54, v12
        s_lshl_b32 s54, s58, 6
        v_lshl_add_u32 v2, v2, 3, s54  ; d0
        s_lshl_b32 s55, s57, 5
        v_lshl_add_u32 v3, v3, 2, s55  ; t0
        v_mul_u32_u24 v4, 1280, v3
        v_lshl_add_u32 v10, v2, 1, v4
        v_lshlrev_b32 v11, 3, v2
        v_subrev_u32 v5, 3840, v10
        v_subrev_u32 v6, 2560, v10
        v_subrev_u32 v7, 1280, v10
        """)
    def b_loads():
        srd(A, R_C, P_BK, 2048 * 640 * 2)
        A(f"""
        buffer_load_dwordx4 {v(BK,4)}, v5, s[{R_C}:{R_C+3}], 0 offen
        buffer_load_dwordx4 {v(BK+4,4)}, v6, s[{R_C}:{R_C+3}], 0 offen
        buffer_load_dwordx4 {v(BK+8,4)}, v7, s[{R_C}:{R_C+3}], 0 offen
        """)
        for j in range(4): A(f"buffer_load_dwordx4 {v(BK+12+4*j,4)}, v10, s[{R_C}:{R_C+3}], 0 offen offset:{1280*j}")
        srd(A, R_C, P_BV, 2048 * 640 * 2)
        for j in range(4): A(f"buffer_load_dwordx4 {v(BV+4*j,4)}, v10, s[{R_C}:{R_C+3}], 0 offen offset:{1280*j}")
        srd(A, R_C, P_SH, 640 * 4 * 2)
        for j in range(4): A(f"buffer_load_dwordx4 {v(BW+4*j,4)}, v11, s[{R_C}:{R_C+3}], 0 offen offset:{16*j}")
    def b_compute(q):
        KP, VP, WP, AC, OUT = 80, 94, 102, 110, 120
        for j in range(7):
            A(f"v_lshlrev_b32 v{KP+2*j}, 16, v{BK+4*j+q}\nv_and_b32 v{KP+1+2*j}, 0xffff0000, v{BK+4*j+q}")
        for t in range(4):
            A(f"v_lshlrev_b32 v{VP+2*t}, 16, v{BV+4*t+q}\nv_and_b32 v{VP+1+2*t}, 0xffff0000, v{BV+4*t+q}")
        for u in range(2):
            bb = BW + 4*q + 2*u
            A(f"v_lshlrev_b32 v{WP+u}, 16, v{bb}\nv_and_b32 v{WP+2+u}, 0xffff0000, v{bb}")
            A(f"v_lshlrev_b32 v{WP+4+u}, 16, v{bb+1}\nv_and_b32 v{WP+6+u}, 0xffff0000, v{bb+1}")
        for t in range(4):
            acc = AC + 2*t
            A(f"v_pk_mul_f32 {v(acc,2)}, {v(KP+2*(t+0),2)}, {v(WP+6,2)}")
            A(f"v_pk_fma_f32 {v(acc,2)}, {v(KP+2*(t+1),2)}, {v(WP+4,2)}, {v(acc,2)}")
            A(f"v_pk_fma_f32 {v(acc,2)}, {v(KP+2*(t+2),2)}, {v(WP+2,2)}, {v(acc,2)}")
            A(f"v_pk_fma_f32 {v(acc,2)}, {v(KP+2*(t+3),2)}, {v(WP,2)}, {v(acc,2)}")
            A(f"v_pk_mul_f32 {v(acc,2)}, {v(acc,2)}, {v(VP+2*t,2)}")
        for u in range(2):
            o = OUT + 4*q + 2*u
            A(f"v_cvt_pk_bf16_f32 v{o}, v{AC+u}, v{AC+2+u}\nv_cvt_pk_bf16_f32 v{o+1}, v{AC+4+u}, v{AC+6+u}")
        for u in range(2):
            o = OUT + 4*q + 2*u
            A(f"buffer_store_dwordx2 {v(o,2)}, v12, s[{R_WS}:{R_WS+3}], 0 offen offset:{(2*q+u)*512}{SC}")
    def init_load():
        A(f"v_mov_b32 v2, 0\nglobal_load_dword v9, v2, s[{P_DBG}:{P_DBG+1}] sc1")
    def u_publish(n):
        A(f"s_waitcnt vmcnt({n})")
        Lok = A.newlabel("iok"); Lsk = A.newlabel("usk")
        A(f"""
        v_readfirstlane_b32 s66, v9
        s_nop 3
        s_cmp_lg_u32 s66, 0
        s_cbranch_scc1 {Lok}
        v_mov_b32 v2, 0
        v_mov_b32 v3, 1
        """)
        poll(A, 2, 3, 4, sleep=8, base=P_DBG)
        A.label(Lok)
        lds_set(A, C_INIT, 2, 3)
        A("s_cmp_lt_u32 s2, 128\ns_cselect_b32 s64, 3, 2")
        lds_arrive_last(A, C_U, "s64", Lsk, 2, 3)
        A(f"""
        s_and_b32 s66, s2, 7
        s_add_u32 s66, s66, {L_U}
        s_lshl_b32 s66, s66, 7
        s_add_u32 s66, s66, {SYNC}
        v_mov_b32 v2, s66
        v_mov_b32 v3, 1
        s_mov_b64 exec, 1
        global_atomic_add v2, v3, s[{P_WS}:{P_WS+1}] sc1
        s_mov_b64 exec, -1
        {Lsk}:
        """)
    HR = 136
    def h_loads():
        srd(A, R_C, P_SK, 640 * 4096)
        A(f"""
        s_sub_u32 s57, s{S_WAVE}, 8
        s_mul_i32 s57, s57, {CONV_SZ}
        s_add_u32 s57, s57, {CONV_BASE}
        s_lshl_b32 s58, s56, 12
        v_lshlrev_b32 v13, 4, v0
        v_add_u32 v13, s58, v13
        v_subrev_u32 v14, 8, v13
        """)
        for p in range(4):
            if p == 0:
                A(f"buffer_load_dwordx2 {v(HR,2)}, v14, s[{R_C}:{R_C+3}], 0 offen")
            else:
                A(f"buffer_load_dwordx2 {v(HR+6*p,2)}, v13, s[{R_C}:{R_C+3}], 0 offen offset:{1024*p - 8}")
            A(f"buffer_load_dwordx4 {v(HR+6*p+2,4)}, v13, s[{R_C}:{R_C+3}], 0 offen offset:{1024*p}")
    def h_build():
        A(f"""
        v_cmp_eq_u32 vcc, 0, v0
        v_lshlrev_b32 v6, 4, v0
        v_add_u32 v6, s57, v6
        v_add_u32 v6, 32, v6
        v_cndmask_b32 v{HR}, v{HR}, 0, vcc
        v_cndmask_b32 v{HR+1}, v{HR+1}, 0, vcc
        """)
        for p in range(4):
            b = HR + 6*p; P1, P0, D = b, b + 1, b + 2
            T1, T2, T3 = 16 + 12*(p % 2), 20 + 12*(p % 2), 24 + 12*(p % 2)
            A(f"""
            ds_write_b128 v6, {v(D,4)} offset:{0*COPY + 1024*p}
            v_alignbit_b32 v{T1}, v{D}, v{P0}, 16
            v_alignbit_b32 v{T1+1}, v{D+1}, v{D}, 16
            v_alignbit_b32 v{T1+2}, v{D+2}, v{D+1}, 16
            v_alignbit_b32 v{T1+3}, v{D+3}, v{D+2}, 16
            v_mov_b32 v{T2}, v{P0}
            v_mov_b32 v{T2+1}, v{D}
            v_mov_b32 v{T2+2}, v{D+1}
            v_mov_b32 v{T2+3}, v{D+2}
            v_alignbit_b32 v{T3}, v{P0}, v{P1}, 16
            v_mov_b32 v{T3+1}, v{T1}
            v_mov_b32 v{T3+2}, v{T1+1}
            v_mov_b32 v{T3+3}, v{T1+2}
            ds_write_b128 v6, {v(T1,4)} offset:{1*COPY + 1024*p}
            ds_write_b128 v6, {v(T2,4)} offset:{2*COPY + 1024*p}
            ds_write_b128 v6, {v(T3,4)} offset:{3*COPY + 1024*p}
            """)
    L_bnog = A.newlabel("bnog"); L_bnt = A.newlabel("bnt"); L_sync = A.newlabel("sync"); L_bntn = A.newlabel("bntn")
    A(f"""
    s_cmp_ge_u32 s{S_CB}, 15
    s_cbranch_scc1 {L_bnog}
    """)
    b_setup(L_bnt)
    if E("BISS", 0): lds_wait(A, C_ISS, 2, 3, val=4, sleep=1)
    b_loads()
    h_loads()
    A("s_waitcnt vmcnt(8)")
    stp(A, "blok")
    for q in range(4): b_compute(q)
    init_load()
    npub = E("NPUB", 2)
    for _ in range(npub): A("s_barrier")
    u_publish(0)
    stp(A, "upub")
    for _ in range(10 - npub): A("s_barrier")
    stp(A, "b9")
    A(f"s_branch {L_conv}")
    A.label(L_bnt)
    A(f"s_branch {L_exit}")
    A.label(L_bnog)
    L_noz = A.newlabel("noz")
    A(f"""
    s_cmp_lg_u32 s2, {ZERO_WG}
    s_cbranch_scc1 {L_noz}
    s_cmp_lg_u32 s{S_WAVE}, 10
    s_cbranch_scc1 {L_noz}
    v_lshlrev_b32 v2, 4, v0
    v_add_u32 v2, {SYNC}, v2
    v_mov_b32 v4, 0
    v_mov_b32 v5, 0
    v_mov_b32 v6, 0
    v_mov_b32 v7, 0
    """)
    for i in range(10):
        A(f"s_mov_b32 s54, {1024*i}\nbuffer_store_dwordx4 v[4:7], v2, s[{R_WS}:{R_WS+3}], s54 offen sc1")
    A(f"""
    s_waitcnt vmcnt(0)
    v_mov_b32 v2, 0
    v_mov_b32 v3, 1
    s_mov_b64 exec, 1
    global_store_dword v2, v3, s[{P_DBG}:{P_DBG+1}] sc1
    s_mov_b64 exec, -1
    {L_noz}:
    """)
    b_setup(L_exit)
    b_loads()
    h_loads()
    A("s_waitcnt vmcnt(8)")
    for q in range(4): b_compute(q)
    init_load()
    u_publish(0)
    A(f"s_branch {L_conv}")

    A.label(L_conv)
    A(f"""
    s_lshr_b32 s59, s56, 1
    s_lshl_b32 s59, s59, 2
    s_load_dword s60, s[{P_SD}:{P_SD+1}], s59
    v_mov_b32 v12, 0
    v_mov_b32 v13, 0
    v_mov_b32 v14, 0
    v_mov_b32 v15, 0
    v_lshlrev_b32 v6, 3, v0
    v_add_u32 v6, s57, v6
    v_add_u32 v6, {4*COPY}, v6
    v_cmp_gt_u32 vcc, 60, v0
    s_and_saveexec_b64 s[54:55], vcc
    ds_write_b64 v6, v[12:13]
    s_mov_b64 exec, s[54:55]
    v_and_b32 v6, 1, v0
    v_lshlrev_b32 v6, 4, v6
    v_lshrrev_b32 v7, 1, v0
    v_mul_u32_u24 v7, {COPY}, v7
    v_add3_u32 v6, v6, v7, s57
    v_cmp_gt_u32 vcc, 8, v0
    s_and_saveexec_b64 s[54:55], vcc
    ds_write_b128 v6, v[12:15]
    s_mov_b64 exec, s[54:55]
    """)
    h_build()
    A(f"""
    s_lshr_b32 s54, s56, 6
    s_and_b32 s55, s56, 63
    s_and_b32 s61, s55, 7
    s_lshr_b32 s55, s55, 3
    s_lshl_b32 s61, s61, 9
    s_lshl_b32 s55, s55, 6
    s_add_u32 s61, s61, s55
    s_lshl_b32 s54, s54, 12
    s_add_u32 s61, s61, s54
    s_add_u32 s61, s61, {WS_U}
    v_lshrrev_b32 v8, 2, v0
    v_mul_u32_u24 v8, 40960, v8
    v_and_b32 v9, 3, v0
    v_lshl_add_u32 v8, v9, 4, v8
    """)
    L_uw = A.newlabel("uw"); L_ud = A.newlabel("ud")
    A(f"s_cmp_lg_u32 s{S_WAVE}, 8\ns_cbranch_scc1 {L_uw}")
    A(f"""
    v_lshlrev_b32 v2, 7, v0
    v_add_u32 v2, {SYNC + 128*L_U}, v2
    v_cmp_gt_u32 vcc, 8, v0
    v_mov_b32 v3, 32
    s_nop 0
    v_cndmask_b32 v4, 0, v3, vcc
    """)
    poll(A, 2, 4, 3, sleep=E("PS_U", 24))
    lds_set(A, C_UOK, 2, 3)
    A(f"s_branch {L_ud}")
    A.label(L_uw)
    lds_wait(A, C_UOK, 2, 3)
    A("s_waitcnt vmcnt(0)")
    A.label(L_ud)
    stp(A, "uok")
    for p in range(4):
        A(f"""
        s_add_u32 m0, s57, {4*COPY + 480 + p*1024}
        s_add_u32 s54, s61, {p*16*40960}
        buffer_load_dwordx4 v8, s[{R_WS}:{R_WS+3}], s54 offen{SC} lds""")
    A(f"""
    v_lshrrev_b32 v6, 4, v0             ; kg
    v_bfe_u32 v7, v0, 2, 2              ; r
    v_and_b32 v8, 3, v0                 ; c
    v_mul_u32_u24 v7, {COPY}, v7
    v_lshlrev_b32 v8, 3, v8
    v_lshlrev_b32 v9, 4, v6
    v_sub_u32 v8, v8, v9
    v_add_u32 v8, 56, v8
    v_add3_u32 v4, v7, v8, s57          ; vA
    v_and_b32 v7, 15, v0
    v_lshlrev_b32 v7, 5, v7
    v_lshl_add_u32 v7, v6, 4, v7
    v_add_u32 v7, {4*COPY}, v7
    v_add_u32 v5, s57, v7               ; vB
    s_waitcnt vmcnt(0) lgkmcnt(0)
    s_and_b32 s54, s56, 1
    s_lshl_b32 s54, s54, 4
    s_lshr_b32 s60, s60, s54
    s_lshl_b32 s60, s60, 16             ; D as f32
    """)
    stp(A, "conv0")
    Y = 32; AT = 64; BT = 128
    def a_reads(rho, p):
        mu = rho + 8 * p
        return [f"ds_read_b64_tr_b16 {v(AT+4*p,2)}, v4 offset:{64*mu + 8}",
                f"ds_read_b64_tr_b16 {v(AT+4*p+2,2)}, v4 offset:{64*mu}"]
    def b_read(rho, q): return f"ds_read_b128 {v(BT+4*q,4)}, v5 offset:{64*(8*q - rho + 7)}"
    A(f"s_setprio {E('CPRIO', 0)}")
    if E("CPACE", 0):
        for q in range(7, -1, -1): A(b_read(0, q))
        for rho in range(8):
            for p in range(8):
                for r in a_reads(rho, p): A(r)
                A("s_waitcnt lgkmcnt(0)")
                for q in range(7 - p, -1, -1):
                    i = p + q
                    cc = "0" if (rho == 0 and p == 0) else v(Y+4*i, 4)
                    A(f"v_mfma_f32_16x16x32_bf16 {v(Y+4*i,4)}, {v(AT+4*p,4)}, {v(BT+4*q,4)}, {cc}")
                if rho < 7: A(b_read(rho + 1, 7 - p))
            if rho == 3:
                stp(A, "convh")
                A("s_barrier")
    else:
        ATS = [64, 96]
        def a_reads2(rho, p, sid):
            mu = rho + 8 * p
            return [f"ds_read_b64_tr_b16 {v(ATS[sid]+4*p,2)}, v4 offset:{64*mu + 8}",
                    f"ds_read_b64_tr_b16 {v(ATS[sid]+4*p+2,2)}, v4 offset:{64*mu}"]
        for q in range(7, -1, -1): A(b_read(0, q))
        A("s_waitcnt lgkmcnt(4)")
        for p in range(8):
            for r in a_reads2(0, p, 0): A(r)
            if p == 3: A("s_waitcnt lgkmcnt(4)")
        for rho in range(8):
            sid = rho % 2
            nxtA = [x for p in range(8) for x in a_reads2(rho + 1, p, 1 - sid)] if rho < 7 else []
            A("s_waitcnt lgkmcnt(0)" if rho == 0 else "s_waitcnt lgkmcnt(4)")
            for p in range(8):
                for q in range(7 - p, -1, -1):
                    i = p + q
                    cc = "0" if (rho == 0 and p == 0) else v(Y+4*i, 4)
                    if p == 0 and rho > 0 and q <= 3:
                        A(f"s_waitcnt lgkmcnt({7 if rho < 7 else q})")
                    A(f"v_mfma_f32_16x16x32_bf16 {v(Y+4*i,4)}, {v(ATS[sid]+4*p,4)}, {v(BT+4*q,4)}, {cc}")
                    if nxtA: A(nxtA.pop(0))
                if rho < 7: A(b_read(rho + 1, 7 - p))
            if rho == E("CBAR", -1):
                stp(A, "convh")
                A("s_barrier")
    stp(A, "conv1")
    A(f"""
    v_and_b32 v7, 15, v0
    v_lshrrev_b32 v6, 4, v0
    v_lshlrev_b32 v7, 5, v7
    v_lshl_add_u32 v7, v6, 3, v7        ; 32n + 8g
    v_add_u32 v8, s57, v7
    v_add_u32 v8, {4*COPY + 480}, v8
    s_add_u32 s61, s58, {WS_Z}
    """)
    for i in range(8): A(f"ds_read_b64 {v(64+2*i,2)}, v8 offset:{512*i}")
    A("s_waitcnt lgkmcnt(0)\ns_nop 3")
    for i in range(8):
        u0, u1 = 64 + 2*i, 64 + 2*i + 1
        y = Y + 4*i
        A(f"""
        v_lshlrev_b32 v96, 16, v{u0}
        v_and_b32 v97, 0xffff0000, v{u0}
        v_lshlrev_b32 v98, 16, v{u1}
        v_and_b32 v99, 0xffff0000, v{u1}
        v_fma_f32 v{y}, v96, s60, v{y}
        v_fma_f32 v{y+1}, v97, s60, v{y+1}
        v_fma_f32 v{y+2}, v98, s60, v{y+2}
        v_fma_f32 v{y+3}, v99, s60, v{y+3}
        v_cvt_pk_bf16_f32 v{y}, v{y}, v{y+1}
        v_cvt_pk_bf16_f32 v{y+1}, v{y+2}, v{y+3}
        buffer_store_dwordx2 {v(y,2)}, v7, s[{R_WS}:{R_WS+3}], s61 offen offset:{512*i}{SC}""")
    A("s_waitcnt vmcnt(0)")
    stp(A, "zdrained")
    L_zs = A.newlabel("zs")
    A("s_cmp_lt_u32 s2, 128\ns_cselect_b32 s64, 3, 2")
    lds_arrive_last(A, C_Z, "s64", L_zs, 2, 3)
    A(f"s_and_b32 s65, s2, 7\ns_add_u32 s65, s65, {L_Z}")
    global_arrive(A, "s65", 32, 2, 3)
    A.label(L_zs)
    prof_dump(A, 0, wsptr=P_WS)
    A.label(L_exit)
    A("s_endpgm")

def build():
    hdr = open("cdna_kernels/" + NAME + ".s.ref").read().split("; Override launch geometry")[0]
    A = Asm(); gen(A)
    out = hdr + f"; @launch grid=(256,1,1) block=(704,1,1) lds={LDS}\n"
    out += '.amdgcn_target "amdgcn-amd-amdhsa--gfx950"\n.text\n' + A.text()
    out += f""".section .rodata,"a"
.p2align 6
.amdhsa_kernel {KNAME}
  .amdhsa_next_free_vgpr {VGPRS}
  .amdhsa_next_free_sgpr 102
  .amdhsa_accum_offset {VGPRS}
  .amdhsa_group_segment_fixed_size 0
  .amdhsa_kernarg_size 96
  .amdhsa_user_sgpr_count 2
  .amdhsa_user_sgpr_kernarg_segment_ptr 1
  .amdhsa_system_sgpr_workgroup_id_x 1
  .amdhsa_float_denorm_mode_32 3
.end_amdhsa_kernel
"""
    return out

if __name__ == "__main__":
    open(sys.argv[1], "w").write(build())
```

```python
import os, sys, struct, math
from asmlib import *
from slots import ASSIGN, HEADWORD

NAME = "concat_heads__softmax_full_mha__ssm_conv_h3__prompt"
KNAME = NAME + "_kernel"
E = lambda k, d=0: int(os.environ.get(k, d))

TB = 8320
SEC = 64 * TB
WS_U  = 0x800000
WS_Z  = 0xB00000
WS_O  = 0xE00000
SYNC  = 0x1200000
WS_BYTES = 0x1214000
REC = 3072
CHUNK = 16 * REC
COPY = 4160
CONV_SZ = 4 * COPY + 4608
CONV_BASE = 98304
CNT = CONV_BASE + 3 * CONV_SZ
LDS = CNT + 256
WO_A = 98304
WO_BROW = 340
RED = CHUNK
VGPRS = 168
POLL_MAX = 40000
SC = os.environ.get("SCF", " sc1")
L_U, L_Z, L_O, L_QF = 0, 8, 24, 48
FLG = 8
N_LINES = 288
ZERO_WG = 225
C_QKV, C_U, C_Z, C_O, C_UOK, C_INIT, C_GO, C_KV, C_ISS = 0, 4, 8, 12, 16, 20, 24, 28, 32

def f32bits(x): return struct.unpack("<I", struct.pack("<f", x))[0]
QSCALE = f32bits(20 ** -0.5 * math.log2(math.e))

P_X, P_W, P_WO, P_BQ, P_BK, P_BV, P_SH, P_SK, P_SD, P_OUT, P_DBG, P_WS = 4, 6, 8, 10, 12, 14, 16, 18, 20, 22, 24, 26
R_WS = 28
R_A, R_B, R_C = 32, 36, 44
S_WAVE, S_XCD, S_J, S_RB, S_CB = 40, 41, 42, 43, 48

STAMPS = dict(x.split(":") for x in os.environ.get("STAMPS", "b0:1,gend:2,uok:2,att0:4,att1:5,p3a:6").split(","))
def stp(A, name):
    if name in STAMPS: stamp(A, int(STAMPS[name]))

def poll(A, addr_v, thr_v, tmp, sleep=4, base=P_WS):
    L = A.newlabel("poll"); D = A.newlabel("polld")
    A(f"""
    v_cmp_ne_u32 vcc, 0, v{thr_v}
    s_mov_b32 s66, {POLL_MAX}
    s_nop 1
    s_mov_b64 exec, vcc
    {L}:
    global_load_dword v{tmp}, v{addr_v}, s[{base}:{base+1}] sc1
    s_waitcnt vmcnt(0)
    v_cmp_ge_u32 vcc, v{tmp}, v{thr_v}
    s_nop 3
    s_cmp_eq_u64 vcc, exec
    s_cbranch_scc1 {D}
    s_sleep {sleep}
    s_sub_u32 s66, s66, 1
    s_cmp_lg_u32 s66, 0
    s_cbranch_scc1 {L}
    {D}:
    s_mov_b64 exec, -1
    """)
def poll_flags(A, line0, nlines, t_addr, t_thr, tmp, sleep=4):
    A(f"""
    v_lshlrev_b32 v{t_addr}, 7, v0
    v_add_u32 v{t_addr}, {SYNC + 128*(FLG + line0)}, v{t_addr}
    v_cmp_gt_u32 vcc, {nlines}, v0
    v_mov_b32 v{tmp}, 1
    s_nop 0
    v_cndmask_b32 v{t_thr}, 0, v{tmp}, vcc
    """)
    poll(A, t_addr, t_thr, tmp, sleep)
def lds_set(A, off, t0, t1):
    A(f"""
    v_mov_b32 v{t0}, {CNT + off}
    v_mov_b32 v{t1}, 1
    ds_write_b32 v{t0}, v{t1}
    """)
def lds_add(A, off, t0, t1):
    A(f"""
    v_mov_b32 v{t0}, {CNT + off}
    v_mov_b32 v{t1}, 1
    s_mov_b64 exec, 1
    ds_add_u32 v{t0}, v{t1}
    s_mov_b64 exec, -1
    """)
def lds_wait(A, off, t0, t1, val=1, sleep=1):
    L = A.newlabel("lw"); D = A.newlabel("lwd")
    A(f"""
    v_mov_b32 v{t0}, {CNT + off}
    s_mov_b32 s66, {POLL_MAX*16}
    {L}:
    ds_read_b32 v{t1}, v{t0}
    s_waitcnt lgkmcnt(0)
    v_readfirstlane_b32 s67, v{t1}
    s_nop 3
    s_cmp_ge_u32 s67, {val}
    s_cbranch_scc1 {D}
    s_sleep {sleep}
    s_sub_u32 s66, s66, 1
    s_cmp_lg_u32 s66, 0
    s_cbranch_scc1 {L}
    {D}:
    """)
def lds_arrive_last(A, off, n_s, skip_lab, t0, t1):
    A(f"""
    v_mov_b32 v{t0}, {CNT + off}
    v_mov_b32 v{t1}, 1
    s_mov_b64 exec, 1
    ds_add_rtn_u32 v{t1}, v{t0}, v{t1}
    s_waitcnt lgkmcnt(0)
    s_mov_b64 exec, -1
    v_readfirstlane_b32 s66, v{t1}
    s_nop 3
    s_add_u32 s66, s66, 1
    s_cmp_lg_u32 s66, {n_s}
    s_cbranch_scc1 {skip_lab}
    """)
def global_arrive(A, line_s, total, t0, t1):
    L = A.newlabel("ga")
    A(f"""
    s_lshl_b32 s66, {line_s}, 7
    s_add_u32 s66, s66, {SYNC}
    v_mov_b32 v{t0}, s66
    v_mov_b32 v{t1}, 1
    s_mov_b64 exec, 1
    global_atomic_add v{t1}, v{t0}, v{t1}, s[{P_WS}:{P_WS+1}] sc0 sc1
    s_waitcnt vmcnt(0)
    s_mov_b64 exec, -1
    v_readfirstlane_b32 s66, v{t1}
    s_nop 3
    s_add_u32 s66, s66, 1
    s_cmp_lg_u32 s66, {total}
    s_cbranch_scc1 {L}
    v_add_u32 v{t0}, {128*FLG}, v{t0}
    v_mov_b32 v{t1}, 1
    s_mov_b64 exec, 1
    global_store_dword v{t0}, v{t1}, s[{P_WS}:{P_WS+1}] sc1
    s_mov_b64 exec, -1
    {L}:
    """)

def flag_store(A, line_s, t0, t1):
    A(f"""
    s_lshl_b32 s66, {line_s}, 7
    s_add_u32 s66, s66, {SYNC}
    v_mov_b32 v{t0}, s66
    v_mov_b32 v{t1}, 1
    s_mov_b64 exec, 1
    global_store_dword v{t0}, v{t1}, s[{P_WS}:{P_WS+1}] sc1
    s_mov_b64 exec, -1
    """)
def poll2(A, a0, a1, n1, t0, t1, sleep):
    L = A.newlabel("poll2"); D = A.newlabel("poll2d")
    A(f"""
    s_mov_b32 s66, {POLL_MAX}
    {L}:
    global_load_dword v{t0}, v{a0}, s[{P_WS}:{P_WS+1}] sc1
    global_load_dword v{t1}, v{a1}, s[{P_WS}:{P_WS+1}] sc1
    s_waitcnt vmcnt(0)
    v_min_u32 v{t0}, v{t0}, v{t1}
    v_cmp_le_u32 vcc, 1, v{t0}
    s_nop 3
    s_cmp_eq_u64 vcc, -1
    s_cbranch_scc1 {D}
    s_sleep {sleep}
    s_sub_u32 s66, s66, 1
    s_cmp_lg_u32 s66, 0
    s_cbranch_scc1 {L}
    {D}:
    """)

def gen(A):
    A(f".globl {KNAME}")
    A(".p2align 8")
    A(f".type {KNAME},@function")
    A.label(KNAME)
    L_exit, L_nog, L_prod, L_bw, L_heads, L_conv = "L_exit", "L_nog", "L_prod", "L_bw", "L_heads", "L_conv"
    A(f"""
    s_cmp_ge_u32 s2, 256
    s_cbranch_scc1 {L_exit}
    s_load_dwordx16 s[4:19], s[0:1], 0
    s_load_dwordx8 s[20:27], s[0:1], 64
    v_lshrrev_b32 v1, 6, v0
    v_and_b32 v0, 63, v0
    v_readfirstlane_b32 s{S_WAVE}, v1
    s_and_b32 s{S_XCD}, s2, 7
    s_lshr_b32 s{S_J}, s2, 3
    s_lshr_b32 s{S_RB}, s{S_XCD}, 1
    s_lshl_b32 s{S_RB}, s{S_RB}, 2
    s_and_b32 s49, s{S_J}, 3
    s_add_u32 s{S_RB}, s{S_RB}, s49        ; rb
    s_and_b32 s{S_CB}, s{S_XCD}, 1
    s_lshl_b32 s{S_CB}, s{S_CB}, 3
    s_lshr_b32 s49, s{S_J}, 2
    s_add_u32 s{S_CB}, s{S_CB}, s49        ; cb
    v_mov_b32 v2, {CNT}
    v_mov_b32 v4, 0
    v_mov_b32 v5, 0
    v_mov_b32 v6, 0
    v_mov_b32 v7, 0
    ds_write_b128 v2, v[4:7]
    ds_write_b128 v2, v[4:7] offset:16
    ds_write_b128 v2, v[4:7] offset:32
    s_waitcnt lgkmcnt(0)
    s_barrier
    """)
    srd(A, R_WS, P_WS, WS_BYTES)
    prof_init(A)
    A(f"""
    s_cmp_ge_u32 s{S_WAVE}, 8
    s_cbranch_scc1 {L_bw}
    s_cmp_ge_u32 s{S_CB}, 15
    s_cbranch_scc1 {L_nog}
    s_cmp_ge_u32 s{S_WAVE}, 4
    s_cbranch_scc1 {L_prod}
    """)
    slot_of = lambda st: (st + 2) % 3

    A(f"""
    s_lshr_b32 s56, s{S_WAVE}, 1       ; wr
    s_and_b32 s57, s{S_WAVE}, 1        ; wc
    v_and_b32 v2, 31, v0           ; n
    v_lshrrev_b32 v3, 5, v0        ; h
    v_bfe_u32 v4, v0, 1, 3         ; (l>>1)&7
    s_lshl_b32 s54, s56, 6
    v_add_u32 v5, s54, v2
    v_lshlrev_b32 v5, 7, v5        ; token_local*128
    """)
    for ks in range(4):
        A(f"""
        v_add_u32 v6, {2*ks}, v3
        v_xor_b32 v6, v6, v4
        v_lshl_add_u32 v{16+ks}, v6, 4, v5
        v_add_u32 v{20+ks}, 0x10000, v{16+ks}""")
    def w_addr():
        A(f"""
        v_lshrrev_b32 v2, 4, v0        ; g
        v_bfe_u32 v3, v0, 2, 2         ; r
        v_and_b32 v4, 3, v0            ; c4
        v_lshrrev_b32 v5, 1, v2
        v_lshl_add_u32 v5, v5, 3, v3   ; k_local
        v_lshlrev_b32 v5, 8, v5
        v_add_u32 v5, 16384, v5
        v_and_b32 v6, 1, v2
        v_lshl_add_u32 v6, v6, 2, v4   ; rg = 4*(g&1) + c4
        v_mul_u32_u24 v6, 5, v6
        v_lshlrev_b32 v7, 2, v3        ; 4r
        """)
        for ft in range(2):
            A(f"""
            v_lshrrev_b64 v[8:9], v6, s[{60+2*ft}:{61+2*ft}]
            v_and_b32 v8, 31, v8
            v_lshrrev_b32 v9, 1, v8
            v_xor_b32 v9, v9, v7
            v_and_b32 v8, 1, v8
            v_lshlrev_b32 v8, 3, v8
            v_lshl_add_u32 v8, v9, 4, v8
            v_add_u32 v{24+ft}, v5, v8
            v_add_u32 v{26+ft}, 0x10000, v{24+ft}""")
    FR = [dict(X=[32, 36], W=[40, 44]), dict(X=[48, 52], W=[56, 60])]
    ACC = lambda ft, tt: 64 + 16 * (2 * ft + tt)
    def reads(st, ks, setid):
        slot = slot_of(st); hi = slot == 2
        so = 0 if hi else slot * 32768
        xa = (20 if hi else 16) + ks; wa = (26 if hi else 24); F = FR[setid]
        return [f"ds_read_b128 {v(F['X'][0],4)}, v{xa} offset:{so}",
                f"ds_read_b64_tr_b16 {v(F['W'][0],2)}, v{wa} offset:{so + ks*4096}",
                f"ds_read_b64_tr_b16 {v(F['W'][0]+2,2)}, v{wa} offset:{so + ks*4096 + 1024}",
                f"ds_read_b128 {v(F['X'][1],4)}, v{xa} offset:{so + 4096}",
                f"ds_read_b64_tr_b16 {v(F['W'][1],2)}, v{wa+1} offset:{so + ks*4096}",
                f"ds_read_b64_tr_b16 {v(F['W'][1]+2,2)}, v{wa+1} offset:{so + ks*4096 + 1024}"]
    def mfmas(setid, first, vmode):
        F = FR[setid]; m = []
        for (ft, tt) in [(0, 0), (0, 1), (1, 0), (1, 1)]:
            d = ACC(ft, tt); c = "0" if first else v(d, 16)
            a_, b_ = (F['X'][tt], F['W'][ft]) if vmode else (F['W'][ft], F['X'][tt])
            m.append(f"v_mfma_f32_32x32x16_bf16 {v(d,16)}, {v(a_,4)}, {v(b_,4)}, {c}")
        return m
    def main_loop(vmode):
        A("s_barrier")
        stp(A, "b0")
        for r in reads(0, 0, 0): A(r)
        n = 0
        for st in range(10):
            for ks in range(4):
                setid = n % 2
                m = mfmas(setid, n == 0, vmode)
                A("s_waitcnt lgkmcnt(0)")
                if ks == 3 and st < 9:
                    A("s_barrier")
                    stp(A, f"gb{st+1}")
                A(m[0])
                if ks < 3:
                    for r in reads(st, ks + 1, 1 - setid): A(r)
                elif st < 9:
                    for r in reads(st + 1, 0, 1 - setid): A(r)
                A(m[1]); A(m[2]); A(m[3])
                n += 1
        stp(A, "gend")
        A("s_nop 15")
    L_vpath = A.newlabel("vpath"); L_gsig = A.newlabel("gsig"); L_vdone = A.newlabel("vdone")
    A(f"""
    s_cmp_ge_u32 s{S_CB}, 10
    s_cbranch_scc1 {L_vpath}
    s_cmp_ge_u32 s{S_CB}, 5
    s_cselect_b32 s55, 5, 0
    s_sub_u32 s55, s{S_CB}, s55        ; cb'
    s_lshl_b32 s55, s55, 1
    s_add_u32 s55, s55, s57
    """)
    for var in range(10):
        cbp, wc = divmod(var, 2); T = []
        for ft in range(2):
            tab = [0]*8
            for si, it in enumerate(ASSIGN[cbp][2*wc + ft]):
                ap, h = divmod(si, 2)
                tab[4*ap + h] = it[1]; tab[4*ap + 2 + h] = it[2]
            T.append(sum(g << (5*i) for i, g in enumerate(tab)))
        nxt = A.newlabel("var")
        A(f"""
        s_cmp_lg_u32 s55, {var}
        s_cbranch_scc1 {nxt}
        s_mov_b32 s60, {hex(T[0] & 0xffffffff)}
        s_mov_b32 s61, {hex(T[0] >> 32)}
        s_mov_b32 s62, {hex(T[1] & 0xffffffff)}
        s_mov_b32 s63, {hex(T[1] >> 32)}
        s_branch {L_vdone}
        {nxt}:""")
    A(f"""
    s_mov_b64 s[60:61], 0
    s_mov_b64 s[62:63], 0
    {L_vdone}:
    """)
    w_addr()
    A(f"""
    s_mov_b32 s58, {hex(QSCALE)}
    s_cmp_ge_u32 s{S_CB}, 5
    s_cmov_b32 s58, 0x3f800000
    s_mov_b32 s59, s58
    v_lshlrev_b32 v128, 4, v0
    s_lshl_b32 s54, s{S_RB}, 2
    s_lshl_b32 s55, s56, 1
    s_add_u32 s54, s54, s55
    s_lshl_b32 s55, s{S_CB}, 6
    s_add_u32 s54, s54, s55
    s_mul_i32 s54, s54, {TB}
    s_lshl_b32 s55, s57, 12        ; wc*4096
    s_add_u32 s64, s54, s55
    s_add_u32 s65, s64, {TB}
    """)
    main_loop(False)
    for ft in range(2):
        for tt in range(2):
            d = ACC(ft, tt)
            for i in range(0, 16, 2):
                A(f"v_pk_mul_f32 {v(d+i,2)}, {v(d+i,2)}, s[58:59]")
            for ap in range(2):
                for i in range(4):
                    A(f"v_cvt_pk_bf16_f32 v{d+8*ap+i}, v{d+8*ap+2*i}, v{d+8*ap+2*i+1}")
                A(f"buffer_store_dwordx4 {v(d+8*ap,4)}, v128, s[{R_WS}:{R_WS+3}], s{64+tt} offen offset:{ft*2048 + ap*1024}{SC}")
    A(f"s_branch {L_gsig}")
    A.label(L_vpath)
    nat = sum(i << (5*i) for i in range(8)); rep = sum(1 << (5*i) for i in range(8))
    A(f"""
    s_lshl_b32 s54, s57, 4
    s_mul_i32 s55, s54, {hex(rep & 0xffffffff)}
    s_mul_hi_u32 s61, s54, {hex(rep & 0xffffffff)}
    s_mul_i32 s66, s54, {hex(rep >> 32)}
    s_add_u32 s61, s61, s66
    s_add_u32 s60, s55, {hex(nat & 0xffffffff)}
    s_addc_u32 s61, s61, {hex(nat >> 32)}
    s_add_u32 s62, s60, {hex((8*rep) & 0xffffffff)}
    s_addc_u32 s63, s61, {hex((8*rep) >> 32)}
    """)
    w_addr()
    A(f"""
    v_lshlrev_b32 v128, 4, v0
    s_lshl_b32 s54, s{S_RB}, 2
    s_lshl_b32 s55, s{S_CB}, 6
    s_add_u32 s54, s54, s55
    s_add_u32 s55, s54, s{S_WAVE}
    s_mul_i32 s55, s55, {TB}
    s_add_u32 s58, s55, 8192
    s_lshl_b32 s55, s56, 1
    s_add_u32 s54, s54, s55
    s_mul_i32 s54, s54, {TB}
    s_lshl_b32 s55, s57, 11
    s_add_u32 s62, s54, s55
    s_add_u32 s63, s62, 4096
    s_add_u32 s64, s62, {TB}
    s_add_u32 s65, s64, 4096
    """)
    main_loop(True)
    for ft in range(2):
        for tt in range(2):
            d = ACC(ft, tt)
            for f in range(2):
                for i in range(4):
                    A(f"v_cvt_pk_bf16_f32 v{d+8*f+i}, v{d+8*f+2*i}, v{d+8*f+2*i+1}")
                A(f"buffer_store_dwordx4 {v(d+8*f,4)}, v128, s[{R_WS}:{R_WS+3}], s{62+2*tt+f} offen offset:{ft*1024}{SC}")
    A(f"""
    v_cmp_eq_u32 vcc, 0, v0
    v_mov_b32 v36, 0x3f803f80
    s_nop 0
    v_cndmask_b32 v32, 0, v36, vcc
    v_cndmask_b32 v33, 0, v36, vcc
    v_cndmask_b32 v34, 0, v36, vcc
    v_cndmask_b32 v35, 0, v36, vcc
    s_mov_b64 exec, 15
    buffer_store_dwordx4 v[32:35], v128, s[{R_WS}:{R_WS+3}], s58 offen{SC}
    s_mov_b64 exec, -1
    """)
    A.label(L_gsig)
    stp(A, "gstored")
    A("s_waitcnt vmcnt(0)")
    stp(A, "gdrained")
    L_qs = A.newlabel("qs")
    lds_arrive_last(A, C_QKV, 4, L_qs, 2, 3)
    lds_wait(A, C_INIT, 2, 3)
    A(f"""
    s_lshl_b32 s65, s{S_CB}, 4
    s_add_u32 s65, s65, s{S_RB}
    s_add_u32 s65, s65, {L_QF}
    """)
    flag_store(A, "s65", 2, 3)
    A.label(L_qs)
    stp(A, "gsig")
    A(f"s_branch {L_heads}")

    A.label(L_prod)
    srd(A, R_A, P_X, 2048 * 640 * 2)
    srd(A, R_B, P_W, 640 * 1920 * 2)
    VXE, VXO, VW = 10, 11, 12
    A(f"""
    s_sub_u32 s55, s{S_WAVE}, 4            ; pw
    s_lshl_b32 s49, s55, 12
    s_mul_i32 s53, s55, 61440
    s_and_b32 s50, s{S_RB}, 3
    s_mul_i32 s50, s50, 3
    s_add_u32 s50, s50, s{S_CB}
    s_cmp_ge_u32 s50, 20
    s_cselect_b32 s51, 20, 0
    s_sub_u32 s50, s50, s51
    s_cmp_ge_u32 s50, 10
    s_cselect_b32 s51, 10, 0
    s_sub_u32 s50, s50, s51
    """)
    if not E("ROT", 1): A("s_mov_b32 s50, 0")
    A(f"""
    s_lshl_b32 s51, s50, 7
    s_mul_i32 s52, s50, 245760
    s_add_u32 s52, s52, s53
    v_lshrrev_b32 v2, 3, v0
    v_lshrrev_b32 v3, 4, v0
    v_and_b32 v4, 7, v0
    v_xor_b32 v4, v4, v3
    s_lshl_b32 s54, s{S_RB}, 7
    s_lshl_b32 s55, s55, 5
    s_add_u32 s54, s54, s55
    v_add_u32 v2, s54, v2
    v_mul_u32_u24 v2, 1280, v2
    v_lshl_add_u32 v{VXE}, v4, 4, v2
    v_xor_b32 v{VXO}, 64, v{VXE}
    v_and_b32 v4, 15, v0
    v_lshlrev_b32 v5, 2, v3
    v_xor_b32 v4, v4, v5
    v_mul_u32_u24 v5, 3840, v3
    v_lshl_add_u32 v{VW}, v4, 4, v5
    s_lshl_b32 s54, s{S_CB}, 8
    v_add_u32 v{VW}, s54, v{VW}
    """)
    def dma_stage(st):
        so = slot_of(st) * 32768
        for i in range(4):
            A(f"""
            s_add_u32 m0, s49, {so + i*1024}
            s_add_u32 s54, s51, {i*10240}
            buffer_load_dwordx4 v{VXO if i % 2 else VXE}, s[{R_A}:{R_A+3}], s54 offen lds""")
        for i in range(4):
            A(f"""
            s_add_u32 m0, s49, {so + 16384 + i*1024}
            s_add_u32 s54, s52, {i*15360}
            buffer_load_dwordx4 v{VW}, s[{R_B}:{R_B+3}], s54 offen lds""")
        A("""
        s_add_u32 s50, s50, 1
        s_cmp_eq_u32 s50, 10
        s_cselect_b32 s50, 0, s50
        s_lshl_b32 s51, s50, 7
        s_mul_i32 s52, s50, 245760
        s_add_u32 s52, s52, s53""")
    for st in range(3): dma_stage(st)
    lds_add(A, C_ISS, 2, 3)
    A("s_waitcnt vmcnt(16)\ns_barrier")
    stp(A, "b0")
    for s_ in range(1, 8):
        A("s_waitcnt vmcnt(8)\ns_barrier")
        dma_stage(s_ + 2)
    A("s_waitcnt vmcnt(8)\ns_barrier")
    A("s_waitcnt vmcnt(0)\ns_barrier")
    stp(A, "b9")
    A(f"s_branch {L_heads}")

    A.label(L_nog)
    L_nz = A.newlabel("nz")
    A(f"""
    s_cmp_lg_u32 s2, {ZERO_WG}
    s_cbranch_scc1 {L_nz}
    v_lshlrev_b32 v2, 4, v0
    v_add_u32 v2, {SYNC}, v2
    v_mov_b32 v4, 0
    v_mov_b32 v5, 0
    v_mov_b32 v6, 0
    v_mov_b32 v7, 0
    s_mul_i32 s54, s{S_WAVE}, {5*1024}
    """)
    for i in range(5):
        A(f"buffer_store_dwordx4 v[4:7], v2, s[{R_WS}:{R_WS+3}], s54 offen sc1\ns_add_u32 s54, s54, 1024")
    A("s_waitcnt vmcnt(0)")
    lds_arrive_last(A, C_KV + 8, 8, L_nz, 2, 3)
    A(f"""
    v_mov_b32 v2, 0
    v_mov_b32 v3, 1
    s_mov_b64 exec, 1
    global_store_dword v2, v3, s[{P_DBG}:{P_DBG+1}] sc1
    s_mov_b64 exec, -1
    {L_nz}:
    """)
    A(f"""
    v_mov_b32 v2, {CNT + C_QKV}
    v_mov_b32 v3, 4
    ds_write_b32 v2, v3
    """)

    A.label(L_heads)
    Q1, Q2 = 4, 8
    O = 16
    S = [32, 48]
    P = [64, 72]
    KA, KB, V0, V1 = 80, 84, 88, 92
    AK = [96, 99]; AK2 = [97, 100]; AV = [98, 101]
    KA0, KB0 = 104, 108
    WOV = 120
    VG = [126, 127, 128]; VKP, VKS, VVF = 129, 130, 131
    A(f"""
    s_lshl_b32 s43, s{S_XCD}, 2
    s_lshr_b32 s44, s{S_J}, 3
    s_add_u32 s43, s43, s44        ; head
    s_and_b32 s44, s{S_J}, 7       ; qb
    s_lshl_b32 s46, s44, 3
    s_add_u32 s46, s46, s{S_WAVE}  ; q tile
    s_mov_b32 s47, {hex(HEADWORD[0])}
    """)
    for h in range(1, 32):
        A(f"s_cmp_eq_u32 s43, {h}\ns_cmov_b32 s47, {hex(HEADWORD[h])}")
    for k, dst in enumerate((50, 51, 52)):
        A(f"""
        s_bfe_u32 s54, s47, {hex((3 << 16) | (7*k))}
        s_bfe_u32 s55, s47, {hex((4 << 16) | (7*k + 3))}
        s_mul_i32 s54, s54, {SEC}
        s_lshl_b32 s55, s55, 9
        s_add_u32 s{dst}, s54, s55""")
    A(f"""
    v_and_b32 v3, 31, v0           ; n
    v_lshrrev_b32 v12, 5, v0       ; h
    v_lshlrev_b32 v13, 4, v3       ; n*16
    v_cmp_eq_u32 vcc, 0, v12
    v_mov_b32 v14, s50
    v_mov_b32 v15, s51
    v_cndmask_b32 v14, v15, v14, vcc
    v_add_u32 v{VKP}, v14, v13
    s_and_b32 s54, s43, 1
    s_lshl_b32 s54, s54, 3
    s_add_u32 s54, s54, s52
    v_add_u32 v{VKS}, s54, v13
    v_add_u32 v{VG[0]}, {5*SEC + 2*TB}, v{VKP}
    s_mul_i32 s53, s43, 20
    s_add_u32 s45, s53, 19
    s_lshr_b32 s45, s45, 7
    s_add_u32 s45, s45, 10
    s_mul_i32 s45, s45, {SEC}
    s_add_u32 s45, s45, 8192
    """)
    def vchunk(dst, seg_v, m_v):
        A(f"""
        v_add_u32 v5, s53, v{m_v}          ; F
        v_lshrrev_b32 v6, 7, v5
        v_add_u32 v6, 10, v6
        v_mul_u32_u24 v6, {SEC // 64}, v6
        v_lshlrev_b32 v6, 6, v6
        v_bfe_u32 v7, v5, 5, 2
        v_lshlrev_b32 v7, 10, v7
        v_add_u32 v6, v6, v7
        v_and_b32 v7, 31, v5
        v_lshl_add_u32 v6, v7, 4, v6
        v_lshrrev_b32 v7, 1, v{seg_v}
        v_lshl_add_u32 v6, v7, 12, v6
        v_and_b32 v7, 1, v{seg_v}
        v_lshl_add_u32 v6, v7, 9, v6
        v_subrev_u32 v7, 20, v{m_v}
        v_and_b32 v7, 3, v7
        v_lshlrev_b32 v7, 4, v7
        v_add_u32 v7, s45, v7
        v_cmp_gt_u32 vcc, 20, v{m_v}
        s_nop 1
        v_cndmask_b32 v{dst}, v7, v6, vcc
        """)
    A("""
    v_cmp_gt_u32 vcc, 56, v0
    v_subrev_u32 v8, 32, v0
    v_subrev_u32 v9, 56, v0
    v_cndmask_b32 v8, v9, v8, vcc          ; m
    v_mov_b32 v9, 1
    v_mov_b32 v10, 0
    v_cndmask_b32 v9, v9, v10, vcc         ; seg
    """)
    vchunk(11, 9, 8)
    A(f"""
    v_add_u32 v6, s52, v13
    v_add_u32 v6, {5*SEC + 2*TB}, v6
    v_cmp_gt_u32 vcc, 32, v0
    s_nop 1
    v_cndmask_b32 v{VG[1]}, v11, v6, vcc
    v_cmp_gt_u32 vcc, 16, v0
    v_cmp_gt_u32 s[54:55], 40, v0
    v_subrev_u32 v8, 40, v0
    v_subrev_u32 v10, 16, v0
    v_cndmask_b32 v8, v8, v10, s[54:55]
    v_add_u32 v10, 8, v0
    v_cndmask_b32 v8, v8, v10, vcc         ; m
    v_mov_b32 v9, 3
    v_mov_b32 v10, 2
    v_cndmask_b32 v9, v9, v10, s[54:55]
    v_mov_b32 v10, 1
    v_cndmask_b32 v9, v9, v10, vcc         ; seg
    """)
    vchunk(VG[2], 9, 8)
    A("v_mov_b32 v8, v3\nv_mov_b32 v9, v12")
    vchunk(VVF, 9, 8)
    srd(A, R_A, P_WO, 640 * 640 * 2)
    A(f"s_and_b32 s52, s{S_J}, 7\ns_mul_i32 s52, s52, 160")
    for b in range(5):
        A(f"""
        v_add_u32 v5, {64*b}, v0
        v_mul_u32_u24 v6, 52429, v5
        v_lshrrev_b32 v6, 19, v6
        v_mul_u32_u24 v7, 10, v6
        v_sub_u32 v7, v5, v7
        v_mul_u32_u24 v6, 1280, v6
        v_lshl_add_u32 v6, v7, 4, v6
        v_add_u32 v{WOV+b}, s52, v6""")
    A(f"""
    s_mul_i32 s53, s{S_WAVE}, 5120
    s_mul_i32 s62, s{S_WAVE}, 40960
    s_mov_b32 s60, 0
    v_lshlrev_b32 v2, 4, v0
    v_mul_u32_u24 v13, 384, v12
    v_lshl_add_u32 v13, v3, 4, v13
    v_add_u32 v{AV[0]}, 1536, v13
    v_mov_b32 v{AK[0]}, v2
    s_and_b32 s54, s43, 1
    s_lshl_b32 s54, s54, 3
    s_add_u32 s54, s54, 1024
    v_lshlrev_b32 v1, 4, v3
    v_add_u32 v{AK2[0]}, s54, v1
    v_add_u32 v{AV[1]}, {CHUNK}, v{AV[0]}
    v_add_u32 v{AK[1]}, {CHUNK}, v{AK[0]}
    v_add_u32 v{AK2[1]}, {CHUNK}, v{AK2[0]}
    v_cmp_lt_u32 vcc, 20, v3
    v_mov_b32 v5, 0x30000
    v_mov_b32 v{Q2+2}, 0
    v_cndmask_b32 v{AV[0]}, v{AV[0]}, v5, vcc
    v_cndmask_b32 v{AV[1]}, v{AV[1]}, v5, vcc
    v_mov_b32 v{Q2+3}, 0
    v_mov_b32 v{KB+2}, 0
    v_mov_b32 v{KB+3}, 0
    v_mov_b32 v{KB0+2}, 0
    v_mov_b32 v{KB0+3}, 0
    s_mul_i32 s45, s46, {TB}
    s_mul_i32 s49, s{S_WAVE}, {REC}
    s_mul_i32 s50, s{S_WAVE}, {TB}
    """)
    stp(A, "hset")
    L_gow = A.newlabel("gow"); L_go = A.newlabel("go")
    A(f"""
    s_cmp_lg_u32 s{S_WAVE}, 0
    s_cbranch_scc1 {L_gow}
    """)
    lds_wait(A, C_QKV, 5, 6, val=4)
    lds_wait(A, C_INIT, 5, 6)
    A(f"""
    s_mul_i32 s54, s43, 5
    s_add_u32 s55, s54, 4
    s_lshr_b32 s54, s54, 5             ; c0
    s_lshr_b32 s55, s55, 5             ; c1
    v_bfe_u32 v5, v0, 4, 1
    v_cmp_eq_u32 vcc, 1, v5
    v_mov_b32 v6, s54
    v_mov_b32 v7, s55
    v_cndmask_b32 v6, v6, v7, vcc      ; c0 / c1
    v_lshrrev_b32 v5, 5, v0
    v_mul_u32_u24 v5, 5, v5
    v_add_u32 v5, v5, v6
    v_add_u32 v6, 10, v6
    v_and_b32 v7, 15, v0
    v_lshl_add_u32 v5, v5, 4, v7
    v_lshl_add_u32 v6, v6, 4, v7
    v_lshlrev_b32 v5, 7, v5
    v_lshlrev_b32 v6, 7, v6
    v_add_u32 v5, {SYNC + 128*L_QF}, v5
    v_add_u32 v6, {SYNC + 128*L_QF}, v6
    """)
    poll2(A, 5, 6, 64, 7, 8, E("PS_QKV", 2))
    lds_set(A, C_GO, 5, 6)
    A(f"s_branch {L_go}")
    A.label(L_gow)
    lds_wait(A, C_GO, 5, 6)
    A.label(L_go)
    stp(A, "go")
    A(f"""
    buffer_load_dwordx4 {v(Q1,4)}, v{VKP}, s[{R_WS}:{R_WS+3}], s45 offen{SC}
    buffer_load_dwordx2 {v(Q2,2)}, v{VKS}, s[{R_WS}:{R_WS+3}], s45 offen{SC}
    s_mov_b32 s48, {5*SEC}
    buffer_load_dwordx4 {v(KA0,4)}, v{VKP}, s[{R_WS}:{R_WS+3}], s48 offen{SC}
    buffer_load_dwordx2 {v(KB0,2)}, v{VKS}, s[{R_WS}:{R_WS+3}], s48 offen{SC}
    s_mov_b32 s48, {5*SEC + TB}
    buffer_load_dwordx4 {v(KA,4)}, v{VKP}, s[{R_WS}:{R_WS+3}], s48 offen{SC}
    buffer_load_dwordx2 {v(KB,2)}, v{VKS}, s[{R_WS}:{R_WS+3}], s48 offen{SC}
    """)
    def kv_piece(chunk, i):
        slot = chunk % 2; rr, part = divmod(i, 3)
        return f"""
        s_add_u32 m0, s49, {slot*CHUNK + rr*8*REC + part*1024}
        s_add_u32 s51, s50, {(chunk*16 + rr*8)*TB}
        buffer_load_dwordx4 v{VG[part]}, s[{R_WS}:{R_WS+3}], s51 offen{SC} lds"""
    for i in range(6): A(kv_piece(0, i))
    if not E("C1LATE", 1):
        for i in range(6): A(kv_piece(1, i))
    A(f"""
    v_cmp_gt_u32 vcc, 32, v0
    s_waitcnt vmcnt({0 if E("C1LATE", 1) else 6})
    s_nop 0
    v_cndmask_b32 v{Q2}, 0, v{Q2}, vcc
    v_cndmask_b32 v{Q2+1}, 0, v{Q2+1}, vcc
    """)
    stp(A, "kvok")
    lds_add(A, C_KV, 12, 13)
    lds_wait(A, C_KV, 12, 13, val=8, sleep=0)
    stp(A, "att0")

    def wo_piece(kind, b):
        if kind == 0:
            return f"""
            s_add_u32 m0, s53, {WO_A + b*1024}
            s_nop 0
            buffer_load_dwordx4 v{WOV+b}, s[{R_A}:{R_A+3}], s62 offen lds"""
        if kind == 2:
            return f"""
            s_add_u32 m0, s53, {b*1024}
            s_add_u32 s51, s62, {WO_BROW*1280}
            buffer_load_dwordx4 v{WOV+b}, s[{R_A}:{R_A+3}], s51 offen lds"""
        lab = A.newlabel("wos")
        if kind == 1: lim, ldso, go = 3, WO_A + 8*5120, 8*40960
        else: lim, ldso, go = (2 if b < 2 else 1), 8*5120, WO_BROW*1280 + 8*40960
        return f"""
            s_cmp_ge_u32 s{S_WAVE}, {lim}
            s_cbranch_scc1 {lab}
            s_add_u32 m0, s53, {ldso + b*1024}
            s_add_u32 s51, s62, {go}
            buffer_load_dwordx4 v{WOV+b}, s[{R_A}:{R_A+3}], s51 offen lds
            {lab}:"""
    def qk2(Sd, Kr):
        if E("K8", 0): return f"v_mfma_f32_32x32x8bf16_1k {v(Sd,16)}, {v(Kr,2)}, {v(Q2,2)}, {v(Sd,16)}"
        return f"v_mfma_f32_32x32x16_bf16 {v(Sd,16)}, {v(Kr,4)}, {v(Q2,4)}, {v(Sd,16)}"
    A(f"v_mfma_f32_32x32x16_bf16 {v(S[0],16)}, {v(KA0,4)}, {v(Q1,4)}, 0")
    A(qk2(S[0], KB0))
    A("s_nop 7\ns_nop 7")
    for J in range(64):
        c = J // 16; slot = c % 2; j = J % 16
        Sc, Sn = S[J % 2], S[(J + 1) % 2]
        Pc, Pp = P[J % 2], P[(J + 1) % 2]
        off = j * REC
        if j == 0 and J > 0:
            A(f"s_waitcnt vmcnt({5 if J == 32 else 0}) lgkmcnt(0)\ns_barrier")
        EX = lambda i: f"v_exp_f32 v{Sc+i}, v{Sc+i}"
        CV = lambda i: f"v_cvt_pk_bf16_f32 v{Pc+i}, v{Sc+2*i}, v{Sc+2*i+1}"
        G = [(EX(0),EX(1),EX(2),EX(3),CV(0),CV(1)), (EX(4),EX(5),EX(6),EX(7),CV(2),CV(3)), (EX(8),EX(9),EX(10),EX(11),CV(4),CV(5)), (EX(12),EX(13),EX(14),EX(15),CV(6),CV(7))]
        if j in (0, 9, 13, 15):
            A(f"s_setprio {dict([(0,3),(9,2),(13,1),(15,0)])[j]}")
        if J > 0 and j != 0: A("s_waitcnt lgkmcnt(2)")
        if J < 63: A(f"v_mfma_f32_32x32x16_bf16 {v(Sn,16)}, {v(KA,4)}, {v(Q1,4)}, 0")
        if J < 62: A(f"ds_read_b128 {v(KA,4)}, v{AK[slot]} offset:{off}")
        for x in G[0]: A(x)
        if J < 63: A(qk2(Sn, KB))
        if J < 62: A(f"ds_read_b64 {v(KB,2)}, v{AK2[slot]} offset:{off}")
        for x in G[1]: A(x)
        if J > 0:
            A("s_waitcnt lgkmcnt(2)" if J < 62 else "s_waitcnt lgkmcnt(0)")
            cc = "0" if J == 1 else v(O, 16)
            A(f"v_mfma_f32_32x32x16_bf16 {v(O,16)}, {v(V0,4)}, {v(Pp,4)}, {cc}")
        A(f"ds_read_b128 {v(V0,4)}, v{AV[slot]} offset:{off}")
        for x in G[2]: A(x)
        if J > 0: A(f"v_mfma_f32_32x32x16_bf16 {v(O,16)}, {v(V1,4)}, {v(Pp+4,4)}, {v(O,16)}")
        A(f"ds_read_b128 {v(V1,4)}, v{AV[slot]} offset:{off + 768}")
        if (c in (1, 2) or (c == 0 and E("C1LATE", 1))) and j < 6: A(kv_piece(c + 1, j))
        if c == 1 and 6 <= j < 11: A(wo_piece(0, j - 6))
        if c == 1 and 11 <= j < 16: A(wo_piece(1, j - 11))
        if c == 3 and 1 <= j < 6: A(wo_piece(2, j - 1))
        if c == 3 and 6 <= j < 11: A(wo_piece(3, j - 6))
        for x in G[3]: A(x)
    stp(A, "att1")
    Pl = P[63 % 2]
    A("s_waitcnt lgkmcnt(0)")
    A(f"v_mfma_f32_32x32x16_bf16 {v(O,16)}, {v(V0,4)}, {v(Pl,4)}, {v(O,16)}")
    A(f"v_mfma_f32_32x32x16_bf16 {v(O,16)}, {v(V1,4)}, {v(Pl+4,4)}, {v(O,16)}")
    A("s_setprio 0")
    L_fin = A.newlabel("fin"); L_slow = A.newlabel("slow"); L_odone = A.newlabel("odone")
    def addr_calc():
        A(f"""
        s_lshl_b32 s52, s43, 6
        s_add_u32 s52, s52, s46
        s_mul_i32 s52, s52, 1536
        s_add_u32 s52, s52, {WS_O}
        v_lshlrev_b32 v104, 4, v0
        """)
    addr_calc()
    A("s_nop 7")
    A.label(L_fin)
    A("s_nop 7")
    A(f"""
    v_mov_b32 v110, v{O+8}
    v_mov_b32 v111, v{O+8}
    s_nop 1
    v_permlane32_swap_b32 v110, v111
    s_nop 1
    v_rcp_f32 v112, v111
    s_nop 0
    """)
    for i in range(0, 12, 2):
        A(f"v_pk_mul_f32 {v(O+i,2)}, {v(O+i,2)}, v[112:113] op_sel_hi:[1,0]")
    A(f"""
    v_add_f32 v113, abs(v{O}), abs(v{O+1})
    v_add_f32 v114, abs(v{O+8}), abs(v{O+9})
    """)
    for i in range(2, 8): A(f"v_add_f32 v113, v113, abs(v{O+i})")
    A(f"""
    v_add_f32 v114, v114, abs(v{O+10})
    v_add_f32 v114, v114, abs(v{O+11})
    v_cmp_gt_u32 vcc, 32, v0
    v_mov_b32 v115, 0x21800000         ; 2^-60
    v_mov_b32 v116, 0x5d800000         ; 2^60
    v_cndmask_b32 v114, 0, v114, vcc
    v_add_f32 v113, v113, v114
    v_mov_b32 v114, 0x7f800000
    v_cmp_nlt_f32 s[54:55], v113, v114
    v_cmp_ngt_f32 s[56:57], v111, v115
    v_cmp_nlt_f32 vcc, v111, v116
    s_nop 1
    s_or_b64 s[54:55], s[54:55], s[56:57]
    s_or_b64 s[54:55], s[54:55], vcc
    s_cmp_lg_u64 s[54:55], 0
    s_cselect_b32 s61, 1, 0
    s_andn2_b32 s61, s61, s60
    s_cmp_lg_u32 s61, 0
    s_cbranch_scc1 {L_slow}
    """)
    for i in range(4): A(f"v_cvt_pk_bf16_f32 v{O+i}, v{O+2*i}, v{O+2*i+1}")
    A(f"""
    v_cvt_pk_bf16_f32 v{O+8}, v{O+8}, v{O+9}
    v_cvt_pk_bf16_f32 v{O+9}, v{O+10}, v{O+11}
    v_mov_b32 v{O+10}, 0
    v_mov_b32 v{O+11}, 0
    buffer_store_dwordx4 {v(O,4)}, v104, s[{R_WS}:{R_WS+3}], s52 offen{SC}
    s_mov_b32 exec_hi, 0
    buffer_store_dwordx4 {v(O+8,4)}, v104, s[{R_WS}:{R_WS+3}], s52 offen offset:1024{SC}
    s_mov_b64 exec, -1
    s_branch {L_odone}
    """)
    A.label(L_slow)
    L1 = A.newlabel("p1"); L2 = A.newlabel("p2")
    A(f"""
    s_mov_b32 s60, 1
    v_mov_b32 v110, 0xff800000
    s_mov_b32 s52, 0
    {L1}:
    s_mul_i32 s63, s52, {TB}
    s_add_u32 s63, s63, {5*SEC}
    buffer_load_dwordx4 {v(KA,4)}, v{VKP}, s[{R_WS}:{R_WS+3}], s63 offen{SC}
    buffer_load_dwordx2 {v(KB,2)}, v{VKS}, s[{R_WS}:{R_WS+3}], s63 offen{SC}
    s_waitcnt vmcnt(0)
    v_mfma_f32_32x32x16_bf16 {v(S[0],16)}, {v(KA,4)}, {v(Q1,4)}, 0
    v_mfma_f32_32x32x16_bf16 {v(S[0],16)}, {v(KB,4)}, {v(Q2,4)}, {v(S[0],16)}
    s_nop 7
    s_nop 7
    """)
    for i in range(0, 16, 2): A(f"v_max3_f32 v110, v110, v{S[0]+i}, v{S[0]+i+1}")
    A(f"""
    s_add_u32 s52, s52, 1
    s_cmp_lt_u32 s52, 64
    s_cbranch_scc1 {L1}
    v_mov_b32 v108, v110
    v_mov_b32 v109, v110
    s_nop 1
    v_permlane32_swap_b32 v108, v109
    s_nop 1
    v_max_f32 v110, v108, v109
    v_and_b32 v3, 31, v0
    v_cmp_gt_u32 vcc, 20, v3
    v_add_u32 v108, 4096, v{VVF}
    s_nop 0
    v_cndmask_b32 v109, v{VVF}, v108, vcc
    """)
    for i in range(16): A(f"v_mov_b32 v{O+i}, 0")
    A("s_mov_b32 s52, 0")
    A.label(L2)
    A(f"""
    s_mul_i32 s54, s52, {TB}
    s_add_u32 s63, s54, {5*SEC}
    buffer_load_dwordx4 {v(KA,4)}, v{VKP}, s[{R_WS}:{R_WS+3}], s63 offen{SC}
    buffer_load_dwordx2 {v(KB,2)}, v{VKS}, s[{R_WS}:{R_WS+3}], s63 offen{SC}
    buffer_load_dwordx4 {v(V0,4)}, v{VVF}, s[{R_WS}:{R_WS+3}], s54 offen{SC}
    buffer_load_dwordx4 {v(V1,4)}, v109, s[{R_WS}:{R_WS+3}], s54 offen{SC}
    s_waitcnt vmcnt(0)
    v_mfma_f32_32x32x16_bf16 {v(S[0],16)}, {v(KA,4)}, {v(Q1,4)}, 0
    v_mfma_f32_32x32x16_bf16 {v(S[0],16)}, {v(KB,4)}, {v(Q2,4)}, {v(S[0],16)}
    s_nop 7
    s_nop 7
    """)
    for i in range(16): A(f"v_sub_f32 v{S[0]+i}, v{S[0]+i}, v110")
    for i in range(16): A(f"v_exp_f32 v{S[0]+i}, v{S[0]+i}")
    A("s_nop 0")
    for i in range(8): A(f"v_cvt_pk_bf16_f32 v{P[0]+i}, v{S[0]+2*i}, v{S[0]+2*i+1}")
    A(f"""
    s_nop 1
    v_mfma_f32_32x32x16_bf16 {v(O,16)}, {v(V0,4)}, {v(P[0],4)}, {v(O,16)}
    v_mfma_f32_32x32x16_bf16 {v(O,16)}, {v(V1,4)}, {v(P[0]+4,4)}, {v(O,16)}
    s_add_u32 s52, s52, 1
    s_cmp_lt_u32 s52, 64
    s_cbranch_scc1 {L2}
    s_nop 7
    """)
    addr_calc()
    A(f"s_branch {L_fin}")

    A.label(L_odone)
    OF = 32; AD = 80; OA = 88; VOUT, VRED = 91, 92; ACC3 = 96; WF = [116, 136]
    A(f"""
    s_lshl_b32 s54, s{S_XCD}, 2
    s_lshr_b32 s55, s{S_J}, 3
    s_add_u32 s54, s54, s55        ; tb
    s_lshl_b32 s54, s54, 2
    s_and_b32 s55, s{S_WAVE}, 3
    s_add_u32 s54, s54, s55        ; T
    s_lshr_b32 s45, s54, 1
    s_mul_i32 s45, s45, 1536
    s_and_b32 s57, s54, 1
    s_lshl_b32 s57, s57, 8
    s_add_u32 s45, s45, s57
    s_add_u32 s45, s45, {WS_O}
    s_lshr_b32 s57, s{S_WAVE}, 2
    s_mul_i32 s57, s57, {16*64*1536}
    s_add_u32 s62, s45, s57
    v_lshrrev_b32 v5, 4, v0            ; kg
    v_and_b32 v6, 15, v0
    v_lshlrev_b32 v6, 4, v6
    """)
    for c in range(3):
        A(f"""
        v_add_u32 v8, {4*c}, v5
        v_mul_u32_u24 v9, 21846, v8
        v_lshrrev_b32 v9, 16, v9
        v_mul_u32_u24 v10, 3, v9
        v_sub_u32 v10, v8, v10
        v_mul_u32_u24 v9, 1536, v9
        v_lshlrev_b32 v9, 6, v9
        v_lshl_add_u32 v9, v10, 9, v9
        v_add_u32 v{OA+c}, v9, v6""")
    A(f"""
    v_and_b32 v3, 15, v0
    s_lshl_b32 s55, s54, 4
    v_add_u32 v3, s55, v3
    v_mul_u32_u24 v3, 2560, v3
    v_lshrrev_b32 v4, 4, v0
    v_lshl_add_u32 v3, v4, 3, v3
    s_and_b32 s55, s{S_J}, 7
    s_mul_i32 s55, s55, 160
    v_add_u32 v{VOUT}, s55, v3
    v_lshlrev_b32 v3, 4, v0
    s_and_b32 s55, s{S_WAVE}, 3
    s_mul_i32 s55, s55, 5120
    s_add_u32 s55, s55, {RED}
    v_add_u32 v{VRED}, s55, v3
    v_bfe_u32 v6, v0, 2, 2             ; r
    v_and_b32 v7, 3, v0
    v_lshlrev_b32 v7, 3, v7            ; 8*c4
    s_mov_b32 s59, {WO_A}
    """)
    def row_addr(dst0, s, region):
        A(f"""
        v_add_u32 v8, {4*s}, v5
        v_mul_u32_u24 v9, 21846, v8
        v_lshrrev_b32 v9, 16, v9
        v_mul_u32_u24 v10, 3, v9
        v_sub_u32 v10, v8, v10
        v_mul_u32_u24 v9, 20, v9
        v_add_u32 v9, v9, v6
        v_lshlrev_b32 v11, 2, v10
        v_cmp_eq_u32 vcc, 2, v10
        v_add_u32 v12, 8, v11
        v_lshlrev_b32 v13, 1, v11
        v_cndmask_b32 v11, v11, v13, vcc
        v_add_u32 v11, v11, v9
        v_add_u32 v12, v12, v9
        """)
        for hh, rv in enumerate((11, 12)):
            if region == "A":
                A(f"v_mul_u32_u24 v13, 160, v{rv}\nv_add3_u32 v{dst0+hh}, v13, v7, s59")
            elif region == "B":
                A(f"v_subrev_u32 v13, {WO_BROW}, v{rv}\nv_mul_u32_u24 v13, 160, v13\nv_add_u32 v{dst0+hh}, v13, v7")
            else:
                A(f"""
                v_mul_u32_u24 v13, 160, v{rv}
                v_add3_u32 v14, v13, v7, s59
                v_subrev_u32 v13, {WO_BROW*160}, v13
                v_add_u32 v13, v13, v7
                v_cmp_gt_u32 vcc, {WO_BROW}, v{rv}
                s_nop 1
                v_cndmask_b32 v{dst0+hh}, v13, v14, vcc""")
    L_ahi = A.newlabel("ahi"); L_adone = A.newlabel("adone")
    stp(A, "ostored")
    A("s_waitcnt vmcnt(0)")
    stp(A, "odrained")
    L_os = A.newlabel("os")
    lds_arrive_last(A, C_O, 8, L_os, 2, 3)
    A(f"s_add_u32 s65, s44, {L_O}")
    global_arrive(A, "s65", 32, 2, 3)
    A.label(L_os)
    A(f"""
    s_cmp_ge_u32 s{S_WAVE}, 4
    s_cbranch_scc1 {L_ahi}
    """)
    for c in range(3): row_addr(AD + 2*c, c, "A")
    A(f"s_branch {L_adone}")
    A.label(L_ahi)
    row_addr(AD + 6, 12, None)
    for c in range(3): row_addr(AD + 2*c, 13 + c, "B")
    A.label(L_adone)
    srd(A, R_B, P_OUT, 2048 * 1280 * 2)
    L_p3a = A.newlabel("p3a"); L_post = A.newlabel("post"); L_t3 = A.newlabel("t3"); L_tgo = A.newlabel("tgo")
    A(f"""
    s_cmp_eq_u32 s{S_WAVE}, 0
    s_cbranch_scc0 {L_post}
    s_lshl_b32 s54, s{S_XCD}, 7
    s_add_u32 s54, s54, {SYNC + 128*(FLG + L_O)}
    v_mov_b32 v2, s54
    v_cmp_eq_u32 vcc, 0, v0
    v_mov_b32 v3, 1
    s_nop 0
    v_cndmask_b32 v4, 0, v3, vcc
    """)
    poll(A, 2, 4, 3, sleep=E("PS_O", 2))
    stp(A, "ook")
    A(f"s_branch {L_p3a}")
    A.label(L_post)
    A(f"""
    s_cmp_ge_u32 s{S_WAVE}, 4
    s_cbranch_scc1 {L_p3a}
    s_cmp_eq_u32 s{S_WAVE}, 3
    s_cbranch_scc1 {L_t3}
    s_lshl_b32 s56, s2, 1
    s_sub_u32 s57, s{S_WAVE}, 1
    s_add_u32 s56, s56, s57
    s_branch {L_tgo}
    {L_t3}:
    s_cmp_ge_u32 s2, 128
    s_cbranch_scc1 {L_p3a}
    s_add_u32 s56, s2, 512
    {L_tgo}:
    s_mul_i32 s57, s56, 52429
    s_lshr_b32 s57, s57, 19
    s_mul_i32 s58, s57, 10
    s_sub_u32 s58, s56, s58
    """)
    srd(A, R_C, P_BQ, 2048 * 640 * 2)
    A(f"""
    v_and_b32 v2, 7, v0
    v_lshrrev_b32 v3, 3, v0
    s_lshl_b32 s54, s58, 6
    v_lshl_add_u32 v2, v2, 3, s54
    s_lshl_b32 s55, s57, 5
    v_lshl_add_u32 v3, v3, 2, s55
    v_mul_u32_u24 v4, 1280, v3
    v_lshl_add_u32 v8, v2, 1, v4
    v_lshlrev_b32 v5, 12, v2
    v_lshl_add_u32 v5, v3, 1, v5
    v_add_u32 v9, {WS_Z}, v5
    v_mul_u32_u24 v6, 2560, v3
    v_lshl_add_u32 v6, v2, 1, v6
    v_add_u32 v10, 1280, v6
    """)
    for j in range(4):
        A(f"buffer_load_dwordx4 {v(32+4*j,4)}, v8, s[{R_C}:{R_C+3}], 0 offen offset:{1280*j}")
    poll_flags(A, L_Z, 8, 2, 4, 3)
    for i in range(8):
        A(f"s_mov_b32 s54, {i*4096}")
        A(f"buffer_load_dwordx2 {v(16+2*i,2)}, v9, s[{R_WS}:{R_WS+3}], s54 offen{SC}")
    A("s_waitcnt vmcnt(0)")
    for j in range(4):
        for q in range(4):
            za = 16 + 2*(2*q) + j//2; zb = 16 + 2*(2*q+1) + j//2
            if j % 2 == 0:
                A(f"v_lshlrev_b32 v48, 16, v{za}\nv_lshlrev_b32 v49, 16, v{zb}")
            else:
                A(f"v_and_b32 v48, 0xffff0000, v{za}\nv_and_b32 v49, 0xffff0000, v{zb}")
            qq = 32 + 4*j + q
            A(f"v_lshlrev_b32 v50, 16, v{qq}\nv_and_b32 v51, 0xffff0000, v{qq}")
            A(f"v_pk_mul_f32 v[48:49], v[48:49], v[50:51]")
            A(f"v_cvt_pk_bf16_f32 v{52+4*j+q}, v48, v49")
        A(f"s_mov_b32 s54, {j*2560}")
        A(f"buffer_store_dwordx4 {v(52+4*j,4)}, v10, s[{R_B}:{R_B+3}], s54 offen{os.environ.get('OUTB', '')}")
    A.label(L_p3a)
    stp(A, "prep3a")
    A("s_barrier")
    stp(A, "p3a")
    PD = E("P3D", 3)
    def o_load(st):
        A(f"s_add_u32 s58, s62, {(st//3)*4*64*1536}")
        A(f"buffer_load_dwordx4 {v(OF+4*st,4)}, v{OA + st % 3}, s[{R_WS}:{R_WS+3}], s58 offen{SC}")
    for st in range(min(PD + 1, 12)): o_load(st)
    def p3_loop(hi):
        if not hi: sel = lambda st: (AD + 2*(st % 3), (st // 3) * 12800)
        else: sel = lambda st: (AD + 6, 0) if st == 0 else (AD + 2*((st - 1) % 3), ((st - 1) // 3) * 12800)
        def rd(st, setid):
            base, so = sel(st); r = []
            for T in range(5):
                r.append(f"ds_read_b64_tr_b16 {v(WF[setid]+4*T,2)}, v{base} offset:{so + 32*T}")
                r.append(f"ds_read_b64_tr_b16 {v(WF[setid]+4*T+2,2)}, v{base+1} offset:{so + 32*T}")
            return r
        for r in rd(0, 0): A(r)
        for st in range(12):
            setid = st % 2
            A(f"s_waitcnt vmcnt({min(PD, 11-st)}) lgkmcnt(0)")
            if st + PD + 1 < 12: o_load(st + PD + 1)
            if st == 0: stp(A, "p3first")
            if st == 6: stp(A, "p3mid")
            rs = rd(st + 1, 1 - setid) if st < 11 else []
            for T in range(5):
                cc = "0" if st == 0 else v(ACC3+4*T, 4)
                A(f"v_mfma_f32_16x16x32_bf16 {v(ACC3+4*T,4)}, {v(WF[setid]+4*T,4)}, {v(OF+4*st,4)}, {cc}")
                for r in rs[2*T:2*T+2]: A(r)
        A("s_nop 7")
    L_hi = A.newlabel("p3hi")
    A(f"""
    s_cmp_ge_u32 s{S_WAVE}, 4
    s_cbranch_scc1 {L_hi}
    """)
    p3_loop(False)
    stp(A, "p3loop")
    A("s_barrier")
    stp(A, "p3red")
    for T in range(5): A(f"ds_read_b128 {v(32+4*T,4)}, v{VRED} offset:{1024*T}")
    A("s_waitcnt lgkmcnt(0)")
    for T in range(5):
        d = ACC3 + 4*T
        A(f"v_pk_add_f32 {v(d,2)}, {v(d,2)}, {v(32+4*T,2)}")
        A(f"v_pk_add_f32 {v(d+2,2)}, {v(d+2,2)}, {v(34+4*T,2)}")
        A(f"v_cvt_pk_bf16_f32 v{d}, v{d}, v{d+1}")
        A(f"v_cvt_pk_bf16_f32 v{d+1}, v{d+2}, v{d+3}")
        A(f"buffer_store_dwordx2 {v(d,2)}, v{VOUT}, s[{R_B}:{R_B+3}], 0 offen offset:{32*T}{os.environ.get('OUTA', '')}")
    prof_dump(A, 0, wsptr=P_WS)
    A("s_endpgm")
    A.label(L_hi)
    p3_loop(True)
    for T in range(5): A(f"ds_write_b128 v{VRED}, {v(ACC3+4*T,4)} offset:{1024*T}")
    A("s_waitcnt lgkmcnt(0)\ns_barrier")
    prof_dump(A, 0, wsptr=P_WS)
    A("s_endpgm")

    A.label(L_bw)
    BK, BV, BW = 16, 44, 60
    def b_setup(notask):
        L2_ = A.newlabel("b2"); Lgo = A.newlabel("bgo")
        A(f"""
        s_cmp_eq_u32 s{S_WAVE}, 10
        s_cbranch_scc1 {L2_}
        s_lshl_b32 s56, s2, 1
        s_sub_u32 s57, s{S_WAVE}, 8
        s_add_u32 s56, s56, s57
        s_branch {Lgo}
        {L2_}:
        s_cmp_ge_u32 s2, 128
        s_cbranch_scc1 {notask}
        s_add_u32 s56, s2, 512
        {Lgo}:
        s_mul_i32 s57, s56, 52429
        s_lshr_b32 s57, s57, 19        ; tblk
        s_mul_i32 s58, s57, 10
        s_sub_u32 s58, s56, s58        ; dblk
        v_and_b32 v2, 7, v0            ; dg
        v_lshrrev_b32 v3, 3, v0        ; tg
        v_lshlrev_b32 v12, 6, v2
        v_lshl_add_u32 v12, v3, 3, v12
        s_lshl_b32 s54, s56, 12
        s_add_u32 s54, s54, {WS_U}
        v_add_u32 v12, s54, v12
        s_lshl_b32 s54, s58, 6
        v_lshl_add_u32 v2, v2, 3, s54  ; d0
        s_lshl_b32 s55, s57, 5
        v_lshl_add_u32 v3, v3, 2, s55  ; t0
        v_mul_u32_u24 v4, 1280, v3
        v_lshl_add_u32 v10, v2, 1, v4
        v_lshlrev_b32 v11, 3, v2
        v_subrev_u32 v5, 3840, v10
        v_subrev_u32 v6, 2560, v10
        v_subrev_u32 v7, 1280, v10
        """)
    def b_loads():
        srd(A, R_C, P_BK, 2048 * 640 * 2)
        A(f"""
        buffer_load_dwordx4 {v(BK,4)}, v5, s[{R_C}:{R_C+3}], 0 offen
        buffer_load_dwordx4 {v(BK+4,4)}, v6, s[{R_C}:{R_C+3}], 0 offen
        buffer_load_dwordx4 {v(BK+8,4)}, v7, s[{R_C}:{R_C+3}], 0 offen
        """)
        for j in range(4): A(f"buffer_load_dwordx4 {v(BK+12+4*j,4)}, v10, s[{R_C}:{R_C+3}], 0 offen offset:{1280*j}")
        srd(A, R_C, P_BV, 2048 * 640 * 2)
        for j in range(4): A(f"buffer_load_dwordx4 {v(BV+4*j,4)}, v10, s[{R_C}:{R_C+3}], 0 offen offset:{1280*j}")
        srd(A, R_C, P_SH, 640 * 4 * 2)
        for j in range(4): A(f"buffer_load_dwordx4 {v(BW+4*j,4)}, v11, s[{R_C}:{R_C+3}], 0 offen offset:{16*j}")
    def b_compute(q):
        KP, VP, WP, AC, OUT = 80, 94, 102, 110, 120
        for j in range(7):
            A(f"v_lshlrev_b32 v{KP+2*j}, 16, v{BK+4*j+q}\nv_and_b32 v{KP+1+2*j}, 0xffff0000, v{BK+4*j+q}")
        for t in range(4):
            A(f"v_lshlrev_b32 v{VP+2*t}, 16, v{BV+4*t+q}\nv_and_b32 v{VP+1+2*t}, 0xffff0000, v{BV+4*t+q}")
        for u in range(2):
            bb = BW + 4*q + 2*u
            A(f"v_lshlrev_b32 v{WP+u}, 16, v{bb}\nv_and_b32 v{WP+2+u}, 0xffff0000, v{bb}")
            A(f"v_lshlrev_b32 v{WP+4+u}, 16, v{bb+1}\nv_and_b32 v{WP+6+u}, 0xffff0000, v{bb+1}")
        for t in range(4):
            acc = AC + 2*t
            A(f"v_pk_mul_f32 {v(acc,2)}, {v(KP+2*(t+0),2)}, {v(WP+6,2)}")
            A(f"v_pk_fma_f32 {v(acc,2)}, {v(KP+2*(t+1),2)}, {v(WP+4,2)}, {v(acc,2)}")
            A(f"v_pk_fma_f32 {v(acc,2)}, {v(KP+2*(t+2),2)}, {v(WP+2,2)}, {v(acc,2)}")
            A(f"v_pk_fma_f32 {v(acc,2)}, {v(KP+2*(t+3),2)}, {v(WP,2)}, {v(acc,2)}")
            A(f"v_pk_mul_f32 {v(acc,2)}, {v(acc,2)}, {v(VP+2*t,2)}")
        for u in range(2):
            o = OUT + 4*q + 2*u
            A(f"v_cvt_pk_bf16_f32 v{o}, v{AC+u}, v{AC+2+u}\nv_cvt_pk_bf16_f32 v{o+1}, v{AC+4+u}, v{AC+6+u}")
        for u in range(2):
            o = OUT + 4*q + 2*u
            A(f"buffer_store_dwordx2 {v(o,2)}, v12, s[{R_WS}:{R_WS+3}], 0 offen offset:{(2*q+u)*512}{SC}")
    def init_load():
        A(f"v_mov_b32 v2, 0\nglobal_load_dword v9, v2, s[{P_DBG}:{P_DBG+1}] sc1")
    def u_publish(n):
        A(f"s_waitcnt vmcnt({n})")
        Lok = A.newlabel("iok"); Lsk = A.newlabel("usk")
        A(f"""
        v_readfirstlane_b32 s66, v9
        s_nop 3
        s_cmp_lg_u32 s66, 0
        s_cbranch_scc1 {Lok}
        v_mov_b32 v2, 0
        v_mov_b32 v3, 1
        """)
        poll(A, 2, 3, 4, sleep=8, base=P_DBG)
        A.label(Lok)
        lds_set(A, C_INIT, 2, 3)
        A("s_cmp_lt_u32 s2, 128\ns_cselect_b32 s64, 3, 2")
        lds_arrive_last(A, C_U, "s64", Lsk, 2, 3)
        A(f"""
        s_and_b32 s66, s2, 7
        s_add_u32 s66, s66, {L_U}
        s_lshl_b32 s66, s66, 7
        s_add_u32 s66, s66, {SYNC}
        v_mov_b32 v2, s66
        v_mov_b32 v3, 1
        s_mov_b64 exec, 1
        global_atomic_add v2, v3, s[{P_WS}:{P_WS+1}] sc1
        s_mov_b64 exec, -1
        {Lsk}:
        """)
    HR = 136
    def h_loads():
        srd(A, R_C, P_SK, 640 * 4096)
        A(f"""
        s_sub_u32 s57, s{S_WAVE}, 8
        s_mul_i32 s57, s57, {CONV_SZ}
        s_add_u32 s57, s57, {CONV_BASE}
        s_lshl_b32 s58, s56, 12
        v_lshlrev_b32 v13, 4, v0
        v_add_u32 v13, s58, v13
        v_subrev_u32 v14, 8, v13
        """)
        for p in range(4):
            if p == 0:
                A(f"buffer_load_dwordx2 {v(HR,2)}, v14, s[{R_C}:{R_C+3}], 0 offen")
            else:
                A(f"buffer_load_dwordx2 {v(HR+6*p,2)}, v13, s[{R_C}:{R_C+3}], 0 offen offset:{1024*p - 8}")
            A(f"buffer_load_dwordx4 {v(HR+6*p+2,4)}, v13, s[{R_C}:{R_C+3}], 0 offen offset:{1024*p}")
    def h_build():
        A(f"""
        v_cmp_eq_u32 vcc, 0, v0
        v_lshlrev_b32 v6, 4, v0
        v_add_u32 v6, s57, v6
        v_add_u32 v6, 32, v6
        v_cndmask_b32 v{HR}, v{HR}, 0, vcc
        v_cndmask_b32 v{HR+1}, v{HR+1}, 0, vcc
        """)
        for p in range(4):
            b = HR + 6*p; P1, P0, D = b, b + 1, b + 2
            T1, T2, T3 = 16 + 12*(p % 2), 20 + 12*(p % 2), 24 + 12*(p % 2)
            A(f"""
            ds_write_b128 v6, {v(D,4)} offset:{0*COPY + 1024*p}
            v_alignbit_b32 v{T1}, v{D}, v{P0}, 16
            v_alignbit_b32 v{T1+1}, v{D+1}, v{D}, 16
            v_alignbit_b32 v{T1+2}, v{D+2}, v{D+1}, 16
            v_alignbit_b32 v{T1+3}, v{D+3}, v{D+2}, 16
            v_mov_b32 v{T2}, v{P0}
            v_mov_b32 v{T2+1}, v{D}
            v_mov_b32 v{T2+2}, v{D+1}
            v_mov_b32 v{T2+3}, v{D+2}
            v_alignbit_b32 v{T3}, v{P0}, v{P1}, 16
            v_mov_b32 v{T3+1}, v{T1}
            v_mov_b32 v{T3+2}, v{T1+1}
            v_mov_b32 v{T3+3}, v{T1+2}
            ds_write_b128 v6, {v(T1,4)} offset:{1*COPY + 1024*p}
            ds_write_b128 v6, {v(T2,4)} offset:{2*COPY + 1024*p}
            ds_write_b128 v6, {v(T3,4)} offset:{3*COPY + 1024*p}
            """)
    L_bnog = A.newlabel("bnog"); L_bnt = A.newlabel("bnt"); L_sync = A.newlabel("sync"); L_bntn = A.newlabel("bntn")
    A(f"""
    s_cmp_ge_u32 s{S_CB}, 15
    s_cbranch_scc1 {L_bnog}
    """)
    b_setup(L_bnt)
    if E("BISS", 0): lds_wait(A, C_ISS, 2, 3, val=4, sleep=1)
    MODE = E("BMODE", 1)
    if MODE == 3:
        b_loads()
        h_loads()
        k = E("BWAIT", 3)
        for _ in range(k): A("s_barrier")
        A("s_waitcnt vmcnt(8)")
        stp(A, "blok")
        b_compute(0); b_compute(1)
        A("s_barrier")
        b_compute(2); b_compute(3)
        init_load()
        g = E("BGAP", 3)
        for _ in range(g): A("s_barrier")
        u_publish(0)
        stp(A, "upub")
        for _ in range(10 - k - 1 - g): A("s_barrier")
    elif MODE == 2:
        for _ in range(E("BAT", 1)): A("s_barrier")
        b_loads()
        h_loads()
        for _ in range(10 - E("BAT", 1)): A("s_barrier")
        A("s_waitcnt vmcnt(8)")
        stp(A, "blok")
        for q in range(4): b_compute(q)
        init_load()
        u_publish(0)
        stp(A, "upub")
    else:
        hl = E("HLATE", 1)
        b_loads()
        if not hl: h_loads()
        A(f"s_waitcnt vmcnt({0 if hl else 8})")
        stp(A, "blok")
        for q in range(4): b_compute(q)
        init_load()
        npub = E("NPUB", 2)
        for _ in range(npub): A("s_barrier")
        u_publish(0)
        stp(A, "upub")
        if hl:
            for _ in range(hl): A("s_barrier")
            h_loads()
        for _ in range(10 - npub - hl): A("s_barrier")
    stp(A, "b9")
    A(f"s_branch {L_conv}")
    A.label(L_bnt)
    A(f"s_branch {L_exit}")
    A.label(L_bnog)
    b_setup(L_exit)
    b_loads()
    h_loads()
    A("s_waitcnt vmcnt(8)")
    for q in range(4): b_compute(q)
    init_load()
    u_publish(0)
    A(f"s_branch {L_conv}")

    A.label(L_conv)
    A(f"""
    s_lshr_b32 s59, s56, 1
    s_lshl_b32 s59, s59, 2
    s_load_dword s60, s[{P_SD}:{P_SD+1}], s59
    v_mov_b32 v12, 0
    v_mov_b32 v13, 0
    v_mov_b32 v14, 0
    v_mov_b32 v15, 0
    v_lshlrev_b32 v6, 3, v0
    v_add_u32 v6, s57, v6
    v_add_u32 v6, {4*COPY}, v6
    v_cmp_gt_u32 vcc, 60, v0
    s_and_saveexec_b64 s[54:55], vcc
    ds_write_b64 v6, v[12:13]
    s_mov_b64 exec, s[54:55]
    v_and_b32 v6, 1, v0
    v_lshlrev_b32 v6, 4, v6
    v_lshrrev_b32 v7, 1, v0
    v_mul_u32_u24 v7, {COPY}, v7
    v_add3_u32 v6, v6, v7, s57
    v_cmp_gt_u32 vcc, 8, v0
    s_and_saveexec_b64 s[54:55], vcc
    ds_write_b128 v6, v[12:15]
    s_mov_b64 exec, s[54:55]
    s_waitcnt vmcnt(0)
    """)
    h_build()
    A(f"""
    s_lshr_b32 s54, s56, 6
    s_and_b32 s55, s56, 63
    s_and_b32 s61, s55, 7
    s_lshr_b32 s55, s55, 3
    s_lshl_b32 s61, s61, 9
    s_lshl_b32 s55, s55, 6
    s_add_u32 s61, s61, s55
    s_lshl_b32 s54, s54, 12
    s_add_u32 s61, s61, s54
    s_add_u32 s61, s61, {WS_U}
    v_lshrrev_b32 v8, 2, v0
    v_mul_u32_u24 v8, 40960, v8
    v_and_b32 v9, 3, v0
    v_lshl_add_u32 v8, v9, 4, v8
    """)
    L_uw = A.newlabel("uw"); L_ud = A.newlabel("ud")
    A(f"s_cmp_lg_u32 s{S_WAVE}, 8\ns_cbranch_scc1 {L_uw}")
    if E("BMODE", 1) == 2 and E("UGATE", 1): lds_wait(A, C_GO, 2, 3, sleep=4)
    A(f"""
    v_lshlrev_b32 v2, 7, v0
    v_add_u32 v2, {SYNC + 128*L_U}, v2
    v_cmp_gt_u32 vcc, 8, v0
    v_mov_b32 v3, 32
    s_nop 0
    v_cndmask_b32 v4, 0, v3, vcc
    """)
    poll(A, 2, 4, 3, sleep=E("PS_U", 24))
    lds_set(A, C_UOK, 2, 3)
    A(f"s_branch {L_ud}")
    A.label(L_uw)
    lds_wait(A, C_UOK, 2, 3)
    A("s_waitcnt vmcnt(0)")
    A.label(L_ud)
    stp(A, "uok")
    for p in range(4):
        A(f"""
        s_add_u32 m0, s57, {4*COPY + 480 + p*1024}
        s_add_u32 s54, s61, {p*16*40960}
        buffer_load_dwordx4 v8, s[{R_WS}:{R_WS+3}], s54 offen{SC} lds""")
    A(f"""
    v_lshrrev_b32 v6, 4, v0             ; kg
    v_bfe_u32 v7, v0, 2, 2              ; r
    v_and_b32 v8, 3, v0                 ; c
    v_mul_u32_u24 v7, {COPY}, v7
    v_lshlrev_b32 v8, 3, v8
    v_lshlrev_b32 v9, 4, v6
    v_sub_u32 v8, v8, v9
    v_add_u32 v8, 56, v8
    v_add3_u32 v4, v7, v8, s57          ; vA
    v_and_b32 v7, 15, v0
    v_lshlrev_b32 v7, 5, v7
    v_lshl_add_u32 v7, v6, 4, v7
    v_add_u32 v7, {4*COPY}, v7
    v_add_u32 v5, s57, v7               ; vB
    s_waitcnt vmcnt(0) lgkmcnt(0)
    s_and_b32 s54, s56, 1
    s_lshl_b32 s54, s54, 4
    s_lshr_b32 s60, s60, s54
    s_lshl_b32 s60, s60, 16             ; D as f32
    """)
    stp(A, "conv0")
    Y = 32; AT = 64; BT = 128
    def a_reads(rho, p):
        mu = rho + 8 * p
        return [f"ds_read_b64_tr_b16 {v(AT+4*p,2)}, v4 offset:{64*mu + 8}",
                f"ds_read_b64_tr_b16 {v(AT+4*p+2,2)}, v4 offset:{64*mu}"]
    def b_read(rho, q): return f"ds_read_b128 {v(BT+4*q,4)}, v5 offset:{64*(8*q - rho + 7)}"
    A(f"s_setprio {E('CPRIO', 0)}")
    if E("CPACE", 0):
        for q in range(7, -1, -1): A(b_read(0, q))
        for rho in range(8):
            for p in range(8):
                for r in a_reads(rho, p): A(r)
                A("s_waitcnt lgkmcnt(0)")
                for q in range(7 - p, -1, -1):
                    i = p + q
                    cc = "0" if (rho == 0 and p == 0) else v(Y+4*i, 4)
                    A(f"v_mfma_f32_16x16x32_bf16 {v(Y+4*i,4)}, {v(AT+4*p,4)}, {v(BT+4*q,4)}, {cc}")
                if rho < 7: A(b_read(rho + 1, 7 - p))
            if rho == 3:
                stp(A, "convh")
                A("s_barrier")
    else:
        ATS = [64, 96]
        def a_reads2(rho, p, sid):
            mu = rho + 8 * p
            return [f"ds_read_b64_tr_b16 {v(ATS[sid]+4*p,2)}, v4 offset:{64*mu + 8}",
                    f"ds_read_b64_tr_b16 {v(ATS[sid]+4*p+2,2)}, v4 offset:{64*mu}"]
        for q in range(7, -1, -1): A(b_read(0, q))
        A("s_waitcnt lgkmcnt(4)")
        for p in range(8):
            for r in a_reads2(0, p, 0): A(r)
            if p == 3: A("s_waitcnt lgkmcnt(4)")
        for rho in range(8):
            sid = rho % 2
            nxtA = [x for p in range(8) for x in a_reads2(rho + 1, p, 1 - sid)] if rho < 7 else []
            A("s_waitcnt lgkmcnt(0)" if rho == 0 else "s_waitcnt lgkmcnt(4)")
            for p in range(8):
                for q in range(7 - p, -1, -1):
                    i = p + q
                    cc = "0" if (rho == 0 and p == 0) else v(Y+4*i, 4)
                    if p == 0 and rho > 0 and q <= 3:
                        A(f"s_waitcnt lgkmcnt({7 if rho < 7 else q})")
                    A(f"v_mfma_f32_16x16x32_bf16 {v(Y+4*i,4)}, {v(ATS[sid]+4*p,4)}, {v(BT+4*q,4)}, {cc}")
                    if nxtA: A(nxtA.pop(0))
                if rho < 7: A(b_read(rho + 1, 7 - p))
            if rho == E("CBAR", -1):
                stp(A, "convh")
                A("s_barrier")
    stp(A, "conv1")
    A(f"""
    v_and_b32 v7, 15, v0
    v_lshrrev_b32 v6, 4, v0
    v_lshlrev_b32 v7, 5, v7
    v_lshl_add_u32 v7, v6, 3, v7        ; 32n + 8g
    v_add_u32 v8, s57, v7
    v_add_u32 v8, {4*COPY + 480}, v8
    s_add_u32 s61, s58, {WS_Z}
    """)
    for i in range(8): A(f"ds_read_b64 {v(64+2*i,2)}, v8 offset:{512*i}")
    A("s_waitcnt lgkmcnt(0)\ns_nop 3")
    for i in range(8):
        u0, u1 = 64 + 2*i, 64 + 2*i + 1
        y = Y + 4*i
        A(f"""
        v_lshlrev_b32 v96, 16, v{u0}
        v_and_b32 v97, 0xffff0000, v{u0}
        v_lshlrev_b32 v98, 16, v{u1}
        v_and_b32 v99, 0xffff0000, v{u1}
        v_fma_f32 v{y}, v96, s60, v{y}
        v_fma_f32 v{y+1}, v97, s60, v{y+1}
        v_fma_f32 v{y+2}, v98, s60, v{y+2}
        v_fma_f32 v{y+3}, v99, s60, v{y+3}
        v_cvt_pk_bf16_f32 v{y}, v{y}, v{y+1}
        v_cvt_pk_bf16_f32 v{y+1}, v{y+2}, v{y+3}
        buffer_store_dwordx2 {v(y,2)}, v7, s[{R_WS}:{R_WS+3}], s61 offen offset:{512*i}{SC}""")
    A("s_waitcnt vmcnt(0)")
    stp(A, "zdrained")
    L_zs = A.newlabel("zs")
    A("s_cmp_lt_u32 s2, 128\ns_cselect_b32 s64, 3, 2")
    lds_arrive_last(A, C_Z, "s64", L_zs, 2, 3)
    A(f"s_and_b32 s65, s2, 7\ns_add_u32 s65, s65, {L_Z}")
    global_arrive(A, "s65", 32, 2, 3)
    A.label(L_zs)
    prof_dump(A, 0, wsptr=P_WS)
    A.label(L_exit)
    A("s_endpgm")

def build():
    hdr = open("cdna_kernels/" + NAME + ".s.ref").read().split("; Override launch geometry")[0]
    A = Asm(); gen(A)
    out = hdr + f"; @launch grid=(256,1,1) block=(704,1,1) lds={LDS}\n"
    out += '.amdgcn_target "amdgcn-amd-amdhsa--gfx950"\n.text\n' + A.text()
    out += f""".section .rodata,"a"
.p2align 6
.amdhsa_kernel {KNAME}
  .amdhsa_next_free_vgpr {VGPRS}
  .amdhsa_next_free_sgpr 102
  .amdhsa_accum_offset {VGPRS}
  .amdhsa_group_segment_fixed_size 0
  .amdhsa_kernarg_size 96
  .amdhsa_user_sgpr_count 2
  .amdhsa_user_sgpr_kernarg_segment_ptr 1
  .amdhsa_system_sgpr_workgroup_id_x 1
  .amdhsa_float_denorm_mode_32 3
.end_amdhsa_kernel
"""
    return out

if __name__ == "__main__":
    open(sys.argv[1], "w").write(build())
```

```python
import os, sys, struct, math
from asmlib import *
from slots import ASSIGN, HEADWORD

NAME = "concat_heads__softmax_full_mha__ssm_conv_h3__prompt"
KNAME = NAME + "_kernel"
E = lambda k, d=0: int(os.environ.get(k, d))

TB = 8320
SEC = 64 * TB
WS_U  = 0x800000
WS_Z  = 0xB00000
WS_O  = 0xE00000
SYNC  = 0x1200000
WS_BYTES = 0x1214000
REC = 3072
CHUNK = 16 * REC
COPY = 4160
CONV_SZ = 4 * COPY + 4608
CONV_BASE = 98304
CNT = CONV_BASE + 3 * CONV_SZ
LDS = CNT + 256
WO_A = 98304
WO_BROW = 340
RED = CHUNK
VGPRS = 168
POLL_MAX = 40000
SC = os.environ.get("SCF", " sc1")
L_U, L_Z, L_O, L_QF = 0, 8, 24, 48
FLG = 8
N_LINES = 288
ZERO_WG = 225
C_QKV, C_U, C_Z, C_O, C_UOK, C_INIT, C_GO, C_KV, C_ISS = 0, 4, 8, 12, 16, 20, 24, 28, 32

def f32bits(x): return struct.unpack("<I", struct.pack("<f", x))[0]
QSCALE = f32bits(20 ** -0.5 * math.log2(math.e))

P_X, P_W, P_WO, P_BQ, P_BK, P_BV, P_SH, P_SK, P_SD, P_OUT, P_DBG, P_WS = 4, 6, 8, 10, 12, 14, 16, 18, 20, 22, 24, 26
R_WS = 28
R_A, R_B, R_C = 32, 36, 44
S_WAVE, S_XCD, S_J, S_RB, S_CB = 40, 41, 42, 43, 48

STAMPS = dict(x.split(":") for x in os.environ.get("STAMPS", "b0:1,gend:2,uok:2,att0:4,att1:5,p3a:6").split(","))
def stp(A, name):
    if name in STAMPS: stamp(A, int(STAMPS[name]))

def poll(A, addr_v, thr_v, tmp, sleep=4, base=P_WS):
    L = A.newlabel("poll"); D = A.newlabel("polld")
    A(f"""
    v_cmp_ne_u32 vcc, 0, v{thr_v}
    s_mov_b32 s66, {POLL_MAX}
    s_nop 1
    s_mov_b64 exec, vcc
    {L}:
    global_load_dword v{tmp}, v{addr_v}, s[{base}:{base+1}] sc1
    s_waitcnt vmcnt(0)
    v_cmp_ge_u32 vcc, v{tmp}, v{thr_v}
    s_nop 3
    s_cmp_eq_u64 vcc, exec
    s_cbranch_scc1 {D}
    s_sleep {sleep}
    s_sub_u32 s66, s66, 1
    s_cmp_lg_u32 s66, 0
    s_cbranch_scc1 {L}
    {D}:
    s_mov_b64 exec, -1
    """)
def poll_flags(A, line0, nlines, t_addr, t_thr, tmp, sleep=4):
    A(f"""
    v_lshlrev_b32 v{t_addr}, 7, v0
    v_add_u32 v{t_addr}, {SYNC + 128*(FLG + line0)}, v{t_addr}
    v_cmp_gt_u32 vcc, {nlines}, v0
    v_mov_b32 v{tmp}, 1
    s_nop 0
    v_cndmask_b32 v{t_thr}, 0, v{tmp}, vcc
    """)
    poll(A, t_addr, t_thr, tmp, sleep)
def lds_set(A, off, t0, t1):
    A(f"""
    v_mov_b32 v{t0}, {CNT + off}
    v_mov_b32 v{t1}, 1
    ds_write_b32 v{t0}, v{t1}
    """)
def lds_add(A, off, t0, t1):
    A(f"""
    v_mov_b32 v{t0}, {CNT + off}
    v_mov_b32 v{t1}, 1
    s_mov_b64 exec, 1
    ds_add_u32 v{t0}, v{t1}
    s_mov_b64 exec, -1
    """)
def lds_wait(A, off, t0, t1, val=1, sleep=1):
    L = A.newlabel("lw"); D = A.newlabel("lwd")
    A(f"""
    v_mov_b32 v{t0}, {CNT + off}
    s_mov_b32 s66, {POLL_MAX*16}
    {L}:
    ds_read_b32 v{t1}, v{t0}
    s_waitcnt lgkmcnt(0)
    v_readfirstlane_b32 s67, v{t1}
    s_nop 3
    s_cmp_ge_u32 s67, {val}
    s_cbranch_scc1 {D}
    s_sleep {sleep}
    s_sub_u32 s66, s66, 1
    s_cmp_lg_u32 s66, 0
    s_cbranch_scc1 {L}
    {D}:
    """)
def lds_arrive_last(A, off, n_s, skip_lab, t0, t1):
    A(f"""
    v_mov_b32 v{t0}, {CNT + off}
    v_mov_b32 v{t1}, 1
    s_mov_b64 exec, 1
    ds_add_rtn_u32 v{t1}, v{t0}, v{t1}
    s_waitcnt lgkmcnt(0)
    s_mov_b64 exec, -1
    v_readfirstlane_b32 s66, v{t1}
    s_nop 3
    s_add_u32 s66, s66, 1
    s_cmp_lg_u32 s66, {n_s}
    s_cbranch_scc1 {skip_lab}
    """)
def global_arrive(A, line_s, total, t0, t1):
    L = A.newlabel("ga")
    A(f"""
    s_lshl_b32 s66, {line_s}, 7
    s_add_u32 s66, s66, {SYNC}
    v_mov_b32 v{t0}, s66
    v_mov_b32 v{t1}, 1
    s_mov_b64 exec, 1
    global_atomic_add v{t1}, v{t0}, v{t1}, s[{P_WS}:{P_WS+1}] sc0 sc1
    s_waitcnt vmcnt(0)
    s_mov_b64 exec, -1
    v_readfirstlane_b32 s66, v{t1}
    s_nop 3
    s_add_u32 s66, s66, 1
    s_cmp_lg_u32 s66, {total}
    s_cbranch_scc1 {L}
    v_add_u32 v{t0}, {128*FLG}, v{t0}
    v_mov_b32 v{t1}, 1
    s_mov_b64 exec, 1
    global_store_dword v{t0}, v{t1}, s[{P_WS}:{P_WS+1}] sc1
    s_mov_b64 exec, -1
    {L}:
    """)

def flag_store(A, line_s, t0, t1):
    A(f"""
    s_lshl_b32 s66, {line_s}, 7
    s_add_u32 s66, s66, {SYNC}
    v_mov_b32 v{t0}, s66
    v_mov_b32 v{t1}, 1
    s_mov_b64 exec, 1
    global_store_dword v{t0}, v{t1}, s[{P_WS}:{P_WS+1}] sc1
    s_mov_b64 exec, -1
    """)
def poll2(A, a0, a1, n1, t0, t1, sleep):
    L = A.newlabel("poll2"); D = A.newlabel("poll2d")
    A(f"""
    s_mov_b32 s66, {POLL_MAX}
    {L}:
    global_load_dword v{t0}, v{a0}, s[{P_WS}:{P_WS+1}] sc1
    global_load_dword v{t1}, v{a1}, s[{P_WS}:{P_WS+1}] sc1
    s_waitcnt vmcnt(0)
    v_min_u32 v{t0}, v{t0}, v{t1}
    v_cmp_le_u32 vcc, 1, v{t0}
    s_nop 3
    s_cmp_eq_u64 vcc, -1
    s_cbranch_scc1 {D}
    s_sleep {sleep}
    s_sub_u32 s66, s66, 1
    s_cmp_lg_u32 s66, 0
    s_cbranch_scc1 {L}
    {D}:
    """)

def gen(A):
    A(f".globl {KNAME}")
    A(".p2align 8")
    A(f".type {KNAME},@function")
    A.label(KNAME)
    L_exit, L_nog, L_prod, L_bw, L_heads, L_conv = "L_exit", "L_nog", "L_prod", "L_bw", "L_heads", "L_conv"
    A(f"""
    s_cmp_ge_u32 s2, 256
    s_cbranch_scc1 {L_exit}
    s_load_dwordx16 s[4:19], s[0:1], 0
    s_load_dwordx8 s[20:27], s[0:1], 64
    v_lshrrev_b32 v1, 6, v0
    v_and_b32 v0, 63, v0
    v_readfirstlane_b32 s{S_WAVE}, v1
    s_and_b32 s{S_XCD}, s2, 7
    s_lshr_b32 s{S_J}, s2, 3
    s_lshr_b32 s{S_RB}, s{S_XCD}, 1
    s_lshl_b32 s{S_RB}, s{S_RB}, 2
    s_and_b32 s49, s{S_J}, 3
    s_add_u32 s{S_RB}, s{S_RB}, s49        ; rb
    s_and_b32 s{S_CB}, s{S_XCD}, 1
    s_lshl_b32 s{S_CB}, s{S_CB}, 3
    s_lshr_b32 s49, s{S_J}, 2
    s_add_u32 s{S_CB}, s{S_CB}, s49        ; cb
    v_mov_b32 v2, {CNT}
    v_mov_b32 v4, 0
    v_mov_b32 v5, 0
    v_mov_b32 v6, 0
    v_mov_b32 v7, 0
    ds_write_b128 v2, v[4:7]
    ds_write_b128 v2, v[4:7] offset:16
    ds_write_b128 v2, v[4:7] offset:32
    s_waitcnt lgkmcnt(0)
    s_barrier
    """)
    srd(A, R_WS, P_WS, WS_BYTES)
    prof_init(A)
    A(f"""
    s_cmp_ge_u32 s{S_WAVE}, 8
    s_cbranch_scc1 {L_bw}
    s_cmp_ge_u32 s{S_CB}, 15
    s_cbranch_scc1 {L_nog}
    s_cmp_ge_u32 s{S_WAVE}, 4
    s_cbranch_scc1 {L_prod}
    """)
    slot_of = lambda st: (st + 2) % 3

    A(f"""
    s_lshr_b32 s56, s{S_WAVE}, 1       ; wr
    s_and_b32 s57, s{S_WAVE}, 1        ; wc
    v_and_b32 v2, 31, v0           ; n
    v_lshrrev_b32 v3, 5, v0        ; h
    v_bfe_u32 v4, v0, 1, 3         ; (l>>1)&7
    s_lshl_b32 s54, s56, 6
    v_add_u32 v5, s54, v2
    v_lshlrev_b32 v5, 7, v5        ; token_local*128
    """)
    for ks in range(4):
        A(f"""
        v_add_u32 v6, {2*ks}, v3
        v_xor_b32 v6, v6, v4
        v_lshl_add_u32 v{16+ks}, v6, 4, v5
        v_add_u32 v{20+ks}, 0x10000, v{16+ks}""")
    def w_addr():
        A(f"""
        v_lshrrev_b32 v2, 4, v0        ; g
        v_bfe_u32 v3, v0, 2, 2         ; r
        v_and_b32 v4, 3, v0            ; c4
        v_lshrrev_b32 v5, 1, v2
        v_lshl_add_u32 v5, v5, 3, v3   ; k_local
        v_lshlrev_b32 v5, 8, v5
        v_add_u32 v5, 16384, v5
        v_and_b32 v6, 1, v2
        v_lshl_add_u32 v6, v6, 2, v4   ; rg = 4*(g&1) + c4
        v_mul_u32_u24 v6, 5, v6
        v_lshlrev_b32 v7, 2, v3        ; 4r
        """)
        for ft in range(2):
            A(f"""
            v_lshrrev_b64 v[8:9], v6, s[{60+2*ft}:{61+2*ft}]
            v_and_b32 v8, 31, v8
            v_lshrrev_b32 v9, 1, v8
            v_xor_b32 v9, v9, v7
            v_and_b32 v8, 1, v8
            v_lshlrev_b32 v8, 3, v8
            v_lshl_add_u32 v8, v9, 4, v8
            v_add_u32 v{24+ft}, v5, v8
            v_add_u32 v{26+ft}, 0x10000, v{24+ft}""")
    FR = [dict(X=[32, 36], W=[40, 44]), dict(X=[48, 52], W=[56, 60]), dict(X=[132, 136], W=[140, 144])]
    ACC = lambda ft, tt: 64 + 16 * (2 * ft + tt)
    def reads(st, ks, setid):
        slot = slot_of(st); hi = slot == 2
        so = 0 if hi else slot * 32768
        xa = (20 if hi else 16) + ks; wa = (26 if hi else 24); F = FR[setid]
        return [f"ds_read_b128 {v(F['X'][0],4)}, v{xa} offset:{so}",
                f"ds_read_b64_tr_b16 {v(F['W'][0],2)}, v{wa} offset:{so + ks*4096}",
                f"ds_read_b64_tr_b16 {v(F['W'][0]+2,2)}, v{wa} offset:{so + ks*4096 + 1024}",
                f"ds_read_b128 {v(F['X'][1],4)}, v{xa} offset:{so + 4096}",
                f"ds_read_b64_tr_b16 {v(F['W'][1],2)}, v{wa+1} offset:{so + ks*4096}",
                f"ds_read_b64_tr_b16 {v(F['W'][1]+2,2)}, v{wa+1} offset:{so + ks*4096 + 1024}"]
    def mfmas(setid, first, vmode):
        F = FR[setid]; m = []
        for (ft, tt) in [(0, 0), (0, 1), (1, 0), (1, 1)]:
            d = ACC(ft, tt); c = "0" if first else v(d, 16)
            a_, b_ = (F['X'][tt], F['W'][ft]) if vmode else (F['W'][ft], F['X'][tt])
            m.append(f"v_mfma_f32_32x32x16_bf16 {v(d,16)}, {v(a_,4)}, {v(b_,4)}, {c}")
        return m
    def main_loop(vmode):
        A("s_barrier")
        stp(A, "b0")
        if not E("G3", 0):
            for r in reads(0, 0, 0): A(r)
            n = 0
            for st in range(10):
                for ks in range(4):
                    setid = n % 2
                    m = mfmas(setid, n == 0, vmode)
                    A("s_waitcnt lgkmcnt(0)")
                    if ks == 3 and st < 9:
                        A("s_barrier")
                        stp(A, f"gb{st+1}")
                    A(m[0])
                    if ks < 3:
                        for r in reads(st, ks + 1, 1 - setid): A(r)
                    elif st < 9:
                        for r in reads(st + 1, 0, 1 - setid): A(r)
                    A(m[1]); A(m[2]); A(m[3])
                    n += 1
        else:
            for r in reads(0, 0, 0): A(r)
            for r in reads(0, 1, 1): A(r)
            for n in range(40):
                st, ks = divmod(n, 4)
                m = mfmas(n % 3, n == 0, vmode)
                if ks == 2 and st < 9:
                    A("s_waitcnt lgkmcnt(0)\ns_barrier")
                    stp(A, f"gb{st+1}")
                else:
                    A(f"s_waitcnt lgkmcnt({6 if n + 1 < 40 else 0})")
                A(m[0])
                if n + 2 < 40:
                    st2, ks2 = divmod(n + 2, 4)
                    for r in reads(st2, ks2, (n + 2) % 3): A(r)
                A(m[1]); A(m[2]); A(m[3])
        stp(A, "gend")
        A("s_nop 15")
    L_vpath = A.newlabel("vpath"); L_gsig = A.newlabel("gsig"); L_vdone = A.newlabel("vdone")
    A(f"""
    s_cmp_ge_u32 s{S_CB}, 10
    s_cbranch_scc1 {L_vpath}
    s_cmp_ge_u32 s{S_CB}, 5
    s_cselect_b32 s55, 5, 0
    s_sub_u32 s55, s{S_CB}, s55        ; cb'
    s_lshl_b32 s55, s55, 1
    s_add_u32 s55, s55, s57
    """)
    for var in range(10):
        cbp, wc = divmod(var, 2); T = []
        for ft in range(2):
            tab = [0]*8
            for si, it in enumerate(ASSIGN[cbp][2*wc + ft]):
                ap, h = divmod(si, 2)
                tab[4*ap + h] = it[1]; tab[4*ap + 2 + h] = it[2]
            T.append(sum(g << (5*i) for i, g in enumerate(tab)))
        nxt = A.newlabel("var")
        A(f"""
        s_cmp_lg_u32 s55, {var}
        s_cbranch_scc1 {nxt}
        s_mov_b32 s60, {hex(T[0] & 0xffffffff)}
        s_mov_b32 s61, {hex(T[0] >> 32)}
        s_mov_b32 s62, {hex(T[1] & 0xffffffff)}
        s_mov_b32 s63, {hex(T[1] >> 32)}
        s_branch {L_vdone}
        {nxt}:""")
    A(f"""
    s_mov_b64 s[60:61], 0
    s_mov_b64 s[62:63], 0
    {L_vdone}:
    """)
    w_addr()
    A(f"""
    s_mov_b32 s58, {hex(QSCALE)}
    s_cmp_ge_u32 s{S_CB}, 5
    s_cmov_b32 s58, 0x3f800000
    s_mov_b32 s59, s58
    v_lshlrev_b32 v128, 4, v0
    s_lshl_b32 s54, s{S_RB}, 2
    s_lshl_b32 s55, s56, 1
    s_add_u32 s54, s54, s55
    s_lshl_b32 s55, s{S_CB}, 6
    s_add_u32 s54, s54, s55
    s_mul_i32 s54, s54, {TB}
    s_lshl_b32 s55, s57, 12        ; wc*4096
    s_add_u32 s64, s54, s55
    s_add_u32 s65, s64, {TB}
    """)
    main_loop(False)
    for ft in range(2):
        for tt in range(2):
            d = ACC(ft, tt)
            for i in range(0, 16, 2):
                A(f"v_pk_mul_f32 {v(d+i,2)}, {v(d+i,2)}, s[58:59]")
            for ap in range(2):
                for i in range(4):
                    A(f"v_cvt_pk_bf16_f32 v{d+8*ap+i}, v{d+8*ap+2*i}, v{d+8*ap+2*i+1}")
                A(f"buffer_store_dwordx4 {v(d+8*ap,4)}, v128, s[{R_WS}:{R_WS+3}], s{64+tt} offen offset:{ft*2048 + ap*1024}{SC}")
    A(f"s_branch {L_gsig}")
    A.label(L_vpath)
    nat = sum(i << (5*i) for i in range(8)); rep = sum(1 << (5*i) for i in range(8))
    A(f"""
    s_lshl_b32 s54, s57, 4
    s_mul_i32 s55, s54, {hex(rep & 0xffffffff)}
    s_mul_hi_u32 s61, s54, {hex(rep & 0xffffffff)}
    s_mul_i32 s66, s54, {hex(rep >> 32)}
    s_add_u32 s61, s61, s66
    s_add_u32 s60, s55, {hex(nat & 0xffffffff)}
    s_addc_u32 s61, s61, {hex(nat >> 32)}
    s_add_u32 s62, s60, {hex((8*rep) & 0xffffffff)}
    s_addc_u32 s63, s61, {hex((8*rep) >> 32)}
    """)
    w_addr()
    A(f"""
    v_lshlrev_b32 v128, 4, v0
    s_lshl_b32 s54, s{S_RB}, 2
    s_lshl_b32 s55, s{S_CB}, 6
    s_add_u32 s54, s54, s55
    s_add_u32 s55, s54, s{S_WAVE}
    s_mul_i32 s55, s55, {TB}
    s_add_u32 s58, s55, 8192
    s_lshl_b32 s55, s56, 1
    s_add_u32 s54, s54, s55
    s_mul_i32 s54, s54, {TB}
    s_lshl_b32 s55, s57, 11
    s_add_u32 s62, s54, s55
    s_add_u32 s63, s62, 4096
    s_add_u32 s64, s62, {TB}
    s_add_u32 s65, s64, 4096
    """)
    main_loop(True)
    for ft in range(2):
        for tt in range(2):
            d = ACC(ft, tt)
            for f in range(2):
                for i in range(4):
                    A(f"v_cvt_pk_bf16_f32 v{d+8*f+i}, v{d+8*f+2*i}, v{d+8*f+2*i+1}")
                A(f"buffer_store_dwordx4 {v(d+8*f,4)}, v128, s[{R_WS}:{R_WS+3}], s{62+2*tt+f} offen offset:{ft*1024}{SC}")
    A(f"""
    v_cmp_eq_u32 vcc, 0, v0
    v_mov_b32 v36, 0x3f803f80
    s_nop 0
    v_cndmask_b32 v32, 0, v36, vcc
    v_cndmask_b32 v33, 0, v36, vcc
    v_cndmask_b32 v34, 0, v36, vcc
    v_cndmask_b32 v35, 0, v36, vcc
    s_mov_b64 exec, 15
    buffer_store_dwordx4 v[32:35], v128, s[{R_WS}:{R_WS+3}], s58 offen{SC}
    s_mov_b64 exec, -1
    """)
    A.label(L_gsig)
    stp(A, "gstored")
    A("s_waitcnt vmcnt(0)")
    stp(A, "gdrained")
    L_qs = A.newlabel("qs")
    lds_arrive_last(A, C_QKV, 4, L_qs, 2, 3)
    lds_wait(A, C_INIT, 2, 3)
    A(f"""
    s_lshl_b32 s65, s{S_CB}, 4
    s_add_u32 s65, s65, s{S_RB}
    s_add_u32 s65, s65, {L_QF}
    """)
    flag_store(A, "s65", 2, 3)
    A.label(L_qs)
    stp(A, "gsig")
    A(f"s_branch {L_heads}")

    A.label(L_prod)
    srd(A, R_A, P_X, 2048 * 640 * 2)
    srd(A, R_B, P_W, 640 * 1920 * 2)
    VXE, VXO, VW = 10, 11, 12
    A(f"""
    s_sub_u32 s55, s{S_WAVE}, 4            ; pw
    s_lshl_b32 s49, s55, 12
    s_mul_i32 s53, s55, 61440
    s_and_b32 s50, s{S_RB}, 3
    s_mul_i32 s50, s50, 3
    s_add_u32 s50, s50, s{S_CB}
    s_cmp_ge_u32 s50, 20
    s_cselect_b32 s51, 20, 0
    s_sub_u32 s50, s50, s51
    s_cmp_ge_u32 s50, 10
    s_cselect_b32 s51, 10, 0
    s_sub_u32 s50, s50, s51
    """)
    if not E("ROT", 1): A("s_mov_b32 s50, 0")
    A(f"""
    s_lshl_b32 s51, s50, 7
    s_mul_i32 s52, s50, 245760
    s_add_u32 s52, s52, s53
    v_lshrrev_b32 v2, 3, v0
    v_lshrrev_b32 v3, 4, v0
    v_and_b32 v4, 7, v0
    v_xor_b32 v4, v4, v3
    s_lshl_b32 s54, s{S_RB}, 7
    s_lshl_b32 s55, s55, 5
    s_add_u32 s54, s54, s55
    v_add_u32 v2, s54, v2
    v_mul_u32_u24 v2, 1280, v2
    v_lshl_add_u32 v{VXE}, v4, 4, v2
    v_xor_b32 v{VXO}, 64, v{VXE}
    v_and_b32 v4, 15, v0
    v_lshlrev_b32 v5, 2, v3
    v_xor_b32 v4, v4, v5
    v_mul_u32_u24 v5, 3840, v3
    v_lshl_add_u32 v{VW}, v4, 4, v5
    s_lshl_b32 s54, s{S_CB}, 8
    v_add_u32 v{VW}, s54, v{VW}
    """)
    def dma_stage(st):
        so = slot_of(st) * 32768
        for i in range(4):
            A(f"""
            s_add_u32 m0, s49, {so + i*1024}
            s_add_u32 s54, s51, {i*10240}
            buffer_load_dwordx4 v{VXO if i % 2 else VXE}, s[{R_A}:{R_A+3}], s54 offen lds""")
        for i in range(4):
            A(f"""
            s_add_u32 m0, s49, {so + 16384 + i*1024}
            s_add_u32 s54, s52, {i*15360}
            buffer_load_dwordx4 v{VW}, s[{R_B}:{R_B+3}], s54 offen lds""")
        A("""
        s_add_u32 s50, s50, 1
        s_cmp_eq_u32 s50, 10
        s_cselect_b32 s50, 0, s50
        s_lshl_b32 s51, s50, 7
        s_mul_i32 s52, s50, 245760
        s_add_u32 s52, s52, s53""")
    for st in range(3): dma_stage(st)
    lds_add(A, C_ISS, 2, 3)
    A("s_waitcnt vmcnt(16)\ns_barrier")
    stp(A, "b0")
    for s_ in range(1, 8):
        A("s_waitcnt vmcnt(8)\ns_barrier")
        dma_stage(s_ + 2)
    A("s_waitcnt vmcnt(8)\ns_barrier")
    A("s_waitcnt vmcnt(0)\ns_barrier")
    stp(A, "b9")
    A(f"s_branch {L_heads}")

    A.label(L_nog)
    L_nz = A.newlabel("nz")
    A(f"""
    s_cmp_lg_u32 s2, {ZERO_WG}
    s_cbranch_scc1 {L_nz}
    v_lshlrev_b32 v2, 4, v0
    v_add_u32 v2, {SYNC}, v2
    v_mov_b32 v4, 0
    v_mov_b32 v5, 0
    v_mov_b32 v6, 0
    v_mov_b32 v7, 0
    s_mul_i32 s54, s{S_WAVE}, {5*1024}
    """)
    for i in range(5):
        A(f"buffer_store_dwordx4 v[4:7], v2, s[{R_WS}:{R_WS+3}], s54 offen sc1\ns_add_u32 s54, s54, 1024")
    A("s_waitcnt vmcnt(0)")
    lds_arrive_last(A, C_KV + 8, 8, L_nz, 2, 3)
    A(f"""
    v_mov_b32 v2, 0
    v_mov_b32 v3, 1
    s_mov_b64 exec, 1
    global_store_dword v2, v3, s[{P_DBG}:{P_DBG+1}] sc1
    s_mov_b64 exec, -1
    {L_nz}:
    """)
    A(f"""
    v_mov_b32 v2, {CNT + C_QKV}
    v_mov_b32 v3, 4
    ds_write_b32 v2, v3
    """)

    A.label(L_heads)
    Q1, Q2 = 4, 8
    O = 16
    S = [32, 48]
    P = [64, 72]
    KA, KB, V0, V1 = 80, 84, 88, 92
    AK = [96, 99]; AK2 = [97, 100]; AV = [98, 101]
    KA0, KB0 = 104, 108
    WOV = 120
    VG = [126, 127, 128]; VKP, VKS, VVF = 129, 130, 131
    A(f"""
    s_lshl_b32 s43, s{S_XCD}, 2
    s_lshr_b32 s44, s{S_J}, 3
    s_add_u32 s43, s43, s44        ; head
    s_and_b32 s44, s{S_J}, 7       ; qb
    s_lshl_b32 s46, s44, 3
    s_add_u32 s46, s46, s{S_WAVE}  ; q tile
    s_mov_b32 s47, {hex(HEADWORD[0])}
    """)
    for h in range(1, 32):
        A(f"s_cmp_eq_u32 s43, {h}\ns_cmov_b32 s47, {hex(HEADWORD[h])}")
    for k, dst in enumerate((50, 51, 52)):
        A(f"""
        s_bfe_u32 s54, s47, {hex((3 << 16) | (7*k))}
        s_bfe_u32 s55, s47, {hex((4 << 16) | (7*k + 3))}
        s_mul_i32 s54, s54, {SEC}
        s_lshl_b32 s55, s55, 9
        s_add_u32 s{dst}, s54, s55""")
    A(f"""
    v_and_b32 v3, 31, v0           ; n
    v_lshrrev_b32 v12, 5, v0       ; h
    v_lshlrev_b32 v13, 4, v3       ; n*16
    v_cmp_eq_u32 vcc, 0, v12
    v_mov_b32 v14, s50
    v_mov_b32 v15, s51
    v_cndmask_b32 v14, v15, v14, vcc
    v_add_u32 v{VKP}, v14, v13
    s_and_b32 s54, s43, 1
    s_lshl_b32 s54, s54, 3
    s_add_u32 s54, s54, s52
    v_add_u32 v{VKS}, s54, v13
    v_add_u32 v{VG[0]}, {5*SEC + 2*TB}, v{VKP}
    s_mul_i32 s53, s43, 20
    s_add_u32 s45, s53, 19
    s_lshr_b32 s45, s45, 7
    s_add_u32 s45, s45, 10
    s_mul_i32 s45, s45, {SEC}
    s_add_u32 s45, s45, 8192
    """)
    def vchunk(dst, seg_v, m_v):
        A(f"""
        v_add_u32 v5, s53, v{m_v}          ; F
        v_lshrrev_b32 v6, 7, v5
        v_add_u32 v6, 10, v6
        v_mul_u32_u24 v6, {SEC // 64}, v6
        v_lshlrev_b32 v6, 6, v6
        v_bfe_u32 v7, v5, 5, 2
        v_lshlrev_b32 v7, 10, v7
        v_add_u32 v6, v6, v7
        v_and_b32 v7, 31, v5
        v_lshl_add_u32 v6, v7, 4, v6
        v_lshrrev_b32 v7, 1, v{seg_v}
        v_lshl_add_u32 v6, v7, 12, v6
        v_and_b32 v7, 1, v{seg_v}
        v_lshl_add_u32 v6, v7, 9, v6
        v_subrev_u32 v7, 20, v{m_v}
        v_and_b32 v7, 3, v7
        v_lshlrev_b32 v7, 4, v7
        v_add_u32 v7, s45, v7
        v_cmp_gt_u32 vcc, 20, v{m_v}
        s_nop 1
        v_cndmask_b32 v{dst}, v7, v6, vcc
        """)
    A("""
    v_cmp_gt_u32 vcc, 56, v0
    v_subrev_u32 v8, 32, v0
    v_subrev_u32 v9, 56, v0
    v_cndmask_b32 v8, v9, v8, vcc          ; m
    v_mov_b32 v9, 1
    v_mov_b32 v10, 0
    v_cndmask_b32 v9, v9, v10, vcc         ; seg
    """)
    vchunk(11, 9, 8)
    A(f"""
    v_add_u32 v6, s52, v13
    v_add_u32 v6, {5*SEC + 2*TB}, v6
    v_cmp_gt_u32 vcc, 32, v0
    s_nop 1
    v_cndmask_b32 v{VG[1]}, v11, v6, vcc
    v_cmp_gt_u32 vcc, 16, v0
    v_cmp_gt_u32 s[54:55], 40, v0
    v_subrev_u32 v8, 40, v0
    v_subrev_u32 v10, 16, v0
    v_cndmask_b32 v8, v8, v10, s[54:55]
    v_add_u32 v10, 8, v0
    v_cndmask_b32 v8, v8, v10, vcc         ; m
    v_mov_b32 v9, 3
    v_mov_b32 v10, 2
    v_cndmask_b32 v9, v9, v10, s[54:55]
    v_mov_b32 v10, 1
    v_cndmask_b32 v9, v9, v10, vcc         ; seg
    """)
    vchunk(VG[2], 9, 8)
    A("v_mov_b32 v8, v3\nv_mov_b32 v9, v12")
    vchunk(VVF, 9, 8)
    srd(A, R_A, P_WO, 640 * 640 * 2)
    A(f"s_and_b32 s52, s{S_J}, 7\ns_mul_i32 s52, s52, 160")
    for b in range(5):
        A(f"""
        v_add_u32 v5, {64*b}, v0
        v_mul_u32_u24 v6, 52429, v5
        v_lshrrev_b32 v6, 19, v6
        v_mul_u32_u24 v7, 10, v6
        v_sub_u32 v7, v5, v7
        v_mul_u32_u24 v6, 1280, v6
        v_lshl_add_u32 v6, v7, 4, v6
        v_add_u32 v{WOV+b}, s52, v6""")
    A(f"""
    s_mul_i32 s53, s{S_WAVE}, 5120
    s_mul_i32 s62, s{S_WAVE}, 40960
    s_mov_b32 s60, 0
    v_lshlrev_b32 v2, 4, v0
    v_mul_u32_u24 v13, 384, v12
    v_lshl_add_u32 v13, v3, 4, v13
    v_add_u32 v{AV[0]}, 1536, v13
    v_mov_b32 v{AK[0]}, v2
    s_and_b32 s54, s43, 1
    s_lshl_b32 s54, s54, 3
    s_add_u32 s54, s54, 1024
    v_lshlrev_b32 v1, 4, v3
    v_add_u32 v{AK2[0]}, s54, v1
    v_add_u32 v{AV[1]}, {CHUNK}, v{AV[0]}
    v_add_u32 v{AK[1]}, {CHUNK}, v{AK[0]}
    v_add_u32 v{AK2[1]}, {CHUNK}, v{AK2[0]}
    v_cmp_lt_u32 vcc, 20, v3
    v_mov_b32 v5, 0x30000
    v_mov_b32 v{Q2+2}, 0
    v_cndmask_b32 v{AV[0]}, v{AV[0]}, v5, vcc
    v_cndmask_b32 v{AV[1]}, v{AV[1]}, v5, vcc
    v_mov_b32 v{Q2+3}, 0
    v_mov_b32 v{KB+2}, 0
    v_mov_b32 v{KB+3}, 0
    v_mov_b32 v{KB0+2}, 0
    v_mov_b32 v{KB0+3}, 0
    v_mov_b32 v164, 0x7ff00000
    s_mul_i32 s45, s46, {TB}
    s_mul_i32 s49, s{S_WAVE}, {REC}
    s_mul_i32 s50, s{S_WAVE}, {TB}
    """)
    stp(A, "hset")
    L_gow = A.newlabel("gow"); L_go = A.newlabel("go")
    A(f"""
    s_cmp_lg_u32 s{S_WAVE}, 0
    s_cbranch_scc1 {L_gow}
    """)
    lds_wait(A, C_QKV, 5, 6, val=4)
    lds_wait(A, C_INIT, 5, 6)
    A(f"""
    s_mul_i32 s54, s43, 5
    s_add_u32 s55, s54, 4
    s_lshr_b32 s54, s54, 5             ; c0
    s_lshr_b32 s55, s55, 5             ; c1
    v_bfe_u32 v5, v0, 4, 1
    v_cmp_eq_u32 vcc, 1, v5
    v_mov_b32 v6, s54
    v_mov_b32 v7, s55
    v_cndmask_b32 v6, v6, v7, vcc      ; c0 / c1
    v_lshrrev_b32 v5, 5, v0
    v_mul_u32_u24 v5, 5, v5
    v_add_u32 v5, v5, v6
    v_add_u32 v6, 10, v6
    v_and_b32 v7, 15, v0
    v_lshl_add_u32 v5, v5, 4, v7
    v_lshl_add_u32 v6, v6, 4, v7
    v_lshlrev_b32 v5, 7, v5
    v_lshlrev_b32 v6, 7, v6
    v_add_u32 v5, {SYNC + 128*L_QF}, v5
    v_add_u32 v6, {SYNC + 128*L_QF}, v6
    """)
    poll2(A, 5, 6, 64, 7, 8, E("PS_QKV", 2))
    lds_set(A, C_GO, 5, 6)
    A(f"s_branch {L_go}")
    A.label(L_gow)
    lds_wait(A, C_GO, 5, 6)
    A.label(L_go)
    stp(A, "go")
    A(f"""
    buffer_load_dwordx4 {v(Q1,4)}, v{VKP}, s[{R_WS}:{R_WS+3}], s45 offen{SC}
    buffer_load_dwordx2 {v(Q2,2)}, v{VKS}, s[{R_WS}:{R_WS+3}], s45 offen{SC}
    s_mov_b32 s48, {5*SEC}
    buffer_load_dwordx4 {v(KA0,4)}, v{VKP}, s[{R_WS}:{R_WS+3}], s48 offen{SC}
    buffer_load_dwordx2 {v(KB0,2)}, v{VKS}, s[{R_WS}:{R_WS+3}], s48 offen{SC}
    s_mov_b32 s48, {5*SEC + TB}
    buffer_load_dwordx4 {v(KA,4)}, v{VKP}, s[{R_WS}:{R_WS+3}], s48 offen{SC}
    buffer_load_dwordx2 {v(KB,2)}, v{VKS}, s[{R_WS}:{R_WS+3}], s48 offen{SC}
    """)
    def kv_piece(chunk, i):
        slot = chunk % 2; rr, part = divmod(i, 3)
        return f"""
        s_add_u32 m0, s49, {slot*CHUNK + rr*8*REC + part*1024}
        s_add_u32 s51, s50, {(chunk*16 + rr*8)*TB}
        buffer_load_dwordx4 v{VG[part]}, s[{R_WS}:{R_WS+3}], s51 offen{SC} lds"""
    for i in range(6): A(kv_piece(0, i))
    if not E("C1LATE", 1):
        for i in range(6): A(kv_piece(1, i))
    A(f"""
    v_cmp_gt_u32 vcc, 32, v0
    s_waitcnt vmcnt({0 if E("C1LATE", 1) else 6})
    s_nop 0
    v_cndmask_b32 v{Q2}, 0, v{Q2}, vcc
    v_cndmask_b32 v{Q2+1}, 0, v{Q2+1}, vcc
    """)
    stp(A, "kvok")
    lds_add(A, C_KV, 12, 13)
    lds_wait(A, C_KV, 12, 13, val=8, sleep=0)
    stp(A, "att0")

    def wo_piece(kind, b):
        if kind == 0:
            return f"""
            s_add_u32 m0, s53, {WO_A + b*1024}
            s_nop 0
            buffer_load_dwordx4 v{WOV+b}, s[{R_A}:{R_A+3}], s62 offen lds"""
        if kind == 2:
            return f"""
            s_add_u32 m0, s53, {b*1024}
            s_add_u32 s51, s62, {WO_BROW*1280}
            buffer_load_dwordx4 v{WOV+b}, s[{R_A}:{R_A+3}], s51 offen lds"""
        lab = A.newlabel("wos")
        if kind == 1: lim, ldso, go = 3, WO_A + 8*5120, 8*40960
        else: lim, ldso, go = (2 if b < 2 else 1), 8*5120, WO_BROW*1280 + 8*40960
        return f"""
            s_cmp_ge_u32 s{S_WAVE}, {lim}
            s_cbranch_scc1 {lab}
            s_add_u32 m0, s53, {ldso + b*1024}
            s_add_u32 s51, s62, {go}
            buffer_load_dwordx4 v{WOV+b}, s[{R_A}:{R_A+3}], s51 offen lds
            {lab}:"""
    def qk2(Sd, Kr):
        if E("K8", 1): return f"v_mfma_f32_32x32x8bf16_1k {v(Sd,16)}, {v(Kr,2)}, {v(Q2,2)}, {v(Sd,16)}"
        return f"v_mfma_f32_32x32x16_bf16 {v(Sd,16)}, {v(Kr,4)}, {v(Q2,4)}, {v(Sd,16)}"
    PZ, PQ, PO = 132, 148, 164
    def post_task(skip):
        L_t3 = A.newlabel("t3"); L_tgo = A.newlabel("tgo")
        A(f"""
        s_cmp_eq_u32 s{S_WAVE}, 0
        s_cbranch_scc1 {skip}
        s_cmp_ge_u32 s{S_WAVE}, 4
        s_cbranch_scc1 {skip}
        s_cmp_eq_u32 s{S_WAVE}, 3
        s_cbranch_scc1 {L_t3}
        s_lshl_b32 s56, s2, 1
        s_sub_u32 s57, s{S_WAVE}, 1
        s_add_u32 s56, s56, s57
        s_branch {L_tgo}
        {L_t3}:
        s_cmp_ge_u32 s2, 128
        s_cbranch_scc1 {skip}
        s_add_u32 s56, s2, 512
        {L_tgo}:
        """)
    def post_probe():
        A(f"""
        v_min_u32 v12, 7, v0
        v_lshlrev_b32 v12, 7, v12
        v_add_u32 v12, {SYNC + 128*(FLG + L_Z)}, v12
        global_load_dword v166, v12, s[{P_WS}:{P_WS+1}] sc1
        """)
    def post_prefetch():
        Ls = A.newlabel("pps"); Lok = A.newlabel("ppok")
        post_task(Ls)
        A(f"""
        v_cmp_le_u32 vcc, 1, v166
        s_mul_i32 s57, s56, 52429
        s_lshr_b32 s57, s57, 19
        s_mul_i32 s58, s57, 10
        s_sub_u32 s58, s56, s58
        s_cmp_eq_u64 vcc, -1
        s_cbranch_scc1 {Lok}
        """)
        poll_flags(A, L_Z, 8, 12, 13, 14)
        A.label(Lok)
        srd(A, R_B, P_BQ, 2048 * 640 * 2)
        A(f"""
        v_and_b32 v12, 7, v0
        v_lshrrev_b32 v13, 3, v0
        s_lshl_b32 s54, s58, 6
        v_lshl_add_u32 v12, v12, 3, s54
        s_lshl_b32 s55, s57, 5
        v_lshl_add_u32 v13, v13, 2, s55
        v_mul_u32_u24 v14, 1280, v13
        v_lshl_add_u32 v14, v12, 1, v14
        v_mul_u32_u24 v15, 2560, v13
        v_lshl_add_u32 v15, v12, 1, v15
        v_add_u32 v{PO}, 1280, v15
        v_lshlrev_b32 v15, 12, v12
        v_lshl_add_u32 v15, v13, 1, v15
        v_add_u32 v{PO+1}, {WS_Z}, v15
        """)
        for j in range(4):
            A(f"buffer_load_dwordx4 {v(PQ+4*j,4)}, v14, s[{R_B}:{R_B+3}], 0 offen offset:{1280*j}")
        for i in range(8):
            A(f"s_mov_b32 s54, {i*4096}")
            A(f"buffer_load_dwordx2 {v(PZ+2*i,2)}, v{PO+1}, s[{R_WS}:{R_WS+3}], s54 offen{SC}")
        A.label(Ls)
    A(f"v_mfma_f32_32x32x16_bf16 {v(S[0],16)}, {v(KA0,4)}, {v(Q1,4)}, 0")
    A(qk2(S[0], KB0))
    A("s_nop 7\ns_nop 7")
    for J in range(64):
        c = J // 16; slot = c % 2; j = J % 16
        Sc, Sn = S[J % 2], S[(J + 1) % 2]
        Pc, Pp = P[J % 2], P[(J + 1) % 2]
        off = j * REC
        if j == 0 and J > 0:
            stp(A, f"attpre{J}")
            if J == 48 and E("POSTPF", 1): post_probe()
            A(f"s_waitcnt vmcnt({5 if J == 32 else 0}) lgkmcnt(0)\ns_barrier")
            stp(A, f"attb{J}")
            if J == 48 and E("POSTPF", 1): post_prefetch()
        EX = lambda i: f"v_exp_f32 v{Sc+i}, v{Sc+i}"
        CV = lambda i: f"v_cvt_pk_bf16_f32 v{Pc+i}, v{Sc+2*i}, v{Sc+2*i+1}"
        G = [(EX(0),EX(1),EX(2),EX(3),CV(0),CV(1)), (EX(4),EX(5),EX(6),EX(7),CV(2),CV(3)), (EX(8),EX(9),EX(10),EX(11),CV(4),CV(5)), (EX(12),EX(13),EX(14),EX(15),CV(6),CV(7))]
        if j in (0, 9, 13, 15):
            A(f"s_setprio {dict([(0,3),(9,2),(13,1),(15,0)])[j]}")
        if J > 0 and j != 0: A("s_waitcnt lgkmcnt(2)")
        if J < 63: A(f"v_mfma_f32_32x32x16_bf16 {v(Sn,16)}, {v(KA,4)}, {v(Q1,4)}, 0")
        if J < 62: A(f"ds_read_b128 {v(KA,4)}, v{AK[slot]} offset:{off}")
        for x in G[0]: A(x)
        if J < 63: A(qk2(Sn, KB))
        if J < 62: A(f"ds_read_b64 {v(KB,2)}, v{AK2[slot]} offset:{off}")
        for x in G[1]: A(x)
        if J > 0:
            A("s_waitcnt lgkmcnt(2)" if J < 62 else "s_waitcnt lgkmcnt(0)")
            cc = "0" if J == 1 else v(O, 16)
            A(f"v_mfma_f32_32x32x16_bf16 {v(O,16)}, {v(V0,4)}, {v(Pp,4)}, {cc}")
        A(f"ds_read_b128 {v(V0,4)}, v{AV[slot]} offset:{off}")
        for x in G[2]: A(x)
        if J > 0: A(f"v_mfma_f32_32x32x16_bf16 {v(O,16)}, {v(V1,4)}, {v(Pp+4,4)}, {v(O,16)}")
        A(f"ds_read_b128 {v(V1,4)}, v{AV[slot]} offset:{off + 768}")
        if (c in (1, 2) or (c == 0 and E("C1LATE", 1))) and j < 6: A(kv_piece(c + 1, j))
        if c == 1 and 6 <= j < 11: A(wo_piece(0, j - 6))
        if c == 1 and 11 <= j < 16: A(wo_piece(1, j - 11))
        if c == 3 and 1 <= j < 6: A(wo_piece(2, j - 1))
        if c == 3 and 6 <= j < 11: A(wo_piece(3, j - 6))
        for x in G[3]: A(x)
    stp(A, "att1")
    Pl = P[63 % 2]
    A("s_waitcnt lgkmcnt(0)")
    A(f"v_mfma_f32_32x32x16_bf16 {v(O,16)}, {v(V0,4)}, {v(Pl,4)}, {v(O,16)}")
    A(f"v_mfma_f32_32x32x16_bf16 {v(O,16)}, {v(V1,4)}, {v(Pl+4,4)}, {v(O,16)}")
    A("s_setprio 0")
    L_fin = A.newlabel("fin"); L_slow = A.newlabel("slow"); L_odone = A.newlabel("odone")
    def addr_calc():
        A(f"""
        s_lshl_b32 s52, s43, 6
        s_add_u32 s52, s52, s46
        s_mul_i32 s52, s52, 1536
        s_add_u32 s52, s52, {WS_O}
        v_lshlrev_b32 v104, 4, v0
        """)
    addr_calc()
    A("s_nop 7")
    A.label(L_fin)
    A("s_nop 7")
    A(f"""
    v_mov_b32 v110, v{O+8}
    v_mov_b32 v111, v{O+8}
    s_nop 1
    v_permlane32_swap_b32 v110, v111
    s_nop 1
    v_rcp_f32 v112, v111
    s_nop 0
    """)
    for i in range(0, 12, 2):
        A(f"v_pk_mul_f32 {v(O+i,2)}, {v(O+i,2)}, v[112:113] op_sel_hi:[1,0]")
    A(f"""
    v_add_f32 v113, abs(v{O}), abs(v{O+1})
    v_add_f32 v114, abs(v{O+8}), abs(v{O+9})
    """)
    for i in range(2, 8): A(f"v_add_f32 v113, v113, abs(v{O+i})")
    A(f"""
    v_add_f32 v114, v114, abs(v{O+10})
    v_add_f32 v114, v114, abs(v{O+11})
    v_cmp_gt_u32 vcc, 32, v0
    v_mov_b32 v115, 0x21800000         ; 2^-60
    v_mov_b32 v116, 0x5d800000         ; 2^60
    v_cndmask_b32 v114, 0, v114, vcc
    v_add_f32 v113, v113, v114
    v_mov_b32 v114, 0x7f800000
    v_cmp_nlt_f32 s[54:55], v113, v114
    v_cmp_ngt_f32 s[56:57], v111, v115
    v_cmp_nlt_f32 vcc, v111, v116
    s_nop 1
    s_or_b64 s[54:55], s[54:55], s[56:57]
    s_or_b64 s[54:55], s[54:55], vcc
    s_cmp_lg_u64 s[54:55], 0
    s_cselect_b32 s61, 1, 0
    s_andn2_b32 s61, s61, s60
    s_cmp_lg_u32 s61, 0
    s_cbranch_scc1 {L_slow}
    """)
    for i in range(4): A(f"v_cvt_pk_bf16_f32 v{O+i}, v{O+2*i}, v{O+2*i+1}")
    A(f"""
    v_cvt_pk_bf16_f32 v{O+8}, v{O+8}, v{O+9}
    v_cvt_pk_bf16_f32 v{O+9}, v{O+10}, v{O+11}
    v_mov_b32 v{O+10}, 0
    v_mov_b32 v{O+11}, 0
    buffer_store_dwordx4 {v(O,4)}, v104, s[{R_WS}:{R_WS+3}], s52 offen{SC}
    s_mov_b32 exec_hi, 0
    buffer_store_dwordx4 {v(O+8,4)}, v104, s[{R_WS}:{R_WS+3}], s52 offen offset:1024{SC}
    s_mov_b64 exec, -1
    s_branch {L_odone}
    """)
    A.label(L_slow)
    L1 = A.newlabel("p1"); L2 = A.newlabel("p2")
    A(f"""
    s_mov_b32 s60, 1
    v_mov_b32 v110, 0xff800000
    s_mov_b32 s52, 0
    {L1}:
    s_mul_i32 s63, s52, {TB}
    s_add_u32 s63, s63, {5*SEC}
    buffer_load_dwordx4 {v(KA,4)}, v{VKP}, s[{R_WS}:{R_WS+3}], s63 offen{SC}
    buffer_load_dwordx2 {v(KB,2)}, v{VKS}, s[{R_WS}:{R_WS+3}], s63 offen{SC}
    s_waitcnt vmcnt(0)
    v_mfma_f32_32x32x16_bf16 {v(S[0],16)}, {v(KA,4)}, {v(Q1,4)}, 0
    v_mfma_f32_32x32x16_bf16 {v(S[0],16)}, {v(KB,4)}, {v(Q2,4)}, {v(S[0],16)}
    s_nop 7
    s_nop 7
    """)
    for i in range(0, 16, 2): A(f"v_max3_f32 v110, v110, v{S[0]+i}, v{S[0]+i+1}")
    A(f"""
    s_add_u32 s52, s52, 1
    s_cmp_lt_u32 s52, 64
    s_cbranch_scc1 {L1}
    v_mov_b32 v108, v110
    v_mov_b32 v109, v110
    s_nop 1
    v_permlane32_swap_b32 v108, v109
    s_nop 1
    v_max_f32 v110, v108, v109
    v_and_b32 v3, 31, v0
    v_cmp_gt_u32 vcc, 20, v3
    v_add_u32 v108, 4096, v{VVF}
    s_nop 0
    v_cndmask_b32 v109, v{VVF}, v108, vcc
    """)
    for i in range(16): A(f"v_mov_b32 v{O+i}, 0")
    A("s_mov_b32 s52, 0")
    A.label(L2)
    A(f"""
    s_mul_i32 s54, s52, {TB}
    s_add_u32 s63, s54, {5*SEC}
    buffer_load_dwordx4 {v(KA,4)}, v{VKP}, s[{R_WS}:{R_WS+3}], s63 offen{SC}
    buffer_load_dwordx2 {v(KB,2)}, v{VKS}, s[{R_WS}:{R_WS+3}], s63 offen{SC}
    buffer_load_dwordx4 {v(V0,4)}, v{VVF}, s[{R_WS}:{R_WS+3}], s54 offen{SC}
    buffer_load_dwordx4 {v(V1,4)}, v109, s[{R_WS}:{R_WS+3}], s54 offen{SC}
    s_waitcnt vmcnt(0)
    v_mfma_f32_32x32x16_bf16 {v(S[0],16)}, {v(KA,4)}, {v(Q1,4)}, 0
    v_mfma_f32_32x32x16_bf16 {v(S[0],16)}, {v(KB,4)}, {v(Q2,4)}, {v(S[0],16)}
    s_nop 7
    s_nop 7
    """)
    for i in range(16): A(f"v_sub_f32 v{S[0]+i}, v{S[0]+i}, v110")
    for i in range(16): A(f"v_exp_f32 v{S[0]+i}, v{S[0]+i}")
    A("s_nop 0")
    for i in range(8): A(f"v_cvt_pk_bf16_f32 v{P[0]+i}, v{S[0]+2*i}, v{S[0]+2*i+1}")
    A(f"""
    s_nop 1
    v_mfma_f32_32x32x16_bf16 {v(O,16)}, {v(V0,4)}, {v(P[0],4)}, {v(O,16)}
    v_mfma_f32_32x32x16_bf16 {v(O,16)}, {v(V1,4)}, {v(P[0]+4,4)}, {v(O,16)}
    s_add_u32 s52, s52, 1
    s_cmp_lt_u32 s52, 64
    s_cbranch_scc1 {L2}
    s_nop 7
    """)
    addr_calc()
    A(f"s_branch {L_fin}")

    A.label(L_odone)
    OF = 32; AD = 80; OA = 88; VOUT, VRED = 91, 92; ACC3 = 96; WF = [116, 136]
    A(f"""
    s_lshl_b32 s54, s{S_XCD}, 2
    s_lshr_b32 s55, s{S_J}, 3
    s_add_u32 s54, s54, s55        ; tb
    s_lshl_b32 s54, s54, 2
    s_and_b32 s55, s{S_WAVE}, 3
    s_add_u32 s54, s54, s55        ; T
    s_lshr_b32 s45, s54, 1
    s_mul_i32 s45, s45, 1536
    s_and_b32 s57, s54, 1
    s_lshl_b32 s57, s57, 8
    s_add_u32 s45, s45, s57
    s_add_u32 s45, s45, {WS_O}
    s_lshr_b32 s57, s{S_WAVE}, 2
    s_mul_i32 s57, s57, {16*64*1536}
    s_add_u32 s62, s45, s57
    v_lshrrev_b32 v5, 4, v0            ; kg
    v_and_b32 v6, 15, v0
    v_lshlrev_b32 v6, 4, v6
    """)
    for c in range(3):
        A(f"""
        v_add_u32 v8, {4*c}, v5
        v_mul_u32_u24 v9, 21846, v8
        v_lshrrev_b32 v9, 16, v9
        v_mul_u32_u24 v10, 3, v9
        v_sub_u32 v10, v8, v10
        v_mul_u32_u24 v9, 1536, v9
        v_lshlrev_b32 v9, 6, v9
        v_lshl_add_u32 v9, v10, 9, v9
        v_add_u32 v{OA+c}, v9, v6""")
    A(f"""
    v_and_b32 v3, 15, v0
    s_lshl_b32 s55, s54, 4
    v_add_u32 v3, s55, v3
    v_mul_u32_u24 v3, 2560, v3
    v_lshrrev_b32 v4, 4, v0
    v_lshl_add_u32 v3, v4, 3, v3
    s_and_b32 s55, s{S_J}, 7
    s_mul_i32 s55, s55, 160
    v_add_u32 v{VOUT}, s55, v3
    v_lshlrev_b32 v3, 4, v0
    s_and_b32 s55, s{S_WAVE}, 3
    s_mul_i32 s55, s55, 5120
    s_add_u32 s55, s55, {RED}
    v_add_u32 v{VRED}, s55, v3
    v_bfe_u32 v6, v0, 2, 2             ; r
    v_and_b32 v7, 3, v0
    v_lshlrev_b32 v7, 3, v7            ; 8*c4
    s_mov_b32 s59, {WO_A}
    """)
    def row_addr(dst0, s, region):
        A(f"""
        v_add_u32 v8, {4*s}, v5
        v_mul_u32_u24 v9, 21846, v8
        v_lshrrev_b32 v9, 16, v9
        v_mul_u32_u24 v10, 3, v9
        v_sub_u32 v10, v8, v10
        v_mul_u32_u24 v9, 20, v9
        v_add_u32 v9, v9, v6
        v_lshlrev_b32 v11, 2, v10
        v_cmp_eq_u32 vcc, 2, v10
        v_add_u32 v12, 8, v11
        v_lshlrev_b32 v13, 1, v11
        v_cndmask_b32 v11, v11, v13, vcc
        v_add_u32 v11, v11, v9
        v_add_u32 v12, v12, v9
        """)
        for hh, rv in enumerate((11, 12)):
            if region == "A":
                A(f"v_mul_u32_u24 v13, 160, v{rv}\nv_add3_u32 v{dst0+hh}, v13, v7, s59")
            elif region == "B":
                A(f"v_subrev_u32 v13, {WO_BROW}, v{rv}\nv_mul_u32_u24 v13, 160, v13\nv_add_u32 v{dst0+hh}, v13, v7")
            else:
                A(f"""
                v_mul_u32_u24 v13, 160, v{rv}
                v_add3_u32 v14, v13, v7, s59
                v_subrev_u32 v13, {WO_BROW*160}, v13
                v_add_u32 v13, v13, v7
                v_cmp_gt_u32 vcc, {WO_BROW}, v{rv}
                s_nop 1
                v_cndmask_b32 v{dst0+hh}, v13, v14, vcc""")
    L_ahi = A.newlabel("ahi"); L_adone = A.newlabel("adone")
    stp(A, "ostored")
    A("s_waitcnt vmcnt(0)")
    stp(A, "odrained")
    L_os = A.newlabel("os")
    lds_arrive_last(A, C_O, 8, L_os, 2, 3)
    A(f"s_add_u32 s65, s44, {L_O}")
    global_arrive(A, "s65", 32, 2, 3)
    A.label(L_os)
    A(f"""
    s_cmp_ge_u32 s{S_WAVE}, 4
    s_cbranch_scc1 {L_ahi}
    """)
    for c in range(3): row_addr(AD + 2*c, c, "A")
    A(f"s_branch {L_adone}")
    A.label(L_ahi)
    row_addr(AD + 6, 12, None)
    for c in range(3): row_addr(AD + 2*c, 13 + c, "B")
    A.label(L_adone)
    srd(A, R_B, P_OUT, 2048 * 1280 * 2)
    L_p3a = A.newlabel("p3a"); L_post = A.newlabel("post"); L_t3 = A.newlabel("t3"); L_tgo = A.newlabel("tgo")
    A(f"""
    s_cmp_eq_u32 s{S_WAVE}, 0
    s_cbranch_scc0 {L_post}
    s_lshl_b32 s54, s{S_XCD}, 7
    s_add_u32 s54, s54, {SYNC + 128*(FLG + L_O)}
    v_mov_b32 v2, s54
    v_cmp_eq_u32 vcc, 0, v0
    v_mov_b32 v3, 1
    s_nop 0
    v_cndmask_b32 v4, 0, v3, vcc
    """)
    poll(A, 2, 4, 3, sleep=E("PS_O", 2))
    stp(A, "ook")
    A(f"s_branch {L_p3a}")
    A.label(L_post)
    if E("NOBW", 0): A(f"s_branch {L_p3a}")
    post_task(L_p3a)
    for j in range(4):
        for q in range(4):
            za = PZ + 2*(2*q) + j//2; zb = PZ + 2*(2*q+1) + j//2
            if j % 2 == 0:
                A(f"v_lshlrev_b32 v48, 16, v{za}\nv_lshlrev_b32 v49, 16, v{zb}")
            else:
                A(f"v_and_b32 v48, 0xffff0000, v{za}\nv_and_b32 v49, 0xffff0000, v{zb}")
            qq = PQ + 4*j + q
            A(f"v_lshlrev_b32 v50, 16, v{qq}\nv_and_b32 v51, 0xffff0000, v{qq}")
            A(f"v_pk_mul_f32 v[48:49], v[48:49], v[50:51]")
            A(f"v_cvt_pk_bf16_f32 v{52+4*j+q}, v48, v49")
        A(f"s_mov_b32 s54, {j*2560}")
        A(f"buffer_store_dwordx4 {v(52+4*j,4)}, v{PO}, s[{R_B}:{R_B+3}], s54 offen{os.environ.get('OUTB', '')}")
    A.label(L_p3a)
    stp(A, "prep3a")
    A("s_barrier")
    stp(A, "p3a")
    PD = E("P3D", 3)
    def o_load(st):
        A(f"s_add_u32 s58, s62, {(st//3)*4*64*1536}")
        A(f"buffer_load_dwordx4 {v(OF+4*st,4)}, v{OA + st % 3}, s[{R_WS}:{R_WS+3}], s58 offen{SC}")
    for st in range(min(PD + 1, 12)): o_load(st)
    def p3_loop(hi):
        if not hi: sel = lambda st: (AD + 2*(st % 3), (st // 3) * 12800)
        else: sel = lambda st: (AD + 6, 0) if st == 0 else (AD + 2*((st - 1) % 3), ((st - 1) // 3) * 12800)
        def rd(st, setid):
            base, so = sel(st); r = []
            for T in range(5):
                r.append(f"ds_read_b64_tr_b16 {v(WF[setid]+4*T,2)}, v{base} offset:{so + 32*T}")
                r.append(f"ds_read_b64_tr_b16 {v(WF[setid]+4*T+2,2)}, v{base+1} offset:{so + 32*T}")
            return r
        for r in rd(0, 0): A(r)
        for st in range(12):
            setid = st % 2
            A(f"s_waitcnt vmcnt({min(PD, 11-st)}) lgkmcnt(0)")
            if st + PD + 1 < 12: o_load(st + PD + 1)
            if st == 0: stp(A, "p3first")
            if st == 6: stp(A, "p3mid")
            rs = rd(st + 1, 1 - setid) if st < 11 else []
            for T in range(5):
                cc = "0" if st == 0 else v(ACC3+4*T, 4)
                A(f"v_mfma_f32_16x16x32_bf16 {v(ACC3+4*T,4)}, {v(WF[setid]+4*T,4)}, {v(OF+4*st,4)}, {cc}")
                for r in rs[2*T:2*T+2]: A(r)
        A("s_nop 7")
    L_hi = A.newlabel("p3hi")
    A(f"""
    s_cmp_ge_u32 s{S_WAVE}, 4
    s_cbranch_scc1 {L_hi}
    """)
    p3_loop(False)
    stp(A, "p3loop")
    A("s_barrier")
    stp(A, "p3red")
    for T in range(5): A(f"ds_read_b128 {v(32+4*T,4)}, v{VRED} offset:{1024*T}")
    A("s_waitcnt lgkmcnt(0)")
    for T in range(5):
        d = ACC3 + 4*T
        A(f"v_pk_add_f32 {v(d,2)}, {v(d,2)}, {v(32+4*T,2)}")
        A(f"v_pk_add_f32 {v(d+2,2)}, {v(d+2,2)}, {v(34+4*T,2)}")
        A(f"v_cvt_pk_bf16_f32 v{d}, v{d}, v{d+1}")
        A(f"v_cvt_pk_bf16_f32 v{d+1}, v{d+2}, v{d+3}")
        A(f"buffer_store_dwordx2 {v(d,2)}, v{VOUT}, s[{R_B}:{R_B+3}], 0 offen offset:{32*T}{os.environ.get('OUTA', '')}")
    prof_dump(A, 0, wsptr=P_WS)
    A("s_endpgm")
    A.label(L_hi)
    p3_loop(True)
    for T in range(5): A(f"ds_write_b128 v{VRED}, {v(ACC3+4*T,4)} offset:{1024*T}")
    A("s_waitcnt lgkmcnt(0)\ns_barrier")
    prof_dump(A, 0, wsptr=P_WS)
    A("s_endpgm")

    A.label(L_bw)
    BK, BV, BW = 16, 44, 60
    def b_setup(notask):
        L2_ = A.newlabel("b2"); Lgo = A.newlabel("bgo")
        A(f"""
        s_cmp_eq_u32 s{S_WAVE}, 10
        s_cbranch_scc1 {L2_}
        s_lshl_b32 s56, s2, 1
        s_sub_u32 s57, s{S_WAVE}, 8
        s_add_u32 s56, s56, s57
        s_branch {Lgo}
        {L2_}:
        s_cmp_ge_u32 s2, 128
        s_cbranch_scc1 {notask}
        s_add_u32 s56, s2, 512
        {Lgo}:
        s_mul_i32 s57, s56, 52429
        s_lshr_b32 s57, s57, 19        ; tblk
        s_mul_i32 s58, s57, 10
        s_sub_u32 s58, s56, s58        ; dblk
        v_and_b32 v2, 7, v0            ; dg
        v_lshrrev_b32 v3, 3, v0        ; tg
        v_lshlrev_b32 v12, 6, v2
        v_lshl_add_u32 v12, v3, 3, v12
        s_lshl_b32 s54, s56, 12
        s_add_u32 s54, s54, {WS_U}
        v_add_u32 v12, s54, v12
        s_lshl_b32 s54, s58, 6
        v_lshl_add_u32 v2, v2, 3, s54  ; d0
        s_lshl_b32 s55, s57, 5
        v_lshl_add_u32 v3, v3, 2, s55  ; t0
        v_mul_u32_u24 v4, 1280, v3
        v_lshl_add_u32 v10, v2, 1, v4
        v_lshlrev_b32 v11, 3, v2
        v_subrev_u32 v5, 3840, v10
        v_subrev_u32 v6, 2560, v10
        v_subrev_u32 v7, 1280, v10
        """)
    def b_loads():
        srd(A, R_C, P_BK, 2048 * 640 * 2)
        A(f"""
        buffer_load_dwordx4 {v(BK,4)}, v5, s[{R_C}:{R_C+3}], 0 offen
        buffer_load_dwordx4 {v(BK+4,4)}, v6, s[{R_C}:{R_C+3}], 0 offen
        buffer_load_dwordx4 {v(BK+8,4)}, v7, s[{R_C}:{R_C+3}], 0 offen
        """)
        for j in range(4): A(f"buffer_load_dwordx4 {v(BK+12+4*j,4)}, v10, s[{R_C}:{R_C+3}], 0 offen offset:{1280*j}")
        srd(A, R_C, P_BV, 2048 * 640 * 2)
        for j in range(4): A(f"buffer_load_dwordx4 {v(BV+4*j,4)}, v10, s[{R_C}:{R_C+3}], 0 offen offset:{1280*j}")
        srd(A, R_C, P_SH, 640 * 4 * 2)
        for j in range(4): A(f"buffer_load_dwordx4 {v(BW+4*j,4)}, v11, s[{R_C}:{R_C+3}], 0 offen offset:{16*j}")
    def b_compute(q):
        KP, VP, WP, AC, OUT = 80, 94, 102, 110, 120
        for j in range(7):
            A(f"v_lshlrev_b32 v{KP+2*j}, 16, v{BK+4*j+q}\nv_and_b32 v{KP+1+2*j}, 0xffff0000, v{BK+4*j+q}")
        for t in range(4):
            A(f"v_lshlrev_b32 v{VP+2*t}, 16, v{BV+4*t+q}\nv_and_b32 v{VP+1+2*t}, 0xffff0000, v{BV+4*t+q}")
        for u in range(2):
            bb = BW + 4*q + 2*u
            A(f"v_lshlrev_b32 v{WP+u}, 16, v{bb}\nv_and_b32 v{WP+2+u}, 0xffff0000, v{bb}")
            A(f"v_lshlrev_b32 v{WP+4+u}, 16, v{bb+1}\nv_and_b32 v{WP+6+u}, 0xffff0000, v{bb+1}")
        for t in range(4):
            acc = AC + 2*t
            A(f"v_pk_mul_f32 {v(acc,2)}, {v(KP+2*(t+0),2)}, {v(WP+6,2)}")
            A(f"v_pk_fma_f32 {v(acc,2)}, {v(KP+2*(t+1),2)}, {v(WP+4,2)}, {v(acc,2)}")
            A(f"v_pk_fma_f32 {v(acc,2)}, {v(KP+2*(t+2),2)}, {v(WP+2,2)}, {v(acc,2)}")
            A(f"v_pk_fma_f32 {v(acc,2)}, {v(KP+2*(t+3),2)}, {v(WP,2)}, {v(acc,2)}")
            A(f"v_pk_mul_f32 {v(acc,2)}, {v(acc,2)}, {v(VP+2*t,2)}")
        for u in range(2):
            o = OUT + 4*q + 2*u
            A(f"v_cvt_pk_bf16_f32 v{o}, v{AC+u}, v{AC+2+u}\nv_cvt_pk_bf16_f32 v{o+1}, v{AC+4+u}, v{AC+6+u}")
        for u in range(2):
            o = OUT + 4*q + 2*u
            A(f"buffer_store_dwordx2 {v(o,2)}, v12, s[{R_WS}:{R_WS+3}], 0 offen offset:{(2*q+u)*512}{SC}")
    def init_load():
        A(f"v_mov_b32 v2, 0\nglobal_load_dword v9, v2, s[{P_DBG}:{P_DBG+1}] sc1")
    def u_publish(n):
        A(f"s_waitcnt vmcnt({n})\ns_mov_b32 s65, 0")
        Lok = A.newlabel("iok"); Lsk = A.newlabel("usk")
        A(f"""
        v_readfirstlane_b32 s66, v9
        s_nop 3
        s_cmp_lg_u32 s66, 0
        s_cbranch_scc1 {Lok}
        v_mov_b32 v2, 0
        v_mov_b32 v3, 1
        """)
        poll(A, 2, 3, 4, sleep=8, base=P_DBG)
        A.label(Lok)
        lds_set(A, C_INIT, 2, 3)
        A("s_cmp_lt_u32 s2, 128\ns_cselect_b32 s64, 3, 2")
        lds_arrive_last(A, C_U, "s64", Lsk, 2, 3)
        A(f"""
        s_and_b32 s66, s2, 7
        s_add_u32 s66, s66, {L_U}
        s_lshl_b32 s66, s66, 7
        s_add_u32 s66, s66, {SYNC}
        v_mov_b32 v10, s66
        v_mov_b32 v11, 1
        s_mov_b64 exec, 1
        global_atomic_add v11, v10, v11, s[{P_WS}:{P_WS+1}] sc0 sc1
        s_mov_b64 exec, -1
        s_mov_b32 s65, 1
        {Lsk}:
        """)
    def u_flag():
        L = A.newlabel("uf")
        A(f"""
        s_cmp_eq_u32 s65, 0
        s_cbranch_scc1 {L}
        s_waitcnt vmcnt(0)
        v_readfirstlane_b32 s66, v11
        s_nop 3
        s_cmp_lg_u32 s66, 31
        s_cbranch_scc1 {L}
        v_add_u32 v10, {128*40}, v10
        v_mov_b32 v11, 1
        s_mov_b64 exec, 1
        global_store_dword v10, v11, s[{P_WS}:{P_WS+1}] sc1
        s_mov_b64 exec, -1
        {L}:
        """)
    HR = 136
    def h_loads():
        srd(A, R_C, P_SK, 640 * 4096)
        A(f"""
        s_sub_u32 s57, s{S_WAVE}, 8
        s_mul_i32 s57, s57, {CONV_SZ}
        s_add_u32 s57, s57, {CONV_BASE}
        s_lshl_b32 s58, s56, 12
        v_lshlrev_b32 v13, 4, v0
        v_add_u32 v13, s58, v13
        v_subrev_u32 v14, 8, v13
        """)
        for p in range(4):
            if p == 0:
                A(f"buffer_load_dwordx2 {v(HR,2)}, v14, s[{R_C}:{R_C+3}], 0 offen")
            else:
                A(f"buffer_load_dwordx2 {v(HR+6*p,2)}, v13, s[{R_C}:{R_C+3}], 0 offen offset:{1024*p - 8}")
            A(f"buffer_load_dwordx4 {v(HR+6*p+2,4)}, v13, s[{R_C}:{R_C+3}], 0 offen offset:{1024*p}")
    def h_build():
        A(f"""
        v_cmp_eq_u32 vcc, 0, v0
        v_lshlrev_b32 v6, 4, v0
        v_add_u32 v6, s57, v6
        v_add_u32 v6, 32, v6
        v_cndmask_b32 v{HR}, v{HR}, 0, vcc
        v_cndmask_b32 v{HR+1}, v{HR+1}, 0, vcc
        """)
        for p in range(4):
            b = HR + 6*p; P1, P0, D = b, b + 1, b + 2
            T1, T2, T3 = 16 + 12*(p % 2), 20 + 12*(p % 2), 24 + 12*(p % 2)
            A(f"""
            ds_write_b128 v6, {v(D,4)} offset:{0*COPY + 1024*p}
            v_alignbit_b32 v{T1}, v{D}, v{P0}, 16
            v_alignbit_b32 v{T1+1}, v{D+1}, v{D}, 16
            v_alignbit_b32 v{T1+2}, v{D+2}, v{D+1}, 16
            v_alignbit_b32 v{T1+3}, v{D+3}, v{D+2}, 16
            v_mov_b32 v{T2}, v{P0}
            v_mov_b32 v{T2+1}, v{D}
            v_mov_b32 v{T2+2}, v{D+1}
            v_mov_b32 v{T2+3}, v{D+2}
            v_alignbit_b32 v{T3}, v{P0}, v{P1}, 16
            v_mov_b32 v{T3+1}, v{T1}
            v_mov_b32 v{T3+2}, v{T1+1}
            v_mov_b32 v{T3+3}, v{T1+2}
            ds_write_b128 v6, {v(T1,4)} offset:{1*COPY + 1024*p}
            ds_write_b128 v6, {v(T2,4)} offset:{2*COPY + 1024*p}
            ds_write_b128 v6, {v(T3,4)} offset:{3*COPY + 1024*p}
            """)
    L_bnog = A.newlabel("bnog"); L_bnt = A.newlabel("bnt"); L_sync = A.newlabel("sync"); L_bntn = A.newlabel("bntn")
    A(f"""
    s_cmp_ge_u32 s{S_CB}, 15
    s_cbranch_scc1 {L_bnog}
    """)
    b_setup(L_bnt)
    if E("BISS", 0): lds_wait(A, C_ISS, 2, 3, val=4, sleep=1)
    if E("NOBW", 0):
        lds_set(A, C_INIT, 2, 3)
        for _ in range(10): A("s_barrier")
        A(f"s_branch {L_exit}")
    MODE = E("BMODE", 3)
    if MODE == 3:
        b_loads()
        h_loads()
        k = E("BWAIT", 3)
        for _ in range(k): A("s_barrier")
        A("s_waitcnt vmcnt(8)")
        stp(A, "blok")
        if E("BPRIO", 0): A(f"s_setprio {E('BPRIO', 0)}")
        nsp = E("BSPLIT", 2)
        for q in range(4):
            b_compute(q)
            if (nsp == 2 and q == 1) or (nsp == 4 and q < 3): A("s_barrier")
        used = 1 if nsp == 2 else (3 if nsp == 4 else 0)
        A("s_setprio 0")
        init_load()
        g = E("BGAP", 3)
        for _ in range(g): A("s_barrier")
        u_publish(0)
        stp(A, "upub")
        for _ in range(10 - k - used - g): A("s_barrier")
    elif MODE == 2:
        for _ in range(E("BAT", 1)): A("s_barrier")
        b_loads()
        h_loads()
        for _ in range(10 - E("BAT", 1)): A("s_barrier")
        A("s_waitcnt vmcnt(8)")
        stp(A, "blok")
        for q in range(4): b_compute(q)
        init_load()
        u_publish(0)
        stp(A, "upub")
    else:
        hl = E("HLATE", 1)
        b_loads()
        if not hl: h_loads()
        A(f"s_waitcnt vmcnt({0 if hl else 8})")
        stp(A, "blok")
        for q in range(4): b_compute(q)
        init_load()
        npub = E("NPUB", 2)
        for _ in range(npub): A("s_barrier")
        u_publish(0)
        stp(A, "upub")
        if hl:
            for _ in range(hl): A("s_barrier")
            h_loads()
        for _ in range(10 - npub - hl): A("s_barrier")
    stp(A, "b9")
    A(f"s_branch {L_conv}")
    A.label(L_bnt)
    A(f"s_branch {L_exit}")
    A.label(L_bnog)
    if E("NOBW", 0):
        lds_set(A, C_INIT, 2, 3)
        A(f"s_branch {L_exit}")
    b_setup(L_exit)
    b_loads()
    h_loads()
    A("s_waitcnt vmcnt(8)")
    for q in range(4): b_compute(q)
    init_load()
    u_publish(0)
    A(f"s_branch {L_conv}")

    A.label(L_conv)
    u_flag()
    A(f"""
    s_lshr_b32 s59, s56, 1
    s_lshl_b32 s59, s59, 2
    s_load_dword s60, s[{P_SD}:{P_SD+1}], s59
    v_mov_b32 v12, 0
    v_mov_b32 v13, 0
    v_mov_b32 v14, 0
    v_mov_b32 v15, 0
    v_lshlrev_b32 v6, 3, v0
    v_add_u32 v6, s57, v6
    v_add_u32 v6, {4*COPY}, v6
    v_cmp_gt_u32 vcc, 60, v0
    s_and_saveexec_b64 s[54:55], vcc
    ds_write_b64 v6, v[12:13]
    s_mov_b64 exec, s[54:55]
    v_and_b32 v6, 1, v0
    v_lshlrev_b32 v6, 4, v6
    v_lshrrev_b32 v7, 1, v0
    v_mul_u32_u24 v7, {COPY}, v7
    v_add3_u32 v6, v6, v7, s57
    v_cmp_gt_u32 vcc, 8, v0
    s_and_saveexec_b64 s[54:55], vcc
    ds_write_b128 v6, v[12:15]
    s_mov_b64 exec, s[54:55]
    s_waitcnt vmcnt(0)
    """)
    h_build()
    A(f"""
    s_lshr_b32 s54, s56, 6
    s_and_b32 s55, s56, 63
    s_and_b32 s61, s55, 7
    s_lshr_b32 s55, s55, 3
    s_lshl_b32 s61, s61, 9
    s_lshl_b32 s55, s55, 6
    s_add_u32 s61, s61, s55
    s_lshl_b32 s54, s54, 12
    s_add_u32 s61, s61, s54
    s_add_u32 s61, s61, {WS_U}
    v_lshrrev_b32 v8, 2, v0
    v_mul_u32_u24 v8, 40960, v8
    v_and_b32 v9, 3, v0
    v_lshl_add_u32 v8, v9, 4, v8
    """)
    L_uw = A.newlabel("uw"); L_ud = A.newlabel("ud")
    A(f"s_cmp_lg_u32 s{S_WAVE}, 8\ns_cbranch_scc1 {L_uw}")
    if E("UGATE", 0) == 1: lds_wait(A, C_GO, 2, 3, sleep=4)
    if E("UGATE", 0) == 2: lds_wait(A, C_QKV, 2, 3, val=4, sleep=4)
    A(f"""
    v_lshlrev_b32 v2, 7, v0
    v_add_u32 v2, {SYNC + 128*(L_U + 40)}, v2
    v_cmp_gt_u32 vcc, 8, v0
    v_mov_b32 v3, 1
    s_nop 0
    v_cndmask_b32 v4, 0, v3, vcc
    """)
    poll(A, 2, 4, 3, sleep=E("PS_U", 6))
    lds_set(A, C_UOK, 2, 3)
    A(f"s_branch {L_ud}")
    A.label(L_uw)
    lds_wait(A, C_UOK, 2, 3)
    A("s_waitcnt vmcnt(0)")
    A.label(L_ud)
    stp(A, "uok")
    for p in range(4):
        A(f"""
        s_add_u32 m0, s57, {4*COPY + 480 + p*1024}
        s_add_u32 s54, s61, {p*16*40960}
        buffer_load_dwordx4 v8, s[{R_WS}:{R_WS+3}], s54 offen{SC} lds""")
    A(f"""
    v_lshrrev_b32 v6, 4, v0             ; kg
    v_bfe_u32 v7, v0, 2, 2              ; r
    v_and_b32 v8, 3, v0                 ; c
    v_mul_u32_u24 v7, {COPY}, v7
    v_lshlrev_b32 v8, 3, v8
    v_lshlrev_b32 v9, 4, v6
    v_sub_u32 v8, v8, v9
    v_add_u32 v8, 56, v8
    v_add3_u32 v4, v7, v8, s57          ; vA
    v_and_b32 v7, 15, v0
    v_lshlrev_b32 v7, 5, v7
    v_lshl_add_u32 v7, v6, 4, v7
    v_add_u32 v7, {4*COPY}, v7
    v_add_u32 v5, s57, v7               ; vB
    s_waitcnt vmcnt(0) lgkmcnt(0)
    s_and_b32 s54, s56, 1
    s_lshl_b32 s54, s54, 4
    s_lshr_b32 s60, s60, s54
    s_lshl_b32 s60, s60, 16             ; D as f32
    """)
    stp(A, "conv0")
    Y = 32; AT = 64; BT = 128
    def a_reads(rho, p):
        mu = rho + 8 * p
        return [f"ds_read_b64_tr_b16 {v(AT+4*p,2)}, v4 offset:{64*mu + 8}",
                f"ds_read_b64_tr_b16 {v(AT+4*p+2,2)}, v4 offset:{64*mu}"]
    def b_read(rho, q): return f"ds_read_b128 {v(BT+4*q,4)}, v5 offset:{64*(8*q - rho + 7)}"
    A(f"s_setprio {E('CPRIO', 0)}")
    if E("CPACE", 0):
        for q in range(7, -1, -1): A(b_read(0, q))
        for rho in range(8):
            for p in range(8):
                for r in a_reads(rho, p): A(r)
                A("s_waitcnt lgkmcnt(0)")
                for q in range(7 - p, -1, -1):
                    i = p + q
                    cc = "0" if (rho == 0 and p == 0) else v(Y+4*i, 4)
                    A(f"v_mfma_f32_16x16x32_bf16 {v(Y+4*i,4)}, {v(AT+4*p,4)}, {v(BT+4*q,4)}, {cc}")
                if rho < 7: A(b_read(rho + 1, 7 - p))
            if rho == 3:
                stp(A, "convh")
                A("s_barrier")
    else:
        ATS = [64, 96]
        def a_reads2(rho, p, sid):
            mu = rho + 8 * p
            return [f"ds_read_b64_tr_b16 {v(ATS[sid]+4*p,2)}, v4 offset:{64*mu + 8}",
                    f"ds_read_b64_tr_b16 {v(ATS[sid]+4*p+2,2)}, v4 offset:{64*mu}"]
        for q in range(7, -1, -1): A(b_read(0, q))
        A("s_waitcnt lgkmcnt(4)")
        for p in range(8):
            for r in a_reads2(0, p, 0): A(r)
            if p == 3: A("s_waitcnt lgkmcnt(4)")
        for rho in range(8):
            sid = rho % 2
            nxtA = [x for p in range(8) for x in a_reads2(rho + 1, p, 1 - sid)] if rho < 7 else []
            A("s_waitcnt lgkmcnt(0)" if rho == 0 else "s_waitcnt lgkmcnt(4)")
            for p in range(8):
                for q in range(7 - p, -1, -1):
                    i = p + q
                    cc = "0" if (rho == 0 and p == 0) else v(Y+4*i, 4)
                    if p == 0 and rho > 0 and q <= 3:
                        A(f"s_waitcnt lgkmcnt({7 if rho < 7 else q})")
                    A(f"v_mfma_f32_16x16x32_bf16 {v(Y+4*i,4)}, {v(ATS[sid]+4*p,4)}, {v(BT+4*q,4)}, {cc}")
                    if nxtA: A(nxtA.pop(0))
                if rho < 7: A(b_read(rho + 1, 7 - p))
            if rho == E("CBAR", -1):
                stp(A, "convh")
                A("s_barrier")
    stp(A, "conv1")
    A(f"""
    v_and_b32 v7, 15, v0
    v_lshrrev_b32 v6, 4, v0
    v_lshlrev_b32 v7, 5, v7
    v_lshl_add_u32 v7, v6, 3, v7        ; 32n + 8g
    v_add_u32 v8, s57, v7
    v_add_u32 v8, {4*COPY + 480}, v8
    s_add_u32 s61, s58, {WS_Z}
    """)
    for i in range(8): A(f"ds_read_b64 {v(64+2*i,2)}, v8 offset:{512*i}")
    A("s_waitcnt lgkmcnt(0)\ns_nop 3")
    for i in range(8):
        u0, u1 = 64 + 2*i, 64 + 2*i + 1
        y = Y + 4*i
        A(f"""
        v_lshlrev_b32 v96, 16, v{u0}
        v_and_b32 v97, 0xffff0000, v{u0}
        v_lshlrev_b32 v98, 16, v{u1}
        v_and_b32 v99, 0xffff0000, v{u1}
        v_fma_f32 v{y}, v96, s60, v{y}
        v_fma_f32 v{y+1}, v97, s60, v{y+1}
        v_fma_f32 v{y+2}, v98, s60, v{y+2}
        v_fma_f32 v{y+3}, v99, s60, v{y+3}
        v_cvt_pk_bf16_f32 v{y}, v{y}, v{y+1}
        v_cvt_pk_bf16_f32 v{y+1}, v{y+2}, v{y+3}
        buffer_store_dwordx2 {v(y,2)}, v7, s[{R_WS}:{R_WS+3}], s61 offen offset:{512*i}{SC}""")
    if E("ZBAR", 1): A("s_barrier")
    A("s_waitcnt vmcnt(0)")
    stp(A, "zdrained")
    L_zs = A.newlabel("zs")
    A("s_cmp_lt_u32 s2, 128\ns_cselect_b32 s64, 3, 2")
    lds_arrive_last(A, C_Z, "s64", L_zs, 2, 3)
    A(f"s_and_b32 s65, s2, 7\ns_add_u32 s65, s65, {L_Z}")
    global_arrive(A, "s65", 32, 2, 3)
    A.label(L_zs)
    prof_dump(A, 0, wsptr=P_WS)
    A.label(L_exit)
    A("s_endpgm")

def build():
    hdr = open("cdna_kernels/" + NAME + ".s.ref").read().split("; Override launch geometry")[0]
    A = Asm(); gen(A)
    out = hdr + f"; @launch grid=(256,1,1) block=(704,1,1) lds={LDS}\n"
    out += '.amdgcn_target "amdgcn-amd-amdhsa--gfx950"\n.text\n' + A.text()
    out += f""".section .rodata,"a"
.p2align 6
.amdhsa_kernel {KNAME}
  .amdhsa_next_free_vgpr {VGPRS}
  .amdhsa_next_free_sgpr 102
  .amdhsa_accum_offset {VGPRS}
  .amdhsa_group_segment_fixed_size 0
  .amdhsa_kernarg_size 96
  .amdhsa_user_sgpr_count 2
  .amdhsa_user_sgpr_kernarg_segment_ptr 1
  .amdhsa_system_sgpr_workgroup_id_x 1
  .amdhsa_float_denorm_mode_32 3
.end_amdhsa_kernel
"""
    return out

if __name__ == "__main__":
    open(sys.argv[1], "w").write(build())
```

```python
import os, sys, struct, math
from asmlib import *
from slots import ASSIGN, HEADWORD

NAME = "concat_heads__softmax_full_mha__ssm_conv_h3__prompt"
KNAME = NAME + "_kernel"
E = lambda k, d=0: int(os.environ.get(k, d))

TB = 8320
SEC = 64 * TB
WS_U  = 0x800000
WS_Z  = 0xB00000
WS_O  = 0xE00000
SYNC  = 0x1200000
WS_BYTES = 0x1214000
REC = 3072
CHUNK = 16 * REC
COPY = 4160
CONV_SZ = 4 * COPY + 4608
CONV_BASE = 98304
CNT = CONV_BASE + 3 * CONV_SZ
LDS = CNT + 256
WO_A = 98304
WO_BROW = 340
RED = CHUNK
VGPRS = 168
POLL_MAX = 40000
SC = os.environ.get("SCF", " sc1")
L_U, L_Z, L_O, L_QF = 0, 8, 24, 48
FLG = 8
N_LINES = 288
ZERO_WG = 225
C_QKV, C_U, C_Z, C_O, C_UOK, C_INIT, C_GO, C_KV, C_ISS = 0, 4, 8, 12, 16, 20, 24, 28, 32

def f32bits(x): return struct.unpack("<I", struct.pack("<f", x))[0]
QSCALE = f32bits(20 ** -0.5 * math.log2(math.e))

P_X, P_W, P_WO, P_BQ, P_BK, P_BV, P_SH, P_SK, P_SD, P_OUT, P_DBG, P_WS = 4, 6, 8, 10, 12, 14, 16, 18, 20, 22, 24, 26
R_WS = 28
R_A, R_B, R_C = 32, 36, 44
S_WAVE, S_XCD, S_J, S_RB, S_CB = 40, 41, 42, 43, 48
S_CBK = 48

STAMPS = dict(x.split(":") for x in os.environ.get("STAMPS", "b0:1,gend:2,uok:2,att0:4,att1:5,p3a:6").split(","))
def stp(A, name):
    if name in STAMPS: stamp(A, int(STAMPS[name]))

def poll(A, addr_v, thr_v, tmp, sleep=4, base=P_WS):
    L = A.newlabel("poll"); D = A.newlabel("polld")
    A(f"""
    v_cmp_ne_u32 vcc, 0, v{thr_v}
    s_mov_b32 s66, {POLL_MAX}
    s_nop 1
    s_mov_b64 exec, vcc
    {L}:
    global_load_dword v{tmp}, v{addr_v}, s[{base}:{base+1}] sc1
    s_waitcnt vmcnt(0)
    v_cmp_ge_u32 vcc, v{tmp}, v{thr_v}
    s_nop 3
    s_cmp_eq_u64 vcc, exec
    s_cbranch_scc1 {D}
    s_sleep {sleep}
    s_sub_u32 s66, s66, 1
    s_cmp_lg_u32 s66, 0
    s_cbranch_scc1 {L}
    {D}:
    s_mov_b64 exec, -1
    """)
def poll_flags(A, line0, nlines, t_addr, t_thr, tmp, sleep=4):
    A(f"""
    v_lshlrev_b32 v{t_addr}, 7, v0
    v_add_u32 v{t_addr}, {SYNC + 128*(FLG + line0)}, v{t_addr}
    v_cmp_gt_u32 vcc, {nlines}, v0
    v_mov_b32 v{tmp}, 1
    s_nop 0
    v_cndmask_b32 v{t_thr}, 0, v{tmp}, vcc
    """)
    poll(A, t_addr, t_thr, tmp, sleep)
def lds_set(A, off, t0, t1):
    A(f"""
    v_mov_b32 v{t0}, {CNT + off}
    v_mov_b32 v{t1}, 1
    ds_write_b32 v{t0}, v{t1}
    """)
def lds_add(A, off, t0, t1):
    A(f"""
    v_mov_b32 v{t0}, {CNT + off}
    v_mov_b32 v{t1}, 1
    s_mov_b64 exec, 1
    ds_add_u32 v{t0}, v{t1}
    s_mov_b64 exec, -1
    """)
def lds_wait(A, off, t0, t1, val=1, sleep=1):
    L = A.newlabel("lw"); D = A.newlabel("lwd")
    A(f"""
    v_mov_b32 v{t0}, {CNT + off}
    s_mov_b32 s66, {POLL_MAX*16}
    {L}:
    ds_read_b32 v{t1}, v{t0}
    s_waitcnt lgkmcnt(0)
    v_readfirstlane_b32 s67, v{t1}
    s_nop 3
    s_cmp_ge_u32 s67, {val}
    s_cbranch_scc1 {D}
    s_sleep {sleep}
    s_sub_u32 s66, s66, 1
    s_cmp_lg_u32 s66, 0
    s_cbranch_scc1 {L}
    {D}:
    """)
def lds_arrive_last(A, off, n_s, skip_lab, t0, t1):
    A(f"""
    v_mov_b32 v{t0}, {CNT + off}
    v_mov_b32 v{t1}, 1
    s_mov_b64 exec, 1
    ds_add_rtn_u32 v{t1}, v{t0}, v{t1}
    s_waitcnt lgkmcnt(0)
    s_mov_b64 exec, -1
    v_readfirstlane_b32 s66, v{t1}
    s_nop 3
    s_add_u32 s66, s66, 1
    s_cmp_lg_u32 s66, {n_s}
    s_cbranch_scc1 {skip_lab}
    """)
def global_arrive(A, line_s, total, t0, t1):
    L = A.newlabel("ga")
    A(f"""
    s_lshl_b32 s66, {line_s}, 7
    s_add_u32 s66, s66, {SYNC}
    v_mov_b32 v{t0}, s66
    v_mov_b32 v{t1}, 1
    s_mov_b64 exec, 1
    global_atomic_add v{t1}, v{t0}, v{t1}, s[{P_WS}:{P_WS+1}] sc0 sc1
    s_waitcnt vmcnt(0)
    s_mov_b64 exec, -1
    v_readfirstlane_b32 s66, v{t1}
    s_nop 3
    s_add_u32 s66, s66, 1
    s_cmp_lg_u32 s66, {total}
    s_cbranch_scc1 {L}
    v_add_u32 v{t0}, {128*FLG}, v{t0}
    v_mov_b32 v{t1}, 1
    s_mov_b64 exec, 1
    global_store_dword v{t0}, v{t1}, s[{P_WS}:{P_WS+1}] sc1
    s_mov_b64 exec, -1
    {L}:
    """)

def flag_store(A, line_s, t0, t1):
    A(f"""
    s_lshl_b32 s66, {line_s}, 7
    s_add_u32 s66, s66, {SYNC}
    v_mov_b32 v{t0}, s66
    v_mov_b32 v{t1}, 1
    s_mov_b64 exec, 1
    global_store_dword v{t0}, v{t1}, s[{P_WS}:{P_WS+1}] sc1
    s_mov_b64 exec, -1
    """)
def poll2(A, a0, a1, n1, t0, t1, sleep):
    L = A.newlabel("poll2"); D = A.newlabel("poll2d")
    A(f"""
    s_mov_b32 s66, {POLL_MAX}
    {L}:
    global_load_dword v{t0}, v{a0}, s[{P_WS}:{P_WS+1}] sc1
    global_load_dword v{t1}, v{a1}, s[{P_WS}:{P_WS+1}] sc1
    s_waitcnt vmcnt(0)
    v_min_u32 v{t0}, v{t0}, v{t1}
    v_cmp_le_u32 vcc, 1, v{t0}
    s_nop 3
    s_cmp_eq_u64 vcc, -1
    s_cbranch_scc1 {D}
    s_sleep {sleep}
    s_sub_u32 s66, s66, 1
    s_cmp_lg_u32 s66, 0
    s_cbranch_scc1 {L}
    {D}:
    """)

def gen(A):
    A(f".globl {KNAME}")
    A(".p2align 8")
    A(f".type {KNAME},@function")
    A.label(KNAME)
    L_exit, L_nog, L_prod, L_bw, L_heads, L_conv = "L_exit", "L_nog", "L_prod", "L_bw", "L_heads", "L_conv"
    A(f"""
    s_cmp_ge_u32 s2, 256
    s_cbranch_scc1 {L_exit}
    s_load_dwordx16 s[4:19], s[0:1], 0
    s_load_dwordx8 s[20:27], s[0:1], 64
    v_lshrrev_b32 v1, 6, v0
    v_and_b32 v0, 63, v0
    v_readfirstlane_b32 s{S_WAVE}, v1
    s_and_b32 s{S_XCD}, s2, 7
    s_lshr_b32 s{S_J}, s2, 3
    s_lshr_b32 s{S_RB}, s{S_XCD}, 1
    s_lshl_b32 s{S_RB}, s{S_RB}, 2
    s_and_b32 s49, s{S_J}, 3
    s_add_u32 s{S_RB}, s{S_RB}, s49        ; rb
    s_and_b32 s{S_CB}, s{S_XCD}, 1
    s_lshl_b32 s{S_CB}, s{S_CB}, 3
    s_lshr_b32 s49, s{S_J}, 2
    s_add_u32 s{S_CB}, s{S_CB}, s49        ; cb
    v_mov_b32 v2, {CNT}
    v_mov_b32 v4, 0
    v_mov_b32 v5, 0
    v_mov_b32 v6, 0
    v_mov_b32 v7, 0
    ds_write_b128 v2, v[4:7]
    ds_write_b128 v2, v[4:7] offset:16
    ds_write_b128 v2, v[4:7] offset:32
    s_waitcnt lgkmcnt(0)
    s_barrier
    """)
    srd(A, R_WS, P_WS, WS_BYTES)
    prof_init(A)
    A(f"""
    s_cmp_ge_u32 s{S_WAVE}, 8
    s_cbranch_scc1 {L_bw}
    s_cmp_ge_u32 s{S_CB}, 15
    s_cbranch_scc1 {L_nog}
    s_cmp_ge_u32 s{S_WAVE}, 4
    s_cbranch_scc1 {L_prod}
    """)
    slot_of = lambda st: (st + 2) % 3

    A(f"""
    s_lshr_b32 s56, s{S_WAVE}, 1       ; wr
    s_and_b32 s57, s{S_WAVE}, 1        ; wc
    v_and_b32 v2, 31, v0           ; n
    v_lshrrev_b32 v3, 5, v0        ; h
    v_bfe_u32 v4, v0, 1, 3         ; (l>>1)&7
    s_lshl_b32 s54, s56, 6
    v_add_u32 v5, s54, v2
    v_lshlrev_b32 v5, 7, v5        ; token_local*128
    """)
    for ks in range(4):
        A(f"""
        v_add_u32 v6, {2*ks}, v3
        v_xor_b32 v6, v6, v4
        v_lshl_add_u32 v{16+ks}, v6, 4, v5
        v_add_u32 v{20+ks}, 0x10000, v{16+ks}""")
    def w_addr():
        A(f"""
        v_lshrrev_b32 v2, 4, v0        ; g
        v_bfe_u32 v3, v0, 2, 2         ; r
        v_and_b32 v4, 3, v0            ; c4
        v_lshrrev_b32 v5, 1, v2
        v_lshl_add_u32 v5, v5, 3, v3   ; k_local
        v_lshlrev_b32 v5, 8, v5
        v_add_u32 v5, 16384, v5
        v_and_b32 v6, 1, v2
        v_lshl_add_u32 v6, v6, 2, v4   ; rg = 4*(g&1) + c4
        v_mul_u32_u24 v6, 5, v6
        v_lshlrev_b32 v7, 2, v3        ; 4r
        """)
        for ft in range(2):
            A(f"""
            v_lshrrev_b64 v[8:9], v6, s[{60+2*ft}:{61+2*ft}]
            v_and_b32 v8, 31, v8
            v_lshrrev_b32 v9, 1, v8
            v_xor_b32 v9, v9, v7
            v_and_b32 v8, 1, v8
            v_lshlrev_b32 v8, 3, v8
            v_lshl_add_u32 v8, v9, 4, v8
            v_add_u32 v{24+ft}, v5, v8
            v_add_u32 v{26+ft}, 0x10000, v{24+ft}""")
    FR = [dict(X=[32, 36], W=[40, 44]), dict(X=[48, 52], W=[56, 60]), dict(X=[132, 136], W=[140, 144])]
    ACC = lambda ft, tt: 64 + 16 * (2 * ft + tt)
    def reads(st, ks, setid):
        slot = slot_of(st); hi = slot == 2
        so = 0 if hi else slot * 32768
        xa = (20 if hi else 16) + ks; wa = (26 if hi else 24); F = FR[setid]
        return [f"ds_read_b128 {v(F['X'][0],4)}, v{xa} offset:{so}",
                f"ds_read_b64_tr_b16 {v(F['W'][0],2)}, v{wa} offset:{so + ks*4096}",
                f"ds_read_b64_tr_b16 {v(F['W'][0]+2,2)}, v{wa} offset:{so + ks*4096 + 1024}",
                f"ds_read_b128 {v(F['X'][1],4)}, v{xa} offset:{so + 4096}",
                f"ds_read_b64_tr_b16 {v(F['W'][1],2)}, v{wa+1} offset:{so + ks*4096}",
                f"ds_read_b64_tr_b16 {v(F['W'][1]+2,2)}, v{wa+1} offset:{so + ks*4096 + 1024}"]
    def mfmas(setid, first, vmode):
        F = FR[setid]; m = []
        for (ft, tt) in [(0, 0), (0, 1), (1, 0), (1, 1)]:
            d = ACC(ft, tt); c = "0" if first else v(d, 16)
            a_, b_ = (F['X'][tt], F['W'][ft]) if vmode else (F['W'][ft], F['X'][tt])
            m.append(f"v_mfma_f32_32x32x16_bf16 {v(d,16)}, {v(a_,4)}, {v(b_,4)}, {c}")
        return m
    def main_loop(vmode):
        A("s_barrier")
        stp(A, "b0")
        if not E("G3", 0):
            for r in reads(0, 0, 0): A(r)
            n = 0
            for st in range(10):
                for ks in range(4):
                    setid = n % 2
                    m = mfmas(setid, n == 0, vmode)
                    A("s_waitcnt lgkmcnt(0)")
                    if ks == 3 and st < 9:
                        A("s_barrier")
                        stp(A, f"gb{st+1}")
                    A(m[0])
                    if ks < 3:
                        for r in reads(st, ks + 1, 1 - setid): A(r)
                    elif st < 9:
                        for r in reads(st + 1, 0, 1 - setid): A(r)
                    A(m[1]); A(m[2]); A(m[3])
                    n += 1
        else:
            for r in reads(0, 0, 0): A(r)
            for r in reads(0, 1, 1): A(r)
            for n in range(40):
                st, ks = divmod(n, 4)
                m = mfmas(n % 3, n == 0, vmode)
                if ks == 2 and st < 9:
                    A("s_waitcnt lgkmcnt(0)\ns_barrier")
                    stp(A, f"gb{st+1}")
                else:
                    A(f"s_waitcnt lgkmcnt({6 if n + 1 < 40 else 0})")
                A(m[0])
                if n + 2 < 40:
                    st2, ks2 = divmod(n + 2, 4)
                    for r in reads(st2, ks2, (n + 2) % 3): A(r)
                A(m[1]); A(m[2]); A(m[3])
        stp(A, "gend")
        A("s_nop 15")
    L_vpath = A.newlabel("vpath"); L_gsig = A.newlabel("gsig"); L_vdone = A.newlabel("vdone")
    A(f"""
    s_cmp_ge_u32 s{S_CB}, 10
    s_cbranch_scc1 {L_vpath}
    s_cmp_ge_u32 s{S_CB}, 5
    s_cselect_b32 s55, 5, 0
    s_sub_u32 s55, s{S_CB}, s55        ; cb'
    s_lshl_b32 s55, s55, 1
    s_add_u32 s55, s55, s57
    """)
    for var in range(10):
        cbp, wc = divmod(var, 2); T = []
        for ft in range(2):
            tab = [0]*8
            for si, it in enumerate(ASSIGN[cbp][2*wc + ft]):
                ap, h = divmod(si, 2)
                tab[4*ap + h] = it[1]; tab[4*ap + 2 + h] = it[2]
            T.append(sum(g << (5*i) for i, g in enumerate(tab)))
        nxt = A.newlabel("var")
        A(f"""
        s_cmp_lg_u32 s55, {var}
        s_cbranch_scc1 {nxt}
        s_mov_b32 s60, {hex(T[0] & 0xffffffff)}
        s_mov_b32 s61, {hex(T[0] >> 32)}
        s_mov_b32 s62, {hex(T[1] & 0xffffffff)}
        s_mov_b32 s63, {hex(T[1] >> 32)}
        s_branch {L_vdone}
        {nxt}:""")
    A(f"""
    s_mov_b64 s[60:61], 0
    s_mov_b64 s[62:63], 0
    {L_vdone}:
    """)
    w_addr()
    A(f"""
    s_mov_b32 s58, {hex(QSCALE)}
    s_cmp_ge_u32 s{S_CB}, 5
    s_cmov_b32 s58, 0x3f800000
    s_mov_b32 s59, s58
    v_lshlrev_b32 v128, 4, v0
    s_lshl_b32 s54, s{S_RB}, 2
    s_lshl_b32 s55, s56, 1
    s_add_u32 s54, s54, s55
    s_lshl_b32 s55, s{S_CB}, 6
    s_add_u32 s54, s54, s55
    s_mul_i32 s54, s54, {TB}
    s_lshl_b32 s55, s57, 12        ; wc*4096
    s_add_u32 s64, s54, s55
    s_add_u32 s65, s64, {TB}
    """)
    main_loop(False)
    for ft in range(2):
        for tt in range(2):
            d = ACC(ft, tt)
            for i in range(0, 16, 2):
                A(f"v_pk_mul_f32 {v(d+i,2)}, {v(d+i,2)}, s[58:59]")
            for ap in range(2):
                for i in range(4):
                    A(f"v_cvt_pk_bf16_f32 v{d+8*ap+i}, v{d+8*ap+2*i}, v{d+8*ap+2*i+1}")
                A(f"buffer_store_dwordx4 {v(d+8*ap,4)}, v128, s[{R_WS}:{R_WS+3}], s{64+tt} offen offset:{ft*2048 + ap*1024}{SC}")
    A(f"s_branch {L_gsig}")
    A.label(L_vpath)
    nat = sum(i << (5*i) for i in range(8)); rep = sum(1 << (5*i) for i in range(8))
    A(f"""
    s_lshl_b32 s54, s57, 4
    s_mul_i32 s55, s54, {hex(rep & 0xffffffff)}
    s_mul_hi_u32 s61, s54, {hex(rep & 0xffffffff)}
    s_mul_i32 s66, s54, {hex(rep >> 32)}
    s_add_u32 s61, s61, s66
    s_add_u32 s60, s55, {hex(nat & 0xffffffff)}
    s_addc_u32 s61, s61, {hex(nat >> 32)}
    s_add_u32 s62, s60, {hex((8*rep) & 0xffffffff)}
    s_addc_u32 s63, s61, {hex((8*rep) >> 32)}
    """)
    w_addr()
    A(f"""
    v_lshlrev_b32 v128, 4, v0
    s_lshl_b32 s54, s{S_RB}, 2
    s_lshl_b32 s55, s{S_CB}, 6
    s_add_u32 s54, s54, s55
    s_add_u32 s55, s54, s{S_WAVE}
    s_mul_i32 s55, s55, {TB}
    s_add_u32 s58, s55, 8192
    s_lshl_b32 s55, s56, 1
    s_add_u32 s54, s54, s55
    s_mul_i32 s54, s54, {TB}
    s_lshl_b32 s55, s57, 11
    s_add_u32 s62, s54, s55
    s_add_u32 s63, s62, 4096
    s_add_u32 s64, s62, {TB}
    s_add_u32 s65, s64, 4096
    """)
    main_loop(True)
    for ft in range(2):
        for tt in range(2):
            d = ACC(ft, tt)
            for f in range(2):
                for i in range(4):
                    A(f"v_cvt_pk_bf16_f32 v{d+8*f+i}, v{d+8*f+2*i}, v{d+8*f+2*i+1}")
                A(f"buffer_store_dwordx4 {v(d+8*f,4)}, v128, s[{R_WS}:{R_WS+3}], s{62+2*tt+f} offen offset:{ft*1024}{SC}")
    A(f"""
    v_cmp_eq_u32 vcc, 0, v0
    v_mov_b32 v36, 0x3f803f80
    s_nop 0
    v_cndmask_b32 v32, 0, v36, vcc
    v_cndmask_b32 v33, 0, v36, vcc
    v_cndmask_b32 v34, 0, v36, vcc
    v_cndmask_b32 v35, 0, v36, vcc
    s_mov_b64 exec, 15
    buffer_store_dwordx4 v[32:35], v128, s[{R_WS}:{R_WS+3}], s58 offen{SC}
    s_mov_b64 exec, -1
    """)
    A.label(L_gsig)
    stp(A, "gstored")
    A("s_waitcnt vmcnt(0)")
    stp(A, "gdrained")
    L_qs = A.newlabel("qs")
    lds_arrive_last(A, C_QKV, 4, L_qs, 2, 3)
    lds_wait(A, C_INIT, 2, 3)
    A(f"""
    s_lshl_b32 s65, s{S_CB}, 4
    s_add_u32 s65, s65, s{S_RB}
    s_add_u32 s65, s65, {L_QF}
    """)
    flag_store(A, "s65", 2, 3)
    A.label(L_qs)
    stp(A, "gsig")
    A(f"s_branch {L_heads}")

    A.label(L_prod)
    srd(A, R_A, P_X, 2048 * 640 * 2)
    srd(A, R_B, P_W, 640 * 1920 * 2)
    VXE, VXO, VW = 10, 11, 12
    A(f"""
    s_sub_u32 s55, s{S_WAVE}, 4            ; pw
    s_lshl_b32 s49, s55, 12
    s_mul_i32 s53, s55, 61440
    s_and_b32 s50, s{S_RB}, 3
    s_mul_i32 s50, s50, 3
    s_add_u32 s50, s50, s{S_CB}
    s_cmp_ge_u32 s50, 20
    s_cselect_b32 s51, 20, 0
    s_sub_u32 s50, s50, s51
    s_cmp_ge_u32 s50, 10
    s_cselect_b32 s51, 10, 0
    s_sub_u32 s50, s50, s51
    """)
    if not E("ROT", 1): A("s_mov_b32 s50, 0")
    A(f"""
    s_lshl_b32 s51, s50, 7
    s_mul_i32 s52, s50, 245760
    s_add_u32 s52, s52, s53
    v_lshrrev_b32 v2, 3, v0
    v_lshrrev_b32 v3, 4, v0
    v_and_b32 v4, 7, v0
    v_xor_b32 v4, v4, v3
    s_lshl_b32 s54, s{S_RB}, 7
    s_lshl_b32 s55, s55, 5
    s_add_u32 s54, s54, s55
    v_add_u32 v2, s54, v2
    v_mul_u32_u24 v2, 1280, v2
    v_lshl_add_u32 v{VXE}, v4, 4, v2
    v_xor_b32 v{VXO}, 64, v{VXE}
    v_and_b32 v4, 15, v0
    v_lshlrev_b32 v5, 2, v3
    v_xor_b32 v4, v4, v5
    v_mul_u32_u24 v5, 3840, v3
    v_lshl_add_u32 v{VW}, v4, 4, v5
    s_lshl_b32 s54, s{S_CB}, 8
    v_add_u32 v{VW}, s54, v{VW}
    """)
    def dma_stage(st):
        so = slot_of(st) * 32768
        for i in range(4):
            A(f"""
            s_add_u32 m0, s49, {so + i*1024}
            s_add_u32 s54, s51, {i*10240}
            buffer_load_dwordx4 v{VXO if i % 2 else VXE}, s[{R_A}:{R_A+3}], s54 offen lds""")
        for i in range(4):
            A(f"""
            s_add_u32 m0, s49, {so + 16384 + i*1024}
            s_add_u32 s54, s52, {i*15360}
            buffer_load_dwordx4 v{VW}, s[{R_B}:{R_B+3}], s54 offen lds""")
        A("""
        s_add_u32 s50, s50, 1
        s_cmp_eq_u32 s50, 10
        s_cselect_b32 s50, 0, s50
        s_lshl_b32 s51, s50, 7
        s_mul_i32 s52, s50, 245760
        s_add_u32 s52, s52, s53""")
    for st in range(3): dma_stage(st)
    lds_add(A, C_ISS, 2, 3)
    A("s_waitcnt vmcnt(16)\ns_barrier")
    stp(A, "b0")
    for s_ in range(1, 8):
        A("s_waitcnt vmcnt(8)\ns_barrier")
        dma_stage(s_ + 2)
    A("s_waitcnt vmcnt(8)\ns_barrier")
    A("s_waitcnt vmcnt(0)\ns_barrier")
    stp(A, "b9")
    A(f"s_branch {L_heads}")

    A.label(L_nog)
    L_nz = A.newlabel("nz")
    A(f"""
    s_cmp_lg_u32 s2, {ZERO_WG}
    s_cbranch_scc1 {L_nz}
    v_lshlrev_b32 v2, 4, v0
    v_add_u32 v2, {SYNC}, v2
    v_mov_b32 v4, 0
    v_mov_b32 v5, 0
    v_mov_b32 v6, 0
    v_mov_b32 v7, 0
    s_mul_i32 s54, s{S_WAVE}, {5*1024}
    """)
    for i in range(5):
        A(f"buffer_store_dwordx4 v[4:7], v2, s[{R_WS}:{R_WS+3}], s54 offen sc1\ns_add_u32 s54, s54, 1024")
    A("s_waitcnt vmcnt(0)")
    lds_arrive_last(A, C_KV + 8, 8, L_nz, 2, 3)
    A(f"""
    v_mov_b32 v2, 0
    v_mov_b32 v3, 1
    s_mov_b64 exec, 1
    global_store_dword v2, v3, s[{P_DBG}:{P_DBG+1}] sc1
    s_mov_b64 exec, -1
    {L_nz}:
    s_branch L_nogtask
    L_nogdone:
    """)
    A(f"""
    v_mov_b32 v2, {CNT + C_QKV}
    v_mov_b32 v3, 4
    ds_write_b32 v2, v3
    """)

    A.label(L_heads)
    Q1, Q2 = 4, 8
    O = 16
    S = [32, 48]
    P = [64, 72]
    KA, KB, V0, V1 = 80, 84, 88, 92
    AK = [96, 99]; AK2 = [97, 100]; AV = [98, 101]
    KA0, KB0 = 104, 108
    WOV = 120
    VG = [126, 127, 128]; VKP, VKS, VVF = 129, 130, 131
    A(f"""
    s_lshl_b32 s43, s{S_XCD}, 2
    s_lshr_b32 s44, s{S_J}, 3
    s_add_u32 s43, s43, s44        ; head
    s_and_b32 s44, s{S_J}, 7       ; qb
    s_lshl_b32 s46, s44, 3
    s_add_u32 s46, s46, s{S_WAVE}  ; q tile
    s_mov_b32 s47, {hex(HEADWORD[0])}
    """)
    for h in range(1, 32):
        A(f"s_cmp_eq_u32 s43, {h}\ns_cmov_b32 s47, {hex(HEADWORD[h])}")
    for k, dst in enumerate((50, 51, 52)):
        A(f"""
        s_bfe_u32 s54, s47, {hex((3 << 16) | (7*k))}
        s_bfe_u32 s55, s47, {hex((4 << 16) | (7*k + 3))}
        s_mul_i32 s54, s54, {SEC}
        s_lshl_b32 s55, s55, 9
        s_add_u32 s{dst}, s54, s55""")
    A(f"""
    v_and_b32 v3, 31, v0           ; n
    v_lshrrev_b32 v12, 5, v0       ; h
    v_lshlrev_b32 v13, 4, v3       ; n*16
    v_cmp_eq_u32 vcc, 0, v12
    v_mov_b32 v14, s50
    v_mov_b32 v15, s51
    v_cndmask_b32 v14, v15, v14, vcc
    v_add_u32 v{VKP}, v14, v13
    s_and_b32 s54, s43, 1
    s_lshl_b32 s54, s54, 3
    s_add_u32 s54, s54, s52
    v_add_u32 v{VKS}, s54, v13
    v_add_u32 v{VG[0]}, {5*SEC + 2*TB}, v{VKP}
    s_mul_i32 s53, s43, 20
    s_add_u32 s45, s53, 19
    s_lshr_b32 s45, s45, 7
    s_add_u32 s45, s45, 10
    s_mul_i32 s45, s45, {SEC}
    s_add_u32 s45, s45, 8192
    """)
    def vchunk(dst, seg_v, m_v):
        A(f"""
        v_add_u32 v5, s53, v{m_v}          ; F
        v_lshrrev_b32 v6, 7, v5
        v_add_u32 v6, 10, v6
        v_mul_u32_u24 v6, {SEC // 64}, v6
        v_lshlrev_b32 v6, 6, v6
        v_bfe_u32 v7, v5, 5, 2
        v_lshlrev_b32 v7, 10, v7
        v_add_u32 v6, v6, v7
        v_and_b32 v7, 31, v5
        v_lshl_add_u32 v6, v7, 4, v6
        v_lshrrev_b32 v7, 1, v{seg_v}
        v_lshl_add_u32 v6, v7, 12, v6
        v_and_b32 v7, 1, v{seg_v}
        v_lshl_add_u32 v6, v7, 9, v6
        v_subrev_u32 v7, 20, v{m_v}
        v_and_b32 v7, 3, v7
        v_lshlrev_b32 v7, 4, v7
        v_add_u32 v7, s45, v7
        v_cmp_gt_u32 vcc, 20, v{m_v}
        s_nop 1
        v_cndmask_b32 v{dst}, v7, v6, vcc
        """)
    A("""
    v_cmp_gt_u32 vcc, 56, v0
    v_subrev_u32 v8, 32, v0
    v_subrev_u32 v9, 56, v0
    v_cndmask_b32 v8, v9, v8, vcc          ; m
    v_mov_b32 v9, 1
    v_mov_b32 v10, 0
    v_cndmask_b32 v9, v9, v10, vcc         ; seg
    """)
    vchunk(11, 9, 8)
    A(f"""
    v_add_u32 v6, s52, v13
    v_add_u32 v6, {5*SEC + 2*TB}, v6
    v_cmp_gt_u32 vcc, 32, v0
    s_nop 1
    v_cndmask_b32 v{VG[1]}, v11, v6, vcc
    v_cmp_gt_u32 vcc, 16, v0
    v_cmp_gt_u32 s[54:55], 40, v0
    v_subrev_u32 v8, 40, v0
    v_subrev_u32 v10, 16, v0
    v_cndmask_b32 v8, v8, v10, s[54:55]
    v_add_u32 v10, 8, v0
    v_cndmask_b32 v8, v8, v10, vcc         ; m
    v_mov_b32 v9, 3
    v_mov_b32 v10, 2
    v_cndmask_b32 v9, v9, v10, s[54:55]
    v_mov_b32 v10, 1
    v_cndmask_b32 v9, v9, v10, vcc         ; seg
    """)
    vchunk(VG[2], 9, 8)
    A("v_mov_b32 v8, v3\nv_mov_b32 v9, v12")
    vchunk(VVF, 9, 8)
    srd(A, R_A, P_WO, 640 * 640 * 2)
    A(f"s_and_b32 s52, s{S_J}, 7\ns_mul_i32 s52, s52, 160")
    for b in range(5):
        A(f"""
        v_add_u32 v5, {64*b}, v0
        v_mul_u32_u24 v6, 52429, v5
        v_lshrrev_b32 v6, 19, v6
        v_mul_u32_u24 v7, 10, v6
        v_sub_u32 v7, v5, v7
        v_mul_u32_u24 v6, 1280, v6
        v_lshl_add_u32 v6, v7, 4, v6
        v_add_u32 v{WOV+b}, s52, v6""")
    A(f"""
    s_mul_i32 s53, s{S_WAVE}, 5120
    s_mul_i32 s62, s{S_WAVE}, 40960
    s_mov_b32 s60, 0
    v_lshlrev_b32 v2, 4, v0
    v_mul_u32_u24 v13, 384, v12
    v_lshl_add_u32 v13, v3, 4, v13
    v_add_u32 v{AV[0]}, 1536, v13
    v_mov_b32 v{AK[0]}, v2
    s_and_b32 s54, s43, 1
    s_lshl_b32 s54, s54, 3
    s_add_u32 s54, s54, 1024
    v_lshlrev_b32 v1, 4, v3
    v_add_u32 v{AK2[0]}, s54, v1
    v_add_u32 v{AV[1]}, {CHUNK}, v{AV[0]}
    v_add_u32 v{AK[1]}, {CHUNK}, v{AK[0]}
    v_add_u32 v{AK2[1]}, {CHUNK}, v{AK2[0]}
    v_cmp_lt_u32 vcc, 20, v3
    v_mov_b32 v5, 0x30000
    v_mov_b32 v{Q2+2}, 0
    v_cndmask_b32 v{AV[0]}, v{AV[0]}, v5, vcc
    v_cndmask_b32 v{AV[1]}, v{AV[1]}, v5, vcc
    v_mov_b32 v{Q2+3}, 0
    v_mov_b32 v{KB+2}, 0
    v_mov_b32 v{KB+3}, 0
    v_mov_b32 v{KB0+2}, 0
    v_mov_b32 v{KB0+3}, 0
    v_mov_b32 v164, 0x7ff00000
    s_mul_i32 s45, s46, {TB}
    s_mul_i32 s49, s{S_WAVE}, {REC}
    s_mul_i32 s50, s{S_WAVE}, {TB}
    """)
    stp(A, "hset")
    L_gow = A.newlabel("gow"); L_go = A.newlabel("go")
    A(f"""
    s_cmp_lg_u32 s{S_WAVE}, 0
    s_cbranch_scc1 {L_gow}
    """)
    lds_wait(A, C_QKV, 5, 6, val=4)
    lds_wait(A, C_INIT, 5, 6)
    A(f"""
    s_mul_i32 s54, s43, 5
    s_add_u32 s55, s54, 4
    s_lshr_b32 s54, s54, 5             ; c0
    s_lshr_b32 s55, s55, 5             ; c1
    v_bfe_u32 v5, v0, 4, 1
    v_cmp_eq_u32 vcc, 1, v5
    v_mov_b32 v6, s54
    v_mov_b32 v7, s55
    v_cndmask_b32 v6, v6, v7, vcc      ; c0 / c1
    v_lshrrev_b32 v5, 5, v0
    v_mul_u32_u24 v5, 5, v5
    v_add_u32 v5, v5, v6
    v_add_u32 v6, 10, v6
    v_and_b32 v7, 15, v0
    v_lshl_add_u32 v5, v5, 4, v7
    v_lshl_add_u32 v6, v6, 4, v7
    v_lshlrev_b32 v5, 7, v5
    v_lshlrev_b32 v6, 7, v6
    v_add_u32 v5, {SYNC + 128*L_QF}, v5
    v_add_u32 v6, {SYNC + 128*L_QF}, v6
    """)
    poll2(A, 5, 6, 64, 7, 8, E("PS_QKV", 2))
    lds_set(A, C_GO, 5, 6)
    A(f"s_branch {L_go}")
    A.label(L_gow)
    lds_wait(A, C_GO, 5, 6)
    A.label(L_go)
    stp(A, "go")
    A(f"""
    buffer_load_dwordx4 {v(Q1,4)}, v{VKP}, s[{R_WS}:{R_WS+3}], s45 offen{SC}
    buffer_load_dwordx2 {v(Q2,2)}, v{VKS}, s[{R_WS}:{R_WS+3}], s45 offen{SC}
    s_mov_b32 s48, {5*SEC}
    buffer_load_dwordx4 {v(KA0,4)}, v{VKP}, s[{R_WS}:{R_WS+3}], s48 offen{SC}
    buffer_load_dwordx2 {v(KB0,2)}, v{VKS}, s[{R_WS}:{R_WS+3}], s48 offen{SC}
    s_mov_b32 s48, {5*SEC + TB}
    buffer_load_dwordx4 {v(KA,4)}, v{VKP}, s[{R_WS}:{R_WS+3}], s48 offen{SC}
    buffer_load_dwordx2 {v(KB,2)}, v{VKS}, s[{R_WS}:{R_WS+3}], s48 offen{SC}
    """)
    def kv_piece(chunk, i):
        slot = chunk % 2; rr, part = divmod(i, 3)
        return f"""
        s_add_u32 m0, s49, {slot*CHUNK + rr*8*REC + part*1024}
        s_add_u32 s51, s50, {(chunk*16 + rr*8)*TB}
        buffer_load_dwordx4 v{VG[part]}, s[{R_WS}:{R_WS+3}], s51 offen{SC} lds"""
    for i in range(6): A(kv_piece(0, i))
    if not E("C1LATE", 1):
        for i in range(6): A(kv_piece(1, i))
    A(f"""
    v_cmp_gt_u32 vcc, 32, v0
    s_waitcnt vmcnt({0 if E("C1LATE", 1) else 6})
    s_nop 0
    v_cndmask_b32 v{Q2}, 0, v{Q2}, vcc
    v_cndmask_b32 v{Q2+1}, 0, v{Q2+1}, vcc
    """)
    stp(A, "kvok")
    lds_add(A, C_KV, 12, 13)
    lds_wait(A, C_KV, 12, 13, val=8, sleep=0)
    stp(A, "att0")

    def wo_piece(kind, b):
        if kind == 0:
            return f"""
            s_add_u32 m0, s53, {WO_A + b*1024}
            s_nop 0
            buffer_load_dwordx4 v{WOV+b}, s[{R_A}:{R_A+3}], s62 offen lds"""
        if kind == 2:
            return f"""
            s_add_u32 m0, s53, {b*1024}
            s_add_u32 s51, s62, {WO_BROW*1280}
            buffer_load_dwordx4 v{WOV+b}, s[{R_A}:{R_A+3}], s51 offen lds"""
        lab = A.newlabel("wos")
        if kind == 1: lim, ldso, go = 3, WO_A + 8*5120, 8*40960
        else: lim, ldso, go = (2 if b < 2 else 1), 8*5120, WO_BROW*1280 + 8*40960
        return f"""
            s_cmp_ge_u32 s{S_WAVE}, {lim}
            s_cbranch_scc1 {lab}
            s_add_u32 m0, s53, {ldso + b*1024}
            s_add_u32 s51, s62, {go}
            buffer_load_dwordx4 v{WOV+b}, s[{R_A}:{R_A+3}], s51 offen lds
            {lab}:"""
    def qk2(Sd, Kr):
        if E("K8", 1): return f"v_mfma_f32_32x32x8bf16_1k {v(Sd,16)}, {v(Kr,2)}, {v(Q2,2)}, {v(Sd,16)}"
        return f"v_mfma_f32_32x32x16_bf16 {v(Sd,16)}, {v(Kr,4)}, {v(Q2,4)}, {v(Sd,16)}"
    PZ, PQ, PO = 132, 148, 164
    def post_task(skip):
        L_t3 = A.newlabel("t3"); L_tgo = A.newlabel("tgo")
        A(f"""
        s_cmp_eq_u32 s{S_WAVE}, 0
        s_cbranch_scc1 {skip}
        s_cmp_ge_u32 s{S_WAVE}, 4
        s_cbranch_scc1 {skip}
        s_cmp_eq_u32 s{S_WAVE}, 3
        s_cbranch_scc1 {L_t3}
        s_lshl_b32 s56, s2, 1
        s_sub_u32 s57, s{S_WAVE}, 1
        s_add_u32 s56, s56, s57
        s_branch {L_tgo}
        {L_t3}:
        s_cmp_ge_u32 s2, 128
        s_cbranch_scc1 {skip}
        s_add_u32 s56, s2, 512
        {L_tgo}:
        """)
    def post_probe():
        A(f"""
        v_min_u32 v12, 7, v0
        v_lshlrev_b32 v12, 7, v12
        v_add_u32 v12, {SYNC + 128*(FLG + L_Z)}, v12
        global_load_dword v166, v12, s[{P_WS}:{P_WS+1}] sc1
        """)
    def post_prefetch():
        Ls = A.newlabel("pps"); Lok = A.newlabel("ppok")
        post_task(Ls)
        A(f"""
        v_cmp_le_u32 vcc, 1, v166
        s_mul_i32 s57, s56, 52429
        s_lshr_b32 s57, s57, 19
        s_mul_i32 s58, s57, 10
        s_sub_u32 s58, s56, s58
        s_cmp_eq_u64 vcc, -1
        s_cbranch_scc1 {Lok}
        """)
        poll_flags(A, L_Z, 8, 12, 13, 14)
        A.label(Lok)
        srd(A, R_B, P_BQ, 2048 * 640 * 2)
        A(f"""
        v_and_b32 v12, 7, v0
        v_lshrrev_b32 v13, 3, v0
        s_lshl_b32 s54, s58, 6
        v_lshl_add_u32 v12, v12, 3, s54
        s_lshl_b32 s55, s57, 5
        v_lshl_add_u32 v13, v13, 2, s55
        v_mul_u32_u24 v14, 1280, v13
        v_lshl_add_u32 v14, v12, 1, v14
        v_mul_u32_u24 v15, 2560, v13
        v_lshl_add_u32 v15, v12, 1, v15
        v_add_u32 v{PO}, 1280, v15
        v_lshlrev_b32 v15, 12, v12
        v_lshl_add_u32 v15, v13, 1, v15
        v_add_u32 v{PO+1}, {WS_Z}, v15
        """)
        for j in range(4):
            A(f"buffer_load_dwordx4 {v(PQ+4*j,4)}, v14, s[{R_B}:{R_B+3}], 0 offen offset:{1280*j}")
        for i in range(8):
            A(f"s_mov_b32 s54, {i*4096}")
            A(f"buffer_load_dwordx2 {v(PZ+2*i,2)}, v{PO+1}, s[{R_WS}:{R_WS+3}], s54 offen{SC}")
        A.label(Ls)
    A(f"v_mfma_f32_32x32x16_bf16 {v(S[0],16)}, {v(KA0,4)}, {v(Q1,4)}, 0")
    A(qk2(S[0], KB0))
    A("s_nop 7\ns_nop 7")
    for J in range(64):
        c = J // 16; slot = c % 2; j = J % 16
        Sc, Sn = S[J % 2], S[(J + 1) % 2]
        Pc, Pp = P[J % 2], P[(J + 1) % 2]
        off = j * REC
        if j == 0 and J > 0:
            stp(A, f"attpre{J}")
            if J == 48 and E("POSTPF", 1): post_probe()
            A(f"s_waitcnt vmcnt({5 if J == 32 else 0}) lgkmcnt(0)\ns_barrier")
            stp(A, f"attb{J}")
            if J == 48 and E("POSTPF", 1): post_prefetch()
        EX = lambda i: f"v_exp_f32 v{Sc+i}, v{Sc+i}"
        CV = lambda i: f"v_cvt_pk_bf16_f32 v{Pc+i}, v{Sc+2*i}, v{Sc+2*i+1}"
        G = [(EX(0),EX(1),EX(2),EX(3),CV(0),CV(1)), (EX(4),EX(5),EX(6),EX(7),CV(2),CV(3)), (EX(8),EX(9),EX(10),EX(11),CV(4),CV(5)), (EX(12),EX(13),EX(14),EX(15),CV(6),CV(7))]
        if j in (0, 9, 13, 15):
            A(f"s_setprio {dict([(0,3),(9,2),(13,1),(15,0)])[j]}")
        if J > 0 and j != 0: A("s_waitcnt lgkmcnt(2)")
        if J < 63: A(f"v_mfma_f32_32x32x16_bf16 {v(Sn,16)}, {v(KA,4)}, {v(Q1,4)}, 0")
        if J < 62: A(f"ds_read_b128 {v(KA,4)}, v{AK[slot]} offset:{off}")
        for x in G[0]: A(x)
        if J < 63: A(qk2(Sn, KB))
        if J < 62: A(f"ds_read_b64 {v(KB,2)}, v{AK2[slot]} offset:{off}")
        for x in G[1]: A(x)
        if J > 0:
            A("s_waitcnt lgkmcnt(2)" if J < 62 else "s_waitcnt lgkmcnt(0)")
            cc = "0" if J == 1 else v(O, 16)
            A(f"v_mfma_f32_32x32x16_bf16 {v(O,16)}, {v(V0,4)}, {v(Pp,4)}, {cc}")
        A(f"ds_read_b128 {v(V0,4)}, v{AV[slot]} offset:{off}")
        for x in G[2]: A(x)
        if J > 0: A(f"v_mfma_f32_32x32x16_bf16 {v(O,16)}, {v(V1,4)}, {v(Pp+4,4)}, {v(O,16)}")
        A(f"ds_read_b128 {v(V1,4)}, v{AV[slot]} offset:{off + 768}")
        if (c in (1, 2) or (c == 0 and E("C1LATE", 1))) and j < 6: A(kv_piece(c + 1, j))
        if c == 1 and 6 <= j < 11: A(wo_piece(0, j - 6))
        if c == 1 and 11 <= j < 16: A(wo_piece(1, j - 11))
        if c == 3 and 1 <= j < 6: A(wo_piece(2, j - 1))
        if c == 3 and 6 <= j < 11: A(wo_piece(3, j - 6))
        for x in G[3]: A(x)
    stp(A, "att1")
    Pl = P[63 % 2]
    A("s_waitcnt lgkmcnt(0)")
    A(f"v_mfma_f32_32x32x16_bf16 {v(O,16)}, {v(V0,4)}, {v(Pl,4)}, {v(O,16)}")
    A(f"v_mfma_f32_32x32x16_bf16 {v(O,16)}, {v(V1,4)}, {v(Pl+4,4)}, {v(O,16)}")
    A("s_setprio 0")
    L_fin = A.newlabel("fin"); L_slow = A.newlabel("slow"); L_odone = A.newlabel("odone")
    def addr_calc():
        A(f"""
        s_lshl_b32 s52, s43, 6
        s_add_u32 s52, s52, s46
        s_mul_i32 s52, s52, 1536
        s_add_u32 s52, s52, {WS_O}
        v_lshlrev_b32 v104, 4, v0
        """)
    addr_calc()
    A("s_nop 7")
    A.label(L_fin)
    A("s_nop 7")
    A(f"""
    v_mov_b32 v110, v{O+8}
    v_mov_b32 v111, v{O+8}
    s_nop 1
    v_permlane32_swap_b32 v110, v111
    s_nop 1
    v_rcp_f32 v112, v111
    s_nop 0
    """)
    for i in range(0, 12, 2):
        A(f"v_pk_mul_f32 {v(O+i,2)}, {v(O+i,2)}, v[112:113] op_sel_hi:[1,0]")
    A(f"""
    v_add_f32 v113, abs(v{O}), abs(v{O+1})
    v_add_f32 v114, abs(v{O+8}), abs(v{O+9})
    """)
    for i in range(2, 8): A(f"v_add_f32 v113, v113, abs(v{O+i})")
    A(f"""
    v_add_f32 v114, v114, abs(v{O+10})
    v_add_f32 v114, v114, abs(v{O+11})
    v_cmp_gt_u32 vcc, 32, v0
    v_mov_b32 v115, 0x21800000         ; 2^-60
    v_mov_b32 v116, 0x5d800000         ; 2^60
    v_cndmask_b32 v114, 0, v114, vcc
    v_add_f32 v113, v113, v114
    v_mov_b32 v114, 0x7f800000
    v_cmp_nlt_f32 s[54:55], v113, v114
    v_cmp_ngt_f32 s[56:57], v111, v115
    v_cmp_nlt_f32 vcc, v111, v116
    s_nop 1
    s_or_b64 s[54:55], s[54:55], s[56:57]
    s_or_b64 s[54:55], s[54:55], vcc
    s_cmp_lg_u64 s[54:55], 0
    s_cselect_b32 s61, 1, 0
    s_andn2_b32 s61, s61, s60
    s_cmp_lg_u32 s61, 0
    s_cbranch_scc1 {L_slow}
    """)
    for i in range(4): A(f"v_cvt_pk_bf16_f32 v{O+i}, v{O+2*i}, v{O+2*i+1}")
    A(f"""
    v_cvt_pk_bf16_f32 v{O+8}, v{O+8}, v{O+9}
    v_cvt_pk_bf16_f32 v{O+9}, v{O+10}, v{O+11}
    v_mov_b32 v{O+10}, 0
    v_mov_b32 v{O+11}, 0
    buffer_store_dwordx4 {v(O,4)}, v104, s[{R_WS}:{R_WS+3}], s52 offen{SC}
    s_mov_b32 exec_hi, 0
    buffer_store_dwordx4 {v(O+8,4)}, v104, s[{R_WS}:{R_WS+3}], s52 offen offset:1024{SC}
    s_mov_b64 exec, -1
    s_branch {L_odone}
    """)
    A.label(L_slow)
    L1 = A.newlabel("p1"); L2 = A.newlabel("p2")
    A(f"""
    s_mov_b32 s60, 1
    v_mov_b32 v110, 0xff800000
    s_mov_b32 s52, 0
    {L1}:
    s_mul_i32 s63, s52, {TB}
    s_add_u32 s63, s63, {5*SEC}
    buffer_load_dwordx4 {v(KA,4)}, v{VKP}, s[{R_WS}:{R_WS+3}], s63 offen{SC}
    buffer_load_dwordx2 {v(KB,2)}, v{VKS}, s[{R_WS}:{R_WS+3}], s63 offen{SC}
    s_waitcnt vmcnt(0)
    v_mfma_f32_32x32x16_bf16 {v(S[0],16)}, {v(KA,4)}, {v(Q1,4)}, 0
    v_mfma_f32_32x32x16_bf16 {v(S[0],16)}, {v(KB,4)}, {v(Q2,4)}, {v(S[0],16)}
    s_nop 7
    s_nop 7
    """)
    for i in range(0, 16, 2): A(f"v_max3_f32 v110, v110, v{S[0]+i}, v{S[0]+i+1}")
    A(f"""
    s_add_u32 s52, s52, 1
    s_cmp_lt_u32 s52, 64
    s_cbranch_scc1 {L1}
    v_mov_b32 v108, v110
    v_mov_b32 v109, v110
    s_nop 1
    v_permlane32_swap_b32 v108, v109
    s_nop 1
    v_max_f32 v110, v108, v109
    v_and_b32 v3, 31, v0
    v_cmp_gt_u32 vcc, 20, v3
    v_add_u32 v108, 4096, v{VVF}
    s_nop 0
    v_cndmask_b32 v109, v{VVF}, v108, vcc
    """)
    for i in range(16): A(f"v_mov_b32 v{O+i}, 0")
    A("s_mov_b32 s52, 0")
    A.label(L2)
    A(f"""
    s_mul_i32 s54, s52, {TB}
    s_add_u32 s63, s54, {5*SEC}
    buffer_load_dwordx4 {v(KA,4)}, v{VKP}, s[{R_WS}:{R_WS+3}], s63 offen{SC}
    buffer_load_dwordx2 {v(KB,2)}, v{VKS}, s[{R_WS}:{R_WS+3}], s63 offen{SC}
    buffer_load_dwordx4 {v(V0,4)}, v{VVF}, s[{R_WS}:{R_WS+3}], s54 offen{SC}
    buffer_load_dwordx4 {v(V1,4)}, v109, s[{R_WS}:{R_WS+3}], s54 offen{SC}
    s_waitcnt vmcnt(0)
    v_mfma_f32_32x32x16_bf16 {v(S[0],16)}, {v(KA,4)}, {v(Q1,4)}, 0
    v_mfma_f32_32x32x16_bf16 {v(S[0],16)}, {v(KB,4)}, {v(Q2,4)}, {v(S[0],16)}
    s_nop 7
    s_nop 7
    """)
    for i in range(16): A(f"v_sub_f32 v{S[0]+i}, v{S[0]+i}, v110")
    for i in range(16): A(f"v_exp_f32 v{S[0]+i}, v{S[0]+i}")
    A("s_nop 0")
    for i in range(8): A(f"v_cvt_pk_bf16_f32 v{P[0]+i}, v{S[0]+2*i}, v{S[0]+2*i+1}")
    A(f"""
    s_nop 1
    v_mfma_f32_32x32x16_bf16 {v(O,16)}, {v(V0,4)}, {v(P[0],4)}, {v(O,16)}
    v_mfma_f32_32x32x16_bf16 {v(O,16)}, {v(V1,4)}, {v(P[0]+4,4)}, {v(O,16)}
    s_add_u32 s52, s52, 1
    s_cmp_lt_u32 s52, 64
    s_cbranch_scc1 {L2}
    s_nop 7
    """)
    addr_calc()
    A(f"s_branch {L_fin}")

    A.label(L_odone)
    OF = 32; AD = 80; OA = 88; VOUT, VRED = 91, 92; ACC3 = 96; WF = [116, 136]
    A(f"""
    s_lshl_b32 s54, s{S_XCD}, 2
    s_lshr_b32 s55, s{S_J}, 3
    s_add_u32 s54, s54, s55        ; tb
    s_lshl_b32 s54, s54, 2
    s_and_b32 s55, s{S_WAVE}, 3
    s_add_u32 s54, s54, s55        ; T
    s_lshr_b32 s45, s54, 1
    s_mul_i32 s45, s45, 1536
    s_and_b32 s57, s54, 1
    s_lshl_b32 s57, s57, 8
    s_add_u32 s45, s45, s57
    s_add_u32 s45, s45, {WS_O}
    s_lshr_b32 s57, s{S_WAVE}, 2
    s_mul_i32 s57, s57, {16*64*1536}
    s_add_u32 s62, s45, s57
    v_lshrrev_b32 v5, 4, v0            ; kg
    v_and_b32 v6, 15, v0
    v_lshlrev_b32 v6, 4, v6
    """)
    for c in range(3):
        A(f"""
        v_add_u32 v8, {4*c}, v5
        v_mul_u32_u24 v9, 21846, v8
        v_lshrrev_b32 v9, 16, v9
        v_mul_u32_u24 v10, 3, v9
        v_sub_u32 v10, v8, v10
        v_mul_u32_u24 v9, 1536, v9
        v_lshlrev_b32 v9, 6, v9
        v_lshl_add_u32 v9, v10, 9, v9
        v_add_u32 v{OA+c}, v9, v6""")
    A(f"""
    v_and_b32 v3, 15, v0
    s_lshl_b32 s55, s54, 4
    v_add_u32 v3, s55, v3
    v_mul_u32_u24 v3, 2560, v3
    v_lshrrev_b32 v4, 4, v0
    v_lshl_add_u32 v3, v4, 3, v3
    s_and_b32 s55, s{S_J}, 7
    s_mul_i32 s55, s55, 160
    v_add_u32 v{VOUT}, s55, v3
    v_lshlrev_b32 v3, 4, v0
    s_and_b32 s55, s{S_WAVE}, 3
    s_mul_i32 s55, s55, 5120
    s_add_u32 s55, s55, {RED}
    v_add_u32 v{VRED}, s55, v3
    v_bfe_u32 v6, v0, 2, 2             ; r
    v_and_b32 v7, 3, v0
    v_lshlrev_b32 v7, 3, v7            ; 8*c4
    s_mov_b32 s59, {WO_A}
    """)
    def row_addr(dst0, s, region):
        A(f"""
        v_add_u32 v8, {4*s}, v5
        v_mul_u32_u24 v9, 21846, v8
        v_lshrrev_b32 v9, 16, v9
        v_mul_u32_u24 v10, 3, v9
        v_sub_u32 v10, v8, v10
        v_mul_u32_u24 v9, 20, v9
        v_add_u32 v9, v9, v6
        v_lshlrev_b32 v11, 2, v10
        v_cmp_eq_u32 vcc, 2, v10
        v_add_u32 v12, 8, v11
        v_lshlrev_b32 v13, 1, v11
        v_cndmask_b32 v11, v11, v13, vcc
        v_add_u32 v11, v11, v9
        v_add_u32 v12, v12, v9
        """)
        for hh, rv in enumerate((11, 12)):
            if region == "A":
                A(f"v_mul_u32_u24 v13, 160, v{rv}\nv_add3_u32 v{dst0+hh}, v13, v7, s59")
            elif region == "B":
                A(f"v_subrev_u32 v13, {WO_BROW}, v{rv}\nv_mul_u32_u24 v13, 160, v13\nv_add_u32 v{dst0+hh}, v13, v7")
            else:
                A(f"""
                v_mul_u32_u24 v13, 160, v{rv}
                v_add3_u32 v14, v13, v7, s59
                v_subrev_u32 v13, {WO_BROW*160}, v13
                v_add_u32 v13, v13, v7
                v_cmp_gt_u32 vcc, {WO_BROW}, v{rv}
                s_nop 1
                v_cndmask_b32 v{dst0+hh}, v13, v14, vcc""")
    L_ahi = A.newlabel("ahi"); L_adone = A.newlabel("adone")
    stp(A, "ostored")
    A("s_waitcnt vmcnt(0)")
    stp(A, "odrained")
    L_os = A.newlabel("os")
    lds_arrive_last(A, C_O, 8, L_os, 2, 3)
    A(f"s_add_u32 s65, s44, {L_O}")
    global_arrive(A, "s65", 32, 2, 3)
    A.label(L_os)
    A(f"""
    s_cmp_ge_u32 s{S_WAVE}, 4
    s_cbranch_scc1 {L_ahi}
    """)
    for c in range(3): row_addr(AD + 2*c, c, "A")
    A(f"s_branch {L_adone}")
    A.label(L_ahi)
    row_addr(AD + 6, 12, None)
    for c in range(3): row_addr(AD + 2*c, 13 + c, "B")
    A.label(L_adone)
    srd(A, R_B, P_OUT, 2048 * 1280 * 2)
    L_p3a = A.newlabel("p3a"); L_post = A.newlabel("post"); L_t3 = A.newlabel("t3"); L_tgo = A.newlabel("tgo")
    A(f"""
    s_cmp_eq_u32 s{S_WAVE}, 0
    s_cbranch_scc0 {L_post}
    s_lshl_b32 s54, s{S_XCD}, 7
    s_add_u32 s54, s54, {SYNC + 128*(FLG + L_O)}
    v_mov_b32 v2, s54
    v_cmp_eq_u32 vcc, 0, v0
    v_mov_b32 v3, 1
    s_nop 0
    v_cndmask_b32 v4, 0, v3, vcc
    """)
    poll(A, 2, 4, 3, sleep=E("PS_O", 2))
    stp(A, "ook")
    A(f"s_branch {L_p3a}")
    A.label(L_post)
    if E("NOBW", 0): A(f"s_branch {L_p3a}")
    post_task(L_p3a)
    for j in range(4):
        for q in range(4):
            za = PZ + 2*(2*q) + j//2; zb = PZ + 2*(2*q+1) + j//2
            if j % 2 == 0:
                A(f"v_lshlrev_b32 v48, 16, v{za}\nv_lshlrev_b32 v49, 16, v{zb}")
            else:
                A(f"v_and_b32 v48, 0xffff0000, v{za}\nv_and_b32 v49, 0xffff0000, v{zb}")
            qq = PQ + 4*j + q
            A(f"v_lshlrev_b32 v50, 16, v{qq}\nv_and_b32 v51, 0xffff0000, v{qq}")
            A(f"v_pk_mul_f32 v[48:49], v[48:49], v[50:51]")
            A(f"v_cvt_pk_bf16_f32 v{52+4*j+q}, v48, v49")
        A(f"s_mov_b32 s54, {j*2560}")
        A(f"buffer_store_dwordx4 {v(52+4*j,4)}, v{PO}, s[{R_B}:{R_B+3}], s54 offen{os.environ.get('OUTB', '')}")
    A.label(L_p3a)
    stp(A, "prep3a")
    A("s_barrier")
    stp(A, "p3a")
    PD = E("P3D", 3)
    def o_load(st):
        A(f"s_add_u32 s58, s62, {(st//3)*4*64*1536}")
        A(f"buffer_load_dwordx4 {v(OF+4*st,4)}, v{OA + st % 3}, s[{R_WS}:{R_WS+3}], s58 offen{SC}")
    for st in range(min(PD + 1, 12)): o_load(st)
    def p3_loop(hi):
        if not hi: sel = lambda st: (AD + 2*(st % 3), (st // 3) * 12800)
        else: sel = lambda st: (AD + 6, 0) if st == 0 else (AD + 2*((st - 1) % 3), ((st - 1) // 3) * 12800)
        def rd(st, setid):
            base, so = sel(st); r = []
            for T in range(5):
                r.append(f"ds_read_b64_tr_b16 {v(WF[setid]+4*T,2)}, v{base} offset:{so + 32*T}")
                r.append(f"ds_read_b64_tr_b16 {v(WF[setid]+4*T+2,2)}, v{base+1} offset:{so + 32*T}")
            return r
        for r in rd(0, 0): A(r)
        for st in range(12):
            setid = st % 2
            A(f"s_waitcnt vmcnt({min(PD, 11-st)}) lgkmcnt(0)")
            if st + PD + 1 < 12: o_load(st + PD + 1)
            if st == 0: stp(A, "p3first")
            if st == 6: stp(A, "p3mid")
            rs = rd(st + 1, 1 - setid) if st < 11 else []
            for T in range(5):
                cc = "0" if st == 0 else v(ACC3+4*T, 4)
                A(f"v_mfma_f32_16x16x32_bf16 {v(ACC3+4*T,4)}, {v(WF[setid]+4*T,4)}, {v(OF+4*st,4)}, {cc}")
                for r in rs[2*T:2*T+2]: A(r)
        A("s_nop 7")
    L_hi = A.newlabel("p3hi")
    A(f"""
    s_cmp_ge_u32 s{S_WAVE}, 4
    s_cbranch_scc1 {L_hi}
    """)
    p3_loop(False)
    stp(A, "p3loop")
    A("s_barrier")
    stp(A, "p3red")
    for T in range(5): A(f"ds_read_b128 {v(32+4*T,4)}, v{VRED} offset:{1024*T}")
    A("s_waitcnt lgkmcnt(0)")
    for T in range(5):
        d = ACC3 + 4*T
        A(f"v_pk_add_f32 {v(d,2)}, {v(d,2)}, {v(32+4*T,2)}")
        A(f"v_pk_add_f32 {v(d+2,2)}, {v(d+2,2)}, {v(34+4*T,2)}")
        A(f"v_cvt_pk_bf16_f32 v{d}, v{d}, v{d+1}")
        A(f"v_cvt_pk_bf16_f32 v{d+1}, v{d+2}, v{d+3}")
        A(f"buffer_store_dwordx2 {v(d,2)}, v{VOUT}, s[{R_B}:{R_B+3}], 0 offen offset:{32*T}{os.environ.get('OUTA', '')}")
    prof_dump(A, 0, wsptr=P_WS)
    A("s_endpgm")
    A.label(L_hi)
    p3_loop(True)
    for T in range(5): A(f"ds_write_b128 v{VRED}, {v(ACC3+4*T,4)} offset:{1024*T}")
    A("s_waitcnt lgkmcnt(0)\ns_barrier")
    prof_dump(A, 0, wsptr=P_WS)
    A("s_endpgm")

    A.label(L_bw)
    BK, BV, BW = 16, 44, 60
    def b_setup(notask, chan_only):
        L2_ = A.newlabel("b2")
        A(f"""
        s_cmp_eq_u32 s{S_WAVE}, 10
        s_cbranch_scc1 {L2_}
        s_lshl_b32 s56, s2, 1
        s_sub_u32 s57, s{S_WAVE}, 8
        s_add_u32 s56, s56, s57
        """)
        b_addr()
        Lc = A.newlabel("bcont")
        A(f"""
        s_branch {Lc}
        {L2_}:
        s_cmp_ge_u32 s2, 128
        s_cbranch_scc1 {notask}
        s_add_u32 s56, s2, 512
        s_mov_b32 s65, 0
        s_branch {chan_only}
        {Lc}:
        """)
    def b_addr():
        A(f"""
        s_mul_i32 s57, s56, 52429
        s_lshr_b32 s57, s57, 19        ; tblk
        s_mul_i32 s58, s57, 10
        s_sub_u32 s58, s56, s58        ; dblk
        v_and_b32 v2, 7, v0            ; dg
        v_lshrrev_b32 v3, 3, v0        ; tg
        v_lshlrev_b32 v12, 6, v2
        v_lshl_add_u32 v12, v3, 3, v12
        s_lshl_b32 s54, s56, 12
        s_add_u32 s54, s54, {WS_U}
        v_add_u32 v12, s54, v12
        s_lshl_b32 s54, s58, 6
        v_lshl_add_u32 v2, v2, 3, s54  ; d0
        s_lshl_b32 s55, s57, 5
        v_lshl_add_u32 v3, v3, 2, s55  ; t0
        v_mul_u32_u24 v4, 1280, v3
        v_lshl_add_u32 v10, v2, 1, v4
        v_lshlrev_b32 v11, 3, v2
        v_subrev_u32 v5, 3840, v10
        v_subrev_u32 v6, 2560, v10
        v_subrev_u32 v7, 1280, v10
        """)
    def b_loads():
        srd(A, R_C, P_BK, 2048 * 640 * 2)
        A(f"""
        buffer_load_dwordx4 {v(BK,4)}, v5, s[{R_C}:{R_C+3}], 0 offen
        buffer_load_dwordx4 {v(BK+4,4)}, v6, s[{R_C}:{R_C+3}], 0 offen
        buffer_load_dwordx4 {v(BK+8,4)}, v7, s[{R_C}:{R_C+3}], 0 offen
        """)
        for j in range(4): A(f"buffer_load_dwordx4 {v(BK+12+4*j,4)}, v10, s[{R_C}:{R_C+3}], 0 offen offset:{1280*j}")
        srd(A, R_C, P_BV, 2048 * 640 * 2)
        for j in range(4): A(f"buffer_load_dwordx4 {v(BV+4*j,4)}, v10, s[{R_C}:{R_C+3}], 0 offen offset:{1280*j}")
        srd(A, R_C, P_SH, 640 * 4 * 2)
        for j in range(4): A(f"buffer_load_dwordx4 {v(BW+4*j,4)}, v11, s[{R_C}:{R_C+3}], 0 offen offset:{16*j}")
    def b_compute(q):
        KP, VP, WP, AC, OUT = 80, 94, 102, 110, 120
        for j in range(7):
            A(f"v_lshlrev_b32 v{KP+2*j}, 16, v{BK+4*j+q}\nv_and_b32 v{KP+1+2*j}, 0xffff0000, v{BK+4*j+q}")
        for t in range(4):
            A(f"v_lshlrev_b32 v{VP+2*t}, 16, v{BV+4*t+q}\nv_and_b32 v{VP+1+2*t}, 0xffff0000, v{BV+4*t+q}")
        for u in range(2):
            bb = BW + 4*q + 2*u
            A(f"v_lshlrev_b32 v{WP+u}, 16, v{bb}\nv_and_b32 v{WP+2+u}, 0xffff0000, v{bb}")
            A(f"v_lshlrev_b32 v{WP+4+u}, 16, v{bb+1}\nv_and_b32 v{WP+6+u}, 0xffff0000, v{bb+1}")
        for t in range(4):
            acc = AC + 2*t
            A(f"v_pk_mul_f32 {v(acc,2)}, {v(KP+2*(t+0),2)}, {v(WP+6,2)}")
            A(f"v_pk_fma_f32 {v(acc,2)}, {v(KP+2*(t+1),2)}, {v(WP+4,2)}, {v(acc,2)}")
            A(f"v_pk_fma_f32 {v(acc,2)}, {v(KP+2*(t+2),2)}, {v(WP+2,2)}, {v(acc,2)}")
            A(f"v_pk_fma_f32 {v(acc,2)}, {v(KP+2*(t+3),2)}, {v(WP,2)}, {v(acc,2)}")
            A(f"v_pk_mul_f32 {v(acc,2)}, {v(acc,2)}, {v(VP+2*t,2)}")
        for u in range(2):
            o = OUT + 4*q + 2*u
            A(f"v_cvt_pk_bf16_f32 v{o}, v{AC+u}, v{AC+2+u}\nv_cvt_pk_bf16_f32 v{o+1}, v{AC+4+u}, v{AC+6+u}")
        for u in range(2):
            o = OUT + 4*q + 2*u
            A(f"buffer_store_dwordx2 {v(o,2)}, v12, s[{R_WS}:{R_WS+3}], 0 offen offset:{(2*q+u)*512}{SC}")
    def init_load():
        A(f"v_mov_b32 v2, 0\nglobal_load_dword v9, v2, s[{P_DBG}:{P_DBG+1}] sc1")
    def u_publish(n):
        A(f"s_waitcnt vmcnt({n})\ns_mov_b32 s65, 0")
        Lok = A.newlabel("iok"); Lsk = A.newlabel("usk")
        A(f"""
        v_readfirstlane_b32 s66, v9
        s_nop 3
        s_cmp_lg_u32 s66, 0
        s_cbranch_scc1 {Lok}
        v_mov_b32 v2, 0
        v_mov_b32 v3, 1
        """)
        poll(A, 2, 3, 4, sleep=8, base=P_DBG)
        A.label(Lok)
        lds_set(A, C_INIT, 2, 3)
        A(f"s_cmp_ge_u32 s{S_CBK}, 15\ns_cselect_b32 s64, 10, 2")
        lds_arrive_last(A, C_U, "s64", Lsk, 2, 3)
        A(f"""
        s_and_b32 s66, s2, 7
        s_add_u32 s66, s66, {L_U}
        s_lshl_b32 s66, s66, 7
        s_add_u32 s66, s66, {SYNC}
        v_mov_b32 v10, s66
        v_mov_b32 v11, 1
        s_mov_b64 exec, 1
        global_atomic_add v11, v10, v11, s[{P_WS}:{P_WS+1}] sc0 sc1
        s_mov_b64 exec, -1
        s_mov_b32 s65, 1
        {Lsk}:
        """)
    def u_flag():
        L = A.newlabel("uf")
        A(f"""
        s_cmp_eq_u32 s65, 0
        s_cbranch_scc1 {L}
        s_waitcnt vmcnt(0)
        v_readfirstlane_b32 s66, v11
        s_nop 3
        s_cmp_lg_u32 s66, 31
        s_cbranch_scc1 {L}
        v_add_u32 v10, {128*40}, v10
        v_mov_b32 v11, 1
        s_mov_b64 exec, 1
        global_store_dword v10, v11, s[{P_WS}:{P_WS+1}] sc1
        s_mov_b64 exec, -1
        {L}:
        """)
    HR = 136
    def h_loads():
        srd(A, R_C, P_SK, 640 * 4096)
        A(f"""
        s_sub_u32 s57, s{S_WAVE}, 8
        s_mul_i32 s57, s57, {CONV_SZ}
        s_add_u32 s57, s57, {CONV_BASE}
        s_lshl_b32 s58, s56, 12
        v_lshlrev_b32 v13, 4, v0
        v_add_u32 v13, s58, v13
        v_subrev_u32 v14, 8, v13
        """)
        for p in range(4):
            if p == 0:
                A(f"buffer_load_dwordx2 {v(HR,2)}, v14, s[{R_C}:{R_C+3}], 0 offen")
            else:
                A(f"buffer_load_dwordx2 {v(HR+6*p,2)}, v13, s[{R_C}:{R_C+3}], 0 offen offset:{1024*p - 8}")
            A(f"buffer_load_dwordx4 {v(HR+6*p+2,4)}, v13, s[{R_C}:{R_C+3}], 0 offen offset:{1024*p}")
    def h_build():
        A(f"""
        v_cmp_eq_u32 vcc, 0, v0
        v_lshlrev_b32 v6, 4, v0
        v_add_u32 v6, s57, v6
        v_add_u32 v6, 32, v6
        v_cndmask_b32 v{HR}, v{HR}, 0, vcc
        v_cndmask_b32 v{HR+1}, v{HR+1}, 0, vcc
        """)
        for p in range(4):
            b = HR + 6*p; P1, P0, D = b, b + 1, b + 2
            T1, T2, T3 = 16 + 12*(p % 2), 20 + 12*(p % 2), 24 + 12*(p % 2)
            A(f"""
            ds_write_b128 v6, {v(D,4)} offset:{0*COPY + 1024*p}
            v_alignbit_b32 v{T1}, v{D}, v{P0}, 16
            v_alignbit_b32 v{T1+1}, v{D+1}, v{D}, 16
            v_alignbit_b32 v{T1+2}, v{D+2}, v{D+1}, 16
            v_alignbit_b32 v{T1+3}, v{D+3}, v{D+2}, 16
            v_mov_b32 v{T2}, v{P0}
            v_mov_b32 v{T2+1}, v{D}
            v_mov_b32 v{T2+2}, v{D+1}
            v_mov_b32 v{T2+3}, v{D+2}
            v_alignbit_b32 v{T3}, v{P0}, v{P1}, 16
            v_mov_b32 v{T3+1}, v{T1}
            v_mov_b32 v{T3+2}, v{T1+1}
            v_mov_b32 v{T3+3}, v{T1+2}
            ds_write_b128 v6, {v(T1,4)} offset:{1*COPY + 1024*p}
            ds_write_b128 v6, {v(T2,4)} offset:{2*COPY + 1024*p}
            ds_write_b128 v6, {v(T3,4)} offset:{3*COPY + 1024*p}
            """)
    L_bnog = A.newlabel("bnog"); L_bnt = A.newlabel("bnt"); L_sync = A.newlabel("sync"); L_bntn = A.newlabel("bntn")
    A(f"""
    s_cmp_ge_u32 s{S_CB}, 15
    s_cbranch_scc1 {L_bnog}
    """)
    L_chonly = A.newlabel("chonly")
    b_setup(L_bnt, L_chonly)
    if E("BISS", 0): lds_wait(A, C_ISS, 2, 3, val=4, sleep=1)
    if E("NOBW", 0):
        lds_set(A, C_INIT, 2, 3)
        for _ in range(10): A("s_barrier")
        A(f"s_branch {L_exit}")
    MODE = E("BMODE", 3)
    if MODE == 3:
        hl3 = E("HL3", 0)
        b_loads()
        if not hl3: h_loads()
        k = E("BWAIT", 3)
        for _ in range(k): A("s_barrier")
        A(f"s_waitcnt vmcnt({0 if hl3 else 8})")
        stp(A, "blok")
        if E("BPRIO", 0): A(f"s_setprio {E('BPRIO', 0)}")
        nsp = E("BSPLIT", 2)
        for q in range(4):
            b_compute(q)
            if (nsp == 2 and q == 1) or (nsp == 4 and q < 3): A("s_barrier")
        used = 1 if nsp == 2 else (3 if nsp == 4 else 0)
        A("s_setprio 0")
        init_load()
        g = E("BGAP", 3)
        for _ in range(g): A("s_barrier")
        u_publish(0)
        stp(A, "upub")
        if hl3: h_loads()
        for _ in range(10 - k - used - g): A("s_barrier")
    elif MODE == 2:
        for _ in range(E("BAT", 1)): A("s_barrier")
        b_loads()
        h_loads()
        for _ in range(10 - E("BAT", 1)): A("s_barrier")
        A("s_waitcnt vmcnt(8)")
        stp(A, "blok")
        for q in range(4): b_compute(q)
        init_load()
        u_publish(0)
        stp(A, "upub")
    else:
        hl = E("HLATE", 1)
        b_loads()
        if not hl: h_loads()
        A(f"s_waitcnt vmcnt({0 if hl else 8})")
        stp(A, "blok")
        for q in range(4): b_compute(q)
        init_load()
        npub = E("NPUB", 2)
        for _ in range(npub): A("s_barrier")
        u_publish(0)
        stp(A, "upub")
        if hl:
            for _ in range(hl): A("s_barrier")
            h_loads()
        for _ in range(10 - npub - hl): A("s_barrier")
    stp(A, "b9")
    A(f"s_branch {L_conv}")
    A.label(L_bnt)
    A(f"s_branch {L_exit}")
    A.label(L_chonly)
    nh = E("HLC", 0)
    for _ in range(nh): A("s_barrier")
    h_loads()
    for _ in range(10 - nh): A("s_barrier")
    A(f"s_branch {L_conv}")
    A.label(L_bnog)
    if E("NOBW", 0):
        lds_set(A, C_INIT, 2, 3)
        A(f"s_branch {L_exit}")
    b_setup(L_exit, L_exit)
    b_loads()
    h_loads()
    A("s_waitcnt vmcnt(8)")
    for q in range(4): b_compute(q)
    init_load()
    u_publish(0)
    A(f"s_branch {L_conv}")
    A.label("L_nogtask")
    A(f"""
    s_sub_u32 s56, s{S_J}, 28
    s_lshl_b32 s56, s56, 2
    s_lshr_b32 s57, s{S_XCD}, 1
    s_add_u32 s56, s56, s57
    s_lshl_b32 s56, s56, 3
    s_add_u32 s56, s56, s{S_WAVE}
    s_add_u32 s56, s56, 512
    """)
    b_addr()
    b_loads()
    A("s_waitcnt vmcnt(0)")
    for q in range(4): b_compute(q)
    init_load()
    u_publish(0)
    u_flag()
    A("s_branch L_nogdone")

    A.label(L_conv)
    u_flag()
    A(f"""
    s_lshr_b32 s59, s56, 1
    s_lshl_b32 s59, s59, 2
    s_load_dword s60, s[{P_SD}:{P_SD+1}], s59
    v_mov_b32 v12, 0
    v_mov_b32 v13, 0
    v_mov_b32 v14, 0
    v_mov_b32 v15, 0
    v_lshlrev_b32 v6, 3, v0
    v_add_u32 v6, s57, v6
    v_add_u32 v6, {4*COPY}, v6
    v_cmp_gt_u32 vcc, 60, v0
    s_and_saveexec_b64 s[54:55], vcc
    ds_write_b64 v6, v[12:13]
    s_mov_b64 exec, s[54:55]
    v_and_b32 v6, 1, v0
    v_lshlrev_b32 v6, 4, v6
    v_lshrrev_b32 v7, 1, v0
    v_mul_u32_u24 v7, {COPY}, v7
    v_add3_u32 v6, v6, v7, s57
    v_cmp_gt_u32 vcc, 8, v0
    s_and_saveexec_b64 s[54:55], vcc
    ds_write_b128 v6, v[12:15]
    s_mov_b64 exec, s[54:55]
    s_waitcnt vmcnt(0)
    """)
    h_build()
    A(f"""
    s_lshr_b32 s54, s56, 6
    s_and_b32 s55, s56, 63
    s_and_b32 s61, s55, 7
    s_lshr_b32 s55, s55, 3
    s_lshl_b32 s61, s61, 9
    s_lshl_b32 s55, s55, 6
    s_add_u32 s61, s61, s55
    s_lshl_b32 s54, s54, 12
    s_add_u32 s61, s61, s54
    s_add_u32 s61, s61, {WS_U}
    v_lshrrev_b32 v8, 2, v0
    v_mul_u32_u24 v8, 40960, v8
    v_and_b32 v9, 3, v0
    v_lshl_add_u32 v8, v9, 4, v8
    """)
    L_uw = A.newlabel("uw"); L_ud = A.newlabel("ud")
    A(f"s_cmp_lg_u32 s{S_WAVE}, 8\ns_cbranch_scc1 {L_uw}")
    if E("UGATE", 0) == 1: lds_wait(A, C_GO, 2, 3, sleep=4)
    if E("UGATE", 0) == 2: lds_wait(A, C_QKV, 2, 3, val=4, sleep=4)
    A(f"""
    v_lshlrev_b32 v2, 7, v0
    v_add_u32 v2, {SYNC + 128*(L_U + 40)}, v2
    v_cmp_gt_u32 vcc, 8, v0
    v_mov_b32 v3, 1
    s_nop 0
    v_cndmask_b32 v4, 0, v3, vcc
    """)
    poll(A, 2, 4, 3, sleep=E("PS_U", 6))
    lds_set(A, C_UOK, 2, 3)
    A(f"s_branch {L_ud}")
    A.label(L_uw)
    lds_wait(A, C_UOK, 2, 3)
    A("s_waitcnt vmcnt(0)")
    A.label(L_ud)
    stp(A, "uok")
    for p in range(4):
        A(f"""
        s_add_u32 m0, s57, {4*COPY + 480 + p*1024}
        s_add_u32 s54, s61, {p*16*40960}
        buffer_load_dwordx4 v8, s[{R_WS}:{R_WS+3}], s54 offen{SC} lds""")
    A(f"""
    v_lshrrev_b32 v6, 4, v0             ; kg
    v_bfe_u32 v7, v0, 2, 2              ; r
    v_and_b32 v8, 3, v0                 ; c
    v_mul_u32_u24 v7, {COPY}, v7
    v_lshlrev_b32 v8, 3, v8
    v_lshlrev_b32 v9, 4, v6
    v_sub_u32 v8, v8, v9
    v_add_u32 v8, 56, v8
    v_add3_u32 v4, v7, v8, s57          ; vA
    v_and_b32 v7, 15, v0
    v_lshlrev_b32 v7, 5, v7
    v_lshl_add_u32 v7, v6, 4, v7
    v_add_u32 v7, {4*COPY}, v7
    v_add_u32 v5, s57, v7               ; vB
    s_waitcnt vmcnt(0) lgkmcnt(0)
    s_and_b32 s54, s56, 1
    s_lshl_b32 s54, s54, 4
    s_lshr_b32 s60, s60, s54
    s_lshl_b32 s60, s60, 16             ; D as f32
    """)
    stp(A, "conv0")
    Y = 32; AT = 64; BT = 128
    def a_reads(rho, p):
        mu = rho + 8 * p
        return [f"ds_read_b64_tr_b16 {v(AT+4*p,2)}, v4 offset:{64*mu + 8}",
                f"ds_read_b64_tr_b16 {v(AT+4*p+2,2)}, v4 offset:{64*mu}"]
    def b_read(rho, q): return f"ds_read_b128 {v(BT+4*q,4)}, v5 offset:{64*(8*q - rho + 7)}"
    A(f"s_setprio {E('CPRIO', 0)}")
    if E("CPACE", 0):
        for q in range(7, -1, -1): A(b_read(0, q))
        for rho in range(8):
            for p in range(8):
                for r in a_reads(rho, p): A(r)
                A("s_waitcnt lgkmcnt(0)")
                for q in range(7 - p, -1, -1):
                    i = p + q
                    cc = "0" if (rho == 0 and p == 0) else v(Y+4*i, 4)
                    A(f"v_mfma_f32_16x16x32_bf16 {v(Y+4*i,4)}, {v(AT+4*p,4)}, {v(BT+4*q,4)}, {cc}")
                if rho < 7: A(b_read(rho + 1, 7 - p))
            if rho == 3:
                stp(A, "convh")
                A("s_barrier")
    else:
        ATS = [64, 96]
        def a_reads2(rho, p, sid):
            mu = rho + 8 * p
            return [f"ds_read_b64_tr_b16 {v(ATS[sid]+4*p,2)}, v4 offset:{64*mu + 8}",
                    f"ds_read_b64_tr_b16 {v(ATS[sid]+4*p+2,2)}, v4 offset:{64*mu}"]
        for q in range(7, -1, -1): A(b_read(0, q))
        A("s_waitcnt lgkmcnt(4)")
        for p in range(8):
            for r in a_reads2(0, p, 0): A(r)
            if p == 3: A("s_waitcnt lgkmcnt(4)")
        for rho in range(8):
            sid = rho % 2
            nxtA = [x for p in range(8) for x in a_reads2(rho + 1, p, 1 - sid)] if rho < 7 else []
            A("s_waitcnt lgkmcnt(0)" if rho == 0 else "s_waitcnt lgkmcnt(4)")
            for p in range(8):
                for q in range(7 - p, -1, -1):
                    i = p + q
                    cc = "0" if (rho == 0 and p == 0) else v(Y+4*i, 4)
                    if p == 0 and rho > 0 and q <= 3:
                        A(f"s_waitcnt lgkmcnt({7 if rho < 7 else q})")
                    A(f"v_mfma_f32_16x16x32_bf16 {v(Y+4*i,4)}, {v(ATS[sid]+4*p,4)}, {v(BT+4*q,4)}, {cc}")
                    if nxtA: A(nxtA.pop(0))
                if rho < 7: A(b_read(rho + 1, 7 - p))
            if rho == E("CBAR", -1):
                stp(A, "convh")
                A("s_barrier")
    stp(A, "conv1")
    A(f"""
    v_and_b32 v7, 15, v0
    v_lshrrev_b32 v6, 4, v0
    v_lshlrev_b32 v7, 5, v7
    v_lshl_add_u32 v7, v6, 3, v7        ; 32n + 8g
    v_add_u32 v8, s57, v7
    v_add_u32 v8, {4*COPY + 480}, v8
    s_add_u32 s61, s58, {WS_Z}
    """)
    for i in range(8): A(f"ds_read_b64 {v(64+2*i,2)}, v8 offset:{512*i}")
    A("s_waitcnt lgkmcnt(0)\ns_nop 3")
    for i in range(8):
        u0, u1 = 64 + 2*i, 64 + 2*i + 1
        y = Y + 4*i
        A(f"""
        v_lshlrev_b32 v96, 16, v{u0}
        v_and_b32 v97, 0xffff0000, v{u0}
        v_lshlrev_b32 v98, 16, v{u1}
        v_and_b32 v99, 0xffff0000, v{u1}
        v_fma_f32 v{y}, v96, s60, v{y}
        v_fma_f32 v{y+1}, v97, s60, v{y+1}
        v_fma_f32 v{y+2}, v98, s60, v{y+2}
        v_fma_f32 v{y+3}, v99, s60, v{y+3}
        v_cvt_pk_bf16_f32 v{y}, v{y}, v{y+1}
        v_cvt_pk_bf16_f32 v{y+1}, v{y+2}, v{y+3}
        buffer_store_dwordx2 {v(y,2)}, v7, s[{R_WS}:{R_WS+3}], s61 offen offset:{512*i}{SC}""")
    if E("ZBAR", 1): A("s_barrier")
    A("s_waitcnt vmcnt(0)")
    stp(A, "zdrained")
    L_zs = A.newlabel("zs")
    A("s_cmp_lt_u32 s2, 128\ns_cselect_b32 s64, 3, 2")
    lds_arrive_last(A, C_Z, "s64", L_zs, 2, 3)
    A(f"s_and_b32 s65, s2, 7\ns_add_u32 s65, s65, {L_Z}")
    global_arrive(A, "s65", 32, 2, 3)
    A.label(L_zs)
    prof_dump(A, 0, wsptr=P_WS)
    A.label(L_exit)
    A("s_endpgm")

def build():
    hdr = open("cdna_kernels/" + NAME + ".s.ref").read().split("; Override launch geometry")[0]
    A = Asm(); gen(A)
    out = hdr + f"; @launch grid=(256,1,1) block=(704,1,1) lds={LDS}\n"
    out += '.amdgcn_target "amdgcn-amd-amdhsa--gfx950"\n.text\n' + A.text()
    out += f""".section .rodata,"a"
.p2align 6
.amdhsa_kernel {KNAME}
  .amdhsa_next_free_vgpr {VGPRS}
  .amdhsa_next_free_sgpr 102
  .amdhsa_accum_offset {VGPRS}
  .amdhsa_group_segment_fixed_size 0
  .amdhsa_kernarg_size 96
  .amdhsa_user_sgpr_count 2
  .amdhsa_user_sgpr_kernarg_segment_ptr 1
  .amdhsa_system_sgpr_workgroup_id_x 1
  .amdhsa_float_denorm_mode_32 3
.end_amdhsa_kernel
"""
    return out

if __name__ == "__main__":
    open(sys.argv[1], "w").write(build())
```

```python
import os, sys, struct, math
from asmlib import *
from slots import ASSIGN, HEADWORD

NAME = "concat_heads__softmax_full_mha__ssm_conv_h3__prompt"
KNAME = NAME + "_kernel"
E = lambda k, d=0: int(os.environ.get(k, d))

TB = 8320
SEC = 64 * TB
WS_U  = 0x800000
WS_Z  = 0xB00000
WS_O  = 0xE00000
SYNC  = 0x1200000
WS_BYTES = 0x1214000
REC = 3072
CHUNK = 16 * REC
COPY = 4160
CONV_SZ = 4 * COPY + 4608
CONV_BASE = 98304
CNT = CONV_BASE + 3 * CONV_SZ
LDS = CNT + 256
WO_A = 98304
WO_BROW = 340
RED = CHUNK
VGPRS = 168
POLL_MAX = 40000
SC = os.environ.get("SCF", " sc1")
L_U, L_Z, L_O, L_QF = 0, 8, 24, 48
FLG = 8
N_LINES = 288
ZERO_WG = 225
C_QKV, C_U, C_Z, C_O, C_UOK, C_INIT, C_GO, C_KV, C_ISS = 0, 4, 8, 12, 16, 20, 24, 28, 32

def f32bits(x): return struct.unpack("<I", struct.pack("<f", x))[0]
QSCALE = f32bits(20 ** -0.5 * math.log2(math.e))

P_X, P_W, P_WO, P_BQ, P_BK, P_BV, P_SH, P_SK, P_SD, P_OUT, P_DBG, P_WS = 4, 6, 8, 10, 12, 14, 16, 18, 20, 22, 24, 26
R_WS = 28
R_A, R_B, R_C = 32, 36, 44
S_WAVE, S_XCD, S_J, S_RB, S_CB = 40, 41, 42, 43, 48
S_CBK = 48

STAMPS = dict(x.split(":") for x in os.environ.get("STAMPS", "b0:1,gend:2,uok:2,att0:4,att1:5,p3a:6").split(","))
def stp(A, name):
    if name in STAMPS: stamp(A, int(STAMPS[name]))

def poll(A, addr_v, thr_v, tmp, sleep=4, base=P_WS):
    L = A.newlabel("poll"); D = A.newlabel("polld")
    A(f"""
    v_cmp_ne_u32 vcc, 0, v{thr_v}
    s_mov_b32 s66, {POLL_MAX}
    s_nop 1
    s_mov_b64 exec, vcc
    {L}:
    global_load_dword v{tmp}, v{addr_v}, s[{base}:{base+1}] sc1
    s_waitcnt vmcnt(0)
    v_cmp_ge_u32 vcc, v{tmp}, v{thr_v}
    s_nop 3
    s_cmp_eq_u64 vcc, exec
    s_cbranch_scc1 {D}
    s_sleep {sleep}
    s_sub_u32 s66, s66, 1
    s_cmp_lg_u32 s66, 0
    s_cbranch_scc1 {L}
    {D}:
    s_mov_b64 exec, -1
    """)
def poll_flags(A, line0, nlines, t_addr, t_thr, tmp, sleep=4):
    A(f"""
    v_lshlrev_b32 v{t_addr}, 7, v0
    v_add_u32 v{t_addr}, {SYNC + 128*(FLG + line0)}, v{t_addr}
    v_cmp_gt_u32 vcc, {nlines}, v0
    v_mov_b32 v{tmp}, 1
    s_nop 0
    v_cndmask_b32 v{t_thr}, 0, v{tmp}, vcc
    """)
    poll(A, t_addr, t_thr, tmp, sleep)
def lds_set(A, off, t0, t1):
    A(f"""
    v_mov_b32 v{t0}, {CNT + off}
    v_mov_b32 v{t1}, 1
    ds_write_b32 v{t0}, v{t1}
    """)
def lds_add(A, off, t0, t1):
    A(f"""
    v_mov_b32 v{t0}, {CNT + off}
    v_mov_b32 v{t1}, 1
    s_mov_b64 exec, 1
    ds_add_u32 v{t0}, v{t1}
    s_mov_b64 exec, -1
    """)
def lds_wait(A, off, t0, t1, val=1, sleep=1):
    L = A.newlabel("lw"); D = A.newlabel("lwd")
    A(f"""
    v_mov_b32 v{t0}, {CNT + off}
    s_mov_b32 s66, {POLL_MAX*16}
    {L}:
    ds_read_b32 v{t1}, v{t0}
    s_waitcnt lgkmcnt(0)
    v_readfirstlane_b32 s67, v{t1}
    s_nop 3
    s_cmp_ge_u32 s67, {val}
    s_cbranch_scc1 {D}
    s_sleep {sleep}
    s_sub_u32 s66, s66, 1
    s_cmp_lg_u32 s66, 0
    s_cbranch_scc1 {L}
    {D}:
    """)
def lds_arrive_last(A, off, n_s, skip_lab, t0, t1):
    A(f"""
    v_mov_b32 v{t0}, {CNT + off}
    v_mov_b32 v{t1}, 1
    s_mov_b64 exec, 1
    ds_add_rtn_u32 v{t1}, v{t0}, v{t1}
    s_waitcnt lgkmcnt(0)
    s_mov_b64 exec, -1
    v_readfirstlane_b32 s66, v{t1}
    s_nop 3
    s_add_u32 s66, s66, 1
    s_cmp_lg_u32 s66, {n_s}
    s_cbranch_scc1 {skip_lab}
    """)
def global_arrive(A, line_s, total, t0, t1):
    L = A.newlabel("ga")
    A(f"""
    s_lshl_b32 s66, {line_s}, 7
    s_add_u32 s66, s66, {SYNC}
    v_mov_b32 v{t0}, s66
    v_mov_b32 v{t1}, 1
    s_mov_b64 exec, 1
    global_atomic_add v{t1}, v{t0}, v{t1}, s[{P_WS}:{P_WS+1}] sc0 sc1
    s_waitcnt vmcnt(0)
    s_mov_b64 exec, -1
    v_readfirstlane_b32 s66, v{t1}
    s_nop 3
    s_add_u32 s66, s66, 1
    s_cmp_lg_u32 s66, {total}
    s_cbranch_scc1 {L}
    v_add_u32 v{t0}, {128*FLG}, v{t0}
    v_mov_b32 v{t1}, 1
    s_mov_b64 exec, 1
    global_store_dword v{t0}, v{t1}, s[{P_WS}:{P_WS+1}] sc1
    s_mov_b64 exec, -1
    {L}:
    """)

def flag_store(A, line_s, t0, t1):
    A(f"""
    s_lshl_b32 s66, {line_s}, 7
    s_add_u32 s66, s66, {SYNC}
    v_mov_b32 v{t0}, s66
    v_mov_b32 v{t1}, 1
    s_mov_b64 exec, 1
    global_store_dword v{t0}, v{t1}, s[{P_WS}:{P_WS+1}] sc1
    s_mov_b64 exec, -1
    """)
def poll2(A, a0, a1, n1, t0, t1, sleep):
    L = A.newlabel("poll2"); D = A.newlabel("poll2d")
    A(f"""
    s_mov_b32 s66, {POLL_MAX}
    {L}:
    global_load_dword v{t0}, v{a0}, s[{P_WS}:{P_WS+1}] sc1
    global_load_dword v{t1}, v{a1}, s[{P_WS}:{P_WS+1}] sc1
    s_waitcnt vmcnt(0)
    v_min_u32 v{t0}, v{t0}, v{t1}
    v_cmp_le_u32 vcc, 1, v{t0}
    s_nop 3
    s_cmp_eq_u64 vcc, -1
    s_cbranch_scc1 {D}
    s_sleep {sleep}
    s_sub_u32 s66, s66, 1
    s_cmp_lg_u32 s66, 0
    s_cbranch_scc1 {L}
    {D}:
    """)

def gen(A):
    A(f".globl {KNAME}")
    A(".p2align 8")
    A(f".type {KNAME},@function")
    A.label(KNAME)
    L_exit, L_nog, L_prod, L_bw, L_heads, L_conv = "L_exit", "L_nog", "L_prod", "L_bw", "L_heads", "L_conv"
    A(f"""
    s_cmp_ge_u32 s2, 256
    s_cbranch_scc1 {L_exit}
    s_load_dwordx16 s[4:19], s[0:1], 0
    s_load_dwordx8 s[20:27], s[0:1], 64
    v_lshrrev_b32 v1, 6, v0
    v_and_b32 v0, 63, v0
    v_readfirstlane_b32 s{S_WAVE}, v1
    s_and_b32 s{S_XCD}, s2, 7
    s_lshr_b32 s{S_J}, s2, 3
    s_lshr_b32 s{S_RB}, s{S_XCD}, 1
    s_lshl_b32 s{S_RB}, s{S_RB}, 2
    s_and_b32 s49, s{S_J}, 3
    s_add_u32 s{S_RB}, s{S_RB}, s49        ; rb
    s_and_b32 s{S_CB}, s{S_XCD}, 1
    s_lshl_b32 s{S_CB}, s{S_CB}, 3
    s_lshr_b32 s49, s{S_J}, 2
    s_add_u32 s{S_CB}, s{S_CB}, s49        ; cb
    s_cmp_lg_u32 s{S_WAVE}, 0
    s_cbranch_scc1 L_noldsinit
    v_mov_b32 v2, {CNT}
    v_mov_b32 v4, 0
    v_mov_b32 v5, 0
    v_mov_b32 v6, 0
    v_mov_b32 v7, 0
    ds_write_b128 v2, v[4:7]
    ds_write_b128 v2, v[4:7] offset:16
    ds_write_b128 v2, v[4:7] offset:32
    L_noldsinit:
    s_waitcnt lgkmcnt(0)
    """)
    EARLY = E("EARLY", 1)
    if not EARLY: A("s_barrier")
    srd(A, R_WS, P_WS, WS_BYTES)
    prof_init(A)
    A(f"""
    s_cmp_ge_u32 s{S_WAVE}, 8
    s_cbranch_scc1 {L_bw}
    s_cmp_ge_u32 s{S_CB}, 15
    s_cbranch_scc1 {L_nog}
    s_cmp_ge_u32 s{S_WAVE}, 4
    s_cbranch_scc1 {L_prod}
    """)
    slot_of = lambda st: (st + 2) % 3
    if EARLY: A("s_barrier")

    A(f"""
    s_lshr_b32 s56, s{S_WAVE}, 1       ; wr
    s_and_b32 s57, s{S_WAVE}, 1        ; wc
    v_and_b32 v2, 31, v0           ; n
    v_lshrrev_b32 v3, 5, v0        ; h
    v_bfe_u32 v4, v0, 1, 3         ; (l>>1)&7
    s_lshl_b32 s54, s56, 6
    v_add_u32 v5, s54, v2
    v_lshlrev_b32 v5, 7, v5        ; token_local*128
    """)
    for ks in range(4):
        A(f"""
        v_add_u32 v6, {2*ks}, v3
        v_xor_b32 v6, v6, v4
        v_lshl_add_u32 v{16+ks}, v6, 4, v5
        v_add_u32 v{20+ks}, 0x10000, v{16+ks}""")
    def w_addr():
        A(f"""
        v_lshrrev_b32 v2, 4, v0        ; g
        v_bfe_u32 v3, v0, 2, 2         ; r
        v_and_b32 v4, 3, v0            ; c4
        v_lshrrev_b32 v5, 1, v2
        v_lshl_add_u32 v5, v5, 3, v3   ; k_local
        v_lshlrev_b32 v5, 8, v5
        v_add_u32 v5, 16384, v5
        v_and_b32 v6, 1, v2
        v_lshl_add_u32 v6, v6, 2, v4   ; rg = 4*(g&1) + c4
        v_mul_u32_u24 v6, 5, v6
        v_lshlrev_b32 v7, 2, v3        ; 4r
        """)
        for ft in range(2):
            A(f"""
            v_lshrrev_b64 v[8:9], v6, s[{60+2*ft}:{61+2*ft}]
            v_and_b32 v8, 31, v8
            v_lshrrev_b32 v9, 1, v8
            v_xor_b32 v9, v9, v7
            v_and_b32 v8, 1, v8
            v_lshlrev_b32 v8, 3, v8
            v_lshl_add_u32 v8, v9, 4, v8
            v_add_u32 v{24+ft}, v5, v8
            v_add_u32 v{26+ft}, 0x10000, v{24+ft}""")
    FR = [dict(X=[32, 36], W=[40, 44]), dict(X=[48, 52], W=[56, 60]), dict(X=[132, 136], W=[140, 144])]
    ACC = lambda ft, tt: 64 + 16 * (2 * ft + tt)
    def reads(st, ks, setid):
        slot = slot_of(st); hi = slot == 2
        so = 0 if hi else slot * 32768
        xa = (20 if hi else 16) + ks; wa = (26 if hi else 24); F = FR[setid]
        return [f"ds_read_b128 {v(F['X'][0],4)}, v{xa} offset:{so}",
                f"ds_read_b64_tr_b16 {v(F['W'][0],2)}, v{wa} offset:{so + ks*4096}",
                f"ds_read_b64_tr_b16 {v(F['W'][0]+2,2)}, v{wa} offset:{so + ks*4096 + 1024}",
                f"ds_read_b128 {v(F['X'][1],4)}, v{xa} offset:{so + 4096}",
                f"ds_read_b64_tr_b16 {v(F['W'][1],2)}, v{wa+1} offset:{so + ks*4096}",
                f"ds_read_b64_tr_b16 {v(F['W'][1]+2,2)}, v{wa+1} offset:{so + ks*4096 + 1024}"]
    def mfmas(setid, first, vmode):
        F = FR[setid]; m = []
        for (ft, tt) in [(0, 0), (0, 1), (1, 0), (1, 1)]:
            d = ACC(ft, tt); c = "0" if first else v(d, 16)
            a_, b_ = (F['X'][tt], F['W'][ft]) if vmode else (F['W'][ft], F['X'][tt])
            m.append(f"v_mfma_f32_32x32x16_bf16 {v(d,16)}, {v(a_,4)}, {v(b_,4)}, {c}")
        return m
    def main_loop(vmode):
        A("s_barrier")
        stp(A, "b0")
        if not E("G3", 0):
            for r in reads(0, 0, 0): A(r)
            n = 0
            for st in range(10):
                for ks in range(4):
                    setid = n % 2
                    m = mfmas(setid, n == 0, vmode)
                    A("s_waitcnt lgkmcnt(0)")
                    if ks == 3 and st < 9:
                        A("s_barrier")
                        stp(A, f"gb{st+1}")
                    A(m[0])
                    if ks < 3:
                        for r in reads(st, ks + 1, 1 - setid): A(r)
                    elif st < 9:
                        for r in reads(st + 1, 0, 1 - setid): A(r)
                    A(m[1]); A(m[2]); A(m[3])
                    n += 1
        else:
            for r in reads(0, 0, 0): A(r)
            for r in reads(0, 1, 1): A(r)
            for n in range(40):
                st, ks = divmod(n, 4)
                m = mfmas(n % 3, n == 0, vmode)
                if ks == 2 and st < 9:
                    A("s_waitcnt lgkmcnt(0)\ns_barrier")
                    stp(A, f"gb{st+1}")
                else:
                    A(f"s_waitcnt lgkmcnt({6 if n + 1 < 40 else 0})")
                A(m[0])
                if n + 2 < 40:
                    st2, ks2 = divmod(n + 2, 4)
                    for r in reads(st2, ks2, (n + 2) % 3): A(r)
                A(m[1]); A(m[2]); A(m[3])
        stp(A, "gend")
        A("s_nop 15")
    L_vpath = A.newlabel("vpath"); L_gsig = A.newlabel("gsig"); L_vdone = A.newlabel("vdone")
    A(f"""
    s_cmp_ge_u32 s{S_CB}, 10
    s_cbranch_scc1 {L_vpath}
    s_cmp_ge_u32 s{S_CB}, 5
    s_cselect_b32 s55, 5, 0
    s_sub_u32 s55, s{S_CB}, s55        ; cb'
    s_lshl_b32 s55, s55, 1
    s_add_u32 s55, s55, s57
    """)
    for var in range(10):
        cbp, wc = divmod(var, 2); T = []
        for ft in range(2):
            tab = [0]*8
            for si, it in enumerate(ASSIGN[cbp][2*wc + ft]):
                ap, h = divmod(si, 2)
                tab[4*ap + h] = it[1]; tab[4*ap + 2 + h] = it[2]
            T.append(sum(g << (5*i) for i, g in enumerate(tab)))
        nxt = A.newlabel("var")
        A(f"""
        s_cmp_lg_u32 s55, {var}
        s_cbranch_scc1 {nxt}
        s_mov_b32 s60, {hex(T[0] & 0xffffffff)}
        s_mov_b32 s61, {hex(T[0] >> 32)}
        s_mov_b32 s62, {hex(T[1] & 0xffffffff)}
        s_mov_b32 s63, {hex(T[1] >> 32)}
        s_branch {L_vdone}
        {nxt}:""")
    A(f"""
    s_mov_b64 s[60:61], 0
    s_mov_b64 s[62:63], 0
    {L_vdone}:
    """)
    w_addr()
    A(f"""
    s_mov_b32 s58, {hex(QSCALE)}
    s_cmp_ge_u32 s{S_CB}, 5
    s_cmov_b32 s58, 0x3f800000
    s_mov_b32 s59, s58
    v_lshlrev_b32 v128, 4, v0
    s_lshl_b32 s54, s{S_RB}, 2
    s_lshl_b32 s55, s56, 1
    s_add_u32 s54, s54, s55
    s_lshl_b32 s55, s{S_CB}, 6
    s_add_u32 s54, s54, s55
    s_mul_i32 s54, s54, {TB}
    s_lshl_b32 s55, s57, 12        ; wc*4096
    s_add_u32 s64, s54, s55
    s_add_u32 s65, s64, {TB}
    """)
    main_loop(False)
    for ft in range(2):
        for tt in range(2):
            d = ACC(ft, tt)
            for i in range(0, 16, 2):
                A(f"v_pk_mul_f32 {v(d+i,2)}, {v(d+i,2)}, s[58:59]")
            for ap in range(2):
                for i in range(4):
                    A(f"v_cvt_pk_bf16_f32 v{d+8*ap+i}, v{d+8*ap+2*i}, v{d+8*ap+2*i+1}")
                A(f"buffer_store_dwordx4 {v(d+8*ap,4)}, v128, s[{R_WS}:{R_WS+3}], s{64+tt} offen offset:{ft*2048 + ap*1024}{SC}")
    A(f"s_branch {L_gsig}")
    A.label(L_vpath)
    nat = sum(i << (5*i) for i in range(8)); rep = sum(1 << (5*i) for i in range(8))
    A(f"""
    s_lshl_b32 s54, s57, 4
    s_mul_i32 s55, s54, {hex(rep & 0xffffffff)}
    s_mul_hi_u32 s61, s54, {hex(rep & 0xffffffff)}
    s_mul_i32 s66, s54, {hex(rep >> 32)}
    s_add_u32 s61, s61, s66
    s_add_u32 s60, s55, {hex(nat & 0xffffffff)}
    s_addc_u32 s61, s61, {hex(nat >> 32)}
    s_add_u32 s62, s60, {hex((8*rep) & 0xffffffff)}
    s_addc_u32 s63, s61, {hex((8*rep) >> 32)}
    """)
    w_addr()
    A(f"""
    v_lshlrev_b32 v128, 4, v0
    s_lshl_b32 s54, s{S_RB}, 2
    s_lshl_b32 s55, s{S_CB}, 6
    s_add_u32 s54, s54, s55
    s_add_u32 s55, s54, s{S_WAVE}
    s_mul_i32 s55, s55, {TB}
    s_add_u32 s58, s55, 8192
    s_lshl_b32 s55, s56, 1
    s_add_u32 s54, s54, s55
    s_mul_i32 s54, s54, {TB}
    s_lshl_b32 s55, s57, 11
    s_add_u32 s62, s54, s55
    s_add_u32 s63, s62, 4096
    s_add_u32 s64, s62, {TB}
    s_add_u32 s65, s64, 4096
    """)
    main_loop(True)
    for ft in range(2):
        for tt in range(2):
            d = ACC(ft, tt)
            for f in range(2):
                for i in range(4):
                    A(f"v_cvt_pk_bf16_f32 v{d+8*f+i}, v{d+8*f+2*i}, v{d+8*f+2*i+1}")
                A(f"buffer_store_dwordx4 {v(d+8*f,4)}, v128, s[{R_WS}:{R_WS+3}], s{62+2*tt+f} offen offset:{ft*1024}{SC}")
    A(f"""
    v_cmp_eq_u32 vcc, 0, v0
    v_mov_b32 v36, 0x3f803f80
    s_nop 0
    v_cndmask_b32 v32, 0, v36, vcc
    v_cndmask_b32 v33, 0, v36, vcc
    v_cndmask_b32 v34, 0, v36, vcc
    v_cndmask_b32 v35, 0, v36, vcc
    s_mov_b64 exec, 15
    buffer_store_dwordx4 v[32:35], v128, s[{R_WS}:{R_WS+3}], s58 offen{SC}
    s_mov_b64 exec, -1
    """)
    A.label(L_gsig)
    stp(A, "gstored")
    A("s_waitcnt vmcnt(0)")
    stp(A, "gdrained")
    L_qs = A.newlabel("qs")
    lds_arrive_last(A, C_QKV, 4, L_qs, 2, 3)
    lds_wait(A, C_INIT, 2, 3)
    A(f"""
    s_lshl_b32 s65, s{S_CB}, 4
    s_add_u32 s65, s65, s{S_RB}
    s_add_u32 s65, s65, {L_QF}
    """)
    flag_store(A, "s65", 2, 3)
    A.label(L_qs)
    stp(A, "gsig")
    A(f"s_branch {L_heads}")

    A.label(L_prod)
    srd(A, R_A, P_X, 2048 * 640 * 2)
    srd(A, R_B, P_W, 640 * 1920 * 2)
    VXE, VXO, VW = 10, 11, 12
    A(f"""
    s_sub_u32 s55, s{S_WAVE}, 4            ; pw
    s_lshl_b32 s49, s55, 12
    s_mul_i32 s53, s55, 61440
    s_and_b32 s50, s{S_RB}, 3
    s_mul_i32 s50, s50, 3
    s_add_u32 s50, s50, s{S_CB}
    s_cmp_ge_u32 s50, 20
    s_cselect_b32 s51, 20, 0
    s_sub_u32 s50, s50, s51
    s_cmp_ge_u32 s50, 10
    s_cselect_b32 s51, 10, 0
    s_sub_u32 s50, s50, s51
    """)
    if not E("ROT", 1): A("s_mov_b32 s50, 0")
    A(f"""
    s_lshl_b32 s51, s50, 7
    s_mul_i32 s52, s50, 245760
    s_add_u32 s52, s52, s53
    v_lshrrev_b32 v2, 3, v0
    v_lshrrev_b32 v3, 4, v0
    v_and_b32 v4, 7, v0
    v_xor_b32 v4, v4, v3
    s_lshl_b32 s54, s{S_RB}, 7
    s_lshl_b32 s55, s55, 5
    s_add_u32 s54, s54, s55
    v_add_u32 v2, s54, v2
    v_mul_u32_u24 v2, 1280, v2
    v_lshl_add_u32 v{VXE}, v4, 4, v2
    v_xor_b32 v{VXO}, 64, v{VXE}
    v_and_b32 v4, 15, v0
    v_lshlrev_b32 v5, 2, v3
    v_xor_b32 v4, v4, v5
    v_mul_u32_u24 v5, 3840, v3
    v_lshl_add_u32 v{VW}, v4, 4, v5
    s_lshl_b32 s54, s{S_CB}, 8
    v_add_u32 v{VW}, s54, v{VW}
    """)
    def dma_stage(st):
        so = slot_of(st) * 32768
        for i in range(4):
            A(f"""
            s_add_u32 m0, s49, {so + i*1024}
            s_add_u32 s54, s51, {i*10240}
            buffer_load_dwordx4 v{VXO if i % 2 else VXE}, s[{R_A}:{R_A+3}], s54 offen lds""")
        for i in range(4):
            A(f"""
            s_add_u32 m0, s49, {so + 16384 + i*1024}
            s_add_u32 s54, s52, {i*15360}
            buffer_load_dwordx4 v{VW}, s[{R_B}:{R_B+3}], s54 offen lds""")
        A("""
        s_add_u32 s50, s50, 1
        s_cmp_eq_u32 s50, 10
        s_cselect_b32 s50, 0, s50
        s_lshl_b32 s51, s50, 7
        s_mul_i32 s52, s50, 245760
        s_add_u32 s52, s52, s53""")
    for st in range(3): dma_stage(st)
    if EARLY: A("s_barrier")
    A("s_waitcnt vmcnt(16)\ns_barrier")
    stp(A, "b0")
    for s_ in range(1, 8):
        A("s_waitcnt vmcnt(8)\ns_barrier")
        dma_stage(s_ + 2)
    A("s_waitcnt vmcnt(8)\ns_barrier")
    A("s_waitcnt vmcnt(0)\ns_barrier")
    stp(A, "b9")
    A(f"s_branch {L_heads}")

    A.label(L_nog)
    if EARLY: A("s_barrier")
    L_nz = A.newlabel("nz")
    A(f"""
    s_cmp_lg_u32 s2, {ZERO_WG}
    s_cbranch_scc1 {L_nz}
    v_lshlrev_b32 v2, 4, v0
    v_add_u32 v2, {SYNC}, v2
    v_mov_b32 v4, 0
    v_mov_b32 v5, 0
    v_mov_b32 v6, 0
    v_mov_b32 v7, 0
    s_mul_i32 s54, s{S_WAVE}, {5*1024}
    """)
    for i in range(5):
        A(f"buffer_store_dwordx4 v[4:7], v2, s[{R_WS}:{R_WS+3}], s54 offen sc1\ns_add_u32 s54, s54, 1024")
    A("s_waitcnt vmcnt(0)")
    lds_arrive_last(A, C_KV + 8, 8, L_nz, 2, 3)
    A(f"""
    v_mov_b32 v2, 0
    v_mov_b32 v3, 1
    s_mov_b64 exec, 1
    global_store_dword v2, v3, s[{P_DBG}:{P_DBG+1}] sc1
    s_mov_b64 exec, -1
    {L_nz}:
    s_branch L_nogtask
    L_nogdone:
    """)
    A(f"""
    v_mov_b32 v2, {CNT + C_QKV}
    v_mov_b32 v3, 4
    ds_write_b32 v2, v3
    """)

    A.label(L_heads)
    Q1, Q2 = 4, 8
    O = 16
    S = [32, 48]
    P = [64, 72]
    KA, KB, V0, V1 = 80, 84, 88, 92
    AK = [96, 99]; AK2 = [97, 100]; AV = [98, 101]
    KA0, KB0 = 104, 108
    WOV = 120
    VG = [126, 127, 128]; VKP, VKS, VVF = 129, 130, 131
    def gather_setup(VG=VG, VKP=VKP, VKS=VKS, VVF=VVF, WOV=WOV):
        A(f"""
        s_lshl_b32 s43, s{S_XCD}, 2
        s_lshr_b32 s44, s{S_J}, 3
        s_add_u32 s43, s43, s44        ; head
        s_and_b32 s44, s{S_J}, 7       ; qb
        s_lshl_b32 s46, s44, 3
        s_add_u32 s46, s46, s{S_WAVE}  ; q tile
        s_mov_b32 s47, {hex(HEADWORD[0])}
        """)
        for h in range(1, 32):
            A(f"s_cmp_eq_u32 s43, {h}\ns_cmov_b32 s47, {hex(HEADWORD[h])}")
        for k, dst in enumerate((50, 51, 52)):
            A(f"""
            s_bfe_u32 s54, s47, {hex((3 << 16) | (7*k))}
            s_bfe_u32 s55, s47, {hex((4 << 16) | (7*k + 3))}
            s_mul_i32 s54, s54, {SEC}
            s_lshl_b32 s55, s55, 9
            s_add_u32 s{dst}, s54, s55""")
        A(f"""
        v_and_b32 v3, 31, v0           ; n
        v_lshrrev_b32 v12, 5, v0       ; h
        v_lshlrev_b32 v13, 4, v3       ; n*16
        v_cmp_eq_u32 vcc, 0, v12
        v_mov_b32 v14, s50
        v_mov_b32 v15, s51
        v_cndmask_b32 v14, v15, v14, vcc
        v_add_u32 v{VKP}, v14, v13
        s_and_b32 s54, s43, 1
        s_lshl_b32 s54, s54, 3
        s_add_u32 s54, s54, s52
        v_add_u32 v{VKS}, s54, v13
        v_add_u32 v{VG[0]}, {5*SEC + 2*TB}, v{VKP}
        s_mul_i32 s53, s43, 20
        s_add_u32 s45, s53, 19
        s_lshr_b32 s45, s45, 7
        s_add_u32 s45, s45, 10
        s_mul_i32 s45, s45, {SEC}
        s_add_u32 s45, s45, 8192
        """)
        def vchunk(dst, seg_v, m_v):
            A(f"""
            v_add_u32 v5, s53, v{m_v}          ; F
            v_lshrrev_b32 v6, 7, v5
            v_add_u32 v6, 10, v6
            v_mul_u32_u24 v6, {SEC // 64}, v6
            v_lshlrev_b32 v6, 6, v6
            v_bfe_u32 v7, v5, 5, 2
            v_lshlrev_b32 v7, 10, v7
            v_add_u32 v6, v6, v7
            v_and_b32 v7, 31, v5
            v_lshl_add_u32 v6, v7, 4, v6
            v_lshrrev_b32 v7, 1, v{seg_v}
            v_lshl_add_u32 v6, v7, 12, v6
            v_and_b32 v7, 1, v{seg_v}
            v_lshl_add_u32 v6, v7, 9, v6
            v_subrev_u32 v7, 20, v{m_v}
            v_and_b32 v7, 3, v7
            v_lshlrev_b32 v7, 4, v7
            v_add_u32 v7, s45, v7
            v_cmp_gt_u32 vcc, 20, v{m_v}
            s_nop 1
            v_cndmask_b32 v{dst}, v7, v6, vcc
            """)
        A("""
        v_cmp_gt_u32 vcc, 56, v0
        v_subrev_u32 v8, 32, v0
        v_subrev_u32 v9, 56, v0
        v_cndmask_b32 v8, v9, v8, vcc          ; m
        v_mov_b32 v9, 1
        v_mov_b32 v10, 0
        v_cndmask_b32 v9, v9, v10, vcc         ; seg
        """)
        vchunk(11, 9, 8)
        A(f"""
        v_add_u32 v6, s52, v13
        v_add_u32 v6, {5*SEC + 2*TB}, v6
        v_cmp_gt_u32 vcc, 32, v0
        s_nop 1
        v_cndmask_b32 v{VG[1]}, v11, v6, vcc
        v_cmp_gt_u32 vcc, 16, v0
        v_cmp_gt_u32 s[54:55], 40, v0
        v_subrev_u32 v8, 40, v0
        v_subrev_u32 v10, 16, v0
        v_cndmask_b32 v8, v8, v10, s[54:55]
        v_add_u32 v10, 8, v0
        v_cndmask_b32 v8, v8, v10, vcc         ; m
        v_mov_b32 v9, 3
        v_mov_b32 v10, 2
        v_cndmask_b32 v9, v9, v10, s[54:55]
        v_mov_b32 v10, 1
        v_cndmask_b32 v9, v9, v10, vcc         ; seg
        """)
        vchunk(VG[2], 9, 8)
        A("v_mov_b32 v8, v3\nv_mov_b32 v9, v12")
        vchunk(VVF, 9, 8)
        srd(A, R_A, P_WO, 640 * 640 * 2)
        A(f"s_and_b32 s52, s{S_J}, 7\ns_mul_i32 s52, s52, 160")
        for b in range(5):
            A(f"""
            v_add_u32 v5, {64*b}, v0
            v_mul_u32_u24 v6, 52429, v5
            v_lshrrev_b32 v6, 19, v6
            v_mul_u32_u24 v7, 10, v6
            v_sub_u32 v7, v5, v7
            v_mul_u32_u24 v6, 1280, v6
            v_lshl_add_u32 v6, v7, 4, v6
            v_add_u32 v{WOV+b}, s52, v6""")

    gather_setup()
    A(f"""
    s_mul_i32 s53, s{S_WAVE}, 5120
    s_mul_i32 s62, s{S_WAVE}, 40960
    s_mov_b32 s60, 0
    v_lshlrev_b32 v2, 4, v0
    v_mul_u32_u24 v13, 384, v12
    v_lshl_add_u32 v13, v3, 4, v13
    v_add_u32 v{AV[0]}, 1536, v13
    v_mov_b32 v{AK[0]}, v2
    s_and_b32 s54, s43, 1
    s_lshl_b32 s54, s54, 3
    s_add_u32 s54, s54, 1024
    v_lshlrev_b32 v1, 4, v3
    v_add_u32 v{AK2[0]}, s54, v1
    v_add_u32 v{AV[1]}, {CHUNK}, v{AV[0]}
    v_add_u32 v{AK[1]}, {CHUNK}, v{AK[0]}
    v_add_u32 v{AK2[1]}, {CHUNK}, v{AK2[0]}
    v_cmp_lt_u32 vcc, 20, v3
    v_mov_b32 v5, 0x30000
    v_mov_b32 v{Q2+2}, 0
    v_cndmask_b32 v{AV[0]}, v{AV[0]}, v5, vcc
    v_cndmask_b32 v{AV[1]}, v{AV[1]}, v5, vcc
    v_mov_b32 v{Q2+3}, 0
    v_mov_b32 v{KB+2}, 0
    v_mov_b32 v{KB+3}, 0
    v_mov_b32 v{KB0+2}, 0
    v_mov_b32 v{KB0+3}, 0
    v_mov_b32 v164, 0x7ff00000
    s_mul_i32 s45, s46, {TB}
    s_mul_i32 s49, s{S_WAVE}, {REC}
    s_mul_i32 s50, s{S_WAVE}, {TB}
    """)
    stp(A, "hset")
    L_gow = A.newlabel("gow"); L_go = A.newlabel("go")
    A(f"""
    s_cmp_lg_u32 s{S_WAVE}, 0
    s_cbranch_scc1 {L_gow}
    """)
    lds_wait(A, C_QKV, 5, 6, val=4)
    lds_wait(A, C_INIT, 5, 6)
    A(f"""
    s_mul_i32 s54, s43, 5
    s_add_u32 s55, s54, 4
    s_lshr_b32 s54, s54, 5             ; c0
    s_lshr_b32 s55, s55, 5             ; c1
    v_bfe_u32 v5, v0, 4, 1
    v_cmp_eq_u32 vcc, 1, v5
    v_mov_b32 v6, s54
    v_mov_b32 v7, s55
    v_cndmask_b32 v6, v6, v7, vcc      ; c0 / c1
    v_lshrrev_b32 v5, 5, v0
    v_mul_u32_u24 v5, 5, v5
    v_add_u32 v5, v5, v6
    v_add_u32 v6, 10, v6
    v_and_b32 v7, 15, v0
    v_lshl_add_u32 v5, v5, 4, v7
    v_lshl_add_u32 v6, v6, 4, v7
    v_lshlrev_b32 v5, 7, v5
    v_lshlrev_b32 v6, 7, v6
    v_add_u32 v5, {SYNC + 128*L_QF}, v5
    v_add_u32 v6, {SYNC + 128*L_QF}, v6
    """)
    poll2(A, 5, 6, 64, 7, 8, E("PS_QKV", 2))
    lds_set(A, C_GO, 5, 6)
    A(f"s_branch {L_go}")
    A.label(L_gow)
    lds_wait(A, C_GO, 5, 6)
    A.label(L_go)
    stp(A, "go")
    A(f"""
    buffer_load_dwordx4 {v(Q1,4)}, v{VKP}, s[{R_WS}:{R_WS+3}], s45 offen{SC}
    buffer_load_dwordx2 {v(Q2,2)}, v{VKS}, s[{R_WS}:{R_WS+3}], s45 offen{SC}
    s_mov_b32 s48, {5*SEC}
    buffer_load_dwordx4 {v(KA0,4)}, v{VKP}, s[{R_WS}:{R_WS+3}], s48 offen{SC}
    buffer_load_dwordx2 {v(KB0,2)}, v{VKS}, s[{R_WS}:{R_WS+3}], s48 offen{SC}
    s_mov_b32 s48, {5*SEC + TB}
    buffer_load_dwordx4 {v(KA,4)}, v{VKP}, s[{R_WS}:{R_WS+3}], s48 offen{SC}
    buffer_load_dwordx2 {v(KB,2)}, v{VKS}, s[{R_WS}:{R_WS+3}], s48 offen{SC}
    """)
    def kv_piece(chunk, i):
        slot = chunk % 2; rr, part = divmod(i, 3)
        return f"""
        s_add_u32 m0, s49, {slot*CHUNK + rr*8*REC + part*1024}
        s_add_u32 s51, s50, {(chunk*16 + rr*8)*TB}
        buffer_load_dwordx4 v{VG[part]}, s[{R_WS}:{R_WS+3}], s51 offen{SC} lds"""
    for i in range(6): A(kv_piece(0, i))
    if not E("C1LATE", 1):
        for i in range(6): A(kv_piece(1, i))
    A(f"""
    v_cmp_gt_u32 vcc, 32, v0
    s_waitcnt vmcnt({0 if E("C1LATE", 1) else 6})
    s_nop 0
    v_cndmask_b32 v{Q2}, 0, v{Q2}, vcc
    v_cndmask_b32 v{Q2+1}, 0, v{Q2+1}, vcc
    """)
    stp(A, "kvok")
    lds_add(A, C_KV, 12, 13)
    lds_wait(A, C_KV, 12, 13, val=8, sleep=0)
    stp(A, "att0")

    def wo_piece(kind, b):
        if kind == 0:
            return f"""
            s_add_u32 m0, s53, {WO_A + b*1024}
            s_nop 0
            buffer_load_dwordx4 v{WOV+b}, s[{R_A}:{R_A+3}], s62 offen lds"""
        if kind == 2:
            return f"""
            s_add_u32 m0, s53, {b*1024}
            s_add_u32 s51, s62, {WO_BROW*1280}
            buffer_load_dwordx4 v{WOV+b}, s[{R_A}:{R_A+3}], s51 offen lds"""
        lab = A.newlabel("wos")
        if kind == 1: lim, ldso, go = 3, WO_A + 8*5120, 8*40960
        else: lim, ldso, go = (2 if b < 2 else 1), 8*5120, WO_BROW*1280 + 8*40960
        return f"""
            s_cmp_ge_u32 s{S_WAVE}, {lim}
            s_cbranch_scc1 {lab}
            s_add_u32 m0, s53, {ldso + b*1024}
            s_add_u32 s51, s62, {go}
            buffer_load_dwordx4 v{WOV+b}, s[{R_A}:{R_A+3}], s51 offen lds
            {lab}:"""
    def qk2(Sd, Kr):
        if E("K8", 1): return f"v_mfma_f32_32x32x8bf16_1k {v(Sd,16)}, {v(Kr,2)}, {v(Q2,2)}, {v(Sd,16)}"
        return f"v_mfma_f32_32x32x16_bf16 {v(Sd,16)}, {v(Kr,4)}, {v(Q2,4)}, {v(Sd,16)}"
    PZ, PQ, PO = 132, 148, 164
    def post_task(skip):
        L_t3 = A.newlabel("t3"); L_tgo = A.newlabel("tgo")
        A(f"""
        s_cmp_eq_u32 s{S_WAVE}, 0
        s_cbranch_scc1 {skip}
        s_cmp_ge_u32 s{S_WAVE}, 4
        s_cbranch_scc1 {skip}
        s_cmp_eq_u32 s{S_WAVE}, 3
        s_cbranch_scc1 {L_t3}
        s_lshl_b32 s56, s2, 1
        s_sub_u32 s57, s{S_WAVE}, 1
        s_add_u32 s56, s56, s57
        s_branch {L_tgo}
        {L_t3}:
        s_cmp_ge_u32 s2, 128
        s_cbranch_scc1 {skip}
        s_add_u32 s56, s2, 512
        {L_tgo}:
        """)
    def post_probe():
        A(f"""
        v_min_u32 v12, 7, v0
        v_lshlrev_b32 v12, 7, v12
        v_add_u32 v12, {SYNC + 128*(FLG + L_Z)}, v12
        global_load_dword v166, v12, s[{P_WS}:{P_WS+1}] sc1
        """)
    def post_prefetch():
        Ls = A.newlabel("pps"); Lok = A.newlabel("ppok")
        post_task(Ls)
        A(f"""
        v_cmp_le_u32 vcc, 1, v166
        s_mul_i32 s57, s56, 52429
        s_lshr_b32 s57, s57, 19
        s_mul_i32 s58, s57, 10
        s_sub_u32 s58, s56, s58
        s_cmp_eq_u64 vcc, -1
        s_cbranch_scc1 {Lok}
        """)
        poll_flags(A, L_Z, 8, 12, 13, 14)
        A.label(Lok)
        srd(A, R_B, P_BQ, 2048 * 640 * 2)
        A(f"""
        v_and_b32 v12, 7, v0
        v_lshrrev_b32 v13, 3, v0
        s_lshl_b32 s54, s58, 6
        v_lshl_add_u32 v12, v12, 3, s54
        s_lshl_b32 s55, s57, 5
        v_lshl_add_u32 v13, v13, 2, s55
        v_mul_u32_u24 v14, 1280, v13
        v_lshl_add_u32 v14, v12, 1, v14
        v_mul_u32_u24 v15, 2560, v13
        v_lshl_add_u32 v15, v12, 1, v15
        v_add_u32 v{PO}, 1280, v15
        v_lshlrev_b32 v15, 12, v12
        v_lshl_add_u32 v15, v13, 1, v15
        v_add_u32 v{PO+1}, {WS_Z}, v15
        """)
        for j in range(4):
            A(f"buffer_load_dwordx4 {v(PQ+4*j,4)}, v14, s[{R_B}:{R_B+3}], 0 offen offset:{1280*j}")
        for i in range(8):
            A(f"s_mov_b32 s54, {i*4096}")
            A(f"buffer_load_dwordx2 {v(PZ+2*i,2)}, v{PO+1}, s[{R_WS}:{R_WS+3}], s54 offen{SC}")
        A.label(Ls)
    A(f"v_mfma_f32_32x32x16_bf16 {v(S[0],16)}, {v(KA0,4)}, {v(Q1,4)}, 0")
    A(qk2(S[0], KB0))
    A("s_nop 7\ns_nop 7")
    for J in range(64):
        c = J // 16; slot = c % 2; j = J % 16
        Sc, Sn = S[J % 2], S[(J + 1) % 2]
        Pc, Pp = P[J % 2], P[(J + 1) % 2]
        off = j * REC
        if j == 0 and J > 0:
            stp(A, f"attpre{J}")
            if J == 48 and E("POSTPF", 1): post_probe()
            A(f"s_waitcnt vmcnt({5 if (J == 32 and not E('SRV', 1)) else 0}) lgkmcnt(0)\ns_barrier")
            stp(A, f"attb{J}")
            if J == 48 and E("POSTPF", 1): post_prefetch()
        EX = lambda i: f"v_exp_f32 v{Sc+i}, v{Sc+i}"
        CV = lambda i: f"v_cvt_pk_bf16_f32 v{Pc+i}, v{Sc+2*i}, v{Sc+2*i+1}"
        G = [(EX(0),EX(1),EX(2),EX(3),CV(0),CV(1)), (EX(4),EX(5),EX(6),EX(7),CV(2),CV(3)), (EX(8),EX(9),EX(10),EX(11),CV(4),CV(5)), (EX(12),EX(13),EX(14),EX(15),CV(6),CV(7))]
        if j in (0, 9, 13, 15):
            A(f"s_setprio {dict([(0,3),(9,2),(13,1),(15,0)])[j]}")
        if J > 0 and j != 0: A("s_waitcnt lgkmcnt(2)")
        if J < 63: A(f"v_mfma_f32_32x32x16_bf16 {v(Sn,16)}, {v(KA,4)}, {v(Q1,4)}, 0")
        if J < 62: A(f"ds_read_b128 {v(KA,4)}, v{AK[slot]} offset:{off}")
        for x in G[0]: A(x)
        if J < 63: A(qk2(Sn, KB))
        if J < 62: A(f"ds_read_b64 {v(KB,2)}, v{AK2[slot]} offset:{off}")
        for x in G[1]: A(x)
        if J > 0:
            A("s_waitcnt lgkmcnt(2)" if J < 62 else "s_waitcnt lgkmcnt(0)")
            cc = "0" if J == 1 else v(O, 16)
            A(f"v_mfma_f32_32x32x16_bf16 {v(O,16)}, {v(V0,4)}, {v(Pp,4)}, {cc}")
        A(f"ds_read_b128 {v(V0,4)}, v{AV[slot]} offset:{off}")
        for x in G[2]: A(x)
        if J > 0: A(f"v_mfma_f32_32x32x16_bf16 {v(O,16)}, {v(V1,4)}, {v(Pp+4,4)}, {v(O,16)}")
        A(f"ds_read_b128 {v(V1,4)}, v{AV[slot]} offset:{off + 768}")
        if E("NODMA", 0):
            for x in G[3]: A(x)
            continue
        if E("SRV", 1):
            if c == 0 and j < 6: A(kv_piece(1, j))
        else:
            if (c in (1, 2) or (c == 0 and E("C1LATE", 1))) and j < 6: A(kv_piece(c + 1, j))
            if c == 1 and 6 <= j < 11: A(wo_piece(0, j - 6))
            if c == 1 and 11 <= j < 16: A(wo_piece(1, j - 11))
            if c == 3 and 1 <= j < 6: A(wo_piece(2, j - 1))
            if c == 3 and 6 <= j < 11: A(wo_piece(3, j - 6))
        for x in G[3]: A(x)
    stp(A, "att1")
    Pl = P[63 % 2]
    A("s_waitcnt lgkmcnt(0)")
    A(f"v_mfma_f32_32x32x16_bf16 {v(O,16)}, {v(V0,4)}, {v(Pl,4)}, {v(O,16)}")
    A(f"v_mfma_f32_32x32x16_bf16 {v(O,16)}, {v(V1,4)}, {v(Pl+4,4)}, {v(O,16)}")
    A("s_setprio 0")
    L_fin = A.newlabel("fin"); L_slow = A.newlabel("slow"); L_odone = A.newlabel("odone")
    def addr_calc():
        A(f"""
        s_lshl_b32 s52, s43, 6
        s_add_u32 s52, s52, s46
        s_mul_i32 s52, s52, 1536
        s_add_u32 s52, s52, {WS_O}
        v_lshlrev_b32 v104, 4, v0
        """)
    addr_calc()
    A("s_nop 7")
    A.label(L_fin)
    A("s_nop 7")
    A(f"""
    v_mov_b32 v110, v{O+8}
    v_mov_b32 v111, v{O+8}
    s_nop 1
    v_permlane32_swap_b32 v110, v111
    s_nop 1
    v_rcp_f32 v112, v111
    s_nop 0
    """)
    for i in range(0, 12, 2):
        A(f"v_pk_mul_f32 {v(O+i,2)}, {v(O+i,2)}, v[112:113] op_sel_hi:[1,0]")
    A(f"""
    v_add_f32 v113, abs(v{O}), abs(v{O+1})
    v_add_f32 v114, abs(v{O+8}), abs(v{O+9})
    """)
    for i in range(2, 8): A(f"v_add_f32 v113, v113, abs(v{O+i})")
    A(f"""
    v_add_f32 v114, v114, abs(v{O+10})
    v_add_f32 v114, v114, abs(v{O+11})
    v_cmp_gt_u32 vcc, 32, v0
    v_mov_b32 v115, 0x21800000         ; 2^-60
    v_mov_b32 v116, 0x5d800000         ; 2^60
    v_cndmask_b32 v114, 0, v114, vcc
    v_add_f32 v113, v113, v114
    v_mov_b32 v114, 0x7f800000
    v_cmp_nlt_f32 s[54:55], v113, v114
    v_cmp_ngt_f32 s[56:57], v111, v115
    v_cmp_nlt_f32 vcc, v111, v116
    s_nop 1
    s_or_b64 s[54:55], s[54:55], s[56:57]
    s_or_b64 s[54:55], s[54:55], vcc
    s_cmp_lg_u64 s[54:55], 0
    s_cselect_b32 s61, 1, 0
    s_andn2_b32 s61, s61, s60
    s_cmp_lg_u32 s61, 0
    s_cbranch_scc1 {L_slow}
    """)
    for i in range(4): A(f"v_cvt_pk_bf16_f32 v{O+i}, v{O+2*i}, v{O+2*i+1}")
    A(f"""
    v_cvt_pk_bf16_f32 v{O+8}, v{O+8}, v{O+9}
    v_cvt_pk_bf16_f32 v{O+9}, v{O+10}, v{O+11}
    v_mov_b32 v{O+10}, 0
    v_mov_b32 v{O+11}, 0
    buffer_store_dwordx4 {v(O,4)}, v104, s[{R_WS}:{R_WS+3}], s52 offen{SC}
    s_mov_b32 exec_hi, 0
    buffer_store_dwordx4 {v(O+8,4)}, v104, s[{R_WS}:{R_WS+3}], s52 offen offset:1024{SC}
    s_mov_b64 exec, -1
    s_branch {L_odone}
    """)
    A.label(L_slow)
    L1 = A.newlabel("p1"); L2 = A.newlabel("p2")
    A(f"""
    s_mov_b32 s60, 1
    v_mov_b32 v110, 0xff800000
    s_mov_b32 s52, 0
    {L1}:
    s_mul_i32 s63, s52, {TB}
    s_add_u32 s63, s63, {5*SEC}
    buffer_load_dwordx4 {v(KA,4)}, v{VKP}, s[{R_WS}:{R_WS+3}], s63 offen{SC}
    buffer_load_dwordx2 {v(KB,2)}, v{VKS}, s[{R_WS}:{R_WS+3}], s63 offen{SC}
    s_waitcnt vmcnt(0)
    v_mfma_f32_32x32x16_bf16 {v(S[0],16)}, {v(KA,4)}, {v(Q1,4)}, 0
    v_mfma_f32_32x32x16_bf16 {v(S[0],16)}, {v(KB,4)}, {v(Q2,4)}, {v(S[0],16)}
    s_nop 7
    s_nop 7
    """)
    for i in range(0, 16, 2): A(f"v_max3_f32 v110, v110, v{S[0]+i}, v{S[0]+i+1}")
    A(f"""
    s_add_u32 s52, s52, 1
    s_cmp_lt_u32 s52, 64
    s_cbranch_scc1 {L1}
    v_mov_b32 v108, v110
    v_mov_b32 v109, v110
    s_nop 1
    v_permlane32_swap_b32 v108, v109
    s_nop 1
    v_max_f32 v110, v108, v109
    v_and_b32 v3, 31, v0
    v_cmp_gt_u32 vcc, 20, v3
    v_add_u32 v108, 4096, v{VVF}
    s_nop 0
    v_cndmask_b32 v109, v{VVF}, v108, vcc
    """)
    for i in range(16): A(f"v_mov_b32 v{O+i}, 0")
    A("s_mov_b32 s52, 0")
    A.label(L2)
    A(f"""
    s_mul_i32 s54, s52, {TB}
    s_add_u32 s63, s54, {5*SEC}
    buffer_load_dwordx4 {v(KA,4)}, v{VKP}, s[{R_WS}:{R_WS+3}], s63 offen{SC}
    buffer_load_dwordx2 {v(KB,2)}, v{VKS}, s[{R_WS}:{R_WS+3}], s63 offen{SC}
    buffer_load_dwordx4 {v(V0,4)}, v{VVF}, s[{R_WS}:{R_WS+3}], s54 offen{SC}
    buffer_load_dwordx4 {v(V1,4)}, v109, s[{R_WS}:{R_WS+3}], s54 offen{SC}
    s_waitcnt vmcnt(0)
    v_mfma_f32_32x32x16_bf16 {v(S[0],16)}, {v(KA,4)}, {v(Q1,4)}, 0
    v_mfma_f32_32x32x16_bf16 {v(S[0],16)}, {v(KB,4)}, {v(Q2,4)}, {v(S[0],16)}
    s_nop 7
    s_nop 7
    """)
    for i in range(16): A(f"v_sub_f32 v{S[0]+i}, v{S[0]+i}, v110")
    for i in range(16): A(f"v_exp_f32 v{S[0]+i}, v{S[0]+i}")
    A("s_nop 0")
    for i in range(8): A(f"v_cvt_pk_bf16_f32 v{P[0]+i}, v{S[0]+2*i}, v{S[0]+2*i+1}")
    A(f"""
    s_nop 1
    v_mfma_f32_32x32x16_bf16 {v(O,16)}, {v(V0,4)}, {v(P[0],4)}, {v(O,16)}
    v_mfma_f32_32x32x16_bf16 {v(O,16)}, {v(V1,4)}, {v(P[0]+4,4)}, {v(O,16)}
    s_add_u32 s52, s52, 1
    s_cmp_lt_u32 s52, 64
    s_cbranch_scc1 {L2}
    s_nop 7
    """)
    addr_calc()
    A(f"s_branch {L_fin}")

    A.label(L_odone)
    OF = 32; AD = 80; OA = 88; VOUT, VRED = 91, 92; ACC3 = 96; WF = [116, 136]
    A(f"""
    s_lshl_b32 s54, s{S_XCD}, 2
    s_lshr_b32 s55, s{S_J}, 3
    s_add_u32 s54, s54, s55        ; tb
    s_lshl_b32 s54, s54, 2
    s_and_b32 s55, s{S_WAVE}, 3
    s_add_u32 s54, s54, s55        ; T
    s_lshr_b32 s45, s54, 1
    s_mul_i32 s45, s45, 1536
    s_and_b32 s57, s54, 1
    s_lshl_b32 s57, s57, 8
    s_add_u32 s45, s45, s57
    s_add_u32 s45, s45, {WS_O}
    s_lshr_b32 s57, s{S_WAVE}, 2
    s_mul_i32 s57, s57, {16*64*1536}
    s_add_u32 s62, s45, s57
    v_lshrrev_b32 v5, 4, v0            ; kg
    v_and_b32 v6, 15, v0
    v_lshlrev_b32 v6, 4, v6
    """)
    for c in range(3):
        A(f"""
        v_add_u32 v8, {4*c}, v5
        v_mul_u32_u24 v9, 21846, v8
        v_lshrrev_b32 v9, 16, v9
        v_mul_u32_u24 v10, 3, v9
        v_sub_u32 v10, v8, v10
        v_mul_u32_u24 v9, 1536, v9
        v_lshlrev_b32 v9, 6, v9
        v_lshl_add_u32 v9, v10, 9, v9
        v_add_u32 v{OA+c}, v9, v6""")
    A(f"""
    v_and_b32 v3, 15, v0
    s_lshl_b32 s55, s54, 4
    v_add_u32 v3, s55, v3
    v_mul_u32_u24 v3, 2560, v3
    v_lshrrev_b32 v4, 4, v0
    v_lshl_add_u32 v3, v4, 3, v3
    s_and_b32 s55, s{S_J}, 7
    s_mul_i32 s55, s55, 160
    v_add_u32 v{VOUT}, s55, v3
    v_lshlrev_b32 v3, 4, v0
    s_and_b32 s55, s{S_WAVE}, 3
    s_mul_i32 s55, s55, 5120
    s_add_u32 s55, s55, {RED}
    v_add_u32 v{VRED}, s55, v3
    v_bfe_u32 v6, v0, 2, 2             ; r
    v_and_b32 v7, 3, v0
    v_lshlrev_b32 v7, 3, v7            ; 8*c4
    s_mov_b32 s59, {WO_A}
    """)
    def row_addr(dst0, s, region):
        A(f"""
        v_add_u32 v8, {4*s}, v5
        v_mul_u32_u24 v9, 21846, v8
        v_lshrrev_b32 v9, 16, v9
        v_mul_u32_u24 v10, 3, v9
        v_sub_u32 v10, v8, v10
        v_mul_u32_u24 v9, 20, v9
        v_add_u32 v9, v9, v6
        v_lshlrev_b32 v11, 2, v10
        v_cmp_eq_u32 vcc, 2, v10
        v_add_u32 v12, 8, v11
        v_lshlrev_b32 v13, 1, v11
        v_cndmask_b32 v11, v11, v13, vcc
        v_add_u32 v11, v11, v9
        v_add_u32 v12, v12, v9
        """)
        for hh, rv in enumerate((11, 12)):
            if region == "A":
                A(f"v_mul_u32_u24 v13, 160, v{rv}\nv_add3_u32 v{dst0+hh}, v13, v7, s59")
            elif region == "B":
                A(f"v_subrev_u32 v13, {WO_BROW}, v{rv}\nv_mul_u32_u24 v13, 160, v13\nv_add_u32 v{dst0+hh}, v13, v7")
            else:
                A(f"""
                v_mul_u32_u24 v13, 160, v{rv}
                v_add3_u32 v14, v13, v7, s59
                v_subrev_u32 v13, {WO_BROW*160}, v13
                v_add_u32 v13, v13, v7
                v_cmp_gt_u32 vcc, {WO_BROW}, v{rv}
                s_nop 1
                v_cndmask_b32 v{dst0+hh}, v13, v14, vcc""")
    L_ahi = A.newlabel("ahi"); L_adone = A.newlabel("adone")
    stp(A, "ostored")
    A("s_waitcnt vmcnt(0)")
    stp(A, "odrained")
    L_os = A.newlabel("os")
    lds_arrive_last(A, C_O, 8, L_os, 2, 3)
    A(f"s_add_u32 s65, s44, {L_O}")
    global_arrive(A, "s65", 32, 2, 3)
    A.label(L_os)
    A(f"""
    s_cmp_ge_u32 s{S_WAVE}, 4
    s_cbranch_scc1 {L_ahi}
    """)
    for c in range(3): row_addr(AD + 2*c, c, "A")
    A(f"s_branch {L_adone}")
    A.label(L_ahi)
    row_addr(AD + 6, 12, None)
    for c in range(3): row_addr(AD + 2*c, 13 + c, "B")
    A.label(L_adone)
    srd(A, R_B, P_OUT, 2048 * 1280 * 2)
    L_p3a = A.newlabel("p3a"); L_post = A.newlabel("post"); L_t3 = A.newlabel("t3"); L_tgo = A.newlabel("tgo")
    A(f"""
    s_cmp_eq_u32 s{S_WAVE}, 0
    s_cbranch_scc0 {L_post}
    s_lshl_b32 s54, s{S_XCD}, 7
    s_add_u32 s54, s54, {SYNC + 128*(FLG + L_O)}
    v_mov_b32 v2, s54
    v_cmp_eq_u32 vcc, 0, v0
    v_mov_b32 v3, 1
    s_nop 0
    v_cndmask_b32 v4, 0, v3, vcc
    """)
    poll(A, 2, 4, 3, sleep=E("PS_O", 2))
    stp(A, "ook")
    A(f"s_branch {L_p3a}")
    A.label(L_post)
    if E("NOBW", 0): A(f"s_branch {L_p3a}")
    post_task(L_p3a)
    for j in range(4):
        for q in range(4):
            za = PZ + 2*(2*q) + j//2; zb = PZ + 2*(2*q+1) + j//2
            if j % 2 == 0:
                A(f"v_lshlrev_b32 v48, 16, v{za}\nv_lshlrev_b32 v49, 16, v{zb}")
            else:
                A(f"v_and_b32 v48, 0xffff0000, v{za}\nv_and_b32 v49, 0xffff0000, v{zb}")
            qq = PQ + 4*j + q
            A(f"v_lshlrev_b32 v50, 16, v{qq}\nv_and_b32 v51, 0xffff0000, v{qq}")
            A(f"v_pk_mul_f32 v[48:49], v[48:49], v[50:51]")
            A(f"v_cvt_pk_bf16_f32 v{52+4*j+q}, v48, v49")
        A(f"s_mov_b32 s54, {j*2560}")
        A(f"buffer_store_dwordx4 {v(52+4*j,4)}, v{PO}, s[{R_B}:{R_B+3}], s54 offen{os.environ.get('OUTB', '')}")
    A.label(L_p3a)
    stp(A, "prep3a")
    A("s_barrier")
    stp(A, "p3a")
    PD = E("P3D", 3)
    def o_load(st):
        A(f"s_add_u32 s58, s62, {(st//3)*4*64*1536}")
        A(f"buffer_load_dwordx4 {v(OF+4*st,4)}, v{OA + st % 3}, s[{R_WS}:{R_WS+3}], s58 offen{SC}")
    for st in range(min(PD + 1, 12)): o_load(st)
    def p3_loop(hi):
        if not hi: sel = lambda st: (AD + 2*(st % 3), (st // 3) * 12800)
        else: sel = lambda st: (AD + 6, 0) if st == 0 else (AD + 2*((st - 1) % 3), ((st - 1) // 3) * 12800)
        def rd(st, setid):
            base, so = sel(st); r = []
            for T in range(5):
                r.append(f"ds_read_b64_tr_b16 {v(WF[setid]+4*T,2)}, v{base} offset:{so + 32*T}")
                r.append(f"ds_read_b64_tr_b16 {v(WF[setid]+4*T+2,2)}, v{base+1} offset:{so + 32*T}")
            return r
        for r in rd(0, 0): A(r)
        for st in range(12):
            setid = st % 2
            A(f"s_waitcnt vmcnt({min(PD, 11-st)}) lgkmcnt(0)")
            if st + PD + 1 < 12: o_load(st + PD + 1)
            if st == 0: stp(A, "p3first")
            if st == 6: stp(A, "p3mid")
            rs = rd(st + 1, 1 - setid) if st < 11 else []
            for T in range(5):
                cc = "0" if st == 0 else v(ACC3+4*T, 4)
                A(f"v_mfma_f32_16x16x32_bf16 {v(ACC3+4*T,4)}, {v(WF[setid]+4*T,4)}, {v(OF+4*st,4)}, {cc}")
                for r in rs[2*T:2*T+2]: A(r)
        A("s_nop 7")
    L_hi = A.newlabel("p3hi")
    A(f"""
    s_cmp_ge_u32 s{S_WAVE}, 4
    s_cbranch_scc1 {L_hi}
    """)
    p3_loop(False)
    stp(A, "p3loop")
    A("s_barrier")
    stp(A, "p3red")
    for T in range(5): A(f"ds_read_b128 {v(32+4*T,4)}, v{VRED} offset:{1024*T}")
    A("s_waitcnt lgkmcnt(0)")
    for T in range(5):
        d = ACC3 + 4*T
        A(f"v_pk_add_f32 {v(d,2)}, {v(d,2)}, {v(32+4*T,2)}")
        A(f"v_pk_add_f32 {v(d+2,2)}, {v(d+2,2)}, {v(34+4*T,2)}")
        A(f"v_cvt_pk_bf16_f32 v{d}, v{d}, v{d+1}")
        A(f"v_cvt_pk_bf16_f32 v{d+1}, v{d+2}, v{d+3}")
        A(f"buffer_store_dwordx2 {v(d,2)}, v{VOUT}, s[{R_B}:{R_B+3}], 0 offen offset:{32*T}{os.environ.get('OUTA', '')}")
    prof_dump(A, 0, wsptr=P_WS)
    A("s_endpgm")
    A.label(L_hi)
    p3_loop(True)
    for T in range(5): A(f"ds_write_b128 v{VRED}, {v(ACC3+4*T,4)} offset:{1024*T}")
    A("s_waitcnt lgkmcnt(0)\ns_barrier")
    prof_dump(A, 0, wsptr=P_WS)
    A("s_endpgm")

    A.label(L_bw)
    BK, BV, BW = 16, 44, 60
    def b_setup(notask, chan_only):
        L2_ = A.newlabel("b2")
        A(f"""
        s_cmp_eq_u32 s{S_WAVE}, 10
        s_cbranch_scc1 {L2_}
        s_lshl_b32 s56, s2, 1
        s_sub_u32 s57, s{S_WAVE}, 8
        s_add_u32 s56, s56, s57
        """)
        b_addr()
        Lc = A.newlabel("bcont")
        A(f"""
        s_branch {Lc}
        {L2_}:
        s_cmp_ge_u32 s2, 128
        s_cbranch_scc1 {notask}
        s_add_u32 s56, s2, 512
        s_mov_b32 s65, 0
        s_branch {chan_only}
        {Lc}:
        """)
    def b_addr():
        A(f"""
        s_mul_i32 s57, s56, 52429
        s_lshr_b32 s57, s57, 19        ; tblk
        s_mul_i32 s58, s57, 10
        s_sub_u32 s58, s56, s58        ; dblk
        v_and_b32 v2, 7, v0            ; dg
        v_lshrrev_b32 v3, 3, v0        ; tg
        v_lshlrev_b32 v12, 6, v2
        v_lshl_add_u32 v12, v3, 3, v12
        s_lshl_b32 s54, s56, 12
        s_add_u32 s54, s54, {WS_U}
        v_add_u32 v12, s54, v12
        s_lshl_b32 s54, s58, 6
        v_lshl_add_u32 v2, v2, 3, s54  ; d0
        s_lshl_b32 s55, s57, 5
        v_lshl_add_u32 v3, v3, 2, s55  ; t0
        v_mul_u32_u24 v4, 1280, v3
        v_lshl_add_u32 v10, v2, 1, v4
        v_lshlrev_b32 v11, 3, v2
        v_subrev_u32 v5, 3840, v10
        v_subrev_u32 v6, 2560, v10
        v_subrev_u32 v7, 1280, v10
        """)
    def b_loads():
        srd(A, R_C, P_BK, 2048 * 640 * 2)
        A(f"""
        buffer_load_dwordx4 {v(BK,4)}, v5, s[{R_C}:{R_C+3}], 0 offen
        buffer_load_dwordx4 {v(BK+4,4)}, v6, s[{R_C}:{R_C+3}], 0 offen
        buffer_load_dwordx4 {v(BK+8,4)}, v7, s[{R_C}:{R_C+3}], 0 offen
        """)
        for j in range(4): A(f"buffer_load_dwordx4 {v(BK+12+4*j,4)}, v10, s[{R_C}:{R_C+3}], 0 offen offset:{1280*j}")
        srd(A, R_C, P_BV, 2048 * 640 * 2)
        for j in range(4): A(f"buffer_load_dwordx4 {v(BV+4*j,4)}, v10, s[{R_C}:{R_C+3}], 0 offen offset:{1280*j}")
        srd(A, R_C, P_SH, 640 * 4 * 2)
        for j in range(4): A(f"buffer_load_dwordx4 {v(BW+4*j,4)}, v11, s[{R_C}:{R_C+3}], 0 offen offset:{16*j}")
    def b_compute(q):
        KP, VP, WP, AC, OUT = 80, 94, 102, 110, 120
        for j in range(7):
            A(f"v_lshlrev_b32 v{KP+2*j}, 16, v{BK+4*j+q}\nv_and_b32 v{KP+1+2*j}, 0xffff0000, v{BK+4*j+q}")
        for t in range(4):
            A(f"v_lshlrev_b32 v{VP+2*t}, 16, v{BV+4*t+q}\nv_and_b32 v{VP+1+2*t}, 0xffff0000, v{BV+4*t+q}")
        for u in range(2):
            bb = BW + 4*q + 2*u
            A(f"v_lshlrev_b32 v{WP+u}, 16, v{bb}\nv_and_b32 v{WP+2+u}, 0xffff0000, v{bb}")
            A(f"v_lshlrev_b32 v{WP+4+u}, 16, v{bb+1}\nv_and_b32 v{WP+6+u}, 0xffff0000, v{bb+1}")
        for t in range(4):
            acc = AC + 2*t
            A(f"v_pk_mul_f32 {v(acc,2)}, {v(KP+2*(t+0),2)}, {v(WP+6,2)}")
            A(f"v_pk_fma_f32 {v(acc,2)}, {v(KP+2*(t+1),2)}, {v(WP+4,2)}, {v(acc,2)}")
            A(f"v_pk_fma_f32 {v(acc,2)}, {v(KP+2*(t+2),2)}, {v(WP+2,2)}, {v(acc,2)}")
            A(f"v_pk_fma_f32 {v(acc,2)}, {v(KP+2*(t+3),2)}, {v(WP,2)}, {v(acc,2)}")
            A(f"v_pk_mul_f32 {v(acc,2)}, {v(acc,2)}, {v(VP+2*t,2)}")
        for u in range(2):
            o = OUT + 4*q + 2*u
            A(f"v_cvt_pk_bf16_f32 v{o}, v{AC+u}, v{AC+2+u}\nv_cvt_pk_bf16_f32 v{o+1}, v{AC+4+u}, v{AC+6+u}")
        for u in range(2):
            o = OUT + 4*q + 2*u
            A(f"buffer_store_dwordx2 {v(o,2)}, v12, s[{R_WS}:{R_WS+3}], 0 offen offset:{(2*q+u)*512}{SC}")
    def init_load():
        A(f"v_mov_b32 v2, 0\nglobal_load_dword v9, v2, s[{P_DBG}:{P_DBG+1}] sc1")
    def u_publish(n):
        A(f"s_waitcnt vmcnt({n})\ns_mov_b32 s65, 0")
        Lok = A.newlabel("iok"); Lsk = A.newlabel("usk")
        A(f"""
        v_readfirstlane_b32 s66, v9
        s_nop 3
        s_cmp_lg_u32 s66, 0
        s_cbranch_scc1 {Lok}
        v_mov_b32 v2, 0
        v_mov_b32 v3, 1
        """)
        poll(A, 2, 3, 4, sleep=8, base=P_DBG)
        A.label(Lok)
        lds_set(A, C_INIT, 2, 3)
        A(f"s_cmp_ge_u32 s{S_CBK}, 15\ns_cselect_b32 s64, 10, 2")
        lds_arrive_last(A, C_U, "s64", Lsk, 2, 3)
        A(f"""
        s_and_b32 s66, s2, 7
        s_add_u32 s66, s66, {L_U}
        s_lshl_b32 s66, s66, 7
        s_add_u32 s66, s66, {SYNC}
        v_mov_b32 v10, s66
        v_mov_b32 v11, 1
        s_mov_b64 exec, 1
        global_atomic_add v11, v10, v11, s[{P_WS}:{P_WS+1}] sc0 sc1
        s_mov_b64 exec, -1
        s_mov_b32 s65, 1
        {Lsk}:
        """)
    def u_flag():
        L = A.newlabel("uf")
        A(f"""
        s_cmp_eq_u32 s65, 0
        s_cbranch_scc1 {L}
        s_waitcnt vmcnt(0)
        v_readfirstlane_b32 s66, v11
        s_nop 3
        s_cmp_lg_u32 s66, 31
        s_cbranch_scc1 {L}
        v_add_u32 v10, {128*40}, v10
        v_mov_b32 v11, 1
        s_mov_b64 exec, 1
        global_store_dword v10, v11, s[{P_WS}:{P_WS+1}] sc1
        s_mov_b64 exec, -1
        {L}:
        """)
    HR = 136
    def h_loads():
        srd(A, R_C, P_SK, 640 * 4096)
        A(f"""
        s_sub_u32 s57, s{S_WAVE}, 8
        s_mul_i32 s57, s57, {CONV_SZ}
        s_add_u32 s57, s57, {CONV_BASE}
        s_lshl_b32 s58, s56, 12
        v_lshlrev_b32 v13, 4, v0
        v_add_u32 v13, s58, v13
        v_subrev_u32 v14, 8, v13
        """)
        for p in range(4):
            if p == 0:
                A(f"buffer_load_dwordx2 {v(HR,2)}, v14, s[{R_C}:{R_C+3}], 0 offen")
            else:
                A(f"buffer_load_dwordx2 {v(HR+6*p,2)}, v13, s[{R_C}:{R_C+3}], 0 offen offset:{1024*p - 8}")
            A(f"buffer_load_dwordx4 {v(HR+6*p+2,4)}, v13, s[{R_C}:{R_C+3}], 0 offen offset:{1024*p}")
    def h_build():
        A(f"""
        v_cmp_eq_u32 vcc, 0, v0
        v_lshlrev_b32 v6, 4, v0
        v_add_u32 v6, s57, v6
        v_add_u32 v6, 32, v6
        v_cndmask_b32 v{HR}, v{HR}, 0, vcc
        v_cndmask_b32 v{HR+1}, v{HR+1}, 0, vcc
        """)
        for p in range(4):
            b = HR + 6*p; P1, P0, D = b, b + 1, b + 2
            T1, T2, T3 = 16 + 12*(p % 2), 20 + 12*(p % 2), 24 + 12*(p % 2)
            A(f"""
            ds_write_b128 v6, {v(D,4)} offset:{0*COPY + 1024*p}
            v_alignbit_b32 v{T1}, v{D}, v{P0}, 16
            v_alignbit_b32 v{T1+1}, v{D+1}, v{D}, 16
            v_alignbit_b32 v{T1+2}, v{D+2}, v{D+1}, 16
            v_alignbit_b32 v{T1+3}, v{D+3}, v{D+2}, 16
            v_mov_b32 v{T2}, v{P0}
            v_mov_b32 v{T2+1}, v{D}
            v_mov_b32 v{T2+2}, v{D+1}
            v_mov_b32 v{T2+3}, v{D+2}
            v_alignbit_b32 v{T3}, v{P0}, v{P1}, 16
            v_mov_b32 v{T3+1}, v{T1}
            v_mov_b32 v{T3+2}, v{T1+1}
            v_mov_b32 v{T3+3}, v{T1+2}
            ds_write_b128 v6, {v(T1,4)} offset:{1*COPY + 1024*p}
            ds_write_b128 v6, {v(T2,4)} offset:{2*COPY + 1024*p}
            ds_write_b128 v6, {v(T3,4)} offset:{3*COPY + 1024*p}
            """)
    L_bnog = A.newlabel("bnog"); L_bnt = A.newlabel("bnt"); L_sync = A.newlabel("sync"); L_bntn = A.newlabel("bntn")
    A(f"""
    s_cmp_ge_u32 s{S_CB}, 15
    s_cbranch_scc1 {L_bnog}
    """)
    L_chonly = A.newlabel("chonly")
    b_setup(L_bnt, L_chonly)
    if E("BISS", 0): lds_wait(A, C_ISS, 2, 3, val=4, sleep=1)
    if E("NOBW", 0):
        lds_set(A, C_INIT, 2, 3)
        for _ in range(10): A("s_barrier")
        A(f"s_branch {L_exit}")
    MODE = E("BMODE", 3)
    if MODE == 3:
        hl3 = E("HL3", 0)
        b_loads()
        if not hl3: h_loads()
        if EARLY: A("s_barrier")
        k = E("BWAIT", 3)
        for _ in range(k): A("s_barrier")
        A(f"s_waitcnt vmcnt({0 if hl3 else 8})")
        stp(A, "blok")
        if E("BPRIO", 0): A(f"s_setprio {E('BPRIO', 0)}")
        nsp = E("BSPLIT", 2)
        for q in range(4):
            b_compute(q)
            if (nsp == 2 and q == 1) or (nsp == 4 and q < 3): A("s_barrier")
        used = 1 if nsp == 2 else (3 if nsp == 4 else 0)
        A("s_setprio 0")
        init_load()
        g = E("BGAP", 3)
        for _ in range(g): A("s_barrier")
        u_publish(0)
        stp(A, "upub")
        if hl3: h_loads()
        for _ in range(10 - k - used - g): A("s_barrier")
    elif MODE == 2:
        if EARLY: A("s_barrier")
        for _ in range(E("BAT", 1)): A("s_barrier")
        b_loads()
        h_loads()
        for _ in range(10 - E("BAT", 1)): A("s_barrier")
        A("s_waitcnt vmcnt(8)")
        stp(A, "blok")
        for q in range(4): b_compute(q)
        init_load()
        u_publish(0)
        stp(A, "upub")
    else:
        hl = E("HLATE", 1)
        b_loads()
        if not hl: h_loads()
        A(f"s_waitcnt vmcnt({0 if hl else 8})")
        stp(A, "blok")
        for q in range(4): b_compute(q)
        init_load()
        npub = E("NPUB", 2)
        for _ in range(npub): A("s_barrier")
        u_publish(0)
        stp(A, "upub")
        if hl:
            for _ in range(hl): A("s_barrier")
            h_loads()
        for _ in range(10 - npub - hl): A("s_barrier")
    stp(A, "b9")
    A(f"s_branch {L_conv}")
    A.label(L_bnt)
    A(f"s_branch {L_exit}")
    A.label(L_chonly)
    nh = E("HLC", 0)
    if EARLY and nh: A("s_barrier")
    for _ in range(nh): A("s_barrier")
    h_loads()
    if EARLY and not nh: A("s_barrier")
    for _ in range(10 - nh): A("s_barrier")
    A(f"s_branch {L_conv}")
    A.label(L_bnog)
    if E("NOBW", 0):
        lds_set(A, C_INIT, 2, 3)
        A(f"s_branch {L_exit}")
    b_setup(L_exit, L_exit)
    b_loads()
    h_loads()
    if EARLY: A("s_barrier")
    A("s_waitcnt vmcnt(8)")
    for q in range(4): b_compute(q)
    init_load()
    u_publish(0)
    A(f"s_branch {L_conv}")
    A.label("L_nogtask")
    A(f"""
    s_sub_u32 s56, s{S_J}, 28
    s_lshl_b32 s56, s56, 2
    s_lshr_b32 s57, s{S_XCD}, 1
    s_add_u32 s56, s56, s57
    s_lshl_b32 s56, s56, 3
    s_add_u32 s56, s56, s{S_WAVE}
    s_add_u32 s56, s56, 512
    """)
    b_addr()
    b_loads()
    A("s_waitcnt vmcnt(0)")
    for q in range(4): b_compute(q)
    init_load()
    u_publish(0)
    u_flag()
    A("s_branch L_nogdone")

    A.label(L_conv)
    u_flag()
    A(f"""
    s_lshr_b32 s59, s56, 1
    s_lshl_b32 s59, s59, 2
    s_load_dword s60, s[{P_SD}:{P_SD+1}], s59
    v_mov_b32 v12, 0
    v_mov_b32 v13, 0
    v_mov_b32 v14, 0
    v_mov_b32 v15, 0
    v_lshlrev_b32 v6, 3, v0
    v_add_u32 v6, s57, v6
    v_add_u32 v6, {4*COPY}, v6
    v_cmp_gt_u32 vcc, 60, v0
    s_and_saveexec_b64 s[54:55], vcc
    ds_write_b64 v6, v[12:13]
    s_mov_b64 exec, s[54:55]
    v_and_b32 v6, 1, v0
    v_lshlrev_b32 v6, 4, v6
    v_lshrrev_b32 v7, 1, v0
    v_mul_u32_u24 v7, {COPY}, v7
    v_add3_u32 v6, v6, v7, s57
    v_cmp_gt_u32 vcc, 8, v0
    s_and_saveexec_b64 s[54:55], vcc
    ds_write_b128 v6, v[12:15]
    s_mov_b64 exec, s[54:55]
    s_waitcnt vmcnt(0)
    """)
    h_build()
    VGB = [160, 161, 162]; WOVB = 163
    if E("SRV", 1): gather_setup(VGB, 40, 41, 42, WOVB)
    A(f"""
    s_lshr_b32 s54, s56, 6
    s_and_b32 s55, s56, 63
    s_and_b32 s61, s55, 7
    s_lshr_b32 s55, s55, 3
    s_lshl_b32 s61, s61, 9
    s_lshl_b32 s55, s55, 6
    s_add_u32 s61, s61, s55
    s_lshl_b32 s54, s54, 12
    s_add_u32 s61, s61, s54
    s_add_u32 s61, s61, {WS_U}
    v_lshrrev_b32 v8, 2, v0
    v_mul_u32_u24 v8, 40960, v8
    v_and_b32 v9, 3, v0
    v_lshl_add_u32 v8, v9, 4, v8
    """)
    L_uw = A.newlabel("uw"); L_ud = A.newlabel("ud")
    A(f"s_cmp_lg_u32 s{S_WAVE}, 8\ns_cbranch_scc1 {L_uw}")
    if E("UGATE", 0) == 1: lds_wait(A, C_GO, 2, 3, sleep=4)
    if E("UGATE", 0) == 2: lds_wait(A, C_QKV, 2, 3, val=4, sleep=4)
    A(f"""
    v_lshlrev_b32 v2, 7, v0
    v_add_u32 v2, {SYNC + 128*(L_U + 40)}, v2
    v_cmp_gt_u32 vcc, 8, v0
    v_mov_b32 v3, 1
    s_nop 0
    v_cndmask_b32 v4, 0, v3, vcc
    """)
    poll(A, 2, 4, 3, sleep=E("PS_U", 6))
    lds_set(A, C_UOK, 2, 3)
    A(f"s_branch {L_ud}")
    A.label(L_uw)
    lds_wait(A, C_UOK, 2, 3)
    A("s_waitcnt vmcnt(0)")
    A.label(L_ud)
    stp(A, "uok")
    for p in range(4):
        A(f"""
        s_add_u32 m0, s57, {4*COPY + 480 + p*1024}
        s_add_u32 s54, s61, {p*16*40960}
        buffer_load_dwordx4 v8, s[{R_WS}:{R_WS+3}], s54 offen{SC} lds""")
    A(f"""
    v_lshrrev_b32 v6, 4, v0             ; kg
    v_bfe_u32 v7, v0, 2, 2              ; r
    v_and_b32 v8, 3, v0                 ; c
    v_mul_u32_u24 v7, {COPY}, v7
    v_lshlrev_b32 v8, 3, v8
    v_lshlrev_b32 v9, 4, v6
    v_sub_u32 v8, v8, v9
    v_add_u32 v8, 56, v8
    v_add3_u32 v4, v7, v8, s57          ; vA
    v_and_b32 v7, 15, v0
    v_lshlrev_b32 v7, 5, v7
    v_lshl_add_u32 v7, v6, 4, v7
    v_add_u32 v7, {4*COPY}, v7
    v_add_u32 v5, s57, v7               ; vB
    s_waitcnt vmcnt(0) lgkmcnt(0)
    s_and_b32 s54, s56, 1
    s_lshl_b32 s54, s54, 4
    s_lshr_b32 s60, s60, s54
    s_lshl_b32 s60, s60, 16             ; D as f32
    """)
    stp(A, "conv0")
    Y = 32; AT = 64; BT = 128
    def a_reads(rho, p):
        mu = rho + 8 * p
        return [f"ds_read_b64_tr_b16 {v(AT+4*p,2)}, v4 offset:{64*mu + 8}",
                f"ds_read_b64_tr_b16 {v(AT+4*p+2,2)}, v4 offset:{64*mu}"]
    def b_read(rho, q): return f"ds_read_b128 {v(BT+4*q,4)}, v5 offset:{64*(8*q - rho + 7)}"
    A(f"s_setprio {E('CPRIO', 0)}")
    if E("CPACE", 0):
        for q in range(7, -1, -1): A(b_read(0, q))
        for rho in range(8):
            for p in range(8):
                for r in a_reads(rho, p): A(r)
                A("s_waitcnt lgkmcnt(0)")
                for q in range(7 - p, -1, -1):
                    i = p + q
                    cc = "0" if (rho == 0 and p == 0) else v(Y+4*i, 4)
                    A(f"v_mfma_f32_16x16x32_bf16 {v(Y+4*i,4)}, {v(AT+4*p,4)}, {v(BT+4*q,4)}, {cc}")
                if rho < 7: A(b_read(rho + 1, 7 - p))
            if rho == 3:
                stp(A, "convh")
                A("s_barrier")
    else:
        ATS = [64, 96]
        def a_reads2(rho, p, sid):
            mu = rho + 8 * p
            return [f"ds_read_b64_tr_b16 {v(ATS[sid]+4*p,2)}, v4 offset:{64*mu + 8}",
                    f"ds_read_b64_tr_b16 {v(ATS[sid]+4*p+2,2)}, v4 offset:{64*mu}"]
        for q in range(7, -1, -1): A(b_read(0, q))
        A("s_waitcnt lgkmcnt(4)")
        for p in range(8):
            for r in a_reads2(0, p, 0): A(r)
            if p == 3: A("s_waitcnt lgkmcnt(4)")
        for rho in range(8):
            sid = rho % 2
            nxtA = [x for p in range(8) for x in a_reads2(rho + 1, p, 1 - sid)] if rho < 7 else []
            A("s_waitcnt lgkmcnt(0)" if rho == 0 else "s_waitcnt lgkmcnt(4)")
            for p in range(8):
                for q in range(7 - p, -1, -1):
                    i = p + q
                    cc = "0" if (rho == 0 and p == 0) else v(Y+4*i, 4)
                    if p == 0 and rho > 0 and q <= 3:
                        A(f"s_waitcnt lgkmcnt({7 if rho < 7 else q})")
                    A(f"v_mfma_f32_16x16x32_bf16 {v(Y+4*i,4)}, {v(ATS[sid]+4*p,4)}, {v(BT+4*q,4)}, {cc}")
                    if nxtA: A(nxtA.pop(0))
                if rho < 7: A(b_read(rho + 1, 7 - p))
            if rho == E("CBAR", -1):
                stp(A, "convh")
                A("s_barrier")
    stp(A, "conv1")
    A(f"""
    v_and_b32 v7, 15, v0
    v_lshrrev_b32 v6, 4, v0
    v_lshlrev_b32 v7, 5, v7
    v_lshl_add_u32 v7, v6, 3, v7        ; 32n + 8g
    v_add_u32 v8, s57, v7
    v_add_u32 v8, {4*COPY + 480}, v8
    s_add_u32 s61, s58, {WS_Z}
    """)
    for i in range(8): A(f"ds_read_b64 {v(64+2*i,2)}, v8 offset:{512*i}")
    A("s_waitcnt lgkmcnt(0)\ns_nop 3")
    for i in range(8):
        u0, u1 = 64 + 2*i, 64 + 2*i + 1
        y = Y + 4*i
        A(f"""
        v_lshlrev_b32 v96, 16, v{u0}
        v_and_b32 v97, 0xffff0000, v{u0}
        v_lshlrev_b32 v98, 16, v{u1}
        v_and_b32 v99, 0xffff0000, v{u1}
        v_fma_f32 v{y}, v96, s60, v{y}
        v_fma_f32 v{y+1}, v97, s60, v{y+1}
        v_fma_f32 v{y+2}, v98, s60, v{y+2}
        v_fma_f32 v{y+3}, v99, s60, v{y+3}
        v_cvt_pk_bf16_f32 v{y}, v{y}, v{y+1}
        v_cvt_pk_bf16_f32 v{y+1}, v{y+2}, v{y+3}
        buffer_store_dwordx2 {v(y,2)}, v7, s[{R_WS}:{R_WS+3}], s61 offen offset:{512*i}{SC}""")
    def z_publish():
        A("s_waitcnt vmcnt(0)")
        stp(A, "zdrained")
        L_zs = A.newlabel("zs")
        A("s_cmp_lt_u32 s2, 128\ns_cselect_b32 s64, 3, 2")
        lds_arrive_last(A, C_Z, "s64", L_zs, 2, 3)
        A(f"s_and_b32 s65, s2, 7\ns_add_u32 s65, s65, {L_Z}")
        global_arrive(A, "s65", 32, 2, 3)
        A.label(L_zs)
    if not E("SRV", 1):
        A("s_barrier")
        z_publish()
    else:
        L_srv = A.newlabel("srv")
        A(f"s_cmp_lg_u32 s{S_WAVE}, 10\ns_cbranch_scc1 {L_srv}")
        A("s_barrier")
        z_publish()
        prof_dump(A, 0, wsptr=P_WS)
        A("s_endpgm")
        A.label(L_srv)
        A(f"""
        s_sub_u32 s56, s{S_WAVE}, 8            ; bw
        s_mul_i32 s49, s56, {8*REC}
        s_mul_i32 s50, s56, {8*TB}
        s_mul_i32 s53, s56, 5120
        s_mul_i32 s62, s56, 40960
        s_barrier
        """)
        z_publish()
        def srv_kv(chunk):
            slot = chunk % 2
            for r in range(8):
                for part in range(3):
                    A(f"""
                    s_add_u32 m0, s49, {slot*CHUNK + r*REC + part*1024}
                    s_add_u32 s51, s50, {(chunk*16 + r)*TB}
                    buffer_load_dwordx4 v{VGB[part]}, s[{R_WS}:{R_WS+3}], s51 offen{SC} lds""")
        def srv_wo(region):
            n = 0
            groups = range(0, 12, 2) if region == "A" else range(0, 10, 2)
            for a2 in groups:
                for b in range(5):
                    lab = None
                    if region == "A" and a2 == 10:
                        lab = A.newlabel("wsk"); A(f"s_cmp_lg_u32 s56, 0\ns_cbranch_scc1 {lab}")
                    if region == "B" and a2 == 8 and b >= 2:
                        lab = A.newlabel("wsk"); A(f"s_cmp_lg_u32 s56, 0\ns_cbranch_scc1 {lab}")
                    ldso = (WO_A if region == "A" else 0) + a2*5120 + b*1024
                    go = a2*40960 + (0 if region == "A" else WO_BROW*1280)
                    A(f"""
                    s_add_u32 m0, s53, {ldso}
                    s_add_u32 s51, s62, {go}
                    buffer_load_dwordx4 v{WOVB+b}, s[{R_A}:{R_A+3}], s51 offen lds""")
                    if lab: A.label(lab)
                    else: n += 1
            return n
        srv_kv(2)
        n = srv_wo("A")
        A(f"s_waitcnt vmcnt({n})\ns_barrier")
        srv_kv(3)
        A("s_waitcnt vmcnt(0)\ns_barrier")
        srv_wo("B")
        A("s_waitcnt vmcnt(0)")
    prof_dump(A, 0, wsptr=P_WS)
    A.label(L_exit)
    A("s_endpgm")

def build():
    hdr = open("cdna_kernels/" + NAME + ".s.ref").read().split("; Override launch geometry")[0]
    A = Asm(); gen(A)
    out = hdr + f"; @launch grid=(256,1,1) block=(704,1,1) lds={LDS}\n"
    out += '.amdgcn_target "amdgcn-amd-amdhsa--gfx950"\n.text\n' + A.text()
    out += f""".section .rodata,"a"
.p2align 6
.amdhsa_kernel {KNAME}
  .amdhsa_next_free_vgpr {VGPRS}
  .amdhsa_next_free_sgpr 102
  .amdhsa_accum_offset {VGPRS}
  .amdhsa_group_segment_fixed_size 0
  .amdhsa_kernarg_size 96
  .amdhsa_user_sgpr_count 2
  .amdhsa_user_sgpr_kernarg_segment_ptr 1
  .amdhsa_system_sgpr_workgroup_id_x 1
  .amdhsa_float_denorm_mode_32 3
.end_amdhsa_kernel
"""
    return out

if __name__ == "__main__":
    open(sys.argv[1], "w").write(build())
```

```python
import os, sys, struct, math
from asmlib import *
from slots import ASSIGN, HEADWORD

NAME = "concat_heads__softmax_full_mha__ssm_conv_h3__prompt"
KNAME = NAME + "_kernel"
E = lambda k, d=0: int(os.environ.get(k, d))

TB = 8320
SEC = 64 * TB
WS_U  = 0x800000
WS_Z  = 0xB00000
WS_O  = 0xE00000
SYNC  = 0x1200000
WS_BYTES = 0x1214000
REC = 3072
CHUNK = 16 * REC
COPY = 4160
CONV_SZ = 4 * COPY + 4608
CONV_BASE = 98304
CNT = CONV_BASE + 3 * CONV_SZ
LDS = CNT + 256
WO_A = 98304
WO_BROW = 340
RED = CHUNK
VGPRS = 168
POLL_MAX = 40000
SC = os.environ.get("SCF", " sc1")
L_U, L_Z, L_O, L_QF = 0, 8, 24, 48
FLG = 8
N_LINES = 288
ZERO_WG = 225
C_QKV, C_U, C_Z, C_O, C_UOK, C_INIT, C_GO, C_KV, C_ISS = 0, 4, 8, 12, 16, 20, 24, 28, 32

def f32bits(x): return struct.unpack("<I", struct.pack("<f", x))[0]
QSCALE = f32bits(20 ** -0.5 * math.log2(math.e))

P_X, P_W, P_WO, P_BQ, P_BK, P_BV, P_SH, P_SK, P_SD, P_OUT, P_DBG, P_WS = 4, 6, 8, 10, 12, 14, 16, 18, 20, 22, 24, 26
R_WS = 28
R_A, R_B, R_C = 32, 36, 44
S_WAVE, S_XCD, S_J, S_RB, S_CB = 40, 41, 42, 43, 48
S_CBK = 48

STAMPS = dict(x.split(":") for x in os.environ.get("STAMPS", "b0:1,gend:2,uok:2,att0:4,att1:5,p3a:6").split(","))
def stp(A, name):
    if name in STAMPS: stamp(A, int(STAMPS[name]))

def poll(A, addr_v, thr_v, tmp, sleep=4, base=P_WS):
    L = A.newlabel("poll"); D = A.newlabel("polld")
    A(f"""
    v_cmp_ne_u32 vcc, 0, v{thr_v}
    s_mov_b32 s66, {POLL_MAX}
    s_nop 1
    s_mov_b64 exec, vcc
    {L}:
    global_load_dword v{tmp}, v{addr_v}, s[{base}:{base+1}] sc1
    s_waitcnt vmcnt(0)
    v_cmp_ge_u32 vcc, v{tmp}, v{thr_v}
    s_nop 3
    s_cmp_eq_u64 vcc, exec
    s_cbranch_scc1 {D}
    s_sleep {sleep}
    s_sub_u32 s66, s66, 1
    s_cmp_lg_u32 s66, 0
    s_cbranch_scc1 {L}
    {D}:
    s_mov_b64 exec, -1
    """)
def poll_flags(A, line0, nlines, t_addr, t_thr, tmp, sleep=4):
    A(f"""
    v_lshlrev_b32 v{t_addr}, 7, v0
    v_add_u32 v{t_addr}, {SYNC + 128*(FLG + line0)}, v{t_addr}
    v_cmp_gt_u32 vcc, {nlines}, v0
    v_mov_b32 v{tmp}, 1
    s_nop 0
    v_cndmask_b32 v{t_thr}, 0, v{tmp}, vcc
    """)
    poll(A, t_addr, t_thr, tmp, sleep)
def lds_set(A, off, t0, t1):
    A(f"""
    v_mov_b32 v{t0}, {CNT + off}
    v_mov_b32 v{t1}, 1
    ds_write_b32 v{t0}, v{t1}
    """)
def lds_add(A, off, t0, t1):
    A(f"""
    v_mov_b32 v{t0}, {CNT + off}
    v_mov_b32 v{t1}, 1
    s_mov_b64 exec, 1
    ds_add_u32 v{t0}, v{t1}
    s_mov_b64 exec, -1
    """)
def lds_wait(A, off, t0, t1, val=1, sleep=1):
    L = A.newlabel("lw"); D = A.newlabel("lwd")
    A(f"""
    v_mov_b32 v{t0}, {CNT + off}
    s_mov_b32 s66, {POLL_MAX*16}
    {L}:
    ds_read_b32 v{t1}, v{t0}
    s_waitcnt lgkmcnt(0)
    v_readfirstlane_b32 s67, v{t1}
    s_nop 3
    s_cmp_ge_u32 s67, {val}
    s_cbranch_scc1 {D}
    s_sleep {sleep}
    s_sub_u32 s66, s66, 1
    s_cmp_lg_u32 s66, 0
    s_cbranch_scc1 {L}
    {D}:
    """)
def lds_arrive_last(A, off, n_s, skip_lab, t0, t1):
    A(f"""
    v_mov_b32 v{t0}, {CNT + off}
    v_mov_b32 v{t1}, 1
    s_mov_b64 exec, 1
    ds_add_rtn_u32 v{t1}, v{t0}, v{t1}
    s_waitcnt lgkmcnt(0)
    s_mov_b64 exec, -1
    v_readfirstlane_b32 s66, v{t1}
    s_nop 3
    s_add_u32 s66, s66, 1
    s_cmp_lg_u32 s66, {n_s}
    s_cbranch_scc1 {skip_lab}
    """)
def global_arrive(A, line_s, total, t0, t1):
    L = A.newlabel("ga")
    A(f"""
    s_lshl_b32 s66, {line_s}, 7
    s_add_u32 s66, s66, {SYNC}
    v_mov_b32 v{t0}, s66
    v_mov_b32 v{t1}, 1
    s_mov_b64 exec, 1
    global_atomic_add v{t1}, v{t0}, v{t1}, s[{P_WS}:{P_WS+1}] sc0 sc1
    s_waitcnt vmcnt(0)
    s_mov_b64 exec, -1
    v_readfirstlane_b32 s66, v{t1}
    s_nop 3
    s_add_u32 s66, s66, 1
    s_cmp_lg_u32 s66, {total}
    s_cbranch_scc1 {L}
    v_add_u32 v{t0}, {128*FLG}, v{t0}
    v_mov_b32 v{t1}, 1
    s_mov_b64 exec, 1
    global_store_dword v{t0}, v{t1}, s[{P_WS}:{P_WS+1}] sc1
    s_mov_b64 exec, -1
    {L}:
    """)

def flag_store(A, line_s, t0, t1):
    A(f"""
    s_lshl_b32 s66, {line_s}, 7
    s_add_u32 s66, s66, {SYNC}
    v_mov_b32 v{t0}, s66
    v_mov_b32 v{t1}, 1
    s_mov_b64 exec, 1
    global_store_dword v{t0}, v{t1}, s[{P_WS}:{P_WS+1}] sc1
    s_mov_b64 exec, -1
    """)
def poll2(A, a0, a1, n1, t0, t1, sleep):
    L = A.newlabel("poll2"); D = A.newlabel("poll2d")
    A(f"""
    s_mov_b32 s66, {POLL_MAX}
    {L}:
    global_load_dword v{t0}, v{a0}, s[{P_WS}:{P_WS+1}] sc1
    global_load_dword v{t1}, v{a1}, s[{P_WS}:{P_WS+1}] sc1
    s_waitcnt vmcnt(0)
    v_min_u32 v{t0}, v{t0}, v{t1}
    v_cmp_le_u32 vcc, 1, v{t0}
    s_nop 3
    s_cmp_eq_u64 vcc, -1
    s_cbranch_scc1 {D}
    s_sleep {sleep}
    s_sub_u32 s66, s66, 1
    s_cmp_lg_u32 s66, 0
    s_cbranch_scc1 {L}
    {D}:
    """)

def gen(A):
    A(f".globl {KNAME}")
    A(".p2align 8")
    A(f".type {KNAME},@function")
    A.label(KNAME)
    L_exit, L_nog, L_prod, L_bw, L_heads, L_conv = "L_exit", "L_nog", "L_prod", "L_bw", "L_heads", "L_conv"
    A(f"""
    s_cmp_ge_u32 s2, 256
    s_cbranch_scc1 {L_exit}
    s_load_dwordx16 s[4:19], s[0:1], 0
    s_load_dwordx8 s[20:27], s[0:1], 64
    v_lshrrev_b32 v1, 6, v0
    v_and_b32 v0, 63, v0
    v_readfirstlane_b32 s{S_WAVE}, v1
    s_and_b32 s{S_XCD}, s2, 7
    s_lshr_b32 s{S_J}, s2, 3
    s_lshr_b32 s{S_RB}, s{S_XCD}, 1
    s_lshl_b32 s{S_RB}, s{S_RB}, 2
    s_and_b32 s49, s{S_J}, 3
    s_add_u32 s{S_RB}, s{S_RB}, s49        ; rb
    s_and_b32 s{S_CB}, s{S_XCD}, 1
    s_lshl_b32 s{S_CB}, s{S_CB}, 3
    s_lshr_b32 s49, s{S_J}, 2
    s_add_u32 s{S_CB}, s{S_CB}, s49        ; cb
    s_cmp_lg_u32 s{S_WAVE}, 0
    s_cbranch_scc1 L_noldsinit
    v_mov_b32 v2, {CNT}
    v_mov_b32 v4, 0
    v_mov_b32 v5, 0
    v_mov_b32 v6, 0
    v_mov_b32 v7, 0
    ds_write_b128 v2, v[4:7]
    ds_write_b128 v2, v[4:7] offset:16
    ds_write_b128 v2, v[4:7] offset:32
    L_noldsinit:
    s_waitcnt lgkmcnt(0)
    """)
    EARLY = E("EARLY", 1)
    if not EARLY: A("s_barrier")
    srd(A, R_WS, P_WS, WS_BYTES)
    prof_init(A)
    A(f"""
    s_cmp_ge_u32 s{S_WAVE}, 8
    s_cbranch_scc1 {L_bw}
    s_cmp_ge_u32 s{S_CB}, 15
    s_cbranch_scc1 {L_nog}
    s_cmp_ge_u32 s{S_WAVE}, 4
    s_cbranch_scc1 {L_prod}
    """)
    slot_of = lambda st: (st + 2) % 3
    if EARLY: A("s_barrier")

    A(f"""
    s_lshr_b32 s56, s{S_WAVE}, 1       ; wr
    s_and_b32 s57, s{S_WAVE}, 1        ; wc
    v_and_b32 v2, 31, v0           ; n
    v_lshrrev_b32 v3, 5, v0        ; h
    v_bfe_u32 v4, v0, 1, 3         ; (l>>1)&7
    s_lshl_b32 s54, s56, 6
    v_add_u32 v5, s54, v2
    v_lshlrev_b32 v5, 7, v5        ; token_local*128
    """)
    for ks in range(4):
        A(f"""
        v_add_u32 v6, {2*ks}, v3
        v_xor_b32 v6, v6, v4
        v_lshl_add_u32 v{16+ks}, v6, 4, v5
        v_add_u32 v{20+ks}, 0x10000, v{16+ks}""")
    def w_addr():
        A(f"""
        v_lshrrev_b32 v2, 4, v0        ; g
        v_bfe_u32 v3, v0, 2, 2         ; r
        v_and_b32 v4, 3, v0            ; c4
        v_lshrrev_b32 v5, 1, v2
        v_lshl_add_u32 v5, v5, 3, v3   ; k_local
        v_lshlrev_b32 v5, 8, v5
        v_add_u32 v5, 16384, v5
        v_and_b32 v6, 1, v2
        v_lshl_add_u32 v6, v6, 2, v4   ; rg = 4*(g&1) + c4
        v_mul_u32_u24 v6, 5, v6
        v_lshlrev_b32 v7, 2, v3        ; 4r
        """)
        for ft in range(2):
            A(f"""
            v_lshrrev_b64 v[8:9], v6, s[{60+2*ft}:{61+2*ft}]
            v_and_b32 v8, 31, v8
            v_lshrrev_b32 v9, 1, v8
            v_xor_b32 v9, v9, v7
            v_and_b32 v8, 1, v8
            v_lshlrev_b32 v8, 3, v8
            v_lshl_add_u32 v8, v9, 4, v8
            v_add_u32 v{24+ft}, v5, v8
            v_add_u32 v{26+ft}, 0x10000, v{24+ft}""")
    FR = [dict(X=[32, 36], W=[40, 44]), dict(X=[48, 52], W=[56, 60]), dict(X=[132, 136], W=[140, 144])]
    ACC = lambda ft, tt: 64 + 16 * (2 * ft + tt)
    def reads(st, ks, setid):
        slot = slot_of(st); hi = slot == 2
        so = 0 if hi else slot * 32768
        xa = (20 if hi else 16) + ks; wa = (26 if hi else 24); F = FR[setid]
        return [f"ds_read_b128 {v(F['X'][0],4)}, v{xa} offset:{so}",
                f"ds_read_b64_tr_b16 {v(F['W'][0],2)}, v{wa} offset:{so + ks*4096}",
                f"ds_read_b64_tr_b16 {v(F['W'][0]+2,2)}, v{wa} offset:{so + ks*4096 + 1024}",
                f"ds_read_b128 {v(F['X'][1],4)}, v{xa} offset:{so + 4096}",
                f"ds_read_b64_tr_b16 {v(F['W'][1],2)}, v{wa+1} offset:{so + ks*4096}",
                f"ds_read_b64_tr_b16 {v(F['W'][1]+2,2)}, v{wa+1} offset:{so + ks*4096 + 1024}"]
    def mfmas(setid, first, vmode):
        F = FR[setid]; m = []
        for (ft, tt) in [(0, 0), (0, 1), (1, 0), (1, 1)]:
            d = ACC(ft, tt); c = "0" if first else v(d, 16)
            a_, b_ = (F['X'][tt], F['W'][ft]) if vmode else (F['W'][ft], F['X'][tt])
            m.append(f"v_mfma_f32_32x32x16_bf16 {v(d,16)}, {v(a_,4)}, {v(b_,4)}, {c}")
        return m
    def main_loop(vmode):
        A("s_barrier")
        stp(A, "b0")
        if not E("G3", 0):
            for r in reads(0, 0, 0): A(r)
            n = 0
            for st in range(10):
                for ks in range(4):
                    setid = n % 2
                    m = mfmas(setid, n == 0, vmode)
                    A("s_waitcnt lgkmcnt(0)")
                    if ks == 3 and st < 9:
                        A("s_barrier")
                        stp(A, f"gb{st+1}")
                    A(m[0])
                    if ks < 3:
                        for r in reads(st, ks + 1, 1 - setid): A(r)
                    elif st < 9:
                        for r in reads(st + 1, 0, 1 - setid): A(r)
                    A(m[1]); A(m[2]); A(m[3])
                    n += 1
        else:
            for r in reads(0, 0, 0): A(r)
            for r in reads(0, 1, 1): A(r)
            for n in range(40):
                st, ks = divmod(n, 4)
                m = mfmas(n % 3, n == 0, vmode)
                if ks == 2 and st < 9:
                    A("s_waitcnt lgkmcnt(0)\ns_barrier")
                    stp(A, f"gb{st+1}")
                else:
                    A(f"s_waitcnt lgkmcnt({6 if n + 1 < 40 else 0})")
                A(m[0])
                if n + 2 < 40:
                    st2, ks2 = divmod(n + 2, 4)
                    for r in reads(st2, ks2, (n + 2) % 3): A(r)
                A(m[1]); A(m[2]); A(m[3])
        stp(A, "gend")
        A("s_nop 15")
    L_vpath = A.newlabel("vpath"); L_gsig = A.newlabel("gsig"); L_vdone = A.newlabel("vdone")
    A(f"""
    s_cmp_ge_u32 s{S_CB}, 10
    s_cbranch_scc1 {L_vpath}
    s_cmp_ge_u32 s{S_CB}, 5
    s_cselect_b32 s55, 5, 0
    s_sub_u32 s55, s{S_CB}, s55        ; cb'
    s_lshl_b32 s55, s55, 1
    s_add_u32 s55, s55, s57
    """)
    for var in range(10):
        cbp, wc = divmod(var, 2); T = []
        for ft in range(2):
            tab = [0]*8
            for si, it in enumerate(ASSIGN[cbp][2*wc + ft]):
                ap, h = divmod(si, 2)
                tab[4*ap + h] = it[1]; tab[4*ap + 2 + h] = it[2]
            T.append(sum(g << (5*i) for i, g in enumerate(tab)))
        nxt = A.newlabel("var")
        A(f"""
        s_cmp_lg_u32 s55, {var}
        s_cbranch_scc1 {nxt}
        s_mov_b32 s60, {hex(T[0] & 0xffffffff)}
        s_mov_b32 s61, {hex(T[0] >> 32)}
        s_mov_b32 s62, {hex(T[1] & 0xffffffff)}
        s_mov_b32 s63, {hex(T[1] >> 32)}
        s_branch {L_vdone}
        {nxt}:""")
    A(f"""
    s_mov_b64 s[60:61], 0
    s_mov_b64 s[62:63], 0
    {L_vdone}:
    """)
    w_addr()
    A(f"""
    s_mov_b32 s58, {hex(QSCALE)}
    s_cmp_ge_u32 s{S_CB}, 5
    s_cmov_b32 s58, 0x3f800000
    s_mov_b32 s59, s58
    v_lshlrev_b32 v128, 4, v0
    s_lshl_b32 s54, s{S_RB}, 2
    s_lshl_b32 s55, s56, 1
    s_add_u32 s54, s54, s55
    s_lshl_b32 s55, s{S_CB}, 6
    s_add_u32 s54, s54, s55
    s_mul_i32 s54, s54, {TB}
    s_lshl_b32 s55, s57, 12        ; wc*4096
    s_add_u32 s64, s54, s55
    s_add_u32 s65, s64, {TB}
    """)
    main_loop(False)
    for ft in range(2):
        for tt in range(2):
            d = ACC(ft, tt)
            for i in range(0, 16, 2):
                A(f"v_pk_mul_f32 {v(d+i,2)}, {v(d+i,2)}, s[58:59]")
            for ap in range(2):
                for i in range(4):
                    A(f"v_cvt_pk_bf16_f32 v{d+8*ap+i}, v{d+8*ap+2*i}, v{d+8*ap+2*i+1}")
                A(f"buffer_store_dwordx4 {v(d+8*ap,4)}, v128, s[{R_WS}:{R_WS+3}], s{64+tt} offen offset:{ft*2048 + ap*1024}{SC}")
    A(f"s_branch {L_gsig}")
    A.label(L_vpath)
    nat = sum(i << (5*i) for i in range(8)); rep = sum(1 << (5*i) for i in range(8))
    A(f"""
    s_lshl_b32 s54, s57, 4
    s_mul_i32 s55, s54, {hex(rep & 0xffffffff)}
    s_mul_hi_u32 s61, s54, {hex(rep & 0xffffffff)}
    s_mul_i32 s66, s54, {hex(rep >> 32)}
    s_add_u32 s61, s61, s66
    s_add_u32 s60, s55, {hex(nat & 0xffffffff)}
    s_addc_u32 s61, s61, {hex(nat >> 32)}
    s_add_u32 s62, s60, {hex((8*rep) & 0xffffffff)}
    s_addc_u32 s63, s61, {hex((8*rep) >> 32)}
    """)
    w_addr()
    A(f"""
    v_lshlrev_b32 v128, 4, v0
    s_lshl_b32 s54, s{S_RB}, 2
    s_lshl_b32 s55, s{S_CB}, 6
    s_add_u32 s54, s54, s55
    s_add_u32 s55, s54, s{S_WAVE}
    s_mul_i32 s55, s55, {TB}
    s_add_u32 s58, s55, 8192
    s_lshl_b32 s55, s56, 1
    s_add_u32 s54, s54, s55
    s_mul_i32 s54, s54, {TB}
    s_lshl_b32 s55, s57, 11
    s_add_u32 s62, s54, s55
    s_add_u32 s63, s62, 4096
    s_add_u32 s64, s62, {TB}
    s_add_u32 s65, s64, 4096
    """)
    main_loop(True)
    for ft in range(2):
        for tt in range(2):
            d = ACC(ft, tt)
            for f in range(2):
                for i in range(4):
                    A(f"v_cvt_pk_bf16_f32 v{d+8*f+i}, v{d+8*f+2*i}, v{d+8*f+2*i+1}")
                A(f"buffer_store_dwordx4 {v(d+8*f,4)}, v128, s[{R_WS}:{R_WS+3}], s{62+2*tt+f} offen offset:{ft*1024}{SC}")
    A(f"""
    v_cmp_eq_u32 vcc, 0, v0
    v_mov_b32 v36, 0x3f803f80
    s_nop 0
    v_cndmask_b32 v32, 0, v36, vcc
    v_cndmask_b32 v33, 0, v36, vcc
    v_cndmask_b32 v34, 0, v36, vcc
    v_cndmask_b32 v35, 0, v36, vcc
    s_mov_b64 exec, 15
    buffer_store_dwordx4 v[32:35], v128, s[{R_WS}:{R_WS+3}], s58 offen{SC}
    s_mov_b64 exec, -1
    """)
    A.label(L_gsig)
    stp(A, "gstored")
    A("s_waitcnt vmcnt(0)")
    stp(A, "gdrained")
    L_qs = A.newlabel("qs")
    lds_arrive_last(A, C_QKV, 4, L_qs, 2, 3)
    lds_wait(A, C_INIT, 2, 3)
    A(f"""
    s_lshl_b32 s65, s{S_CB}, 4
    s_add_u32 s65, s65, s{S_RB}
    s_add_u32 s65, s65, {L_QF}
    """)
    flag_store(A, "s65", 2, 3)
    A.label(L_qs)
    stp(A, "gsig")
    A(f"s_branch {L_heads}")

    A.label(L_prod)
    srd(A, R_A, P_X, 2048 * 640 * 2)
    srd(A, R_B, P_W, 640 * 1920 * 2)
    VXE, VXO, VW = 10, 11, 12
    A(f"""
    s_sub_u32 s55, s{S_WAVE}, 4            ; pw
    s_lshl_b32 s49, s55, 12
    s_mul_i32 s53, s55, 61440
    s_and_b32 s50, s{S_RB}, 3
    s_mul_i32 s50, s50, 3
    s_add_u32 s50, s50, s{S_CB}
    s_cmp_ge_u32 s50, 20
    s_cselect_b32 s51, 20, 0
    s_sub_u32 s50, s50, s51
    s_cmp_ge_u32 s50, 10
    s_cselect_b32 s51, 10, 0
    s_sub_u32 s50, s50, s51
    """)
    if not E("ROT", 1): A("s_mov_b32 s50, 0")
    A(f"""
    s_lshl_b32 s51, s50, 7
    s_mul_i32 s52, s50, 245760
    s_add_u32 s52, s52, s53
    v_lshrrev_b32 v2, 3, v0
    v_lshrrev_b32 v3, 4, v0
    v_and_b32 v4, 7, v0
    v_xor_b32 v4, v4, v3
    s_lshl_b32 s54, s{S_RB}, 7
    s_lshl_b32 s55, s55, 5
    s_add_u32 s54, s54, s55
    v_add_u32 v2, s54, v2
    v_mul_u32_u24 v2, 1280, v2
    v_lshl_add_u32 v{VXE}, v4, 4, v2
    v_xor_b32 v{VXO}, 64, v{VXE}
    v_and_b32 v4, 15, v0
    v_lshlrev_b32 v5, 2, v3
    v_xor_b32 v4, v4, v5
    v_mul_u32_u24 v5, 3840, v3
    v_lshl_add_u32 v{VW}, v4, 4, v5
    s_lshl_b32 s54, s{S_CB}, 8
    v_add_u32 v{VW}, s54, v{VW}
    """)
    def dma_stage(st):
        so = slot_of(st) * 32768
        for i in range(4):
            A(f"""
            s_add_u32 m0, s49, {so + i*1024}
            s_add_u32 s54, s51, {i*10240}
            buffer_load_dwordx4 v{VXO if i % 2 else VXE}, s[{R_A}:{R_A+3}], s54 offen lds""")
        for i in range(4):
            A(f"""
            s_add_u32 m0, s49, {so + 16384 + i*1024}
            s_add_u32 s54, s52, {i*15360}
            buffer_load_dwordx4 v{VW}, s[{R_B}:{R_B+3}], s54 offen lds""")
        A("""
        s_add_u32 s50, s50, 1
        s_cmp_eq_u32 s50, 10
        s_cselect_b32 s50, 0, s50
        s_lshl_b32 s51, s50, 7
        s_mul_i32 s52, s50, 245760
        s_add_u32 s52, s52, s53""")
    for st in range(3): dma_stage(st)
    if EARLY: A("s_barrier")
    A("s_waitcnt vmcnt(16)\ns_barrier")
    stp(A, "b0")
    for s_ in range(1, 8):
        A("s_waitcnt vmcnt(8)\ns_barrier")
        dma_stage(s_ + 2)
    A("s_waitcnt vmcnt(8)\ns_barrier")
    A("s_waitcnt vmcnt(0)\ns_barrier")
    stp(A, "b9")
    A(f"s_branch {L_heads}")

    A.label(L_nog)
    if EARLY: A("s_barrier")
    L_nz = A.newlabel("nz")
    A(f"""
    s_cmp_lg_u32 s2, {ZERO_WG}
    s_cbranch_scc1 {L_nz}
    v_lshlrev_b32 v2, 4, v0
    v_add_u32 v2, {SYNC}, v2
    v_mov_b32 v4, 0
    v_mov_b32 v5, 0
    v_mov_b32 v6, 0
    v_mov_b32 v7, 0
    s_mul_i32 s54, s{S_WAVE}, {5*1024}
    """)
    for i in range(5):
        A(f"buffer_store_dwordx4 v[4:7], v2, s[{R_WS}:{R_WS+3}], s54 offen sc1\ns_add_u32 s54, s54, 1024")
    A("s_waitcnt vmcnt(0)")
    lds_arrive_last(A, C_KV + 8, 8, L_nz, 2, 3)
    A(f"""
    v_mov_b32 v2, 0
    v_mov_b32 v3, 1
    s_mov_b64 exec, 1
    global_store_dword v2, v3, s[{P_DBG}:{P_DBG+1}] sc1
    s_mov_b64 exec, -1
    {L_nz}:
    s_branch L_nogtask
    L_nogdone:
    """)
    A(f"""
    v_mov_b32 v2, {CNT + C_QKV}
    v_mov_b32 v3, 4
    ds_write_b32 v2, v3
    """)

    A.label(L_heads)
    Q1, Q2 = 4, 8
    O = 16
    S = [32, 48]
    P = [64, 72]
    KA, KB, V0, V1 = 80, 84, 88, 92
    AK = [96, 99]; AK2 = [97, 100]; AV = [98, 101]
    KA0, KB0 = 104, 108
    WOV = 120
    VG = [126, 127, 128]; VKP, VKS, VVF = 129, 130, 131
    def gather_setup(VG=VG, VKP=VKP, VKS=VKS, VVF=VVF, WOV=WOV):
        A(f"""
        s_lshl_b32 s43, s{S_XCD}, 2
        s_lshr_b32 s44, s{S_J}, 3
        s_add_u32 s43, s43, s44        ; head
        s_and_b32 s44, s{S_J}, 7       ; qb
        s_lshl_b32 s46, s44, 3
        s_add_u32 s46, s46, s{S_WAVE}  ; q tile
        s_mov_b32 s47, {hex(HEADWORD[0])}
        """)
        for h in range(1, 32):
            A(f"s_cmp_eq_u32 s43, {h}\ns_cmov_b32 s47, {hex(HEADWORD[h])}")
        for k, dst in enumerate((50, 51, 52)):
            A(f"""
            s_bfe_u32 s54, s47, {hex((3 << 16) | (7*k))}
            s_bfe_u32 s55, s47, {hex((4 << 16) | (7*k + 3))}
            s_mul_i32 s54, s54, {SEC}
            s_lshl_b32 s55, s55, 9
            s_add_u32 s{dst}, s54, s55""")
        A(f"""
        v_and_b32 v3, 31, v0           ; n
        v_lshrrev_b32 v12, 5, v0       ; h
        v_lshlrev_b32 v13, 4, v3       ; n*16
        v_cmp_eq_u32 vcc, 0, v12
        v_mov_b32 v14, s50
        v_mov_b32 v15, s51
        v_cndmask_b32 v14, v15, v14, vcc
        v_add_u32 v{VKP}, v14, v13
        s_and_b32 s54, s43, 1
        s_lshl_b32 s54, s54, 3
        s_add_u32 s54, s54, s52
        v_add_u32 v{VKS}, s54, v13
        v_add_u32 v{VG[0]}, {5*SEC + 2*TB}, v{VKP}
        s_mul_i32 s53, s43, 20
        s_add_u32 s45, s53, 19
        s_lshr_b32 s45, s45, 7
        s_add_u32 s45, s45, 10
        s_mul_i32 s45, s45, {SEC}
        s_add_u32 s45, s45, 8192
        """)
        def vchunk(dst, seg_v, m_v):
            A(f"""
            v_add_u32 v5, s53, v{m_v}          ; F
            v_lshrrev_b32 v6, 7, v5
            v_add_u32 v6, 10, v6
            v_mul_u32_u24 v6, {SEC // 64}, v6
            v_lshlrev_b32 v6, 6, v6
            v_bfe_u32 v7, v5, 5, 2
            v_lshlrev_b32 v7, 10, v7
            v_add_u32 v6, v6, v7
            v_and_b32 v7, 31, v5
            v_lshl_add_u32 v6, v7, 4, v6
            v_lshrrev_b32 v7, 1, v{seg_v}
            v_lshl_add_u32 v6, v7, 12, v6
            v_and_b32 v7, 1, v{seg_v}
            v_lshl_add_u32 v6, v7, 9, v6
            v_subrev_u32 v7, 20, v{m_v}
            v_and_b32 v7, 3, v7
            v_lshlrev_b32 v7, 4, v7
            v_add_u32 v7, s45, v7
            v_cmp_gt_u32 vcc, 20, v{m_v}
            s_nop 1
            v_cndmask_b32 v{dst}, v7, v6, vcc
            """)
        A("""
        v_cmp_gt_u32 vcc, 56, v0
        v_subrev_u32 v8, 32, v0
        v_subrev_u32 v9, 56, v0
        v_cndmask_b32 v8, v9, v8, vcc          ; m
        v_mov_b32 v9, 1
        v_mov_b32 v10, 0
        v_cndmask_b32 v9, v9, v10, vcc         ; seg
        """)
        vchunk(11, 9, 8)
        A(f"""
        v_add_u32 v6, s52, v13
        v_add_u32 v6, {5*SEC + 2*TB}, v6
        v_cmp_gt_u32 vcc, 32, v0
        s_nop 1
        v_cndmask_b32 v{VG[1]}, v11, v6, vcc
        v_cmp_gt_u32 vcc, 16, v0
        v_cmp_gt_u32 s[54:55], 40, v0
        v_subrev_u32 v8, 40, v0
        v_subrev_u32 v10, 16, v0
        v_cndmask_b32 v8, v8, v10, s[54:55]
        v_add_u32 v10, 8, v0
        v_cndmask_b32 v8, v8, v10, vcc         ; m
        v_mov_b32 v9, 3
        v_mov_b32 v10, 2
        v_cndmask_b32 v9, v9, v10, s[54:55]
        v_mov_b32 v10, 1
        v_cndmask_b32 v9, v9, v10, vcc         ; seg
        """)
        vchunk(VG[2], 9, 8)
        A("v_mov_b32 v8, v3\nv_mov_b32 v9, v12")
        vchunk(VVF, 9, 8)
        srd(A, R_A, P_WO, 640 * 640 * 2)
        A(f"s_and_b32 s52, s{S_J}, 7\ns_mul_i32 s52, s52, 160")
        for b in range(5):
            A(f"""
            v_add_u32 v5, {64*b}, v0
            v_mul_u32_u24 v6, 52429, v5
            v_lshrrev_b32 v6, 19, v6
            v_mul_u32_u24 v7, 10, v6
            v_sub_u32 v7, v5, v7
            v_mul_u32_u24 v6, 1280, v6
            v_lshl_add_u32 v6, v7, 4, v6
            v_add_u32 v{WOV+b}, s52, v6""")

    gather_setup()
    A(f"""
    s_mul_i32 s53, s{S_WAVE}, 5120
    s_mul_i32 s62, s{S_WAVE}, 40960
    s_mov_b32 s60, 0
    v_lshlrev_b32 v2, 4, v0
    v_mul_u32_u24 v13, 384, v12
    v_lshl_add_u32 v13, v3, 4, v13
    v_add_u32 v{AV[0]}, 1536, v13
    v_mov_b32 v{AK[0]}, v2
    s_and_b32 s54, s43, 1
    s_lshl_b32 s54, s54, 3
    s_add_u32 s54, s54, 1024
    v_lshlrev_b32 v1, 4, v3
    v_add_u32 v{AK2[0]}, s54, v1
    v_add_u32 v{AV[1]}, {CHUNK}, v{AV[0]}
    v_add_u32 v{AK[1]}, {CHUNK}, v{AK[0]}
    v_add_u32 v{AK2[1]}, {CHUNK}, v{AK2[0]}
    v_cmp_lt_u32 vcc, 20, v3
    v_mov_b32 v5, 0x30000
    v_mov_b32 v{Q2+2}, 0
    v_cndmask_b32 v{AV[0]}, v{AV[0]}, v5, vcc
    v_cndmask_b32 v{AV[1]}, v{AV[1]}, v5, vcc
    v_mov_b32 v{Q2+3}, 0
    v_mov_b32 v{KB+2}, 0
    v_mov_b32 v{KB+3}, 0
    v_mov_b32 v{KB0+2}, 0
    v_mov_b32 v{KB0+3}, 0
    v_mov_b32 v164, 0x7ff00000
    s_mul_i32 s45, s46, {TB}
    s_mul_i32 s49, s{S_WAVE}, {REC}
    s_mul_i32 s50, s{S_WAVE}, {TB}
    """)
    stp(A, "hset")
    L_gow = A.newlabel("gow"); L_go = A.newlabel("go")
    A(f"""
    s_cmp_lg_u32 s{S_WAVE}, 0
    s_cbranch_scc1 {L_gow}
    """)
    lds_wait(A, C_QKV, 5, 6, val=4)
    lds_wait(A, C_INIT, 5, 6)
    A(f"""
    s_mul_i32 s54, s43, 5
    s_add_u32 s55, s54, 4
    s_lshr_b32 s54, s54, 5             ; c0
    s_lshr_b32 s55, s55, 5             ; c1
    v_bfe_u32 v5, v0, 4, 1
    v_cmp_eq_u32 vcc, 1, v5
    v_mov_b32 v6, s54
    v_mov_b32 v7, s55
    v_cndmask_b32 v6, v6, v7, vcc      ; c0 / c1
    v_lshrrev_b32 v5, 5, v0
    v_mul_u32_u24 v5, 5, v5
    v_add_u32 v5, v5, v6
    v_add_u32 v6, 10, v6
    v_and_b32 v7, 15, v0
    v_lshl_add_u32 v5, v5, 4, v7
    v_lshl_add_u32 v6, v6, 4, v7
    v_lshlrev_b32 v5, 7, v5
    v_lshlrev_b32 v6, 7, v6
    v_add_u32 v5, {SYNC + 128*L_QF}, v5
    v_add_u32 v6, {SYNC + 128*L_QF}, v6
    """)
    poll2(A, 5, 6, 64, 7, 8, E("PS_QKV", 2))
    lds_set(A, C_GO, 5, 6)
    A(f"s_branch {L_go}")
    A.label(L_gow)
    lds_wait(A, C_GO, 5, 6)
    A.label(L_go)
    stp(A, "go")
    A(f"""
    buffer_load_dwordx4 {v(Q1,4)}, v{VKP}, s[{R_WS}:{R_WS+3}], s45 offen{SC}
    buffer_load_dwordx2 {v(Q2,2)}, v{VKS}, s[{R_WS}:{R_WS+3}], s45 offen{SC}
    s_mov_b32 s48, {5*SEC}
    buffer_load_dwordx4 {v(KA0,4)}, v{VKP}, s[{R_WS}:{R_WS+3}], s48 offen{SC}
    buffer_load_dwordx2 {v(KB0,2)}, v{VKS}, s[{R_WS}:{R_WS+3}], s48 offen{SC}
    s_mov_b32 s48, {5*SEC + TB}
    buffer_load_dwordx4 {v(KA,4)}, v{VKP}, s[{R_WS}:{R_WS+3}], s48 offen{SC}
    buffer_load_dwordx2 {v(KB,2)}, v{VKS}, s[{R_WS}:{R_WS+3}], s48 offen{SC}
    """)
    def kv_piece(chunk, i):
        slot = chunk % 2; rr, part = divmod(i, 3)
        return f"""
        s_add_u32 m0, s49, {slot*CHUNK + rr*8*REC + part*1024}
        s_add_u32 s51, s50, {(chunk*16 + rr*8)*TB}
        buffer_load_dwordx4 v{VG[part]}, s[{R_WS}:{R_WS+3}], s51 offen{SC} lds"""
    for i in range(6): A(kv_piece(0, i))
    if not E("C1LATE", 1):
        for i in range(6): A(kv_piece(1, i))
    A(f"""
    v_cmp_gt_u32 vcc, 32, v0
    s_waitcnt vmcnt({0 if E("C1LATE", 1) else 6})
    s_nop 0
    v_cndmask_b32 v{Q2}, 0, v{Q2}, vcc
    v_cndmask_b32 v{Q2+1}, 0, v{Q2+1}, vcc
    """)
    stp(A, "kvok")
    lds_add(A, C_KV, 12, 13)
    lds_wait(A, C_KV, 12, 13, val=8, sleep=0)
    stp(A, "att0")

    def wo_piece(kind, b):
        if kind == 0:
            return f"""
            s_add_u32 m0, s53, {WO_A + b*1024}
            s_nop 0
            buffer_load_dwordx4 v{WOV+b}, s[{R_A}:{R_A+3}], s62 offen lds"""
        if kind == 2:
            return f"""
            s_add_u32 m0, s53, {b*1024}
            s_add_u32 s51, s62, {WO_BROW*1280}
            buffer_load_dwordx4 v{WOV+b}, s[{R_A}:{R_A+3}], s51 offen lds"""
        lab = A.newlabel("wos")
        if kind == 1: lim, ldso, go = 3, WO_A + 8*5120, 8*40960
        else: lim, ldso, go = (2 if b < 2 else 1), 8*5120, WO_BROW*1280 + 8*40960
        return f"""
            s_cmp_ge_u32 s{S_WAVE}, {lim}
            s_cbranch_scc1 {lab}
            s_add_u32 m0, s53, {ldso + b*1024}
            s_add_u32 s51, s62, {go}
            buffer_load_dwordx4 v{WOV+b}, s[{R_A}:{R_A+3}], s51 offen lds
            {lab}:"""
    def qk2(Sd, Kr):
        if E("K8", 1): return f"v_mfma_f32_32x32x8bf16_1k {v(Sd,16)}, {v(Kr,2)}, {v(Q2,2)}, {v(Sd,16)}"
        return f"v_mfma_f32_32x32x16_bf16 {v(Sd,16)}, {v(Kr,4)}, {v(Q2,4)}, {v(Sd,16)}"
    PZ, PQ, PO = 132, 148, 164
    def post_task(skip):
        L_t3 = A.newlabel("t3"); L_tgo = A.newlabel("tgo")
        A(f"""
        s_cmp_eq_u32 s{S_WAVE}, 0
        s_cbranch_scc1 {skip}
        s_cmp_ge_u32 s{S_WAVE}, 4
        s_cbranch_scc1 {skip}
        s_cmp_eq_u32 s{S_WAVE}, 3
        s_cbranch_scc1 {L_t3}
        s_lshl_b32 s56, s2, 1
        s_sub_u32 s57, s{S_WAVE}, 1
        s_add_u32 s56, s56, s57
        s_branch {L_tgo}
        {L_t3}:
        s_cmp_ge_u32 s2, 128
        s_cbranch_scc1 {skip}
        s_add_u32 s56, s2, 512
        {L_tgo}:
        """)
    def post_probe():
        A(f"""
        v_min_u32 v12, 7, v0
        v_lshlrev_b32 v12, 7, v12
        v_add_u32 v12, {SYNC + 128*(FLG + L_Z)}, v12
        global_load_dword v166, v12, s[{P_WS}:{P_WS+1}] sc1
        """)
    def post_prefetch():
        Ls = A.newlabel("pps"); Lok = A.newlabel("ppok")
        post_task(Ls)
        A(f"""
        v_cmp_le_u32 vcc, 1, v166
        s_mul_i32 s57, s56, 52429
        s_lshr_b32 s57, s57, 19
        s_mul_i32 s58, s57, 10
        s_sub_u32 s58, s56, s58
        s_cmp_eq_u64 vcc, -1
        s_cbranch_scc1 {Lok}
        """)
        poll_flags(A, L_Z, 8, 12, 13, 14)
        A.label(Lok)
        srd(A, R_B, P_BQ, 2048 * 640 * 2)
        A(f"""
        v_and_b32 v12, 7, v0
        v_lshrrev_b32 v13, 3, v0
        s_lshl_b32 s54, s58, 6
        v_lshl_add_u32 v12, v12, 3, s54
        s_lshl_b32 s55, s57, 5
        v_lshl_add_u32 v13, v13, 2, s55
        v_mul_u32_u24 v14, 1280, v13
        v_lshl_add_u32 v14, v12, 1, v14
        v_mul_u32_u24 v15, 2560, v13
        v_lshl_add_u32 v15, v12, 1, v15
        v_add_u32 v{PO}, 1280, v15
        v_lshlrev_b32 v15, 12, v12
        v_lshl_add_u32 v15, v13, 1, v15
        v_add_u32 v{PO+1}, {WS_Z}, v15
        """)
        for j in range(4):
            A(f"buffer_load_dwordx4 {v(PQ+4*j,4)}, v14, s[{R_B}:{R_B+3}], 0 offen offset:{1280*j}")
        for i in range(8):
            A(f"s_mov_b32 s54, {i*4096}")
            A(f"buffer_load_dwordx2 {v(PZ+2*i,2)}, v{PO+1}, s[{R_WS}:{R_WS+3}], s54 offen{SC}")
        A.label(Ls)
    A(f"v_mfma_f32_32x32x16_bf16 {v(S[0],16)}, {v(KA0,4)}, {v(Q1,4)}, 0")
    A(qk2(S[0], KB0))
    A("s_nop 7\ns_nop 7")
    for J in range(64):
        c = J // 16; slot = c % 2; j = J % 16
        Sc, Sn = S[J % 2], S[(J + 1) % 2]
        Pc, Pp = P[J % 2], P[(J + 1) % 2]
        off = j * REC
        if j == 0 and J > 0:
            stp(A, f"attpre{J}")
            if J == 48 and E("POSTPF", 1): post_probe()
            A(f"s_waitcnt vmcnt({5 if (J == 32 and not E('SRV', 1)) else 0}) lgkmcnt(0)\ns_barrier")
            stp(A, f"attb{J}")
            if J == 48 and E("POSTPF", 1): post_prefetch()
        EX = lambda i: f"v_exp_f32 v{Sc+i}, v{Sc+i}"
        CV = lambda i: f"v_cvt_pk_bf16_f32 v{Pc+i}, v{Sc+2*i}, v{Sc+2*i+1}"
        G = [(EX(0),EX(1),EX(2),EX(3),CV(0),CV(1)), (EX(4),EX(5),EX(6),EX(7),CV(2),CV(3)), (EX(8),EX(9),EX(10),EX(11),CV(4),CV(5)), (EX(12),EX(13),EX(14),EX(15),CV(6),CV(7))]
        if j in (0, 9, 13, 15):
            A(f"s_setprio {dict([(0,3),(9,2),(13,1),(15,0)])[j]}")
        if J > 0 and j != 0: A("s_waitcnt lgkmcnt(2)")
        if J < 63: A(f"v_mfma_f32_32x32x16_bf16 {v(Sn,16)}, {v(KA,4)}, {v(Q1,4)}, 0")
        if J < 62: A(f"ds_read_b128 {v(KA,4)}, v{AK[slot]} offset:{off}")
        for x in G[0]: A(x)
        if J < 63: A(qk2(Sn, KB))
        if J < 62: A(f"ds_read_b64 {v(KB,2)}, v{AK2[slot]} offset:{off}")
        for x in G[1]: A(x)
        if J > 0:
            A("s_waitcnt lgkmcnt(2)" if J < 62 else "s_waitcnt lgkmcnt(0)")
            cc = "0" if J == 1 else v(O, 16)
            A(f"v_mfma_f32_32x32x16_bf16 {v(O,16)}, {v(V0,4)}, {v(Pp,4)}, {cc}")
        A(f"ds_read_b128 {v(V0,4)}, v{AV[slot]} offset:{off}")
        for x in G[2]: A(x)
        if J > 0: A(f"v_mfma_f32_32x32x16_bf16 {v(O,16)}, {v(V1,4)}, {v(Pp+4,4)}, {v(O,16)}")
        A(f"ds_read_b128 {v(V1,4)}, v{AV[slot]} offset:{off + 768}")
        if E("NODMA", 0):
            for x in G[3]: A(x)
            continue
        if E("SRV", 1):
            if c == 0 and j < 6 and not E("SRV1", 1): A(kv_piece(1, j))
        else:
            if (c in (1, 2) or (c == 0 and E("C1LATE", 1))) and j < 6: A(kv_piece(c + 1, j))
            if c == 1 and 6 <= j < 11: A(wo_piece(0, j - 6))
            if c == 1 and 11 <= j < 16: A(wo_piece(1, j - 11))
            if c == 3 and 1 <= j < 6: A(wo_piece(2, j - 1))
            if c == 3 and 6 <= j < 11: A(wo_piece(3, j - 6))
        for x in G[3]: A(x)
    stp(A, "att1")
    Pl = P[63 % 2]
    A("s_waitcnt lgkmcnt(0)")
    A(f"v_mfma_f32_32x32x16_bf16 {v(O,16)}, {v(V0,4)}, {v(Pl,4)}, {v(O,16)}")
    A(f"v_mfma_f32_32x32x16_bf16 {v(O,16)}, {v(V1,4)}, {v(Pl+4,4)}, {v(O,16)}")
    A("s_setprio 0")
    L_fin = A.newlabel("fin"); L_slow = A.newlabel("slow"); L_odone = A.newlabel("odone")
    def addr_calc():
        A(f"""
        s_lshl_b32 s52, s43, 6
        s_add_u32 s52, s52, s46
        s_mul_i32 s52, s52, 1536
        s_add_u32 s52, s52, {WS_O}
        v_lshlrev_b32 v104, 4, v0
        """)
    addr_calc()
    A("s_nop 7")
    A.label(L_fin)
    A("s_nop 7")
    A(f"""
    v_mov_b32 v110, v{O+8}
    v_mov_b32 v111, v{O+8}
    s_nop 1
    v_permlane32_swap_b32 v110, v111
    s_nop 1
    v_rcp_f32 v112, v111
    s_nop 0
    """)
    for i in range(0, 12, 2):
        A(f"v_pk_mul_f32 {v(O+i,2)}, {v(O+i,2)}, v[112:113] op_sel_hi:[1,0]")
    A(f"""
    v_add_f32 v113, abs(v{O}), abs(v{O+1})
    v_add_f32 v114, abs(v{O+8}), abs(v{O+9})
    """)
    for i in range(2, 8): A(f"v_add_f32 v113, v113, abs(v{O+i})")
    A(f"""
    v_add_f32 v114, v114, abs(v{O+10})
    v_add_f32 v114, v114, abs(v{O+11})
    v_cmp_gt_u32 vcc, 32, v0
    v_mov_b32 v115, 0x21800000         ; 2^-60
    v_mov_b32 v116, 0x5d800000         ; 2^60
    v_cndmask_b32 v114, 0, v114, vcc
    v_add_f32 v113, v113, v114
    v_mov_b32 v114, 0x7f800000
    v_cmp_nlt_f32 s[54:55], v113, v114
    v_cmp_ngt_f32 s[56:57], v111, v115
    v_cmp_nlt_f32 vcc, v111, v116
    s_nop 1
    s_or_b64 s[54:55], s[54:55], s[56:57]
    s_or_b64 s[54:55], s[54:55], vcc
    s_cmp_lg_u64 s[54:55], 0
    s_cselect_b32 s61, 1, 0
    s_andn2_b32 s61, s61, s60
    s_cmp_lg_u32 s61, 0
    s_cbranch_scc1 {L_slow}
    """)
    for i in range(4): A(f"v_cvt_pk_bf16_f32 v{O+i}, v{O+2*i}, v{O+2*i+1}")
    A(f"""
    v_cvt_pk_bf16_f32 v{O+8}, v{O+8}, v{O+9}
    v_cvt_pk_bf16_f32 v{O+9}, v{O+10}, v{O+11}
    v_mov_b32 v{O+10}, 0
    v_mov_b32 v{O+11}, 0
    buffer_store_dwordx4 {v(O,4)}, v104, s[{R_WS}:{R_WS+3}], s52 offen{SC}
    s_mov_b32 exec_hi, 0
    buffer_store_dwordx4 {v(O+8,4)}, v104, s[{R_WS}:{R_WS+3}], s52 offen offset:1024{SC}
    s_mov_b64 exec, -1
    s_branch {L_odone}
    """)
    A.label(L_slow)
    L1 = A.newlabel("p1"); L2 = A.newlabel("p2")
    A(f"""
    s_mov_b32 s60, 1
    v_mov_b32 v110, 0xff800000
    s_mov_b32 s52, 0
    {L1}:
    s_mul_i32 s63, s52, {TB}
    s_add_u32 s63, s63, {5*SEC}
    buffer_load_dwordx4 {v(KA,4)}, v{VKP}, s[{R_WS}:{R_WS+3}], s63 offen{SC}
    buffer_load_dwordx2 {v(KB,2)}, v{VKS}, s[{R_WS}:{R_WS+3}], s63 offen{SC}
    s_waitcnt vmcnt(0)
    v_mfma_f32_32x32x16_bf16 {v(S[0],16)}, {v(KA,4)}, {v(Q1,4)}, 0
    v_mfma_f32_32x32x16_bf16 {v(S[0],16)}, {v(KB,4)}, {v(Q2,4)}, {v(S[0],16)}
    s_nop 7
    s_nop 7
    """)
    for i in range(0, 16, 2): A(f"v_max3_f32 v110, v110, v{S[0]+i}, v{S[0]+i+1}")
    A(f"""
    s_add_u32 s52, s52, 1
    s_cmp_lt_u32 s52, 64
    s_cbranch_scc1 {L1}
    v_mov_b32 v108, v110
    v_mov_b32 v109, v110
    s_nop 1
    v_permlane32_swap_b32 v108, v109
    s_nop 1
    v_max_f32 v110, v108, v109
    v_and_b32 v3, 31, v0
    v_cmp_gt_u32 vcc, 20, v3
    v_add_u32 v108, 4096, v{VVF}
    s_nop 0
    v_cndmask_b32 v109, v{VVF}, v108, vcc
    """)
    for i in range(16): A(f"v_mov_b32 v{O+i}, 0")
    A("s_mov_b32 s52, 0")
    A.label(L2)
    A(f"""
    s_mul_i32 s54, s52, {TB}
    s_add_u32 s63, s54, {5*SEC}
    buffer_load_dwordx4 {v(KA,4)}, v{VKP}, s[{R_WS}:{R_WS+3}], s63 offen{SC}
    buffer_load_dwordx2 {v(KB,2)}, v{VKS}, s[{R_WS}:{R_WS+3}], s63 offen{SC}
    buffer_load_dwordx4 {v(V0,4)}, v{VVF}, s[{R_WS}:{R_WS+3}], s54 offen{SC}
    buffer_load_dwordx4 {v(V1,4)}, v109, s[{R_WS}:{R_WS+3}], s54 offen{SC}
    s_waitcnt vmcnt(0)
    v_mfma_f32_32x32x16_bf16 {v(S[0],16)}, {v(KA,4)}, {v(Q1,4)}, 0
    v_mfma_f32_32x32x16_bf16 {v(S[0],16)}, {v(KB,4)}, {v(Q2,4)}, {v(S[0],16)}
    s_nop 7
    s_nop 7
    """)
    for i in range(16): A(f"v_sub_f32 v{S[0]+i}, v{S[0]+i}, v110")
    for i in range(16): A(f"v_exp_f32 v{S[0]+i}, v{S[0]+i}")
    A("s_nop 0")
    for i in range(8): A(f"v_cvt_pk_bf16_f32 v{P[0]+i}, v{S[0]+2*i}, v{S[0]+2*i+1}")
    A(f"""
    s_nop 1
    v_mfma_f32_32x32x16_bf16 {v(O,16)}, {v(V0,4)}, {v(P[0],4)}, {v(O,16)}
    v_mfma_f32_32x32x16_bf16 {v(O,16)}, {v(V1,4)}, {v(P[0]+4,4)}, {v(O,16)}
    s_add_u32 s52, s52, 1
    s_cmp_lt_u32 s52, 64
    s_cbranch_scc1 {L2}
    s_nop 7
    """)
    addr_calc()
    A(f"s_branch {L_fin}")

    A.label(L_odone)
    OF = 32; AD = 80; OA = 88; VOUT, VRED = 91, 92; ACC3 = 96; WF = [116, 136]
    A(f"""
    s_lshl_b32 s54, s{S_XCD}, 2
    s_lshr_b32 s55, s{S_J}, 3
    s_add_u32 s54, s54, s55        ; tb
    s_lshl_b32 s54, s54, 2
    s_and_b32 s55, s{S_WAVE}, 3
    s_add_u32 s54, s54, s55        ; T
    s_lshr_b32 s45, s54, 1
    s_mul_i32 s45, s45, 1536
    s_and_b32 s57, s54, 1
    s_lshl_b32 s57, s57, 8
    s_add_u32 s45, s45, s57
    s_add_u32 s45, s45, {WS_O}
    s_lshr_b32 s57, s{S_WAVE}, 2
    s_mul_i32 s57, s57, {16*64*1536}
    s_add_u32 s62, s45, s57
    v_lshrrev_b32 v5, 4, v0            ; kg
    v_and_b32 v6, 15, v0
    v_lshlrev_b32 v6, 4, v6
    """)
    for c in range(3):
        A(f"""
        v_add_u32 v8, {4*c}, v5
        v_mul_u32_u24 v9, 21846, v8
        v_lshrrev_b32 v9, 16, v9
        v_mul_u32_u24 v10, 3, v9
        v_sub_u32 v10, v8, v10
        v_mul_u32_u24 v9, 1536, v9
        v_lshlrev_b32 v9, 6, v9
        v_lshl_add_u32 v9, v10, 9, v9
        v_add_u32 v{OA+c}, v9, v6""")
    A(f"""
    v_and_b32 v3, 15, v0
    s_lshl_b32 s55, s54, 4
    v_add_u32 v3, s55, v3
    v_mul_u32_u24 v3, 2560, v3
    v_lshrrev_b32 v4, 4, v0
    v_lshl_add_u32 v3, v4, 3, v3
    s_and_b32 s55, s{S_J}, 7
    s_mul_i32 s55, s55, 160
    v_add_u32 v{VOUT}, s55, v3
    v_lshlrev_b32 v3, 4, v0
    s_and_b32 s55, s{S_WAVE}, 3
    s_mul_i32 s55, s55, 5120
    s_add_u32 s55, s55, {RED}
    v_add_u32 v{VRED}, s55, v3
    v_bfe_u32 v6, v0, 2, 2             ; r
    v_and_b32 v7, 3, v0
    v_lshlrev_b32 v7, 3, v7            ; 8*c4
    s_mov_b32 s59, {WO_A}
    """)
    def row_addr(dst0, s, region):
        A(f"""
        v_add_u32 v8, {4*s}, v5
        v_mul_u32_u24 v9, 21846, v8
        v_lshrrev_b32 v9, 16, v9
        v_mul_u32_u24 v10, 3, v9
        v_sub_u32 v10, v8, v10
        v_mul_u32_u24 v9, 20, v9
        v_add_u32 v9, v9, v6
        v_lshlrev_b32 v11, 2, v10
        v_cmp_eq_u32 vcc, 2, v10
        v_add_u32 v12, 8, v11
        v_lshlrev_b32 v13, 1, v11
        v_cndmask_b32 v11, v11, v13, vcc
        v_add_u32 v11, v11, v9
        v_add_u32 v12, v12, v9
        """)
        for hh, rv in enumerate((11, 12)):
            if region == "A":
                A(f"v_mul_u32_u24 v13, 160, v{rv}\nv_add3_u32 v{dst0+hh}, v13, v7, s59")
            elif region == "B":
                A(f"v_subrev_u32 v13, {WO_BROW}, v{rv}\nv_mul_u32_u24 v13, 160, v13\nv_add_u32 v{dst0+hh}, v13, v7")
            else:
                A(f"""
                v_mul_u32_u24 v13, 160, v{rv}
                v_add3_u32 v14, v13, v7, s59
                v_subrev_u32 v13, {WO_BROW*160}, v13
                v_add_u32 v13, v13, v7
                v_cmp_gt_u32 vcc, {WO_BROW}, v{rv}
                s_nop 1
                v_cndmask_b32 v{dst0+hh}, v13, v14, vcc""")
    L_ahi = A.newlabel("ahi"); L_adone = A.newlabel("adone")
    stp(A, "ostored")
    A("s_waitcnt vmcnt(0)")
    stp(A, "odrained")
    L_os = A.newlabel("os")
    lds_arrive_last(A, C_O, 8, L_os, 2, 3)
    A(f"s_add_u32 s65, s44, {L_O}")
    global_arrive(A, "s65", 32, 2, 3)
    A.label(L_os)
    A(f"""
    s_cmp_ge_u32 s{S_WAVE}, 4
    s_cbranch_scc1 {L_ahi}
    """)
    for c in range(3): row_addr(AD + 2*c, c, "A")
    A(f"s_branch {L_adone}")
    A.label(L_ahi)
    row_addr(AD + 6, 12, None)
    for c in range(3): row_addr(AD + 2*c, 13 + c, "B")
    A.label(L_adone)
    srd(A, R_B, P_OUT, 2048 * 1280 * 2)
    L_p3a = A.newlabel("p3a"); L_post = A.newlabel("post"); L_t3 = A.newlabel("t3"); L_tgo = A.newlabel("tgo")
    A(f"""
    s_cmp_eq_u32 s{S_WAVE}, 0
    s_cbranch_scc0 {L_post}
    s_lshl_b32 s54, s{S_XCD}, 7
    s_add_u32 s54, s54, {SYNC + 128*(FLG + L_O)}
    v_mov_b32 v2, s54
    v_cmp_eq_u32 vcc, 0, v0
    v_mov_b32 v3, 1
    s_nop 0
    v_cndmask_b32 v4, 0, v3, vcc
    """)
    poll(A, 2, 4, 3, sleep=E("PS_O", 2))
    stp(A, "ook")
    A(f"s_branch {L_p3a}")
    A.label(L_post)
    if E("NOBW", 0): A(f"s_branch {L_p3a}")
    post_task(L_p3a)
    for j in range(4):
        for q in range(4):
            za = PZ + 2*(2*q) + j//2; zb = PZ + 2*(2*q+1) + j//2
            if j % 2 == 0:
                A(f"v_lshlrev_b32 v48, 16, v{za}\nv_lshlrev_b32 v49, 16, v{zb}")
            else:
                A(f"v_and_b32 v48, 0xffff0000, v{za}\nv_and_b32 v49, 0xffff0000, v{zb}")
            qq = PQ + 4*j + q
            A(f"v_lshlrev_b32 v50, 16, v{qq}\nv_and_b32 v51, 0xffff0000, v{qq}")
            A(f"v_pk_mul_f32 v[48:49], v[48:49], v[50:51]")
            A(f"v_cvt_pk_bf16_f32 v{52+4*j+q}, v48, v49")
        A(f"s_mov_b32 s54, {j*2560}")
        A(f"buffer_store_dwordx4 {v(52+4*j,4)}, v{PO}, s[{R_B}:{R_B+3}], s54 offen{os.environ.get('OUTB', '')}")
    A.label(L_p3a)
    stp(A, "prep3a")
    A("s_barrier")
    stp(A, "p3a")
    PD = E("P3D", 3)
    def o_load(st):
        A(f"s_add_u32 s58, s62, {(st//3)*4*64*1536}")
        A(f"buffer_load_dwordx4 {v(OF+4*st,4)}, v{OA + st % 3}, s[{R_WS}:{R_WS+3}], s58 offen{SC}")
    for st in range(min(PD + 1, 12)): o_load(st)
    def p3_loop(hi):
        if not hi: sel = lambda st: (AD + 2*(st % 3), (st // 3) * 12800)
        else: sel = lambda st: (AD + 6, 0) if st == 0 else (AD + 2*((st - 1) % 3), ((st - 1) // 3) * 12800)
        def rd(st, setid):
            base, so = sel(st); r = []
            for T in range(5):
                r.append(f"ds_read_b64_tr_b16 {v(WF[setid]+4*T,2)}, v{base} offset:{so + 32*T}")
                r.append(f"ds_read_b64_tr_b16 {v(WF[setid]+4*T+2,2)}, v{base+1} offset:{so + 32*T}")
            return r
        for r in rd(0, 0): A(r)
        for st in range(12):
            setid = st % 2
            A(f"s_waitcnt vmcnt({min(PD, 11-st)}) lgkmcnt(0)")
            if st + PD + 1 < 12: o_load(st + PD + 1)
            if st == 0: stp(A, "p3first")
            if st == 6: stp(A, "p3mid")
            rs = rd(st + 1, 1 - setid) if st < 11 else []
            for T in range(5):
                cc = "0" if st == 0 else v(ACC3+4*T, 4)
                A(f"v_mfma_f32_16x16x32_bf16 {v(ACC3+4*T,4)}, {v(WF[setid]+4*T,4)}, {v(OF+4*st,4)}, {cc}")
                for r in rs[2*T:2*T+2]: A(r)
        A("s_nop 7")
    L_hi = A.newlabel("p3hi")
    A(f"""
    s_cmp_ge_u32 s{S_WAVE}, 4
    s_cbranch_scc1 {L_hi}
    """)
    p3_loop(False)
    stp(A, "p3loop")
    A("s_barrier")
    stp(A, "p3red")
    for T in range(5): A(f"ds_read_b128 {v(32+4*T,4)}, v{VRED} offset:{1024*T}")
    A("s_waitcnt lgkmcnt(0)")
    for T in range(5):
        d = ACC3 + 4*T
        A(f"v_pk_add_f32 {v(d,2)}, {v(d,2)}, {v(32+4*T,2)}")
        A(f"v_pk_add_f32 {v(d+2,2)}, {v(d+2,2)}, {v(34+4*T,2)}")
        A(f"v_cvt_pk_bf16_f32 v{d}, v{d}, v{d+1}")
        A(f"v_cvt_pk_bf16_f32 v{d+1}, v{d+2}, v{d+3}")
        A(f"buffer_store_dwordx2 {v(d,2)}, v{VOUT}, s[{R_B}:{R_B+3}], 0 offen offset:{32*T}{os.environ.get('OUTA', '')}")
    prof_dump(A, 0, wsptr=P_WS)
    A("s_endpgm")
    A.label(L_hi)
    p3_loop(True)
    for T in range(5): A(f"ds_write_b128 v{VRED}, {v(ACC3+4*T,4)} offset:{1024*T}")
    A("s_waitcnt lgkmcnt(0)\ns_barrier")
    prof_dump(A, 0, wsptr=P_WS)
    A("s_endpgm")

    A.label(L_bw)
    BK, BV, BW = 16, 44, 60
    def b_setup(notask, chan_only):
        L2_ = A.newlabel("b2")
        A(f"""
        s_cmp_eq_u32 s{S_WAVE}, 10
        s_cbranch_scc1 {L2_}
        s_lshl_b32 s56, s2, 1
        s_sub_u32 s57, s{S_WAVE}, 8
        s_add_u32 s56, s56, s57
        """)
        b_addr()
        Lc = A.newlabel("bcont")
        A(f"""
        s_branch {Lc}
        {L2_}:
        s_cmp_ge_u32 s2, 128
        s_cbranch_scc1 {notask}
        s_add_u32 s56, s2, 512
        s_mov_b32 s65, 0
        s_branch {chan_only}
        {Lc}:
        """)
    def b_addr():
        A(f"""
        s_mul_i32 s57, s56, 52429
        s_lshr_b32 s57, s57, 19        ; tblk
        s_mul_i32 s58, s57, 10
        s_sub_u32 s58, s56, s58        ; dblk
        v_and_b32 v2, 7, v0            ; dg
        v_lshrrev_b32 v3, 3, v0        ; tg
        v_lshlrev_b32 v12, 6, v2
        v_lshl_add_u32 v12, v3, 3, v12
        s_lshl_b32 s54, s56, 12
        s_add_u32 s54, s54, {WS_U}
        v_add_u32 v12, s54, v12
        s_lshl_b32 s54, s58, 6
        v_lshl_add_u32 v2, v2, 3, s54  ; d0
        s_lshl_b32 s55, s57, 5
        v_lshl_add_u32 v3, v3, 2, s55  ; t0
        v_mul_u32_u24 v4, 1280, v3
        v_lshl_add_u32 v10, v2, 1, v4
        v_lshlrev_b32 v11, 3, v2
        v_subrev_u32 v5, 3840, v10
        v_subrev_u32 v6, 2560, v10
        v_subrev_u32 v7, 1280, v10
        """)
    def b_loads():
        srd(A, R_C, P_BK, 2048 * 640 * 2)
        A(f"""
        buffer_load_dwordx4 {v(BK,4)}, v5, s[{R_C}:{R_C+3}], 0 offen
        buffer_load_dwordx4 {v(BK+4,4)}, v6, s[{R_C}:{R_C+3}], 0 offen
        buffer_load_dwordx4 {v(BK+8,4)}, v7, s[{R_C}:{R_C+3}], 0 offen
        """)
        for j in range(4): A(f"buffer_load_dwordx4 {v(BK+12+4*j,4)}, v10, s[{R_C}:{R_C+3}], 0 offen offset:{1280*j}")
        srd(A, R_C, P_BV, 2048 * 640 * 2)
        for j in range(4): A(f"buffer_load_dwordx4 {v(BV+4*j,4)}, v10, s[{R_C}:{R_C+3}], 0 offen offset:{1280*j}")
        srd(A, R_C, P_SH, 640 * 4 * 2)
        for j in range(4): A(f"buffer_load_dwordx4 {v(BW+4*j,4)}, v11, s[{R_C}:{R_C+3}], 0 offen offset:{16*j}")
    def b_compute(q):
        KP, VP, WP, AC, OUT = 80, 94, 102, 110, 120
        for j in range(7):
            A(f"v_lshlrev_b32 v{KP+2*j}, 16, v{BK+4*j+q}\nv_and_b32 v{KP+1+2*j}, 0xffff0000, v{BK+4*j+q}")
        for t in range(4):
            A(f"v_lshlrev_b32 v{VP+2*t}, 16, v{BV+4*t+q}\nv_and_b32 v{VP+1+2*t}, 0xffff0000, v{BV+4*t+q}")
        for u in range(2):
            bb = BW + 4*q + 2*u
            A(f"v_lshlrev_b32 v{WP+u}, 16, v{bb}\nv_and_b32 v{WP+2+u}, 0xffff0000, v{bb}")
            A(f"v_lshlrev_b32 v{WP+4+u}, 16, v{bb+1}\nv_and_b32 v{WP+6+u}, 0xffff0000, v{bb+1}")
        for t in range(4):
            acc = AC + 2*t
            A(f"v_pk_mul_f32 {v(acc,2)}, {v(KP+2*(t+0),2)}, {v(WP+6,2)}")
            A(f"v_pk_fma_f32 {v(acc,2)}, {v(KP+2*(t+1),2)}, {v(WP+4,2)}, {v(acc,2)}")
            A(f"v_pk_fma_f32 {v(acc,2)}, {v(KP+2*(t+2),2)}, {v(WP+2,2)}, {v(acc,2)}")
            A(f"v_pk_fma_f32 {v(acc,2)}, {v(KP+2*(t+3),2)}, {v(WP,2)}, {v(acc,2)}")
            A(f"v_pk_mul_f32 {v(acc,2)}, {v(acc,2)}, {v(VP+2*t,2)}")
        for u in range(2):
            o = OUT + 4*q + 2*u
            A(f"v_cvt_pk_bf16_f32 v{o}, v{AC+u}, v{AC+2+u}\nv_cvt_pk_bf16_f32 v{o+1}, v{AC+4+u}, v{AC+6+u}")
        for u in range(2):
            o = OUT + 4*q + 2*u
            A(f"buffer_store_dwordx2 {v(o,2)}, v12, s[{R_WS}:{R_WS+3}], 0 offen offset:{(2*q+u)*512}{SC}")
    def init_load():
        A(f"v_mov_b32 v2, 0\nglobal_load_dword v9, v2, s[{P_DBG}:{P_DBG+1}] sc1")
    def u_publish(n):
        A(f"s_waitcnt vmcnt({n})\ns_mov_b32 s65, 0")
        Lok = A.newlabel("iok"); Lsk = A.newlabel("usk")
        A(f"""
        v_readfirstlane_b32 s66, v9
        s_nop 3
        s_cmp_lg_u32 s66, 0
        s_cbranch_scc1 {Lok}
        v_mov_b32 v2, 0
        v_mov_b32 v3, 1
        """)
        poll(A, 2, 3, 4, sleep=8, base=P_DBG)
        A.label(Lok)
        lds_set(A, C_INIT, 2, 3)
        A(f"s_cmp_ge_u32 s{S_CBK}, 15\ns_cselect_b32 s64, 10, 2")
        lds_arrive_last(A, C_U, "s64", Lsk, 2, 3)
        A(f"""
        s_and_b32 s66, s2, 7
        s_add_u32 s66, s66, {L_U}
        s_lshl_b32 s66, s66, 7
        s_add_u32 s66, s66, {SYNC}
        v_mov_b32 v10, s66
        v_mov_b32 v11, 1
        s_mov_b64 exec, 1
        global_atomic_add v11, v10, v11, s[{P_WS}:{P_WS+1}] sc0 sc1
        s_mov_b64 exec, -1
        s_mov_b32 s65, 1
        {Lsk}:
        """)
    def u_flag():
        L = A.newlabel("uf")
        A(f"""
        s_cmp_eq_u32 s65, 0
        s_cbranch_scc1 {L}
        s_waitcnt vmcnt(0)
        v_readfirstlane_b32 s66, v11
        s_nop 3
        s_cmp_lg_u32 s66, 31
        s_cbranch_scc1 {L}
        v_add_u32 v10, {128*40}, v10
        v_mov_b32 v11, 1
        s_mov_b64 exec, 1
        global_store_dword v10, v11, s[{P_WS}:{P_WS+1}] sc1
        s_mov_b64 exec, -1
        {L}:
        """)
    HR = 136
    def h_loads():
        srd(A, R_C, P_SK, 640 * 4096)
        A(f"""
        s_sub_u32 s57, s{S_WAVE}, 8
        s_mul_i32 s57, s57, {CONV_SZ}
        s_add_u32 s57, s57, {CONV_BASE}
        s_lshl_b32 s58, s56, 12
        v_lshlrev_b32 v13, 4, v0
        v_add_u32 v13, s58, v13
        v_subrev_u32 v14, 8, v13
        """)
        for p in range(4):
            if p == 0:
                A(f"buffer_load_dwordx2 {v(HR,2)}, v14, s[{R_C}:{R_C+3}], 0 offen")
            else:
                A(f"buffer_load_dwordx2 {v(HR+6*p,2)}, v13, s[{R_C}:{R_C+3}], 0 offen offset:{1024*p - 8}")
            A(f"buffer_load_dwordx4 {v(HR+6*p+2,4)}, v13, s[{R_C}:{R_C+3}], 0 offen offset:{1024*p}")
    def h_build():
        A(f"""
        v_cmp_eq_u32 vcc, 0, v0
        v_lshlrev_b32 v6, 4, v0
        v_add_u32 v6, s57, v6
        v_add_u32 v6, 32, v6
        v_cndmask_b32 v{HR}, v{HR}, 0, vcc
        v_cndmask_b32 v{HR+1}, v{HR+1}, 0, vcc
        """)
        for p in range(4):
            b = HR + 6*p; P1, P0, D = b, b + 1, b + 2
            T1, T2, T3 = 16 + 12*(p % 2), 20 + 12*(p % 2), 24 + 12*(p % 2)
            A(f"""
            ds_write_b128 v6, {v(D,4)} offset:{0*COPY + 1024*p}
            v_alignbit_b32 v{T1}, v{D}, v{P0}, 16
            v_alignbit_b32 v{T1+1}, v{D+1}, v{D}, 16
            v_alignbit_b32 v{T1+2}, v{D+2}, v{D+1}, 16
            v_alignbit_b32 v{T1+3}, v{D+3}, v{D+2}, 16
            v_mov_b32 v{T2}, v{P0}
            v_mov_b32 v{T2+1}, v{D}
            v_mov_b32 v{T2+2}, v{D+1}
            v_mov_b32 v{T2+3}, v{D+2}
            v_alignbit_b32 v{T3}, v{P0}, v{P1}, 16
            v_mov_b32 v{T3+1}, v{T1}
            v_mov_b32 v{T3+2}, v{T1+1}
            v_mov_b32 v{T3+3}, v{T1+2}
            ds_write_b128 v6, {v(T1,4)} offset:{1*COPY + 1024*p}
            ds_write_b128 v6, {v(T2,4)} offset:{2*COPY + 1024*p}
            ds_write_b128 v6, {v(T3,4)} offset:{3*COPY + 1024*p}
            """)
    L_bnog = A.newlabel("bnog"); L_bnt = A.newlabel("bnt"); L_sync = A.newlabel("sync"); L_bntn = A.newlabel("bntn")
    A(f"""
    s_cmp_ge_u32 s{S_CB}, 15
    s_cbranch_scc1 {L_bnog}
    """)
    L_chonly = A.newlabel("chonly")
    b_setup(L_bnt, L_chonly)
    if E("BISS", 0): lds_wait(A, C_ISS, 2, 3, val=4, sleep=1)
    if E("NOBW", 0):
        lds_set(A, C_INIT, 2, 3)
        for _ in range(10): A("s_barrier")
        A(f"s_branch {L_exit}")
    MODE = E("BMODE", 3)
    if MODE == 3:
        hl3 = E("HL3", 0)
        b_loads()
        if not hl3: h_loads()
        if EARLY: A("s_barrier")
        k = E("BWAIT", 3)
        for _ in range(k): A("s_barrier")
        A(f"s_waitcnt vmcnt({0 if hl3 else 8})")
        stp(A, "blok")
        if E("BPRIO", 0): A(f"s_setprio {E('BPRIO', 0)}")
        nsp = E("BSPLIT", 2)
        for q in range(4):
            b_compute(q)
            if (nsp == 2 and q == 1) or (nsp == 4 and q < 3): A("s_barrier")
        used = 1 if nsp == 2 else (3 if nsp == 4 else 0)
        A("s_setprio 0")
        init_load()
        g = E("BGAP", 3)
        for _ in range(g): A("s_barrier")
        u_publish(0)
        stp(A, "upub")
        if hl3: h_loads()
        rest = 10 - k - used - g
        uf = E("UFAT", 2)
        for i in range(rest):
            A("s_barrier")
            if i + 1 == uf and uf < rest:
                u_flag()
                A("s_mov_b32 s65, 0")
    elif MODE == 2:
        if EARLY: A("s_barrier")
        for _ in range(E("BAT", 1)): A("s_barrier")
        b_loads()
        h_loads()
        for _ in range(10 - E("BAT", 1)): A("s_barrier")
        A("s_waitcnt vmcnt(8)")
        stp(A, "blok")
        for q in range(4): b_compute(q)
        init_load()
        u_publish(0)
        stp(A, "upub")
    else:
        hl = E("HLATE", 1)
        b_loads()
        if not hl: h_loads()
        A(f"s_waitcnt vmcnt({0 if hl else 8})")
        stp(A, "blok")
        for q in range(4): b_compute(q)
        init_load()
        npub = E("NPUB", 2)
        for _ in range(npub): A("s_barrier")
        u_publish(0)
        stp(A, "upub")
        if hl:
            for _ in range(hl): A("s_barrier")
            h_loads()
        for _ in range(10 - npub - hl): A("s_barrier")
    stp(A, "b9")
    A(f"s_branch {L_conv}")
    A.label(L_bnt)
    A(f"s_branch {L_exit}")
    A.label(L_chonly)
    nh = E("HLC", 0)
    if EARLY and nh: A("s_barrier")
    for _ in range(nh): A("s_barrier")
    h_loads()
    if EARLY and not nh: A("s_barrier")
    for _ in range(10 - nh): A("s_barrier")
    A(f"s_branch {L_conv}")
    A.label(L_bnog)
    if E("NOBW", 0):
        lds_set(A, C_INIT, 2, 3)
        A(f"s_branch {L_exit}")
    b_setup(L_exit, L_exit)
    b_loads()
    h_loads()
    if EARLY: A("s_barrier")
    A("s_waitcnt vmcnt(8)")
    for q in range(4): b_compute(q)
    init_load()
    u_publish(0)
    A(f"s_branch {L_conv}")
    A.label("L_nogtask")
    A(f"""
    s_sub_u32 s56, s{S_J}, 28
    s_lshl_b32 s56, s56, 2
    s_lshr_b32 s57, s{S_XCD}, 1
    s_add_u32 s56, s56, s57
    s_lshl_b32 s56, s56, 3
    s_add_u32 s56, s56, s{S_WAVE}
    s_add_u32 s56, s56, 512
    """)
    b_addr()
    b_loads()
    A("s_waitcnt vmcnt(0)")
    for q in range(4): b_compute(q)
    init_load()
    u_publish(0)
    u_flag()
    A("s_branch L_nogdone")

    A.label(L_conv)
    u_flag()
    A(f"""
    s_lshr_b32 s59, s56, 1
    s_lshl_b32 s59, s59, 2
    s_load_dword s60, s[{P_SD}:{P_SD+1}], s59
    v_mov_b32 v12, 0
    v_mov_b32 v13, 0
    v_mov_b32 v14, 0
    v_mov_b32 v15, 0
    v_lshlrev_b32 v6, 3, v0
    v_add_u32 v6, s57, v6
    v_add_u32 v6, {4*COPY}, v6
    v_cmp_gt_u32 vcc, 60, v0
    s_and_saveexec_b64 s[54:55], vcc
    ds_write_b64 v6, v[12:13]
    s_mov_b64 exec, s[54:55]
    v_and_b32 v6, 1, v0
    v_lshlrev_b32 v6, 4, v6
    v_lshrrev_b32 v7, 1, v0
    v_mul_u32_u24 v7, {COPY}, v7
    v_add3_u32 v6, v6, v7, s57
    v_cmp_gt_u32 vcc, 8, v0
    s_and_saveexec_b64 s[54:55], vcc
    ds_write_b128 v6, v[12:15]
    s_mov_b64 exec, s[54:55]
    s_waitcnt vmcnt(0)
    """)
    h_build()
    VGB = [160, 161, 162]; WOVB = 163
    if E("SRV", 1): gather_setup(VGB, 40, 41, 42, WOVB)
    A(f"""
    s_lshr_b32 s54, s56, 6
    s_and_b32 s55, s56, 63
    s_and_b32 s61, s55, 7
    s_lshr_b32 s55, s55, 3
    s_lshl_b32 s61, s61, 9
    s_lshl_b32 s55, s55, 6
    s_add_u32 s61, s61, s55
    s_lshl_b32 s54, s54, 12
    s_add_u32 s61, s61, s54
    s_add_u32 s61, s61, {WS_U}
    v_lshrrev_b32 v8, 2, v0
    v_mul_u32_u24 v8, 40960, v8
    v_and_b32 v9, 3, v0
    v_lshl_add_u32 v8, v9, 4, v8
    """)
    L_uw = A.newlabel("uw"); L_ud = A.newlabel("ud")
    A(f"s_cmp_lg_u32 s{S_WAVE}, 8\ns_cbranch_scc1 {L_uw}")
    if E("UGATE", 0) == 1: lds_wait(A, C_GO, 2, 3, sleep=4)
    if E("UGATE", 0) == 2: lds_wait(A, C_QKV, 2, 3, val=4, sleep=4)
    A(f"""
    v_lshlrev_b32 v2, 7, v0
    v_add_u32 v2, {SYNC + 128*(L_U + 40)}, v2
    v_cmp_gt_u32 vcc, 8, v0
    v_mov_b32 v3, 1
    s_nop 0
    v_cndmask_b32 v4, 0, v3, vcc
    """)
    poll(A, 2, 4, 3, sleep=E("PS_U", 6))
    lds_set(A, C_UOK, 2, 3)
    A(f"s_branch {L_ud}")
    A.label(L_uw)
    lds_wait(A, C_UOK, 2, 3)
    A("s_waitcnt vmcnt(0)")
    A.label(L_ud)
    stp(A, "uok")
    for p in range(4):
        A(f"""
        s_add_u32 m0, s57, {4*COPY + 480 + p*1024}
        s_add_u32 s54, s61, {p*16*40960}
        buffer_load_dwordx4 v8, s[{R_WS}:{R_WS+3}], s54 offen{SC} lds""")
    A(f"""
    v_lshrrev_b32 v6, 4, v0             ; kg
    v_bfe_u32 v7, v0, 2, 2              ; r
    v_and_b32 v8, 3, v0                 ; c
    v_mul_u32_u24 v7, {COPY}, v7
    v_lshlrev_b32 v8, 3, v8
    v_lshlrev_b32 v9, 4, v6
    v_sub_u32 v8, v8, v9
    v_add_u32 v8, 56, v8
    v_add3_u32 v4, v7, v8, s57          ; vA
    v_and_b32 v7, 15, v0
    v_lshlrev_b32 v7, 5, v7
    v_lshl_add_u32 v7, v6, 4, v7
    v_add_u32 v7, {4*COPY}, v7
    v_add_u32 v5, s57, v7               ; vB
    s_waitcnt vmcnt(0) lgkmcnt(0)
    s_and_b32 s54, s56, 1
    s_lshl_b32 s54, s54, 4
    s_lshr_b32 s60, s60, s54
    s_lshl_b32 s60, s60, 16             ; D as f32
    """)
    stp(A, "conv0")
    Y = 32; AT = 64; BT = 128
    def a_reads(rho, p):
        mu = rho + 8 * p
        return [f"ds_read_b64_tr_b16 {v(AT+4*p,2)}, v4 offset:{64*mu + 8}",
                f"ds_read_b64_tr_b16 {v(AT+4*p+2,2)}, v4 offset:{64*mu}"]
    def b_read(rho, q): return f"ds_read_b128 {v(BT+4*q,4)}, v5 offset:{64*(8*q - rho + 7)}"
    A(f"s_setprio {E('CPRIO', 0)}")
    if E("CPACE", 0):
        for q in range(7, -1, -1): A(b_read(0, q))
        for rho in range(8):
            for p in range(8):
                for r in a_reads(rho, p): A(r)
                A("s_waitcnt lgkmcnt(0)")
                for q in range(7 - p, -1, -1):
                    i = p + q
                    cc = "0" if (rho == 0 and p == 0) else v(Y+4*i, 4)
                    A(f"v_mfma_f32_16x16x32_bf16 {v(Y+4*i,4)}, {v(AT+4*p,4)}, {v(BT+4*q,4)}, {cc}")
                if rho < 7: A(b_read(rho + 1, 7 - p))
            if rho == 3:
                stp(A, "convh")
                A("s_barrier")
    else:
        ATS = [64, 96]
        def a_reads2(rho, p, sid):
            mu = rho + 8 * p
            return [f"ds_read_b64_tr_b16 {v(ATS[sid]+4*p,2)}, v4 offset:{64*mu + 8}",
                    f"ds_read_b64_tr_b16 {v(ATS[sid]+4*p+2,2)}, v4 offset:{64*mu}"]
        for q in range(7, -1, -1): A(b_read(0, q))
        A("s_waitcnt lgkmcnt(4)")
        for p in range(8):
            for r in a_reads2(0, p, 0): A(r)
            if p == 3: A("s_waitcnt lgkmcnt(4)")
        for rho in range(8):
            sid = rho % 2
            nxtA = [x for p in range(8) for x in a_reads2(rho + 1, p, 1 - sid)] if rho < 7 else []
            A("s_waitcnt lgkmcnt(0)" if rho == 0 else "s_waitcnt lgkmcnt(4)")
            for p in range(8):
                for q in range(7 - p, -1, -1):
                    i = p + q
                    cc = "0" if (rho == 0 and p == 0) else v(Y+4*i, 4)
                    if p == 0 and rho > 0 and q <= 3:
                        A(f"s_waitcnt lgkmcnt({7 if rho < 7 else q})")
                    A(f"v_mfma_f32_16x16x32_bf16 {v(Y+4*i,4)}, {v(ATS[sid]+4*p,4)}, {v(BT+4*q,4)}, {cc}")
                    if nxtA: A(nxtA.pop(0))
                if rho < 7: A(b_read(rho + 1, 7 - p))
            if rho == E("CBAR", -1):
                stp(A, "convh")
                A("s_barrier")
    stp(A, "conv1")
    def srv_kv(chunk):
        slot = chunk % 2
        for r in range(8):
            for part in range(3):
                A(f"""
                s_add_u32 m0, s49, {slot*CHUNK + r*REC + part*1024}
                s_add_u32 s51, s50, {(chunk*16 + r)*TB}
                buffer_load_dwordx4 v{VGB[part]}, s[{R_WS}:{R_WS+3}], s51 offen{SC} lds""")
    if E("SRV", 1):
        A(f"""
        s_sub_u32 s54, s{S_WAVE}, 8            ; bw
        s_mul_i32 s49, s54, {8*REC}
        s_mul_i32 s50, s54, {8*TB}
        """)
    if E("SRV", 1) and E("SRV1", 1):
        Lsk1 = A.newlabel("srv1")
        A(f"s_cmp_eq_u32 s{S_WAVE}, 10\ns_cbranch_scc1 {Lsk1}")
        lds_wait(A, C_GO, 2, 3, sleep=2)
        srv_kv(1)
        A.label(Lsk1)
    A(f"""
    v_and_b32 v7, 15, v0
    v_lshrrev_b32 v6, 4, v0
    v_lshlrev_b32 v7, 5, v7
    v_lshl_add_u32 v7, v6, 3, v7        ; 32n + 8g
    v_add_u32 v8, s57, v7
    v_add_u32 v8, {4*COPY + 480}, v8
    s_add_u32 s61, s58, {WS_Z}
    """)
    for i in range(8): A(f"ds_read_b64 {v(64+2*i,2)}, v8 offset:{512*i}")
    A("s_waitcnt lgkmcnt(0)\ns_nop 3")
    for i in range(8):
        u0, u1 = 64 + 2*i, 64 + 2*i + 1
        y = Y + 4*i
        A(f"""
        v_lshlrev_b32 v96, 16, v{u0}
        v_and_b32 v97, 0xffff0000, v{u0}
        v_lshlrev_b32 v98, 16, v{u1}
        v_and_b32 v99, 0xffff0000, v{u1}
        v_fma_f32 v{y}, v96, s60, v{y}
        v_fma_f32 v{y+1}, v97, s60, v{y+1}
        v_fma_f32 v{y+2}, v98, s60, v{y+2}
        v_fma_f32 v{y+3}, v99, s60, v{y+3}
        v_cvt_pk_bf16_f32 v{y}, v{y}, v{y+1}
        v_cvt_pk_bf16_f32 v{y+1}, v{y+2}, v{y+3}
        buffer_store_dwordx2 {v(y,2)}, v7, s[{R_WS}:{R_WS+3}], s61 offen offset:{512*i}{SC}""")
    def z_publish():
        A("s_waitcnt vmcnt(0)")
        stp(A, "zdrained")
        L_zs = A.newlabel("zs")
        A("s_cmp_lt_u32 s2, 128\ns_cselect_b32 s64, 3, 2")
        lds_arrive_last(A, C_Z, "s64", L_zs, 2, 3)
        A(f"s_and_b32 s65, s2, 7\ns_add_u32 s65, s65, {L_Z}")
        global_arrive(A, "s65", 32, 2, 3)
        A.label(L_zs)
    if not E("SRV", 1):
        A("s_barrier")
        z_publish()
    else:
        L_srv = A.newlabel("srv")
        A(f"s_cmp_lg_u32 s{S_WAVE}, 10\ns_cbranch_scc1 {L_srv}")
        A("s_barrier")
        z_publish()
        prof_dump(A, 0, wsptr=P_WS)
        A("s_endpgm")
        A.label(L_srv)
        A(f"""
        s_sub_u32 s56, s{S_WAVE}, 8            ; bw
        s_mul_i32 s53, s56, 5120
        s_mul_i32 s62, s56, 40960
        """)
        if E("SRV1", 1): A("s_waitcnt vmcnt(8)")
        A("s_barrier")
        z_publish()
        def srv_wo(region):
            n = 0
            groups = range(0, 12, 2) if region == "A" else range(0, 10, 2)
            for a2 in groups:
                for b in range(5):
                    lab = None
                    if region == "A" and a2 == 10:
                        lab = A.newlabel("wsk"); A(f"s_cmp_lg_u32 s56, 0\ns_cbranch_scc1 {lab}")
                    if region == "B" and a2 == 8 and b >= 2:
                        lab = A.newlabel("wsk"); A(f"s_cmp_lg_u32 s56, 0\ns_cbranch_scc1 {lab}")
                    ldso = (WO_A if region == "A" else 0) + a2*5120 + b*1024
                    go = a2*40960 + (0 if region == "A" else WO_BROW*1280)
                    A(f"""
                    s_add_u32 m0, s53, {ldso}
                    s_add_u32 s51, s62, {go}
                    buffer_load_dwordx4 v{WOVB+b}, s[{R_A}:{R_A+3}], s51 offen lds""")
                    if lab: A.label(lab)
                    else: n += 1
            return n
        srv_kv(2)
        n = srv_wo("A")
        A(f"s_waitcnt vmcnt({n})\ns_barrier")
        srv_kv(3)
        A("s_waitcnt vmcnt(0)\ns_barrier")
        srv_wo("B")
        A("s_waitcnt vmcnt(0)")
    prof_dump(A, 0, wsptr=P_WS)
    A.label(L_exit)
    A("s_endpgm")

def build():
    hdr = open("cdna_kernels/" + NAME + ".s.ref").read().split("; Override launch geometry")[0]
    A = Asm(); gen(A)
    out = hdr + f"; @launch grid=(256,1,1) block=(704,1,1) lds={LDS}\n"
    out += '.amdgcn_target "amdgcn-amd-amdhsa--gfx950"\n.text\n' + A.text()
    out += f""".section .rodata,"a"
.p2align 6
.amdhsa_kernel {KNAME}
  .amdhsa_next_free_vgpr {VGPRS}
  .amdhsa_next_free_sgpr 102
  .amdhsa_accum_offset {VGPRS}
  .amdhsa_group_segment_fixed_size 0
  .amdhsa_kernarg_size 96
  .amdhsa_user_sgpr_count 2
  .amdhsa_user_sgpr_kernarg_segment_ptr 1
  .amdhsa_system_sgpr_workgroup_id_x 1
  .amdhsa_float_denorm_mode_32 3
.end_amdhsa_kernel
"""
    return out

if __name__ == "__main__":
    open(sys.argv[1], "w").write(build())
```

```python
import os, sys, struct, math
from asmlib import *
from slots import ASSIGN, HEADWORD

NAME = "concat_heads__softmax_full_mha__ssm_conv_h3__prompt"
KNAME = NAME + "_kernel"
E = lambda k, d=0: int(os.environ.get(k, d))

TB = 8320
SEC = 64 * TB
WS_U  = 0x800000
WS_Z  = 0xB00000
WS_O  = 0xE00000
SYNC  = 0x1200000
WS_BYTES = 0x1214000
REC = 3072
CHUNK = 16 * REC
COPY = 4160
CONV_SZ = 4 * COPY + 4608
CONV_BASE = 98304
CNT = CONV_BASE + 3 * CONV_SZ
LDS = CNT + 256
WO_A = 98304
WO_BROW = 340
RED = CHUNK
VGPRS = 168
POLL_MAX = 40000
SC = os.environ.get("SCF", " sc1")
L_U, L_Z, L_O, L_QF = 0, 8, 24, 48
FLG = 8
N_LINES = 288
ZERO_WG = 225
C_QKV, C_U, C_Z, C_O, C_UOK, C_INIT, C_GO, C_KV, C_ISS = 0, 4, 8, 12, 16, 20, 24, 28, 32

def f32bits(x): return struct.unpack("<I", struct.pack("<f", x))[0]
QSCALE = f32bits(20 ** -0.5 * math.log2(math.e))

P_X, P_W, P_WO, P_BQ, P_BK, P_BV, P_SH, P_SK, P_SD, P_OUT, P_DBG, P_WS = 4, 6, 8, 10, 12, 14, 16, 18, 20, 22, 24, 26
R_WS = 28
R_A, R_B, R_C = 32, 36, 44
S_WAVE, S_XCD, S_J, S_RB, S_CB = 40, 41, 42, 43, 48
S_CBK = 48

STAMPS = dict(x.split(":") for x in os.environ.get("STAMPS", "b0:1,gend:2,uok:2,att0:4,att1:5,p3a:6").split(","))
def stp(A, name):
    if name in STAMPS: stamp(A, int(STAMPS[name]))

def poll(A, addr_v, thr_v, tmp, sleep=4, base=P_WS):
    L = A.newlabel("poll"); D = A.newlabel("polld")
    A(f"""
    v_cmp_ne_u32 vcc, 0, v{thr_v}
    s_mov_b32 s66, {POLL_MAX}
    s_nop 1
    s_mov_b64 exec, vcc
    {L}:
    global_load_dword v{tmp}, v{addr_v}, s[{base}:{base+1}] sc1
    s_waitcnt vmcnt(0)
    v_cmp_ge_u32 vcc, v{tmp}, v{thr_v}
    s_nop 3
    s_cmp_eq_u64 vcc, exec
    s_cbranch_scc1 {D}
    s_sleep {sleep}
    s_sub_u32 s66, s66, 1
    s_cmp_lg_u32 s66, 0
    s_cbranch_scc1 {L}
    {D}:
    s_mov_b64 exec, -1
    """)
def poll_flags(A, line0, nlines, t_addr, t_thr, tmp, sleep=4):
    A(f"""
    v_lshlrev_b32 v{t_addr}, 7, v0
    v_add_u32 v{t_addr}, {SYNC + 128*(FLG + line0)}, v{t_addr}
    v_cmp_gt_u32 vcc, {nlines}, v0
    v_mov_b32 v{tmp}, 1
    s_nop 0
    v_cndmask_b32 v{t_thr}, 0, v{tmp}, vcc
    """)
    poll(A, t_addr, t_thr, tmp, sleep)
def lds_set(A, off, t0, t1):
    A(f"""
    v_mov_b32 v{t0}, {CNT + off}
    v_mov_b32 v{t1}, 1
    ds_write_b32 v{t0}, v{t1}
    """)
def lds_add(A, off, t0, t1):
    A(f"""
    v_mov_b32 v{t0}, {CNT + off}
    v_mov_b32 v{t1}, 1
    s_mov_b64 exec, 1
    ds_add_u32 v{t0}, v{t1}
    s_mov_b64 exec, -1
    """)
def lds_wait(A, off, t0, t1, val=1, sleep=1):
    L = A.newlabel("lw"); D = A.newlabel("lwd")
    A(f"""
    v_mov_b32 v{t0}, {CNT + off}
    s_mov_b32 s66, {POLL_MAX*16}
    {L}:
    ds_read_b32 v{t1}, v{t0}
    s_waitcnt lgkmcnt(0)
    v_readfirstlane_b32 s67, v{t1}
    s_nop 3
    s_cmp_ge_u32 s67, {val}
    s_cbranch_scc1 {D}
    s_sleep {sleep}
    s_sub_u32 s66, s66, 1
    s_cmp_lg_u32 s66, 0
    s_cbranch_scc1 {L}
    {D}:
    """)
def lds_arrive_last(A, off, n_s, skip_lab, t0, t1):
    A(f"""
    v_mov_b32 v{t0}, {CNT + off}
    v_mov_b32 v{t1}, 1
    s_mov_b64 exec, 1
    ds_add_rtn_u32 v{t1}, v{t0}, v{t1}
    s_waitcnt lgkmcnt(0)
    s_mov_b64 exec, -1
    v_readfirstlane_b32 s66, v{t1}
    s_nop 3
    s_add_u32 s66, s66, 1
    s_cmp_lg_u32 s66, {n_s}
    s_cbranch_scc1 {skip_lab}
    """)
def global_arrive(A, line_s, total, t0, t1):
    L = A.newlabel("ga")
    A(f"""
    s_lshl_b32 s66, {line_s}, 7
    s_add_u32 s66, s66, {SYNC}
    v_mov_b32 v{t0}, s66
    v_mov_b32 v{t1}, 1
    s_mov_b64 exec, 1
    global_atomic_add v{t1}, v{t0}, v{t1}, s[{P_WS}:{P_WS+1}] sc0 sc1
    s_waitcnt vmcnt(0)
    s_mov_b64 exec, -1
    v_readfirstlane_b32 s66, v{t1}
    s_nop 3
    s_add_u32 s66, s66, 1
    s_cmp_lg_u32 s66, {total}
    s_cbranch_scc1 {L}
    v_add_u32 v{t0}, {128*FLG}, v{t0}
    v_mov_b32 v{t1}, 1
    s_mov_b64 exec, 1
    global_store_dword v{t0}, v{t1}, s[{P_WS}:{P_WS+1}] sc1
    s_mov_b64 exec, -1
    {L}:
    """)

def flag_store(A, line_s, t0, t1):
    A(f"""
    s_lshl_b32 s66, {line_s}, 7
    s_add_u32 s66, s66, {SYNC}
    v_mov_b32 v{t0}, s66
    v_mov_b32 v{t1}, 1
    s_mov_b64 exec, 1
    global_store_dword v{t0}, v{t1}, s[{P_WS}:{P_WS+1}] sc1
    s_mov_b64 exec, -1
    """)
def poll2(A, a0, a1, n1, t0, t1, sleep):
    L = A.newlabel("poll2"); D = A.newlabel("poll2d")
    A(f"""
    s_mov_b32 s66, {POLL_MAX}
    {L}:
    global_load_dword v{t0}, v{a0}, s[{P_WS}:{P_WS+1}] sc1
    global_load_dword v{t1}, v{a1}, s[{P_WS}:{P_WS+1}] sc1
    s_waitcnt vmcnt(0)
    v_min_u32 v{t0}, v{t0}, v{t1}
    v_cmp_le_u32 vcc, 1, v{t0}
    s_nop 3
    s_cmp_eq_u64 vcc, -1
    s_cbranch_scc1 {D}
    s_sleep {sleep}
    s_sub_u32 s66, s66, 1
    s_cmp_lg_u32 s66, 0
    s_cbranch_scc1 {L}
    {D}:
    """)

def gen(A):
    A(f".globl {KNAME}")
    A(".p2align 8")
    A(f".type {KNAME},@function")
    A.label(KNAME)
    L_exit, L_nog, L_prod, L_bw, L_heads, L_conv = "L_exit", "L_nog", "L_prod", "L_bw", "L_heads", "L_conv"
    A(f"""
    s_cmp_ge_u32 s2, 256
    s_cbranch_scc1 {L_exit}
    s_load_dwordx16 s[4:19], s[0:1], 0
    s_load_dwordx8 s[20:27], s[0:1], 64
    v_lshrrev_b32 v1, 6, v0
    v_and_b32 v0, 63, v0
    v_readfirstlane_b32 s{S_WAVE}, v1
    s_and_b32 s{S_XCD}, s2, 7
    s_lshr_b32 s{S_J}, s2, 3
    s_lshr_b32 s{S_RB}, s{S_XCD}, 1
    s_lshl_b32 s{S_RB}, s{S_RB}, 2
    s_and_b32 s49, s{S_J}, 3
    s_add_u32 s{S_RB}, s{S_RB}, s49        ; rb
    s_and_b32 s{S_CB}, s{S_XCD}, 1
    s_lshl_b32 s{S_CB}, s{S_CB}, 3
    s_lshr_b32 s49, s{S_J}, 2
    s_add_u32 s{S_CB}, s{S_CB}, s49        ; cb
    s_cmp_lg_u32 s{S_WAVE}, 0
    s_cbranch_scc1 L_noldsinit
    v_mov_b32 v2, {CNT}
    v_mov_b32 v4, 0
    v_mov_b32 v5, 0
    v_mov_b32 v6, 0
    v_mov_b32 v7, 0
    ds_write_b128 v2, v[4:7]
    ds_write_b128 v2, v[4:7] offset:16
    ds_write_b128 v2, v[4:7] offset:32
    L_noldsinit:
    s_waitcnt lgkmcnt(0)
    """)
    EARLY = E("EARLY", 0)
    if not EARLY: A("s_barrier")
    srd(A, R_WS, P_WS, WS_BYTES)
    prof_init(A)
    A(f"""
    s_cmp_ge_u32 s{S_WAVE}, 8
    s_cbranch_scc1 {L_bw}
    s_cmp_ge_u32 s{S_CB}, 15
    s_cbranch_scc1 {L_nog}
    s_cmp_ge_u32 s{S_WAVE}, 4
    s_cbranch_scc1 {L_prod}
    """)
    slot_of = lambda st: (st + 2) % 3
    if EARLY: A("s_barrier")

    A(f"""
    s_lshr_b32 s56, s{S_WAVE}, 1       ; wr
    s_and_b32 s57, s{S_WAVE}, 1        ; wc
    v_and_b32 v2, 31, v0           ; n
    v_lshrrev_b32 v3, 5, v0        ; h
    v_bfe_u32 v4, v0, 1, 3         ; (l>>1)&7
    s_lshl_b32 s54, s56, 6
    v_add_u32 v5, s54, v2
    v_lshlrev_b32 v5, 7, v5        ; token_local*128
    """)
    for ks in range(4):
        A(f"""
        v_add_u32 v6, {2*ks}, v3
        v_xor_b32 v6, v6, v4
        v_lshl_add_u32 v{16+ks}, v6, 4, v5
        v_add_u32 v{20+ks}, 0x10000, v{16+ks}""")
    def w_addr():
        A(f"""
        v_lshrrev_b32 v2, 4, v0        ; g
        v_bfe_u32 v3, v0, 2, 2         ; r
        v_and_b32 v4, 3, v0            ; c4
        v_lshrrev_b32 v5, 1, v2
        v_lshl_add_u32 v5, v5, 3, v3   ; k_local
        v_lshlrev_b32 v5, 8, v5
        v_add_u32 v5, 16384, v5
        v_and_b32 v6, 1, v2
        v_lshl_add_u32 v6, v6, 2, v4   ; rg = 4*(g&1) + c4
        v_mul_u32_u24 v6, 5, v6
        v_lshlrev_b32 v7, 2, v3        ; 4r
        """)
        for ft in range(2):
            A(f"""
            v_lshrrev_b64 v[8:9], v6, s[{60+2*ft}:{61+2*ft}]
            v_and_b32 v8, 31, v8
            v_lshrrev_b32 v9, 1, v8
            v_xor_b32 v9, v9, v7
            v_and_b32 v8, 1, v8
            v_lshlrev_b32 v8, 3, v8
            v_lshl_add_u32 v8, v9, 4, v8
            v_add_u32 v{24+ft}, v5, v8
            v_add_u32 v{26+ft}, 0x10000, v{24+ft}""")
    FR = [dict(X=[32, 36], W=[40, 44]), dict(X=[48, 52], W=[56, 60]), dict(X=[132, 136], W=[140, 144])]
    ACC = lambda ft, tt: 64 + 16 * (2 * ft + tt)
    def reads(st, ks, setid):
        slot = slot_of(st); hi = slot == 2
        so = 0 if hi else slot * 32768
        xa = (20 if hi else 16) + ks; wa = (26 if hi else 24); F = FR[setid]
        return [f"ds_read_b128 {v(F['X'][0],4)}, v{xa} offset:{so}",
                f"ds_read_b64_tr_b16 {v(F['W'][0],2)}, v{wa} offset:{so + ks*4096}",
                f"ds_read_b64_tr_b16 {v(F['W'][0]+2,2)}, v{wa} offset:{so + ks*4096 + 1024}",
                f"ds_read_b128 {v(F['X'][1],4)}, v{xa} offset:{so + 4096}",
                f"ds_read_b64_tr_b16 {v(F['W'][1],2)}, v{wa+1} offset:{so + ks*4096}",
                f"ds_read_b64_tr_b16 {v(F['W'][1]+2,2)}, v{wa+1} offset:{so + ks*4096 + 1024}"]
    def mfmas(setid, first, vmode):
        F = FR[setid]; m = []
        for (ft, tt) in [(0, 0), (0, 1), (1, 0), (1, 1)]:
            d = ACC(ft, tt); c = "0" if first else v(d, 16)
            a_, b_ = (F['X'][tt], F['W'][ft]) if vmode else (F['W'][ft], F['X'][tt])
            m.append(f"v_mfma_f32_32x32x16_bf16 {v(d,16)}, {v(a_,4)}, {v(b_,4)}, {c}")
        return m
    def main_loop(vmode):
        A("s_barrier")
        stp(A, "b0")
        if not E("G3", 1):
            for r in reads(0, 0, 0): A(r)
            n = 0
            for st in range(10):
                for ks in range(4):
                    setid = n % 2
                    m = mfmas(setid, n == 0, vmode)
                    A("s_waitcnt lgkmcnt(0)")
                    if ks == 3 and st < 9:
                        A("s_barrier")
                        stp(A, f"gb{st+1}")
                    A(m[0])
                    if ks < 3:
                        for r in reads(st, ks + 1, 1 - setid): A(r)
                    elif st < 9:
                        for r in reads(st + 1, 0, 1 - setid): A(r)
                    A(m[1]); A(m[2]); A(m[3])
                    n += 1
        else:
            for r in reads(0, 0, 0): A(r)
            for r in reads(0, 1, 1): A(r)
            for n in range(40):
                st, ks = divmod(n, 4)
                m = mfmas(n % 3, n == 0, vmode)
                if ks == 2 and st < 9:
                    A("s_waitcnt lgkmcnt(0)\ns_barrier")
                    stp(A, f"gb{st+1}")
                else:
                    A(f"s_waitcnt lgkmcnt({6 if n + 1 < 40 else 0})")
                A(m[0])
                if n + 2 < 40:
                    st2, ks2 = divmod(n + 2, 4)
                    for r in reads(st2, ks2, (n + 2) % 3): A(r)
                A(m[1]); A(m[2]); A(m[3])
        stp(A, "gend")
        A("s_nop 15")
    L_vpath = A.newlabel("vpath"); L_gsig = A.newlabel("gsig"); L_vdone = A.newlabel("vdone")
    A(f"""
    s_cmp_ge_u32 s{S_CB}, 10
    s_cbranch_scc1 {L_vpath}
    s_cmp_ge_u32 s{S_CB}, 5
    s_cselect_b32 s55, 5, 0
    s_sub_u32 s55, s{S_CB}, s55        ; cb'
    s_lshl_b32 s55, s55, 1
    s_add_u32 s55, s55, s57
    """)
    for var in range(10):
        cbp, wc = divmod(var, 2); T = []
        for ft in range(2):
            tab = [0]*8
            for si, it in enumerate(ASSIGN[cbp][2*wc + ft]):
                ap, h = divmod(si, 2)
                tab[4*ap + h] = it[1]; tab[4*ap + 2 + h] = it[2]
            T.append(sum(g << (5*i) for i, g in enumerate(tab)))
        nxt = A.newlabel("var")
        A(f"""
        s_cmp_lg_u32 s55, {var}
        s_cbranch_scc1 {nxt}
        s_mov_b32 s60, {hex(T[0] & 0xffffffff)}
        s_mov_b32 s61, {hex(T[0] >> 32)}
        s_mov_b32 s62, {hex(T[1] & 0xffffffff)}
        s_mov_b32 s63, {hex(T[1] >> 32)}
        s_branch {L_vdone}
        {nxt}:""")
    A(f"""
    s_mov_b64 s[60:61], 0
    s_mov_b64 s[62:63], 0
    {L_vdone}:
    """)
    w_addr()
    A(f"""
    s_mov_b32 s58, {hex(QSCALE)}
    s_cmp_ge_u32 s{S_CB}, 5
    s_cmov_b32 s58, 0x3f800000
    s_mov_b32 s59, s58
    v_lshlrev_b32 v128, 4, v0
    s_lshl_b32 s54, s{S_RB}, 2
    s_lshl_b32 s55, s56, 1
    s_add_u32 s54, s54, s55
    s_lshl_b32 s55, s{S_CB}, 6
    s_add_u32 s54, s54, s55
    s_mul_i32 s54, s54, {TB}
    s_lshl_b32 s55, s57, 12        ; wc*4096
    s_add_u32 s64, s54, s55
    s_add_u32 s65, s64, {TB}
    """)
    main_loop(False)
    for ft in range(2):
        for tt in range(2):
            d = ACC(ft, tt)
            for i in range(0, 16, 2):
                A(f"v_pk_mul_f32 {v(d+i,2)}, {v(d+i,2)}, s[58:59]")
            for ap in range(2):
                for i in range(4):
                    A(f"v_cvt_pk_bf16_f32 v{d+8*ap+i}, v{d+8*ap+2*i}, v{d+8*ap+2*i+1}")
                A(f"buffer_store_dwordx4 {v(d+8*ap,4)}, v128, s[{R_WS}:{R_WS+3}], s{64+tt} offen offset:{ft*2048 + ap*1024}{SC}")
    A(f"s_branch {L_gsig}")
    A.label(L_vpath)
    nat = sum(i << (5*i) for i in range(8)); rep = sum(1 << (5*i) for i in range(8))
    A(f"""
    s_lshl_b32 s54, s57, 4
    s_mul_i32 s55, s54, {hex(rep & 0xffffffff)}
    s_mul_hi_u32 s61, s54, {hex(rep & 0xffffffff)}
    s_mul_i32 s66, s54, {hex(rep >> 32)}
    s_add_u32 s61, s61, s66
    s_add_u32 s60, s55, {hex(nat & 0xffffffff)}
    s_addc_u32 s61, s61, {hex(nat >> 32)}
    s_add_u32 s62, s60, {hex((8*rep) & 0xffffffff)}
    s_addc_u32 s63, s61, {hex((8*rep) >> 32)}
    """)
    w_addr()
    A(f"""
    v_lshlrev_b32 v128, 4, v0
    s_lshl_b32 s54, s{S_RB}, 2
    s_lshl_b32 s55, s{S_CB}, 6
    s_add_u32 s54, s54, s55
    s_add_u32 s55, s54, s{S_WAVE}
    s_mul_i32 s55, s55, {TB}
    s_add_u32 s58, s55, 8192
    s_lshl_b32 s55, s56, 1
    s_add_u32 s54, s54, s55
    s_mul_i32 s54, s54, {TB}
    s_lshl_b32 s55, s57, 11
    s_add_u32 s62, s54, s55
    s_add_u32 s63, s62, 4096
    s_add_u32 s64, s62, {TB}
    s_add_u32 s65, s64, 4096
    """)
    main_loop(True)
    for ft in range(2):
        for tt in range(2):
            d = ACC(ft, tt)
            for f in range(2):
                for i in range(4):
                    A(f"v_cvt_pk_bf16_f32 v{d+8*f+i}, v{d+8*f+2*i}, v{d+8*f+2*i+1}")
                A(f"buffer_store_dwordx4 {v(d+8*f,4)}, v128, s[{R_WS}:{R_WS+3}], s{62+2*tt+f} offen offset:{ft*1024}{SC}")
    A(f"""
    v_cmp_eq_u32 vcc, 0, v0
    v_mov_b32 v36, 0x3f803f80
    s_nop 0
    v_cndmask_b32 v32, 0, v36, vcc
    v_cndmask_b32 v33, 0, v36, vcc
    v_cndmask_b32 v34, 0, v36, vcc
    v_cndmask_b32 v35, 0, v36, vcc
    s_mov_b64 exec, 15
    buffer_store_dwordx4 v[32:35], v128, s[{R_WS}:{R_WS+3}], s58 offen{SC}
    s_mov_b64 exec, -1
    """)
    A.label(L_gsig)
    stp(A, "gstored")
    A("s_waitcnt vmcnt(0)")
    stp(A, "gdrained")
    L_qs = A.newlabel("qs")
    lds_arrive_last(A, C_QKV, 4, L_qs, 2, 3)
    lds_wait(A, C_INIT, 2, 3)
    A(f"""
    s_lshl_b32 s65, s{S_CB}, 4
    s_add_u32 s65, s65, s{S_RB}
    s_add_u32 s65, s65, {L_QF}
    """)
    flag_store(A, "s65", 2, 3)
    A.label(L_qs)
    stp(A, "gsig")
    A(f"s_branch {L_heads}")

    A.label(L_prod)
    srd(A, R_A, P_X, 2048 * 640 * 2)
    srd(A, R_B, P_W, 640 * 1920 * 2)
    VXE, VXO, VW = 10, 11, 12
    A(f"""
    s_sub_u32 s55, s{S_WAVE}, 4            ; pw
    s_lshl_b32 s49, s55, 12
    s_mul_i32 s53, s55, 61440
    s_and_b32 s50, s{S_RB}, 3
    s_mul_i32 s50, s50, 3
    s_add_u32 s50, s50, s{S_CB}
    s_cmp_ge_u32 s50, 20
    s_cselect_b32 s51, 20, 0
    s_sub_u32 s50, s50, s51
    s_cmp_ge_u32 s50, 10
    s_cselect_b32 s51, 10, 0
    s_sub_u32 s50, s50, s51
    """)
    if not E("ROT", 1): A("s_mov_b32 s50, 0")
    A(f"""
    s_lshl_b32 s51, s50, 7
    s_mul_i32 s52, s50, 245760
    s_add_u32 s52, s52, s53
    v_lshrrev_b32 v2, 3, v0
    v_lshrrev_b32 v3, 4, v0
    v_and_b32 v4, 7, v0
    v_xor_b32 v4, v4, v3
    s_lshl_b32 s54, s{S_RB}, 7
    s_lshl_b32 s55, s55, 5
    s_add_u32 s54, s54, s55
    v_add_u32 v2, s54, v2
    v_mul_u32_u24 v2, 1280, v2
    v_lshl_add_u32 v{VXE}, v4, 4, v2
    v_xor_b32 v{VXO}, 64, v{VXE}
    v_and_b32 v4, 15, v0
    v_lshlrev_b32 v5, 2, v3
    v_xor_b32 v4, v4, v5
    v_mul_u32_u24 v5, 3840, v3
    v_lshl_add_u32 v{VW}, v4, 4, v5
    s_lshl_b32 s54, s{S_CB}, 8
    v_add_u32 v{VW}, s54, v{VW}
    """)
    def dma_stage(st):
        so = slot_of(st) * 32768
        for i in range(4):
            A(f"""
            s_add_u32 m0, s49, {so + i*1024}
            s_add_u32 s54, s51, {i*10240}
            buffer_load_dwordx4 v{VXO if i % 2 else VXE}, s[{R_A}:{R_A+3}], s54 offen lds""")
        for i in range(4):
            A(f"""
            s_add_u32 m0, s49, {so + 16384 + i*1024}
            s_add_u32 s54, s52, {i*15360}
            buffer_load_dwordx4 v{VW}, s[{R_B}:{R_B+3}], s54 offen lds""")
        A("""
        s_add_u32 s50, s50, 1
        s_cmp_eq_u32 s50, 10
        s_cselect_b32 s50, 0, s50
        s_lshl_b32 s51, s50, 7
        s_mul_i32 s52, s50, 245760
        s_add_u32 s52, s52, s53""")
    for st in range(3): dma_stage(st)
    if EARLY: A("s_barrier")
    A("s_waitcnt vmcnt(16)\ns_barrier")
    stp(A, "b0")
    for s_ in range(1, 8):
        A("s_waitcnt vmcnt(8)\ns_barrier")
        dma_stage(s_ + 2)
    A("s_waitcnt vmcnt(8)\ns_barrier")
    A("s_waitcnt vmcnt(0)\ns_barrier")
    stp(A, "b9")
    A(f"s_branch {L_heads}")

    A.label(L_nog)
    if EARLY: A("s_barrier")
    L_nz = A.newlabel("nz")
    A(f"""
    s_cmp_lg_u32 s2, {ZERO_WG}
    s_cbranch_scc1 {L_nz}
    v_lshlrev_b32 v2, 4, v0
    v_add_u32 v2, {SYNC}, v2
    v_mov_b32 v4, 0
    v_mov_b32 v5, 0
    v_mov_b32 v6, 0
    v_mov_b32 v7, 0
    s_mul_i32 s54, s{S_WAVE}, {5*1024}
    """)
    for i in range(5):
        A(f"buffer_store_dwordx4 v[4:7], v2, s[{R_WS}:{R_WS+3}], s54 offen sc1\ns_add_u32 s54, s54, 1024")
    A("s_waitcnt vmcnt(0)")
    lds_arrive_last(A, C_KV + 8, 8, L_nz, 2, 3)
    A(f"""
    v_mov_b32 v2, 0
    v_mov_b32 v3, 1
    s_mov_b64 exec, 1
    global_store_dword v2, v3, s[{P_DBG}:{P_DBG+1}] sc1
    s_mov_b64 exec, -1
    {L_nz}:
    s_branch L_nogtask
    L_nogdone:
    """)
    A(f"""
    v_mov_b32 v2, {CNT + C_QKV}
    v_mov_b32 v3, 4
    ds_write_b32 v2, v3
    """)

    A.label(L_heads)
    Q1, Q2 = 4, 8
    O = 16
    S = [32, 48]
    P = [64, 72]
    KA, KB, V0, V1 = 80, 84, 88, 92
    AK = [96, 99]; AK2 = [97, 100]; AV = [98, 101]
    KA0, KB0 = 104, 108
    WOV = 120
    VG = [126, 127, 128]; VKP, VKS, VVF = 129, 130, 131
    def gather_setup(VG=VG, VKP=VKP, VKS=VKS, VVF=VVF, WOV=WOV):
        A(f"""
        s_lshl_b32 s43, s{S_XCD}, 2
        s_lshr_b32 s44, s{S_J}, 3
        s_add_u32 s43, s43, s44        ; head
        s_and_b32 s44, s{S_J}, 7       ; qb
        s_lshl_b32 s46, s44, 3
        s_add_u32 s46, s46, s{S_WAVE}  ; q tile
        s_mov_b32 s47, {hex(HEADWORD[0])}
        """)
        for h in range(1, 32):
            A(f"s_cmp_eq_u32 s43, {h}\ns_cmov_b32 s47, {hex(HEADWORD[h])}")
        for k, dst in enumerate((50, 51, 52)):
            A(f"""
            s_bfe_u32 s54, s47, {hex((3 << 16) | (7*k))}
            s_bfe_u32 s55, s47, {hex((4 << 16) | (7*k + 3))}
            s_mul_i32 s54, s54, {SEC}
            s_lshl_b32 s55, s55, 9
            s_add_u32 s{dst}, s54, s55""")
        A(f"""
        v_and_b32 v3, 31, v0           ; n
        v_lshrrev_b32 v12, 5, v0       ; h
        v_lshlrev_b32 v13, 4, v3       ; n*16
        v_cmp_eq_u32 vcc, 0, v12
        v_mov_b32 v14, s50
        v_mov_b32 v15, s51
        v_cndmask_b32 v14, v15, v14, vcc
        v_add_u32 v{VKP}, v14, v13
        s_and_b32 s54, s43, 1
        s_lshl_b32 s54, s54, 3
        s_add_u32 s54, s54, s52
        v_add_u32 v{VKS}, s54, v13
        v_add_u32 v{VG[0]}, {5*SEC + 2*TB}, v{VKP}
        s_mul_i32 s53, s43, 20
        s_add_u32 s45, s53, 19
        s_lshr_b32 s45, s45, 7
        s_add_u32 s45, s45, 10
        s_mul_i32 s45, s45, {SEC}
        s_add_u32 s45, s45, 8192
        """)
        def vchunk(dst, seg_v, m_v):
            A(f"""
            v_add_u32 v5, s53, v{m_v}          ; F
            v_lshrrev_b32 v6, 7, v5
            v_add_u32 v6, 10, v6
            v_mul_u32_u24 v6, {SEC // 64}, v6
            v_lshlrev_b32 v6, 6, v6
            v_bfe_u32 v7, v5, 5, 2
            v_lshlrev_b32 v7, 10, v7
            v_add_u32 v6, v6, v7
            v_and_b32 v7, 31, v5
            v_lshl_add_u32 v6, v7, 4, v6
            v_lshrrev_b32 v7, 1, v{seg_v}
            v_lshl_add_u32 v6, v7, 12, v6
            v_and_b32 v7, 1, v{seg_v}
            v_lshl_add_u32 v6, v7, 9, v6
            v_subrev_u32 v7, 20, v{m_v}
            v_and_b32 v7, 3, v7
            v_lshlrev_b32 v7, 4, v7
            v_add_u32 v7, s45, v7
            v_cmp_gt_u32 vcc, 20, v{m_v}
            s_nop 1
            v_cndmask_b32 v{dst}, v7, v6, vcc
            """)
        A("""
        v_cmp_gt_u32 vcc, 56, v0
        v_subrev_u32 v8, 32, v0
        v_subrev_u32 v9, 56, v0
        v_cndmask_b32 v8, v9, v8, vcc          ; m
        v_mov_b32 v9, 1
        v_mov_b32 v10, 0
        v_cndmask_b32 v9, v9, v10, vcc         ; seg
        """)
        vchunk(11, 9, 8)
        A(f"""
        v_add_u32 v6, s52, v13
        v_add_u32 v6, {5*SEC + 2*TB}, v6
        v_cmp_gt_u32 vcc, 32, v0
        s_nop 1
        v_cndmask_b32 v{VG[1]}, v11, v6, vcc
        v_cmp_gt_u32 vcc, 16, v0
        v_cmp_gt_u32 s[54:55], 40, v0
        v_subrev_u32 v8, 40, v0
        v_subrev_u32 v10, 16, v0
        v_cndmask_b32 v8, v8, v10, s[54:55]
        v_add_u32 v10, 8, v0
        v_cndmask_b32 v8, v8, v10, vcc         ; m
        v_mov_b32 v9, 3
        v_mov_b32 v10, 2
        v_cndmask_b32 v9, v9, v10, s[54:55]
        v_mov_b32 v10, 1
        v_cndmask_b32 v9, v9, v10, vcc         ; seg
        """)
        vchunk(VG[2], 9, 8)
        A("v_mov_b32 v8, v3\nv_mov_b32 v9, v12")
        vchunk(VVF, 9, 8)
        srd(A, R_A, P_WO, 640 * 640 * 2)
        A(f"s_and_b32 s52, s{S_J}, 7\ns_mul_i32 s52, s52, 160")
        for b in range(5):
            A(f"""
            v_add_u32 v5, {64*b}, v0
            v_mul_u32_u24 v6, 52429, v5
            v_lshrrev_b32 v6, 19, v6
            v_mul_u32_u24 v7, 10, v6
            v_sub_u32 v7, v5, v7
            v_mul_u32_u24 v6, 1280, v6
            v_lshl_add_u32 v6, v7, 4, v6
            v_add_u32 v{WOV+b}, s52, v6""")

    gather_setup()
    A(f"""
    s_mul_i32 s53, s{S_WAVE}, 5120
    s_mul_i32 s62, s{S_WAVE}, 40960
    s_mov_b32 s60, 0
    v_lshlrev_b32 v2, 4, v0
    v_mul_u32_u24 v13, 384, v12
    v_lshl_add_u32 v13, v3, 4, v13
    v_add_u32 v{AV[0]}, 1536, v13
    v_mov_b32 v{AK[0]}, v2
    s_and_b32 s54, s43, 1
    s_lshl_b32 s54, s54, 3
    s_add_u32 s54, s54, 1024
    v_lshlrev_b32 v1, 4, v3
    v_add_u32 v{AK2[0]}, s54, v1
    v_add_u32 v{AV[1]}, {CHUNK}, v{AV[0]}
    v_add_u32 v{AK[1]}, {CHUNK}, v{AK[0]}
    v_add_u32 v{AK2[1]}, {CHUNK}, v{AK2[0]}
    v_cmp_lt_u32 vcc, 20, v3
    v_mov_b32 v5, 0x30000
    v_mov_b32 v{Q2+2}, 0
    v_cndmask_b32 v{AV[0]}, v{AV[0]}, v5, vcc
    v_cndmask_b32 v{AV[1]}, v{AV[1]}, v5, vcc
    v_mov_b32 v{Q2+3}, 0
    v_mov_b32 v{KB+2}, 0
    v_mov_b32 v{KB+3}, 0
    v_mov_b32 v{KB0+2}, 0
    v_mov_b32 v{KB0+3}, 0
    v_mov_b32 v164, 0x7ff00000
    s_mul_i32 s45, s46, {TB}
    s_mul_i32 s49, s{S_WAVE}, {REC}
    s_mul_i32 s50, s{S_WAVE}, {TB}
    """)
    stp(A, "hset")
    L_gow = A.newlabel("gow"); L_go = A.newlabel("go")
    A(f"""
    s_cmp_lg_u32 s{S_WAVE}, 0
    s_cbranch_scc1 {L_gow}
    """)
    lds_wait(A, C_QKV, 5, 6, val=4)
    lds_wait(A, C_INIT, 5, 6)
    if E("NOGATE", 0):
        Lg = A.newlabel("gate")
        A(f"s_cmp_lt_u32 s{S_CB}, 15\ns_cbranch_scc1 {Lg}")
        lds_wait(A, C_UOK, 5, 6, sleep=8)
        A.label(Lg)
    A(f"""
    s_mul_i32 s54, s43, 5
    s_add_u32 s55, s54, 4
    s_lshr_b32 s54, s54, 5             ; c0
    s_lshr_b32 s55, s55, 5             ; c1
    v_bfe_u32 v5, v0, 4, 1
    v_cmp_eq_u32 vcc, 1, v5
    v_mov_b32 v6, s54
    v_mov_b32 v7, s55
    v_cndmask_b32 v6, v6, v7, vcc      ; c0 / c1
    v_lshrrev_b32 v5, 5, v0
    v_mul_u32_u24 v5, 5, v5
    v_add_u32 v5, v5, v6
    v_add_u32 v6, 10, v6
    v_and_b32 v7, 15, v0
    v_lshl_add_u32 v5, v5, 4, v7
    v_lshl_add_u32 v6, v6, 4, v7
    v_lshlrev_b32 v5, 7, v5
    v_lshlrev_b32 v6, 7, v6
    v_add_u32 v5, {SYNC + 128*L_QF}, v5
    v_add_u32 v6, {SYNC + 128*L_QF}, v6
    """)
    poll2(A, 5, 6, 64, 7, 8, E("PS_QKV", 2))
    lds_set(A, C_GO, 5, 6)
    A(f"s_branch {L_go}")
    A.label(L_gow)
    lds_wait(A, C_GO, 5, 6, sleep=E("SL_GO", 1))
    A.label(L_go)
    stp(A, "go")
    A(f"""
    buffer_load_dwordx4 {v(Q1,4)}, v{VKP}, s[{R_WS}:{R_WS+3}], s45 offen{SC}
    buffer_load_dwordx2 {v(Q2,2)}, v{VKS}, s[{R_WS}:{R_WS+3}], s45 offen{SC}
    s_mov_b32 s48, {5*SEC}
    buffer_load_dwordx4 {v(KA0,4)}, v{VKP}, s[{R_WS}:{R_WS+3}], s48 offen{SC}
    buffer_load_dwordx2 {v(KB0,2)}, v{VKS}, s[{R_WS}:{R_WS+3}], s48 offen{SC}
    s_mov_b32 s48, {5*SEC + TB}
    buffer_load_dwordx4 {v(KA,4)}, v{VKP}, s[{R_WS}:{R_WS+3}], s48 offen{SC}
    buffer_load_dwordx2 {v(KB,2)}, v{VKS}, s[{R_WS}:{R_WS+3}], s48 offen{SC}
    """)
    def kv_piece(chunk, i):
        slot = chunk % 2; rr, part = divmod(i, 3)
        return f"""
        s_add_u32 m0, s49, {slot*CHUNK + rr*8*REC + part*1024}
        s_add_u32 s51, s50, {(chunk*16 + rr*8)*TB}
        buffer_load_dwordx4 v{VG[part]}, s[{R_WS}:{R_WS+3}], s51 offen{SC} lds"""
    for i in range(6): A(kv_piece(0, i))
    if not E("C1LATE", 1):
        for i in range(6): A(kv_piece(1, i))
    A(f"""
    v_cmp_gt_u32 vcc, 32, v0
    s_waitcnt vmcnt({0 if E("C1LATE", 1) else 6})
    s_nop 0
    v_cndmask_b32 v{Q2}, 0, v{Q2}, vcc
    v_cndmask_b32 v{Q2+1}, 0, v{Q2+1}, vcc
    """)
    stp(A, "kvok")
    lds_add(A, C_KV, 12, 13)
    lds_wait(A, C_KV, 12, 13, val=8, sleep=0)
    stp(A, "att0")

    def wo_piece(kind, b):
        if kind == 0:
            return f"""
            s_add_u32 m0, s53, {WO_A + b*1024}
            s_nop 0
            buffer_load_dwordx4 v{WOV+b}, s[{R_A}:{R_A+3}], s62 offen lds"""
        if kind == 2:
            return f"""
            s_add_u32 m0, s53, {b*1024}
            s_add_u32 s51, s62, {WO_BROW*1280}
            buffer_load_dwordx4 v{WOV+b}, s[{R_A}:{R_A+3}], s51 offen lds"""
        lab = A.newlabel("wos")
        if kind == 1: lim, ldso, go = 3, WO_A + 8*5120, 8*40960
        else: lim, ldso, go = (2 if b < 2 else 1), 8*5120, WO_BROW*1280 + 8*40960
        return f"""
            s_cmp_ge_u32 s{S_WAVE}, {lim}
            s_cbranch_scc1 {lab}
            s_add_u32 m0, s53, {ldso + b*1024}
            s_add_u32 s51, s62, {go}
            buffer_load_dwordx4 v{WOV+b}, s[{R_A}:{R_A+3}], s51 offen lds
            {lab}:"""
    def qk2(Sd, Kr):
        if E("K8", 1): return f"v_mfma_f32_32x32x8bf16_1k {v(Sd,16)}, {v(Kr,2)}, {v(Q2,2)}, {v(Sd,16)}"
        return f"v_mfma_f32_32x32x16_bf16 {v(Sd,16)}, {v(Kr,4)}, {v(Q2,4)}, {v(Sd,16)}"
    PZ, PQ, PO = 132, 148, 164
    def post_task(skip):
        L_t3 = A.newlabel("t3"); L_tgo = A.newlabel("tgo")
        A(f"""
        s_cmp_eq_u32 s{S_WAVE}, 0
        s_cbranch_scc1 {skip}
        s_cmp_ge_u32 s{S_WAVE}, 4
        s_cbranch_scc1 {skip}
        s_cmp_eq_u32 s{S_WAVE}, 3
        s_cbranch_scc1 {L_t3}
        s_lshl_b32 s56, s2, 1
        s_sub_u32 s57, s{S_WAVE}, 1
        s_add_u32 s56, s56, s57
        s_branch {L_tgo}
        {L_t3}:
        s_cmp_ge_u32 s2, 128
        s_cbranch_scc1 {skip}
        s_add_u32 s56, s2, 512
        {L_tgo}:
        """)
    def post_probe():
        A(f"""
        v_min_u32 v12, 7, v0
        v_lshlrev_b32 v12, 7, v12
        v_add_u32 v12, {SYNC + 128*(FLG + L_Z)}, v12
        global_load_dword v166, v12, s[{P_WS}:{P_WS+1}] sc1
        """)
    def post_prefetch():
        Ls = A.newlabel("pps"); Lok = A.newlabel("ppok")
        post_task(Ls)
        A(f"""
        v_cmp_le_u32 vcc, 1, v166
        s_mul_i32 s57, s56, 52429
        s_lshr_b32 s57, s57, 19
        s_mul_i32 s58, s57, 10
        s_sub_u32 s58, s56, s58
        s_cmp_eq_u64 vcc, -1
        s_cbranch_scc1 {Lok}
        """)
        poll_flags(A, L_Z, 8, 12, 13, 14)
        A.label(Lok)
        srd(A, R_B, P_BQ, 2048 * 640 * 2)
        A(f"""
        v_and_b32 v12, 7, v0
        v_lshrrev_b32 v13, 3, v0
        s_lshl_b32 s54, s58, 6
        v_lshl_add_u32 v12, v12, 3, s54
        s_lshl_b32 s55, s57, 5
        v_lshl_add_u32 v13, v13, 2, s55
        v_mul_u32_u24 v14, 1280, v13
        v_lshl_add_u32 v14, v12, 1, v14
        v_mul_u32_u24 v15, 2560, v13
        v_lshl_add_u32 v15, v12, 1, v15
        v_add_u32 v{PO}, 1280, v15
        v_lshlrev_b32 v15, 12, v12
        v_lshl_add_u32 v15, v13, 1, v15
        v_add_u32 v{PO+1}, {WS_Z}, v15
        """)
        for j in range(4):
            A(f"buffer_load_dwordx4 {v(PQ+4*j,4)}, v14, s[{R_B}:{R_B+3}], 0 offen offset:{1280*j}")
        for i in range(8):
            A(f"s_mov_b32 s54, {i*4096}")
            A(f"buffer_load_dwordx2 {v(PZ+2*i,2)}, v{PO+1}, s[{R_WS}:{R_WS+3}], s54 offen{SC}")
        A.label(Ls)
    A(f"v_mfma_f32_32x32x16_bf16 {v(S[0],16)}, {v(KA0,4)}, {v(Q1,4)}, 0")
    A(qk2(S[0], KB0))
    A("s_nop 7\ns_nop 7")
    for J in range(64):
        c = J // 16; slot = c % 2; j = J % 16
        Sc, Sn = S[J % 2], S[(J + 1) % 2]
        Pc, Pp = P[J % 2], P[(J + 1) % 2]
        off = j * REC
        if j == 0 and J > 0:
            stp(A, f"attpre{J}")
            if J == 48 and E("POSTPF", 1): post_probe()
            A(f"s_waitcnt vmcnt({5 if (J == 32 and not E('SRV', 1)) else 0}) lgkmcnt(0)\ns_barrier")
            stp(A, f"attb{J}")
            if J == 48 and E("POSTPF", 1): post_prefetch()
        EX = lambda i: f"v_exp_f32 v{Sc+i}, v{Sc+i}"
        CV = lambda i: f"v_cvt_pk_bf16_f32 v{Pc+i}, v{Sc+2*i}, v{Sc+2*i+1}"
        G = [(EX(0),EX(1),EX(2),EX(3),CV(0),CV(1)), (EX(4),EX(5),EX(6),EX(7),CV(2),CV(3)), (EX(8),EX(9),EX(10),EX(11),CV(4),CV(5)), (EX(12),EX(13),EX(14),EX(15),CV(6),CV(7))]
        PJ = [int(x) for x in os.environ.get("PRIOJ", "0,9,13,15").split(",")]
        if j in PJ:
            A(f"s_setprio {3 - PJ.index(j)}")
        if J > 0 and j != 0: A("s_waitcnt lgkmcnt(2)")
        if J < 63: A(f"v_mfma_f32_32x32x16_bf16 {v(Sn,16)}, {v(KA,4)}, {v(Q1,4)}, 0")
        if J < 62: A(f"ds_read_b128 {v(KA,4)}, v{AK[slot]} offset:{off}")
        for x in G[0]: A(x)
        if J < 63: A(qk2(Sn, KB))
        if J < 62: A(f"ds_read_b64 {v(KB,2)}, v{AK2[slot]} offset:{off}")
        for x in G[1]: A(x)
        if J > 0:
            A("s_waitcnt lgkmcnt(2)" if J < 62 else "s_waitcnt lgkmcnt(0)")
            cc = "0" if J == 1 else v(O, 16)
            A(f"v_mfma_f32_32x32x16_bf16 {v(O,16)}, {v(V0,4)}, {v(Pp,4)}, {cc}")
        A(f"ds_read_b128 {v(V0,4)}, v{AV[slot]} offset:{off}")
        for x in G[2]: A(x)
        if J > 0: A(f"v_mfma_f32_32x32x16_bf16 {v(O,16)}, {v(V1,4)}, {v(Pp+4,4)}, {v(O,16)}")
        A(f"ds_read_b128 {v(V1,4)}, v{AV[slot]} offset:{off + 768}")
        if E("NODMA", 0):
            for x in G[3]: A(x)
            continue
        if E("SRV", 1):
            if c == 0 and j < 6 and not E("SRV1", 1): A(kv_piece(1, j))
        else:
            if (c in (1, 2) or (c == 0 and E("C1LATE", 1))) and j < 6: A(kv_piece(c + 1, j))
            if c == 1 and 6 <= j < 11: A(wo_piece(0, j - 6))
            if c == 1 and 11 <= j < 16: A(wo_piece(1, j - 11))
            if c == 3 and 1 <= j < 6: A(wo_piece(2, j - 1))
            if c == 3 and 6 <= j < 11: A(wo_piece(3, j - 6))
        for x in G[3]: A(x)
    stp(A, "att1")
    Pl = P[63 % 2]
    A("s_waitcnt lgkmcnt(0)")
    A(f"v_mfma_f32_32x32x16_bf16 {v(O,16)}, {v(V0,4)}, {v(Pl,4)}, {v(O,16)}")
    A(f"v_mfma_f32_32x32x16_bf16 {v(O,16)}, {v(V1,4)}, {v(Pl+4,4)}, {v(O,16)}")
    A("s_setprio 0")
    L_fin = A.newlabel("fin"); L_slow = A.newlabel("slow"); L_odone = A.newlabel("odone")
    def addr_calc():
        A(f"""
        s_lshl_b32 s52, s43, 6
        s_add_u32 s52, s52, s46
        s_mul_i32 s52, s52, 1536
        s_add_u32 s52, s52, {WS_O}
        v_lshlrev_b32 v104, 4, v0
        """)
    addr_calc()
    A("s_nop 7")
    A.label(L_fin)
    A("s_nop 7")
    A(f"""
    v_mov_b32 v110, v{O+8}
    v_mov_b32 v111, v{O+8}
    s_nop 1
    v_permlane32_swap_b32 v110, v111
    s_nop 1
    v_rcp_f32 v112, v111
    s_nop 0
    """)
    for i in range(0, 12, 2):
        A(f"v_pk_mul_f32 {v(O+i,2)}, {v(O+i,2)}, v[112:113] op_sel_hi:[1,0]")
    A(f"""
    v_add_f32 v113, abs(v{O}), abs(v{O+1})
    v_add_f32 v114, abs(v{O+8}), abs(v{O+9})
    """)
    for i in range(2, 8): A(f"v_add_f32 v113, v113, abs(v{O+i})")
    A(f"""
    v_add_f32 v114, v114, abs(v{O+10})
    v_add_f32 v114, v114, abs(v{O+11})
    v_cmp_gt_u32 vcc, 32, v0
    v_mov_b32 v115, 0x21800000         ; 2^-60
    v_mov_b32 v116, 0x5d800000         ; 2^60
    v_cndmask_b32 v114, 0, v114, vcc
    v_add_f32 v113, v113, v114
    v_mov_b32 v114, 0x7f800000
    v_cmp_nlt_f32 s[54:55], v113, v114
    v_cmp_ngt_f32 s[56:57], v111, v115
    v_cmp_nlt_f32 vcc, v111, v116
    s_nop 1
    s_or_b64 s[54:55], s[54:55], s[56:57]
    s_or_b64 s[54:55], s[54:55], vcc
    s_cmp_lg_u64 s[54:55], 0
    s_cselect_b32 s61, 1, 0
    s_andn2_b32 s61, s61, s60
    s_cmp_lg_u32 s61, 0
    s_cbranch_scc1 {L_slow}
    """)
    for i in range(4): A(f"v_cvt_pk_bf16_f32 v{O+i}, v{O+2*i}, v{O+2*i+1}")
    A(f"""
    v_cvt_pk_bf16_f32 v{O+8}, v{O+8}, v{O+9}
    v_cvt_pk_bf16_f32 v{O+9}, v{O+10}, v{O+11}
    v_mov_b32 v{O+10}, 0
    v_mov_b32 v{O+11}, 0
    buffer_store_dwordx4 {v(O,4)}, v104, s[{R_WS}:{R_WS+3}], s52 offen{SC}
    s_mov_b32 exec_hi, 0
    buffer_store_dwordx4 {v(O+8,4)}, v104, s[{R_WS}:{R_WS+3}], s52 offen offset:1024{SC}
    s_mov_b64 exec, -1
    s_branch {L_odone}
    """)
    A.label(L_slow)
    L1 = A.newlabel("p1"); L2 = A.newlabel("p2")
    A(f"""
    s_mov_b32 s60, 1
    v_mov_b32 v110, 0xff800000
    s_mov_b32 s52, 0
    {L1}:
    s_mul_i32 s63, s52, {TB}
    s_add_u32 s63, s63, {5*SEC}
    buffer_load_dwordx4 {v(KA,4)}, v{VKP}, s[{R_WS}:{R_WS+3}], s63 offen{SC}
    buffer_load_dwordx2 {v(KB,2)}, v{VKS}, s[{R_WS}:{R_WS+3}], s63 offen{SC}
    s_waitcnt vmcnt(0)
    v_mfma_f32_32x32x16_bf16 {v(S[0],16)}, {v(KA,4)}, {v(Q1,4)}, 0
    v_mfma_f32_32x32x16_bf16 {v(S[0],16)}, {v(KB,4)}, {v(Q2,4)}, {v(S[0],16)}
    s_nop 7
    s_nop 7
    """)
    for i in range(0, 16, 2): A(f"v_max3_f32 v110, v110, v{S[0]+i}, v{S[0]+i+1}")
    A(f"""
    s_add_u32 s52, s52, 1
    s_cmp_lt_u32 s52, 64
    s_cbranch_scc1 {L1}
    v_mov_b32 v108, v110
    v_mov_b32 v109, v110
    s_nop 1
    v_permlane32_swap_b32 v108, v109
    s_nop 1
    v_max_f32 v110, v108, v109
    v_and_b32 v3, 31, v0
    v_cmp_gt_u32 vcc, 20, v3
    v_add_u32 v108, 4096, v{VVF}
    s_nop 0
    v_cndmask_b32 v109, v{VVF}, v108, vcc
    """)
    for i in range(16): A(f"v_mov_b32 v{O+i}, 0")
    A("s_mov_b32 s52, 0")
    A.label(L2)
    A(f"""
    s_mul_i32 s54, s52, {TB}
    s_add_u32 s63, s54, {5*SEC}
    buffer_load_dwordx4 {v(KA,4)}, v{VKP}, s[{R_WS}:{R_WS+3}], s63 offen{SC}
    buffer_load_dwordx2 {v(KB,2)}, v{VKS}, s[{R_WS}:{R_WS+3}], s63 offen{SC}
    buffer_load_dwordx4 {v(V0,4)}, v{VVF}, s[{R_WS}:{R_WS+3}], s54 offen{SC}
    buffer_load_dwordx4 {v(V1,4)}, v109, s[{R_WS}:{R_WS+3}], s54 offen{SC}
    s_waitcnt vmcnt(0)
    v_mfma_f32_32x32x16_bf16 {v(S[0],16)}, {v(KA,4)}, {v(Q1,4)}, 0
    v_mfma_f32_32x32x16_bf16 {v(S[0],16)}, {v(KB,4)}, {v(Q2,4)}, {v(S[0],16)}
    s_nop 7
    s_nop 7
    """)
    for i in range(16): A(f"v_sub_f32 v{S[0]+i}, v{S[0]+i}, v110")
    for i in range(16): A(f"v_exp_f32 v{S[0]+i}, v{S[0]+i}")
    A("s_nop 0")
    for i in range(8): A(f"v_cvt_pk_bf16_f32 v{P[0]+i}, v{S[0]+2*i}, v{S[0]+2*i+1}")
    A(f"""
    s_nop 1
    v_mfma_f32_32x32x16_bf16 {v(O,16)}, {v(V0,4)}, {v(P[0],4)}, {v(O,16)}
    v_mfma_f32_32x32x16_bf16 {v(O,16)}, {v(V1,4)}, {v(P[0]+4,4)}, {v(O,16)}
    s_add_u32 s52, s52, 1
    s_cmp_lt_u32 s52, 64
    s_cbranch_scc1 {L2}
    s_nop 7
    """)
    addr_calc()
    A(f"s_branch {L_fin}")

    A.label(L_odone)
    AD = 80; OA = 88; VOUT, VRED = 91, 92; ACC3 = 96
    OFS = [28, 32, 36, 40, 44]
    WFS = [[116, 120, 124, 128, 132], [136, 140, 144, 148, 152], [48, 52, 56, 60, 64], [68, 72, 76, 156, 160]]
    A(f"""
    s_lshl_b32 s54, s{S_XCD}, 2
    s_lshr_b32 s55, s{S_J}, 3
    s_add_u32 s54, s54, s55        ; tb
    s_lshl_b32 s54, s54, 2
    s_and_b32 s55, s{S_WAVE}, 3
    s_add_u32 s54, s54, s55        ; T
    s_lshr_b32 s45, s54, 1
    s_mul_i32 s45, s45, 1536
    s_and_b32 s57, s54, 1
    s_lshl_b32 s57, s57, 8
    s_add_u32 s45, s45, s57
    s_add_u32 s45, s45, {WS_O}
    s_lshr_b32 s57, s{S_WAVE}, 2
    s_mul_i32 s57, s57, {16*64*1536}
    s_add_u32 s62, s45, s57
    v_lshrrev_b32 v5, 4, v0            ; kg
    v_and_b32 v6, 15, v0
    v_lshlrev_b32 v6, 4, v6
    """)
    for c in range(3):
        A(f"""
        v_add_u32 v8, {4*c}, v5
        v_mul_u32_u24 v9, 21846, v8
        v_lshrrev_b32 v9, 16, v9
        v_mul_u32_u24 v10, 3, v9
        v_sub_u32 v10, v8, v10
        v_mul_u32_u24 v9, 1536, v9
        v_lshlrev_b32 v9, 6, v9
        v_lshl_add_u32 v9, v10, 9, v9
        v_add_u32 v{OA+c}, v9, v6""")
    A(f"""
    v_and_b32 v3, 15, v0
    s_lshl_b32 s55, s54, 4
    v_add_u32 v3, s55, v3
    v_mul_u32_u24 v3, 2560, v3
    v_lshrrev_b32 v4, 4, v0
    v_lshl_add_u32 v3, v4, 3, v3
    s_and_b32 s55, s{S_J}, 7
    s_mul_i32 s55, s55, 160
    v_add_u32 v{VOUT}, s55, v3
    v_lshlrev_b32 v3, 4, v0
    s_and_b32 s55, s{S_WAVE}, 3
    s_mul_i32 s55, s55, 5120
    s_add_u32 s55, s55, {RED}
    v_add_u32 v{VRED}, s55, v3
    v_bfe_u32 v6, v0, 2, 2             ; r
    v_and_b32 v7, 3, v0
    v_lshlrev_b32 v7, 3, v7            ; 8*c4
    s_mov_b32 s59, {WO_A}
    """)
    def row_addr(dst0, s, region):
        A(f"""
        v_add_u32 v8, {4*s}, v5
        v_mul_u32_u24 v9, 21846, v8
        v_lshrrev_b32 v9, 16, v9
        v_mul_u32_u24 v10, 3, v9
        v_sub_u32 v10, v8, v10
        v_mul_u32_u24 v9, 20, v9
        v_add_u32 v9, v9, v6
        v_lshlrev_b32 v11, 2, v10
        v_cmp_eq_u32 vcc, 2, v10
        v_add_u32 v12, 8, v11
        v_lshlrev_b32 v13, 1, v11
        v_cndmask_b32 v11, v11, v13, vcc
        v_add_u32 v11, v11, v9
        v_add_u32 v12, v12, v9
        """)
        for hh, rv in enumerate((11, 12)):
            if region == "A":
                A(f"v_mul_u32_u24 v13, 160, v{rv}\nv_add3_u32 v{dst0+hh}, v13, v7, s59")
            elif region == "B":
                A(f"v_subrev_u32 v13, {WO_BROW}, v{rv}\nv_mul_u32_u24 v13, 160, v13\nv_add_u32 v{dst0+hh}, v13, v7")
            else:
                A(f"""
                v_mul_u32_u24 v13, 160, v{rv}
                v_add3_u32 v14, v13, v7, s59
                v_subrev_u32 v13, {WO_BROW*160}, v13
                v_add_u32 v13, v13, v7
                v_cmp_gt_u32 vcc, {WO_BROW}, v{rv}
                s_nop 1
                v_cndmask_b32 v{dst0+hh}, v13, v14, vcc""")
    L_ahi = A.newlabel("ahi"); L_adone = A.newlabel("adone")
    stp(A, "ostored")
    A("s_waitcnt vmcnt(0)")
    stp(A, "odrained")
    L_os = A.newlabel("os")
    lds_arrive_last(A, C_O, 8, L_os, 2, 3)
    A(f"s_add_u32 s65, s44, {L_O}")
    global_arrive(A, "s65", 32, 2, 3)
    A.label(L_os)
    A(f"""
    s_cmp_ge_u32 s{S_WAVE}, 4
    s_cbranch_scc1 {L_ahi}
    """)
    for c in range(3): row_addr(AD + 2*c, c, "A")
    A(f"s_branch {L_adone}")
    A.label(L_ahi)
    row_addr(AD + 6, 12, None)
    for c in range(3): row_addr(AD + 2*c, 13 + c, "B")
    A.label(L_adone)
    srd(A, R_B, P_OUT, 2048 * 1280 * 2)
    L_p3a = A.newlabel("p3a"); L_post = A.newlabel("post"); L_wb = A.newlabel("wb")
    post_task(L_wb)
    for j in range(4):
        for q in range(4):
            za = PZ + 2*(2*q) + j//2; zb = PZ + 2*(2*q+1) + j//2
            if j % 2 == 0:
                A(f"v_lshlrev_b32 v48, 16, v{za}\nv_lshlrev_b32 v49, 16, v{zb}")
            else:
                A(f"v_and_b32 v48, 0xffff0000, v{za}\nv_and_b32 v49, 0xffff0000, v{zb}")
            qq = PQ + 4*j + q
            A(f"v_lshlrev_b32 v50, 16, v{qq}\nv_and_b32 v51, 0xffff0000, v{qq}")
            A(f"v_pk_mul_f32 v[48:49], v[48:49], v[50:51]")
            A(f"v_cvt_pk_bf16_f32 v{52+4*j+q}, v48, v49")
        A(f"s_mov_b32 s54, {j*2560}")
        A(f"buffer_store_dwordx4 {v(52+4*j,4)}, v{PO}, s[{R_B}:{R_B+3}], s54 offen{os.environ.get('OUTB', '')}")
    A.label(L_wb)
    A("s_barrier")
    def sel_of(hi):
        if not hi: return lambda st: (AD + 2*(st % 3), (st // 3) * 12800)
        return lambda st: (AD + 6, 0) if st == 0 else (AD + 2*((st - 1) % 3), ((st - 1) // 3) * 12800)
    def rd(hi, st):
        base, so = sel_of(hi)(st); r = []
        for T in range(5):
            r.append(f"ds_read_b64_tr_b16 {v(WFS[st % 4][T],2)}, v{base} offset:{so + 32*T}")
            r.append(f"ds_read_b64_tr_b16 {v(WFS[st % 4][T]+2,2)}, v{base+1} offset:{so + 32*T}")
        return r
    PD = E("P3D", 3)
    assert PD <= 3
    def o_load(st):
        A(f"s_add_u32 s58, s62, {(st//3)*4*64*1536}")
        A(f"buffer_load_dwordx4 {v(OFS[st % 5],4)}, v{OA + st % 3}, s[{R_WS}:{R_WS+3}], s58 offen{SC}")
    def p3_pre(hi):
        for st in range(4):
            for r in rd(hi, st): A(r)
            A("s_waitcnt lgkmcnt(4)")
    def p3_wait_o(poller):
        if poller:
            Lnp = A.newlabel("np")
            A(f"""
            s_cmp_eq_u32 s{S_WAVE}, 0
            s_cbranch_scc0 {Lnp}
            s_lshl_b32 s54, s{S_XCD}, 7
            s_add_u32 s54, s54, {SYNC + 128*(FLG + L_O)}
            v_mov_b32 v2, s54
            v_cmp_eq_u32 vcc, 0, v0
            v_mov_b32 v3, 1
            s_nop 0
            v_cndmask_b32 v4, 0, v3, vcc
            """)
            poll(A, 2, 4, 3, sleep=E("PS_O", 2))
            stp(A, "ook")
            A.label(Lnp)
        stp(A, "prep3a")
        A("s_waitcnt lgkmcnt(0)\ns_barrier")
        stp(A, "p3a")
        for st in range(PD + 1): o_load(st)
    def p3_loop(hi):
        for st in range(12):
            A(f"s_waitcnt vmcnt({min(PD, 11-st)})" + (" lgkmcnt(10)" if st >= 4 and st < 9 else (" lgkmcnt(0)" if st >= 9 else "")))
            if st + PD + 1 < 12: o_load(st + PD + 1)
            if st == 0: stp(A, "p3first")
            if st == 6: stp(A, "p3mid")
            rs = rd(hi, st + 4) if st + 4 < 12 else []
            for T in range(5):
                cc = "0" if st == 0 else v(ACC3+4*T, 4)
                A(f"v_mfma_f32_16x16x32_bf16 {v(ACC3+4*T,4)}, {v(WFS[st % 4][T],4)}, {v(OFS[st % 5],4)}, {cc}")
                for r in rs[2*T:2*T+2]: A(r)
        A("s_nop 7")
    L_hi = A.newlabel("p3hi")
    A(f"""
    s_cmp_ge_u32 s{S_WAVE}, 4
    s_cbranch_scc1 {L_hi}
    """)
    p3_pre(False)
    p3_wait_o(True)
    p3_loop(False)
    stp(A, "p3loop")
    A("s_barrier")
    stp(A, "p3red")
    for T in range(5): A(f"ds_read_b128 {v(32+4*T,4)}, v{VRED} offset:{1024*T}")
    A("s_waitcnt lgkmcnt(0)")
    for T in range(5):
        d = ACC3 + 4*T
        A(f"v_pk_add_f32 {v(d,2)}, {v(d,2)}, {v(32+4*T,2)}")
        A(f"v_pk_add_f32 {v(d+2,2)}, {v(d+2,2)}, {v(34+4*T,2)}")
        A(f"v_cvt_pk_bf16_f32 v{d}, v{d}, v{d+1}")
        A(f"v_cvt_pk_bf16_f32 v{d+1}, v{d+2}, v{d+3}")
        A(f"buffer_store_dwordx2 {v(d,2)}, v{VOUT}, s[{R_B}:{R_B+3}], 0 offen offset:{32*T}{os.environ.get('OUTA', '')}")
    prof_dump(A, 0, wsptr=P_WS)
    A("s_endpgm")
    A.label(L_hi)
    p3_pre(True)
    p3_wait_o(False)
    p3_loop(True)
    for T in range(5): A(f"ds_write_b128 v{VRED}, {v(ACC3+4*T,4)} offset:{1024*T}")
    A("s_waitcnt lgkmcnt(0)\ns_barrier")
    prof_dump(A, 0, wsptr=P_WS)
    A("s_endpgm")

    A.label(L_bw)
    BK, BV, BW = 16, 44, 60
    def b_setup(notask, chan_only):
        L2_ = A.newlabel("b2")
        A(f"""
        s_cmp_eq_u32 s{S_WAVE}, 10
        s_cbranch_scc1 {L2_}
        s_lshl_b32 s56, s2, 1
        s_sub_u32 s57, s{S_WAVE}, 8
        s_add_u32 s56, s56, s57
        """)
        b_addr()
        Lc = A.newlabel("bcont")
        A(f"""
        s_branch {Lc}
        {L2_}:
        s_cmp_ge_u32 s2, 128
        s_cbranch_scc1 {notask}
        s_add_u32 s56, s2, 512
        s_mov_b32 s65, 0
        s_branch {chan_only}
        {Lc}:
        """)
    def b_addr():
        A(f"""
        s_mul_i32 s57, s56, 52429
        s_lshr_b32 s57, s57, 19        ; tblk
        s_mul_i32 s58, s57, 10
        s_sub_u32 s58, s56, s58        ; dblk
        v_and_b32 v2, 7, v0            ; dg
        v_lshrrev_b32 v3, 3, v0        ; tg
        v_lshlrev_b32 v12, 6, v2
        v_lshl_add_u32 v12, v3, 3, v12
        s_lshl_b32 s54, s56, 12
        s_add_u32 s54, s54, {WS_U}
        v_add_u32 v12, s54, v12
        s_lshl_b32 s54, s58, 6
        v_lshl_add_u32 v2, v2, 3, s54  ; d0
        s_lshl_b32 s55, s57, 5
        v_lshl_add_u32 v3, v3, 2, s55  ; t0
        v_mul_u32_u24 v4, 1280, v3
        v_lshl_add_u32 v10, v2, 1, v4
        v_lshlrev_b32 v11, 3, v2
        v_subrev_u32 v5, 3840, v10
        v_subrev_u32 v6, 2560, v10
        v_subrev_u32 v7, 1280, v10
        """)
    def b_loads():
        srd(A, R_C, P_BK, 2048 * 640 * 2)
        A(f"""
        buffer_load_dwordx4 {v(BK,4)}, v5, s[{R_C}:{R_C+3}], 0 offen
        buffer_load_dwordx4 {v(BK+4,4)}, v6, s[{R_C}:{R_C+3}], 0 offen
        buffer_load_dwordx4 {v(BK+8,4)}, v7, s[{R_C}:{R_C+3}], 0 offen
        """)
        for j in range(4): A(f"buffer_load_dwordx4 {v(BK+12+4*j,4)}, v10, s[{R_C}:{R_C+3}], 0 offen offset:{1280*j}")
        srd(A, R_C, P_BV, 2048 * 640 * 2)
        for j in range(4): A(f"buffer_load_dwordx4 {v(BV+4*j,4)}, v10, s[{R_C}:{R_C+3}], 0 offen offset:{1280*j}")
        srd(A, R_C, P_SH, 640 * 4 * 2)
        for j in range(4): A(f"buffer_load_dwordx4 {v(BW+4*j,4)}, v11, s[{R_C}:{R_C+3}], 0 offen offset:{16*j}")
    def b_compute(q):
        KP, VP, WP, AC, OUT = 80, 94, 102, 110, 120
        for j in range(7):
            A(f"v_lshlrev_b32 v{KP+2*j}, 16, v{BK+4*j+q}\nv_and_b32 v{KP+1+2*j}, 0xffff0000, v{BK+4*j+q}")
        for t in range(4):
            A(f"v_lshlrev_b32 v{VP+2*t}, 16, v{BV+4*t+q}\nv_and_b32 v{VP+1+2*t}, 0xffff0000, v{BV+4*t+q}")
        for u in range(2):
            bb = BW + 4*q + 2*u
            A(f"v_lshlrev_b32 v{WP+u}, 16, v{bb}\nv_and_b32 v{WP+2+u}, 0xffff0000, v{bb}")
            A(f"v_lshlrev_b32 v{WP+4+u}, 16, v{bb+1}\nv_and_b32 v{WP+6+u}, 0xffff0000, v{bb+1}")
        for t in range(4):
            acc = AC + 2*t
            A(f"v_pk_mul_f32 {v(acc,2)}, {v(KP+2*(t+0),2)}, {v(WP+6,2)}")
            A(f"v_pk_fma_f32 {v(acc,2)}, {v(KP+2*(t+1),2)}, {v(WP+4,2)}, {v(acc,2)}")
            A(f"v_pk_fma_f32 {v(acc,2)}, {v(KP+2*(t+2),2)}, {v(WP+2,2)}, {v(acc,2)}")
            A(f"v_pk_fma_f32 {v(acc,2)}, {v(KP+2*(t+3),2)}, {v(WP,2)}, {v(acc,2)}")
            A(f"v_pk_mul_f32 {v(acc,2)}, {v(acc,2)}, {v(VP+2*t,2)}")
        for u in range(2):
            o = OUT + 4*q + 2*u
            A(f"v_cvt_pk_bf16_f32 v{o}, v{AC+u}, v{AC+2+u}\nv_cvt_pk_bf16_f32 v{o+1}, v{AC+4+u}, v{AC+6+u}")
        for u in range(2):
            o = OUT + 4*q + 2*u
            A(f"buffer_store_dwordx2 {v(o,2)}, v12, s[{R_WS}:{R_WS+3}], 0 offen offset:{(2*q+u)*512}{SC}")
    def init_load():
        A(f"v_mov_b32 v2, 0\nglobal_load_dword v9, v2, s[{P_DBG}:{P_DBG+1}] sc1")
    def u_publish(n):
        A(f"s_waitcnt vmcnt({n})\ns_mov_b32 s65, 0")
        Lok = A.newlabel("iok"); Lsk = A.newlabel("usk")
        A(f"""
        v_readfirstlane_b32 s66, v9
        s_nop 3
        s_cmp_lg_u32 s66, 0
        s_cbranch_scc1 {Lok}
        v_mov_b32 v2, 0
        v_mov_b32 v3, 1
        """)
        poll(A, 2, 3, 4, sleep=8, base=P_DBG)
        A.label(Lok)
        lds_set(A, C_INIT, 2, 3)
        A(f"s_cmp_ge_u32 s{S_CBK}, 15\ns_cselect_b32 s64, 10, 2")
        lds_arrive_last(A, C_U, "s64", Lsk, 2, 3)
        A(f"""
        s_and_b32 s66, s2, 7
        s_add_u32 s66, s66, {L_U}
        s_lshl_b32 s66, s66, 7
        s_add_u32 s66, s66, {SYNC}
        v_mov_b32 v10, s66
        v_mov_b32 v11, 1
        s_mov_b64 exec, 1
        global_atomic_add v11, v10, v11, s[{P_WS}:{P_WS+1}] sc0 sc1
        s_mov_b64 exec, -1
        s_mov_b32 s65, 1
        {Lsk}:
        """)
    def u_flag():
        L = A.newlabel("uf")
        A(f"""
        s_cmp_eq_u32 s65, 0
        s_cbranch_scc1 {L}
        s_waitcnt vmcnt(0)
        v_readfirstlane_b32 s66, v11
        s_nop 3
        s_cmp_lg_u32 s66, 31
        s_cbranch_scc1 {L}
        v_add_u32 v10, {128*40}, v10
        v_mov_b32 v11, 1
        s_mov_b64 exec, 1
        global_store_dword v10, v11, s[{P_WS}:{P_WS+1}] sc1
        s_mov_b64 exec, -1
        {L}:
        """)
    HR = 136
    def h_loads():
        srd(A, R_C, P_SK, 640 * 4096)
        A(f"""
        s_sub_u32 s57, s{S_WAVE}, 8
        s_mul_i32 s57, s57, {CONV_SZ}
        s_add_u32 s57, s57, {CONV_BASE}
        s_lshl_b32 s58, s56, 12
        v_lshlrev_b32 v13, 4, v0
        v_add_u32 v13, s58, v13
        v_subrev_u32 v14, 8, v13
        """)
        for p in range(4):
            if p == 0:
                A(f"buffer_load_dwordx2 {v(HR,2)}, v14, s[{R_C}:{R_C+3}], 0 offen")
            else:
                A(f"buffer_load_dwordx2 {v(HR+6*p,2)}, v13, s[{R_C}:{R_C+3}], 0 offen offset:{1024*p - 8}")
            A(f"buffer_load_dwordx4 {v(HR+6*p+2,4)}, v13, s[{R_C}:{R_C+3}], 0 offen offset:{1024*p}")
    def h_build():
        A(f"""
        v_cmp_eq_u32 vcc, 0, v0
        v_lshlrev_b32 v6, 4, v0
        v_add_u32 v6, s57, v6
        v_add_u32 v6, 32, v6
        v_cndmask_b32 v{HR}, v{HR}, 0, vcc
        v_cndmask_b32 v{HR+1}, v{HR+1}, 0, vcc
        """)
        for p in range(4):
            b = HR + 6*p; P1, P0, D = b, b + 1, b + 2
            T1, T2, T3 = 16 + 12*(p % 2), 20 + 12*(p % 2), 24 + 12*(p % 2)
            A(f"""
            ds_write_b128 v6, {v(D,4)} offset:{0*COPY + 1024*p}
            v_alignbit_b32 v{T1}, v{D}, v{P0}, 16
            v_alignbit_b32 v{T1+1}, v{D+1}, v{D}, 16
            v_alignbit_b32 v{T1+2}, v{D+2}, v{D+1}, 16
            v_alignbit_b32 v{T1+3}, v{D+3}, v{D+2}, 16
            v_mov_b32 v{T2}, v{P0}
            v_mov_b32 v{T2+1}, v{D}
            v_mov_b32 v{T2+2}, v{D+1}
            v_mov_b32 v{T2+3}, v{D+2}
            v_alignbit_b32 v{T3}, v{P0}, v{P1}, 16
            v_mov_b32 v{T3+1}, v{T1}
            v_mov_b32 v{T3+2}, v{T1+1}
            v_mov_b32 v{T3+3}, v{T1+2}
            ds_write_b128 v6, {v(T1,4)} offset:{1*COPY + 1024*p}
            ds_write_b128 v6, {v(T2,4)} offset:{2*COPY + 1024*p}
            ds_write_b128 v6, {v(T3,4)} offset:{3*COPY + 1024*p}
            """)
    L_bnog = A.newlabel("bnog"); L_bnt = A.newlabel("bnt"); L_sync = A.newlabel("sync"); L_bntn = A.newlabel("bntn")
    A(f"""
    s_cmp_ge_u32 s{S_CB}, 15
    s_cbranch_scc1 {L_bnog}
    """)
    L_chonly = A.newlabel("chonly")
    b_setup(L_bnt, L_chonly)
    if E("BISS", 0): lds_wait(A, C_ISS, 2, 3, val=4, sleep=1)
    if E("NOBW", 0):
        lds_set(A, C_INIT, 2, 3)
        for _ in range(10): A("s_barrier")
        A(f"s_branch {L_exit}")
    MODE = E("BMODE", 3)
    if MODE == 3:
        hl3 = E("HL3", 0)
        b_loads()
        if not hl3: h_loads()
        if EARLY: A("s_barrier")
        k = E("BWAIT", 4)
        for _ in range(k): A("s_barrier")
        A(f"s_waitcnt vmcnt({0 if hl3 else 8})")
        stp(A, "blok")
        if E("BPRIO", 0): A(f"s_setprio {E('BPRIO', 0)}")
        nsp = E("BSPLIT", 2)
        for q in range(4):
            b_compute(q)
            if (nsp == 2 and q == 1) or (nsp == 4 and q < 3): A("s_barrier")
        used = 1 if nsp == 2 else (3 if nsp == 4 else 0)
        A("s_setprio 0")
        init_load()
        g = E("BGAP", 2)
        for _ in range(g): A("s_barrier")
        u_publish(0)
        stp(A, "upub")
        if hl3: h_loads()
        rest = 10 - k - used - g
        uf = E("UFAT", 2)
        for i in range(rest):
            A("s_barrier")
            if i + 1 == uf and uf < rest:
                u_flag()
                A("s_mov_b32 s65, 0")
    elif MODE == 2:
        if EARLY: A("s_barrier")
        for _ in range(E("BAT", 1)): A("s_barrier")
        b_loads()
        h_loads()
        for _ in range(10 - E("BAT", 1)): A("s_barrier")
        A("s_waitcnt vmcnt(8)")
        stp(A, "blok")
        for q in range(4): b_compute(q)
        init_load()
        u_publish(0)
        stp(A, "upub")
    else:
        hl = E("HLATE", 1)
        b_loads()
        if not hl: h_loads()
        A(f"s_waitcnt vmcnt({0 if hl else 8})")
        stp(A, "blok")
        for q in range(4): b_compute(q)
        init_load()
        npub = E("NPUB", 2)
        for _ in range(npub): A("s_barrier")
        u_publish(0)
        stp(A, "upub")
        if hl:
            for _ in range(hl): A("s_barrier")
            h_loads()
        for _ in range(10 - npub - hl): A("s_barrier")
    stp(A, "b9")
    A(f"s_branch {L_conv}")
    A.label(L_bnt)
    A(f"s_branch {L_exit}")
    A.label(L_chonly)
    nh = E("HLC", 0)
    if EARLY and nh: A("s_barrier")
    for _ in range(nh): A("s_barrier")
    h_loads()
    if EARLY and not nh: A("s_barrier")
    for _ in range(10 - nh): A("s_barrier")
    A(f"s_branch {L_conv}")
    A.label(L_bnog)
    if E("NOBW", 0):
        lds_set(A, C_INIT, 2, 3)
        A(f"s_branch {L_exit}")
    b_setup(L_exit, L_exit)
    b_loads()
    h_loads()
    if EARLY: A("s_barrier")
    A("s_waitcnt vmcnt(8)")
    for q in range(4): b_compute(q)
    init_load()
    u_publish(0)
    A(f"s_branch {L_conv}")
    A.label("L_nogtask")
    A(f"""
    s_sub_u32 s56, s{S_J}, 28
    s_lshl_b32 s56, s56, 2
    s_lshr_b32 s57, s{S_XCD}, 1
    s_add_u32 s56, s56, s57
    s_lshl_b32 s56, s56, 3
    s_add_u32 s56, s56, s{S_WAVE}
    s_add_u32 s56, s56, 512
    """)
    b_addr()
    b_loads()
    A("s_waitcnt vmcnt(0)")
    for q in range(4): b_compute(q)
    init_load()
    u_publish(0)
    u_flag()
    A("s_branch L_nogdone")

    A.label(L_conv)
    u_flag()
    A(f"""
    s_lshr_b32 s59, s56, 1
    s_lshl_b32 s59, s59, 2
    s_load_dword s60, s[{P_SD}:{P_SD+1}], s59
    v_mov_b32 v12, 0
    v_mov_b32 v13, 0
    v_mov_b32 v14, 0
    v_mov_b32 v15, 0
    v_lshlrev_b32 v6, 3, v0
    v_add_u32 v6, s57, v6
    v_add_u32 v6, {4*COPY}, v6
    v_cmp_gt_u32 vcc, 60, v0
    s_and_saveexec_b64 s[54:55], vcc
    ds_write_b64 v6, v[12:13]
    s_mov_b64 exec, s[54:55]
    v_and_b32 v6, 1, v0
    v_lshlrev_b32 v6, 4, v6
    v_lshrrev_b32 v7, 1, v0
    v_mul_u32_u24 v7, {COPY}, v7
    v_add3_u32 v6, v6, v7, s57
    v_cmp_gt_u32 vcc, 8, v0
    s_and_saveexec_b64 s[54:55], vcc
    ds_write_b128 v6, v[12:15]
    s_mov_b64 exec, s[54:55]
    s_waitcnt vmcnt(0)
    """)
    h_build()
    VGB = [160, 161, 162]; WOVB = 163
    if E("SRV", 1): gather_setup(VGB, 40, 41, 42, WOVB)
    A(f"""
    s_lshr_b32 s54, s56, 6
    s_and_b32 s55, s56, 63
    s_and_b32 s61, s55, 7
    s_lshr_b32 s55, s55, 3
    s_lshl_b32 s61, s61, 9
    s_lshl_b32 s55, s55, 6
    s_add_u32 s61, s61, s55
    s_lshl_b32 s54, s54, 12
    s_add_u32 s61, s61, s54
    s_add_u32 s61, s61, {WS_U}
    v_lshrrev_b32 v8, 2, v0
    v_mul_u32_u24 v8, 40960, v8
    v_and_b32 v9, 3, v0
    v_lshl_add_u32 v8, v9, 4, v8
    """)
    L_uw = A.newlabel("uw"); L_ud = A.newlabel("ud")
    A(f"s_cmp_lg_u32 s{S_WAVE}, 8\ns_cbranch_scc1 {L_uw}")
    if E("UGATE", 0) == 1: lds_wait(A, C_GO, 2, 3, sleep=4)
    if E("UGATE", 0) == 2: lds_wait(A, C_QKV, 2, 3, val=4, sleep=4)
    A(f"""
    v_lshlrev_b32 v2, 7, v0
    v_add_u32 v2, {SYNC + 128*(L_U + 40)}, v2
    v_cmp_gt_u32 vcc, 8, v0
    v_mov_b32 v3, 1
    s_nop 0
    v_cndmask_b32 v4, 0, v3, vcc
    """)
    poll(A, 2, 4, 3, sleep=E("PS_U", 6))
    lds_set(A, C_UOK, 2, 3)
    A(f"s_branch {L_ud}")
    A.label(L_uw)
    lds_wait(A, C_UOK, 2, 3)
    A("s_waitcnt vmcnt(0)")
    A.label(L_ud)
    stp(A, "uok")
    for p in range(4):
        A(f"""
        s_add_u32 m0, s57, {4*COPY + 480 + p*1024}
        s_add_u32 s54, s61, {p*16*40960}
        buffer_load_dwordx4 v8, s[{R_WS}:{R_WS+3}], s54 offen{SC} lds""")
    A(f"""
    v_lshrrev_b32 v6, 4, v0             ; kg
    v_bfe_u32 v7, v0, 2, 2              ; r
    v_and_b32 v8, 3, v0                 ; c
    v_mul_u32_u24 v7, {COPY}, v7
    v_lshlrev_b32 v8, 3, v8
    v_lshlrev_b32 v9, 4, v6
    v_sub_u32 v8, v8, v9
    v_add_u32 v8, 56, v8
    v_add3_u32 v4, v7, v8, s57          ; vA
    v_and_b32 v7, 15, v0
    v_lshlrev_b32 v7, 5, v7
    v_lshl_add_u32 v7, v6, 4, v7
    v_add_u32 v7, {4*COPY}, v7
    v_add_u32 v5, s57, v7               ; vB
    s_waitcnt vmcnt(0) lgkmcnt(0)
    s_and_b32 s54, s56, 1
    s_lshl_b32 s54, s54, 4
    s_lshr_b32 s60, s60, s54
    s_lshl_b32 s60, s60, 16             ; D as f32
    """)
    stp(A, "conv0")
    Y = 32; AT = 64; BT = 128
    def a_reads(rho, p):
        mu = rho + 8 * p
        return [f"ds_read_b64_tr_b16 {v(AT+4*p,2)}, v4 offset:{64*mu + 8}",
                f"ds_read_b64_tr_b16 {v(AT+4*p+2,2)}, v4 offset:{64*mu}"]
    def b_read(rho, q): return f"ds_read_b128 {v(BT+4*q,4)}, v5 offset:{64*(8*q - rho + 7)}"
    A(f"s_setprio {E('CPRIO', 0)}")
    if E("CPACE", 0):
        for q in range(7, -1, -1): A(b_read(0, q))
        for rho in range(8):
            for p in range(8):
                for r in a_reads(rho, p): A(r)
                A("s_waitcnt lgkmcnt(0)")
                for q in range(7 - p, -1, -1):
                    i = p + q
                    cc = "0" if (rho == 0 and p == 0) else v(Y+4*i, 4)
                    A(f"v_mfma_f32_16x16x32_bf16 {v(Y+4*i,4)}, {v(AT+4*p,4)}, {v(BT+4*q,4)}, {cc}")
                if rho < 7: A(b_read(rho + 1, 7 - p))
            if rho == 3:
                stp(A, "convh")
                A("s_barrier")
    else:
        ATS = [64, 96]
        def a_reads2(rho, p, sid):
            mu = rho + 8 * p
            return [f"ds_read_b64_tr_b16 {v(ATS[sid]+4*p,2)}, v4 offset:{64*mu + 8}",
                    f"ds_read_b64_tr_b16 {v(ATS[sid]+4*p+2,2)}, v4 offset:{64*mu}"]
        for q in range(7, -1, -1): A(b_read(0, q))
        A("s_waitcnt lgkmcnt(4)")
        for p in range(8):
            for r in a_reads2(0, p, 0): A(r)
            if p == 3: A("s_waitcnt lgkmcnt(4)")
        for rho in range(8):
            sid = rho % 2
            nxtA = [x for p in range(8) for x in a_reads2(rho + 1, p, 1 - sid)] if rho < 7 else []
            A("s_waitcnt lgkmcnt(0)" if rho == 0 else "s_waitcnt lgkmcnt(4)")
            for p in range(8):
                for q in range(7 - p, -1, -1):
                    i = p + q
                    cc = "0" if (rho == 0 and p == 0) else v(Y+4*i, 4)
                    if p == 0 and rho > 0 and q <= 3:
                        A(f"s_waitcnt lgkmcnt({7 if rho < 7 else q})")
                    A(f"v_mfma_f32_16x16x32_bf16 {v(Y+4*i,4)}, {v(ATS[sid]+4*p,4)}, {v(BT+4*q,4)}, {cc}")
                    if nxtA: A(nxtA.pop(0))
                if rho < 7: A(b_read(rho + 1, 7 - p))
            if rho == E("CBAR", -1):
                stp(A, "convh")
                A("s_barrier")
    stp(A, "conv1")
    def srv_kv(chunk):
        slot = chunk % 2
        for r in range(8):
            for part in range(3):
                A(f"""
                s_add_u32 m0, s49, {slot*CHUNK + r*REC + part*1024}
                s_add_u32 s51, s50, {(chunk*16 + r)*TB}
                buffer_load_dwordx4 v{VGB[part]}, s[{R_WS}:{R_WS+3}], s51 offen{SC} lds""")
    if E("SRV", 1):
        A(f"""
        s_sub_u32 s54, s{S_WAVE}, 8            ; bw
        s_mul_i32 s49, s54, {8*REC}
        s_mul_i32 s50, s54, {8*TB}
        """)
    if E("SRV", 1) and E("SRV1", 1):
        Lsk1 = A.newlabel("srv1")
        A(f"s_cmp_eq_u32 s{S_WAVE}, 10\ns_cbranch_scc1 {Lsk1}")
        lds_wait(A, C_GO, 2, 3, sleep=2)
        srv_kv(1)
        A.label(Lsk1)
    A(f"""
    v_and_b32 v7, 15, v0
    v_lshrrev_b32 v6, 4, v0
    v_lshlrev_b32 v7, 5, v7
    v_lshl_add_u32 v7, v6, 3, v7        ; 32n + 8g
    v_add_u32 v8, s57, v7
    v_add_u32 v8, {4*COPY + 480}, v8
    s_add_u32 s61, s58, {WS_Z}
    """)
    for i in range(8): A(f"ds_read_b64 {v(64+2*i,2)}, v8 offset:{512*i}")
    A("s_waitcnt lgkmcnt(0)\ns_nop 3")
    for i in range(8):
        u0, u1 = 64 + 2*i, 64 + 2*i + 1
        y = Y + 4*i
        A(f"""
        v_lshlrev_b32 v96, 16, v{u0}
        v_and_b32 v97, 0xffff0000, v{u0}
        v_lshlrev_b32 v98, 16, v{u1}
        v_and_b32 v99, 0xffff0000, v{u1}
        v_fma_f32 v{y}, v96, s60, v{y}
        v_fma_f32 v{y+1}, v97, s60, v{y+1}
        v_fma_f32 v{y+2}, v98, s60, v{y+2}
        v_fma_f32 v{y+3}, v99, s60, v{y+3}
        v_cvt_pk_bf16_f32 v{y}, v{y}, v{y+1}
        v_cvt_pk_bf16_f32 v{y+1}, v{y+2}, v{y+3}
        buffer_store_dwordx2 {v(y,2)}, v7, s[{R_WS}:{R_WS+3}], s61 offen offset:{512*i}{SC}""")
    def z_publish():
        A("s_waitcnt vmcnt(0)")
        stp(A, "zdrained")
        L_zs = A.newlabel("zs")
        A("s_cmp_lt_u32 s2, 128\ns_cselect_b32 s64, 3, 2")
        lds_arrive_last(A, C_Z, "s64", L_zs, 2, 3)
        A(f"s_and_b32 s65, s2, 7\ns_add_u32 s65, s65, {L_Z}")
        global_arrive(A, "s65", 32, 2, 3)
        A.label(L_zs)
    if not E("SRV", 1):
        A("s_barrier")
        z_publish()
    else:
        L_srv = A.newlabel("srv")
        A(f"s_cmp_lg_u32 s{S_WAVE}, 10\ns_cbranch_scc1 {L_srv}")
        A("s_barrier")
        z_publish()
        prof_dump(A, 0, wsptr=P_WS)
        A("s_endpgm")
        A.label(L_srv)
        A(f"""
        s_sub_u32 s56, s{S_WAVE}, 8            ; bw
        s_mul_i32 s53, s56, 5120
        s_mul_i32 s62, s56, 40960
        """)
        if E("SRV1", 1): A("s_waitcnt vmcnt(8)")
        A("s_barrier")
        z_publish()
        def srv_wo(region):
            n = 0
            groups = range(0, 12, 2) if region == "A" else range(0, 10, 2)
            for a2 in groups:
                for b in range(5):
                    lab = None
                    if region == "A" and a2 == 10:
                        lab = A.newlabel("wsk"); A(f"s_cmp_lg_u32 s56, 0\ns_cbranch_scc1 {lab}")
                    if region == "B" and a2 == 8 and b >= 2:
                        lab = A.newlabel("wsk"); A(f"s_cmp_lg_u32 s56, 0\ns_cbranch_scc1 {lab}")
                    ldso = (WO_A if region == "A" else 0) + a2*5120 + b*1024
                    go = a2*40960 + (0 if region == "A" else WO_BROW*1280)
                    A(f"""
                    s_add_u32 m0, s53, {ldso}
                    s_add_u32 s51, s62, {go}
                    buffer_load_dwordx4 v{WOVB+b}, s[{R_A}:{R_A+3}], s51 offen lds""")
                    if lab: A.label(lab)
                    else: n += 1
            return n
        srv_kv(2)
        n = srv_wo("A")
        A(f"s_waitcnt vmcnt({n})\ns_barrier")
        srv_kv(3)
        A("s_waitcnt vmcnt(0)\ns_barrier")
        srv_wo("B")
        A("s_waitcnt vmcnt(0)")
    prof_dump(A, 0, wsptr=P_WS)
    A.label(L_exit)
    A("s_endpgm")

def build():
    hdr = open("cdna_kernels/" + NAME + ".s.ref").read().split("; Override launch geometry")[0]
    A = Asm(); gen(A)
    out = hdr + f"; @launch grid=(256,1,1) block=(704,1,1) lds={LDS}\n"
    out += '.amdgcn_target "amdgcn-amd-amdhsa--gfx950"\n.text\n' + A.text()
    out += f""".section .rodata,"a"
.p2align 6
.amdhsa_kernel {KNAME}
  .amdhsa_next_free_vgpr {VGPRS}
  .amdhsa_next_free_sgpr 102
  .amdhsa_accum_offset {VGPRS}
  .amdhsa_group_segment_fixed_size 0
  .amdhsa_kernarg_size 96
  .amdhsa_user_sgpr_count 2
  .amdhsa_user_sgpr_kernarg_segment_ptr 1
  .amdhsa_system_sgpr_workgroup_id_x 1
  .amdhsa_float_denorm_mode_32 3
.end_amdhsa_kernel
"""
    return out

if __name__ == "__main__":
    open(sys.argv[1], "w").write(build())
```

```python
import os, sys, struct, math
from asmlib import *
from slots import ASSIGN, HEADWORD

NAME = "concat_heads__softmax_full_mha__ssm_conv_h3__prompt"
KNAME = NAME + "_kernel"
E = lambda k, d=0: int(os.environ.get(k, d))

TB = 8320
SEC = 64 * TB
WS_U  = 0x800000
WS_Z  = 0xB00000
WS_O  = 0xE00000
SYNC  = 0x1200000
WS_BYTES = 0x1214000
REC = 3072
CHUNK = 16 * REC
COPY = 4160
CONV_SZ = 4 * COPY + 4608
CONV_BASE = 98304
CNT = CONV_BASE + 3 * CONV_SZ
LDS = CNT + 256
WO_A = 98304
WO_BROW = 340
RED = CHUNK
VGPRS = 168
POLL_MAX = 40000
SC = os.environ.get("SCF", " sc1")
L_U, L_Z, L_O, L_QF = 0, 8, 24, 48
FLG = 8
N_LINES = 288
ZERO_WG = 225
C_QKV, C_U, C_Z, C_O, C_UOK, C_INIT, C_GO, C_KV, C_ISS = 0, 4, 8, 12, 16, 20, 24, 28, 32

def f32bits(x): return struct.unpack("<I", struct.pack("<f", x))[0]
QSCALE = f32bits(20 ** -0.5 * math.log2(math.e))

P_X, P_W, P_WO, P_BQ, P_BK, P_BV, P_SH, P_SK, P_SD, P_OUT, P_DBG, P_WS = 4, 6, 8, 10, 12, 14, 16, 18, 20, 22, 24, 26
R_WS = 28
R_A, R_B, R_C = 32, 36, 44
S_WAVE, S_XCD, S_J, S_RB, S_CB = 40, 41, 42, 43, 48
S_CBK = 48

STAMPS = dict(x.split(":") for x in os.environ.get("STAMPS", "b0:1,gend:2,uok:2,att0:4,att1:5,p3a:6").split(","))
def stp(A, name):
    if name in STAMPS: stamp(A, int(STAMPS[name]))

def poll(A, addr_v, thr_v, tmp, sleep=4, base=P_WS):
    L = A.newlabel("poll"); D = A.newlabel("polld")
    A(f"""
    v_cmp_ne_u32 vcc, 0, v{thr_v}
    s_mov_b32 s66, {POLL_MAX}
    s_nop 1
    s_mov_b64 exec, vcc
    {L}:
    global_load_dword v{tmp}, v{addr_v}, s[{base}:{base+1}] sc1
    s_waitcnt vmcnt(0)
    v_cmp_ge_u32 vcc, v{tmp}, v{thr_v}
    s_nop 3
    s_cmp_eq_u64 vcc, exec
    s_cbranch_scc1 {D}
    s_sleep {sleep}
    s_sub_u32 s66, s66, 1
    s_cmp_lg_u32 s66, 0
    s_cbranch_scc1 {L}
    {D}:
    s_mov_b64 exec, -1
    """)
def poll_flags(A, line0, nlines, t_addr, t_thr, tmp, sleep=4):
    A(f"""
    v_lshlrev_b32 v{t_addr}, 7, v0
    v_add_u32 v{t_addr}, {SYNC + 128*(FLG + line0)}, v{t_addr}
    v_cmp_gt_u32 vcc, {nlines}, v0
    v_mov_b32 v{tmp}, 1
    s_nop 0
    v_cndmask_b32 v{t_thr}, 0, v{tmp}, vcc
    """)
    poll(A, t_addr, t_thr, tmp, sleep)
def lds_set(A, off, t0, t1):
    A(f"""
    v_mov_b32 v{t0}, {CNT + off}
    v_mov_b32 v{t1}, 1
    ds_write_b32 v{t0}, v{t1}
    """)
def lds_add(A, off, t0, t1):
    A(f"""
    v_mov_b32 v{t0}, {CNT + off}
    v_mov_b32 v{t1}, 1
    s_mov_b64 exec, 1
    ds_add_u32 v{t0}, v{t1}
    s_mov_b64 exec, -1
    """)
def lds_wait(A, off, t0, t1, val=1, sleep=1):
    L = A.newlabel("lw"); D = A.newlabel("lwd")
    A(f"""
    v_mov_b32 v{t0}, {CNT + off}
    s_mov_b32 s66, {POLL_MAX*16}
    {L}:
    ds_read_b32 v{t1}, v{t0}
    s_waitcnt lgkmcnt(0)
    v_readfirstlane_b32 s67, v{t1}
    s_nop 3
    s_cmp_ge_u32 s67, {val}
    s_cbranch_scc1 {D}
    s_sleep {sleep}
    s_sub_u32 s66, s66, 1
    s_cmp_lg_u32 s66, 0
    s_cbranch_scc1 {L}
    {D}:
    """)
def lds_arrive_last(A, off, n_s, skip_lab, t0, t1):
    A(f"""
    v_mov_b32 v{t0}, {CNT + off}
    v_mov_b32 v{t1}, 1
    s_mov_b64 exec, 1
    ds_add_rtn_u32 v{t1}, v{t0}, v{t1}
    s_waitcnt lgkmcnt(0)
    s_mov_b64 exec, -1
    v_readfirstlane_b32 s66, v{t1}
    s_nop 3
    s_add_u32 s66, s66, 1
    s_cmp_lg_u32 s66, {n_s}
    s_cbranch_scc1 {skip_lab}
    """)
def global_arrive(A, line_s, total, t0, t1):
    L = A.newlabel("ga")
    A(f"""
    s_lshl_b32 s66, {line_s}, 7
    s_add_u32 s66, s66, {SYNC}
    v_mov_b32 v{t0}, s66
    v_mov_b32 v{t1}, 1
    s_mov_b64 exec, 1
    global_atomic_add v{t1}, v{t0}, v{t1}, s[{P_WS}:{P_WS+1}] sc0 sc1
    s_waitcnt vmcnt(0)
    s_mov_b64 exec, -1
    v_readfirstlane_b32 s66, v{t1}
    s_nop 3
    s_add_u32 s66, s66, 1
    s_cmp_lg_u32 s66, {total}
    s_cbranch_scc1 {L}
    v_add_u32 v{t0}, {128*FLG}, v{t0}
    v_mov_b32 v{t1}, 1
    s_mov_b64 exec, 1
    global_store_dword v{t0}, v{t1}, s[{P_WS}:{P_WS+1}] sc1
    s_mov_b64 exec, -1
    {L}:
    """)

def flag_store(A, line_s, t0, t1):
    A(f"""
    s_lshl_b32 s66, {line_s}, 7
    s_add_u32 s66, s66, {SYNC}
    v_mov_b32 v{t0}, s66
    v_mov_b32 v{t1}, 1
    s_mov_b64 exec, 1
    global_store_dword v{t0}, v{t1}, s[{P_WS}:{P_WS+1}] sc1
    s_mov_b64 exec, -1
    """)
def poll2(A, a0, a1, n1, t0, t1, sleep):
    L = A.newlabel("poll2"); D = A.newlabel("poll2d")
    A(f"""
    s_mov_b32 s66, {POLL_MAX}
    {L}:
    global_load_dword v{t0}, v{a0}, s[{P_WS}:{P_WS+1}] sc1
    global_load_dword v{t1}, v{a1}, s[{P_WS}:{P_WS+1}] sc1
    s_waitcnt vmcnt(0)
    v_min_u32 v{t0}, v{t0}, v{t1}
    v_cmp_le_u32 vcc, 1, v{t0}
    s_nop 3
    s_cmp_eq_u64 vcc, -1
    s_cbranch_scc1 {D}
    s_sleep {sleep}
    s_sub_u32 s66, s66, 1
    s_cmp_lg_u32 s66, 0
    s_cbranch_scc1 {L}
    {D}:
    """)

def gen(A):
    A(f".globl {KNAME}")
    A(".p2align 8")
    A(f".type {KNAME},@function")
    A.label(KNAME)
    L_exit, L_nog, L_prod, L_bw, L_heads, L_conv = "L_exit", "L_nog", "L_prod", "L_bw", "L_heads", "L_conv"
    A(f"""
    s_cmp_ge_u32 s2, 256
    s_cbranch_scc1 {L_exit}
    s_load_dwordx16 s[4:19], s[0:1], 0
    s_load_dwordx8 s[20:27], s[0:1], 64
    v_lshrrev_b32 v1, 6, v0
    v_and_b32 v0, 63, v0
    v_readfirstlane_b32 s{S_WAVE}, v1
    s_and_b32 s{S_XCD}, s2, 7
    s_lshr_b32 s{S_J}, s2, 3
    s_lshr_b32 s{S_RB}, s{S_XCD}, 1
    s_lshl_b32 s{S_RB}, s{S_RB}, 2
    s_and_b32 s49, s{S_J}, 3
    s_add_u32 s{S_RB}, s{S_RB}, s49        ; rb
    s_and_b32 s{S_CB}, s{S_XCD}, 1
    s_lshl_b32 s{S_CB}, s{S_CB}, 3
    s_lshr_b32 s49, s{S_J}, 2
    s_add_u32 s{S_CB}, s{S_CB}, s49        ; cb
    s_cmp_lg_u32 s{S_WAVE}, 0
    s_cbranch_scc1 L_noldsinit
    v_mov_b32 v2, {CNT}
    v_mov_b32 v4, 0
    v_mov_b32 v5, 0
    v_mov_b32 v6, 0
    v_mov_b32 v7, 0
    ds_write_b128 v2, v[4:7]
    ds_write_b128 v2, v[4:7] offset:16
    ds_write_b128 v2, v[4:7] offset:32
    L_noldsinit:
    s_waitcnt lgkmcnt(0)
    """)
    EARLY = E("EARLY", 0)
    if not EARLY: A("s_barrier")
    srd(A, R_WS, P_WS, WS_BYTES)
    prof_init(A)
    A(f"""
    s_cmp_ge_u32 s{S_WAVE}, 8
    s_cbranch_scc1 {L_bw}
    s_cmp_ge_u32 s{S_CB}, 15
    s_cbranch_scc1 {L_nog}
    s_cmp_ge_u32 s{S_WAVE}, 4
    s_cbranch_scc1 {L_prod}
    """)
    slot_of = lambda st: (st + 2) % 3
    if EARLY: A("s_barrier")

    A(f"""
    s_lshr_b32 s56, s{S_WAVE}, 1       ; wr
    s_and_b32 s57, s{S_WAVE}, 1        ; wc
    v_and_b32 v2, 31, v0           ; n
    v_lshrrev_b32 v3, 5, v0        ; h
    v_bfe_u32 v4, v0, 1, 3         ; (l>>1)&7
    s_lshl_b32 s54, s56, 6
    v_add_u32 v5, s54, v2
    v_lshlrev_b32 v5, 7, v5        ; token_local*128
    """)
    for ks in range(4):
        A(f"""
        v_add_u32 v6, {2*ks}, v3
        v_xor_b32 v6, v6, v4
        v_lshl_add_u32 v{16+ks}, v6, 4, v5
        v_add_u32 v{20+ks}, 0x10000, v{16+ks}""")
    def w_addr():
        A(f"""
        v_lshrrev_b32 v2, 4, v0        ; g
        v_bfe_u32 v3, v0, 2, 2         ; r
        v_and_b32 v4, 3, v0            ; c4
        v_lshrrev_b32 v5, 1, v2
        v_lshl_add_u32 v5, v5, 3, v3   ; k_local
        v_lshlrev_b32 v5, 8, v5
        v_add_u32 v5, 16384, v5
        v_and_b32 v6, 1, v2
        v_lshl_add_u32 v6, v6, 2, v4   ; rg = 4*(g&1) + c4
        v_mul_u32_u24 v6, 5, v6
        v_lshlrev_b32 v7, 2, v3        ; 4r
        """)
        for ft in range(2):
            A(f"""
            v_lshrrev_b64 v[8:9], v6, s[{60+2*ft}:{61+2*ft}]
            v_and_b32 v8, 31, v8
            v_lshrrev_b32 v9, 1, v8
            v_xor_b32 v9, v9, v7
            v_and_b32 v8, 1, v8
            v_lshlrev_b32 v8, 3, v8
            v_lshl_add_u32 v8, v9, 4, v8
            v_add_u32 v{24+ft}, v5, v8
            v_add_u32 v{26+ft}, 0x10000, v{24+ft}""")
    FR = [dict(X=[32, 36], W=[40, 44]), dict(X=[48, 52], W=[56, 60]), dict(X=[132, 136], W=[140, 144])]
    ACC = lambda ft, tt: 64 + 16 * (2 * ft + tt)
    def reads(st, ks, setid):
        slot = slot_of(st); hi = slot == 2
        so = 0 if hi else slot * 32768
        xa = (20 if hi else 16) + ks; wa = (26 if hi else 24); F = FR[setid]
        return [f"ds_read_b128 {v(F['X'][0],4)}, v{xa} offset:{so}",
                f"ds_read_b64_tr_b16 {v(F['W'][0],2)}, v{wa} offset:{so + ks*4096}",
                f"ds_read_b64_tr_b16 {v(F['W'][0]+2,2)}, v{wa} offset:{so + ks*4096 + 1024}",
                f"ds_read_b128 {v(F['X'][1],4)}, v{xa} offset:{so + 4096}",
                f"ds_read_b64_tr_b16 {v(F['W'][1],2)}, v{wa+1} offset:{so + ks*4096}",
                f"ds_read_b64_tr_b16 {v(F['W'][1]+2,2)}, v{wa+1} offset:{so + ks*4096 + 1024}"]
    def mfmas(setid, first, vmode):
        F = FR[setid]; m = []
        for (ft, tt) in [(0, 0), (0, 1), (1, 0), (1, 1)]:
            d = ACC(ft, tt); c = "0" if first else v(d, 16)
            a_, b_ = (F['X'][tt], F['W'][ft]) if vmode else (F['W'][ft], F['X'][tt])
            m.append(f"v_mfma_f32_32x32x16_bf16 {v(d,16)}, {v(a_,4)}, {v(b_,4)}, {c}")
        return m
    def main_loop(vmode):
        A("s_barrier")
        stp(A, "b0")
        if not E("G3", 1):
            for r in reads(0, 0, 0): A(r)
            n = 0
            for st in range(10):
                for ks in range(4):
                    setid = n % 2
                    m = mfmas(setid, n == 0, vmode)
                    A("s_waitcnt lgkmcnt(0)")
                    if ks == 3 and st < 9:
                        A("s_barrier")
                        stp(A, f"gb{st+1}")
                    A(m[0])
                    if ks < 3:
                        for r in reads(st, ks + 1, 1 - setid): A(r)
                    elif st < 9:
                        for r in reads(st + 1, 0, 1 - setid): A(r)
                    A(m[1]); A(m[2]); A(m[3])
                    n += 1
        else:
            for r in reads(0, 0, 0): A(r)
            for r in reads(0, 1, 1): A(r)
            for n in range(40):
                st, ks = divmod(n, 4)
                m = mfmas(n % 3, n == 0, vmode)
                if ks == 2 and st < 9:
                    A("s_waitcnt lgkmcnt(0)\ns_barrier")
                    stp(A, f"gb{st+1}")
                else:
                    A(f"s_waitcnt lgkmcnt({6 if n + 1 < 40 else 0})")
                A(m[0])
                if n + 2 < 40:
                    st2, ks2 = divmod(n + 2, 4)
                    for r in reads(st2, ks2, (n + 2) % 3): A(r)
                A(m[1]); A(m[2]); A(m[3])
        stp(A, "gend")
        A("s_nop 15")
    L_vpath = A.newlabel("vpath"); L_gsig = A.newlabel("gsig"); L_vdone = A.newlabel("vdone")
    A(f"""
    s_cmp_ge_u32 s{S_CB}, 10
    s_cbranch_scc1 {L_vpath}
    s_cmp_ge_u32 s{S_CB}, 5
    s_cselect_b32 s55, 5, 0
    s_sub_u32 s55, s{S_CB}, s55        ; cb'
    s_lshl_b32 s55, s55, 1
    s_add_u32 s55, s55, s57
    """)
    for var in range(10):
        cbp, wc = divmod(var, 2); T = []
        for ft in range(2):
            tab = [0]*8
            for si, it in enumerate(ASSIGN[cbp][2*wc + ft]):
                ap, h = divmod(si, 2)
                tab[4*ap + h] = it[1]; tab[4*ap + 2 + h] = it[2]
            T.append(sum(g << (5*i) for i, g in enumerate(tab)))
        nxt = A.newlabel("var")
        A(f"""
        s_cmp_lg_u32 s55, {var}
        s_cbranch_scc1 {nxt}
        s_mov_b32 s60, {hex(T[0] & 0xffffffff)}
        s_mov_b32 s61, {hex(T[0] >> 32)}
        s_mov_b32 s62, {hex(T[1] & 0xffffffff)}
        s_mov_b32 s63, {hex(T[1] >> 32)}
        s_branch {L_vdone}
        {nxt}:""")
    A(f"""
    s_mov_b64 s[60:61], 0
    s_mov_b64 s[62:63], 0
    {L_vdone}:
    """)
    w_addr()
    A(f"""
    s_mov_b32 s58, {hex(QSCALE)}
    s_cmp_ge_u32 s{S_CB}, 5
    s_cmov_b32 s58, 0x3f800000
    s_mov_b32 s59, s58
    v_lshlrev_b32 v128, 4, v0
    s_lshl_b32 s54, s{S_RB}, 2
    s_lshl_b32 s55, s56, 1
    s_add_u32 s54, s54, s55
    s_lshl_b32 s55, s{S_CB}, 6
    s_add_u32 s54, s54, s55
    s_mul_i32 s54, s54, {TB}
    s_lshl_b32 s55, s57, 12        ; wc*4096
    s_add_u32 s64, s54, s55
    s_add_u32 s65, s64, {TB}
    """)
    main_loop(False)
    for ft in range(2):
        for tt in range(2):
            d = ACC(ft, tt)
            for i in range(0, 16, 2):
                A(f"v_pk_mul_f32 {v(d+i,2)}, {v(d+i,2)}, s[58:59]")
            for ap in range(2):
                for i in range(4):
                    A(f"v_cvt_pk_bf16_f32 v{d+8*ap+i}, v{d+8*ap+2*i}, v{d+8*ap+2*i+1}")
                A(f"buffer_store_dwordx4 {v(d+8*ap,4)}, v128, s[{R_WS}:{R_WS+3}], s{64+tt} offen offset:{ft*2048 + ap*1024}{SC}")
    A(f"s_branch {L_gsig}")
    A.label(L_vpath)
    nat = sum(i << (5*i) for i in range(8)); rep = sum(1 << (5*i) for i in range(8))
    A(f"""
    s_lshl_b32 s54, s57, 4
    s_mul_i32 s55, s54, {hex(rep & 0xffffffff)}
    s_mul_hi_u32 s61, s54, {hex(rep & 0xffffffff)}
    s_mul_i32 s66, s54, {hex(rep >> 32)}
    s_add_u32 s61, s61, s66
    s_add_u32 s60, s55, {hex(nat & 0xffffffff)}
    s_addc_u32 s61, s61, {hex(nat >> 32)}
    s_add_u32 s62, s60, {hex((8*rep) & 0xffffffff)}
    s_addc_u32 s63, s61, {hex((8*rep) >> 32)}
    """)
    w_addr()
    A(f"""
    v_lshlrev_b32 v128, 4, v0
    s_lshl_b32 s54, s{S_RB}, 2
    s_lshl_b32 s55, s{S_CB}, 6
    s_add_u32 s54, s54, s55
    s_add_u32 s55, s54, s{S_WAVE}
    s_mul_i32 s55, s55, {TB}
    s_add_u32 s58, s55, 8192
    s_lshl_b32 s55, s56, 1
    s_add_u32 s54, s54, s55
    s_mul_i32 s54, s54, {TB}
    s_lshl_b32 s55, s57, 11
    s_add_u32 s62, s54, s55
    s_add_u32 s63, s62, 4096
    s_add_u32 s64, s62, {TB}
    s_add_u32 s65, s64, 4096
    """)
    main_loop(True)
    for ft in range(2):
        for tt in range(2):
            d = ACC(ft, tt)
            for f in range(2):
                for i in range(4):
                    A(f"v_cvt_pk_bf16_f32 v{d+8*f+i}, v{d+8*f+2*i}, v{d+8*f+2*i+1}")
                A(f"buffer_store_dwordx4 {v(d+8*f,4)}, v128, s[{R_WS}:{R_WS+3}], s{62+2*tt+f} offen offset:{ft*1024}{SC}")
    A(f"""
    v_cmp_eq_u32 vcc, 0, v0
    v_mov_b32 v36, 0x3f803f80
    s_nop 0
    v_cndmask_b32 v32, 0, v36, vcc
    v_cndmask_b32 v33, 0, v36, vcc
    v_cndmask_b32 v34, 0, v36, vcc
    v_cndmask_b32 v35, 0, v36, vcc
    s_mov_b64 exec, 15
    buffer_store_dwordx4 v[32:35], v128, s[{R_WS}:{R_WS+3}], s58 offen{SC}
    s_mov_b64 exec, -1
    """)
    A.label(L_gsig)
    stp(A, "gstored")
    A("s_waitcnt vmcnt(0)")
    stp(A, "gdrained")
    L_qs = A.newlabel("qs")
    lds_arrive_last(A, C_QKV, 4, L_qs, 2, 3)
    lds_wait(A, C_INIT, 2, 3)
    A(f"""
    s_lshl_b32 s65, s{S_CB}, 4
    s_add_u32 s65, s65, s{S_RB}
    s_add_u32 s65, s65, {L_QF}
    """)
    flag_store(A, "s65", 2, 3)
    A.label(L_qs)
    stp(A, "gsig")
    A(f"s_branch {L_heads}")

    A.label(L_prod)
    srd(A, R_A, P_X, 2048 * 640 * 2)
    srd(A, R_B, P_W, 640 * 1920 * 2)
    VXE, VXO, VW = 10, 11, 12
    A(f"""
    s_sub_u32 s55, s{S_WAVE}, 4            ; pw
    s_lshl_b32 s49, s55, 12
    s_mul_i32 s53, s55, 61440
    s_and_b32 s50, s{S_RB}, 3
    s_mul_i32 s50, s50, 3
    s_add_u32 s50, s50, s{S_CB}
    s_cmp_ge_u32 s50, 20
    s_cselect_b32 s51, 20, 0
    s_sub_u32 s50, s50, s51
    s_cmp_ge_u32 s50, 10
    s_cselect_b32 s51, 10, 0
    s_sub_u32 s50, s50, s51
    """)
    if not E("ROT", 1): A("s_mov_b32 s50, 0")
    A(f"""
    s_lshl_b32 s51, s50, 7
    s_mul_i32 s52, s50, 245760
    s_add_u32 s52, s52, s53
    v_lshrrev_b32 v2, 3, v0
    v_lshrrev_b32 v3, 4, v0
    v_and_b32 v4, 7, v0
    v_xor_b32 v4, v4, v3
    s_lshl_b32 s54, s{S_RB}, 7
    s_lshl_b32 s55, s55, 5
    s_add_u32 s54, s54, s55
    v_add_u32 v2, s54, v2
    v_mul_u32_u24 v2, 1280, v2
    v_lshl_add_u32 v{VXE}, v4, 4, v2
    v_xor_b32 v{VXO}, 64, v{VXE}
    v_and_b32 v4, 15, v0
    v_lshlrev_b32 v5, 2, v3
    v_xor_b32 v4, v4, v5
    v_mul_u32_u24 v5, 3840, v3
    v_lshl_add_u32 v{VW}, v4, 4, v5
    s_lshl_b32 s54, s{S_CB}, 8
    v_add_u32 v{VW}, s54, v{VW}
    """)
    def dma_stage(st):
        so = slot_of(st) * 32768
        for i in range(4):
            A(f"""
            s_add_u32 m0, s49, {so + i*1024}
            s_add_u32 s54, s51, {i*10240}
            buffer_load_dwordx4 v{VXO if i % 2 else VXE}, s[{R_A}:{R_A+3}], s54 offen lds""")
        for i in range(4):
            A(f"""
            s_add_u32 m0, s49, {so + 16384 + i*1024}
            s_add_u32 s54, s52, {i*15360}
            buffer_load_dwordx4 v{VW}, s[{R_B}:{R_B+3}], s54 offen lds""")
        A("""
        s_add_u32 s50, s50, 1
        s_cmp_eq_u32 s50, 10
        s_cselect_b32 s50, 0, s50
        s_lshl_b32 s51, s50, 7
        s_mul_i32 s52, s50, 245760
        s_add_u32 s52, s52, s53""")
    for st in range(3): dma_stage(st)
    if EARLY: A("s_barrier")
    A("s_waitcnt vmcnt(16)\ns_barrier")
    stp(A, "b0")
    for s_ in range(1, 8):
        A("s_waitcnt vmcnt(8)\ns_barrier")
        dma_stage(s_ + 2)
    A("s_waitcnt vmcnt(8)\ns_barrier")
    A("s_waitcnt vmcnt(0)\ns_barrier")
    stp(A, "b9")
    A(f"s_branch {L_heads}")

    A.label(L_nog)
    if EARLY: A("s_barrier")
    L_nz = A.newlabel("nz")
    A(f"""
    s_cmp_lg_u32 s2, {ZERO_WG}
    s_cbranch_scc1 {L_nz}
    v_lshlrev_b32 v2, 4, v0
    v_add_u32 v2, {SYNC}, v2
    v_mov_b32 v4, 0
    v_mov_b32 v5, 0
    v_mov_b32 v6, 0
    v_mov_b32 v7, 0
    s_mul_i32 s54, s{S_WAVE}, {5*1024}
    """)
    for i in range(5):
        A(f"buffer_store_dwordx4 v[4:7], v2, s[{R_WS}:{R_WS+3}], s54 offen sc1\ns_add_u32 s54, s54, 1024")
    A("s_waitcnt vmcnt(0)")
    lds_arrive_last(A, C_KV + 8, 8, L_nz, 2, 3)
    A(f"""
    v_mov_b32 v2, 0
    v_mov_b32 v3, 1
    s_mov_b64 exec, 1
    global_store_dword v2, v3, s[{P_DBG}:{P_DBG+1}] sc1
    s_mov_b64 exec, -1
    {L_nz}:
    s_branch L_nogtask
    L_nogdone:
    """)
    A(f"""
    v_mov_b32 v2, {CNT + C_QKV}
    v_mov_b32 v3, 4
    ds_write_b32 v2, v3
    """)

    A.label(L_heads)
    Q1, Q2 = 4, 8
    O = 16
    S = [32, 48]
    P = [64, 72]
    KA, KB, V0, V1 = 80, 84, 88, 92
    AK = [96, 99]; AK2 = [97, 100]; AV = [98, 101]
    KA0, KB0 = 104, 108
    WOV = 120
    VG = [126, 127, 128]; VKP, VKS, VVF = 129, 130, 131
    def gather_setup(VG=VG, VKP=VKP, VKS=VKS, VVF=VVF, WOV=WOV):
        A(f"""
        s_lshl_b32 s43, s{S_XCD}, 2
        s_lshr_b32 s44, s{S_J}, 3
        s_add_u32 s43, s43, s44        ; head
        s_and_b32 s44, s{S_J}, 7       ; qb
        s_lshl_b32 s46, s44, 3
        s_add_u32 s46, s46, s{S_WAVE}  ; q tile
        s_mov_b32 s47, {hex(HEADWORD[0])}
        """)
        for h in range(1, 32):
            A(f"s_cmp_eq_u32 s43, {h}\ns_cmov_b32 s47, {hex(HEADWORD[h])}")
        for k, dst in enumerate((50, 51, 52)):
            A(f"""
            s_bfe_u32 s54, s47, {hex((3 << 16) | (7*k))}
            s_bfe_u32 s55, s47, {hex((4 << 16) | (7*k + 3))}
            s_mul_i32 s54, s54, {SEC}
            s_lshl_b32 s55, s55, 9
            s_add_u32 s{dst}, s54, s55""")
        A(f"""
        v_and_b32 v3, 31, v0           ; n
        v_lshrrev_b32 v12, 5, v0       ; h
        v_lshlrev_b32 v13, 4, v3       ; n*16
        v_cmp_eq_u32 vcc, 0, v12
        v_mov_b32 v14, s50
        v_mov_b32 v15, s51
        v_cndmask_b32 v14, v15, v14, vcc
        v_add_u32 v{VKP}, v14, v13
        s_and_b32 s54, s43, 1
        s_lshl_b32 s54, s54, 3
        s_add_u32 s54, s54, s52
        v_add_u32 v{VKS}, s54, v13
        v_add_u32 v{VG[0]}, {5*SEC + 2*TB}, v{VKP}
        s_mul_i32 s53, s43, 20
        s_add_u32 s45, s53, 19
        s_lshr_b32 s45, s45, 7
        s_add_u32 s45, s45, 10
        s_mul_i32 s45, s45, {SEC}
        s_add_u32 s45, s45, 8192
        """)
        def vchunk(dst, seg_v, m_v):
            A(f"""
            v_add_u32 v5, s53, v{m_v}          ; F
            v_lshrrev_b32 v6, 7, v5
            v_add_u32 v6, 10, v6
            v_mul_u32_u24 v6, {SEC // 64}, v6
            v_lshlrev_b32 v6, 6, v6
            v_bfe_u32 v7, v5, 5, 2
            v_lshlrev_b32 v7, 10, v7
            v_add_u32 v6, v6, v7
            v_and_b32 v7, 31, v5
            v_lshl_add_u32 v6, v7, 4, v6
            v_lshrrev_b32 v7, 1, v{seg_v}
            v_lshl_add_u32 v6, v7, 12, v6
            v_and_b32 v7, 1, v{seg_v}
            v_lshl_add_u32 v6, v7, 9, v6
            v_subrev_u32 v7, 20, v{m_v}
            v_and_b32 v7, 3, v7
            v_lshlrev_b32 v7, 4, v7
            v_add_u32 v7, s45, v7
            v_cmp_gt_u32 vcc, 20, v{m_v}
            s_nop 1
            v_cndmask_b32 v{dst}, v7, v6, vcc
            """)
        A("""
        v_cmp_gt_u32 vcc, 56, v0
        v_subrev_u32 v8, 32, v0
        v_subrev_u32 v9, 56, v0
        v_cndmask_b32 v8, v9, v8, vcc          ; m
        v_mov_b32 v9, 1
        v_mov_b32 v10, 0
        v_cndmask_b32 v9, v9, v10, vcc         ; seg
        """)
        vchunk(11, 9, 8)
        A(f"""
        v_add_u32 v6, s52, v13
        v_add_u32 v6, {5*SEC + 2*TB}, v6
        v_cmp_gt_u32 vcc, 32, v0
        s_nop 1
        v_cndmask_b32 v{VG[1]}, v11, v6, vcc
        v_cmp_gt_u32 vcc, 16, v0
        v_cmp_gt_u32 s[54:55], 40, v0
        v_subrev_u32 v8, 40, v0
        v_subrev_u32 v10, 16, v0
        v_cndmask_b32 v8, v8, v10, s[54:55]
        v_add_u32 v10, 8, v0
        v_cndmask_b32 v8, v8, v10, vcc         ; m
        v_mov_b32 v9, 3
        v_mov_b32 v10, 2
        v_cndmask_b32 v9, v9, v10, s[54:55]
        v_mov_b32 v10, 1
        v_cndmask_b32 v9, v9, v10, vcc         ; seg
        """)
        vchunk(VG[2], 9, 8)
        A("v_mov_b32 v8, v3\nv_mov_b32 v9, v12")
        vchunk(VVF, 9, 8)
        srd(A, R_A, P_WO, 640 * 640 * 2)
        A(f"s_and_b32 s52, s{S_J}, 7\ns_mul_i32 s52, s52, 160")
        for b in range(5):
            A(f"""
            v_add_u32 v5, {64*b}, v0
            v_mul_u32_u24 v6, 52429, v5
            v_lshrrev_b32 v6, 19, v6
            v_mul_u32_u24 v7, 10, v6
            v_sub_u32 v7, v5, v7
            v_mul_u32_u24 v6, 1280, v6
            v_lshl_add_u32 v6, v7, 4, v6
            v_add_u32 v{WOV+b}, s52, v6""")

    gather_setup()
    A(f"""
    s_mul_i32 s53, s{S_WAVE}, 5120
    s_mul_i32 s62, s{S_WAVE}, 40960
    s_mov_b32 s60, 0
    v_lshlrev_b32 v2, 4, v0
    v_mul_u32_u24 v13, 384, v12
    v_lshl_add_u32 v13, v3, 4, v13
    v_add_u32 v{AV[0]}, 1536, v13
    v_mov_b32 v{AK[0]}, v2
    s_and_b32 s54, s43, 1
    s_lshl_b32 s54, s54, 3
    s_add_u32 s54, s54, 1024
    v_lshlrev_b32 v1, 4, v3
    v_add_u32 v{AK2[0]}, s54, v1
    v_add_u32 v{AV[1]}, {CHUNK}, v{AV[0]}
    v_add_u32 v{AK[1]}, {CHUNK}, v{AK[0]}
    v_add_u32 v{AK2[1]}, {CHUNK}, v{AK2[0]}
    v_cmp_lt_u32 vcc, 20, v3
    v_mov_b32 v5, 0x30000
    v_mov_b32 v{Q2+2}, 0
    v_cndmask_b32 v{AV[0]}, v{AV[0]}, v5, vcc
    v_cndmask_b32 v{AV[1]}, v{AV[1]}, v5, vcc
    v_mov_b32 v{Q2+3}, 0
    v_mov_b32 v{KB+2}, 0
    v_mov_b32 v{KB+3}, 0
    v_mov_b32 v{KB0+2}, 0
    v_mov_b32 v{KB0+3}, 0
    v_mov_b32 v164, 0x7ff00000
    s_mul_i32 s45, s46, {TB}
    s_mul_i32 s49, s{S_WAVE}, {REC}
    s_mul_i32 s50, s{S_WAVE}, {TB}
    """)
    stp(A, "hset")
    L_gow = A.newlabel("gow"); L_go = A.newlabel("go")
    A(f"""
    s_cmp_lg_u32 s{S_WAVE}, 0
    s_cbranch_scc1 {L_gow}
    """)
    lds_wait(A, C_QKV, 5, 6, val=4)
    lds_wait(A, C_INIT, 5, 6)
    if E("NOGATE", 0):
        Lg = A.newlabel("gate")
        A(f"s_cmp_lt_u32 s{S_CB}, 15\ns_cbranch_scc1 {Lg}")
        lds_wait(A, C_UOK, 5, 6, sleep=8)
        A.label(Lg)
    A(f"""
    s_mul_i32 s54, s43, 5
    s_add_u32 s55, s54, 4
    s_lshr_b32 s54, s54, 5             ; c0
    s_lshr_b32 s55, s55, 5             ; c1
    v_bfe_u32 v5, v0, 4, 1
    v_cmp_eq_u32 vcc, 1, v5
    v_mov_b32 v6, s54
    v_mov_b32 v7, s55
    v_cndmask_b32 v6, v6, v7, vcc      ; c0 / c1
    v_lshrrev_b32 v5, 5, v0
    v_mul_u32_u24 v5, 5, v5
    v_add_u32 v5, v5, v6
    v_add_u32 v6, 10, v6
    v_and_b32 v7, 15, v0
    v_lshl_add_u32 v5, v5, 4, v7
    v_lshl_add_u32 v6, v6, 4, v7
    v_lshlrev_b32 v5, 7, v5
    v_lshlrev_b32 v6, 7, v6
    v_add_u32 v5, {SYNC + 128*L_QF}, v5
    v_add_u32 v6, {SYNC + 128*L_QF}, v6
    """)
    poll2(A, 5, 6, 64, 7, 8, E("PS_QKV", 2))
    lds_set(A, C_GO, 5, 6)
    A(f"s_branch {L_go}")
    A.label(L_gow)
    lds_wait(A, C_GO, 5, 6, sleep=E("SL_GO", 1))
    A.label(L_go)
    stp(A, "go")
    A(f"""
    buffer_load_dwordx4 {v(Q1,4)}, v{VKP}, s[{R_WS}:{R_WS+3}], s45 offen{SC}
    buffer_load_dwordx2 {v(Q2,2)}, v{VKS}, s[{R_WS}:{R_WS+3}], s45 offen{SC}
    s_mov_b32 s48, {5*SEC}
    buffer_load_dwordx4 {v(KA0,4)}, v{VKP}, s[{R_WS}:{R_WS+3}], s48 offen{SC}
    buffer_load_dwordx2 {v(KB0,2)}, v{VKS}, s[{R_WS}:{R_WS+3}], s48 offen{SC}
    s_mov_b32 s48, {5*SEC + TB}
    buffer_load_dwordx4 {v(KA,4)}, v{VKP}, s[{R_WS}:{R_WS+3}], s48 offen{SC}
    buffer_load_dwordx2 {v(KB,2)}, v{VKS}, s[{R_WS}:{R_WS+3}], s48 offen{SC}
    """)
    def kv_piece(chunk, i):
        slot = chunk % 2; rr, part = divmod(i, 3)
        return f"""
        s_add_u32 m0, s49, {slot*CHUNK + rr*8*REC + part*1024}
        s_add_u32 s51, s50, {(chunk*16 + rr*8)*TB}
        buffer_load_dwordx4 v{VG[part]}, s[{R_WS}:{R_WS+3}], s51 offen{SC} lds"""
    for i in range(6): A(kv_piece(0, i))
    if not E("C1LATE", 1):
        for i in range(6): A(kv_piece(1, i))
    A(f"""
    v_cmp_gt_u32 vcc, 32, v0
    s_waitcnt vmcnt({0 if E("C1LATE", 1) else 6})
    s_nop 0
    v_cndmask_b32 v{Q2}, 0, v{Q2}, vcc
    v_cndmask_b32 v{Q2+1}, 0, v{Q2+1}, vcc
    """)
    stp(A, "kvok")
    lds_add(A, C_KV, 12, 13)
    lds_wait(A, C_KV, 12, 13, val=8, sleep=0)
    stp(A, "att0")

    def wo_piece(kind, b):
        if kind == 0:
            return f"""
            s_add_u32 m0, s53, {WO_A + b*1024}
            s_nop 0
            buffer_load_dwordx4 v{WOV+b}, s[{R_A}:{R_A+3}], s62 offen lds"""
        if kind == 2:
            return f"""
            s_add_u32 m0, s53, {b*1024}
            s_add_u32 s51, s62, {WO_BROW*1280}
            buffer_load_dwordx4 v{WOV+b}, s[{R_A}:{R_A+3}], s51 offen lds"""
        lab = A.newlabel("wos")
        if kind == 1: lim, ldso, go = 3, WO_A + 8*5120, 8*40960
        else: lim, ldso, go = (2 if b < 2 else 1), 8*5120, WO_BROW*1280 + 8*40960
        return f"""
            s_cmp_ge_u32 s{S_WAVE}, {lim}
            s_cbranch_scc1 {lab}
            s_add_u32 m0, s53, {ldso + b*1024}
            s_add_u32 s51, s62, {go}
            buffer_load_dwordx4 v{WOV+b}, s[{R_A}:{R_A+3}], s51 offen lds
            {lab}:"""
    def qk2(Sd, Kr):
        if E("K8", 1): return f"v_mfma_f32_32x32x8bf16_1k {v(Sd,16)}, {v(Kr,2)}, {v(Q2,2)}, {v(Sd,16)}"
        return f"v_mfma_f32_32x32x16_bf16 {v(Sd,16)}, {v(Kr,4)}, {v(Q2,4)}, {v(Sd,16)}"
    PZ, PQ, PO = 132, 148, 164
    def post_task(skip):
        L_t3 = A.newlabel("t3"); L_tgo = A.newlabel("tgo")
        A(f"""
        s_cmp_eq_u32 s{S_WAVE}, 0
        s_cbranch_scc1 {skip}
        s_cmp_ge_u32 s{S_WAVE}, 4
        s_cbranch_scc1 {skip}
        s_cmp_eq_u32 s{S_WAVE}, 3
        s_cbranch_scc1 {L_t3}
        s_lshl_b32 s56, s2, 1
        s_sub_u32 s57, s{S_WAVE}, 1
        s_add_u32 s56, s56, s57
        s_branch {L_tgo}
        {L_t3}:
        s_cmp_ge_u32 s2, 128
        s_cbranch_scc1 {skip}
        s_add_u32 s56, s2, 512
        {L_tgo}:
        """)
    def post_probe():
        A(f"""
        v_min_u32 v12, 7, v0
        v_lshlrev_b32 v12, 7, v12
        v_add_u32 v12, {SYNC + 128*(FLG + L_Z)}, v12
        global_load_dword v166, v12, s[{P_WS}:{P_WS+1}] sc1
        """)
    def post_prefetch():
        Ls = A.newlabel("pps"); Lok = A.newlabel("ppok")
        post_task(Ls)
        A(f"""
        v_cmp_le_u32 vcc, 1, v166
        s_mul_i32 s57, s56, 52429
        s_lshr_b32 s57, s57, 19
        s_mul_i32 s58, s57, 10
        s_sub_u32 s58, s56, s58
        s_cmp_eq_u64 vcc, -1
        s_cbranch_scc1 {Lok}
        """)
        poll_flags(A, L_Z, 8, 12, 13, 14)
        A.label(Lok)
        srd(A, R_B, P_BQ, 2048 * 640 * 2)
        A(f"""
        v_and_b32 v12, 7, v0
        v_lshrrev_b32 v13, 3, v0
        s_lshl_b32 s54, s58, 6
        v_lshl_add_u32 v12, v12, 3, s54
        s_lshl_b32 s55, s57, 5
        v_lshl_add_u32 v13, v13, 2, s55
        v_mul_u32_u24 v14, 1280, v13
        v_lshl_add_u32 v14, v12, 1, v14
        v_mul_u32_u24 v15, 2560, v13
        v_lshl_add_u32 v15, v12, 1, v15
        v_add_u32 v{PO}, 1280, v15
        v_lshlrev_b32 v15, 12, v12
        v_lshl_add_u32 v15, v13, 1, v15
        v_add_u32 v{PO+1}, {WS_Z}, v15
        """)
        for j in range(4):
            A(f"buffer_load_dwordx4 {v(PQ+4*j,4)}, v14, s[{R_B}:{R_B+3}], 0 offen offset:{1280*j}")
        for i in range(8):
            A(f"s_mov_b32 s54, {i*4096}")
            A(f"buffer_load_dwordx2 {v(PZ+2*i,2)}, v{PO+1}, s[{R_WS}:{R_WS+3}], s54 offen{SC}")
        A.label(Ls)
    A(f"v_mfma_f32_32x32x16_bf16 {v(S[0],16)}, {v(KA0,4)}, {v(Q1,4)}, 0")
    A(qk2(S[0], KB0))
    A("s_nop 7\ns_nop 7")
    for J in range(64):
        c = J // 16; slot = c % 2; j = J % 16
        Sc, Sn = S[J % 2], S[(J + 1) % 2]
        Pc, Pp = P[J % 2], P[(J + 1) % 2]
        off = j * REC
        if j == 0 and J > 0:
            stp(A, f"attpre{J}")
            if J == 48 and E("POSTPF", 1): post_probe()
            A(f"s_waitcnt vmcnt({5 if (J == 32 and not E('SRV', 1)) else 0}) lgkmcnt(0)\ns_barrier")
            stp(A, f"attb{J}")
            if J == 48 and E("POSTPF", 1): post_prefetch()
        EX = lambda i: f"v_exp_f32 v{Sc+i}, v{Sc+i}"
        CV = lambda i: f"v_cvt_pk_bf16_f32 v{Pc+i}, v{Sc+2*i}, v{Sc+2*i+1}"
        G = [(EX(0),EX(1),EX(2),EX(3),CV(0),CV(1)), (EX(4),EX(5),EX(6),EX(7),CV(2),CV(3)), (EX(8),EX(9),EX(10),EX(11),CV(4),CV(5)), (EX(12),EX(13),EX(14),EX(15),CV(6),CV(7))]
        PJ = [int(x) for x in os.environ.get("PRIOJ", "0,9,13,15").split(",")]
        if j in PJ:
            A(f"s_setprio {3 - PJ.index(j)}")
        if J > 0 and j != 0: A("s_waitcnt lgkmcnt(2)")
        if J < 63: A(f"v_mfma_f32_32x32x16_bf16 {v(Sn,16)}, {v(KA,4)}, {v(Q1,4)}, 0")
        if J < 62: A(f"ds_read_b128 {v(KA,4)}, v{AK[slot]} offset:{off}")
        for x in G[0]: A(x)
        if J < 63: A(qk2(Sn, KB))
        if J < 62: A(f"ds_read_b64 {v(KB,2)}, v{AK2[slot]} offset:{off}")
        for x in G[1]: A(x)
        if J > 0:
            A("s_waitcnt lgkmcnt(2)" if J < 62 else "s_waitcnt lgkmcnt(0)")
            cc = "0" if J == 1 else v(O, 16)
            A(f"v_mfma_f32_32x32x16_bf16 {v(O,16)}, {v(V0,4)}, {v(Pp,4)}, {cc}")
        A(f"ds_read_b128 {v(V0,4)}, v{AV[slot]} offset:{off}")
        for x in G[2]: A(x)
        if J > 0: A(f"v_mfma_f32_32x32x16_bf16 {v(O,16)}, {v(V1,4)}, {v(Pp+4,4)}, {v(O,16)}")
        A(f"ds_read_b128 {v(V1,4)}, v{AV[slot]} offset:{off + 768}")
        if E("NODMA", 0):
            for x in G[3]: A(x)
            continue
        if E("SRV", 1):
            if c == 0 and j < 6 and not E("SRV1", 0): A(kv_piece(1, j))
        else:
            if (c in (1, 2) or (c == 0 and E("C1LATE", 1))) and j < 6: A(kv_piece(c + 1, j))
            if c == 1 and 6 <= j < 11: A(wo_piece(0, j - 6))
            if c == 1 and 11 <= j < 16: A(wo_piece(1, j - 11))
            if c == 3 and 1 <= j < 6: A(wo_piece(2, j - 1))
            if c == 3 and 6 <= j < 11: A(wo_piece(3, j - 6))
        for x in G[3]: A(x)
    stp(A, "att1")
    Pl = P[63 % 2]
    A("s_waitcnt lgkmcnt(0)")
    A(f"v_mfma_f32_32x32x16_bf16 {v(O,16)}, {v(V0,4)}, {v(Pl,4)}, {v(O,16)}")
    A(f"v_mfma_f32_32x32x16_bf16 {v(O,16)}, {v(V1,4)}, {v(Pl+4,4)}, {v(O,16)}")
    A("s_setprio 0")
    L_fin = A.newlabel("fin"); L_slow = A.newlabel("slow"); L_odone = A.newlabel("odone")
    def addr_calc():
        A(f"""
        s_lshl_b32 s52, s43, 6
        s_add_u32 s52, s52, s46
        s_mul_i32 s52, s52, 1536
        s_add_u32 s52, s52, {WS_O}
        v_lshlrev_b32 v104, 4, v0
        """)
    addr_calc()
    A("s_nop 7")
    A.label(L_fin)
    A("s_nop 7")
    A(f"""
    v_mov_b32 v110, v{O+8}
    v_mov_b32 v111, v{O+8}
    s_nop 1
    v_permlane32_swap_b32 v110, v111
    s_nop 1
    v_rcp_f32 v112, v111
    s_nop 0
    """)
    for i in range(0, 12, 2):
        A(f"v_pk_mul_f32 {v(O+i,2)}, {v(O+i,2)}, v[112:113] op_sel_hi:[1,0]")
    A(f"""
    v_add_f32 v113, abs(v{O}), abs(v{O+1})
    v_add_f32 v114, abs(v{O+8}), abs(v{O+9})
    """)
    for i in range(2, 8): A(f"v_add_f32 v113, v113, abs(v{O+i})")
    A(f"""
    v_add_f32 v114, v114, abs(v{O+10})
    v_add_f32 v114, v114, abs(v{O+11})
    v_cmp_gt_u32 vcc, 32, v0
    v_mov_b32 v115, 0x21800000         ; 2^-60
    v_mov_b32 v116, 0x5d800000         ; 2^60
    v_cndmask_b32 v114, 0, v114, vcc
    v_add_f32 v113, v113, v114
    v_mov_b32 v114, 0x7f800000
    v_cmp_nlt_f32 s[54:55], v113, v114
    v_cmp_ngt_f32 s[56:57], v111, v115
    v_cmp_nlt_f32 vcc, v111, v116
    s_nop 1
    s_or_b64 s[54:55], s[54:55], s[56:57]
    s_or_b64 s[54:55], s[54:55], vcc
    s_cmp_lg_u64 s[54:55], 0
    s_cselect_b32 s61, 1, 0
    s_andn2_b32 s61, s61, s60
    s_cmp_lg_u32 s61, 0
    s_cbranch_scc1 {L_slow}
    """)
    for i in range(4): A(f"v_cvt_pk_bf16_f32 v{O+i}, v{O+2*i}, v{O+2*i+1}")
    A(f"""
    v_cvt_pk_bf16_f32 v{O+8}, v{O+8}, v{O+9}
    v_cvt_pk_bf16_f32 v{O+9}, v{O+10}, v{O+11}
    v_mov_b32 v{O+10}, 0
    v_mov_b32 v{O+11}, 0
    buffer_store_dwordx4 {v(O,4)}, v104, s[{R_WS}:{R_WS+3}], s52 offen{SC}
    s_mov_b32 exec_hi, 0
    buffer_store_dwordx4 {v(O+8,4)}, v104, s[{R_WS}:{R_WS+3}], s52 offen offset:1024{SC}
    s_mov_b64 exec, -1
    s_branch {L_odone}
    """)
    A.label(L_slow)
    L1 = A.newlabel("p1"); L2 = A.newlabel("p2")
    A(f"""
    s_mov_b32 s60, 1
    v_mov_b32 v110, 0xff800000
    s_mov_b32 s52, 0
    {L1}:
    s_mul_i32 s63, s52, {TB}
    s_add_u32 s63, s63, {5*SEC}
    buffer_load_dwordx4 {v(KA,4)}, v{VKP}, s[{R_WS}:{R_WS+3}], s63 offen{SC}
    buffer_load_dwordx2 {v(KB,2)}, v{VKS}, s[{R_WS}:{R_WS+3}], s63 offen{SC}
    s_waitcnt vmcnt(0)
    v_mfma_f32_32x32x16_bf16 {v(S[0],16)}, {v(KA,4)}, {v(Q1,4)}, 0
    v_mfma_f32_32x32x16_bf16 {v(S[0],16)}, {v(KB,4)}, {v(Q2,4)}, {v(S[0],16)}
    s_nop 7
    s_nop 7
    """)
    for i in range(0, 16, 2): A(f"v_max3_f32 v110, v110, v{S[0]+i}, v{S[0]+i+1}")
    A(f"""
    s_add_u32 s52, s52, 1
    s_cmp_lt_u32 s52, 64
    s_cbranch_scc1 {L1}
    v_mov_b32 v108, v110
    v_mov_b32 v109, v110
    s_nop 1
    v_permlane32_swap_b32 v108, v109
    s_nop 1
    v_max_f32 v110, v108, v109
    v_and_b32 v3, 31, v0
    v_cmp_gt_u32 vcc, 20, v3
    v_add_u32 v108, 4096, v{VVF}
    s_nop 0
    v_cndmask_b32 v109, v{VVF}, v108, vcc
    """)
    for i in range(16): A(f"v_mov_b32 v{O+i}, 0")
    A("s_mov_b32 s52, 0")
    A.label(L2)
    A(f"""
    s_mul_i32 s54, s52, {TB}
    s_add_u32 s63, s54, {5*SEC}
    buffer_load_dwordx4 {v(KA,4)}, v{VKP}, s[{R_WS}:{R_WS+3}], s63 offen{SC}
    buffer_load_dwordx2 {v(KB,2)}, v{VKS}, s[{R_WS}:{R_WS+3}], s63 offen{SC}
    buffer_load_dwordx4 {v(V0,4)}, v{VVF}, s[{R_WS}:{R_WS+3}], s54 offen{SC}
    buffer_load_dwordx4 {v(V1,4)}, v109, s[{R_WS}:{R_WS+3}], s54 offen{SC}
    s_waitcnt vmcnt(0)
    v_mfma_f32_32x32x16_bf16 {v(S[0],16)}, {v(KA,4)}, {v(Q1,4)}, 0
    v_mfma_f32_32x32x16_bf16 {v(S[0],16)}, {v(KB,4)}, {v(Q2,4)}, {v(S[0],16)}
    s_nop 7
    s_nop 7
    """)
    for i in range(16): A(f"v_sub_f32 v{S[0]+i}, v{S[0]+i}, v110")
    for i in range(16): A(f"v_exp_f32 v{S[0]+i}, v{S[0]+i}")
    A("s_nop 0")
    for i in range(8): A(f"v_cvt_pk_bf16_f32 v{P[0]+i}, v{S[0]+2*i}, v{S[0]+2*i+1}")
    A(f"""
    s_nop 1
    v_mfma_f32_32x32x16_bf16 {v(O,16)}, {v(V0,4)}, {v(P[0],4)}, {v(O,16)}
    v_mfma_f32_32x32x16_bf16 {v(O,16)}, {v(V1,4)}, {v(P[0]+4,4)}, {v(O,16)}
    s_add_u32 s52, s52, 1
    s_cmp_lt_u32 s52, 64
    s_cbranch_scc1 {L2}
    s_nop 7
    """)
    addr_calc()
    A(f"s_branch {L_fin}")

    A.label(L_odone)
    AD = 80; OA = 88; VOUT, VRED = 91, 92; ACC3 = 96
    OFS = [28, 32, 36, 40, 44]
    WFS = [[116, 120, 124, 128, 132], [136, 140, 144, 148, 152], [48, 52, 56, 60, 64], [68, 72, 76, 156, 160]]
    A(f"""
    s_lshl_b32 s54, s{S_XCD}, 2
    s_lshr_b32 s55, s{S_J}, 3
    s_add_u32 s54, s54, s55        ; tb
    s_lshl_b32 s54, s54, 2
    s_and_b32 s55, s{S_WAVE}, 3
    s_add_u32 s54, s54, s55        ; T
    s_lshr_b32 s45, s54, 1
    s_mul_i32 s45, s45, 1536
    s_and_b32 s57, s54, 1
    s_lshl_b32 s57, s57, 8
    s_add_u32 s45, s45, s57
    s_add_u32 s45, s45, {WS_O}
    s_lshr_b32 s57, s{S_WAVE}, 2
    s_mul_i32 s57, s57, {16*64*1536}
    s_add_u32 s62, s45, s57
    v_lshrrev_b32 v5, 4, v0            ; kg
    v_and_b32 v6, 15, v0
    v_lshlrev_b32 v6, 4, v6
    """)
    for c in range(3):
        A(f"""
        v_add_u32 v8, {4*c}, v5
        v_mul_u32_u24 v9, 21846, v8
        v_lshrrev_b32 v9, 16, v9
        v_mul_u32_u24 v10, 3, v9
        v_sub_u32 v10, v8, v10
        v_mul_u32_u24 v9, 1536, v9
        v_lshlrev_b32 v9, 6, v9
        v_lshl_add_u32 v9, v10, 9, v9
        v_add_u32 v{OA+c}, v9, v6""")
    A(f"""
    v_and_b32 v3, 15, v0
    s_lshl_b32 s55, s54, 4
    v_add_u32 v3, s55, v3
    v_mul_u32_u24 v3, 2560, v3
    v_lshrrev_b32 v4, 4, v0
    v_lshl_add_u32 v3, v4, 3, v3
    s_and_b32 s55, s{S_J}, 7
    s_mul_i32 s55, s55, 160
    v_add_u32 v{VOUT}, s55, v3
    v_lshlrev_b32 v3, 4, v0
    s_and_b32 s55, s{S_WAVE}, 3
    s_mul_i32 s55, s55, 5120
    s_add_u32 s55, s55, {RED}
    v_add_u32 v{VRED}, s55, v3
    v_bfe_u32 v6, v0, 2, 2             ; r
    v_and_b32 v7, 3, v0
    v_lshlrev_b32 v7, 3, v7            ; 8*c4
    s_mov_b32 s59, {WO_A}
    """)
    def row_addr(dst0, s, region):
        A(f"""
        v_add_u32 v8, {4*s}, v5
        v_mul_u32_u24 v9, 21846, v8
        v_lshrrev_b32 v9, 16, v9
        v_mul_u32_u24 v10, 3, v9
        v_sub_u32 v10, v8, v10
        v_mul_u32_u24 v9, 20, v9
        v_add_u32 v9, v9, v6
        v_lshlrev_b32 v11, 2, v10
        v_cmp_eq_u32 vcc, 2, v10
        v_add_u32 v12, 8, v11
        v_lshlrev_b32 v13, 1, v11
        v_cndmask_b32 v11, v11, v13, vcc
        v_add_u32 v11, v11, v9
        v_add_u32 v12, v12, v9
        """)
        for hh, rv in enumerate((11, 12)):
            if region == "A":
                A(f"v_mul_u32_u24 v13, 160, v{rv}\nv_add3_u32 v{dst0+hh}, v13, v7, s59")
            elif region == "B":
                A(f"v_subrev_u32 v13, {WO_BROW}, v{rv}\nv_mul_u32_u24 v13, 160, v13\nv_add_u32 v{dst0+hh}, v13, v7")
            else:
                A(f"""
                v_mul_u32_u24 v13, 160, v{rv}
                v_add3_u32 v14, v13, v7, s59
                v_subrev_u32 v13, {WO_BROW*160}, v13
                v_add_u32 v13, v13, v7
                v_cmp_gt_u32 vcc, {WO_BROW}, v{rv}
                s_nop 1
                v_cndmask_b32 v{dst0+hh}, v13, v14, vcc""")
    L_ahi = A.newlabel("ahi"); L_adone = A.newlabel("adone")
    stp(A, "ostored")
    A("s_waitcnt vmcnt(0)")
    stp(A, "odrained")
    L_os = A.newlabel("os")
    lds_arrive_last(A, C_O, 8, L_os, 2, 3)
    A(f"s_add_u32 s65, s44, {L_O}")
    global_arrive(A, "s65", 32, 2, 3)
    A.label(L_os)
    A(f"""
    s_cmp_ge_u32 s{S_WAVE}, 4
    s_cbranch_scc1 {L_ahi}
    """)
    for c in range(3): row_addr(AD + 2*c, c, "A")
    A(f"s_branch {L_adone}")
    A.label(L_ahi)
    row_addr(AD + 6, 12, None)
    for c in range(3): row_addr(AD + 2*c, 13 + c, "B")
    A.label(L_adone)
    srd(A, R_B, P_OUT, 2048 * 1280 * 2)
    L_p3a = A.newlabel("p3a"); L_post = A.newlabel("post"); L_wb = A.newlabel("wb")
    post_task(L_wb)
    for j in range(4):
        for q in range(4):
            za = PZ + 2*(2*q) + j//2; zb = PZ + 2*(2*q+1) + j//2
            if j % 2 == 0:
                A(f"v_lshlrev_b32 v48, 16, v{za}\nv_lshlrev_b32 v49, 16, v{zb}")
            else:
                A(f"v_and_b32 v48, 0xffff0000, v{za}\nv_and_b32 v49, 0xffff0000, v{zb}")
            qq = PQ + 4*j + q
            A(f"v_lshlrev_b32 v50, 16, v{qq}\nv_and_b32 v51, 0xffff0000, v{qq}")
            A(f"v_pk_mul_f32 v[48:49], v[48:49], v[50:51]")
            A(f"v_cvt_pk_bf16_f32 v{52+4*j+q}, v48, v49")
        A(f"s_mov_b32 s54, {j*2560}")
        A(f"buffer_store_dwordx4 {v(52+4*j,4)}, v{PO}, s[{R_B}:{R_B+3}], s54 offen{os.environ.get('OUTB', '')}")
    A.label(L_wb)
    A("s_barrier")
    def sel_of(hi):
        if not hi: return lambda st: (AD + 2*(st % 3), (st // 3) * 12800)
        return lambda st: (AD + 6, 0) if st == 0 else (AD + 2*((st - 1) % 3), ((st - 1) // 3) * 12800)
    def rd(hi, st):
        base, so = sel_of(hi)(st); r = []
        for T in range(5):
            r.append(f"ds_read_b64_tr_b16 {v(WFS[st % 4][T],2)}, v{base} offset:{so + 32*T}")
            r.append(f"ds_read_b64_tr_b16 {v(WFS[st % 4][T]+2,2)}, v{base+1} offset:{so + 32*T}")
        return r
    PD = E("P3D", 3)
    assert PD <= 3
    def o_load(st):
        A(f"s_add_u32 s58, s62, {(st//3)*4*64*1536}")
        A(f"buffer_load_dwordx4 {v(OFS[st % 5],4)}, v{OA + st % 3}, s[{R_WS}:{R_WS+3}], s58 offen{SC}")
    def p3_pre(hi):
        for st in range(4):
            for r in rd(hi, st): A(r)
            A("s_waitcnt lgkmcnt(4)")
    def p3_wait_o(poller):
        if poller:
            Lnp = A.newlabel("np")
            A(f"""
            s_cmp_eq_u32 s{S_WAVE}, 0
            s_cbranch_scc0 {Lnp}
            s_lshl_b32 s54, s{S_XCD}, 7
            s_add_u32 s54, s54, {SYNC + 128*(FLG + L_O)}
            v_mov_b32 v2, s54
            v_cmp_eq_u32 vcc, 0, v0
            v_mov_b32 v3, 1
            s_nop 0
            v_cndmask_b32 v4, 0, v3, vcc
            """)
            poll(A, 2, 4, 3, sleep=E("PS_O", 2))
            stp(A, "ook")
            A.label(Lnp)
        stp(A, "prep3a")
        A("s_waitcnt lgkmcnt(0)\ns_barrier")
        stp(A, "p3a")
        for st in range(PD + 1): o_load(st)
    def p3_loop(hi):
        for st in range(12):
            A(f"s_waitcnt vmcnt({min(PD, 11-st)})" + (" lgkmcnt(10)" if st >= 4 and st < 9 else (" lgkmcnt(0)" if st >= 9 else "")))
            if st + PD + 1 < 12: o_load(st + PD + 1)
            if st == 0: stp(A, "p3first")
            if st == 6: stp(A, "p3mid")
            rs = rd(hi, st + 4) if st + 4 < 12 else []
            for T in range(5):
                cc = "0" if st == 0 else v(ACC3+4*T, 4)
                A(f"v_mfma_f32_16x16x32_bf16 {v(ACC3+4*T,4)}, {v(WFS[st % 4][T],4)}, {v(OFS[st % 5],4)}, {cc}")
                for r in rs[2*T:2*T+2]: A(r)
        A("s_nop 7")
    L_hi = A.newlabel("p3hi")
    A(f"""
    s_cmp_ge_u32 s{S_WAVE}, 4
    s_cbranch_scc1 {L_hi}
    """)
    p3_pre(False)
    p3_wait_o(True)
    p3_loop(False)
    stp(A, "p3loop")
    A("s_barrier")
    stp(A, "p3red")
    for T in range(5): A(f"ds_read_b128 {v(32+4*T,4)}, v{VRED} offset:{1024*T}")
    A("s_waitcnt lgkmcnt(0)")
    for T in range(5):
        d = ACC3 + 4*T
        A(f"v_pk_add_f32 {v(d,2)}, {v(d,2)}, {v(32+4*T,2)}")
        A(f"v_pk_add_f32 {v(d+2,2)}, {v(d+2,2)}, {v(34+4*T,2)}")
        A(f"v_cvt_pk_bf16_f32 v{d}, v{d}, v{d+1}")
        A(f"v_cvt_pk_bf16_f32 v{d+1}, v{d+2}, v{d+3}")
        A(f"buffer_store_dwordx2 {v(d,2)}, v{VOUT}, s[{R_B}:{R_B+3}], 0 offen offset:{32*T}{os.environ.get('OUTA', '')}")
    prof_dump(A, 0, wsptr=P_WS)
    A("s_endpgm")
    A.label(L_hi)
    p3_pre(True)
    p3_wait_o(False)
    p3_loop(True)
    for T in range(5): A(f"ds_write_b128 v{VRED}, {v(ACC3+4*T,4)} offset:{1024*T}")
    A("s_waitcnt lgkmcnt(0)\ns_barrier")
    prof_dump(A, 0, wsptr=P_WS)
    A("s_endpgm")

    A.label(L_bw)
    BK, BV, BW = 16, 44, 60
    def b_setup(notask, chan_only):
        L2_ = A.newlabel("b2")
        A(f"""
        s_cmp_eq_u32 s{S_WAVE}, 10
        s_cbranch_scc1 {L2_}
        s_lshl_b32 s56, s2, 1
        s_sub_u32 s57, s{S_WAVE}, 8
        s_add_u32 s56, s56, s57
        """)
        b_addr()
        Lc = A.newlabel("bcont")
        A(f"""
        s_branch {Lc}
        {L2_}:
        s_cmp_ge_u32 s2, 128
        s_cbranch_scc1 {notask}
        s_add_u32 s56, s2, 512
        s_mov_b32 s65, 0
        s_branch {chan_only}
        {Lc}:
        """)
    def b_addr():
        A(f"""
        s_mul_i32 s57, s56, 52429
        s_lshr_b32 s57, s57, 19        ; tblk
        s_mul_i32 s58, s57, 10
        s_sub_u32 s58, s56, s58        ; dblk
        v_and_b32 v2, 7, v0            ; dg
        v_lshrrev_b32 v3, 3, v0        ; tg
        v_lshlrev_b32 v12, 6, v2
        v_lshl_add_u32 v12, v3, 3, v12
        s_lshl_b32 s54, s56, 12
        s_add_u32 s54, s54, {WS_U}
        v_add_u32 v12, s54, v12
        s_lshl_b32 s54, s58, 6
        v_lshl_add_u32 v2, v2, 3, s54  ; d0
        s_lshl_b32 s55, s57, 5
        v_lshl_add_u32 v3, v3, 2, s55  ; t0
        v_mul_u32_u24 v4, 1280, v3
        v_lshl_add_u32 v10, v2, 1, v4
        v_lshlrev_b32 v11, 3, v2
        v_subrev_u32 v5, 3840, v10
        v_subrev_u32 v6, 2560, v10
        v_subrev_u32 v7, 1280, v10
        """)
    def b_loads():
        srd(A, R_C, P_BK, 2048 * 640 * 2)
        A(f"""
        buffer_load_dwordx4 {v(BK,4)}, v5, s[{R_C}:{R_C+3}], 0 offen
        buffer_load_dwordx4 {v(BK+4,4)}, v6, s[{R_C}:{R_C+3}], 0 offen
        buffer_load_dwordx4 {v(BK+8,4)}, v7, s[{R_C}:{R_C+3}], 0 offen
        """)
        for j in range(4): A(f"buffer_load_dwordx4 {v(BK+12+4*j,4)}, v10, s[{R_C}:{R_C+3}], 0 offen offset:{1280*j}")
        srd(A, R_C, P_BV, 2048 * 640 * 2)
        for j in range(4): A(f"buffer_load_dwordx4 {v(BV+4*j,4)}, v10, s[{R_C}:{R_C+3}], 0 offen offset:{1280*j}")
        srd(A, R_C, P_SH, 640 * 4 * 2)
        for j in range(4): A(f"buffer_load_dwordx4 {v(BW+4*j,4)}, v11, s[{R_C}:{R_C+3}], 0 offen offset:{16*j}")
    def b_compute(q):
        KP, VP, WP, AC, OUT = 80, 94, 102, 110, 120
        for j in range(7):
            A(f"v_lshlrev_b32 v{KP+2*j}, 16, v{BK+4*j+q}\nv_and_b32 v{KP+1+2*j}, 0xffff0000, v{BK+4*j+q}")
        for t in range(4):
            A(f"v_lshlrev_b32 v{VP+2*t}, 16, v{BV+4*t+q}\nv_and_b32 v{VP+1+2*t}, 0xffff0000, v{BV+4*t+q}")
        for u in range(2):
            bb = BW + 4*q + 2*u
            A(f"v_lshlrev_b32 v{WP+u}, 16, v{bb}\nv_and_b32 v{WP+2+u}, 0xffff0000, v{bb}")
            A(f"v_lshlrev_b32 v{WP+4+u}, 16, v{bb+1}\nv_and_b32 v{WP+6+u}, 0xffff0000, v{bb+1}")
        for t in range(4):
            acc = AC + 2*t
            A(f"v_pk_mul_f32 {v(acc,2)}, {v(KP+2*(t+0),2)}, {v(WP+6,2)}")
            A(f"v_pk_fma_f32 {v(acc,2)}, {v(KP+2*(t+1),2)}, {v(WP+4,2)}, {v(acc,2)}")
            A(f"v_pk_fma_f32 {v(acc,2)}, {v(KP+2*(t+2),2)}, {v(WP+2,2)}, {v(acc,2)}")
            A(f"v_pk_fma_f32 {v(acc,2)}, {v(KP+2*(t+3),2)}, {v(WP,2)}, {v(acc,2)}")
            A(f"v_pk_mul_f32 {v(acc,2)}, {v(acc,2)}, {v(VP+2*t,2)}")
        for u in range(2):
            o = OUT + 4*q + 2*u
            A(f"v_cvt_pk_bf16_f32 v{o}, v{AC+u}, v{AC+2+u}\nv_cvt_pk_bf16_f32 v{o+1}, v{AC+4+u}, v{AC+6+u}")
        for u in range(2):
            o = OUT + 4*q + 2*u
            A(f"buffer_store_dwordx2 {v(o,2)}, v12, s[{R_WS}:{R_WS+3}], 0 offen offset:{(2*q+u)*512}{SC}")
    def init_load():
        A(f"v_mov_b32 v2, 0\nglobal_load_dword v9, v2, s[{P_DBG}:{P_DBG+1}] sc1")
    def u_publish(n):
        A(f"s_waitcnt vmcnt({n})\ns_mov_b32 s65, 0")
        Lok = A.newlabel("iok"); Lsk = A.newlabel("usk")
        A(f"""
        v_readfirstlane_b32 s66, v9
        s_nop 3
        s_cmp_lg_u32 s66, 0
        s_cbranch_scc1 {Lok}
        v_mov_b32 v2, 0
        v_mov_b32 v3, 1
        """)
        poll(A, 2, 3, 4, sleep=8, base=P_DBG)
        A.label(Lok)
        lds_set(A, C_INIT, 2, 3)
        A(f"s_cmp_ge_u32 s{S_CBK}, 15\ns_cselect_b32 s64, 10, 2")
        lds_arrive_last(A, C_U, "s64", Lsk, 2, 3)
        A(f"""
        s_and_b32 s66, s2, 7
        s_add_u32 s66, s66, {L_U}
        s_lshl_b32 s66, s66, 7
        s_add_u32 s66, s66, {SYNC}
        v_mov_b32 v10, s66
        v_mov_b32 v11, 1
        s_mov_b64 exec, 1
        global_atomic_add v11, v10, v11, s[{P_WS}:{P_WS+1}] sc0 sc1
        s_mov_b64 exec, -1
        s_mov_b32 s65, 1
        {Lsk}:
        """)
    def u_flag():
        L = A.newlabel("uf")
        A(f"""
        s_cmp_eq_u32 s65, 0
        s_cbranch_scc1 {L}
        s_waitcnt vmcnt(0)
        v_readfirstlane_b32 s66, v11
        s_nop 3
        s_cmp_lg_u32 s66, 31
        s_cbranch_scc1 {L}
        v_add_u32 v10, {128*40}, v10
        v_mov_b32 v11, 1
        s_mov_b64 exec, 1
        global_store_dword v10, v11, s[{P_WS}:{P_WS+1}] sc1
        s_mov_b64 exec, -1
        {L}:
        """)
    HR = 136
    def h_loads():
        srd(A, R_C, P_SK, 640 * 4096)
        A(f"""
        s_sub_u32 s57, s{S_WAVE}, 8
        s_mul_i32 s57, s57, {CONV_SZ}
        s_add_u32 s57, s57, {CONV_BASE}
        s_lshl_b32 s58, s56, 12
        v_lshlrev_b32 v13, 4, v0
        v_add_u32 v13, s58, v13
        v_subrev_u32 v14, 8, v13
        """)
        for p in range(4):
            if p == 0:
                A(f"buffer_load_dwordx2 {v(HR,2)}, v14, s[{R_C}:{R_C+3}], 0 offen")
            else:
                A(f"buffer_load_dwordx2 {v(HR+6*p,2)}, v13, s[{R_C}:{R_C+3}], 0 offen offset:{1024*p - 8}")
            A(f"buffer_load_dwordx4 {v(HR+6*p+2,4)}, v13, s[{R_C}:{R_C+3}], 0 offen offset:{1024*p}")
    def h_build():
        A(f"""
        v_cmp_eq_u32 vcc, 0, v0
        v_lshlrev_b32 v6, 4, v0
        v_add_u32 v6, s57, v6
        v_add_u32 v6, 32, v6
        v_cndmask_b32 v{HR}, v{HR}, 0, vcc
        v_cndmask_b32 v{HR+1}, v{HR+1}, 0, vcc
        """)
        for p in range(4):
            b = HR + 6*p; P1, P0, D = b, b + 1, b + 2
            T1, T2, T3 = 16 + 12*(p % 2), 20 + 12*(p % 2), 24 + 12*(p % 2)
            A(f"""
            ds_write_b128 v6, {v(D,4)} offset:{0*COPY + 1024*p}
            v_alignbit_b32 v{T1}, v{D}, v{P0}, 16
            v_alignbit_b32 v{T1+1}, v{D+1}, v{D}, 16
            v_alignbit_b32 v{T1+2}, v{D+2}, v{D+1}, 16
            v_alignbit_b32 v{T1+3}, v{D+3}, v{D+2}, 16
            v_mov_b32 v{T2}, v{P0}
            v_mov_b32 v{T2+1}, v{D}
            v_mov_b32 v{T2+2}, v{D+1}
            v_mov_b32 v{T2+3}, v{D+2}
            v_alignbit_b32 v{T3}, v{P0}, v{P1}, 16
            v_mov_b32 v{T3+1}, v{T1}
            v_mov_b32 v{T3+2}, v{T1+1}
            v_mov_b32 v{T3+3}, v{T1+2}
            ds_write_b128 v6, {v(T1,4)} offset:{1*COPY + 1024*p}
            ds_write_b128 v6, {v(T2,4)} offset:{2*COPY + 1024*p}
            ds_write_b128 v6, {v(T3,4)} offset:{3*COPY + 1024*p}
            """)
    L_bnog = A.newlabel("bnog"); L_bnt = A.newlabel("bnt"); L_sync = A.newlabel("sync"); L_bntn = A.newlabel("bntn")
    A(f"""
    s_cmp_ge_u32 s{S_CB}, 15
    s_cbranch_scc1 {L_bnog}
    """)
    L_chonly = A.newlabel("chonly")
    b_setup(L_bnt, L_chonly)
    if E("BISS", 0): lds_wait(A, C_ISS, 2, 3, val=4, sleep=1)
    if E("NOBW", 0):
        lds_set(A, C_INIT, 2, 3)
        for _ in range(10): A("s_barrier")
        A(f"s_branch {L_exit}")
    MODE = E("BMODE", 3)
    if MODE == 3:
        hl3 = E("HL3", 0)
        b_loads()
        if not hl3: h_loads()
        if EARLY: A("s_barrier")
        k = E("BWAIT", 4)
        for _ in range(k): A("s_barrier")
        A(f"s_waitcnt vmcnt({0 if hl3 else 8})")
        stp(A, "blok")
        if E("BPRIO", 0): A(f"s_setprio {E('BPRIO', 0)}")
        nsp = E("BSPLIT", 2)
        for q in range(4):
            b_compute(q)
            if (nsp == 2 and q == 1) or (nsp == 4 and q < 3): A("s_barrier")
        used = 1 if nsp == 2 else (3 if nsp == 4 else 0)
        A("s_setprio 0")
        init_load()
        g = E("BGAP", 2)
        for _ in range(g): A("s_barrier")
        u_publish(0)
        stp(A, "upub")
        if hl3: h_loads()
        rest = 10 - k - used - g
        uf = E("UFAT", 2)
        for i in range(rest):
            A("s_barrier")
            if i + 1 == uf and uf < rest:
                u_flag()
                A("s_mov_b32 s65, 0")
    elif MODE == 2:
        if EARLY: A("s_barrier")
        for _ in range(E("BAT", 1)): A("s_barrier")
        b_loads()
        h_loads()
        for _ in range(10 - E("BAT", 1)): A("s_barrier")
        A("s_waitcnt vmcnt(8)")
        stp(A, "blok")
        for q in range(4): b_compute(q)
        init_load()
        u_publish(0)
        stp(A, "upub")
    else:
        hl = E("HLATE", 1)
        b_loads()
        if not hl: h_loads()
        A(f"s_waitcnt vmcnt({0 if hl else 8})")
        stp(A, "blok")
        for q in range(4): b_compute(q)
        init_load()
        npub = E("NPUB", 2)
        for _ in range(npub): A("s_barrier")
        u_publish(0)
        stp(A, "upub")
        if hl:
            for _ in range(hl): A("s_barrier")
            h_loads()
        for _ in range(10 - npub - hl): A("s_barrier")
    stp(A, "b9")
    A(f"s_branch {L_conv}")
    A.label(L_bnt)
    A(f"s_branch {L_exit}")
    A.label(L_chonly)
    nh = E("HLC", 0)
    if EARLY and nh: A("s_barrier")
    for _ in range(nh): A("s_barrier")
    h_loads()
    if EARLY and not nh: A("s_barrier")
    for _ in range(10 - nh): A("s_barrier")
    A(f"s_branch {L_conv}")
    A.label(L_bnog)
    if E("NOBW", 0):
        lds_set(A, C_INIT, 2, 3)
        A(f"s_branch {L_exit}")
    b_setup(L_exit, L_exit)
    b_loads()
    h_loads()
    if EARLY: A("s_barrier")
    A("s_waitcnt vmcnt(8)")
    for q in range(4): b_compute(q)
    init_load()
    u_publish(0)
    A(f"s_branch {L_conv}")
    A.label("L_nogtask")
    A(f"""
    s_sub_u32 s56, s{S_J}, 28
    s_lshl_b32 s56, s56, 2
    s_lshr_b32 s57, s{S_XCD}, 1
    s_add_u32 s56, s56, s57
    s_lshl_b32 s56, s56, 3
    s_add_u32 s56, s56, s{S_WAVE}
    s_add_u32 s56, s56, 512
    """)
    b_addr()
    b_loads()
    A("s_waitcnt vmcnt(0)")
    for q in range(4): b_compute(q)
    init_load()
    u_publish(0)
    u_flag()
    A("s_branch L_nogdone")

    A.label(L_conv)
    u_flag()
    A(f"""
    s_lshr_b32 s59, s56, 1
    s_lshl_b32 s59, s59, 2
    s_load_dword s60, s[{P_SD}:{P_SD+1}], s59
    v_mov_b32 v12, 0
    v_mov_b32 v13, 0
    v_mov_b32 v14, 0
    v_mov_b32 v15, 0
    v_lshlrev_b32 v6, 3, v0
    v_add_u32 v6, s57, v6
    v_add_u32 v6, {4*COPY}, v6
    v_cmp_gt_u32 vcc, 60, v0
    s_and_saveexec_b64 s[54:55], vcc
    ds_write_b64 v6, v[12:13]
    s_mov_b64 exec, s[54:55]
    v_and_b32 v6, 1, v0
    v_lshlrev_b32 v6, 4, v6
    v_lshrrev_b32 v7, 1, v0
    v_mul_u32_u24 v7, {COPY}, v7
    v_add3_u32 v6, v6, v7, s57
    v_cmp_gt_u32 vcc, 8, v0
    s_and_saveexec_b64 s[54:55], vcc
    ds_write_b128 v6, v[12:15]
    s_mov_b64 exec, s[54:55]
    s_waitcnt vmcnt(0)
    """)
    h_build()
    VGB = [160, 161, 162]; WOVB = 163
    if E("SRV", 1): gather_setup(VGB, 40, 41, 42, WOVB)
    A(f"""
    s_lshr_b32 s54, s56, 6
    s_and_b32 s55, s56, 63
    s_and_b32 s61, s55, 7
    s_lshr_b32 s55, s55, 3
    s_lshl_b32 s61, s61, 9
    s_lshl_b32 s55, s55, 6
    s_add_u32 s61, s61, s55
    s_lshl_b32 s54, s54, 12
    s_add_u32 s61, s61, s54
    s_add_u32 s61, s61, {WS_U}
    v_lshrrev_b32 v8, 2, v0
    v_mul_u32_u24 v8, 40960, v8
    v_and_b32 v9, 3, v0
    v_lshl_add_u32 v8, v9, 4, v8
    """)
    L_uw = A.newlabel("uw"); L_ud = A.newlabel("ud")
    A(f"s_cmp_lg_u32 s{S_WAVE}, 8\ns_cbranch_scc1 {L_uw}")
    if E("UGATE", 0) == 1: lds_wait(A, C_GO, 2, 3, sleep=4)
    if E("UGATE", 0) == 2: lds_wait(A, C_QKV, 2, 3, val=4, sleep=4)
    A(f"""
    v_lshlrev_b32 v2, 7, v0
    v_add_u32 v2, {SYNC + 128*(L_U + 40)}, v2
    v_cmp_gt_u32 vcc, 8, v0
    v_mov_b32 v3, 1
    s_nop 0
    v_cndmask_b32 v4, 0, v3, vcc
    """)
    poll(A, 2, 4, 3, sleep=E("PS_U", 6))
    lds_set(A, C_UOK, 2, 3)
    A(f"s_branch {L_ud}")
    A.label(L_uw)
    lds_wait(A, C_UOK, 2, 3)
    A("s_waitcnt vmcnt(0)")
    A.label(L_ud)
    stp(A, "uok")
    for p in range(4):
        A(f"""
        s_add_u32 m0, s57, {4*COPY + 480 + p*1024}
        s_add_u32 s54, s61, {p*16*40960}
        buffer_load_dwordx4 v8, s[{R_WS}:{R_WS+3}], s54 offen{SC} lds""")
    A(f"""
    v_lshrrev_b32 v6, 4, v0             ; kg
    v_bfe_u32 v7, v0, 2, 2              ; r
    v_and_b32 v8, 3, v0                 ; c
    v_mul_u32_u24 v7, {COPY}, v7
    v_lshlrev_b32 v8, 3, v8
    v_lshlrev_b32 v9, 4, v6
    v_sub_u32 v8, v8, v9
    v_add_u32 v8, 56, v8
    v_add3_u32 v4, v7, v8, s57          ; vA
    v_and_b32 v7, 15, v0
    v_lshlrev_b32 v7, 5, v7
    v_lshl_add_u32 v7, v6, 4, v7
    v_add_u32 v7, {4*COPY}, v7
    v_add_u32 v5, s57, v7               ; vB
    s_waitcnt vmcnt(0) lgkmcnt(0)
    s_and_b32 s54, s56, 1
    s_lshl_b32 s54, s54, 4
    s_lshr_b32 s60, s60, s54
    s_lshl_b32 s60, s60, 16             ; D as f32
    """)
    stp(A, "conv0")
    Y = 32; AT = 64; BT = 128
    def a_reads(rho, p):
        mu = rho + 8 * p
        return [f"ds_read_b64_tr_b16 {v(AT+4*p,2)}, v4 offset:{64*mu + 8}",
                f"ds_read_b64_tr_b16 {v(AT+4*p+2,2)}, v4 offset:{64*mu}"]
    def b_read(rho, q): return f"ds_read_b128 {v(BT+4*q,4)}, v5 offset:{64*(8*q - rho + 7)}"
    A(f"s_setprio {E('CPRIO', 0)}")
    if E("CPACE", 0):
        for q in range(7, -1, -1): A(b_read(0, q))
        for rho in range(8):
            for p in range(8):
                for r in a_reads(rho, p): A(r)
                A("s_waitcnt lgkmcnt(0)")
                for q in range(7 - p, -1, -1):
                    i = p + q
                    cc = "0" if (rho == 0 and p == 0) else v(Y+4*i, 4)
                    A(f"v_mfma_f32_16x16x32_bf16 {v(Y+4*i,4)}, {v(AT+4*p,4)}, {v(BT+4*q,4)}, {cc}")
                if rho < 7: A(b_read(rho + 1, 7 - p))
            if rho == 3:
                stp(A, "convh")
                A("s_barrier")
    else:
        ATS = [64, 96]
        def a_reads2(rho, p, sid):
            mu = rho + 8 * p
            return [f"ds_read_b64_tr_b16 {v(ATS[sid]+4*p,2)}, v4 offset:{64*mu + 8}",
                    f"ds_read_b64_tr_b16 {v(ATS[sid]+4*p+2,2)}, v4 offset:{64*mu}"]
        for q in range(7, -1, -1): A(b_read(0, q))
        A("s_waitcnt lgkmcnt(4)")
        for p in range(8):
            for r in a_reads2(0, p, 0): A(r)
            if p == 3: A("s_waitcnt lgkmcnt(4)")
        for rho in range(8):
            sid = rho % 2
            nxtA = [x for p in range(8) for x in a_reads2(rho + 1, p, 1 - sid)] if rho < 7 else []
            A("s_waitcnt lgkmcnt(0)" if rho == 0 else "s_waitcnt lgkmcnt(4)")
            for p in range(8):
                for q in range(7 - p, -1, -1):
                    i = p + q
                    cc = "0" if (rho == 0 and p == 0) else v(Y+4*i, 4)
                    if p == 0 and rho > 0 and q <= 3:
                        A(f"s_waitcnt lgkmcnt({7 if rho < 7 else q})")
                    A(f"v_mfma_f32_16x16x32_bf16 {v(Y+4*i,4)}, {v(ATS[sid]+4*p,4)}, {v(BT+4*q,4)}, {cc}")
                    if nxtA: A(nxtA.pop(0))
                if rho < 7: A(b_read(rho + 1, 7 - p))
            if rho == E("CBAR", -1):
                stp(A, "convh")
                A("s_barrier")
    stp(A, "conv1")
    if E("TPRIO", 3): A(f"s_setprio {E('TPRIO', 3)}")
    def srv_kv(chunk):
        slot = chunk % 2
        for r in range(8):
            for part in range(3):
                A(f"""
                s_add_u32 m0, s49, {slot*CHUNK + r*REC + part*1024}
                s_add_u32 s51, s50, {(chunk*16 + r)*TB}
                buffer_load_dwordx4 v{VGB[part]}, s[{R_WS}:{R_WS+3}], s51 offen{SC} lds""")
    if E("SRV", 1):
        A(f"""
        s_sub_u32 s54, s{S_WAVE}, 8            ; bw
        s_mul_i32 s49, s54, {8*REC}
        s_mul_i32 s50, s54, {8*TB}
        """)
    if E("SRV", 1) and E("SRV1", 0):
        Lsk1 = A.newlabel("srv1")
        A(f"s_cmp_eq_u32 s{S_WAVE}, 10\ns_cbranch_scc1 {Lsk1}")
        lds_wait(A, C_GO, 2, 3, sleep=2)
        srv_kv(1)
        A.label(Lsk1)
    A(f"""
    v_and_b32 v7, 15, v0
    v_lshrrev_b32 v6, 4, v0
    v_lshlrev_b32 v7, 5, v7
    v_lshl_add_u32 v7, v6, 3, v7        ; 32n + 8g
    v_add_u32 v8, s57, v7
    v_add_u32 v8, {4*COPY + 480}, v8
    s_add_u32 s61, s58, {WS_Z}
    """)
    for i in range(8): A(f"ds_read_b64 {v(64+2*i,2)}, v8 offset:{512*i}")
    A("s_waitcnt lgkmcnt(0)\ns_nop 3")
    for i in range(8):
        u0, u1 = 64 + 2*i, 64 + 2*i + 1
        y = Y + 4*i
        A(f"""
        v_lshlrev_b32 v96, 16, v{u0}
        v_and_b32 v97, 0xffff0000, v{u0}
        v_lshlrev_b32 v98, 16, v{u1}
        v_and_b32 v99, 0xffff0000, v{u1}
        v_fma_f32 v{y}, v96, s60, v{y}
        v_fma_f32 v{y+1}, v97, s60, v{y+1}
        v_fma_f32 v{y+2}, v98, s60, v{y+2}
        v_fma_f32 v{y+3}, v99, s60, v{y+3}
        v_cvt_pk_bf16_f32 v{y}, v{y}, v{y+1}
        v_cvt_pk_bf16_f32 v{y+1}, v{y+2}, v{y+3}
        buffer_store_dwordx2 {v(y,2)}, v7, s[{R_WS}:{R_WS+3}], s61 offen offset:{512*i}{SC}""")
    def z_publish():
        A("s_waitcnt vmcnt(0)")
        stp(A, "zdrained")
        L_zs = A.newlabel("zs")
        A("s_cmp_lt_u32 s2, 128\ns_cselect_b32 s64, 3, 2")
        lds_arrive_last(A, C_Z, "s64", L_zs, 2, 3)
        A(f"s_and_b32 s65, s2, 7\ns_add_u32 s65, s65, {L_Z}")
        global_arrive(A, "s65", 32, 2, 3)
        A.label(L_zs)
    if not E("SRV", 1):
        A("s_barrier")
        z_publish()
    else:
        L_srv = A.newlabel("srv")
        A(f"s_cmp_lg_u32 s{S_WAVE}, 10\ns_cbranch_scc1 {L_srv}")
        A("s_barrier")
        z_publish()
        prof_dump(A, 0, wsptr=P_WS)
        A("s_endpgm")
        A.label(L_srv)
        A(f"""
        s_sub_u32 s56, s{S_WAVE}, 8            ; bw
        s_mul_i32 s53, s56, 5120
        s_mul_i32 s62, s56, 40960
        """)
        if E("SRV1", 0): A("s_waitcnt vmcnt(8)")
        A("s_barrier")
        if E("TPRIO", 3) and not E("TPKEEP", 1): A("s_setprio 0")
        z_publish()
        def srv_wo(region):
            n = 0
            groups = range(0, 12, 2) if region == "A" else range(0, 10, 2)
            for a2 in groups:
                for b in range(5):
                    lab = None
                    if region == "A" and a2 == 10:
                        lab = A.newlabel("wsk"); A(f"s_cmp_lg_u32 s56, 0\ns_cbranch_scc1 {lab}")
                    if region == "B" and a2 == 8 and b >= 2:
                        lab = A.newlabel("wsk"); A(f"s_cmp_lg_u32 s56, 0\ns_cbranch_scc1 {lab}")
                    ldso = (WO_A if region == "A" else 0) + a2*5120 + b*1024
                    go = a2*40960 + (0 if region == "A" else WO_BROW*1280)
                    A(f"""
                    s_add_u32 m0, s53, {ldso}
                    s_add_u32 s51, s62, {go}
                    buffer_load_dwordx4 v{WOVB+b}, s[{R_A}:{R_A+3}], s51 offen lds""")
                    if lab: A.label(lab)
                    else: n += 1
            return n
        srv_kv(2)
        n = srv_wo("A")
        A(f"s_waitcnt vmcnt({n})\ns_barrier")
        srv_kv(3)
        A("s_waitcnt vmcnt(0)\ns_barrier")
        srv_wo("B")
        A("s_waitcnt vmcnt(0)")
    prof_dump(A, 0, wsptr=P_WS)
    A.label(L_exit)
    A("s_endpgm")

def build():
    hdr = open("cdna_kernels/" + NAME + ".s.ref").read().split("; Override launch geometry")[0]
    A = Asm(); gen(A)
    out = hdr + f"; @launch grid=(256,1,1) block=(704,1,1) lds={LDS}\n"
    out += '.amdgcn_target "amdgcn-amd-amdhsa--gfx950"\n.text\n' + A.text()
    out += f""".section .rodata,"a"
.p2align 6
.amdhsa_kernel {KNAME}
  .amdhsa_next_free_vgpr {VGPRS}
  .amdhsa_next_free_sgpr 102
  .amdhsa_accum_offset {VGPRS}
  .amdhsa_group_segment_fixed_size 0
  .amdhsa_kernarg_size 96
  .amdhsa_user_sgpr_count 2
  .amdhsa_user_sgpr_kernarg_segment_ptr 1
  .amdhsa_system_sgpr_workgroup_id_x 1
  .amdhsa_float_denorm_mode_32 3
.end_amdhsa_kernel
"""
    return out

if __name__ == "__main__":
    open(sys.argv[1], "w").write(build())
```

```python
class Asm:
    def __init__(self):
        self.lines = []
        self.uid = 0
    def __call__(self, s=""):
        for l in s.split("\n"):
            l = l.strip()
            if l == "":
                continue
            if l.endswith(":") or l.startswith("."):
                self.lines.append(l)
            elif l.startswith(";"):
                self.lines.append("    " + l)
            else:
                self.lines.append("    " + l)
    def c(self, s):
        self.lines.append("    ; " + s)
    def label(self, name):
        self.lines.append(name + ":")
    def newlabel(self, base):
        self.uid += 1
        return f"L_{base}_{self.uid}"
    def mark(self, name):
        self.lines.append("@@MARK " + name)
    def reorder(self, order):
        secs = {}; cur = "_head"; secs[cur] = []
        for l in self.lines:
            if l.startswith("@@MARK "):
                cur = l.split()[1]; secs[cur] = []
            else:
                secs[cur].append(l)
        assert set(order) == set(secs) - {"_head"}, (order, list(secs))
        self.lines = secs["_head"] + [l for s in order for l in secs[s]]
    def text(self):
        return "\n".join(self.lines) + "\n"

def v(i, n=1):
    return f"v{i}" if n == 1 else f"v[{i}:{i+n-1}]"
def s(i, n=1):
    return f"s{i}" if n == 1 else f"s[{i}:{i+n-1}]"
def a(i, n=1):
    return f"a{i}" if n == 1 else f"a[{i}:{i+n-1}]"

def srd(A, dst, ptr, nbytes, add=0):
    if add:
        A(f"s_add_u32 s{dst}, s{ptr}, {hex(add)}")
        A(f"s_addc_u32 s{dst+1}, s{ptr+1}, 0")
    else:
        A(f"s_mov_b32 s{dst}, s{ptr}")
        A(f"s_mov_b32 s{dst+1}, s{ptr+1}")
    A(f"s_mov_b32 s{dst+2}, {hex(nbytes)}")
    A(f"s_mov_b32 s{dst+3}, 0x00020000")

import os
PROF = int(os.environ.get("PROF", "0"))
PROF_BASE = 0x2000000
NSTAMP = 8
def stamp(A, idx):
    if PROF:
        A(f"{'s_memrealtime' if os.environ.get('RSTAMP') else 's_memtime'} s[{80+2*idx}:{81+2*idx}]")
def prof_init(A):
    if PROF:
        for i in range(NSTAMP):
            A(f"s_mov_b64 s[{80+2*i}:{81+2*i}], 0")
        A("s_memrealtime s[68:69]")
        stamp(A, 0)
def prof_dump(A, kidx, wsptr=14, wave_s=40):
    if not PROF:
        return
    if PROF == 3:
        L = A.newlabel("nodump")
        A("s_mov_b64 exec, -1")
        A("s_memrealtime s[70:71]")
        A("s_waitcnt lgkmcnt(0)")
        A(f"s_cmp_lg_u32 s{wave_s}, 0\ns_cbranch_scc1 {L}")
        L2 = A.newlabel("d200"); L3 = A.newlabel("dgo")
        A(f"s_mov_b32 s96, 16\ns_cmp_eq_u32 s2, 0\ns_cbranch_scc1 {L3}")
        A(f"s_mov_b32 s96, 40\ns_cmp_eq_u32 s2, 200\ns_cbranch_scc0 {L}")
        A.label(L3)
        A("v_mov_b32 v0, s96")
        regs = [82, 84, 86, 88, 90, 70]
        for i, r in enumerate(regs):
            A(f"s_sub_u32 s97, s{r}, s68\nv_mov_b32 v2, s97\ns_mov_b64 exec, 1\nglobal_store_dword v0, v2, s[24:25] offset:{4*i}\ns_mov_b64 exec, -1")
        A.label(L)
        return
    A("s_mov_b64 exec, -1")
    stamp(A, NSTAMP - 1)
    A("s_memrealtime s[70:71]")
    A("s_waitcnt lgkmcnt(0)")
    A(f"s_lshl_b32 s96, s2, 4")
    A(f"s_add_u32 s96, s96, s{wave_s}")
    A(f"s_add_u32 s96, s96, {kidx*256*16}")
    A(f"s_lshl_b32 s96, s96, 7")
    A(f"s_add_u32 s96, s96, {PROF_BASE}")
    A(f"s_add_u32 s98, s{wsptr}, s96")
    A(f"s_addc_u32 s99, s{wsptr+1}, 0")
    A("v_mov_b32 v0, 0")
    regs = [80+2*i for i in range(NSTAMP)] + [68, 70]
    for i, r in enumerate(regs):
        A(f"v_mov_b32 v2, s{r}")
        A(f"v_mov_b32 v3, s{r+1}")
        A("s_mov_b64 exec, 1")
        A(f"global_store_dwordx2 v0, v[2:3], s[98:99] offset:{8*i}")
        A("s_mov_b64 exec, -1")
        A("s_nop 1")
```

```python
import os, sys, struct, math
from asmlib import *
from slots import ASSIGN, HEADWORD

NAME = "concat_heads__softmax_full_mha__ssm_conv_h3__prompt"
KNAME = NAME + "_kernel"
E = lambda k, d=0: int(os.environ.get(k, d))

TB = 8320
SEC = 64 * TB
WS_U  = 0x800000
WS_Z  = 0xB00000
WS_O  = 0xE00000
SYNC  = 0x1200000
WS_BYTES = 0x1214000
REC = 3072
CHUNK = 16 * REC
COPY = 4160
CONV_SZ = 4 * COPY + 4608
CONV_BASE = 98304
CNT = CONV_BASE + 3 * CONV_SZ
LDS = CNT + 256
WO_A = 98304
WO_BROW = 340
RED = CHUNK
VGPRS = 168
POLL_MAX = 40000
SC = os.environ.get("SCF", " sc1")
L_U, L_Z, L_O, L_QF = 0, 8, 24, 48
FLG = 8
N_LINES = 288
ZERO_WG = 225
C_QKV, C_U, C_Z, C_O, C_UOK, C_INIT, C_GO, C_KV, C_ISS = 0, 4, 8, 12, 16, 20, 24, 28, 32

def f32bits(x): return struct.unpack("<I", struct.pack("<f", x))[0]
QSCALE = f32bits(20 ** -0.5 * math.log2(math.e))

P_X, P_W, P_WO, P_BQ, P_BK, P_BV, P_SH, P_SK, P_SD, P_OUT, P_DBG, P_WS = 4, 6, 8, 10, 12, 14, 16, 18, 20, 22, 24, 26
R_WS = 28
R_A, R_B, R_C = 32, 36, 44
S_WAVE, S_XCD, S_J, S_RB, S_CB = 40, 41, 42, 43, 48
S_CBK = 48

STAMPS = dict(x.split(":") for x in os.environ.get("STAMPS", "b0:1,gend:2,uok:2,att0:4,att1:5,p3a:6").split(","))
def stp(A, name):
    if name in STAMPS: stamp(A, int(STAMPS[name]))

def poll(A, addr_v, thr_v, tmp, sleep=4, base=P_WS):
    L = A.newlabel("poll"); D = A.newlabel("polld")
    A(f"""
    v_cmp_ne_u32 vcc, 0, v{thr_v}
    s_mov_b32 s66, {POLL_MAX}
    s_nop 1
    s_mov_b64 exec, vcc
    {L}:
    global_load_dword v{tmp}, v{addr_v}, s[{base}:{base+1}] sc1
    s_waitcnt vmcnt(0)
    v_cmp_ge_u32 vcc, v{tmp}, v{thr_v}
    s_nop 3
    s_cmp_eq_u64 vcc, exec
    s_cbranch_scc1 {D}
    s_sleep {sleep}
    s_sub_u32 s66, s66, 1
    s_cmp_lg_u32 s66, 0
    s_cbranch_scc1 {L}
    {D}:
    s_mov_b64 exec, -1
    """)
def poll_flags(A, line0, nlines, t_addr, t_thr, tmp, sleep=4):
    A(f"""
    v_lshlrev_b32 v{t_addr}, 7, v0
    v_add_u32 v{t_addr}, {SYNC + 128*(FLG + line0)}, v{t_addr}
    v_cmp_gt_u32 vcc, {nlines}, v0
    v_mov_b32 v{tmp}, 1
    s_nop 0
    v_cndmask_b32 v{t_thr}, 0, v{tmp}, vcc
    """)
    poll(A, t_addr, t_thr, tmp, sleep)
def lds_set(A, off, t0, t1):
    A(f"""
    v_mov_b32 v{t0}, {CNT + off}
    v_mov_b32 v{t1}, 1
    ds_write_b32 v{t0}, v{t1}
    """)
def lds_add(A, off, t0, t1):
    A(f"""
    v_mov_b32 v{t0}, {CNT + off}
    v_mov_b32 v{t1}, 1
    s_mov_b64 exec, 1
    ds_add_u32 v{t0}, v{t1}
    s_mov_b64 exec, -1
    """)
def lds_wait(A, off, t0, t1, val=1, sleep=1):
    L = A.newlabel("lw"); D = A.newlabel("lwd")
    A(f"""
    v_mov_b32 v{t0}, {CNT + off}
    s_mov_b32 s66, {POLL_MAX*16}
    {L}:
    ds_read_b32 v{t1}, v{t0}
    s_waitcnt lgkmcnt(0)
    v_readfirstlane_b32 s67, v{t1}
    s_nop 3
    s_cmp_ge_u32 s67, {val}
    s_cbranch_scc1 {D}
    s_sleep {sleep}
    s_sub_u32 s66, s66, 1
    s_cmp_lg_u32 s66, 0
    s_cbranch_scc1 {L}
    {D}:
    """)
def lds_arrive_last(A, off, n_s, skip_lab, t0, t1):
    A(f"""
    v_mov_b32 v{t0}, {CNT + off}
    v_mov_b32 v{t1}, 1
    s_mov_b64 exec, 1
    ds_add_rtn_u32 v{t1}, v{t0}, v{t1}
    s_waitcnt lgkmcnt(0)
    s_mov_b64 exec, -1
    v_readfirstlane_b32 s66, v{t1}
    s_nop 3
    s_add_u32 s66, s66, 1
    s_cmp_lg_u32 s66, {n_s}
    s_cbranch_scc1 {skip_lab}
    """)
def global_arrive(A, line_s, total, t0, t1):
    L = A.newlabel("ga")
    A(f"""
    s_lshl_b32 s66, {line_s}, 7
    s_add_u32 s66, s66, {SYNC}
    v_mov_b32 v{t0}, s66
    v_mov_b32 v{t1}, 1
    s_mov_b64 exec, 1
    global_atomic_add v{t1}, v{t0}, v{t1}, s[{P_WS}:{P_WS+1}] sc0 sc1
    s_waitcnt vmcnt(0)
    s_mov_b64 exec, -1
    v_readfirstlane_b32 s66, v{t1}
    s_nop 3
    s_add_u32 s66, s66, 1
    s_cmp_lg_u32 s66, {total}
    s_cbranch_scc1 {L}
    v_add_u32 v{t0}, {128*FLG}, v{t0}
    v_mov_b32 v{t1}, 1
    s_mov_b64 exec, 1
    global_store_dword v{t0}, v{t1}, s[{P_WS}:{P_WS+1}] sc1
    s_mov_b64 exec, -1
    {L}:
    """)

def flag_store(A, line_s, t0, t1):
    A(f"""
    s_lshl_b32 s66, {line_s}, 7
    s_add_u32 s66, s66, {SYNC}
    v_mov_b32 v{t0}, s66
    v_mov_b32 v{t1}, 1
    s_mov_b64 exec, 1
    global_store_dword v{t0}, v{t1}, s[{P_WS}:{P_WS+1}] sc1
    s_mov_b64 exec, -1
    """)
def poll2(A, a0, a1, n1, t0, t1, sleep):
    L = A.newlabel("poll2"); D = A.newlabel("poll2d")
    A(f"""
    s_mov_b32 s66, {POLL_MAX}
    {L}:
    global_load_dword v{t0}, v{a0}, s[{P_WS}:{P_WS+1}] sc1
    global_load_dword v{t1}, v{a1}, s[{P_WS}:{P_WS+1}] sc1
    s_waitcnt vmcnt(0)
    v_min_u32 v{t0}, v{t0}, v{t1}
    v_cmp_le_u32 vcc, 1, v{t0}
    s_nop 3
    s_cmp_eq_u64 vcc, -1
    s_cbranch_scc1 {D}
    s_sleep {sleep}
    s_sub_u32 s66, s66, 1
    s_cmp_lg_u32 s66, 0
    s_cbranch_scc1 {L}
    {D}:
    """)

def gen(A):
    A(f".globl {KNAME}")
    A(".p2align 8")
    A(f".type {KNAME},@function")
    A.label(KNAME)
    L_exit, L_nog, L_prod, L_bw, L_heads, L_conv = "L_exit", "L_nog", "L_prod", "L_bw", "L_heads", "L_conv"
    A(f"""
    s_cmp_ge_u32 s2, 256
    s_cbranch_scc1 {L_exit}
    s_load_dwordx16 s[4:19], s[0:1], 0
    s_load_dwordx8 s[20:27], s[0:1], 64
    v_lshrrev_b32 v1, 6, v0
    v_and_b32 v0, 63, v0
    v_readfirstlane_b32 s{S_WAVE}, v1
    s_and_b32 s{S_XCD}, s2, 7
    s_lshr_b32 s{S_J}, s2, 3
    s_lshr_b32 s{S_RB}, s{S_XCD}, 1
    s_lshl_b32 s{S_RB}, s{S_RB}, 2
    s_and_b32 s49, s{S_J}, 3
    s_add_u32 s{S_RB}, s{S_RB}, s49        ; rb
    s_and_b32 s{S_CB}, s{S_XCD}, 1
    s_lshl_b32 s{S_CB}, s{S_CB}, 3
    s_lshr_b32 s49, s{S_J}, 2
    s_add_u32 s{S_CB}, s{S_CB}, s49        ; cb
    """)
    if E("CPF", 1):
        A(f"""
        s_cmp_ge_u32 s{S_WAVE}, 2
        s_cbranch_scc1 L_nocpf
        s_getpc_b64 s[60:61]
        L_pc:
        s_sub_u32 s60, s60, L_pc-{KNAME}
        s_subb_u32 s61, s61, 0
        s_lshl_b32 s62, s{S_J}, 1
        s_add_u32 s62, s62, s{S_WAVE}
        s_lshl_b32 s62, s62, 10
        v_lshlrev_b32 v2, 4, v0
        v_add_u32 v2, s62, v2
        v_min_u32 v2, (L_exit-{KNAME}-16)&0xfffffff0, v2
        v_mov_b32 v5, s61
        v_add_co_u32 v4, vcc, s60, v2
        s_nop 1
        v_addc_co_u32 v5, vcc, 0, v5, vcc
        global_load_dwordx4 v[148:151], v[4:5], off
        L_nocpf:
        """)
    A(f"""
    s_cmp_lg_u32 s{S_WAVE}, 0
    s_cbranch_scc1 L_noldsinit
    v_mov_b32 v2, {CNT}
    v_mov_b32 v4, 0
    v_mov_b32 v5, 0
    v_mov_b32 v6, 0
    v_mov_b32 v7, 0
    ds_write_b128 v2, v[4:7]
    ds_write_b128 v2, v[4:7] offset:16
    ds_write_b128 v2, v[4:7] offset:32
    L_noldsinit:
    s_waitcnt lgkmcnt(0)
    """)
    EARLY = E("EARLY", 0)
    if not EARLY: A("s_barrier")
    srd(A, R_WS, P_WS, WS_BYTES)
    prof_init(A)
    A(f"""
    s_cmp_ge_u32 s{S_WAVE}, 8
    s_cbranch_scc1 {L_bw}
    s_cmp_ge_u32 s{S_CB}, 15
    s_cbranch_scc1 {L_nog}
    s_cmp_ge_u32 s{S_WAVE}, 4
    s_cbranch_scc1 {L_prod}
    s_branch L_cons
    """)
    A.mark("cons")
    A.label("L_cons")
    slot_of = lambda st: (st + 2) % 3
    if EARLY: A("s_barrier")

    A(f"""
    s_lshr_b32 s56, s{S_WAVE}, 1       ; wr
    s_and_b32 s57, s{S_WAVE}, 1        ; wc
    v_and_b32 v2, 31, v0           ; n
    v_lshrrev_b32 v3, 5, v0        ; h
    v_bfe_u32 v4, v0, 1, 3         ; (l>>1)&7
    s_lshl_b32 s54, s56, 6
    v_add_u32 v5, s54, v2
    v_lshlrev_b32 v5, 7, v5        ; token_local*128
    """)
    for ks in range(4):
        A(f"""
        v_add_u32 v6, {2*ks}, v3
        v_xor_b32 v6, v6, v4
        v_lshl_add_u32 v{16+ks}, v6, 4, v5
        v_add_u32 v{20+ks}, 0x10000, v{16+ks}""")
    def w_addr():
        A(f"""
        v_lshrrev_b32 v2, 4, v0        ; g
        v_bfe_u32 v3, v0, 2, 2         ; r
        v_and_b32 v4, 3, v0            ; c4
        v_lshrrev_b32 v5, 1, v2
        v_lshl_add_u32 v5, v5, 3, v3   ; k_local
        v_lshlrev_b32 v5, 8, v5
        v_add_u32 v5, 16384, v5
        v_and_b32 v6, 1, v2
        v_lshl_add_u32 v6, v6, 2, v4   ; rg = 4*(g&1) + c4
        v_mul_u32_u24 v6, 5, v6
        v_lshlrev_b32 v7, 2, v3        ; 4r
        """)
        for ft in range(2):
            A(f"""
            v_lshrrev_b64 v[8:9], v6, s[{60+2*ft}:{61+2*ft}]
            v_and_b32 v8, 31, v8
            v_lshrrev_b32 v9, 1, v8
            v_xor_b32 v9, v9, v7
            v_and_b32 v8, 1, v8
            v_lshlrev_b32 v8, 3, v8
            v_lshl_add_u32 v8, v9, 4, v8
            v_add_u32 v{24+ft}, v5, v8
            v_add_u32 v{26+ft}, 0x10000, v{24+ft}""")
    FR = [dict(X=[32, 36], W=[40, 44]), dict(X=[48, 52], W=[56, 60]), dict(X=[132, 136], W=[140, 144])]
    ACC = lambda ft, tt: 64 + 16 * (2 * ft + tt)
    def reads(st, ks, setid):
        slot = slot_of(st); hi = slot == 2
        so = 0 if hi else slot * 32768
        xa = (20 if hi else 16) + ks; wa = (26 if hi else 24); F = FR[setid]
        return [f"ds_read_b128 {v(F['X'][0],4)}, v{xa} offset:{so}",
                f"ds_read_b64_tr_b16 {v(F['W'][0],2)}, v{wa} offset:{so + ks*4096}",
                f"ds_read_b64_tr_b16 {v(F['W'][0]+2,2)}, v{wa} offset:{so + ks*4096 + 1024}",
                f"ds_read_b128 {v(F['X'][1],4)}, v{xa} offset:{so + 4096}",
                f"ds_read_b64_tr_b16 {v(F['W'][1],2)}, v{wa+1} offset:{so + ks*4096}",
                f"ds_read_b64_tr_b16 {v(F['W'][1]+2,2)}, v{wa+1} offset:{so + ks*4096 + 1024}"]
    def mfmas(setid, first, vmode):
        F = FR[setid]; m = []
        for (ft, tt) in [(0, 0), (0, 1), (1, 0), (1, 1)]:
            d = ACC(ft, tt); c = "0" if first else v(d, 16)
            a_, b_ = (F['X'][tt], F['W'][ft]) if vmode else (F['W'][ft], F['X'][tt])
            m.append(f"v_mfma_f32_32x32x16_bf16 {v(d,16)}, {v(a_,4)}, {v(b_,4)}, {c}")
        return m
    def main_loop(vmode):
        A("s_barrier")
        stp(A, "b0")
        if not E("G3", 1):
            for r in reads(0, 0, 0): A(r)
            n = 0
            for st in range(10):
                for ks in range(4):
                    setid = n % 2
                    m = mfmas(setid, n == 0, vmode)
                    A("s_waitcnt lgkmcnt(0)")
                    if ks == 3 and st < 9:
                        A("s_barrier")
                        stp(A, f"gb{st+1}")
                    A(m[0])
                    if ks < 3:
                        for r in reads(st, ks + 1, 1 - setid): A(r)
                    elif st < 9:
                        for r in reads(st + 1, 0, 1 - setid): A(r)
                    A(m[1]); A(m[2]); A(m[3])
                    n += 1
        else:
            for r in reads(0, 0, 0): A(r)
            for r in reads(0, 1, 1): A(r)
            for n in range(40):
                st, ks = divmod(n, 4)
                m = mfmas(n % 3, n == 0, vmode)
                if ks == 2 and st < 9:
                    A("s_waitcnt lgkmcnt(0)\ns_barrier")
                    stp(A, f"gb{st+1}")
                else:
                    A(f"s_waitcnt lgkmcnt({6 if n + 1 < 40 else 0})")
                A(m[0])
                if n + 2 < 40:
                    st2, ks2 = divmod(n + 2, 4)
                    for r in reads(st2, ks2, (n + 2) % 3): A(r)
                A(m[1]); A(m[2]); A(m[3])
        stp(A, "gend")
        A("s_nop 15")
    L_vpath = A.newlabel("vpath"); L_gsig = A.newlabel("gsig"); L_vdone = A.newlabel("vdone")
    A(f"""
    s_cmp_ge_u32 s{S_CB}, 10
    s_cbranch_scc1 {L_vpath}
    s_cmp_ge_u32 s{S_CB}, 5
    s_cselect_b32 s55, 5, 0
    s_sub_u32 s55, s{S_CB}, s55        ; cb'
    s_lshl_b32 s55, s55, 1
    s_add_u32 s55, s55, s57
    """)
    for var in range(10):
        cbp, wc = divmod(var, 2); T = []
        for ft in range(2):
            tab = [0]*8
            for si, it in enumerate(ASSIGN[cbp][2*wc + ft]):
                ap, h = divmod(si, 2)
                tab[4*ap + h] = it[1]; tab[4*ap + 2 + h] = it[2]
            T.append(sum(g << (5*i) for i, g in enumerate(tab)))
        nxt = A.newlabel("var")
        A(f"""
        s_cmp_lg_u32 s55, {var}
        s_cbranch_scc1 {nxt}
        s_mov_b32 s60, {hex(T[0] & 0xffffffff)}
        s_mov_b32 s61, {hex(T[0] >> 32)}
        s_mov_b32 s62, {hex(T[1] & 0xffffffff)}
        s_mov_b32 s63, {hex(T[1] >> 32)}
        s_branch {L_vdone}
        {nxt}:""")
    A(f"""
    s_mov_b64 s[60:61], 0
    s_mov_b64 s[62:63], 0
    {L_vdone}:
    """)
    w_addr()
    A(f"""
    s_mov_b32 s58, {hex(QSCALE)}
    s_cmp_ge_u32 s{S_CB}, 5
    s_cmov_b32 s58, 0x3f800000
    s_mov_b32 s59, s58
    v_lshlrev_b32 v128, 4, v0
    s_lshl_b32 s54, s{S_RB}, 2
    s_lshl_b32 s55, s56, 1
    s_add_u32 s54, s54, s55
    s_lshl_b32 s55, s{S_CB}, 6
    s_add_u32 s54, s54, s55
    s_mul_i32 s54, s54, {TB}
    s_lshl_b32 s55, s57, 12        ; wc*4096
    s_add_u32 s64, s54, s55
    s_add_u32 s65, s64, {TB}
    """)
    main_loop(False)
    for ft in range(2):
        for tt in range(2):
            d = ACC(ft, tt)
            for i in range(0, 16, 2):
                A(f"v_pk_mul_f32 {v(d+i,2)}, {v(d+i,2)}, s[58:59]")
            for ap in range(2):
                for i in range(4):
                    A(f"v_cvt_pk_bf16_f32 v{d+8*ap+i}, v{d+8*ap+2*i}, v{d+8*ap+2*i+1}")
                A(f"buffer_store_dwordx4 {v(d+8*ap,4)}, v128, s[{R_WS}:{R_WS+3}], s{64+tt} offen offset:{ft*2048 + ap*1024}{SC}")
    A(f"s_branch {L_gsig}")
    A.label(L_vpath)
    nat = sum(i << (5*i) for i in range(8)); rep = sum(1 << (5*i) for i in range(8))
    A(f"""
    s_lshl_b32 s54, s57, 4
    s_mul_i32 s55, s54, {hex(rep & 0xffffffff)}
    s_mul_hi_u32 s61, s54, {hex(rep & 0xffffffff)}
    s_mul_i32 s66, s54, {hex(rep >> 32)}
    s_add_u32 s61, s61, s66
    s_add_u32 s60, s55, {hex(nat & 0xffffffff)}
    s_addc_u32 s61, s61, {hex(nat >> 32)}
    s_add_u32 s62, s60, {hex((8*rep) & 0xffffffff)}
    s_addc_u32 s63, s61, {hex((8*rep) >> 32)}
    """)
    w_addr()
    A(f"""
    v_lshlrev_b32 v128, 4, v0
    s_lshl_b32 s54, s{S_RB}, 2
    s_lshl_b32 s55, s{S_CB}, 6
    s_add_u32 s54, s54, s55
    s_add_u32 s55, s54, s{S_WAVE}
    s_mul_i32 s55, s55, {TB}
    s_add_u32 s58, s55, 8192
    s_lshl_b32 s55, s56, 1
    s_add_u32 s54, s54, s55
    s_mul_i32 s54, s54, {TB}
    s_lshl_b32 s55, s57, 11
    s_add_u32 s62, s54, s55
    s_add_u32 s63, s62, 4096
    s_add_u32 s64, s62, {TB}
    s_add_u32 s65, s64, 4096
    """)
    main_loop(True)
    for ft in range(2):
        for tt in range(2):
            d = ACC(ft, tt)
            for f in range(2):
                for i in range(4):
                    A(f"v_cvt_pk_bf16_f32 v{d+8*f+i}, v{d+8*f+2*i}, v{d+8*f+2*i+1}")
                A(f"buffer_store_dwordx4 {v(d+8*f,4)}, v128, s[{R_WS}:{R_WS+3}], s{62+2*tt+f} offen offset:{ft*1024}{SC}")
    A(f"""
    v_cmp_eq_u32 vcc, 0, v0
    v_mov_b32 v36, 0x3f803f80
    s_nop 0
    v_cndmask_b32 v32, 0, v36, vcc
    v_cndmask_b32 v33, 0, v36, vcc
    v_cndmask_b32 v34, 0, v36, vcc
    v_cndmask_b32 v35, 0, v36, vcc
    s_mov_b64 exec, 15
    buffer_store_dwordx4 v[32:35], v128, s[{R_WS}:{R_WS+3}], s58 offen{SC}
    s_mov_b64 exec, -1
    """)
    A.label(L_gsig)
    stp(A, "gstored")
    A("s_waitcnt vmcnt(0)")
    stp(A, "gdrained")
    L_qs = A.newlabel("qs")
    lds_arrive_last(A, C_QKV, 4, L_qs, 2, 3)
    lds_wait(A, C_INIT, 2, 3)
    A(f"""
    s_lshl_b32 s65, s{S_CB}, 4
    s_add_u32 s65, s65, s{S_RB}
    s_add_u32 s65, s65, {L_QF}
    """)
    flag_store(A, "s65", 2, 3)
    A.label(L_qs)
    stp(A, "gsig")
    A(f"s_branch {L_heads}")

    A.mark("prod")
    A.label(L_prod)
    srd(A, R_A, P_X, 2048 * 640 * 2)
    srd(A, R_B, P_W, 640 * 1920 * 2)
    VXE, VXO, VW = 10, 11, 12
    A(f"""
    s_sub_u32 s55, s{S_WAVE}, 4            ; pw
    s_lshl_b32 s49, s55, 12
    s_mul_i32 s53, s55, 61440
    s_and_b32 s50, s{S_RB}, 3
    s_mul_i32 s50, s50, 3
    s_add_u32 s50, s50, s{S_CB}
    s_cmp_ge_u32 s50, 20
    s_cselect_b32 s51, 20, 0
    s_sub_u32 s50, s50, s51
    s_cmp_ge_u32 s50, 10
    s_cselect_b32 s51, 10, 0
    s_sub_u32 s50, s50, s51
    """)
    if not E("ROT", 1): A("s_mov_b32 s50, 0")
    A(f"""
    s_lshl_b32 s51, s50, 7
    s_mul_i32 s52, s50, 245760
    s_add_u32 s52, s52, s53
    v_lshrrev_b32 v2, 3, v0
    v_lshrrev_b32 v3, 4, v0
    v_and_b32 v4, 7, v0
    v_xor_b32 v4, v4, v3
    s_lshl_b32 s54, s{S_RB}, 7
    s_lshl_b32 s55, s55, 5
    s_add_u32 s54, s54, s55
    v_add_u32 v2, s54, v2
    v_mul_u32_u24 v2, 1280, v2
    v_lshl_add_u32 v{VXE}, v4, 4, v2
    v_xor_b32 v{VXO}, 64, v{VXE}
    v_and_b32 v4, 15, v0
    v_lshlrev_b32 v5, 2, v3
    v_xor_b32 v4, v4, v5
    v_mul_u32_u24 v5, 3840, v3
    v_lshl_add_u32 v{VW}, v4, 4, v5
    s_lshl_b32 s54, s{S_CB}, 8
    v_add_u32 v{VW}, s54, v{VW}
    """)
    def dma_stage(st):
        so = slot_of(st) * 32768
        for i in range(4):
            A(f"""
            s_add_u32 m0, s49, {so + i*1024}
            s_add_u32 s54, s51, {i*10240}
            buffer_load_dwordx4 v{VXO if i % 2 else VXE}, s[{R_A}:{R_A+3}], s54 offen lds""")
        for i in range(4):
            A(f"""
            s_add_u32 m0, s49, {so + 16384 + i*1024}
            s_add_u32 s54, s52, {i*15360}
            buffer_load_dwordx4 v{VW}, s[{R_B}:{R_B+3}], s54 offen lds""")
        A("""
        s_add_u32 s50, s50, 1
        s_cmp_eq_u32 s50, 10
        s_cselect_b32 s50, 0, s50
        s_lshl_b32 s51, s50, 7
        s_mul_i32 s52, s50, 245760
        s_add_u32 s52, s52, s53""")
    for st in range(3): dma_stage(st)
    if EARLY: A("s_barrier")
    A("s_waitcnt vmcnt(16)\ns_barrier")
    stp(A, "b0")
    for s_ in range(1, 8):
        A("s_waitcnt vmcnt(8)\ns_barrier")
        dma_stage(s_ + 2)
    A("s_waitcnt vmcnt(8)\ns_barrier")
    A("s_waitcnt vmcnt(0)\ns_barrier")
    stp(A, "b9")
    A(f"s_branch {L_heads}")

    A.mark("main")
    A.label(L_nog)
    if EARLY: A("s_barrier")
    L_nz = A.newlabel("nz")
    A(f"""
    s_cmp_lg_u32 s2, {ZERO_WG}
    s_cbranch_scc1 {L_nz}
    v_lshlrev_b32 v2, 4, v0
    v_add_u32 v2, {SYNC}, v2
    v_mov_b32 v4, 0
    v_mov_b32 v5, 0
    v_mov_b32 v6, 0
    v_mov_b32 v7, 0
    s_mul_i32 s54, s{S_WAVE}, {5*1024}
    """)
    for i in range(5):
        A(f"buffer_store_dwordx4 v[4:7], v2, s[{R_WS}:{R_WS+3}], s54 offen sc1\ns_add_u32 s54, s54, 1024")
    A("s_waitcnt vmcnt(0)")
    lds_arrive_last(A, C_KV + 8, 8, L_nz, 2, 3)
    A(f"""
    v_mov_b32 v2, 0
    v_mov_b32 v3, 1
    s_mov_b64 exec, 1
    global_store_dword v2, v3, s[{P_DBG}:{P_DBG+1}] sc1
    s_mov_b64 exec, -1
    {L_nz}:
    s_branch L_nogtask
    L_nogdone:
    """)
    A(f"""
    v_mov_b32 v2, {CNT + C_QKV}
    v_mov_b32 v3, 4
    ds_write_b32 v2, v3
    """)

    A.label(L_heads)
    Q1, Q2 = 4, 8
    O = 16
    S = [32, 48]
    P = [64, 72]
    KA, KB, V0, V1 = 80, 84, 88, 92
    AK = [96, 99]; AK2 = [97, 100]; AV = [98, 101]
    KA0, KB0 = 104, 108
    WOV = 120
    VG = [126, 127, 128]; VKP, VKS, VVF = 129, 130, 131
    def gather_setup(VG=VG, VKP=VKP, VKS=VKS, VVF=VVF, WOV=WOV):
        A(f"""
        s_lshl_b32 s43, s{S_XCD}, 2
        s_lshr_b32 s44, s{S_J}, 3
        s_add_u32 s43, s43, s44        ; head
        s_and_b32 s44, s{S_J}, 7       ; qb
        s_lshl_b32 s46, s44, 3
        s_add_u32 s46, s46, s{S_WAVE}  ; q tile
        s_mov_b32 s47, {hex(HEADWORD[0])}
        """)
        for h in range(1, 32):
            A(f"s_cmp_eq_u32 s43, {h}\ns_cmov_b32 s47, {hex(HEADWORD[h])}")
        for k, dst in enumerate((50, 51, 52)):
            A(f"""
            s_bfe_u32 s54, s47, {hex((3 << 16) | (7*k))}
            s_bfe_u32 s55, s47, {hex((4 << 16) | (7*k + 3))}
            s_mul_i32 s54, s54, {SEC}
            s_lshl_b32 s55, s55, 9
            s_add_u32 s{dst}, s54, s55""")
        A(f"""
        v_and_b32 v3, 31, v0           ; n
        v_lshrrev_b32 v12, 5, v0       ; h
        v_lshlrev_b32 v13, 4, v3       ; n*16
        v_cmp_eq_u32 vcc, 0, v12
        v_mov_b32 v14, s50
        v_mov_b32 v15, s51
        v_cndmask_b32 v14, v15, v14, vcc
        v_add_u32 v{VKP}, v14, v13
        s_and_b32 s54, s43, 1
        s_lshl_b32 s54, s54, 3
        s_add_u32 s54, s54, s52
        v_add_u32 v{VKS}, s54, v13
        v_add_u32 v{VG[0]}, {5*SEC + 2*TB}, v{VKP}
        s_mul_i32 s53, s43, 20
        s_add_u32 s45, s53, 19
        s_lshr_b32 s45, s45, 7
        s_add_u32 s45, s45, 10
        s_mul_i32 s45, s45, {SEC}
        s_add_u32 s45, s45, 8192
        """)
        def vchunk(dst, seg_v, m_v):
            A(f"""
            v_add_u32 v5, s53, v{m_v}          ; F
            v_lshrrev_b32 v6, 7, v5
            v_add_u32 v6, 10, v6
            v_mul_u32_u24 v6, {SEC // 64}, v6
            v_lshlrev_b32 v6, 6, v6
            v_bfe_u32 v7, v5, 5, 2
            v_lshlrev_b32 v7, 10, v7
            v_add_u32 v6, v6, v7
            v_and_b32 v7, 31, v5
            v_lshl_add_u32 v6, v7, 4, v6
            v_lshrrev_b32 v7, 1, v{seg_v}
            v_lshl_add_u32 v6, v7, 12, v6
            v_and_b32 v7, 1, v{seg_v}
            v_lshl_add_u32 v6, v7, 9, v6
            v_subrev_u32 v7, 20, v{m_v}
            v_and_b32 v7, 3, v7
            v_lshlrev_b32 v7, 4, v7
            v_add_u32 v7, s45, v7
            v_cmp_gt_u32 vcc, 20, v{m_v}
            s_nop 1
            v_cndmask_b32 v{dst}, v7, v6, vcc
            """)
        A("""
        v_cmp_gt_u32 vcc, 56, v0
        v_subrev_u32 v8, 32, v0
        v_subrev_u32 v9, 56, v0
        v_cndmask_b32 v8, v9, v8, vcc          ; m
        v_mov_b32 v9, 1
        v_mov_b32 v10, 0
        v_cndmask_b32 v9, v9, v10, vcc         ; seg
        """)
        vchunk(11, 9, 8)
        A(f"""
        v_add_u32 v6, s52, v13
        v_add_u32 v6, {5*SEC + 2*TB}, v6
        v_cmp_gt_u32 vcc, 32, v0
        s_nop 1
        v_cndmask_b32 v{VG[1]}, v11, v6, vcc
        v_cmp_gt_u32 vcc, 16, v0
        v_cmp_gt_u32 s[54:55], 40, v0
        v_subrev_u32 v8, 40, v0
        v_subrev_u32 v10, 16, v0
        v_cndmask_b32 v8, v8, v10, s[54:55]
        v_add_u32 v10, 8, v0
        v_cndmask_b32 v8, v8, v10, vcc         ; m
        v_mov_b32 v9, 3
        v_mov_b32 v10, 2
        v_cndmask_b32 v9, v9, v10, s[54:55]
        v_mov_b32 v10, 1
        v_cndmask_b32 v9, v9, v10, vcc         ; seg
        """)
        vchunk(VG[2], 9, 8)
        A("v_mov_b32 v8, v3\nv_mov_b32 v9, v12")
        vchunk(VVF, 9, 8)
        srd(A, R_A, P_WO, 640 * 640 * 2)
        A(f"s_and_b32 s52, s{S_J}, 7\ns_mul_i32 s52, s52, 160")
        for b in range(5):
            A(f"""
            v_add_u32 v5, {64*b}, v0
            v_mul_u32_u24 v6, 52429, v5
            v_lshrrev_b32 v6, 19, v6
            v_mul_u32_u24 v7, 10, v6
            v_sub_u32 v7, v5, v7
            v_mul_u32_u24 v6, 1280, v6
            v_lshl_add_u32 v6, v7, 4, v6
            v_add_u32 v{WOV+b}, s52, v6""")

    gather_setup()
    A(f"""
    s_mul_i32 s53, s{S_WAVE}, 5120
    s_mul_i32 s62, s{S_WAVE}, 40960
    s_mov_b32 s60, 0
    v_lshlrev_b32 v2, 4, v0
    v_mul_u32_u24 v13, 384, v12
    v_lshl_add_u32 v13, v3, 4, v13
    v_add_u32 v{AV[0]}, 1536, v13
    v_mov_b32 v{AK[0]}, v2
    s_and_b32 s54, s43, 1
    s_lshl_b32 s54, s54, 3
    s_add_u32 s54, s54, 1024
    v_lshlrev_b32 v1, 4, v3
    v_add_u32 v{AK2[0]}, s54, v1
    v_add_u32 v{AV[1]}, {CHUNK}, v{AV[0]}
    v_add_u32 v{AK[1]}, {CHUNK}, v{AK[0]}
    v_add_u32 v{AK2[1]}, {CHUNK}, v{AK2[0]}
    v_cmp_lt_u32 vcc, 20, v3
    v_mov_b32 v5, 0x30000
    v_mov_b32 v{Q2+2}, 0
    v_cndmask_b32 v{AV[0]}, v{AV[0]}, v5, vcc
    v_cndmask_b32 v{AV[1]}, v{AV[1]}, v5, vcc
    v_mov_b32 v{Q2+3}, 0
    v_mov_b32 v{KB+2}, 0
    v_mov_b32 v{KB+3}, 0
    v_mov_b32 v{KB0+2}, 0
    v_mov_b32 v{KB0+3}, 0
    v_mov_b32 v164, 0x7ff00000
    s_mul_i32 s45, s46, {TB}
    s_mul_i32 s49, s{S_WAVE}, {REC}
    s_mul_i32 s50, s{S_WAVE}, {TB}
    """)
    stp(A, "hset")
    L_gow = A.newlabel("gow"); L_go = A.newlabel("go")
    A(f"""
    s_cmp_lg_u32 s{S_WAVE}, 0
    s_cbranch_scc1 {L_gow}
    """)
    lds_wait(A, C_QKV, 5, 6, val=4)
    lds_wait(A, C_INIT, 5, 6)
    if E("NOGATE", 0):
        Lg = A.newlabel("gate")
        A(f"s_cmp_lt_u32 s{S_CB}, 15\ns_cbranch_scc1 {Lg}")
        lds_wait(A, C_UOK, 5, 6, sleep=8)
        A.label(Lg)
    A(f"""
    s_mul_i32 s54, s43, 5
    s_add_u32 s55, s54, 4
    s_lshr_b32 s54, s54, 5             ; c0
    s_lshr_b32 s55, s55, 5             ; c1
    v_bfe_u32 v5, v0, 4, 1
    v_cmp_eq_u32 vcc, 1, v5
    v_mov_b32 v6, s54
    v_mov_b32 v7, s55
    v_cndmask_b32 v6, v6, v7, vcc      ; c0 / c1
    v_lshrrev_b32 v5, 5, v0
    v_mul_u32_u24 v5, 5, v5
    v_add_u32 v5, v5, v6
    v_add_u32 v6, 10, v6
    v_and_b32 v7, 15, v0
    v_lshl_add_u32 v5, v5, 4, v7
    v_lshl_add_u32 v6, v6, 4, v7
    v_lshlrev_b32 v5, 7, v5
    v_lshlrev_b32 v6, 7, v6
    v_add_u32 v5, {SYNC + 128*L_QF}, v5
    v_add_u32 v6, {SYNC + 128*L_QF}, v6
    """)
    poll2(A, 5, 6, 64, 7, 8, E("PS_QKV", 2))
    lds_set(A, C_GO, 5, 6)
    A(f"s_branch {L_go}")
    A.label(L_gow)
    lds_wait(A, C_GO, 5, 6, sleep=E("SL_GO", 1))
    A.label(L_go)
    stp(A, "go")
    A(f"""
    buffer_load_dwordx4 {v(Q1,4)}, v{VKP}, s[{R_WS}:{R_WS+3}], s45 offen{SC}
    buffer_load_dwordx2 {v(Q2,2)}, v{VKS}, s[{R_WS}:{R_WS+3}], s45 offen{SC}
    s_mov_b32 s48, {5*SEC}
    buffer_load_dwordx4 {v(KA0,4)}, v{VKP}, s[{R_WS}:{R_WS+3}], s48 offen{SC}
    buffer_load_dwordx2 {v(KB0,2)}, v{VKS}, s[{R_WS}:{R_WS+3}], s48 offen{SC}
    s_mov_b32 s48, {5*SEC + TB}
    buffer_load_dwordx4 {v(KA,4)}, v{VKP}, s[{R_WS}:{R_WS+3}], s48 offen{SC}
    buffer_load_dwordx2 {v(KB,2)}, v{VKS}, s[{R_WS}:{R_WS+3}], s48 offen{SC}
    """)
    def kv_piece(chunk, i):
        slot = chunk % 2; rr, part = divmod(i, 3)
        return f"""
        s_add_u32 m0, s49, {slot*CHUNK + rr*8*REC + part*1024}
        s_add_u32 s51, s50, {(chunk*16 + rr*8)*TB}
        buffer_load_dwordx4 v{VG[part]}, s[{R_WS}:{R_WS+3}], s51 offen{SC} lds"""
    for i in range(6): A(kv_piece(0, i))
    if not E("C1LATE", 1):
        for i in range(6): A(kv_piece(1, i))
    A(f"""
    v_cmp_gt_u32 vcc, 32, v0
    s_waitcnt vmcnt({0 if E("C1LATE", 1) else 6})
    s_nop 0
    v_cndmask_b32 v{Q2}, 0, v{Q2}, vcc
    v_cndmask_b32 v{Q2+1}, 0, v{Q2+1}, vcc
    """)
    stp(A, "kvok")
    lds_add(A, C_KV, 12, 13)
    lds_wait(A, C_KV, 12, 13, val=8, sleep=0)
    stp(A, "att0")

    def wo_piece(kind, b):
        if kind == 0:
            return f"""
            s_add_u32 m0, s53, {WO_A + b*1024}
            s_nop 0
            buffer_load_dwordx4 v{WOV+b}, s[{R_A}:{R_A+3}], s62 offen lds"""
        if kind == 2:
            return f"""
            s_add_u32 m0, s53, {b*1024}
            s_add_u32 s51, s62, {WO_BROW*1280}
            buffer_load_dwordx4 v{WOV+b}, s[{R_A}:{R_A+3}], s51 offen lds"""
        lab = A.newlabel("wos")
        if kind == 1: lim, ldso, go = 3, WO_A + 8*5120, 8*40960
        else: lim, ldso, go = (2 if b < 2 else 1), 8*5120, WO_BROW*1280 + 8*40960
        return f"""
            s_cmp_ge_u32 s{S_WAVE}, {lim}
            s_cbranch_scc1 {lab}
            s_add_u32 m0, s53, {ldso + b*1024}
            s_add_u32 s51, s62, {go}
            buffer_load_dwordx4 v{WOV+b}, s[{R_A}:{R_A+3}], s51 offen lds
            {lab}:"""
    def qk2(Sd, Kr):
        if E("K8", 1): return f"v_mfma_f32_32x32x8bf16_1k {v(Sd,16)}, {v(Kr,2)}, {v(Q2,2)}, {v(Sd,16)}"
        return f"v_mfma_f32_32x32x16_bf16 {v(Sd,16)}, {v(Kr,4)}, {v(Q2,4)}, {v(Sd,16)}"
    PZ, PQ, PO = 132, 148, 164
    def post_task(skip):
        L_t3 = A.newlabel("t3"); L_tgo = A.newlabel("tgo")
        A(f"""
        s_cmp_eq_u32 s{S_WAVE}, 0
        s_cbranch_scc1 {skip}
        s_cmp_ge_u32 s{S_WAVE}, 4
        s_cbranch_scc1 {skip}
        s_cmp_eq_u32 s{S_WAVE}, 3
        s_cbranch_scc1 {L_t3}
        s_lshl_b32 s56, s2, 1
        s_sub_u32 s57, s{S_WAVE}, 1
        s_add_u32 s56, s56, s57
        s_branch {L_tgo}
        {L_t3}:
        s_cmp_ge_u32 s2, 128
        s_cbranch_scc1 {skip}
        s_add_u32 s56, s2, 512
        {L_tgo}:
        """)
    def post_probe():
        A(f"""
        v_min_u32 v12, 7, v0
        v_lshlrev_b32 v12, 7, v12
        v_add_u32 v12, {SYNC + 128*(FLG + L_Z)}, v12
        global_load_dword v166, v12, s[{P_WS}:{P_WS+1}] sc1
        """)
    def post_prefetch():
        Ls = A.newlabel("pps"); Lok = A.newlabel("ppok")
        post_task(Ls)
        A(f"""
        v_cmp_le_u32 vcc, 1, v166
        s_mul_i32 s57, s56, 52429
        s_lshr_b32 s57, s57, 19
        s_mul_i32 s58, s57, 10
        s_sub_u32 s58, s56, s58
        s_cmp_eq_u64 vcc, -1
        s_cbranch_scc1 {Lok}
        """)
        poll_flags(A, L_Z, 8, 12, 13, 14)
        A.label(Lok)
        srd(A, R_B, P_BQ, 2048 * 640 * 2)
        A(f"""
        v_and_b32 v12, 7, v0
        v_lshrrev_b32 v13, 3, v0
        s_lshl_b32 s54, s58, 6
        v_lshl_add_u32 v12, v12, 3, s54
        s_lshl_b32 s55, s57, 5
        v_lshl_add_u32 v13, v13, 2, s55
        v_mul_u32_u24 v14, 1280, v13
        v_lshl_add_u32 v14, v12, 1, v14
        v_mul_u32_u24 v15, 2560, v13
        v_lshl_add_u32 v15, v12, 1, v15
        v_add_u32 v{PO}, 1280, v15
        v_lshlrev_b32 v15, 12, v12
        v_lshl_add_u32 v15, v13, 1, v15
        v_add_u32 v{PO+1}, {WS_Z}, v15
        """)
        for j in range(4):
            A(f"buffer_load_dwordx4 {v(PQ+4*j,4)}, v14, s[{R_B}:{R_B+3}], 0 offen offset:{1280*j}")
        for i in range(8):
            A(f"s_mov_b32 s54, {i*4096}")
            A(f"buffer_load_dwordx2 {v(PZ+2*i,2)}, v{PO+1}, s[{R_WS}:{R_WS+3}], s54 offen{SC}")
        A.label(Ls)
    A(f"v_mfma_f32_32x32x16_bf16 {v(S[0],16)}, {v(KA0,4)}, {v(Q1,4)}, 0")
    A(qk2(S[0], KB0))
    A("s_nop 7\ns_nop 7")
    for J in range(64):
        c = J // 16; slot = c % 2; j = J % 16
        Sc, Sn = S[J % 2], S[(J + 1) % 2]
        Pc, Pp = P[J % 2], P[(J + 1) % 2]
        off = j * REC
        if j == 0 and J > 0:
            stp(A, f"attpre{J}")
            if J == 48 and E("POSTPF", 1): post_probe()
            A(f"s_waitcnt vmcnt({5 if (J == 32 and not E('SRV', 1)) else 0}) lgkmcnt(0)\ns_barrier")
            stp(A, f"attb{J}")
            if J == 48 and E("POSTPF", 1): post_prefetch()
        EX = lambda i: f"v_exp_f32 v{Sc+i}, v{Sc+i}"
        CV = lambda i: f"v_cvt_pk_bf16_f32 v{Pc+i}, v{Sc+2*i}, v{Sc+2*i+1}"
        G = [(EX(0),EX(1),EX(2),EX(3),CV(0),CV(1)), (EX(4),EX(5),EX(6),EX(7),CV(2),CV(3)), (EX(8),EX(9),EX(10),EX(11),CV(4),CV(5)), (EX(12),EX(13),EX(14),EX(15),CV(6),CV(7))]
        PJ = [int(x) for x in os.environ.get("PRIOJ", "0,9,13,15").split(",")]
        if j in PJ:
            A(f"s_setprio {3 - PJ.index(j)}")
        if J > 0 and j != 0: A("s_waitcnt lgkmcnt(2)")
        if J < 63: A(f"v_mfma_f32_32x32x16_bf16 {v(Sn,16)}, {v(KA,4)}, {v(Q1,4)}, 0")
        if J < 62: A(f"ds_read_b128 {v(KA,4)}, v{AK[slot]} offset:{off}")
        for x in G[0]: A(x)
        if J < 63: A(qk2(Sn, KB))
        if J < 62: A(f"ds_read_b64 {v(KB,2)}, v{AK2[slot]} offset:{off}")
        for x in G[1]: A(x)
        if J > 0:
            A("s_waitcnt lgkmcnt(2)" if J < 62 else "s_waitcnt lgkmcnt(0)")
            cc = "0" if J == 1 else v(O, 16)
            A(f"v_mfma_f32_32x32x16_bf16 {v(O,16)}, {v(V0,4)}, {v(Pp,4)}, {cc}")
        A(f"ds_read_b128 {v(V0,4)}, v{AV[slot]} offset:{off}")
        for x in G[2]: A(x)
        if J > 0: A(f"v_mfma_f32_32x32x16_bf16 {v(O,16)}, {v(V1,4)}, {v(Pp+4,4)}, {v(O,16)}")
        A(f"ds_read_b128 {v(V1,4)}, v{AV[slot]} offset:{off + 768}")
        if E("NODMA", 0):
            for x in G[3]: A(x)
            continue
        if E("SRV", 1):
            if c == 0 and j < 6 and not E("SRV1", 0): A(kv_piece(1, j))
        else:
            if (c in (1, 2) or (c == 0 and E("C1LATE", 1))) and j < 6: A(kv_piece(c + 1, j))
            if c == 1 and 6 <= j < 11: A(wo_piece(0, j - 6))
            if c == 1 and 11 <= j < 16: A(wo_piece(1, j - 11))
            if c == 3 and 1 <= j < 6: A(wo_piece(2, j - 1))
            if c == 3 and 6 <= j < 11: A(wo_piece(3, j - 6))
        for x in G[3]: A(x)
    stp(A, "att1")
    Pl = P[63 % 2]
    A("s_waitcnt lgkmcnt(0)")
    A(f"v_mfma_f32_32x32x16_bf16 {v(O,16)}, {v(V0,4)}, {v(Pl,4)}, {v(O,16)}")
    A(f"v_mfma_f32_32x32x16_bf16 {v(O,16)}, {v(V1,4)}, {v(Pl+4,4)}, {v(O,16)}")
    A("s_setprio 0")
    L_fin = A.newlabel("fin"); L_slow = A.newlabel("slow"); L_odone = A.newlabel("odone")
    def addr_calc():
        A(f"""
        s_lshl_b32 s52, s43, 6
        s_add_u32 s52, s52, s46
        s_mul_i32 s52, s52, 1536
        s_add_u32 s52, s52, {WS_O}
        v_lshlrev_b32 v104, 4, v0
        """)
    addr_calc()
    A("s_nop 7")
    A.label(L_fin)
    A("s_nop 7")
    A(f"""
    v_mov_b32 v110, v{O+8}
    v_mov_b32 v111, v{O+8}
    s_nop 1
    v_permlane32_swap_b32 v110, v111
    s_nop 1
    v_rcp_f32 v112, v111
    s_nop 0
    """)
    for i in range(0, 12, 2):
        A(f"v_pk_mul_f32 {v(O+i,2)}, {v(O+i,2)}, v[112:113] op_sel_hi:[1,0]")
    A(f"""
    v_add_f32 v113, abs(v{O}), abs(v{O+1})
    v_add_f32 v114, abs(v{O+8}), abs(v{O+9})
    """)
    for i in range(2, 8): A(f"v_add_f32 v113, v113, abs(v{O+i})")
    A(f"""
    v_add_f32 v114, v114, abs(v{O+10})
    v_add_f32 v114, v114, abs(v{O+11})
    v_cmp_gt_u32 vcc, 32, v0
    v_mov_b32 v115, 0x21800000         ; 2^-60
    v_mov_b32 v116, 0x5d800000         ; 2^60
    v_cndmask_b32 v114, 0, v114, vcc
    v_add_f32 v113, v113, v114
    v_mov_b32 v114, 0x7f800000
    v_cmp_nlt_f32 s[54:55], v113, v114
    v_cmp_ngt_f32 s[56:57], v111, v115
    v_cmp_nlt_f32 vcc, v111, v116
    s_nop 1
    s_or_b64 s[54:55], s[54:55], s[56:57]
    s_or_b64 s[54:55], s[54:55], vcc
    s_cmp_lg_u64 s[54:55], 0
    s_cselect_b32 s61, 1, 0
    s_andn2_b32 s61, s61, s60
    s_cmp_lg_u32 s61, 0
    s_cbranch_scc1 {L_slow}
    """)
    for i in range(4): A(f"v_cvt_pk_bf16_f32 v{O+i}, v{O+2*i}, v{O+2*i+1}")
    A(f"""
    v_cvt_pk_bf16_f32 v{O+8}, v{O+8}, v{O+9}
    v_cvt_pk_bf16_f32 v{O+9}, v{O+10}, v{O+11}
    v_mov_b32 v{O+10}, 0
    v_mov_b32 v{O+11}, 0
    buffer_store_dwordx4 {v(O,4)}, v104, s[{R_WS}:{R_WS+3}], s52 offen{SC}
    s_mov_b32 exec_hi, 0
    buffer_store_dwordx4 {v(O+8,4)}, v104, s[{R_WS}:{R_WS+3}], s52 offen offset:1024{SC}
    s_mov_b64 exec, -1
    s_branch {L_odone}
    """)
    A.label(L_slow)
    L1 = A.newlabel("p1"); L2 = A.newlabel("p2")
    A(f"""
    s_mov_b32 s60, 1
    v_mov_b32 v110, 0xff800000
    s_mov_b32 s52, 0
    {L1}:
    s_mul_i32 s63, s52, {TB}
    s_add_u32 s63, s63, {5*SEC}
    buffer_load_dwordx4 {v(KA,4)}, v{VKP}, s[{R_WS}:{R_WS+3}], s63 offen{SC}
    buffer_load_dwordx2 {v(KB,2)}, v{VKS}, s[{R_WS}:{R_WS+3}], s63 offen{SC}
    s_waitcnt vmcnt(0)
    v_mfma_f32_32x32x16_bf16 {v(S[0],16)}, {v(KA,4)}, {v(Q1,4)}, 0
    v_mfma_f32_32x32x16_bf16 {v(S[0],16)}, {v(KB,4)}, {v(Q2,4)}, {v(S[0],16)}
    s_nop 7
    s_nop 7
    """)
    for i in range(0, 16, 2): A(f"v_max3_f32 v110, v110, v{S[0]+i}, v{S[0]+i+1}")
    A(f"""
    s_add_u32 s52, s52, 1
    s_cmp_lt_u32 s52, 64
    s_cbranch_scc1 {L1}
    v_mov_b32 v108, v110
    v_mov_b32 v109, v110
    s_nop 1
    v_permlane32_swap_b32 v108, v109
    s_nop 1
    v_max_f32 v110, v108, v109
    v_and_b32 v3, 31, v0
    v_cmp_gt_u32 vcc, 20, v3
    v_add_u32 v108, 4096, v{VVF}
    s_nop 0
    v_cndmask_b32 v109, v{VVF}, v108, vcc
    """)
    for i in range(16): A(f"v_mov_b32 v{O+i}, 0")
    A("s_mov_b32 s52, 0")
    A.label(L2)
    A(f"""
    s_mul_i32 s54, s52, {TB}
    s_add_u32 s63, s54, {5*SEC}
    buffer_load_dwordx4 {v(KA,4)}, v{VKP}, s[{R_WS}:{R_WS+3}], s63 offen{SC}
    buffer_load_dwordx2 {v(KB,2)}, v{VKS}, s[{R_WS}:{R_WS+3}], s63 offen{SC}
    buffer_load_dwordx4 {v(V0,4)}, v{VVF}, s[{R_WS}:{R_WS+3}], s54 offen{SC}
    buffer_load_dwordx4 {v(V1,4)}, v109, s[{R_WS}:{R_WS+3}], s54 offen{SC}
    s_waitcnt vmcnt(0)
    v_mfma_f32_32x32x16_bf16 {v(S[0],16)}, {v(KA,4)}, {v(Q1,4)}, 0
    v_mfma_f32_32x32x16_bf16 {v(S[0],16)}, {v(KB,4)}, {v(Q2,4)}, {v(S[0],16)}
    s_nop 7
    s_nop 7
    """)
    for i in range(16): A(f"v_sub_f32 v{S[0]+i}, v{S[0]+i}, v110")
    for i in range(16): A(f"v_exp_f32 v{S[0]+i}, v{S[0]+i}")
    A("s_nop 0")
    for i in range(8): A(f"v_cvt_pk_bf16_f32 v{P[0]+i}, v{S[0]+2*i}, v{S[0]+2*i+1}")
    A(f"""
    s_nop 1
    v_mfma_f32_32x32x16_bf16 {v(O,16)}, {v(V0,4)}, {v(P[0],4)}, {v(O,16)}
    v_mfma_f32_32x32x16_bf16 {v(O,16)}, {v(V1,4)}, {v(P[0]+4,4)}, {v(O,16)}
    s_add_u32 s52, s52, 1
    s_cmp_lt_u32 s52, 64
    s_cbranch_scc1 {L2}
    s_nop 7
    """)
    addr_calc()
    A(f"s_branch {L_fin}")

    A.label(L_odone)
    AD = 80; OA = 88; VOUT, VRED = 91, 92; ACC3 = 96
    OFS = [28, 32, 36, 40, 44]
    WFS = [[116, 120, 124, 128, 132], [136, 140, 144, 148, 152], [48, 52, 56, 60, 64], [68, 72, 76, 156, 160]]
    A(f"""
    s_lshl_b32 s54, s{S_XCD}, 2
    s_lshr_b32 s55, s{S_J}, 3
    s_add_u32 s54, s54, s55        ; tb
    s_lshl_b32 s54, s54, 2
    s_and_b32 s55, s{S_WAVE}, 3
    s_add_u32 s54, s54, s55        ; T
    s_lshr_b32 s45, s54, 1
    s_mul_i32 s45, s45, 1536
    s_and_b32 s57, s54, 1
    s_lshl_b32 s57, s57, 8
    s_add_u32 s45, s45, s57
    s_add_u32 s45, s45, {WS_O}
    s_lshr_b32 s57, s{S_WAVE}, 2
    s_mul_i32 s57, s57, {16*64*1536}
    s_add_u32 s62, s45, s57
    v_lshrrev_b32 v5, 4, v0            ; kg
    v_and_b32 v6, 15, v0
    v_lshlrev_b32 v6, 4, v6
    """)
    for c in range(3):
        A(f"""
        v_add_u32 v8, {4*c}, v5
        v_mul_u32_u24 v9, 21846, v8
        v_lshrrev_b32 v9, 16, v9
        v_mul_u32_u24 v10, 3, v9
        v_sub_u32 v10, v8, v10
        v_mul_u32_u24 v9, 1536, v9
        v_lshlrev_b32 v9, 6, v9
        v_lshl_add_u32 v9, v10, 9, v9
        v_add_u32 v{OA+c}, v9, v6""")
    A(f"""
    v_and_b32 v3, 15, v0
    s_lshl_b32 s55, s54, 4
    v_add_u32 v3, s55, v3
    v_mul_u32_u24 v3, 2560, v3
    v_lshrrev_b32 v4, 4, v0
    v_lshl_add_u32 v3, v4, 3, v3
    s_and_b32 s55, s{S_J}, 7
    s_mul_i32 s55, s55, 160
    v_add_u32 v{VOUT}, s55, v3
    v_lshlrev_b32 v3, 4, v0
    s_and_b32 s55, s{S_WAVE}, 3
    s_mul_i32 s55, s55, 5120
    s_add_u32 s55, s55, {RED}
    v_add_u32 v{VRED}, s55, v3
    v_bfe_u32 v6, v0, 2, 2             ; r
    v_and_b32 v7, 3, v0
    v_lshlrev_b32 v7, 3, v7            ; 8*c4
    s_mov_b32 s59, {WO_A}
    """)
    def row_addr(dst0, s, region):
        A(f"""
        v_add_u32 v8, {4*s}, v5
        v_mul_u32_u24 v9, 21846, v8
        v_lshrrev_b32 v9, 16, v9
        v_mul_u32_u24 v10, 3, v9
        v_sub_u32 v10, v8, v10
        v_mul_u32_u24 v9, 20, v9
        v_add_u32 v9, v9, v6
        v_lshlrev_b32 v11, 2, v10
        v_cmp_eq_u32 vcc, 2, v10
        v_add_u32 v12, 8, v11
        v_lshlrev_b32 v13, 1, v11
        v_cndmask_b32 v11, v11, v13, vcc
        v_add_u32 v11, v11, v9
        v_add_u32 v12, v12, v9
        """)
        for hh, rv in enumerate((11, 12)):
            if region == "A":
                A(f"v_mul_u32_u24 v13, 160, v{rv}\nv_add3_u32 v{dst0+hh}, v13, v7, s59")
            elif region == "B":
                A(f"v_subrev_u32 v13, {WO_BROW}, v{rv}\nv_mul_u32_u24 v13, 160, v13\nv_add_u32 v{dst0+hh}, v13, v7")
            else:
                A(f"""
                v_mul_u32_u24 v13, 160, v{rv}
                v_add3_u32 v14, v13, v7, s59
                v_subrev_u32 v13, {WO_BROW*160}, v13
                v_add_u32 v13, v13, v7
                v_cmp_gt_u32 vcc, {WO_BROW}, v{rv}
                s_nop 1
                v_cndmask_b32 v{dst0+hh}, v13, v14, vcc""")
    L_ahi = A.newlabel("ahi"); L_adone = A.newlabel("adone")
    stp(A, "ostored")
    A("s_waitcnt vmcnt(0)")
    stp(A, "odrained")
    L_os = A.newlabel("os")
    lds_arrive_last(A, C_O, 8, L_os, 2, 3)
    A(f"s_add_u32 s65, s44, {L_O}")
    global_arrive(A, "s65", 32, 2, 3)
    A.label(L_os)
    A(f"""
    s_cmp_ge_u32 s{S_WAVE}, 4
    s_cbranch_scc1 {L_ahi}
    """)
    for c in range(3): row_addr(AD + 2*c, c, "A")
    A(f"s_branch {L_adone}")
    A.label(L_ahi)
    row_addr(AD + 6, 12, None)
    for c in range(3): row_addr(AD + 2*c, 13 + c, "B")
    A.label(L_adone)
    srd(A, R_B, P_OUT, 2048 * 1280 * 2)
    L_p3a = A.newlabel("p3a"); L_post = A.newlabel("post"); L_wb = A.newlabel("wb")
    post_task(L_wb)
    for j in range(4):
        for q in range(4):
            za = PZ + 2*(2*q) + j//2; zb = PZ + 2*(2*q+1) + j//2
            if j % 2 == 0:
                A(f"v_lshlrev_b32 v48, 16, v{za}\nv_lshlrev_b32 v49, 16, v{zb}")
            else:
                A(f"v_and_b32 v48, 0xffff0000, v{za}\nv_and_b32 v49, 0xffff0000, v{zb}")
            qq = PQ + 4*j + q
            A(f"v_lshlrev_b32 v50, 16, v{qq}\nv_and_b32 v51, 0xffff0000, v{qq}")
            A(f"v_pk_mul_f32 v[48:49], v[48:49], v[50:51]")
            A(f"v_cvt_pk_bf16_f32 v{52+4*j+q}, v48, v49")
        A(f"s_mov_b32 s54, {j*2560}")
        A(f"buffer_store_dwordx4 {v(52+4*j,4)}, v{PO}, s[{R_B}:{R_B+3}], s54 offen{os.environ.get('OUTB', '')}")
    A.label(L_wb)
    A("s_barrier")
    def sel_of(hi):
        if not hi: return lambda st: (AD + 2*(st % 3), (st // 3) * 12800)
        return lambda st: (AD + 6, 0) if st == 0 else (AD + 2*((st - 1) % 3), ((st - 1) // 3) * 12800)
    def rd(hi, st):
        base, so = sel_of(hi)(st); r = []
        for T in range(5):
            r.append(f"ds_read_b64_tr_b16 {v(WFS[st % 4][T],2)}, v{base} offset:{so + 32*T}")
            r.append(f"ds_read_b64_tr_b16 {v(WFS[st % 4][T]+2,2)}, v{base+1} offset:{so + 32*T}")
        return r
    PD = E("P3D", 3)
    assert PD <= 3
    def o_load(st):
        A(f"s_add_u32 s58, s62, {(st//3)*4*64*1536}")
        A(f"buffer_load_dwordx4 {v(OFS[st % 5],4)}, v{OA + st % 3}, s[{R_WS}:{R_WS+3}], s58 offen{SC}")
    def p3_pre(hi):
        for st in range(4):
            for r in rd(hi, st): A(r)
            A("s_waitcnt lgkmcnt(4)")
    def p3_wait_o(poller):
        if poller:
            Lnp = A.newlabel("np")
            A(f"""
            s_cmp_eq_u32 s{S_WAVE}, 0
            s_cbranch_scc0 {Lnp}
            s_lshl_b32 s54, s{S_XCD}, 7
            s_add_u32 s54, s54, {SYNC + 128*(FLG + L_O)}
            v_mov_b32 v2, s54
            v_cmp_eq_u32 vcc, 0, v0
            v_mov_b32 v3, 1
            s_nop 0
            v_cndmask_b32 v4, 0, v3, vcc
            """)
            poll(A, 2, 4, 3, sleep=E("PS_O", 2))
            stp(A, "ook")
            A.label(Lnp)
        stp(A, "prep3a")
        A("s_waitcnt lgkmcnt(0)\ns_barrier")
        stp(A, "p3a")
        for st in range(PD + 1): o_load(st)
    def p3_loop(hi):
        for st in range(12):
            A(f"s_waitcnt vmcnt({min(PD, 11-st)})" + (" lgkmcnt(10)" if st >= 4 and st < 9 else (" lgkmcnt(0)" if st >= 9 else "")))
            if st + PD + 1 < 12: o_load(st + PD + 1)
            if st == 0: stp(A, "p3first")
            if st == 6: stp(A, "p3mid")
            rs = rd(hi, st + 4) if st + 4 < 12 else []
            for T in range(5):
                cc = "0" if st == 0 else v(ACC3+4*T, 4)
                A(f"v_mfma_f32_16x16x32_bf16 {v(ACC3+4*T,4)}, {v(WFS[st % 4][T],4)}, {v(OFS[st % 5],4)}, {cc}")
                for r in rs[2*T:2*T+2]: A(r)
        A("s_nop 7")
    L_hi = A.newlabel("p3hi")
    A(f"""
    s_cmp_ge_u32 s{S_WAVE}, 4
    s_cbranch_scc1 {L_hi}
    """)
    p3_pre(False)
    p3_wait_o(True)
    p3_loop(False)
    stp(A, "p3loop")
    A("s_barrier")
    stp(A, "p3red")
    for T in range(5): A(f"ds_read_b128 {v(32+4*T,4)}, v{VRED} offset:{1024*T}")
    A("s_waitcnt lgkmcnt(0)")
    for T in range(5):
        d = ACC3 + 4*T
        A(f"v_pk_add_f32 {v(d,2)}, {v(d,2)}, {v(32+4*T,2)}")
        A(f"v_pk_add_f32 {v(d+2,2)}, {v(d+2,2)}, {v(34+4*T,2)}")
        A(f"v_cvt_pk_bf16_f32 v{d}, v{d}, v{d+1}")
        A(f"v_cvt_pk_bf16_f32 v{d+1}, v{d+2}, v{d+3}")
        A(f"buffer_store_dwordx2 {v(d,2)}, v{VOUT}, s[{R_B}:{R_B+3}], 0 offen offset:{32*T}{os.environ.get('OUTA', '')}")
    prof_dump(A, 0, wsptr=P_WS)
    A("s_endpgm")
    A.label(L_hi)
    p3_pre(True)
    p3_wait_o(False)
    p3_loop(True)
    for T in range(5): A(f"ds_write_b128 v{VRED}, {v(ACC3+4*T,4)} offset:{1024*T}")
    A("s_waitcnt lgkmcnt(0)\ns_barrier")
    prof_dump(A, 0, wsptr=P_WS)
    A("s_endpgm")

    A.mark("bw")
    A.label(L_bw)
    BK, BV, BW = 16, 44, 60
    def b_setup(notask, chan_only):
        L2_ = A.newlabel("b2")
        A(f"""
        s_cmp_eq_u32 s{S_WAVE}, 10
        s_cbranch_scc1 {L2_}
        s_lshl_b32 s56, s2, 1
        s_sub_u32 s57, s{S_WAVE}, 8
        s_add_u32 s56, s56, s57
        """)
        b_addr()
        Lc = A.newlabel("bcont")
        A(f"""
        s_branch {Lc}
        {L2_}:
        s_cmp_ge_u32 s2, 128
        s_cbranch_scc1 {notask}
        s_add_u32 s56, s2, 512
        s_mov_b32 s65, 0
        s_branch {chan_only}
        {Lc}:
        """)
    def b_addr():
        A(f"""
        s_mul_i32 s57, s56, 52429
        s_lshr_b32 s57, s57, 19        ; tblk
        s_mul_i32 s58, s57, 10
        s_sub_u32 s58, s56, s58        ; dblk
        v_and_b32 v2, 7, v0            ; dg
        v_lshrrev_b32 v3, 3, v0        ; tg
        v_lshlrev_b32 v12, 6, v2
        v_lshl_add_u32 v12, v3, 3, v12
        s_lshl_b32 s54, s56, 12
        s_add_u32 s54, s54, {WS_U}
        v_add_u32 v12, s54, v12
        s_lshl_b32 s54, s58, 6
        v_lshl_add_u32 v2, v2, 3, s54  ; d0
        s_lshl_b32 s55, s57, 5
        v_lshl_add_u32 v3, v3, 2, s55  ; t0
        v_mul_u32_u24 v4, 1280, v3
        v_lshl_add_u32 v10, v2, 1, v4
        v_lshlrev_b32 v11, 3, v2
        v_subrev_u32 v5, 3840, v10
        v_subrev_u32 v6, 2560, v10
        v_subrev_u32 v7, 1280, v10
        """)
    def b_loads():
        srd(A, R_C, P_BK, 2048 * 640 * 2)
        A(f"""
        buffer_load_dwordx4 {v(BK,4)}, v5, s[{R_C}:{R_C+3}], 0 offen
        buffer_load_dwordx4 {v(BK+4,4)}, v6, s[{R_C}:{R_C+3}], 0 offen
        buffer_load_dwordx4 {v(BK+8,4)}, v7, s[{R_C}:{R_C+3}], 0 offen
        """)
        for j in range(4): A(f"buffer_load_dwordx4 {v(BK+12+4*j,4)}, v10, s[{R_C}:{R_C+3}], 0 offen offset:{1280*j}")
        srd(A, R_C, P_BV, 2048 * 640 * 2)
        for j in range(4): A(f"buffer_load_dwordx4 {v(BV+4*j,4)}, v10, s[{R_C}:{R_C+3}], 0 offen offset:{1280*j}")
        srd(A, R_C, P_SH, 640 * 4 * 2)
        for j in range(4): A(f"buffer_load_dwordx4 {v(BW+4*j,4)}, v11, s[{R_C}:{R_C+3}], 0 offen offset:{16*j}")
    def b_compute(q):
        KP, VP, WP, AC, OUT = 80, 94, 102, 110, 120
        for j in range(7):
            A(f"v_lshlrev_b32 v{KP+2*j}, 16, v{BK+4*j+q}\nv_and_b32 v{KP+1+2*j}, 0xffff0000, v{BK+4*j+q}")
        for t in range(4):
            A(f"v_lshlrev_b32 v{VP+2*t}, 16, v{BV+4*t+q}\nv_and_b32 v{VP+1+2*t}, 0xffff0000, v{BV+4*t+q}")
        for u in range(2):
            bb = BW + 4*q + 2*u
            A(f"v_lshlrev_b32 v{WP+u}, 16, v{bb}\nv_and_b32 v{WP+2+u}, 0xffff0000, v{bb}")
            A(f"v_lshlrev_b32 v{WP+4+u}, 16, v{bb+1}\nv_and_b32 v{WP+6+u}, 0xffff0000, v{bb+1}")
        for t in range(4):
            acc = AC + 2*t
            A(f"v_pk_mul_f32 {v(acc,2)}, {v(KP+2*(t+0),2)}, {v(WP+6,2)}")
            A(f"v_pk_fma_f32 {v(acc,2)}, {v(KP+2*(t+1),2)}, {v(WP+4,2)}, {v(acc,2)}")
            A(f"v_pk_fma_f32 {v(acc,2)}, {v(KP+2*(t+2),2)}, {v(WP+2,2)}, {v(acc,2)}")
            A(f"v_pk_fma_f32 {v(acc,2)}, {v(KP+2*(t+3),2)}, {v(WP,2)}, {v(acc,2)}")
            A(f"v_pk_mul_f32 {v(acc,2)}, {v(acc,2)}, {v(VP+2*t,2)}")
        for u in range(2):
            o = OUT + 4*q + 2*u
            A(f"v_cvt_pk_bf16_f32 v{o}, v{AC+u}, v{AC+2+u}\nv_cvt_pk_bf16_f32 v{o+1}, v{AC+4+u}, v{AC+6+u}")
        for u in range(2):
            o = OUT + 4*q + 2*u
            A(f"buffer_store_dwordx2 {v(o,2)}, v12, s[{R_WS}:{R_WS+3}], 0 offen offset:{(2*q+u)*512}{SC}")
    def init_load():
        A(f"v_mov_b32 v2, 0\nglobal_load_dword v9, v2, s[{P_DBG}:{P_DBG+1}] sc1")
    def u_publish(n):
        A(f"s_waitcnt vmcnt({n})\ns_mov_b32 s65, 0")
        Lok = A.newlabel("iok"); Lsk = A.newlabel("usk")
        A(f"""
        v_readfirstlane_b32 s66, v9
        s_nop 3
        s_cmp_lg_u32 s66, 0
        s_cbranch_scc1 {Lok}
        v_mov_b32 v2, 0
        v_mov_b32 v3, 1
        """)
        poll(A, 2, 3, 4, sleep=8, base=P_DBG)
        A.label(Lok)
        lds_set(A, C_INIT, 2, 3)
        A(f"s_cmp_ge_u32 s{S_CBK}, 15\ns_cselect_b32 s64, 10, 2")
        lds_arrive_last(A, C_U, "s64", Lsk, 2, 3)
        A(f"""
        s_and_b32 s66, s2, 7
        s_add_u32 s66, s66, {L_U}
        s_lshl_b32 s66, s66, 7
        s_add_u32 s66, s66, {SYNC}
        v_mov_b32 v10, s66
        v_mov_b32 v11, 1
        s_mov_b64 exec, 1
        global_atomic_add v11, v10, v11, s[{P_WS}:{P_WS+1}] sc0 sc1
        s_mov_b64 exec, -1
        s_mov_b32 s65, 1
        {Lsk}:
        """)
    def u_flag():
        L = A.newlabel("uf")
        A(f"""
        s_cmp_eq_u32 s65, 0
        s_cbranch_scc1 {L}
        s_waitcnt vmcnt(0)
        v_readfirstlane_b32 s66, v11
        s_nop 3
        s_cmp_lg_u32 s66, 31
        s_cbranch_scc1 {L}
        v_add_u32 v10, {128*40}, v10
        v_mov_b32 v11, 1
        s_mov_b64 exec, 1
        global_store_dword v10, v11, s[{P_WS}:{P_WS+1}] sc1
        s_mov_b64 exec, -1
        {L}:
        """)
    HR = 136
    def h_loads():
        srd(A, R_C, P_SK, 640 * 4096)
        A(f"""
        s_sub_u32 s57, s{S_WAVE}, 8
        s_mul_i32 s57, s57, {CONV_SZ}
        s_add_u32 s57, s57, {CONV_BASE}
        s_lshl_b32 s58, s56, 12
        v_lshlrev_b32 v13, 4, v0
        v_add_u32 v13, s58, v13
        v_subrev_u32 v14, 8, v13
        """)
        for p in range(4):
            if p == 0:
                A(f"buffer_load_dwordx2 {v(HR,2)}, v14, s[{R_C}:{R_C+3}], 0 offen")
            else:
                A(f"buffer_load_dwordx2 {v(HR+6*p,2)}, v13, s[{R_C}:{R_C+3}], 0 offen offset:{1024*p - 8}")
            A(f"buffer_load_dwordx4 {v(HR+6*p+2,4)}, v13, s[{R_C}:{R_C+3}], 0 offen offset:{1024*p}")
    def h_build():
        A(f"""
        v_cmp_eq_u32 vcc, 0, v0
        v_lshlrev_b32 v6, 4, v0
        v_add_u32 v6, s57, v6
        v_add_u32 v6, 32, v6
        v_cndmask_b32 v{HR}, v{HR}, 0, vcc
        v_cndmask_b32 v{HR+1}, v{HR+1}, 0, vcc
        """)
        for p in range(4):
            b = HR + 6*p; P1, P0, D = b, b + 1, b + 2
            T1, T2, T3 = 16 + 12*(p % 2), 20 + 12*(p % 2), 24 + 12*(p % 2)
            A(f"""
            ds_write_b128 v6, {v(D,4)} offset:{0*COPY + 1024*p}
            v_alignbit_b32 v{T1}, v{D}, v{P0}, 16
            v_alignbit_b32 v{T1+1}, v{D+1}, v{D}, 16
            v_alignbit_b32 v{T1+2}, v{D+2}, v{D+1}, 16
            v_alignbit_b32 v{T1+3}, v{D+3}, v{D+2}, 16
            v_mov_b32 v{T2}, v{P0}
            v_mov_b32 v{T2+1}, v{D}
            v_mov_b32 v{T2+2}, v{D+1}
            v_mov_b32 v{T2+3}, v{D+2}
            v_alignbit_b32 v{T3}, v{P0}, v{P1}, 16
            v_mov_b32 v{T3+1}, v{T1}
            v_mov_b32 v{T3+2}, v{T1+1}
            v_mov_b32 v{T3+3}, v{T1+2}
            ds_write_b128 v6, {v(T1,4)} offset:{1*COPY + 1024*p}
            ds_write_b128 v6, {v(T2,4)} offset:{2*COPY + 1024*p}
            ds_write_b128 v6, {v(T3,4)} offset:{3*COPY + 1024*p}
            """)
    L_bnog = A.newlabel("bnog"); L_bnt = A.newlabel("bnt"); L_sync = A.newlabel("sync"); L_bntn = A.newlabel("bntn")
    A(f"""
    s_cmp_ge_u32 s{S_CB}, 15
    s_cbranch_scc1 {L_bnog}
    """)
    L_chonly = A.newlabel("chonly")
    b_setup(L_bnt, L_chonly)
    if E("BISS", 0): lds_wait(A, C_ISS, 2, 3, val=4, sleep=1)
    if E("NOBW", 0):
        lds_set(A, C_INIT, 2, 3)
        for _ in range(10): A("s_barrier")
        A(f"s_branch {L_exit}")
    MODE = E("BMODE", 3)
    if MODE == 3:
        hl3 = E("HL3", 0)
        b_loads()
        if not hl3: h_loads()
        if EARLY: A("s_barrier")
        k = E("BWAIT", 4)
        for _ in range(k): A("s_barrier")
        A(f"s_waitcnt vmcnt({0 if hl3 else 8})")
        stp(A, "blok")
        if E("BPRIO", 0): A(f"s_setprio {E('BPRIO', 0)}")
        nsp = E("BSPLIT", 2)
        for q in range(4):
            b_compute(q)
            if (nsp == 2 and q == 1) or (nsp == 4 and q < 3): A("s_barrier")
        used = 1 if nsp == 2 else (3 if nsp == 4 else 0)
        A("s_setprio 0")
        init_load()
        g = E("BGAP", 2)
        for _ in range(g): A("s_barrier")
        u_publish(0)
        stp(A, "upub")
        if hl3: h_loads()
        rest = 10 - k - used - g
        uf = E("UFAT", 2)
        for i in range(rest):
            A("s_barrier")
            if i + 1 == uf and uf < rest:
                u_flag()
                A("s_mov_b32 s65, 0")
    elif MODE == 2:
        if EARLY: A("s_barrier")
        for _ in range(E("BAT", 1)): A("s_barrier")
        b_loads()
        h_loads()
        for _ in range(10 - E("BAT", 1)): A("s_barrier")
        A("s_waitcnt vmcnt(8)")
        stp(A, "blok")
        for q in range(4): b_compute(q)
        init_load()
        u_publish(0)
        stp(A, "upub")
    else:
        hl = E("HLATE", 1)
        b_loads()
        if not hl: h_loads()
        A(f"s_waitcnt vmcnt({0 if hl else 8})")
        stp(A, "blok")
        for q in range(4): b_compute(q)
        init_load()
        npub = E("NPUB", 2)
        for _ in range(npub): A("s_barrier")
        u_publish(0)
        stp(A, "upub")
        if hl:
            for _ in range(hl): A("s_barrier")
            h_loads()
        for _ in range(10 - npub - hl): A("s_barrier")
    stp(A, "b9")
    A(f"s_branch {L_conv}")
    A.label(L_bnt)
    A(f"s_branch {L_exit}")
    A.label(L_chonly)
    nh = E("HLC", 0)
    if EARLY and nh: A("s_barrier")
    for _ in range(nh): A("s_barrier")
    h_loads()
    if EARLY and not nh: A("s_barrier")
    for _ in range(10 - nh): A("s_barrier")
    A(f"s_branch {L_conv}")
    A.label(L_bnog)
    if E("NOBW", 0):
        lds_set(A, C_INIT, 2, 3)
        A(f"s_branch {L_exit}")
    b_setup(L_exit, L_exit)
    b_loads()
    h_loads()
    if EARLY: A("s_barrier")
    A("s_waitcnt vmcnt(8)")
    for q in range(4): b_compute(q)
    init_load()
    u_publish(0)
    A(f"s_branch {L_conv}")
    A.label("L_nogtask")
    A(f"""
    s_sub_u32 s56, s{S_J}, 28
    s_lshl_b32 s56, s56, 2
    s_lshr_b32 s57, s{S_XCD}, 1
    s_add_u32 s56, s56, s57
    s_lshl_b32 s56, s56, 3
    s_add_u32 s56, s56, s{S_WAVE}
    s_add_u32 s56, s56, 512
    """)
    b_addr()
    b_loads()
    A("s_waitcnt vmcnt(0)")
    for q in range(4): b_compute(q)
    init_load()
    u_publish(0)
    u_flag()
    A("s_branch L_nogdone")

    A.mark("conv")
    A.label(L_conv)
    u_flag()
    A(f"""
    s_lshr_b32 s59, s56, 1
    s_lshl_b32 s59, s59, 2
    s_load_dword s60, s[{P_SD}:{P_SD+1}], s59
    v_mov_b32 v12, 0
    v_mov_b32 v13, 0
    v_mov_b32 v14, 0
    v_mov_b32 v15, 0
    v_lshlrev_b32 v6, 3, v0
    v_add_u32 v6, s57, v6
    v_add_u32 v6, {4*COPY}, v6
    v_cmp_gt_u32 vcc, 60, v0
    s_and_saveexec_b64 s[54:55], vcc
    ds_write_b64 v6, v[12:13]
    s_mov_b64 exec, s[54:55]
    v_and_b32 v6, 1, v0
    v_lshlrev_b32 v6, 4, v6
    v_lshrrev_b32 v7, 1, v0
    v_mul_u32_u24 v7, {COPY}, v7
    v_add3_u32 v6, v6, v7, s57
    v_cmp_gt_u32 vcc, 8, v0
    s_and_saveexec_b64 s[54:55], vcc
    ds_write_b128 v6, v[12:15]
    s_mov_b64 exec, s[54:55]
    s_waitcnt vmcnt(0)
    """)
    h_build()
    VGB = [160, 161, 162]; WOVB = 163
    if E("SRV", 1): gather_setup(VGB, 40, 41, 42, WOVB)
    A(f"""
    s_lshr_b32 s54, s56, 6
    s_and_b32 s55, s56, 63
    s_and_b32 s61, s55, 7
    s_lshr_b32 s55, s55, 3
    s_lshl_b32 s61, s61, 9
    s_lshl_b32 s55, s55, 6
    s_add_u32 s61, s61, s55
    s_lshl_b32 s54, s54, 12
    s_add_u32 s61, s61, s54
    s_add_u32 s61, s61, {WS_U}
    v_lshrrev_b32 v8, 2, v0
    v_mul_u32_u24 v8, 40960, v8
    v_and_b32 v9, 3, v0
    v_lshl_add_u32 v8, v9, 4, v8
    """)
    L_uw = A.newlabel("uw"); L_ud = A.newlabel("ud")
    A(f"s_cmp_lg_u32 s{S_WAVE}, 8\ns_cbranch_scc1 {L_uw}")
    if E("UGATE", 0) == 1: lds_wait(A, C_GO, 2, 3, sleep=4)
    if E("UGATE", 0) == 2: lds_wait(A, C_QKV, 2, 3, val=4, sleep=4)
    A(f"""
    v_lshlrev_b32 v2, 7, v0
    v_add_u32 v2, {SYNC + 128*(L_U + 40)}, v2
    v_cmp_gt_u32 vcc, 8, v0
    v_mov_b32 v3, 1
    s_nop 0
    v_cndmask_b32 v4, 0, v3, vcc
    """)
    poll(A, 2, 4, 3, sleep=E("PS_U", 6))
    lds_set(A, C_UOK, 2, 3)
    A(f"s_branch {L_ud}")
    A.label(L_uw)
    lds_wait(A, C_UOK, 2, 3)
    A("s_waitcnt vmcnt(0)")
    A.label(L_ud)
    stp(A, "uok")
    for p in range(4):
        A(f"""
        s_add_u32 m0, s57, {4*COPY + 480 + p*1024}
        s_add_u32 s54, s61, {p*16*40960}
        buffer_load_dwordx4 v8, s[{R_WS}:{R_WS+3}], s54 offen{SC} lds""")
    A(f"""
    v_lshrrev_b32 v6, 4, v0             ; kg
    v_bfe_u32 v7, v0, 2, 2              ; r
    v_and_b32 v8, 3, v0                 ; c
    v_mul_u32_u24 v7, {COPY}, v7
    v_lshlrev_b32 v8, 3, v8
    v_lshlrev_b32 v9, 4, v6
    v_sub_u32 v8, v8, v9
    v_add_u32 v8, 56, v8
    v_add3_u32 v4, v7, v8, s57          ; vA
    v_and_b32 v7, 15, v0
    v_lshlrev_b32 v7, 5, v7
    v_lshl_add_u32 v7, v6, 4, v7
    v_add_u32 v7, {4*COPY}, v7
    v_add_u32 v5, s57, v7               ; vB
    s_waitcnt vmcnt(0) lgkmcnt(0)
    s_and_b32 s54, s56, 1
    s_lshl_b32 s54, s54, 4
    s_lshr_b32 s60, s60, s54
    s_lshl_b32 s60, s60, 16             ; D as f32
    """)
    stp(A, "conv0")
    Y = 32; AT = 64; BT = 128
    def a_reads(rho, p):
        mu = rho + 8 * p
        return [f"ds_read_b64_tr_b16 {v(AT+4*p,2)}, v4 offset:{64*mu + 8}",
                f"ds_read_b64_tr_b16 {v(AT+4*p+2,2)}, v4 offset:{64*mu}"]
    def b_read(rho, q): return f"ds_read_b128 {v(BT+4*q,4)}, v5 offset:{64*(8*q - rho + 7)}"
    A(f"s_setprio {E('CPRIO', 0)}")
    if E("CPACE", 0):
        for q in range(7, -1, -1): A(b_read(0, q))
        for rho in range(8):
            for p in range(8):
                for r in a_reads(rho, p): A(r)
                A("s_waitcnt lgkmcnt(0)")
                for q in range(7 - p, -1, -1):
                    i = p + q
                    cc = "0" if (rho == 0 and p == 0) else v(Y+4*i, 4)
                    A(f"v_mfma_f32_16x16x32_bf16 {v(Y+4*i,4)}, {v(AT+4*p,4)}, {v(BT+4*q,4)}, {cc}")
                if rho < 7: A(b_read(rho + 1, 7 - p))
            if rho == 3:
                stp(A, "convh")
                A("s_barrier")
    else:
        ATS = [64, 96]
        def a_reads2(rho, p, sid):
            mu = rho + 8 * p
            return [f"ds_read_b64_tr_b16 {v(ATS[sid]+4*p,2)}, v4 offset:{64*mu + 8}",
                    f"ds_read_b64_tr_b16 {v(ATS[sid]+4*p+2,2)}, v4 offset:{64*mu}"]
        for q in range(7, -1, -1): A(b_read(0, q))
        A("s_waitcnt lgkmcnt(4)")
        for p in range(8):
            for r in a_reads2(0, p, 0): A(r)
            if p == 3: A("s_waitcnt lgkmcnt(4)")
        for rho in range(8):
            sid = rho % 2
            nxtA = [x for p in range(8) for x in a_reads2(rho + 1, p, 1 - sid)] if rho < 7 else []
            A("s_waitcnt lgkmcnt(0)" if rho == 0 else "s_waitcnt lgkmcnt(4)")
            for p in range(8):
                for q in range(7 - p, -1, -1):
                    i = p + q
                    cc = "0" if (rho == 0 and p == 0) else v(Y+4*i, 4)
                    if p == 0 and rho > 0 and q <= 3:
                        A(f"s_waitcnt lgkmcnt({7 if rho < 7 else q})")
                    A(f"v_mfma_f32_16x16x32_bf16 {v(Y+4*i,4)}, {v(ATS[sid]+4*p,4)}, {v(BT+4*q,4)}, {cc}")
                    if nxtA: A(nxtA.pop(0))
                if rho < 7: A(b_read(rho + 1, 7 - p))
            if rho == E("CBAR", -1):
                stp(A, "convh")
                A("s_barrier")
    stp(A, "conv1")
    if E("TPRIO", 3): A(f"s_setprio {E('TPRIO', 3)}")
    def srv_kv(chunk):
        slot = chunk % 2
        for r in range(8):
            for part in range(3):
                A(f"""
                s_add_u32 m0, s49, {slot*CHUNK + r*REC + part*1024}
                s_add_u32 s51, s50, {(chunk*16 + r)*TB}
                buffer_load_dwordx4 v{VGB[part]}, s[{R_WS}:{R_WS+3}], s51 offen{SC} lds""")
    if E("SRV", 1):
        A(f"""
        s_sub_u32 s54, s{S_WAVE}, 8            ; bw
        s_mul_i32 s49, s54, {8*REC}
        s_mul_i32 s50, s54, {8*TB}
        """)
    if E("SRV", 1) and E("SRV1", 0):
        Lsk1 = A.newlabel("srv1")
        A(f"s_cmp_eq_u32 s{S_WAVE}, 10\ns_cbranch_scc1 {Lsk1}")
        lds_wait(A, C_GO, 2, 3, sleep=2)
        srv_kv(1)
        A.label(Lsk1)
    A(f"""
    v_and_b32 v7, 15, v0
    v_lshrrev_b32 v6, 4, v0
    v_lshlrev_b32 v7, 5, v7
    v_lshl_add_u32 v7, v6, 3, v7        ; 32n + 8g
    v_add_u32 v8, s57, v7
    v_add_u32 v8, {4*COPY + 480}, v8
    s_add_u32 s61, s58, {WS_Z}
    """)
    for i in range(8): A(f"ds_read_b64 {v(64+2*i,2)}, v8 offset:{512*i}")
    A("s_waitcnt lgkmcnt(0)\ns_nop 3")
    for i in range(8):
        u0, u1 = 64 + 2*i, 64 + 2*i + 1
        y = Y + 4*i
        A(f"""
        v_lshlrev_b32 v96, 16, v{u0}
        v_and_b32 v97, 0xffff0000, v{u0}
        v_lshlrev_b32 v98, 16, v{u1}
        v_and_b32 v99, 0xffff0000, v{u1}
        v_fma_f32 v{y}, v96, s60, v{y}
        v_fma_f32 v{y+1}, v97, s60, v{y+1}
        v_fma_f32 v{y+2}, v98, s60, v{y+2}
        v_fma_f32 v{y+3}, v99, s60, v{y+3}
        v_cvt_pk_bf16_f32 v{y}, v{y}, v{y+1}
        v_cvt_pk_bf16_f32 v{y+1}, v{y+2}, v{y+3}
        buffer_store_dwordx2 {v(y,2)}, v7, s[{R_WS}:{R_WS+3}], s61 offen offset:{512*i}{SC}""")
    def z_publish():
        A("s_waitcnt vmcnt(0)")
        stp(A, "zdrained")
        L_zs = A.newlabel("zs")
        A("s_cmp_lt_u32 s2, 128\ns_cselect_b32 s64, 3, 2")
        lds_arrive_last(A, C_Z, "s64", L_zs, 2, 3)
        A(f"s_and_b32 s65, s2, 7\ns_add_u32 s65, s65, {L_Z}")
        global_arrive(A, "s65", 32, 2, 3)
        A.label(L_zs)
    if not E("SRV", 1):
        A("s_barrier")
        z_publish()
    else:
        L_srv = A.newlabel("srv")
        A(f"s_cmp_lg_u32 s{S_WAVE}, 10\ns_cbranch_scc1 {L_srv}")
        A("s_barrier")
        z_publish()
        prof_dump(A, 0, wsptr=P_WS)
        A("s_endpgm")
        A.label(L_srv)
        A(f"""
        s_sub_u32 s56, s{S_WAVE}, 8            ; bw
        s_mul_i32 s53, s56, 5120
        s_mul_i32 s62, s56, 40960
        """)
        if E("SRV1", 0): A("s_waitcnt vmcnt(8)")
        A("s_barrier")
        if E("TPRIO", 3) and not E("TPKEEP", 1): A("s_setprio 0")
        z_publish()
        def srv_wo(region):
            n = 0
            groups = range(0, 12, 2) if region == "A" else range(0, 10, 2)
            for a2 in groups:
                for b in range(5):
                    lab = None
                    if region == "A" and a2 == 10:
                        lab = A.newlabel("wsk"); A(f"s_cmp_lg_u32 s56, 0\ns_cbranch_scc1 {lab}")
                    if region == "B" and a2 == 8 and b >= 2:
                        lab = A.newlabel("wsk"); A(f"s_cmp_lg_u32 s56, 0\ns_cbranch_scc1 {lab}")
                    ldso = (WO_A if region == "A" else 0) + a2*5120 + b*1024
                    go = a2*40960 + (0 if region == "A" else WO_BROW*1280)
                    A(f"""
                    s_add_u32 m0, s53, {ldso}
                    s_add_u32 s51, s62, {go}
                    buffer_load_dwordx4 v{WOVB+b}, s[{R_A}:{R_A+3}], s51 offen lds""")
                    if lab: A.label(lab)
                    else: n += 1
            return n
        srv_kv(2)
        n = srv_wo("A")
        A(f"s_waitcnt vmcnt({n})\ns_barrier")
        srv_kv(3)
        A("s_waitcnt vmcnt(0)\ns_barrier")
        srv_wo("B")
        A("s_waitcnt vmcnt(0)")
    prof_dump(A, 0, wsptr=P_WS)
    A.label(L_exit)
    A("s_endpgm")

def build():
    hdr = open("cdna_kernels/" + NAME + ".s.ref").read().split("; Override launch geometry")[0]
    A = Asm(); gen(A)
    A.reorder(os.environ.get("ORDER", "prod,bw,cons,main,conv").split(","))
    out = hdr + f"; @launch grid=(256,1,1) block=(704,1,1) lds={LDS}\n"
    out += '.amdgcn_target "amdgcn-amd-amdhsa--gfx950"\n.text\n' + A.text()
    out += f""".section .rodata,"a"
.p2align 6
.amdhsa_kernel {KNAME}
  .amdhsa_next_free_vgpr {VGPRS}
  .amdhsa_next_free_sgpr 102
  .amdhsa_accum_offset {VGPRS}
  .amdhsa_group_segment_fixed_size 0
  .amdhsa_kernarg_size 96
  .amdhsa_user_sgpr_count 2
  .amdhsa_user_sgpr_kernarg_segment_ptr 1
  .amdhsa_system_sgpr_workgroup_id_x 1
  .amdhsa_float_denorm_mode_32 3
.end_amdhsa_kernel
"""
    return out

if __name__ == "__main__":
    open(sys.argv[1], "w").write(build())
```

```python
import os, sys, struct, math
from asmlib import *
from slots import ASSIGN, HEADWORD

NAME = "concat_heads__softmax_full_mha__ssm_conv_h3__prompt"
KNAME = NAME + "_kernel"
E = lambda k, d=0: int(os.environ.get(k, d))

TB = 8320
SEC = 64 * TB
WS_U  = 0x800000
WS_Z  = 0xB00000
WS_O  = 0xE00000
SYNC  = 0x1200000
WS_BYTES = 0x1214000
REC = 3072
CHUNK = 16 * REC
COPY = 4160
CONV_SZ = 4 * COPY + 4608
CONV_BASE = 98304
CNT = CONV_BASE + 3 * CONV_SZ
LDS = CNT + 256
WO_A = 98304
WO_BROW = 340
RED = CHUNK
VGPRS = 168
POLL_MAX = 200000
SC = os.environ.get("SCF", " sc1")
L_U, L_Z, L_O, L_QF = 0, 8, 24, 48
FLG = 8
N_LINES = 288
ZERO_WG = 225
C_QKV, C_U, C_Z, C_O, C_UOK, C_INIT, C_GO, C_KV, C_ISS = 0, 4, 8, 12, 16, 20, 24, 28, 32

def f32bits(x): return struct.unpack("<I", struct.pack("<f", x))[0]
QSCALE = f32bits(20 ** -0.5 * math.log2(math.e))

P_X, P_W, P_WO, P_BQ, P_BK, P_BV, P_SH, P_SK, P_SD, P_OUT, P_DBG, P_WS = 4, 6, 8, 10, 12, 14, 16, 18, 20, 22, 24, 26
R_WS = 28
R_A, R_B, R_C = 32, 36, 44
S_WAVE, S_XCD, S_J, S_RB, S_CB = 40, 41, 42, 43, 48
S_CBK = 48

STAMPS = dict(x.split(":") for x in os.environ.get("STAMPS", "b0:1,gend:2,uok:2,att0:4,att1:5,p3a:6").split(","))
def stp(A, name):
    if name in STAMPS: stamp(A, int(STAMPS[name]))

def poll(A, addr_v, thr_v, tmp, sleep=4, base=P_WS):
    L = A.newlabel("poll"); D = A.newlabel("polld")
    A(f"""
    v_cmp_ne_u32 vcc, 0, v{thr_v}
    s_mov_b32 s66, {POLL_MAX}
    s_nop 1
    s_mov_b64 exec, vcc
    {L}:
    global_load_dword v{tmp}, v{addr_v}, s[{base}:{base+1}] sc1
    s_waitcnt vmcnt(0)
    v_cmp_ge_u32 vcc, v{tmp}, v{thr_v}
    s_nop 3
    s_cmp_eq_u64 vcc, exec
    s_cbranch_scc1 {D}
    s_sleep {sleep}
    s_sub_u32 s66, s66, 1
    s_cmp_lg_u32 s66, 0
    s_cbranch_scc1 {L}
    {D}:
    s_mov_b64 exec, -1
    """)
def poll_flags(A, line0, nlines, t_addr, t_thr, tmp, sleep=4):
    A(f"""
    v_lshlrev_b32 v{t_addr}, 7, v0
    v_add_u32 v{t_addr}, {SYNC + 128*(FLG + line0)}, v{t_addr}
    v_cmp_gt_u32 vcc, {nlines}, v0
    v_mov_b32 v{tmp}, 1
    s_nop 0
    v_cndmask_b32 v{t_thr}, 0, v{tmp}, vcc
    """)
    poll(A, t_addr, t_thr, tmp, sleep)
def lds_set(A, off, t0, t1):
    A(f"""
    v_mov_b32 v{t0}, {CNT + off}
    v_mov_b32 v{t1}, 1
    ds_write_b32 v{t0}, v{t1}
    """)
def lds_add(A, off, t0, t1):
    A(f"""
    v_mov_b32 v{t0}, {CNT + off}
    v_mov_b32 v{t1}, 1
    s_mov_b64 exec, 1
    ds_add_u32 v{t0}, v{t1}
    s_mov_b64 exec, -1
    """)
def lds_wait(A, off, t0, t1, val=1, sleep=1):
    L = A.newlabel("lw"); D = A.newlabel("lwd")
    A(f"""
    v_mov_b32 v{t0}, {CNT + off}
    s_mov_b32 s66, {POLL_MAX*16}
    {L}:
    ds_read_b32 v{t1}, v{t0}
    s_waitcnt lgkmcnt(0)
    v_readfirstlane_b32 s67, v{t1}
    s_nop 3
    s_cmp_ge_u32 s67, {val}
    s_cbranch_scc1 {D}
    s_sleep {sleep}
    s_sub_u32 s66, s66, 1
    s_cmp_lg_u32 s66, 0
    s_cbranch_scc1 {L}
    {D}:
    """)
def lds_arrive_last(A, off, n_s, skip_lab, t0, t1):
    A(f"""
    v_mov_b32 v{t0}, {CNT + off}
    v_mov_b32 v{t1}, 1
    s_mov_b64 exec, 1
    ds_add_rtn_u32 v{t1}, v{t0}, v{t1}
    s_waitcnt lgkmcnt(0)
    s_mov_b64 exec, -1
    v_readfirstlane_b32 s66, v{t1}
    s_nop 3
    s_add_u32 s66, s66, 1
    s_cmp_lg_u32 s66, {n_s}
    s_cbranch_scc1 {skip_lab}
    """)
def global_arrive(A, line_s, total, t0, t1):
    L = A.newlabel("ga")
    A(f"""
    s_lshl_b32 s66, {line_s}, 7
    s_add_u32 s66, s66, {SYNC}
    v_mov_b32 v{t0}, s66
    v_mov_b32 v{t1}, 1
    s_mov_b64 exec, 1
    global_atomic_add v{t1}, v{t0}, v{t1}, s[{P_WS}:{P_WS+1}] sc0 sc1
    s_waitcnt vmcnt(0)
    s_mov_b64 exec, -1
    v_readfirstlane_b32 s66, v{t1}
    s_nop 3
    s_add_u32 s66, s66, 1
    s_cmp_lg_u32 s66, {total}
    s_cbranch_scc1 {L}
    v_add_u32 v{t0}, {128*FLG}, v{t0}
    v_mov_b32 v{t1}, 1
    s_mov_b64 exec, 1
    global_store_dword v{t0}, v{t1}, s[{P_WS}:{P_WS+1}] sc1
    s_mov_b64 exec, -1
    {L}:
    """)

def flag_store(A, line_s, t0, t1):
    A(f"""
    s_lshl_b32 s66, {line_s}, 7
    s_add_u32 s66, s66, {SYNC}
    v_mov_b32 v{t0}, s66
    v_mov_b32 v{t1}, 1
    s_mov_b64 exec, 1
    global_store_dword v{t0}, v{t1}, s[{P_WS}:{P_WS+1}] sc1
    s_mov_b64 exec, -1
    """)
def poll2(A, a0, a1, n1, t0, t1, sleep):
    L = A.newlabel("poll2"); D = A.newlabel("poll2d")
    A(f"""
    s_mov_b32 s66, {POLL_MAX}
    {L}:
    global_load_dword v{t0}, v{a0}, s[{P_WS}:{P_WS+1}] sc1
    global_load_dword v{t1}, v{a1}, s[{P_WS}:{P_WS+1}] sc1
    s_waitcnt vmcnt(0)
    v_min_u32 v{t0}, v{t0}, v{t1}
    v_cmp_le_u32 vcc, 1, v{t0}
    s_nop 3
    s_cmp_eq_u64 vcc, -1
    s_cbranch_scc1 {D}
    s_sleep {sleep}
    s_sub_u32 s66, s66, 1
    s_cmp_lg_u32 s66, 0
    s_cbranch_scc1 {L}
    {D}:
    """)

def gen(A):
    A(f".globl {KNAME}")
    A(".p2align 8")
    A(f".type {KNAME},@function")
    A.label(KNAME)
    L_exit, L_nog, L_prod, L_bw, L_heads, L_conv = "L_exit", "L_nog", "L_prod", "L_bw", "L_heads", "L_conv"
    A(f"""
    s_cmp_ge_u32 s2, 256
    s_cbranch_scc1 {L_exit}
    s_load_dwordx16 s[4:19], s[0:1], 0
    s_load_dwordx8 s[20:27], s[0:1], 64
    v_lshrrev_b32 v1, 6, v0
    v_and_b32 v0, 63, v0
    v_readfirstlane_b32 s{S_WAVE}, v1
    s_and_b32 s{S_XCD}, s2, 7
    s_lshr_b32 s{S_J}, s2, 3
    s_lshr_b32 s{S_RB}, s{S_XCD}, 1
    s_lshl_b32 s{S_RB}, s{S_RB}, 2
    s_and_b32 s49, s{S_J}, 3
    s_add_u32 s{S_RB}, s{S_RB}, s49        ; rb
    s_and_b32 s{S_CB}, s{S_XCD}, 1
    s_lshl_b32 s{S_CB}, s{S_CB}, 3
    s_lshr_b32 s49, s{S_J}, 2
    s_add_u32 s{S_CB}, s{S_CB}, s49        ; cb
    """)
    if E("CPF", 0):
        A(f"""
        s_cmp_ge_u32 s{S_WAVE}, 2
        s_cbranch_scc1 L_nocpf
        s_getpc_b64 s[60:61]
        L_pc:
        s_sub_u32 s60, s60, L_pc-{KNAME}
        s_subb_u32 s61, s61, 0
        s_lshl_b32 s62, s{S_J}, 1
        s_add_u32 s62, s62, s{S_WAVE}
        s_lshl_b32 s62, s62, 10
        v_lshlrev_b32 v2, 4, v0
        v_add_u32 v2, s62, v2
        v_min_u32 v2, (L_exit-{KNAME}-16)&0xfffffff0, v2
        v_mov_b32 v5, s61
        v_add_co_u32 v4, vcc, s60, v2
        s_nop 1
        v_addc_co_u32 v5, vcc, 0, v5, vcc
        global_load_dwordx4 v[148:151], v[4:5], off
        L_nocpf:
        """)
    A(f"""
    s_cmp_lg_u32 s{S_WAVE}, 0
    s_cbranch_scc1 L_noldsinit
    v_mov_b32 v2, {CNT}
    v_mov_b32 v4, 0
    v_mov_b32 v5, 0
    v_mov_b32 v6, 0
    v_mov_b32 v7, 0
    ds_write_b128 v2, v[4:7]
    ds_write_b128 v2, v[4:7] offset:16
    ds_write_b128 v2, v[4:7] offset:32
    L_noldsinit:
    s_waitcnt lgkmcnt(0)
    """)
    EARLY = E("EARLY", 0)
    if not EARLY: A("s_barrier")
    srd(A, R_WS, P_WS, WS_BYTES)
    prof_init(A)
    A(f"""
    s_cmp_ge_u32 s{S_WAVE}, 8
    s_cbranch_scc1 {L_bw}
    s_cmp_ge_u32 s{S_CB}, 15
    s_cbranch_scc1 {L_nog}
    s_cmp_ge_u32 s{S_WAVE}, 4
    s_cbranch_scc1 {L_prod}
    s_branch L_cons
    """)
    A.mark("cons")
    A.label("L_cons")
    slot_of = lambda st: (st + 2) % 3
    if EARLY: A("s_barrier")

    A(f"""
    s_lshr_b32 s56, s{S_WAVE}, 1       ; wr
    s_and_b32 s57, s{S_WAVE}, 1        ; wc
    v_and_b32 v2, 31, v0           ; n
    v_lshrrev_b32 v3, 5, v0        ; h
    v_bfe_u32 v4, v0, 1, 3         ; (l>>1)&7
    s_lshl_b32 s54, s56, 6
    v_add_u32 v5, s54, v2
    v_lshlrev_b32 v5, 7, v5        ; token_local*128
    """)
    for ks in range(4):
        A(f"""
        v_add_u32 v6, {2*ks}, v3
        v_xor_b32 v6, v6, v4
        v_lshl_add_u32 v{16+ks}, v6, 4, v5
        v_add_u32 v{20+ks}, 0x10000, v{16+ks}""")
    def w_addr():
        A(f"""
        v_lshrrev_b32 v2, 4, v0        ; g
        v_bfe_u32 v3, v0, 2, 2         ; r
        v_and_b32 v4, 3, v0            ; c4
        v_lshrrev_b32 v5, 1, v2
        v_lshl_add_u32 v5, v5, 3, v3   ; k_local
        v_lshlrev_b32 v5, 8, v5
        v_add_u32 v5, 16384, v5
        v_and_b32 v6, 1, v2
        v_lshl_add_u32 v6, v6, 2, v4   ; rg = 4*(g&1) + c4
        v_mul_u32_u24 v6, 5, v6
        v_lshlrev_b32 v7, 2, v3        ; 4r
        """)
        for ft in range(2):
            A(f"""
            v_lshrrev_b64 v[8:9], v6, s[{60+2*ft}:{61+2*ft}]
            v_and_b32 v8, 31, v8
            v_lshrrev_b32 v9, 1, v8
            v_xor_b32 v9, v9, v7
            v_and_b32 v8, 1, v8
            v_lshlrev_b32 v8, 3, v8
            v_lshl_add_u32 v8, v9, 4, v8
            v_add_u32 v{24+ft}, v5, v8
            v_add_u32 v{26+ft}, 0x10000, v{24+ft}""")
    FR = [dict(X=[32, 36], W=[40, 44]), dict(X=[48, 52], W=[56, 60]), dict(X=[132, 136], W=[140, 144])]
    ACC = lambda ft, tt: 64 + 16 * (2 * ft + tt)
    def reads(st, ks, setid):
        slot = slot_of(st); hi = slot == 2
        so = 0 if hi else slot * 32768
        xa = (20 if hi else 16) + ks; wa = (26 if hi else 24); F = FR[setid]
        return [f"ds_read_b128 {v(F['X'][0],4)}, v{xa} offset:{so}",
                f"ds_read_b64_tr_b16 {v(F['W'][0],2)}, v{wa} offset:{so + ks*4096}",
                f"ds_read_b64_tr_b16 {v(F['W'][0]+2,2)}, v{wa} offset:{so + ks*4096 + 1024}",
                f"ds_read_b128 {v(F['X'][1],4)}, v{xa} offset:{so + 4096}",
                f"ds_read_b64_tr_b16 {v(F['W'][1],2)}, v{wa+1} offset:{so + ks*4096}",
                f"ds_read_b64_tr_b16 {v(F['W'][1]+2,2)}, v{wa+1} offset:{so + ks*4096 + 1024}"]
    def mfmas(setid, first, vmode):
        F = FR[setid]; m = []
        for (ft, tt) in [(0, 0), (0, 1), (1, 0), (1, 1)]:
            d = ACC(ft, tt); c = "0" if first else v(d, 16)
            a_, b_ = (F['X'][tt], F['W'][ft]) if vmode else (F['W'][ft], F['X'][tt])
            m.append(f"v_mfma_f32_32x32x16_bf16 {v(d,16)}, {v(a_,4)}, {v(b_,4)}, {c}")
        return m
    def main_loop(vmode):
        A("s_barrier")
        stp(A, "b0")
        if not E("G3", 1):
            for r in reads(0, 0, 0): A(r)
            n = 0
            for st in range(10):
                for ks in range(4):
                    setid = n % 2
                    m = mfmas(setid, n == 0, vmode)
                    A("s_waitcnt lgkmcnt(0)")
                    if ks == 3 and st < 9:
                        A("s_barrier")
                        stp(A, f"gb{st+1}")
                    A(m[0])
                    if ks < 3:
                        for r in reads(st, ks + 1, 1 - setid): A(r)
                    elif st < 9:
                        for r in reads(st + 1, 0, 1 - setid): A(r)
                    A(m[1]); A(m[2]); A(m[3])
                    n += 1
        else:
            for r in reads(0, 0, 0): A(r)
            for r in reads(0, 1, 1): A(r)
            for n in range(40):
                st, ks = divmod(n, 4)
                m = mfmas(n % 3, n == 0, vmode)
                if ks == 2 and st < 9:
                    A("s_waitcnt lgkmcnt(0)\ns_barrier")
                    stp(A, f"gb{st+1}")
                else:
                    A(f"s_waitcnt lgkmcnt({6 if n + 1 < 40 else 0})")
                A(m[0])
                if n + 2 < 40:
                    st2, ks2 = divmod(n + 2, 4)
                    for r in reads(st2, ks2, (n + 2) % 3): A(r)
                A(m[1]); A(m[2]); A(m[3])
        stp(A, "gend")
        A("s_nop 15")
    L_vpath = A.newlabel("vpath"); L_gsig = A.newlabel("gsig"); L_vdone = A.newlabel("vdone")
    A(f"""
    s_cmp_ge_u32 s{S_CB}, 10
    s_cbranch_scc1 {L_vpath}
    s_cmp_ge_u32 s{S_CB}, 5
    s_cselect_b32 s55, 5, 0
    s_sub_u32 s55, s{S_CB}, s55        ; cb'
    s_lshl_b32 s55, s55, 1
    s_add_u32 s55, s55, s57
    """)
    for var in range(10):
        cbp, wc = divmod(var, 2); T = []
        for ft in range(2):
            tab = [0]*8
            for si, it in enumerate(ASSIGN[cbp][2*wc + ft]):
                ap, h = divmod(si, 2)
                tab[4*ap + h] = it[1]; tab[4*ap + 2 + h] = it[2]
            T.append(sum(g << (5*i) for i, g in enumerate(tab)))
        nxt = A.newlabel("var")
        A(f"""
        s_cmp_lg_u32 s55, {var}
        s_cbranch_scc1 {nxt}
        s_mov_b32 s60, {hex(T[0] & 0xffffffff)}
        s_mov_b32 s61, {hex(T[0] >> 32)}
        s_mov_b32 s62, {hex(T[1] & 0xffffffff)}
        s_mov_b32 s63, {hex(T[1] >> 32)}
        s_branch {L_vdone}
        {nxt}:""")
    A(f"""
    s_mov_b64 s[60:61], 0
    s_mov_b64 s[62:63], 0
    {L_vdone}:
    """)
    w_addr()
    A(f"""
    s_mov_b32 s58, {hex(QSCALE)}
    s_cmp_ge_u32 s{S_CB}, 5
    s_cmov_b32 s58, 0x3f800000
    s_mov_b32 s59, s58
    v_lshlrev_b32 v128, 4, v0
    s_lshl_b32 s54, s{S_RB}, 2
    s_lshl_b32 s55, s56, 1
    s_add_u32 s54, s54, s55
    s_lshl_b32 s55, s{S_CB}, 6
    s_add_u32 s54, s54, s55
    s_mul_i32 s54, s54, {TB}
    s_lshl_b32 s55, s57, 12        ; wc*4096
    s_add_u32 s64, s54, s55
    s_add_u32 s65, s64, {TB}
    """)
    main_loop(False)
    for ft in range(2):
        for tt in range(2):
            d = ACC(ft, tt)
            for i in range(0, 16, 2):
                A(f"v_pk_mul_f32 {v(d+i,2)}, {v(d+i,2)}, s[58:59]")
            for ap in range(2):
                for i in range(4):
                    A(f"v_cvt_pk_bf16_f32 v{d+8*ap+i}, v{d+8*ap+2*i}, v{d+8*ap+2*i+1}")
                A(f"buffer_store_dwordx4 {v(d+8*ap,4)}, v128, s[{R_WS}:{R_WS+3}], s{64+tt} offen offset:{ft*2048 + ap*1024}{SC}")
    A(f"s_branch {L_gsig}")
    A.label(L_vpath)
    nat = sum(i << (5*i) for i in range(8)); rep = sum(1 << (5*i) for i in range(8))
    A(f"""
    s_lshl_b32 s54, s57, 4
    s_mul_i32 s55, s54, {hex(rep & 0xffffffff)}
    s_mul_hi_u32 s61, s54, {hex(rep & 0xffffffff)}
    s_mul_i32 s66, s54, {hex(rep >> 32)}
    s_add_u32 s61, s61, s66
    s_add_u32 s60, s55, {hex(nat & 0xffffffff)}
    s_addc_u32 s61, s61, {hex(nat >> 32)}
    s_add_u32 s62, s60, {hex((8*rep) & 0xffffffff)}
    s_addc_u32 s63, s61, {hex((8*rep) >> 32)}
    """)
    w_addr()
    A(f"""
    v_lshlrev_b32 v128, 4, v0
    s_lshl_b32 s54, s{S_RB}, 2
    s_lshl_b32 s55, s{S_CB}, 6
    s_add_u32 s54, s54, s55
    s_add_u32 s55, s54, s{S_WAVE}
    s_mul_i32 s55, s55, {TB}
    s_add_u32 s58, s55, 8192
    s_lshl_b32 s55, s56, 1
    s_add_u32 s54, s54, s55
    s_mul_i32 s54, s54, {TB}
    s_lshl_b32 s55, s57, 11
    s_add_u32 s62, s54, s55
    s_add_u32 s63, s62, 4096
    s_add_u32 s64, s62, {TB}
    s_add_u32 s65, s64, 4096
    """)
    main_loop(True)
    for ft in range(2):
        for tt in range(2):
            d = ACC(ft, tt)
            for f in range(2):
                for i in range(4):
                    A(f"v_cvt_pk_bf16_f32 v{d+8*f+i}, v{d+8*f+2*i}, v{d+8*f+2*i+1}")
                A(f"buffer_store_dwordx4 {v(d+8*f,4)}, v128, s[{R_WS}:{R_WS+3}], s{62+2*tt+f} offen offset:{ft*1024}{SC}")
    A(f"""
    v_cmp_eq_u32 vcc, 0, v0
    v_mov_b32 v36, 0x3f803f80
    s_nop 0
    v_cndmask_b32 v32, 0, v36, vcc
    v_cndmask_b32 v33, 0, v36, vcc
    v_cndmask_b32 v34, 0, v36, vcc
    v_cndmask_b32 v35, 0, v36, vcc
    s_mov_b64 exec, 15
    buffer_store_dwordx4 v[32:35], v128, s[{R_WS}:{R_WS+3}], s58 offen{SC}
    s_mov_b64 exec, -1
    """)
    A.label(L_gsig)
    stp(A, "gstored")
    A("s_waitcnt vmcnt(0)")
    stp(A, "gdrained")
    L_qs = A.newlabel("qs")
    lds_arrive_last(A, C_QKV, 4, L_qs, 2, 3)
    lds_wait(A, C_INIT, 2, 3)
    A(f"""
    s_lshl_b32 s65, s{S_CB}, 4
    s_add_u32 s65, s65, s{S_RB}
    s_add_u32 s65, s65, {L_QF}
    """)
    flag_store(A, "s65", 2, 3)
    A.label(L_qs)
    stp(A, "gsig")
    A(f"s_branch {L_heads}")

    A.mark("prod")
    A.label(L_prod)
    srd(A, R_A, P_X, 2048 * 640 * 2)
    srd(A, R_B, P_W, 640 * 1920 * 2)
    VXE, VXO, VW = 10, 11, 12
    A(f"""
    s_sub_u32 s55, s{S_WAVE}, 4            ; pw
    s_lshl_b32 s49, s55, 12
    s_mul_i32 s53, s55, 61440
    s_and_b32 s50, s{S_RB}, 3
    s_mul_i32 s50, s50, 3
    s_add_u32 s50, s50, s{S_CB}
    s_cmp_ge_u32 s50, 20
    s_cselect_b32 s51, 20, 0
    s_sub_u32 s50, s50, s51
    s_cmp_ge_u32 s50, 10
    s_cselect_b32 s51, 10, 0
    s_sub_u32 s50, s50, s51
    """)
    if not E("ROT", 1): A("s_mov_b32 s50, 0")
    A(f"""
    s_lshl_b32 s51, s50, 7
    s_mul_i32 s52, s50, 245760
    s_add_u32 s52, s52, s53
    v_lshrrev_b32 v2, 3, v0
    v_lshrrev_b32 v3, 4, v0
    v_and_b32 v4, 7, v0
    v_xor_b32 v4, v4, v3
    s_lshl_b32 s54, s{S_RB}, 7
    s_lshl_b32 s55, s55, 5
    s_add_u32 s54, s54, s55
    v_add_u32 v2, s54, v2
    v_mul_u32_u24 v2, 1280, v2
    v_lshl_add_u32 v{VXE}, v4, 4, v2
    v_xor_b32 v{VXO}, 64, v{VXE}
    v_and_b32 v4, 15, v0
    v_lshlrev_b32 v5, 2, v3
    v_xor_b32 v4, v4, v5
    v_mul_u32_u24 v5, 3840, v3
    v_lshl_add_u32 v{VW}, v4, 4, v5
    s_lshl_b32 s54, s{S_CB}, 8
    v_add_u32 v{VW}, s54, v{VW}
    """)
    def dma_stage(st):
        so = slot_of(st) * 32768
        for i in range(4):
            A(f"""
            s_add_u32 m0, s49, {so + i*1024}
            s_add_u32 s54, s51, {i*10240}
            buffer_load_dwordx4 v{VXO if i % 2 else VXE}, s[{R_A}:{R_A+3}], s54 offen lds""")
        for i in range(4):
            A(f"""
            s_add_u32 m0, s49, {so + 16384 + i*1024}
            s_add_u32 s54, s52, {i*15360}
            buffer_load_dwordx4 v{VW}, s[{R_B}:{R_B+3}], s54 offen lds""")
        A("""
        s_add_u32 s50, s50, 1
        s_cmp_eq_u32 s50, 10
        s_cselect_b32 s50, 0, s50
        s_lshl_b32 s51, s50, 7
        s_mul_i32 s52, s50, 245760
        s_add_u32 s52, s52, s53""")
    for st in range(3): dma_stage(st)
    A("s_branch L_prod1")
    A.mark("prod1")
    A.label("L_prod1")
    if EARLY: A("s_barrier")
    A("s_waitcnt vmcnt(16)\ns_barrier")
    stp(A, "b0")
    for s_ in range(1, 8):
        A("s_waitcnt vmcnt(8)\ns_barrier")
        dma_stage(s_ + 2)
    A("s_waitcnt vmcnt(8)\ns_barrier")
    A("s_waitcnt vmcnt(0)\ns_barrier")
    stp(A, "b9")
    A(f"s_branch {L_heads}")

    A.mark("main")
    A.label(L_nog)
    if EARLY: A("s_barrier")
    L_nz = A.newlabel("nz")
    A(f"""
    s_cmp_lg_u32 s2, {ZERO_WG}
    s_cbranch_scc1 {L_nz}
    v_lshlrev_b32 v2, 4, v0
    v_add_u32 v2, {SYNC}, v2
    v_mov_b32 v4, 0
    v_mov_b32 v5, 0
    v_mov_b32 v6, 0
    v_mov_b32 v7, 0
    s_mul_i32 s54, s{S_WAVE}, {5*1024}
    """)
    for i in range(5):
        A(f"buffer_store_dwordx4 v[4:7], v2, s[{R_WS}:{R_WS+3}], s54 offen sc1\ns_add_u32 s54, s54, 1024")
    A("s_waitcnt vmcnt(0)")
    lds_arrive_last(A, C_KV + 8, 8, L_nz, 2, 3)
    A(f"""
    v_mov_b32 v2, 0
    v_mov_b32 v3, 1
    s_mov_b64 exec, 1
    global_store_dword v2, v3, s[{P_DBG}:{P_DBG+1}] sc1
    s_mov_b64 exec, -1
    {L_nz}:
    s_branch L_nogtask
    L_nogdone:
    """)
    A(f"""
    v_mov_b32 v2, {CNT + C_QKV}
    v_mov_b32 v3, 4
    ds_write_b32 v2, v3
    """)

    A.label(L_heads)
    Q1, Q2 = 4, 8
    O = 16
    S = [32, 48]
    P = [64, 72]
    KA, KB, V0, V1 = 80, 84, 88, 92
    AK = [96, 99]; AK2 = [97, 100]; AV = [98, 101]
    KA0, KB0 = 104, 108
    WOV = 120
    VG = [126, 127, 128]; VKP, VKS, VVF = 129, 130, 131
    def gather_setup(VG=VG, VKP=VKP, VKS=VKS, VVF=VVF, WOV=WOV):
        A(f"""
        s_lshl_b32 s43, s{S_XCD}, 2
        s_lshr_b32 s44, s{S_J}, 3
        s_add_u32 s43, s43, s44        ; head
        s_and_b32 s44, s{S_J}, 7       ; qb
        s_lshl_b32 s46, s44, 3
        s_add_u32 s46, s46, s{S_WAVE}  ; q tile
        s_mov_b32 s47, {hex(HEADWORD[0])}
        """)
        for h in range(1, 32):
            A(f"s_cmp_eq_u32 s43, {h}\ns_cmov_b32 s47, {hex(HEADWORD[h])}")
        for k, dst in enumerate((50, 51, 52)):
            A(f"""
            s_bfe_u32 s54, s47, {hex((3 << 16) | (7*k))}
            s_bfe_u32 s55, s47, {hex((4 << 16) | (7*k + 3))}
            s_mul_i32 s54, s54, {SEC}
            s_lshl_b32 s55, s55, 9
            s_add_u32 s{dst}, s54, s55""")
        A(f"""
        v_and_b32 v3, 31, v0           ; n
        v_lshrrev_b32 v12, 5, v0       ; h
        v_lshlrev_b32 v13, 4, v3       ; n*16
        v_cmp_eq_u32 vcc, 0, v12
        v_mov_b32 v14, s50
        v_mov_b32 v15, s51
        v_cndmask_b32 v14, v15, v14, vcc
        v_add_u32 v{VKP}, v14, v13
        s_and_b32 s54, s43, 1
        s_lshl_b32 s54, s54, 3
        s_add_u32 s54, s54, s52
        v_add_u32 v{VKS}, s54, v13
        v_add_u32 v{VG[0]}, {5*SEC + 2*TB}, v{VKP}
        s_mul_i32 s53, s43, 20
        s_add_u32 s45, s53, 19
        s_lshr_b32 s45, s45, 7
        s_add_u32 s45, s45, 10
        s_mul_i32 s45, s45, {SEC}
        s_add_u32 s45, s45, 8192
        """)
        def vchunk(dst, seg_v, m_v):
            A(f"""
            v_add_u32 v5, s53, v{m_v}          ; F
            v_lshrrev_b32 v6, 7, v5
            v_add_u32 v6, 10, v6
            v_mul_u32_u24 v6, {SEC // 64}, v6
            v_lshlrev_b32 v6, 6, v6
            v_bfe_u32 v7, v5, 5, 2
            v_lshlrev_b32 v7, 10, v7
            v_add_u32 v6, v6, v7
            v_and_b32 v7, 31, v5
            v_lshl_add_u32 v6, v7, 4, v6
            v_lshrrev_b32 v7, 1, v{seg_v}
            v_lshl_add_u32 v6, v7, 12, v6
            v_and_b32 v7, 1, v{seg_v}
            v_lshl_add_u32 v6, v7, 9, v6
            v_subrev_u32 v7, 20, v{m_v}
            v_and_b32 v7, 3, v7
            v_lshlrev_b32 v7, 4, v7
            v_add_u32 v7, s45, v7
            v_cmp_gt_u32 vcc, 20, v{m_v}
            s_nop 1
            v_cndmask_b32 v{dst}, v7, v6, vcc
            """)
        A("""
        v_cmp_gt_u32 vcc, 56, v0
        v_subrev_u32 v8, 32, v0
        v_subrev_u32 v9, 56, v0
        v_cndmask_b32 v8, v9, v8, vcc          ; m
        v_mov_b32 v9, 1
        v_mov_b32 v10, 0
        v_cndmask_b32 v9, v9, v10, vcc         ; seg
        """)
        vchunk(11, 9, 8)
        A(f"""
        v_add_u32 v6, s52, v13
        v_add_u32 v6, {5*SEC + 2*TB}, v6
        v_cmp_gt_u32 vcc, 32, v0
        s_nop 1
        v_cndmask_b32 v{VG[1]}, v11, v6, vcc
        v_cmp_gt_u32 vcc, 16, v0
        v_cmp_gt_u32 s[54:55], 40, v0
        v_subrev_u32 v8, 40, v0
        v_subrev_u32 v10, 16, v0
        v_cndmask_b32 v8, v8, v10, s[54:55]
        v_add_u32 v10, 8, v0
        v_cndmask_b32 v8, v8, v10, vcc         ; m
        v_mov_b32 v9, 3
        v_mov_b32 v10, 2
        v_cndmask_b32 v9, v9, v10, s[54:55]
        v_mov_b32 v10, 1
        v_cndmask_b32 v9, v9, v10, vcc         ; seg
        """)
        vchunk(VG[2], 9, 8)
        A("v_mov_b32 v8, v3\nv_mov_b32 v9, v12")
        vchunk(VVF, 9, 8)
        srd(A, R_A, P_WO, 640 * 640 * 2)
        A(f"s_and_b32 s52, s{S_J}, 7\ns_mul_i32 s52, s52, 160")
        for b in range(5):
            A(f"""
            v_add_u32 v5, {64*b}, v0
            v_mul_u32_u24 v6, 52429, v5
            v_lshrrev_b32 v6, 19, v6
            v_mul_u32_u24 v7, 10, v6
            v_sub_u32 v7, v5, v7
            v_mul_u32_u24 v6, 1280, v6
            v_lshl_add_u32 v6, v7, 4, v6
            v_add_u32 v{WOV+b}, s52, v6""")

    gather_setup()
    A(f"""
    s_mul_i32 s53, s{S_WAVE}, 5120
    s_mul_i32 s62, s{S_WAVE}, 40960
    s_mov_b32 s60, 0
    v_lshlrev_b32 v2, 4, v0
    v_mul_u32_u24 v13, 384, v12
    v_lshl_add_u32 v13, v3, 4, v13
    v_add_u32 v{AV[0]}, 1536, v13
    v_mov_b32 v{AK[0]}, v2
    s_and_b32 s54, s43, 1
    s_lshl_b32 s54, s54, 3
    s_add_u32 s54, s54, 1024
    v_lshlrev_b32 v1, 4, v3
    v_add_u32 v{AK2[0]}, s54, v1
    v_add_u32 v{AV[1]}, {CHUNK}, v{AV[0]}
    v_add_u32 v{AK[1]}, {CHUNK}, v{AK[0]}
    v_add_u32 v{AK2[1]}, {CHUNK}, v{AK2[0]}
    v_cmp_lt_u32 vcc, 20, v3
    v_mov_b32 v5, 0x30000
    v_mov_b32 v{Q2+2}, 0
    v_cndmask_b32 v{AV[0]}, v{AV[0]}, v5, vcc
    v_cndmask_b32 v{AV[1]}, v{AV[1]}, v5, vcc
    v_mov_b32 v{Q2+3}, 0
    v_mov_b32 v{KB+2}, 0
    v_mov_b32 v{KB+3}, 0
    v_mov_b32 v{KB0+2}, 0
    v_mov_b32 v{KB0+3}, 0
    v_mov_b32 v164, 0x7ff00000
    s_mul_i32 s45, s46, {TB}
    s_mul_i32 s49, s{S_WAVE}, {REC}
    s_mul_i32 s50, s{S_WAVE}, {TB}
    """)
    stp(A, "hset")
    L_gow = A.newlabel("gow"); L_go = A.newlabel("go")
    A(f"""
    s_cmp_lg_u32 s{S_WAVE}, 0
    s_cbranch_scc1 {L_gow}
    """)
    lds_wait(A, C_QKV, 5, 6, val=4)
    lds_wait(A, C_INIT, 5, 6)
    if E("NOGATE", 0):
        Lg = A.newlabel("gate")
        A(f"s_cmp_lt_u32 s{S_CB}, 15\ns_cbranch_scc1 {Lg}")
        lds_wait(A, C_UOK, 5, 6, sleep=8)
        A.label(Lg)
    A(f"""
    s_mul_i32 s54, s43, 5
    s_add_u32 s55, s54, 4
    s_lshr_b32 s54, s54, 5             ; c0
    s_lshr_b32 s55, s55, 5             ; c1
    v_bfe_u32 v5, v0, 4, 1
    v_cmp_eq_u32 vcc, 1, v5
    v_mov_b32 v6, s54
    v_mov_b32 v7, s55
    v_cndmask_b32 v6, v6, v7, vcc      ; c0 / c1
    v_lshrrev_b32 v5, 5, v0
    v_mul_u32_u24 v5, 5, v5
    v_add_u32 v5, v5, v6
    v_add_u32 v6, 10, v6
    v_and_b32 v7, 15, v0
    v_lshl_add_u32 v5, v5, 4, v7
    v_lshl_add_u32 v6, v6, 4, v7
    v_lshlrev_b32 v5, 7, v5
    v_lshlrev_b32 v6, 7, v6
    v_add_u32 v5, {SYNC + 128*L_QF}, v5
    v_add_u32 v6, {SYNC + 128*L_QF}, v6
    """)
    poll2(A, 5, 6, 64, 7, 8, E("PS_QKV", 2))
    lds_set(A, C_GO, 5, 6)
    A(f"s_branch {L_go}")
    A.label(L_gow)
    lds_wait(A, C_GO, 5, 6, sleep=E("SL_GO", 1))
    A.label(L_go)
    stp(A, "go")
    A(f"""
    buffer_load_dwordx4 {v(Q1,4)}, v{VKP}, s[{R_WS}:{R_WS+3}], s45 offen{SC}
    buffer_load_dwordx2 {v(Q2,2)}, v{VKS}, s[{R_WS}:{R_WS+3}], s45 offen{SC}
    s_mov_b32 s48, {5*SEC}
    buffer_load_dwordx4 {v(KA0,4)}, v{VKP}, s[{R_WS}:{R_WS+3}], s48 offen{SC}
    buffer_load_dwordx2 {v(KB0,2)}, v{VKS}, s[{R_WS}:{R_WS+3}], s48 offen{SC}
    s_mov_b32 s48, {5*SEC + TB}
    buffer_load_dwordx4 {v(KA,4)}, v{VKP}, s[{R_WS}:{R_WS+3}], s48 offen{SC}
    buffer_load_dwordx2 {v(KB,2)}, v{VKS}, s[{R_WS}:{R_WS+3}], s48 offen{SC}
    """)
    def kv_piece(chunk, i):
        slot = chunk % 2; rr, part = divmod(i, 3)
        return f"""
        s_add_u32 m0, s49, {slot*CHUNK + rr*8*REC + part*1024}
        s_add_u32 s51, s50, {(chunk*16 + rr*8)*TB}
        buffer_load_dwordx4 v{VG[part]}, s[{R_WS}:{R_WS+3}], s51 offen{SC} lds"""
    for i in range(6): A(kv_piece(0, i))
    if not E("C1LATE", 1):
        for i in range(6): A(kv_piece(1, i))
    A(f"""
    v_cmp_gt_u32 vcc, 32, v0
    s_waitcnt vmcnt({0 if E("C1LATE", 1) else 6})
    s_nop 0
    v_cndmask_b32 v{Q2}, 0, v{Q2}, vcc
    v_cndmask_b32 v{Q2+1}, 0, v{Q2+1}, vcc
    """)
    stp(A, "kvok")
    lds_add(A, C_KV, 12, 13)
    lds_wait(A, C_KV, 12, 13, val=8, sleep=0)
    stp(A, "att0")

    def wo_piece(kind, b):
        if kind == 0:
            return f"""
            s_add_u32 m0, s53, {WO_A + b*1024}
            s_nop 0
            buffer_load_dwordx4 v{WOV+b}, s[{R_A}:{R_A+3}], s62 offen lds"""
        if kind == 2:
            return f"""
            s_add_u32 m0, s53, {b*1024}
            s_add_u32 s51, s62, {WO_BROW*1280}
            buffer_load_dwordx4 v{WOV+b}, s[{R_A}:{R_A+3}], s51 offen lds"""
        lab = A.newlabel("wos")
        if kind == 1: lim, ldso, go = 3, WO_A + 8*5120, 8*40960
        else: lim, ldso, go = (2 if b < 2 else 1), 8*5120, WO_BROW*1280 + 8*40960
        return f"""
            s_cmp_ge_u32 s{S_WAVE}, {lim}
            s_cbranch_scc1 {lab}
            s_add_u32 m0, s53, {ldso + b*1024}
            s_add_u32 s51, s62, {go}
            buffer_load_dwordx4 v{WOV+b}, s[{R_A}:{R_A+3}], s51 offen lds
            {lab}:"""
    def qk2(Sd, Kr):
        if E("K8", 1): return f"v_mfma_f32_32x32x8bf16_1k {v(Sd,16)}, {v(Kr,2)}, {v(Q2,2)}, {v(Sd,16)}"
        return f"v_mfma_f32_32x32x16_bf16 {v(Sd,16)}, {v(Kr,4)}, {v(Q2,4)}, {v(Sd,16)}"
    PZ, PQ, PO = 132, 148, 164
    def post_task(skip):
        L_t3 = A.newlabel("t3"); L_tgo = A.newlabel("tgo")
        A(f"""
        s_cmp_eq_u32 s{S_WAVE}, 0
        s_cbranch_scc1 {skip}
        s_cmp_ge_u32 s{S_WAVE}, 4
        s_cbranch_scc1 {skip}
        s_cmp_eq_u32 s{S_WAVE}, 3
        s_cbranch_scc1 {L_t3}
        s_lshl_b32 s56, s2, 1
        s_sub_u32 s57, s{S_WAVE}, 1
        s_add_u32 s56, s56, s57
        s_branch {L_tgo}
        {L_t3}:
        s_cmp_ge_u32 s2, 128
        s_cbranch_scc1 {skip}
        s_add_u32 s56, s2, 512
        {L_tgo}:
        """)
    def post_probe():
        A(f"""
        v_min_u32 v12, 7, v0
        v_lshlrev_b32 v12, 7, v12
        v_add_u32 v12, {SYNC + 128*(FLG + L_Z)}, v12
        global_load_dword v166, v12, s[{P_WS}:{P_WS+1}] sc1
        """)
    def post_prefetch():
        Ls = A.newlabel("pps"); Lok = A.newlabel("ppok")
        post_task(Ls)
        A(f"""
        v_cmp_le_u32 vcc, 1, v166
        s_mul_i32 s57, s56, 52429
        s_lshr_b32 s57, s57, 19
        s_mul_i32 s58, s57, 10
        s_sub_u32 s58, s56, s58
        s_cmp_eq_u64 vcc, -1
        s_cbranch_scc1 {Lok}
        """)
        poll_flags(A, L_Z, 8, 12, 13, 14)
        A.label(Lok)
        srd(A, R_B, P_BQ, 2048 * 640 * 2)
        A(f"""
        v_and_b32 v12, 7, v0
        v_lshrrev_b32 v13, 3, v0
        s_lshl_b32 s54, s58, 6
        v_lshl_add_u32 v12, v12, 3, s54
        s_lshl_b32 s55, s57, 5
        v_lshl_add_u32 v13, v13, 2, s55
        v_mul_u32_u24 v14, 1280, v13
        v_lshl_add_u32 v14, v12, 1, v14
        v_mul_u32_u24 v15, 2560, v13
        v_lshl_add_u32 v15, v12, 1, v15
        v_add_u32 v{PO}, 1280, v15
        v_lshlrev_b32 v15, 12, v12
        v_lshl_add_u32 v15, v13, 1, v15
        v_add_u32 v{PO+1}, {WS_Z}, v15
        """)
        for j in range(4):
            A(f"buffer_load_dwordx4 {v(PQ+4*j,4)}, v14, s[{R_B}:{R_B+3}], 0 offen offset:{1280*j}")
        for i in range(8):
            A(f"s_mov_b32 s54, {i*4096}")
            A(f"buffer_load_dwordx2 {v(PZ+2*i,2)}, v{PO+1}, s[{R_WS}:{R_WS+3}], s54 offen{SC}")
        A.label(Ls)
    A(f"v_mfma_f32_32x32x16_bf16 {v(S[0],16)}, {v(KA0,4)}, {v(Q1,4)}, 0")
    A(qk2(S[0], KB0))
    A("s_nop 7\ns_nop 7")
    for J in range(64):
        c = J // 16; slot = c % 2; j = J % 16
        Sc, Sn = S[J % 2], S[(J + 1) % 2]
        Pc, Pp = P[J % 2], P[(J + 1) % 2]
        off = j * REC
        if j == 0 and J > 0:
            stp(A, f"attpre{J}")
            if J == 48 and E("POSTPF", 1): post_probe()
            A(f"s_waitcnt vmcnt({5 if (J == 32 and not E('SRV', 1)) else 0}) lgkmcnt(0)\ns_barrier")
            stp(A, f"attb{J}")
            if J == 48 and E("POSTPF", 1): post_prefetch()
        EX = lambda i: f"v_exp_f32 v{Sc+i}, v{Sc+i}"
        CV = lambda i: f"v_cvt_pk_bf16_f32 v{Pc+i}, v{Sc+2*i}, v{Sc+2*i+1}"
        G = [(EX(0),EX(1),EX(2),EX(3),CV(0),CV(1)), (EX(4),EX(5),EX(6),EX(7),CV(2),CV(3)), (EX(8),EX(9),EX(10),EX(11),CV(4),CV(5)), (EX(12),EX(13),EX(14),EX(15),CV(6),CV(7))]
        PJ = [int(x) for x in os.environ.get("PRIOJ", "0,9,13,15").split(",")]
        if j in PJ:
            A(f"s_setprio {3 - PJ.index(j)}")
        if J > 0 and j != 0: A("s_waitcnt lgkmcnt(2)")
        if J < 63: A(f"v_mfma_f32_32x32x16_bf16 {v(Sn,16)}, {v(KA,4)}, {v(Q1,4)}, 0")
        if J < 62: A(f"ds_read_b128 {v(KA,4)}, v{AK[slot]} offset:{off}")
        for x in G[0]: A(x)
        if J < 63: A(qk2(Sn, KB))
        if J < 62: A(f"ds_read_b64 {v(KB,2)}, v{AK2[slot]} offset:{off}")
        for x in G[1]: A(x)
        if J > 0:
            A("s_waitcnt lgkmcnt(2)" if J < 62 else "s_waitcnt lgkmcnt(0)")
            cc = "0" if J == 1 else v(O, 16)
            A(f"v_mfma_f32_32x32x16_bf16 {v(O,16)}, {v(V0,4)}, {v(Pp,4)}, {cc}")
        A(f"ds_read_b128 {v(V0,4)}, v{AV[slot]} offset:{off}")
        for x in G[2]: A(x)
        if J > 0: A(f"v_mfma_f32_32x32x16_bf16 {v(O,16)}, {v(V1,4)}, {v(Pp+4,4)}, {v(O,16)}")
        A(f"ds_read_b128 {v(V1,4)}, v{AV[slot]} offset:{off + 768}")
        if E("NODMA", 0):
            for x in G[3]: A(x)
            continue
        if E("SRV", 1):
            if c == 0 and j < 6 and not E("SRV1", 0): A(kv_piece(1, j))
        else:
            if (c in (1, 2) or (c == 0 and E("C1LATE", 1))) and j < 6: A(kv_piece(c + 1, j))
            if c == 1 and 6 <= j < 11: A(wo_piece(0, j - 6))
            if c == 1 and 11 <= j < 16: A(wo_piece(1, j - 11))
            if c == 3 and 1 <= j < 6: A(wo_piece(2, j - 1))
            if c == 3 and 6 <= j < 11: A(wo_piece(3, j - 6))
        for x in G[3]: A(x)
    stp(A, "att1")
    Pl = P[63 % 2]
    A("s_waitcnt lgkmcnt(0)")
    A(f"v_mfma_f32_32x32x16_bf16 {v(O,16)}, {v(V0,4)}, {v(Pl,4)}, {v(O,16)}")
    A(f"v_mfma_f32_32x32x16_bf16 {v(O,16)}, {v(V1,4)}, {v(Pl+4,4)}, {v(O,16)}")
    A("s_setprio 0")
    L_fin = A.newlabel("fin"); L_slow = A.newlabel("slow"); L_odone = A.newlabel("odone")
    def addr_calc():
        A(f"""
        s_lshl_b32 s52, s43, 6
        s_add_u32 s52, s52, s46
        s_mul_i32 s52, s52, 1536
        s_add_u32 s52, s52, {WS_O}
        v_lshlrev_b32 v104, 4, v0
        """)
    addr_calc()
    A("s_nop 7")
    A.label(L_fin)
    A("s_nop 7")
    A(f"""
    v_mov_b32 v110, v{O+8}
    v_mov_b32 v111, v{O+8}
    s_nop 1
    v_permlane32_swap_b32 v110, v111
    s_nop 1
    v_rcp_f32 v112, v111
    s_nop 0
    """)
    for i in range(0, 12, 2):
        A(f"v_pk_mul_f32 {v(O+i,2)}, {v(O+i,2)}, v[112:113] op_sel_hi:[1,0]")
    A(f"""
    v_add_f32 v113, abs(v{O}), abs(v{O+1})
    v_add_f32 v114, abs(v{O+8}), abs(v{O+9})
    """)
    for i in range(2, 8): A(f"v_add_f32 v113, v113, abs(v{O+i})")
    A(f"""
    v_add_f32 v114, v114, abs(v{O+10})
    v_add_f32 v114, v114, abs(v{O+11})
    v_cmp_gt_u32 vcc, 32, v0
    v_mov_b32 v115, 0x21800000         ; 2^-60
    v_mov_b32 v116, 0x5d800000         ; 2^60
    v_cndmask_b32 v114, 0, v114, vcc
    v_add_f32 v113, v113, v114
    v_mov_b32 v114, 0x7f800000
    v_cmp_nlt_f32 s[54:55], v113, v114
    v_cmp_ngt_f32 s[56:57], v111, v115
    v_cmp_nlt_f32 vcc, v111, v116
    s_nop 1
    s_or_b64 s[54:55], s[54:55], s[56:57]
    s_or_b64 s[54:55], s[54:55], vcc
    s_cmp_lg_u64 s[54:55], 0
    s_cselect_b32 s61, 1, 0
    s_andn2_b32 s61, s61, s60
    s_cmp_lg_u32 s61, 0
    s_cbranch_scc1 {L_slow}
    """)
    for i in range(4): A(f"v_cvt_pk_bf16_f32 v{O+i}, v{O+2*i}, v{O+2*i+1}")
    A(f"""
    v_cvt_pk_bf16_f32 v{O+8}, v{O+8}, v{O+9}
    v_cvt_pk_bf16_f32 v{O+9}, v{O+10}, v{O+11}
    v_mov_b32 v{O+10}, 0
    v_mov_b32 v{O+11}, 0
    buffer_store_dwordx4 {v(O,4)}, v104, s[{R_WS}:{R_WS+3}], s52 offen{SC}
    s_mov_b32 exec_hi, 0
    buffer_store_dwordx4 {v(O+8,4)}, v104, s[{R_WS}:{R_WS+3}], s52 offen offset:1024{SC}
    s_mov_b64 exec, -1
    s_branch {L_odone}
    """)
    A.label(L_slow)
    L1 = A.newlabel("p1"); L2 = A.newlabel("p2")
    A(f"""
    s_mov_b32 s60, 1
    v_mov_b32 v110, 0xff800000
    s_mov_b32 s52, 0
    {L1}:
    s_mul_i32 s63, s52, {TB}
    s_add_u32 s63, s63, {5*SEC}
    buffer_load_dwordx4 {v(KA,4)}, v{VKP}, s[{R_WS}:{R_WS+3}], s63 offen{SC}
    buffer_load_dwordx2 {v(KB,2)}, v{VKS}, s[{R_WS}:{R_WS+3}], s63 offen{SC}
    s_waitcnt vmcnt(0)
    v_mfma_f32_32x32x16_bf16 {v(S[0],16)}, {v(KA,4)}, {v(Q1,4)}, 0
    v_mfma_f32_32x32x16_bf16 {v(S[0],16)}, {v(KB,4)}, {v(Q2,4)}, {v(S[0],16)}
    s_nop 7
    s_nop 7
    """)
    for i in range(0, 16, 2): A(f"v_max3_f32 v110, v110, v{S[0]+i}, v{S[0]+i+1}")
    A(f"""
    s_add_u32 s52, s52, 1
    s_cmp_lt_u32 s52, 64
    s_cbranch_scc1 {L1}
    v_mov_b32 v108, v110
    v_mov_b32 v109, v110
    s_nop 1
    v_permlane32_swap_b32 v108, v109
    s_nop 1
    v_max_f32 v110, v108, v109
    v_and_b32 v3, 31, v0
    v_cmp_gt_u32 vcc, 20, v3
    v_add_u32 v108, 4096, v{VVF}
    s_nop 0
    v_cndmask_b32 v109, v{VVF}, v108, vcc
    """)
    for i in range(16): A(f"v_mov_b32 v{O+i}, 0")
    A("s_mov_b32 s52, 0")
    A.label(L2)
    A(f"""
    s_mul_i32 s54, s52, {TB}
    s_add_u32 s63, s54, {5*SEC}
    buffer_load_dwordx4 {v(KA,4)}, v{VKP}, s[{R_WS}:{R_WS+3}], s63 offen{SC}
    buffer_load_dwordx2 {v(KB,2)}, v{VKS}, s[{R_WS}:{R_WS+3}], s63 offen{SC}
    buffer_load_dwordx4 {v(V0,4)}, v{VVF}, s[{R_WS}:{R_WS+3}], s54 offen{SC}
    buffer_load_dwordx4 {v(V1,4)}, v109, s[{R_WS}:{R_WS+3}], s54 offen{SC}
    s_waitcnt vmcnt(0)
    v_mfma_f32_32x32x16_bf16 {v(S[0],16)}, {v(KA,4)}, {v(Q1,4)}, 0
    v_mfma_f32_32x32x16_bf16 {v(S[0],16)}, {v(KB,4)}, {v(Q2,4)}, {v(S[0],16)}
    s_nop 7
    s_nop 7
    """)
    for i in range(16): A(f"v_sub_f32 v{S[0]+i}, v{S[0]+i}, v110")
    for i in range(16): A(f"v_exp_f32 v{S[0]+i}, v{S[0]+i}")
    A("s_nop 0")
    for i in range(8): A(f"v_cvt_pk_bf16_f32 v{P[0]+i}, v{S[0]+2*i}, v{S[0]+2*i+1}")
    A(f"""
    s_nop 1
    v_mfma_f32_32x32x16_bf16 {v(O,16)}, {v(V0,4)}, {v(P[0],4)}, {v(O,16)}
    v_mfma_f32_32x32x16_bf16 {v(O,16)}, {v(V1,4)}, {v(P[0]+4,4)}, {v(O,16)}
    s_add_u32 s52, s52, 1
    s_cmp_lt_u32 s52, 64
    s_cbranch_scc1 {L2}
    s_nop 7
    """)
    addr_calc()
    A(f"s_branch {L_fin}")

    A.label(L_odone)
    AD = 80; OA = 88; VOUT, VRED = 91, 92; ACC3 = 96
    OFS = [28, 32, 36, 40, 44]
    WFS = [[116, 120, 124, 128, 132], [136, 140, 144, 148, 152], [48, 52, 56, 60, 64], [68, 72, 76, 156, 160]]
    A(f"""
    s_lshl_b32 s54, s{S_XCD}, 2
    s_lshr_b32 s55, s{S_J}, 3
    s_add_u32 s54, s54, s55        ; tb
    s_lshl_b32 s54, s54, 2
    s_and_b32 s55, s{S_WAVE}, 3
    s_add_u32 s54, s54, s55        ; T
    s_lshr_b32 s45, s54, 1
    s_mul_i32 s45, s45, 1536
    s_and_b32 s57, s54, 1
    s_lshl_b32 s57, s57, 8
    s_add_u32 s45, s45, s57
    s_add_u32 s45, s45, {WS_O}
    s_lshr_b32 s57, s{S_WAVE}, 2
    s_mul_i32 s57, s57, {16*64*1536}
    s_add_u32 s62, s45, s57
    v_lshrrev_b32 v5, 4, v0            ; kg
    v_and_b32 v6, 15, v0
    v_lshlrev_b32 v6, 4, v6
    """)
    for c in range(3):
        A(f"""
        v_add_u32 v8, {4*c}, v5
        v_mul_u32_u24 v9, 21846, v8
        v_lshrrev_b32 v9, 16, v9
        v_mul_u32_u24 v10, 3, v9
        v_sub_u32 v10, v8, v10
        v_mul_u32_u24 v9, 1536, v9
        v_lshlrev_b32 v9, 6, v9
        v_lshl_add_u32 v9, v10, 9, v9
        v_add_u32 v{OA+c}, v9, v6""")
    A(f"""
    v_and_b32 v3, 15, v0
    s_lshl_b32 s55, s54, 4
    v_add_u32 v3, s55, v3
    v_mul_u32_u24 v3, 2560, v3
    v_lshrrev_b32 v4, 4, v0
    v_lshl_add_u32 v3, v4, 3, v3
    s_and_b32 s55, s{S_J}, 7
    s_mul_i32 s55, s55, 160
    v_add_u32 v{VOUT}, s55, v3
    v_lshlrev_b32 v3, 4, v0
    s_and_b32 s55, s{S_WAVE}, 3
    s_mul_i32 s55, s55, 5120
    s_add_u32 s55, s55, {RED}
    v_add_u32 v{VRED}, s55, v3
    v_bfe_u32 v6, v0, 2, 2             ; r
    v_and_b32 v7, 3, v0
    v_lshlrev_b32 v7, 3, v7            ; 8*c4
    s_mov_b32 s59, {WO_A}
    """)
    def row_addr(dst0, s, region):
        A(f"""
        v_add_u32 v8, {4*s}, v5
        v_mul_u32_u24 v9, 21846, v8
        v_lshrrev_b32 v9, 16, v9
        v_mul_u32_u24 v10, 3, v9
        v_sub_u32 v10, v8, v10
        v_mul_u32_u24 v9, 20, v9
        v_add_u32 v9, v9, v6
        v_lshlrev_b32 v11, 2, v10
        v_cmp_eq_u32 vcc, 2, v10
        v_add_u32 v12, 8, v11
        v_lshlrev_b32 v13, 1, v11
        v_cndmask_b32 v11, v11, v13, vcc
        v_add_u32 v11, v11, v9
        v_add_u32 v12, v12, v9
        """)
        for hh, rv in enumerate((11, 12)):
            if region == "A":
                A(f"v_mul_u32_u24 v13, 160, v{rv}\nv_add3_u32 v{dst0+hh}, v13, v7, s59")
            elif region == "B":
                A(f"v_subrev_u32 v13, {WO_BROW}, v{rv}\nv_mul_u32_u24 v13, 160, v13\nv_add_u32 v{dst0+hh}, v13, v7")
            else:
                A(f"""
                v_mul_u32_u24 v13, 160, v{rv}
                v_add3_u32 v14, v13, v7, s59
                v_subrev_u32 v13, {WO_BROW*160}, v13
                v_add_u32 v13, v13, v7
                v_cmp_gt_u32 vcc, {WO_BROW}, v{rv}
                s_nop 1
                v_cndmask_b32 v{dst0+hh}, v13, v14, vcc""")
    L_ahi = A.newlabel("ahi"); L_adone = A.newlabel("adone")
    stp(A, "ostored")
    A("s_waitcnt vmcnt(0)")
    stp(A, "odrained")
    L_os = A.newlabel("os")
    lds_arrive_last(A, C_O, 8, L_os, 2, 3)
    A(f"s_add_u32 s65, s44, {L_O}")
    global_arrive(A, "s65", 32, 2, 3)
    A.label(L_os)
    A(f"""
    s_cmp_ge_u32 s{S_WAVE}, 4
    s_cbranch_scc1 {L_ahi}
    """)
    for c in range(3): row_addr(AD + 2*c, c, "A")
    A(f"s_branch {L_adone}")
    A.label(L_ahi)
    row_addr(AD + 6, 12, None)
    for c in range(3): row_addr(AD + 2*c, 13 + c, "B")
    A.label(L_adone)
    srd(A, R_B, P_OUT, 2048 * 1280 * 2)
    L_p3a = A.newlabel("p3a"); L_post = A.newlabel("post"); L_wb = A.newlabel("wb")
    post_task(L_wb)
    for j in range(4):
        for q in range(4):
            za = PZ + 2*(2*q) + j//2; zb = PZ + 2*(2*q+1) + j//2
            if j % 2 == 0:
                A(f"v_lshlrev_b32 v48, 16, v{za}\nv_lshlrev_b32 v49, 16, v{zb}")
            else:
                A(f"v_and_b32 v48, 0xffff0000, v{za}\nv_and_b32 v49, 0xffff0000, v{zb}")
            qq = PQ + 4*j + q
            A(f"v_lshlrev_b32 v50, 16, v{qq}\nv_and_b32 v51, 0xffff0000, v{qq}")
            A(f"v_pk_mul_f32 v[48:49], v[48:49], v[50:51]")
            A(f"v_cvt_pk_bf16_f32 v{52+4*j+q}, v48, v49")
        A(f"s_mov_b32 s54, {j*2560}")
        A(f"buffer_store_dwordx4 {v(52+4*j,4)}, v{PO}, s[{R_B}:{R_B+3}], s54 offen{os.environ.get('OUTB', '')}")
    A.label(L_wb)
    A("s_barrier")
    def sel_of(hi):
        if not hi: return lambda st: (AD + 2*(st % 3), (st // 3) * 12800)
        return lambda st: (AD + 6, 0) if st == 0 else (AD + 2*((st - 1) % 3), ((st - 1) // 3) * 12800)
    def rd(hi, st):
        base, so = sel_of(hi)(st); r = []
        for T in range(5):
            r.append(f"ds_read_b64_tr_b16 {v(WFS[st % 4][T],2)}, v{base} offset:{so + 32*T}")
            r.append(f"ds_read_b64_tr_b16 {v(WFS[st % 4][T]+2,2)}, v{base+1} offset:{so + 32*T}")
        return r
    PD = E("P3D", 3)
    assert PD <= 3
    def o_load(st):
        A(f"s_add_u32 s58, s62, {(st//3)*4*64*1536}")
        A(f"buffer_load_dwordx4 {v(OFS[st % 5],4)}, v{OA + st % 3}, s[{R_WS}:{R_WS+3}], s58 offen{SC}")
    def p3_pre(hi):
        for st in range(4):
            for r in rd(hi, st): A(r)
            A("s_waitcnt lgkmcnt(4)")
    def p3_wait_o(poller):
        if poller:
            Lnp = A.newlabel("np")
            A(f"""
            s_cmp_eq_u32 s{S_WAVE}, 0
            s_cbranch_scc0 {Lnp}
            s_lshl_b32 s54, s{S_XCD}, 7
            s_add_u32 s54, s54, {SYNC + 128*(FLG + L_O)}
            v_mov_b32 v2, s54
            v_cmp_eq_u32 vcc, 0, v0
            v_mov_b32 v3, 1
            s_nop 0
            v_cndmask_b32 v4, 0, v3, vcc
            """)
            poll(A, 2, 4, 3, sleep=E("PS_O", 2))
            stp(A, "ook")
            A.label(Lnp)
        stp(A, "prep3a")
        A("s_waitcnt lgkmcnt(0)\ns_barrier")
        stp(A, "p3a")
        for st in range(PD + 1): o_load(st)
    def p3_loop(hi):
        for st in range(12):
            A(f"s_waitcnt vmcnt({min(PD, 11-st)})" + (" lgkmcnt(10)" if st >= 4 and st < 9 else (" lgkmcnt(0)" if st >= 9 else "")))
            if st + PD + 1 < 12: o_load(st + PD + 1)
            if st == 0: stp(A, "p3first")
            if st == 6: stp(A, "p3mid")
            rs = rd(hi, st + 4) if st + 4 < 12 else []
            for T in range(5):
                cc = "0" if st == 0 else v(ACC3+4*T, 4)
                A(f"v_mfma_f32_16x16x32_bf16 {v(ACC3+4*T,4)}, {v(WFS[st % 4][T],4)}, {v(OFS[st % 5],4)}, {cc}")
                for r in rs[2*T:2*T+2]: A(r)
        A("s_nop 7")
    L_hi = A.newlabel("p3hi")
    A(f"""
    s_cmp_ge_u32 s{S_WAVE}, 4
    s_cbranch_scc1 {L_hi}
    """)
    p3_pre(False)
    p3_wait_o(True)
    p3_loop(False)
    stp(A, "p3loop")
    A("s_barrier")
    stp(A, "p3red")
    for T in range(5): A(f"ds_read_b128 {v(32+4*T,4)}, v{VRED} offset:{1024*T}")
    A("s_waitcnt lgkmcnt(0)")
    for T in range(5):
        d = ACC3 + 4*T
        A(f"v_pk_add_f32 {v(d,2)}, {v(d,2)}, {v(32+4*T,2)}")
        A(f"v_pk_add_f32 {v(d+2,2)}, {v(d+2,2)}, {v(34+4*T,2)}")
        A(f"v_cvt_pk_bf16_f32 v{d}, v{d}, v{d+1}")
        A(f"v_cvt_pk_bf16_f32 v{d+1}, v{d+2}, v{d+3}")
        A(f"buffer_store_dwordx2 {v(d,2)}, v{VOUT}, s[{R_B}:{R_B+3}], 0 offen offset:{32*T}{os.environ.get('OUTA', '')}")
    prof_dump(A, 0, wsptr=P_WS)
    A("s_endpgm")
    A.label(L_hi)
    p3_pre(True)
    p3_wait_o(False)
    p3_loop(True)
    for T in range(5): A(f"ds_write_b128 v{VRED}, {v(ACC3+4*T,4)} offset:{1024*T}")
    A("s_waitcnt lgkmcnt(0)\ns_barrier")
    prof_dump(A, 0, wsptr=P_WS)
    A("s_endpgm")

    A.mark("bw")
    A.label(L_bw)
    BK, BV, BW = 16, 44, 60
    def b_setup(notask, chan_only):
        L2_ = A.newlabel("b2")
        A(f"""
        s_cmp_eq_u32 s{S_WAVE}, 10
        s_cbranch_scc1 {L2_}
        s_lshl_b32 s56, s2, 1
        s_sub_u32 s57, s{S_WAVE}, 8
        s_add_u32 s56, s56, s57
        """)
        b_addr()
        Lc = A.newlabel("bcont")
        A(f"""
        s_branch {Lc}
        {L2_}:
        s_cmp_ge_u32 s2, 128
        s_cbranch_scc1 {notask}
        s_add_u32 s56, s2, 512
        s_mov_b32 s65, 0
        s_branch {chan_only}
        {Lc}:
        """)
    def b_addr():
        A(f"""
        s_mul_i32 s57, s56, 52429
        s_lshr_b32 s57, s57, 19        ; tblk
        s_mul_i32 s58, s57, 10
        s_sub_u32 s58, s56, s58        ; dblk
        v_and_b32 v2, 7, v0            ; dg
        v_lshrrev_b32 v3, 3, v0        ; tg
        v_lshlrev_b32 v12, 6, v2
        v_lshl_add_u32 v12, v3, 3, v12
        s_lshl_b32 s54, s56, 12
        s_add_u32 s54, s54, {WS_U}
        v_add_u32 v12, s54, v12
        s_lshl_b32 s54, s58, 6
        v_lshl_add_u32 v2, v2, 3, s54  ; d0
        s_lshl_b32 s55, s57, 5
        v_lshl_add_u32 v3, v3, 2, s55  ; t0
        v_mul_u32_u24 v4, 1280, v3
        v_lshl_add_u32 v10, v2, 1, v4
        v_lshlrev_b32 v11, 3, v2
        v_subrev_u32 v5, 3840, v10
        v_subrev_u32 v6, 2560, v10
        v_subrev_u32 v7, 1280, v10
        """)
    def b_loads():
        srd(A, R_C, P_BK, 2048 * 640 * 2)
        A(f"""
        buffer_load_dwordx4 {v(BK,4)}, v5, s[{R_C}:{R_C+3}], 0 offen
        buffer_load_dwordx4 {v(BK+4,4)}, v6, s[{R_C}:{R_C+3}], 0 offen
        buffer_load_dwordx4 {v(BK+8,4)}, v7, s[{R_C}:{R_C+3}], 0 offen
        """)
        for j in range(4): A(f"buffer_load_dwordx4 {v(BK+12+4*j,4)}, v10, s[{R_C}:{R_C+3}], 0 offen offset:{1280*j}")
        srd(A, R_C, P_BV, 2048 * 640 * 2)
        for j in range(4): A(f"buffer_load_dwordx4 {v(BV+4*j,4)}, v10, s[{R_C}:{R_C+3}], 0 offen offset:{1280*j}")
        srd(A, R_C, P_SH, 640 * 4 * 2)
        for j in range(4): A(f"buffer_load_dwordx4 {v(BW+4*j,4)}, v11, s[{R_C}:{R_C+3}], 0 offen offset:{16*j}")
    def b_compute(q):
        KP, VP, WP, AC, OUT = 80, 94, 102, 110, 120
        for j in range(7):
            A(f"v_lshlrev_b32 v{KP+2*j}, 16, v{BK+4*j+q}\nv_and_b32 v{KP+1+2*j}, 0xffff0000, v{BK+4*j+q}")
        for t in range(4):
            A(f"v_lshlrev_b32 v{VP+2*t}, 16, v{BV+4*t+q}\nv_and_b32 v{VP+1+2*t}, 0xffff0000, v{BV+4*t+q}")
        for u in range(2):
            bb = BW + 4*q + 2*u
            A(f"v_lshlrev_b32 v{WP+u}, 16, v{bb}\nv_and_b32 v{WP+2+u}, 0xffff0000, v{bb}")
            A(f"v_lshlrev_b32 v{WP+4+u}, 16, v{bb+1}\nv_and_b32 v{WP+6+u}, 0xffff0000, v{bb+1}")
        for t in range(4):
            acc = AC + 2*t
            A(f"v_pk_mul_f32 {v(acc,2)}, {v(KP+2*(t+0),2)}, {v(WP+6,2)}")
            A(f"v_pk_fma_f32 {v(acc,2)}, {v(KP+2*(t+1),2)}, {v(WP+4,2)}, {v(acc,2)}")
            A(f"v_pk_fma_f32 {v(acc,2)}, {v(KP+2*(t+2),2)}, {v(WP+2,2)}, {v(acc,2)}")
            A(f"v_pk_fma_f32 {v(acc,2)}, {v(KP+2*(t+3),2)}, {v(WP,2)}, {v(acc,2)}")
            A(f"v_pk_mul_f32 {v(acc,2)}, {v(acc,2)}, {v(VP+2*t,2)}")
        for u in range(2):
            o = OUT + 4*q + 2*u
            A(f"v_cvt_pk_bf16_f32 v{o}, v{AC+u}, v{AC+2+u}\nv_cvt_pk_bf16_f32 v{o+1}, v{AC+4+u}, v{AC+6+u}")
        for u in range(2):
            o = OUT + 4*q + 2*u
            A(f"buffer_store_dwordx2 {v(o,2)}, v12, s[{R_WS}:{R_WS+3}], 0 offen offset:{(2*q+u)*512}{SC}")
    def init_load():
        A(f"v_mov_b32 v2, 0\nglobal_load_dword v9, v2, s[{P_DBG}:{P_DBG+1}] sc1")
    def u_publish(n):
        A(f"s_waitcnt vmcnt({n})\ns_mov_b32 s65, 0")
        Lok = A.newlabel("iok"); Lsk = A.newlabel("usk")
        A(f"""
        v_readfirstlane_b32 s66, v9
        s_nop 3
        s_cmp_lg_u32 s66, 0
        s_cbranch_scc1 {Lok}
        v_mov_b32 v2, 0
        v_mov_b32 v3, 1
        """)
        poll(A, 2, 3, 4, sleep=8, base=P_DBG)
        A.label(Lok)
        lds_set(A, C_INIT, 2, 3)
        A(f"s_cmp_ge_u32 s{S_CBK}, 15\ns_cselect_b32 s64, 10, 2")
        lds_arrive_last(A, C_U, "s64", Lsk, 2, 3)
        A(f"""
        s_and_b32 s66, s2, 7
        s_add_u32 s66, s66, {L_U}
        s_lshl_b32 s66, s66, 7
        s_add_u32 s66, s66, {SYNC}
        v_mov_b32 v10, s66
        v_mov_b32 v11, 1
        s_mov_b64 exec, 1
        global_atomic_add v11, v10, v11, s[{P_WS}:{P_WS+1}] sc0 sc1
        s_mov_b64 exec, -1
        s_mov_b32 s65, 1
        {Lsk}:
        """)
    def u_flag():
        L = A.newlabel("uf")
        A(f"""
        s_cmp_eq_u32 s65, 0
        s_cbranch_scc1 {L}
        s_waitcnt vmcnt(0)
        v_readfirstlane_b32 s66, v11
        s_nop 3
        s_cmp_lg_u32 s66, 31
        s_cbranch_scc1 {L}
        v_add_u32 v10, {128*40}, v10
        v_mov_b32 v11, 1
        s_mov_b64 exec, 1
        global_store_dword v10, v11, s[{P_WS}:{P_WS+1}] sc1
        s_mov_b64 exec, -1
        {L}:
        """)
    HR = 136
    def h_loads():
        srd(A, R_C, P_SK, 640 * 4096)
        A(f"""
        s_sub_u32 s57, s{S_WAVE}, 8
        s_mul_i32 s57, s57, {CONV_SZ}
        s_add_u32 s57, s57, {CONV_BASE}
        s_lshl_b32 s58, s56, 12
        v_lshlrev_b32 v13, 4, v0
        v_add_u32 v13, s58, v13
        v_subrev_u32 v14, 8, v13
        """)
        for p in range(4):
            if p == 0:
                A(f"buffer_load_dwordx2 {v(HR,2)}, v14, s[{R_C}:{R_C+3}], 0 offen")
            else:
                A(f"buffer_load_dwordx2 {v(HR+6*p,2)}, v13, s[{R_C}:{R_C+3}], 0 offen offset:{1024*p - 8}")
            A(f"buffer_load_dwordx4 {v(HR+6*p+2,4)}, v13, s[{R_C}:{R_C+3}], 0 offen offset:{1024*p}")
    def h_build():
        A(f"""
        v_cmp_eq_u32 vcc, 0, v0
        v_lshlrev_b32 v6, 4, v0
        v_add_u32 v6, s57, v6
        v_add_u32 v6, 32, v6
        v_cndmask_b32 v{HR}, v{HR}, 0, vcc
        v_cndmask_b32 v{HR+1}, v{HR+1}, 0, vcc
        """)
        for p in range(4):
            b = HR + 6*p; P1, P0, D = b, b + 1, b + 2
            T1, T2, T3 = 16 + 12*(p % 2), 20 + 12*(p % 2), 24 + 12*(p % 2)
            A(f"""
            ds_write_b128 v6, {v(D,4)} offset:{0*COPY + 1024*p}
            v_alignbit_b32 v{T1}, v{D}, v{P0}, 16
            v_alignbit_b32 v{T1+1}, v{D+1}, v{D}, 16
            v_alignbit_b32 v{T1+2}, v{D+2}, v{D+1}, 16
            v_alignbit_b32 v{T1+3}, v{D+3}, v{D+2}, 16
            v_mov_b32 v{T2}, v{P0}
            v_mov_b32 v{T2+1}, v{D}
            v_mov_b32 v{T2+2}, v{D+1}
            v_mov_b32 v{T2+3}, v{D+2}
            v_alignbit_b32 v{T3}, v{P0}, v{P1}, 16
            v_mov_b32 v{T3+1}, v{T1}
            v_mov_b32 v{T3+2}, v{T1+1}
            v_mov_b32 v{T3+3}, v{T1+2}
            ds_write_b128 v6, {v(T1,4)} offset:{1*COPY + 1024*p}
            ds_write_b128 v6, {v(T2,4)} offset:{2*COPY + 1024*p}
            ds_write_b128 v6, {v(T3,4)} offset:{3*COPY + 1024*p}
            """)
    L_bnog = A.newlabel("bnog"); L_bnt = A.newlabel("bnt"); L_sync = A.newlabel("sync"); L_bntn = A.newlabel("bntn")
    A(f"""
    s_cmp_ge_u32 s{S_CB}, 15
    s_cbranch_scc1 {L_bnog}
    """)
    L_chonly = A.newlabel("chonly")
    b_setup(L_bnt, L_chonly)
    if E("BISS", 0): lds_wait(A, C_ISS, 2, 3, val=4, sleep=1)
    if E("NOBW", 0):
        lds_set(A, C_INIT, 2, 3)
        for _ in range(10): A("s_barrier")
        A(f"s_branch {L_exit}")
    MODE = E("BMODE", 3)
    if MODE == 3:
        hl3 = E("HL3", 0)
        b_loads()
        if not hl3: h_loads()
        A("s_branch L_bw1")
        A.mark("bw1")
        A.label("L_bw1")
        if EARLY: A("s_barrier")
        k = E("BWAIT", 4)
        for _ in range(k): A("s_barrier")
        A(f"s_waitcnt vmcnt({0 if hl3 else 8})")
        stp(A, "blok")
        if E("BPRIO", 0): A(f"s_setprio {E('BPRIO', 0)}")
        nsp = E("BSPLIT", 2)
        for q in range(4):
            b_compute(q)
            if (nsp == 2 and q == 1) or (nsp == 4 and q < 3): A("s_barrier")
        used = 1 if nsp == 2 else (3 if nsp == 4 else 0)
        A("s_setprio 0")
        init_load()
        g = E("BGAP", 2)
        for _ in range(g): A("s_barrier")
        u_publish(0)
        stp(A, "upub")
        if hl3: h_loads()
        rest = 10 - k - used - g
        uf = E("UFAT", 2)
        for i in range(rest):
            A("s_barrier")
            if i + 1 == uf and uf < rest:
                u_flag()
                A("s_mov_b32 s65, 0")
    elif MODE == 2:
        if EARLY: A("s_barrier")
        for _ in range(E("BAT", 1)): A("s_barrier")
        b_loads()
        h_loads()
        for _ in range(10 - E("BAT", 1)): A("s_barrier")
        A("s_waitcnt vmcnt(8)")
        stp(A, "blok")
        for q in range(4): b_compute(q)
        init_load()
        u_publish(0)
        stp(A, "upub")
    else:
        hl = E("HLATE", 1)
        b_loads()
        if not hl: h_loads()
        A(f"s_waitcnt vmcnt({0 if hl else 8})")
        stp(A, "blok")
        for q in range(4): b_compute(q)
        init_load()
        npub = E("NPUB", 2)
        for _ in range(npub): A("s_barrier")
        u_publish(0)
        stp(A, "upub")
        if hl:
            for _ in range(hl): A("s_barrier")
            h_loads()
        for _ in range(10 - npub - hl): A("s_barrier")
    stp(A, "b9")
    A(f"s_branch {L_conv}")
    A.label(L_bnt)
    A(f"s_branch {L_exit}")
    A.label(L_chonly)
    nh = E("HLC", 0)
    if EARLY and nh: A("s_barrier")
    for _ in range(nh): A("s_barrier")
    h_loads()
    if EARLY and not nh: A("s_barrier")
    for _ in range(10 - nh): A("s_barrier")
    A(f"s_branch {L_conv}")
    A.label(L_bnog)
    if E("NOBW", 0):
        lds_set(A, C_INIT, 2, 3)
        A(f"s_branch {L_exit}")
    b_setup(L_exit, L_exit)
    b_loads()
    h_loads()
    if EARLY: A("s_barrier")
    A("s_waitcnt vmcnt(8)")
    for q in range(4): b_compute(q)
    init_load()
    u_publish(0)
    A(f"s_branch {L_conv}")
    A.label("L_nogtask")
    A(f"""
    s_sub_u32 s56, s{S_J}, 28
    s_lshl_b32 s56, s56, 2
    s_lshr_b32 s57, s{S_XCD}, 1
    s_add_u32 s56, s56, s57
    s_lshl_b32 s56, s56, 3
    s_add_u32 s56, s56, s{S_WAVE}
    s_add_u32 s56, s56, 512
    """)
    b_addr()
    b_loads()
    A("s_waitcnt vmcnt(0)")
    for q in range(4): b_compute(q)
    init_load()
    u_publish(0)
    u_flag()
    A("s_branch L_nogdone")

    A.mark("conv")
    A.label(L_conv)
    u_flag()
    A(f"""
    s_lshr_b32 s59, s56, 1
    s_lshl_b32 s59, s59, 2
    s_load_dword s60, s[{P_SD}:{P_SD+1}], s59
    v_mov_b32 v12, 0
    v_mov_b32 v13, 0
    v_mov_b32 v14, 0
    v_mov_b32 v15, 0
    v_lshlrev_b32 v6, 3, v0
    v_add_u32 v6, s57, v6
    v_add_u32 v6, {4*COPY}, v6
    v_cmp_gt_u32 vcc, 60, v0
    s_and_saveexec_b64 s[54:55], vcc
    ds_write_b64 v6, v[12:13]
    s_mov_b64 exec, s[54:55]
    v_and_b32 v6, 1, v0
    v_lshlrev_b32 v6, 4, v6
    v_lshrrev_b32 v7, 1, v0
    v_mul_u32_u24 v7, {COPY}, v7
    v_add3_u32 v6, v6, v7, s57
    v_cmp_gt_u32 vcc, 8, v0
    s_and_saveexec_b64 s[54:55], vcc
    ds_write_b128 v6, v[12:15]
    s_mov_b64 exec, s[54:55]
    s_waitcnt vmcnt(0)
    """)
    h_build()
    VGB = [160, 161, 162]; WOVB = 163
    if E("SRV", 1): gather_setup(VGB, 40, 41, 42, WOVB)
    A(f"""
    s_lshr_b32 s54, s56, 6
    s_and_b32 s55, s56, 63
    s_and_b32 s61, s55, 7
    s_lshr_b32 s55, s55, 3
    s_lshl_b32 s61, s61, 9
    s_lshl_b32 s55, s55, 6
    s_add_u32 s61, s61, s55
    s_lshl_b32 s54, s54, 12
    s_add_u32 s61, s61, s54
    s_add_u32 s61, s61, {WS_U}
    v_lshrrev_b32 v8, 2, v0
    v_mul_u32_u24 v8, 40960, v8
    v_and_b32 v9, 3, v0
    v_lshl_add_u32 v8, v9, 4, v8
    """)
    L_uw = A.newlabel("uw"); L_ud = A.newlabel("ud")
    A(f"s_cmp_lg_u32 s{S_WAVE}, 8\ns_cbranch_scc1 {L_uw}")
    if E("UGATE", 0) == 1: lds_wait(A, C_GO, 2, 3, sleep=4)
    if E("UGATE", 0) == 2: lds_wait(A, C_QKV, 2, 3, val=4, sleep=4)
    A(f"""
    v_lshlrev_b32 v2, 7, v0
    v_add_u32 v2, {SYNC + 128*(L_U + 40)}, v2
    v_cmp_gt_u32 vcc, 8, v0
    v_mov_b32 v3, 1
    s_nop 0
    v_cndmask_b32 v4, 0, v3, vcc
    """)
    poll(A, 2, 4, 3, sleep=E("PS_U", 6))
    lds_set(A, C_UOK, 2, 3)
    A(f"s_branch {L_ud}")
    A.label(L_uw)
    lds_wait(A, C_UOK, 2, 3)
    A("s_waitcnt vmcnt(0)")
    A.label(L_ud)
    stp(A, "uok")
    for p in range(4):
        A(f"""
        s_add_u32 m0, s57, {4*COPY + 480 + p*1024}
        s_add_u32 s54, s61, {p*16*40960}
        buffer_load_dwordx4 v8, s[{R_WS}:{R_WS+3}], s54 offen{SC} lds""")
    A(f"""
    v_lshrrev_b32 v6, 4, v0             ; kg
    v_bfe_u32 v7, v0, 2, 2              ; r
    v_and_b32 v8, 3, v0                 ; c
    v_mul_u32_u24 v7, {COPY}, v7
    v_lshlrev_b32 v8, 3, v8
    v_lshlrev_b32 v9, 4, v6
    v_sub_u32 v8, v8, v9
    v_add_u32 v8, 56, v8
    v_add3_u32 v4, v7, v8, s57          ; vA
    v_and_b32 v7, 15, v0
    v_lshlrev_b32 v7, 5, v7
    v_lshl_add_u32 v7, v6, 4, v7
    v_add_u32 v7, {4*COPY}, v7
    v_add_u32 v5, s57, v7               ; vB
    s_waitcnt vmcnt(0) lgkmcnt(0)
    s_and_b32 s54, s56, 1
    s_lshl_b32 s54, s54, 4
    s_lshr_b32 s60, s60, s54
    s_lshl_b32 s60, s60, 16             ; D as f32
    """)
    stp(A, "conv0")
    Y = 32; AT = 64; BT = 128
    def a_reads(rho, p):
        mu = rho + 8 * p
        return [f"ds_read_b64_tr_b16 {v(AT+4*p,2)}, v4 offset:{64*mu + 8}",
                f"ds_read_b64_tr_b16 {v(AT+4*p+2,2)}, v4 offset:{64*mu}"]
    def b_read(rho, q): return f"ds_read_b128 {v(BT+4*q,4)}, v5 offset:{64*(8*q - rho + 7)}"
    A(f"s_setprio {E('CPRIO', 0)}")
    if E("CPACE", 0):
        for q in range(7, -1, -1): A(b_read(0, q))
        for rho in range(8):
            for p in range(8):
                for r in a_reads(rho, p): A(r)
                A("s_waitcnt lgkmcnt(0)")
                for q in range(7 - p, -1, -1):
                    i = p + q
                    cc = "0" if (rho == 0 and p == 0) else v(Y+4*i, 4)
                    A(f"v_mfma_f32_16x16x32_bf16 {v(Y+4*i,4)}, {v(AT+4*p,4)}, {v(BT+4*q,4)}, {cc}")
                if rho < 7: A(b_read(rho + 1, 7 - p))
            if rho == 3:
                stp(A, "convh")
                A("s_barrier")
    else:
        ATS = [64, 96]
        def a_reads2(rho, p, sid):
            mu = rho + 8 * p
            return [f"ds_read_b64_tr_b16 {v(ATS[sid]+4*p,2)}, v4 offset:{64*mu + 8}",
                    f"ds_read_b64_tr_b16 {v(ATS[sid]+4*p+2,2)}, v4 offset:{64*mu}"]
        for q in range(7, -1, -1): A(b_read(0, q))
        A("s_waitcnt lgkmcnt(4)")
        for p in range(8):
            for r in a_reads2(0, p, 0): A(r)
            if p == 3: A("s_waitcnt lgkmcnt(4)")
        for rho in range(8):
            sid = rho % 2
            nxtA = [x for p in range(8) for x in a_reads2(rho + 1, p, 1 - sid)] if rho < 7 else []
            A("s_waitcnt lgkmcnt(0)" if rho == 0 else "s_waitcnt lgkmcnt(4)")
            for p in range(8):
                for q in range(7 - p, -1, -1):
                    i = p + q
                    cc = "0" if (rho == 0 and p == 0) else v(Y+4*i, 4)
                    if p == 0 and rho > 0 and q <= 3:
                        A(f"s_waitcnt lgkmcnt({7 if rho < 7 else q})")
                    A(f"v_mfma_f32_16x16x32_bf16 {v(Y+4*i,4)}, {v(ATS[sid]+4*p,4)}, {v(BT+4*q,4)}, {cc}")
                    if nxtA: A(nxtA.pop(0))
                if rho < 7: A(b_read(rho + 1, 7 - p))
            if rho == E("CBAR", -1):
                stp(A, "convh")
                A("s_barrier")
    stp(A, "conv1")
    if E("TPRIO", 3): A(f"s_setprio {E('TPRIO', 3)}")
    def srv_kv(chunk):
        slot = chunk % 2
        for r in range(8):
            for part in range(3):
                A(f"""
                s_add_u32 m0, s49, {slot*CHUNK + r*REC + part*1024}
                s_add_u32 s51, s50, {(chunk*16 + r)*TB}
                buffer_load_dwordx4 v{VGB[part]}, s[{R_WS}:{R_WS+3}], s51 offen{SC} lds""")
    if E("SRV", 1):
        A(f"""
        s_sub_u32 s54, s{S_WAVE}, 8            ; bw
        s_mul_i32 s49, s54, {8*REC}
        s_mul_i32 s50, s54, {8*TB}
        """)
    if E("SRV", 1) and E("SRV1", 0):
        Lsk1 = A.newlabel("srv1")
        A(f"s_cmp_eq_u32 s{S_WAVE}, 10\ns_cbranch_scc1 {Lsk1}")
        lds_wait(A, C_GO, 2, 3, sleep=2)
        srv_kv(1)
        A.label(Lsk1)
    A(f"""
    v_and_b32 v7, 15, v0
    v_lshrrev_b32 v6, 4, v0
    v_lshlrev_b32 v7, 5, v7
    v_lshl_add_u32 v7, v6, 3, v7        ; 32n + 8g
    v_add_u32 v8, s57, v7
    v_add_u32 v8, {4*COPY + 480}, v8
    s_add_u32 s61, s58, {WS_Z}
    """)
    for i in range(8): A(f"ds_read_b64 {v(64+2*i,2)}, v8 offset:{512*i}")
    A("s_waitcnt lgkmcnt(0)\ns_nop 3")
    for i in range(8):
        u0, u1 = 64 + 2*i, 64 + 2*i + 1
        y = Y + 4*i
        A(f"""
        v_lshlrev_b32 v96, 16, v{u0}
        v_and_b32 v97, 0xffff0000, v{u0}
        v_lshlrev_b32 v98, 16, v{u1}
        v_and_b32 v99, 0xffff0000, v{u1}
        v_fma_f32 v{y}, v96, s60, v{y}
        v_fma_f32 v{y+1}, v97, s60, v{y+1}
        v_fma_f32 v{y+2}, v98, s60, v{y+2}
        v_fma_f32 v{y+3}, v99, s60, v{y+3}
        v_cvt_pk_bf16_f32 v{y}, v{y}, v{y+1}
        v_cvt_pk_bf16_f32 v{y+1}, v{y+2}, v{y+3}
        buffer_store_dwordx2 {v(y,2)}, v7, s[{R_WS}:{R_WS+3}], s61 offen offset:{512*i}{SC}""")
    def z_publish():
        A("s_waitcnt vmcnt(0)")
        stp(A, "zdrained")
        L_zs = A.newlabel("zs")
        A("s_cmp_lt_u32 s2, 128\ns_cselect_b32 s64, 3, 2")
        lds_arrive_last(A, C_Z, "s64", L_zs, 2, 3)
        A(f"s_and_b32 s65, s2, 7\ns_add_u32 s65, s65, {L_Z}")
        global_arrive(A, "s65", 32, 2, 3)
        A.label(L_zs)
    if not E("SRV", 1):
        A("s_barrier")
        z_publish()
    else:
        L_srv = A.newlabel("srv")
        A(f"s_cmp_lg_u32 s{S_WAVE}, 10\ns_cbranch_scc1 {L_srv}")
        A("s_barrier")
        z_publish()
        prof_dump(A, 0, wsptr=P_WS)
        A("s_endpgm")
        A.label(L_srv)
        A(f"""
        s_sub_u32 s56, s{S_WAVE}, 8            ; bw
        s_mul_i32 s53, s56, 5120
        s_mul_i32 s62, s56, 40960
        """)
        if E("SRV1", 0): A("s_waitcnt vmcnt(8)")
        A("s_barrier")
        if E("TPRIO", 3) and not E("TPKEEP", 1): A("s_setprio 0")
        z_publish()
        def srv_wo(region):
            n = 0
            groups = range(0, 12, 2) if region == "A" else range(0, 10, 2)
            for a2 in groups:
                for b in range(5):
                    lab = None
                    if region == "A" and a2 == 10:
                        lab = A.newlabel("wsk"); A(f"s_cmp_lg_u32 s56, 0\ns_cbranch_scc1 {lab}")
                    if region == "B" and a2 == 8 and b >= 2:
                        lab = A.newlabel("wsk"); A(f"s_cmp_lg_u32 s56, 0\ns_cbranch_scc1 {lab}")
                    ldso = (WO_A if region == "A" else 0) + a2*5120 + b*1024
                    go = a2*40960 + (0 if region == "A" else WO_BROW*1280)
                    A(f"""
                    s_add_u32 m0, s53, {ldso}
                    s_add_u32 s51, s62, {go}
                    buffer_load_dwordx4 v{WOVB+b}, s[{R_A}:{R_A+3}], s51 offen lds""")
                    if lab: A.label(lab)
                    else: n += 1
            return n
        srv_kv(2)
        n = srv_wo("A")
        A(f"s_waitcnt vmcnt({n})\ns_barrier")
        srv_kv(3)
        A("s_waitcnt vmcnt(0)\ns_barrier")
        srv_wo("B")
        A("s_waitcnt vmcnt(0)")
    prof_dump(A, 0, wsptr=P_WS)
    A.label(L_exit)
    A("s_endpgm")

def build():
    hdr = open("cdna_kernels/" + NAME + ".s.ref").read().split("; Override launch geometry")[0]
    A = Asm(); gen(A)
    A.reorder(os.environ.get("ORDER", "prod,bw,prod1,bw1,cons,main,conv").split(","))
    out = hdr + f"; @launch grid=(256,1,1) block=(704,1,1) lds={LDS}\n"
    out += '.amdgcn_target "amdgcn-amd-amdhsa--gfx950"\n.text\n' + A.text()
    out += f""".section .rodata,"a"
.p2align 6
.amdhsa_kernel {KNAME}
  .amdhsa_next_free_vgpr {VGPRS}
  .amdhsa_next_free_sgpr 102
  .amdhsa_accum_offset {VGPRS}
  .amdhsa_group_segment_fixed_size 0
  .amdhsa_kernarg_size 96
  .amdhsa_user_sgpr_count 2
  .amdhsa_user_sgpr_kernarg_segment_ptr 1
  .amdhsa_system_sgpr_workgroup_id_x 1
  .amdhsa_float_denorm_mode_32 3
.end_amdhsa_kernel
"""
    return out

if __name__ == "__main__":
    open(sys.argv[1], "w").write(build())
```

```python
import os, sys, struct, math
from asmlib import *
from slots import ASSIGN, HEADWORD

NAME = "concat_heads__softmax_full_mha__ssm_conv_h3__prompt"
KNAME = NAME + "_kernel"
E = lambda k, d=0: int(os.environ.get(k, d))

TB = 8320
SEC = 64 * TB
WS_U  = 0x800000
WS_Z  = 0xB00000
WS_O  = 0xE00000
SYNC  = 0x1200000
WS_BYTES = 0x1214000
REC = 3072
CHUNK = 16 * REC
COPY = 4160
CONV_SZ = 4 * COPY + 4608
CONV_BASE = 98304
CNT = CONV_BASE + 3 * CONV_SZ
LDS = CNT + 256
WO_A = 98304
WO_BROW = 340
RED = CHUNK
VGPRS = 168
POLL_MAX = 200000
SC = os.environ.get("SCF", " sc1")
L_U, L_Z, L_O, L_QF = 0, 8, 24, 48
FLG = 8
N_LINES = 288
ZERO_WG = 225
C_QKV, C_U, C_Z, C_O, C_UOK, C_INIT, C_GO, C_KV, C_ISS = 0, 4, 8, 12, 16, 20, 24, 28, 32

def f32bits(x): return struct.unpack("<I", struct.pack("<f", x))[0]
QSCALE = f32bits(20 ** -0.5 * math.log2(math.e))

P_X, P_W, P_WO, P_BQ, P_BK, P_BV, P_SH, P_SK, P_SD, P_OUT, P_DBG, P_WS = 4, 6, 8, 10, 12, 14, 16, 18, 20, 22, 24, 26
R_WS = 28
R_A, R_B, R_C = 32, 36, 44
S_WAVE, S_XCD, S_J, S_RB, S_CB = 40, 41, 42, 43, 48
S_CBK = 48

STAMPS = dict(x.split(":") for x in os.environ.get("STAMPS", "b0:1,gend:2,uok:2,att0:4,att1:5,p3a:6").split(","))
def stp(A, name):
    if name in STAMPS: stamp(A, int(STAMPS[name]))

def poll(A, addr_v, thr_v, tmp, sleep=4, base=P_WS):
    L = A.newlabel("poll"); D = A.newlabel("polld")
    A(f"""
    v_cmp_ne_u32 vcc, 0, v{thr_v}
    s_mov_b32 s66, {POLL_MAX}
    s_nop 1
    s_mov_b64 exec, vcc
    {L}:
    global_load_dword v{tmp}, v{addr_v}, s[{base}:{base+1}] sc1
    s_waitcnt vmcnt(0)
    v_cmp_ge_u32 vcc, v{tmp}, v{thr_v}
    s_nop 3
    s_cmp_eq_u64 vcc, exec
    s_cbranch_scc1 {D}
    s_sleep {sleep}
    s_sub_u32 s66, s66, 1
    s_cmp_lg_u32 s66, 0
    s_cbranch_scc1 {L}
    {D}:
    s_mov_b64 exec, -1
    """)
def poll_flags(A, line0, nlines, t_addr, t_thr, tmp, sleep=4):
    A(f"""
    v_lshlrev_b32 v{t_addr}, 7, v0
    v_add_u32 v{t_addr}, {SYNC + 128*(FLG + line0)}, v{t_addr}
    v_cmp_gt_u32 vcc, {nlines}, v0
    v_mov_b32 v{tmp}, 1
    s_nop 0
    v_cndmask_b32 v{t_thr}, 0, v{tmp}, vcc
    """)
    poll(A, t_addr, t_thr, tmp, sleep)
def lds_set(A, off, t0, t1):
    A(f"""
    v_mov_b32 v{t0}, {CNT + off}
    v_mov_b32 v{t1}, 1
    ds_write_b32 v{t0}, v{t1}
    """)
def lds_add(A, off, t0, t1):
    A(f"""
    v_mov_b32 v{t0}, {CNT + off}
    v_mov_b32 v{t1}, 1
    s_mov_b64 exec, 1
    ds_add_u32 v{t0}, v{t1}
    s_mov_b64 exec, -1
    """)
def lds_wait(A, off, t0, t1, val=1, sleep=1):
    L = A.newlabel("lw"); D = A.newlabel("lwd")
    A(f"""
    v_mov_b32 v{t0}, {CNT + off}
    s_mov_b32 s66, {POLL_MAX*16}
    {L}:
    ds_read_b32 v{t1}, v{t0}
    s_waitcnt lgkmcnt(0)
    v_readfirstlane_b32 s67, v{t1}
    s_nop 3
    s_cmp_ge_u32 s67, {val}
    s_cbranch_scc1 {D}
    s_sleep {sleep}
    s_sub_u32 s66, s66, 1
    s_cmp_lg_u32 s66, 0
    s_cbranch_scc1 {L}
    {D}:
    """)
def lds_arrive_last(A, off, n_s, skip_lab, t0, t1):
    A(f"""
    v_mov_b32 v{t0}, {CNT + off}
    v_mov_b32 v{t1}, 1
    s_mov_b64 exec, 1
    ds_add_rtn_u32 v{t1}, v{t0}, v{t1}
    s_waitcnt lgkmcnt(0)
    s_mov_b64 exec, -1
    v_readfirstlane_b32 s66, v{t1}
    s_nop 3
    s_add_u32 s66, s66, 1
    s_cmp_lg_u32 s66, {n_s}
    s_cbranch_scc1 {skip_lab}
    """)
def global_arrive(A, line_s, total, t0, t1):
    L = A.newlabel("ga")
    A(f"""
    s_lshl_b32 s66, {line_s}, 7
    s_add_u32 s66, s66, {SYNC}
    v_mov_b32 v{t0}, s66
    v_mov_b32 v{t1}, 1
    s_mov_b64 exec, 1
    global_atomic_add v{t1}, v{t0}, v{t1}, s[{P_WS}:{P_WS+1}] sc0 sc1
    s_waitcnt vmcnt(0)
    s_mov_b64 exec, -1
    v_readfirstlane_b32 s66, v{t1}
    s_nop 3
    s_add_u32 s66, s66, 1
    s_cmp_lg_u32 s66, {total}
    s_cbranch_scc1 {L}
    v_add_u32 v{t0}, {128*FLG}, v{t0}
    v_mov_b32 v{t1}, 1
    s_mov_b64 exec, 1
    global_store_dword v{t0}, v{t1}, s[{P_WS}:{P_WS+1}] sc1
    s_mov_b64 exec, -1
    {L}:
    """)

def flag_store(A, line_s, t0, t1):
    A(f"""
    s_lshl_b32 s66, {line_s}, 7
    s_add_u32 s66, s66, {SYNC}
    v_mov_b32 v{t0}, s66
    v_mov_b32 v{t1}, 1
    s_mov_b64 exec, 1
    global_store_dword v{t0}, v{t1}, s[{P_WS}:{P_WS+1}] sc1
    s_mov_b64 exec, -1
    """)
def poll2(A, a0, a1, n1, t0, t1, sleep):
    L = A.newlabel("poll2"); D = A.newlabel("poll2d")
    A(f"""
    s_mov_b32 s66, {POLL_MAX}
    {L}:
    global_load_dword v{t0}, v{a0}, s[{P_WS}:{P_WS+1}] sc1
    global_load_dword v{t1}, v{a1}, s[{P_WS}:{P_WS+1}] sc1
    s_waitcnt vmcnt(0)
    v_min_u32 v{t0}, v{t0}, v{t1}
    v_cmp_le_u32 vcc, 1, v{t0}
    s_nop 3
    s_cmp_eq_u64 vcc, -1
    s_cbranch_scc1 {D}
    s_sleep {sleep}
    s_sub_u32 s66, s66, 1
    s_cmp_lg_u32 s66, 0
    s_cbranch_scc1 {L}
    {D}:
    """)

def gen(A):
    A(f".globl {KNAME}")
    A(".p2align 8")
    A(f".type {KNAME},@function")
    A.label(KNAME)
    L_exit, L_nog, L_prod, L_bw, L_heads, L_conv = "L_exit", "L_nog", "L_prod", "L_bw", "L_heads", "L_conv"
    A(f"""
    s_cmp_ge_u32 s2, 256
    s_cbranch_scc1 {L_exit}
    s_load_dwordx16 s[4:19], s[0:1], 0
    s_load_dwordx8 s[20:27], s[0:1], 64
    v_lshrrev_b32 v1, 6, v0
    v_and_b32 v0, 63, v0
    v_readfirstlane_b32 s{S_WAVE}, v1
    s_and_b32 s{S_XCD}, s2, 7
    s_lshr_b32 s{S_J}, s2, 3
    s_lshr_b32 s{S_RB}, s{S_XCD}, 1
    s_lshl_b32 s{S_RB}, s{S_RB}, 2
    s_and_b32 s49, s{S_J}, 3
    s_add_u32 s{S_RB}, s{S_RB}, s49        ; rb
    s_and_b32 s{S_CB}, s{S_XCD}, 1
    s_lshl_b32 s{S_CB}, s{S_CB}, 3
    s_lshr_b32 s49, s{S_J}, 2
    s_add_u32 s{S_CB}, s{S_CB}, s49        ; cb
    """)
    if E("CPF", 0):
        A(f"""
        s_cmp_ge_u32 s{S_WAVE}, 2
        s_cbranch_scc1 L_nocpf
        s_getpc_b64 s[60:61]
        L_pc:
        s_sub_u32 s60, s60, L_pc-{KNAME}
        s_subb_u32 s61, s61, 0
        s_lshl_b32 s62, s{S_J}, 1
        s_add_u32 s62, s62, s{S_WAVE}
        s_lshl_b32 s62, s62, 10
        v_lshlrev_b32 v2, 4, v0
        v_add_u32 v2, s62, v2
        v_min_u32 v2, (L_exit-{KNAME}-16)&0xfffffff0, v2
        v_mov_b32 v5, s61
        v_add_co_u32 v4, vcc, s60, v2
        s_nop 1
        v_addc_co_u32 v5, vcc, 0, v5, vcc
        global_load_dwordx4 v[148:151], v[4:5], off
        L_nocpf:
        """)
    A(f"""
    s_cmp_lg_u32 s{S_WAVE}, 0
    s_cbranch_scc1 L_noldsinit
    v_mov_b32 v2, {CNT}
    v_mov_b32 v4, 0
    v_mov_b32 v5, 0
    v_mov_b32 v6, 0
    v_mov_b32 v7, 0
    ds_write_b128 v2, v[4:7]
    ds_write_b128 v2, v[4:7] offset:16
    ds_write_b128 v2, v[4:7] offset:32
    L_noldsinit:
    s_waitcnt lgkmcnt(0)
    """)
    EARLY = E("EARLY", 0)
    if not EARLY: A("s_barrier")
    srd(A, R_WS, P_WS, WS_BYTES)
    prof_init(A)
    A(f"""
    s_cmp_ge_u32 s{S_WAVE}, 8
    s_cbranch_scc1 {L_bw}
    s_cmp_ge_u32 s{S_CB}, 15
    s_cbranch_scc1 {L_nog}
    s_cmp_ge_u32 s{S_WAVE}, 4
    s_cbranch_scc1 {L_prod}
    s_branch L_cons
    """)
    A.mark("cons")
    A.label("L_cons")
    slot_of = lambda st: (st + 2) % 3
    if EARLY: A("s_barrier")

    A(f"""
    s_lshr_b32 s56, s{S_WAVE}, 1       ; wr
    s_and_b32 s57, s{S_WAVE}, 1        ; wc
    v_and_b32 v2, 31, v0           ; n
    v_lshrrev_b32 v3, 5, v0        ; h
    v_bfe_u32 v4, v0, 1, 3         ; (l>>1)&7
    s_lshl_b32 s54, s56, 6
    v_add_u32 v5, s54, v2
    v_lshlrev_b32 v5, 7, v5        ; token_local*128
    """)
    for ks in range(4):
        A(f"""
        v_add_u32 v6, {2*ks}, v3
        v_xor_b32 v6, v6, v4
        v_lshl_add_u32 v{16+ks}, v6, 4, v5
        v_add_u32 v{20+ks}, 0x10000, v{16+ks}""")
    def w_addr():
        A(f"""
        v_lshrrev_b32 v2, 4, v0        ; g
        v_bfe_u32 v3, v0, 2, 2         ; r
        v_and_b32 v4, 3, v0            ; c4
        v_lshrrev_b32 v5, 1, v2
        v_lshl_add_u32 v5, v5, 3, v3   ; k_local
        v_lshlrev_b32 v5, 8, v5
        v_add_u32 v5, 16384, v5
        v_and_b32 v6, 1, v2
        v_lshl_add_u32 v6, v6, 2, v4   ; rg = 4*(g&1) + c4
        v_mul_u32_u24 v6, 5, v6
        v_lshlrev_b32 v7, 2, v3        ; 4r
        """)
        for ft in range(2):
            A(f"""
            v_lshrrev_b64 v[8:9], v6, s[{60+2*ft}:{61+2*ft}]
            v_and_b32 v8, 31, v8
            v_lshrrev_b32 v9, 1, v8
            v_xor_b32 v9, v9, v7
            v_and_b32 v8, 1, v8
            v_lshlrev_b32 v8, 3, v8
            v_lshl_add_u32 v8, v9, 4, v8
            v_add_u32 v{24+ft}, v5, v8
            v_add_u32 v{26+ft}, 0x10000, v{24+ft}""")
    FR = [dict(X=[32, 36], W=[40, 44]), dict(X=[48, 52], W=[56, 60]), dict(X=[132, 136], W=[140, 144])]
    ACC = lambda ft, tt: 64 + 16 * (2 * ft + tt)
    def reads(st, ks, setid):
        slot = slot_of(st); hi = slot == 2
        so = 0 if hi else slot * 32768
        xa = (20 if hi else 16) + ks; wa = (26 if hi else 24); F = FR[setid]
        return [f"ds_read_b128 {v(F['X'][0],4)}, v{xa} offset:{so}",
                f"ds_read_b64_tr_b16 {v(F['W'][0],2)}, v{wa} offset:{so + ks*4096}",
                f"ds_read_b64_tr_b16 {v(F['W'][0]+2,2)}, v{wa} offset:{so + ks*4096 + 1024}",
                f"ds_read_b128 {v(F['X'][1],4)}, v{xa} offset:{so + 4096}",
                f"ds_read_b64_tr_b16 {v(F['W'][1],2)}, v{wa+1} offset:{so + ks*4096}",
                f"ds_read_b64_tr_b16 {v(F['W'][1]+2,2)}, v{wa+1} offset:{so + ks*4096 + 1024}"]
    def mfmas(setid, first, vmode):
        F = FR[setid]; m = []
        for (ft, tt) in [(0, 0), (0, 1), (1, 0), (1, 1)]:
            d = ACC(ft, tt); c = "0" if first else v(d, 16)
            a_, b_ = (F['X'][tt], F['W'][ft]) if vmode else (F['W'][ft], F['X'][tt])
            m.append(f"v_mfma_f32_32x32x16_bf16 {v(d,16)}, {v(a_,4)}, {v(b_,4)}, {c}")
        return m
    def main_loop(vmode):
        A("s_barrier")
        stp(A, "b0")
        if not E("G3", 1):
            for r in reads(0, 0, 0): A(r)
            n = 0
            for st in range(10):
                for ks in range(4):
                    setid = n % 2
                    m = mfmas(setid, n == 0, vmode)
                    A("s_waitcnt lgkmcnt(0)")
                    if ks == 3 and st < 9:
                        A("s_barrier")
                        stp(A, f"gb{st+1}")
                    A(m[0])
                    if ks < 3:
                        for r in reads(st, ks + 1, 1 - setid): A(r)
                    elif st < 9:
                        for r in reads(st + 1, 0, 1 - setid): A(r)
                    A(m[1]); A(m[2]); A(m[3])
                    n += 1
        else:
            for r in reads(0, 0, 0): A(r)
            for r in reads(0, 1, 1): A(r)
            for n in range(40):
                st, ks = divmod(n, 4)
                m = mfmas(n % 3, n == 0, vmode)
                if ks == 2 and st < 9:
                    A("s_waitcnt lgkmcnt(0)\ns_barrier")
                    stp(A, f"gb{st+1}")
                else:
                    A(f"s_waitcnt lgkmcnt({6 if n + 1 < 40 else 0})")
                A(m[0])
                if n + 2 < 40:
                    st2, ks2 = divmod(n + 2, 4)
                    for r in reads(st2, ks2, (n + 2) % 3): A(r)
                A(m[1]); A(m[2]); A(m[3])
        stp(A, "gend")
        A("s_nop 15")
    L_vpath = A.newlabel("vpath"); L_gsig = A.newlabel("gsig"); L_vdone = A.newlabel("vdone")
    A(f"""
    s_cmp_ge_u32 s{S_CB}, 10
    s_cbranch_scc1 {L_vpath}
    s_cmp_ge_u32 s{S_CB}, 5
    s_cselect_b32 s55, 5, 0
    s_sub_u32 s55, s{S_CB}, s55        ; cb'
    s_lshl_b32 s55, s55, 1
    s_add_u32 s55, s55, s57
    """)
    for var in range(10):
        cbp, wc = divmod(var, 2); T = []
        for ft in range(2):
            tab = [0]*8
            for si, it in enumerate(ASSIGN[cbp][2*wc + ft]):
                ap, h = divmod(si, 2)
                tab[4*ap + h] = it[1]; tab[4*ap + 2 + h] = it[2]
            T.append(sum(g << (5*i) for i, g in enumerate(tab)))
        nxt = A.newlabel("var")
        A(f"""
        s_cmp_lg_u32 s55, {var}
        s_cbranch_scc1 {nxt}
        s_mov_b32 s60, {hex(T[0] & 0xffffffff)}
        s_mov_b32 s61, {hex(T[0] >> 32)}
        s_mov_b32 s62, {hex(T[1] & 0xffffffff)}
        s_mov_b32 s63, {hex(T[1] >> 32)}
        s_branch {L_vdone}
        {nxt}:""")
    A(f"""
    s_mov_b64 s[60:61], 0
    s_mov_b64 s[62:63], 0
    {L_vdone}:
    """)
    w_addr()
    A(f"""
    s_mov_b32 s58, {hex(QSCALE)}
    s_cmp_ge_u32 s{S_CB}, 5
    s_cmov_b32 s58, 0x3f800000
    s_mov_b32 s59, s58
    v_lshlrev_b32 v128, 4, v0
    s_lshl_b32 s54, s{S_RB}, 2
    s_lshl_b32 s55, s56, 1
    s_add_u32 s54, s54, s55
    s_lshl_b32 s55, s{S_CB}, 6
    s_add_u32 s54, s54, s55
    s_mul_i32 s54, s54, {TB}
    s_lshl_b32 s55, s57, 12        ; wc*4096
    s_add_u32 s64, s54, s55
    s_add_u32 s65, s64, {TB}
    """)
    main_loop(False)
    for ft in range(2):
        for tt in range(2):
            d = ACC(ft, tt)
            for i in range(0, 16, 2):
                A(f"v_pk_mul_f32 {v(d+i,2)}, {v(d+i,2)}, s[58:59]")
            for ap in range(2):
                for i in range(4):
                    A(f"v_cvt_pk_bf16_f32 v{d+8*ap+i}, v{d+8*ap+2*i}, v{d+8*ap+2*i+1}")
                A(f"buffer_store_dwordx4 {v(d+8*ap,4)}, v128, s[{R_WS}:{R_WS+3}], s{64+tt} offen offset:{ft*2048 + ap*1024}{SC}")
    A(f"s_branch {L_gsig}")
    A.label(L_vpath)
    nat = sum(i << (5*i) for i in range(8)); rep = sum(1 << (5*i) for i in range(8))
    A(f"""
    s_lshl_b32 s54, s57, 4
    s_mul_i32 s55, s54, {hex(rep & 0xffffffff)}
    s_mul_hi_u32 s61, s54, {hex(rep & 0xffffffff)}
    s_mul_i32 s66, s54, {hex(rep >> 32)}
    s_add_u32 s61, s61, s66
    s_add_u32 s60, s55, {hex(nat & 0xffffffff)}
    s_addc_u32 s61, s61, {hex(nat >> 32)}
    s_add_u32 s62, s60, {hex((8*rep) & 0xffffffff)}
    s_addc_u32 s63, s61, {hex((8*rep) >> 32)}
    """)
    w_addr()
    A(f"""
    v_lshlrev_b32 v128, 4, v0
    s_lshl_b32 s54, s{S_RB}, 2
    s_lshl_b32 s55, s{S_CB}, 6
    s_add_u32 s54, s54, s55
    s_add_u32 s55, s54, s{S_WAVE}
    s_mul_i32 s55, s55, {TB}
    s_add_u32 s58, s55, 8192
    s_lshl_b32 s55, s56, 1
    s_add_u32 s54, s54, s55
    s_mul_i32 s54, s54, {TB}
    s_lshl_b32 s55, s57, 11
    s_add_u32 s62, s54, s55
    s_add_u32 s63, s62, 4096
    s_add_u32 s64, s62, {TB}
    s_add_u32 s65, s64, 4096
    """)
    main_loop(True)
    for ft in range(2):
        for tt in range(2):
            d = ACC(ft, tt)
            for f in range(2):
                for i in range(4):
                    A(f"v_cvt_pk_bf16_f32 v{d+8*f+i}, v{d+8*f+2*i}, v{d+8*f+2*i+1}")
                A(f"buffer_store_dwordx4 {v(d+8*f,4)}, v128, s[{R_WS}:{R_WS+3}], s{62+2*tt+f} offen offset:{ft*1024}{SC}")
    A(f"""
    v_cmp_eq_u32 vcc, 0, v0
    v_mov_b32 v36, 0x3f803f80
    s_nop 0
    v_cndmask_b32 v32, 0, v36, vcc
    v_cndmask_b32 v33, 0, v36, vcc
    v_cndmask_b32 v34, 0, v36, vcc
    v_cndmask_b32 v35, 0, v36, vcc
    s_mov_b64 exec, 15
    buffer_store_dwordx4 v[32:35], v128, s[{R_WS}:{R_WS+3}], s58 offen{SC}
    s_mov_b64 exec, -1
    """)
    A.label(L_gsig)
    stp(A, "gstored")
    A("s_waitcnt vmcnt(0)")
    stp(A, "gdrained")
    L_qs = A.newlabel("qs")
    lds_arrive_last(A, C_QKV, 4, L_qs, 2, 3)
    lds_wait(A, C_INIT, 2, 3)
    A(f"""
    s_lshl_b32 s65, s{S_CB}, 4
    s_add_u32 s65, s65, s{S_RB}
    s_add_u32 s65, s65, {L_QF}
    """)
    flag_store(A, "s65", 2, 3)
    A.label(L_qs)
    stp(A, "gsig")
    A(f"s_branch {L_heads}")

    A.mark("prod")
    A.label(L_prod)
    srd(A, R_A, P_X, 2048 * 640 * 2)
    srd(A, R_B, P_W, 640 * 1920 * 2)
    VXE, VXO, VW = 10, 11, 12
    A(f"""
    s_sub_u32 s55, s{S_WAVE}, 4            ; pw
    s_lshl_b32 s49, s55, 12
    s_mul_i32 s53, s55, 61440
    s_and_b32 s50, s{S_RB}, 3
    s_mul_i32 s50, s50, 3
    s_add_u32 s50, s50, s{S_CB}
    s_cmp_ge_u32 s50, 20
    s_cselect_b32 s51, 20, 0
    s_sub_u32 s50, s50, s51
    s_cmp_ge_u32 s50, 10
    s_cselect_b32 s51, 10, 0
    s_sub_u32 s50, s50, s51
    """)
    if not E("ROT", 1): A("s_mov_b32 s50, 0")
    A(f"""
    s_lshl_b32 s51, s50, 7
    s_mul_i32 s52, s50, 245760
    s_add_u32 s52, s52, s53
    v_lshrrev_b32 v2, 3, v0
    v_lshrrev_b32 v3, 4, v0
    v_and_b32 v4, 7, v0
    v_xor_b32 v4, v4, v3
    s_lshl_b32 s54, s{S_RB}, 7
    s_lshl_b32 s55, s55, 5
    s_add_u32 s54, s54, s55
    v_add_u32 v2, s54, v2
    v_mul_u32_u24 v2, 1280, v2
    v_lshl_add_u32 v{VXE}, v4, 4, v2
    v_xor_b32 v{VXO}, 64, v{VXE}
    v_and_b32 v4, 15, v0
    v_lshlrev_b32 v5, 2, v3
    v_xor_b32 v4, v4, v5
    v_mul_u32_u24 v5, 3840, v3
    v_lshl_add_u32 v{VW}, v4, 4, v5
    s_lshl_b32 s54, s{S_CB}, 8
    v_add_u32 v{VW}, s54, v{VW}
    """)
    def dma_stage(st):
        so = slot_of(st) * 32768
        for i in range(4):
            A(f"""
            s_add_u32 m0, s49, {so + i*1024}
            s_add_u32 s54, s51, {i*10240}
            buffer_load_dwordx4 v{VXO if i % 2 else VXE}, s[{R_A}:{R_A+3}], s54 offen lds""")
        for i in range(4):
            A(f"""
            s_add_u32 m0, s49, {so + 16384 + i*1024}
            s_add_u32 s54, s52, {i*15360}
            buffer_load_dwordx4 v{VW}, s[{R_B}:{R_B+3}], s54 offen lds""")
        A("""
        s_add_u32 s50, s50, 1
        s_cmp_eq_u32 s50, 10
        s_cselect_b32 s50, 0, s50
        s_lshl_b32 s51, s50, 7
        s_mul_i32 s52, s50, 245760
        s_add_u32 s52, s52, s53""")
    for st in range(3): dma_stage(st)
    A("s_branch L_prod1")
    A.mark("prod1")
    A.label("L_prod1")
    if EARLY: A("s_barrier")
    A("s_waitcnt vmcnt(16)\ns_barrier")
    stp(A, "b0")
    for s_ in range(1, 8):
        A("s_waitcnt vmcnt(8)\ns_barrier")
        dma_stage(s_ + 2)
    A("s_waitcnt vmcnt(8)\ns_barrier")
    A("s_waitcnt vmcnt(0)\ns_barrier")
    stp(A, "b9")
    A(f"s_branch {L_heads}")

    A.mark("main")
    A.label(L_nog)
    if EARLY: A("s_barrier")
    L_nz = A.newlabel("nz")
    A(f"""
    s_cmp_lg_u32 s2, {ZERO_WG}
    s_cbranch_scc1 {L_nz}
    v_lshlrev_b32 v2, 4, v0
    v_add_u32 v2, {SYNC}, v2
    v_mov_b32 v4, 0
    v_mov_b32 v5, 0
    v_mov_b32 v6, 0
    v_mov_b32 v7, 0
    s_mul_i32 s54, s{S_WAVE}, {5*1024}
    """)
    for i in range(5):
        A(f"buffer_store_dwordx4 v[4:7], v2, s[{R_WS}:{R_WS+3}], s54 offen sc1\ns_add_u32 s54, s54, 1024")
    A("s_waitcnt vmcnt(0)")
    lds_arrive_last(A, C_KV + 8, 8, L_nz, 2, 3)
    A(f"""
    v_mov_b32 v2, 0
    v_mov_b32 v3, 1
    s_mov_b64 exec, 1
    global_store_dword v2, v3, s[{P_DBG}:{P_DBG+1}] sc1
    s_mov_b64 exec, -1
    {L_nz}:
    s_branch L_nogtask
    L_nogdone:
    """)
    A(f"""
    v_mov_b32 v2, {CNT + C_QKV}
    v_mov_b32 v3, 4
    ds_write_b32 v2, v3
    """)

    A.label(L_heads)
    Q1, Q2 = 4, 8
    O = 16
    S = [32, 48]
    P = [64, 72]
    KA, KB, V0, V1 = 80, 84, 88, 92
    AK = [96, 99]; AK2 = [97, 100]; AV = [98, 101]
    KA0, KB0 = 104, 108
    WOV = 120
    VG = [126, 127, 128]; VKP, VKS, VVF = 129, 130, 131
    def gather_setup(VG=VG, VKP=VKP, VKS=VKS, VVF=VVF, WOV=WOV):
        A(f"""
        s_lshl_b32 s43, s{S_XCD}, 2
        s_lshr_b32 s44, s{S_J}, 3
        s_add_u32 s43, s43, s44        ; head
        s_and_b32 s44, s{S_J}, 7       ; qb
        s_lshl_b32 s46, s44, 3
        s_add_u32 s46, s46, s{S_WAVE}  ; q tile
        s_mov_b32 s47, {hex(HEADWORD[0])}
        """)
        for h in range(1, 32):
            A(f"s_cmp_eq_u32 s43, {h}\ns_cmov_b32 s47, {hex(HEADWORD[h])}")
        for k, dst in enumerate((50, 51, 52)):
            A(f"""
            s_bfe_u32 s54, s47, {hex((3 << 16) | (7*k))}
            s_bfe_u32 s55, s47, {hex((4 << 16) | (7*k + 3))}
            s_mul_i32 s54, s54, {SEC}
            s_lshl_b32 s55, s55, 9
            s_add_u32 s{dst}, s54, s55""")
        A(f"""
        v_and_b32 v3, 31, v0           ; n
        v_lshrrev_b32 v12, 5, v0       ; h
        v_lshlrev_b32 v13, 4, v3       ; n*16
        v_cmp_eq_u32 vcc, 0, v12
        v_mov_b32 v14, s50
        v_mov_b32 v15, s51
        v_cndmask_b32 v14, v15, v14, vcc
        v_add_u32 v{VKP}, v14, v13
        s_and_b32 s54, s43, 1
        s_lshl_b32 s54, s54, 3
        s_add_u32 s54, s54, s52
        v_add_u32 v{VKS}, s54, v13
        v_add_u32 v{VG[0]}, {5*SEC + 2*TB}, v{VKP}
        s_mul_i32 s53, s43, 20
        s_add_u32 s45, s53, 19
        s_lshr_b32 s45, s45, 7
        s_add_u32 s45, s45, 10
        s_mul_i32 s45, s45, {SEC}
        s_add_u32 s45, s45, 8192
        """)
        def vchunk(dst, seg_v, m_v):
            A(f"""
            v_add_u32 v5, s53, v{m_v}          ; F
            v_lshrrev_b32 v6, 7, v5
            v_add_u32 v6, 10, v6
            v_mul_u32_u24 v6, {SEC // 64}, v6
            v_lshlrev_b32 v6, 6, v6
            v_bfe_u32 v7, v5, 5, 2
            v_lshlrev_b32 v7, 10, v7
            v_add_u32 v6, v6, v7
            v_and_b32 v7, 31, v5
            v_lshl_add_u32 v6, v7, 4, v6
            v_lshrrev_b32 v7, 1, v{seg_v}
            v_lshl_add_u32 v6, v7, 12, v6
            v_and_b32 v7, 1, v{seg_v}
            v_lshl_add_u32 v6, v7, 9, v6
            v_subrev_u32 v7, 20, v{m_v}
            v_and_b32 v7, 3, v7
            v_lshlrev_b32 v7, 4, v7
            v_add_u32 v7, s45, v7
            v_cmp_gt_u32 vcc, 20, v{m_v}
            s_nop 1
            v_cndmask_b32 v{dst}, v7, v6, vcc
            """)
        A("""
        v_cmp_gt_u32 vcc, 56, v0
        v_subrev_u32 v8, 32, v0
        v_subrev_u32 v9, 56, v0
        v_cndmask_b32 v8, v9, v8, vcc          ; m
        v_mov_b32 v9, 1
        v_mov_b32 v10, 0
        v_cndmask_b32 v9, v9, v10, vcc         ; seg
        """)
        vchunk(11, 9, 8)
        A(f"""
        v_add_u32 v6, s52, v13
        v_add_u32 v6, {5*SEC + 2*TB}, v6
        v_cmp_gt_u32 vcc, 32, v0
        s_nop 1
        v_cndmask_b32 v{VG[1]}, v11, v6, vcc
        v_cmp_gt_u32 vcc, 16, v0
        v_cmp_gt_u32 s[54:55], 40, v0
        v_subrev_u32 v8, 40, v0
        v_subrev_u32 v10, 16, v0
        v_cndmask_b32 v8, v8, v10, s[54:55]
        v_add_u32 v10, 8, v0
        v_cndmask_b32 v8, v8, v10, vcc         ; m
        v_mov_b32 v9, 3
        v_mov_b32 v10, 2
        v_cndmask_b32 v9, v9, v10, s[54:55]
        v_mov_b32 v10, 1
        v_cndmask_b32 v9, v9, v10, vcc         ; seg
        """)
        vchunk(VG[2], 9, 8)
        A("v_mov_b32 v8, v3\nv_mov_b32 v9, v12")
        vchunk(VVF, 9, 8)
        srd(A, R_A, P_WO, 640 * 640 * 2)
        A(f"s_and_b32 s52, s{S_J}, 7\ns_mul_i32 s52, s52, 160")
        for b in range(5):
            A(f"""
            v_add_u32 v5, {64*b}, v0
            v_mul_u32_u24 v6, 52429, v5
            v_lshrrev_b32 v6, 19, v6
            v_mul_u32_u24 v7, 10, v6
            v_sub_u32 v7, v5, v7
            v_mul_u32_u24 v6, 1280, v6
            v_lshl_add_u32 v6, v7, 4, v6
            v_add_u32 v{WOV+b}, s52, v6""")

    gather_setup()
    A(f"""
    s_mul_i32 s53, s{S_WAVE}, 5120
    s_mul_i32 s62, s{S_WAVE}, 40960
    s_mov_b32 s60, 0
    v_lshlrev_b32 v2, 4, v0
    v_mul_u32_u24 v13, 384, v12
    v_lshl_add_u32 v13, v3, 4, v13
    v_add_u32 v{AV[0]}, 1536, v13
    v_mov_b32 v{AK[0]}, v2
    s_and_b32 s54, s43, 1
    s_lshl_b32 s54, s54, 3
    s_add_u32 s54, s54, 1024
    v_lshlrev_b32 v1, 4, v3
    v_add_u32 v{AK2[0]}, s54, v1
    v_add_u32 v{AV[1]}, {CHUNK}, v{AV[0]}
    v_add_u32 v{AK[1]}, {CHUNK}, v{AK[0]}
    v_add_u32 v{AK2[1]}, {CHUNK}, v{AK2[0]}
    v_cmp_lt_u32 vcc, 20, v3
    v_mov_b32 v5, 0x30000
    v_mov_b32 v{Q2+2}, 0
    v_cndmask_b32 v{AV[0]}, v{AV[0]}, v5, vcc
    v_cndmask_b32 v{AV[1]}, v{AV[1]}, v5, vcc
    v_mov_b32 v{Q2+3}, 0
    v_mov_b32 v{KB+2}, 0
    v_mov_b32 v{KB+3}, 0
    v_mov_b32 v{KB0+2}, 0
    v_mov_b32 v{KB0+3}, 0
    v_mov_b32 v164, 0x7ff00000
    s_mul_i32 s45, s46, {TB}
    s_mul_i32 s49, s{S_WAVE}, {REC}
    s_mul_i32 s50, s{S_WAVE}, {TB}
    """)
    stp(A, "hset")
    L_gow = A.newlabel("gow"); L_go = A.newlabel("go")
    A(f"""
    s_cmp_lg_u32 s{S_WAVE}, 0
    s_cbranch_scc1 {L_gow}
    """)
    lds_wait(A, C_QKV, 5, 6, val=4)
    lds_wait(A, C_INIT, 5, 6)
    if E("NOGATE", 0):
        Lg = A.newlabel("gate")
        A(f"s_cmp_lt_u32 s{S_CB}, 15\ns_cbranch_scc1 {Lg}")
        lds_wait(A, C_UOK, 5, 6, sleep=8)
        A.label(Lg)
    A(f"""
    s_mul_i32 s54, s43, 5
    s_add_u32 s55, s54, 4
    s_lshr_b32 s54, s54, 5             ; c0
    s_lshr_b32 s55, s55, 5             ; c1
    v_bfe_u32 v5, v0, 4, 1
    v_cmp_eq_u32 vcc, 1, v5
    v_mov_b32 v6, s54
    v_mov_b32 v7, s55
    v_cndmask_b32 v6, v6, v7, vcc      ; c0 / c1
    v_lshrrev_b32 v5, 5, v0
    v_mul_u32_u24 v5, 5, v5
    v_add_u32 v5, v5, v6
    v_add_u32 v6, 10, v6
    v_and_b32 v7, 15, v0
    v_lshl_add_u32 v5, v5, 4, v7
    v_lshl_add_u32 v6, v6, 4, v7
    v_lshlrev_b32 v5, 7, v5
    v_lshlrev_b32 v6, 7, v6
    v_add_u32 v5, {SYNC + 128*L_QF}, v5
    v_add_u32 v6, {SYNC + 128*L_QF}, v6
    """)
    poll2(A, 5, 6, 64, 7, 8, E("PS_QKV", 2))
    lds_set(A, C_GO, 5, 6)
    A(f"s_branch {L_go}")
    A.label(L_gow)
    lds_wait(A, C_GO, 5, 6, sleep=E("SL_GO", 1))
    A.label(L_go)
    stp(A, "go")
    A(f"""
    buffer_load_dwordx4 {v(Q1,4)}, v{VKP}, s[{R_WS}:{R_WS+3}], s45 offen{SC}
    buffer_load_dwordx2 {v(Q2,2)}, v{VKS}, s[{R_WS}:{R_WS+3}], s45 offen{SC}
    s_mov_b32 s48, {5*SEC}
    buffer_load_dwordx4 {v(KA0,4)}, v{VKP}, s[{R_WS}:{R_WS+3}], s48 offen{SC}
    buffer_load_dwordx2 {v(KB0,2)}, v{VKS}, s[{R_WS}:{R_WS+3}], s48 offen{SC}
    s_mov_b32 s48, {5*SEC + TB}
    buffer_load_dwordx4 {v(KA,4)}, v{VKP}, s[{R_WS}:{R_WS+3}], s48 offen{SC}
    buffer_load_dwordx2 {v(KB,2)}, v{VKS}, s[{R_WS}:{R_WS+3}], s48 offen{SC}
    """)
    def kv_piece(chunk, i):
        slot = chunk % 2; rr, part = divmod(i, 3)
        return f"""
        s_add_u32 m0, s49, {slot*CHUNK + rr*8*REC + part*1024}
        s_add_u32 s51, s50, {(chunk*16 + rr*8)*TB}
        buffer_load_dwordx4 v{VG[part]}, s[{R_WS}:{R_WS+3}], s51 offen{SC} lds"""
    for i in range(6): A(kv_piece(0, i))
    if not E("C1LATE", 1):
        for i in range(6): A(kv_piece(1, i))
    A(f"""
    v_cmp_gt_u32 vcc, 32, v0
    s_waitcnt vmcnt({0 if E("C1LATE", 1) else 6})
    s_nop 0
    v_cndmask_b32 v{Q2}, 0, v{Q2}, vcc
    v_cndmask_b32 v{Q2+1}, 0, v{Q2+1}, vcc
    """)
    stp(A, "kvok")
    lds_add(A, C_KV, 12, 13)
    lds_wait(A, C_KV, 12, 13, val=8, sleep=0)
    stp(A, "att0")

    def wo_piece(kind, b):
        if kind == 0:
            return f"""
            s_add_u32 m0, s53, {WO_A + b*1024}
            s_nop 0
            buffer_load_dwordx4 v{WOV+b}, s[{R_A}:{R_A+3}], s62 offen lds"""
        if kind == 2:
            return f"""
            s_add_u32 m0, s53, {b*1024}
            s_add_u32 s51, s62, {WO_BROW*1280}
            buffer_load_dwordx4 v{WOV+b}, s[{R_A}:{R_A+3}], s51 offen lds"""
        lab = A.newlabel("wos")
        if kind == 1: lim, ldso, go = 3, WO_A + 8*5120, 8*40960
        else: lim, ldso, go = (2 if b < 2 else 1), 8*5120, WO_BROW*1280 + 8*40960
        return f"""
            s_cmp_ge_u32 s{S_WAVE}, {lim}
            s_cbranch_scc1 {lab}
            s_add_u32 m0, s53, {ldso + b*1024}
            s_add_u32 s51, s62, {go}
            buffer_load_dwordx4 v{WOV+b}, s[{R_A}:{R_A+3}], s51 offen lds
            {lab}:"""
    def qk2(Sd, Kr):
        if E("K8", 1): return f"v_mfma_f32_32x32x8bf16_1k {v(Sd,16)}, {v(Kr,2)}, {v(Q2,2)}, {v(Sd,16)}"
        return f"v_mfma_f32_32x32x16_bf16 {v(Sd,16)}, {v(Kr,4)}, {v(Q2,4)}, {v(Sd,16)}"
    PZ, PQ, PO = 132, 148, 164
    def post_task(skip):
        L_t3 = A.newlabel("t3"); L_tgo = A.newlabel("tgo")
        A(f"""
        s_cmp_eq_u32 s{S_WAVE}, 0
        s_cbranch_scc1 {skip}
        s_cmp_ge_u32 s{S_WAVE}, 4
        s_cbranch_scc1 {skip}
        s_cmp_eq_u32 s{S_WAVE}, 3
        s_cbranch_scc1 {L_t3}
        s_lshl_b32 s56, s2, 1
        s_sub_u32 s57, s{S_WAVE}, 1
        s_add_u32 s56, s56, s57
        s_branch {L_tgo}
        {L_t3}:
        s_cmp_ge_u32 s2, 128
        s_cbranch_scc1 {skip}
        s_add_u32 s56, s2, 512
        {L_tgo}:
        """)
    def post_probe():
        A(f"""
        v_min_u32 v12, 7, v0
        v_lshlrev_b32 v12, 7, v12
        v_add_u32 v12, {SYNC + 128*(FLG + L_Z)}, v12
        global_load_dword v166, v12, s[{P_WS}:{P_WS+1}] sc1
        """)
    def post_prefetch():
        Ls = A.newlabel("pps"); Lok = A.newlabel("ppok")
        post_task(Ls)
        A(f"""
        v_cmp_le_u32 vcc, 1, v166
        s_mul_i32 s57, s56, 52429
        s_lshr_b32 s57, s57, 19
        s_mul_i32 s58, s57, 10
        s_sub_u32 s58, s56, s58
        s_cmp_eq_u64 vcc, -1
        s_cbranch_scc1 {Lok}
        """)
        poll_flags(A, L_Z, 8, 12, 13, 14)
        A.label(Lok)
        srd(A, R_B, P_BQ, 2048 * 640 * 2)
        A(f"""
        v_and_b32 v12, 7, v0
        v_lshrrev_b32 v13, 3, v0
        s_lshl_b32 s54, s58, 6
        v_lshl_add_u32 v12, v12, 3, s54
        s_lshl_b32 s55, s57, 5
        v_lshl_add_u32 v13, v13, 2, s55
        v_mul_u32_u24 v14, 1280, v13
        v_lshl_add_u32 v14, v12, 1, v14
        v_mul_u32_u24 v15, 2560, v13
        v_lshl_add_u32 v15, v12, 1, v15
        v_add_u32 v{PO}, 1280, v15
        v_lshlrev_b32 v15, 12, v12
        v_lshl_add_u32 v15, v13, 1, v15
        v_add_u32 v{PO+1}, {WS_Z}, v15
        """)
        for j in range(4):
            A(f"buffer_load_dwordx4 {v(PQ+4*j,4)}, v14, s[{R_B}:{R_B+3}], 0 offen offset:{1280*j}")
        for i in range(8):
            A(f"s_mov_b32 s54, {i*4096}")
            A(f"buffer_load_dwordx2 {v(PZ+2*i,2)}, v{PO+1}, s[{R_WS}:{R_WS+3}], s54 offen{SC}")
        A.label(Ls)
    A(f"v_mfma_f32_32x32x16_bf16 {v(S[0],16)}, {v(KA0,4)}, {v(Q1,4)}, 0")
    A(qk2(S[0], KB0))
    A("s_nop 7\ns_nop 7")
    for J in range(64):
        c = J // 16; slot = c % 2; j = J % 16
        Sc, Sn = S[J % 2], S[(J + 1) % 2]
        Pc, Pp = P[J % 2], P[(J + 1) % 2]
        off = j * REC
        if j == 0 and J > 0:
            stp(A, f"attpre{J}")
            if J == 48 and E("POSTPF", 1): post_probe()
            A(f"s_waitcnt vmcnt({5 if (J == 32 and not E('SRV', 1)) else 0}) lgkmcnt(0)\ns_barrier")
            stp(A, f"attb{J}")
            if J == 48 and E("POSTPF", 1): post_prefetch()
        EX = lambda i: f"v_exp_f32 v{Sc+i}, v{Sc+i}"
        CV = lambda i: f"v_cvt_pk_bf16_f32 v{Pc+i}, v{Sc+2*i}, v{Sc+2*i+1}"
        G = [(EX(0),EX(1),EX(2),EX(3),CV(0),CV(1)), (EX(4),EX(5),EX(6),EX(7),CV(2),CV(3)), (EX(8),EX(9),EX(10),EX(11),CV(4),CV(5)), (EX(12),EX(13),EX(14),EX(15),CV(6),CV(7))]
        PJ = [int(x) for x in os.environ.get("PRIOJ", "0,9,13,15").split(",")]
        if j in PJ:
            A(f"s_setprio {3 - PJ.index(j)}")
        if J > 0 and j != 0: A("s_waitcnt lgkmcnt(2)")
        if J < 63: A(f"v_mfma_f32_32x32x16_bf16 {v(Sn,16)}, {v(KA,4)}, {v(Q1,4)}, 0")
        if J < 62: A(f"ds_read_b128 {v(KA,4)}, v{AK[slot]} offset:{off}")
        for x in G[0]: A(x)
        if J < 63: A(qk2(Sn, KB))
        if J < 62: A(f"ds_read_b64 {v(KB,2)}, v{AK2[slot]} offset:{off}")
        for x in G[1]: A(x)
        if J > 0:
            A("s_waitcnt lgkmcnt(2)" if J < 62 else "s_waitcnt lgkmcnt(0)")
            cc = "0" if J == 1 else v(O, 16)
            A(f"v_mfma_f32_32x32x16_bf16 {v(O,16)}, {v(V0,4)}, {v(Pp,4)}, {cc}")
        A(f"ds_read_b128 {v(V0,4)}, v{AV[slot]} offset:{off}")
        for x in G[2]: A(x)
        if J > 0: A(f"v_mfma_f32_32x32x16_bf16 {v(O,16)}, {v(V1,4)}, {v(Pp+4,4)}, {v(O,16)}")
        A(f"ds_read_b128 {v(V1,4)}, v{AV[slot]} offset:{off + 768}")
        if E("NODMA", 0):
            for x in G[3]: A(x)
            continue
        if E("SRV", 1):
            if c == 0 and j < 6 and not E("SRV1", 0): A(kv_piece(1, j))
        else:
            if (c in (1, 2) or (c == 0 and E("C1LATE", 1))) and j < 6: A(kv_piece(c + 1, j))
            if c == 1 and 6 <= j < 11: A(wo_piece(0, j - 6))
            if c == 1 and 11 <= j < 16: A(wo_piece(1, j - 11))
            if c == 3 and 1 <= j < 6: A(wo_piece(2, j - 1))
            if c == 3 and 6 <= j < 11: A(wo_piece(3, j - 6))
        for x in G[3]: A(x)
    stp(A, "att1")
    Pl = P[63 % 2]
    A("s_waitcnt lgkmcnt(0)")
    A(f"v_mfma_f32_32x32x16_bf16 {v(O,16)}, {v(V0,4)}, {v(Pl,4)}, {v(O,16)}")
    A(f"v_mfma_f32_32x32x16_bf16 {v(O,16)}, {v(V1,4)}, {v(Pl+4,4)}, {v(O,16)}")
    A("s_setprio 0")
    L_fin = A.newlabel("fin"); L_slow = A.newlabel("slow"); L_odone = A.newlabel("odone")
    def addr_calc():
        A(f"""
        s_lshl_b32 s52, s43, 6
        s_add_u32 s52, s52, s46
        s_mul_i32 s52, s52, 1536
        s_add_u32 s52, s52, {WS_O}
        v_lshlrev_b32 v104, 4, v0
        """)
    addr_calc()
    A("s_nop 7")
    A.label(L_fin)
    A("s_nop 7")
    A(f"""
    v_mov_b32 v110, v{O+8}
    v_mov_b32 v111, v{O+8}
    s_nop 1
    v_permlane32_swap_b32 v110, v111
    s_nop 1
    v_rcp_f32 v112, v111
    s_nop 0
    """)
    for i in range(0, 12, 2):
        A(f"v_pk_mul_f32 {v(O+i,2)}, {v(O+i,2)}, v[112:113] op_sel_hi:[1,0]")
    A(f"""
    v_add_f32 v113, abs(v{O}), abs(v{O+1})
    v_add_f32 v114, abs(v{O+8}), abs(v{O+9})
    """)
    for i in range(2, 8): A(f"v_add_f32 v113, v113, abs(v{O+i})")
    A(f"""
    v_add_f32 v114, v114, abs(v{O+10})
    v_add_f32 v114, v114, abs(v{O+11})
    v_cmp_gt_u32 vcc, 32, v0
    v_mov_b32 v115, 0x21800000         ; 2^-60
    v_mov_b32 v116, 0x5d800000         ; 2^60
    v_cndmask_b32 v114, 0, v114, vcc
    v_add_f32 v113, v113, v114
    v_mov_b32 v114, 0x7f800000
    v_cmp_nlt_f32 s[54:55], v113, v114
    v_cmp_ngt_f32 s[56:57], v111, v115
    v_cmp_nlt_f32 vcc, v111, v116
    s_nop 1
    s_or_b64 s[54:55], s[54:55], s[56:57]
    s_or_b64 s[54:55], s[54:55], vcc
    s_cmp_lg_u64 s[54:55], 0
    s_cselect_b32 s61, 1, 0
    s_andn2_b32 s61, s61, s60
    s_cmp_lg_u32 s61, 0
    s_cbranch_scc1 {L_slow}
    """)
    for i in range(4): A(f"v_cvt_pk_bf16_f32 v{O+i}, v{O+2*i}, v{O+2*i+1}")
    A(f"""
    v_cvt_pk_bf16_f32 v{O+8}, v{O+8}, v{O+9}
    v_cvt_pk_bf16_f32 v{O+9}, v{O+10}, v{O+11}
    v_mov_b32 v{O+10}, 0
    v_mov_b32 v{O+11}, 0
    buffer_store_dwordx4 {v(O,4)}, v104, s[{R_WS}:{R_WS+3}], s52 offen{SC}
    s_mov_b32 exec_hi, 0
    buffer_store_dwordx4 {v(O+8,4)}, v104, s[{R_WS}:{R_WS+3}], s52 offen offset:1024{SC}
    s_mov_b64 exec, -1
    s_branch {L_odone}
    """)
    A.label(L_slow)
    L1 = A.newlabel("p1"); L2 = A.newlabel("p2")
    A(f"""
    s_mov_b32 s60, 1
    v_mov_b32 v110, 0xff800000
    s_mov_b32 s52, 0
    {L1}:
    s_mul_i32 s63, s52, {TB}
    s_add_u32 s63, s63, {5*SEC}
    buffer_load_dwordx4 {v(KA,4)}, v{VKP}, s[{R_WS}:{R_WS+3}], s63 offen{SC}
    buffer_load_dwordx2 {v(KB,2)}, v{VKS}, s[{R_WS}:{R_WS+3}], s63 offen{SC}
    s_waitcnt vmcnt(0)
    v_mfma_f32_32x32x16_bf16 {v(S[0],16)}, {v(KA,4)}, {v(Q1,4)}, 0
    v_mfma_f32_32x32x16_bf16 {v(S[0],16)}, {v(KB,4)}, {v(Q2,4)}, {v(S[0],16)}
    s_nop 7
    s_nop 7
    """)
    for i in range(0, 16, 2): A(f"v_max3_f32 v110, v110, v{S[0]+i}, v{S[0]+i+1}")
    A(f"""
    s_add_u32 s52, s52, 1
    s_cmp_lt_u32 s52, 64
    s_cbranch_scc1 {L1}
    v_mov_b32 v108, v110
    v_mov_b32 v109, v110
    s_nop 1
    v_permlane32_swap_b32 v108, v109
    s_nop 1
    v_max_f32 v110, v108, v109
    v_and_b32 v3, 31, v0
    v_cmp_gt_u32 vcc, 20, v3
    v_add_u32 v108, 4096, v{VVF}
    s_nop 0
    v_cndmask_b32 v109, v{VVF}, v108, vcc
    """)
    for i in range(16): A(f"v_mov_b32 v{O+i}, 0")
    A("s_mov_b32 s52, 0")
    A.label(L2)
    A(f"""
    s_mul_i32 s54, s52, {TB}
    s_add_u32 s63, s54, {5*SEC}
    buffer_load_dwordx4 {v(KA,4)}, v{VKP}, s[{R_WS}:{R_WS+3}], s63 offen{SC}
    buffer_load_dwordx2 {v(KB,2)}, v{VKS}, s[{R_WS}:{R_WS+3}], s63 offen{SC}
    buffer_load_dwordx4 {v(V0,4)}, v{VVF}, s[{R_WS}:{R_WS+3}], s54 offen{SC}
    buffer_load_dwordx4 {v(V1,4)}, v109, s[{R_WS}:{R_WS+3}], s54 offen{SC}
    s_waitcnt vmcnt(0)
    v_mfma_f32_32x32x16_bf16 {v(S[0],16)}, {v(KA,4)}, {v(Q1,4)}, 0
    v_mfma_f32_32x32x16_bf16 {v(S[0],16)}, {v(KB,4)}, {v(Q2,4)}, {v(S[0],16)}
    s_nop 7
    s_nop 7
    """)
    for i in range(16): A(f"v_sub_f32 v{S[0]+i}, v{S[0]+i}, v110")
    for i in range(16): A(f"v_exp_f32 v{S[0]+i}, v{S[0]+i}")
    A("s_nop 0")
    for i in range(8): A(f"v_cvt_pk_bf16_f32 v{P[0]+i}, v{S[0]+2*i}, v{S[0]+2*i+1}")
    A(f"""
    s_nop 1
    v_mfma_f32_32x32x16_bf16 {v(O,16)}, {v(V0,4)}, {v(P[0],4)}, {v(O,16)}
    v_mfma_f32_32x32x16_bf16 {v(O,16)}, {v(V1,4)}, {v(P[0]+4,4)}, {v(O,16)}
    s_add_u32 s52, s52, 1
    s_cmp_lt_u32 s52, 64
    s_cbranch_scc1 {L2}
    s_nop 7
    """)
    addr_calc()
    A(f"s_branch {L_fin}")

    A.label(L_odone)
    AD = 80; OA = 88; VOUT, VRED = 91, 92; ACC3 = 96
    OFS = [28, 32, 36, 40, 44]
    WFS = [[116, 120, 124, 128, 132], [136, 140, 144, 148, 152], [48, 52, 56, 60, 64], [68, 72, 76, 156, 160]]
    A(f"""
    s_lshl_b32 s54, s{S_XCD}, 2
    s_lshr_b32 s55, s{S_J}, 3
    s_add_u32 s54, s54, s55        ; tb
    s_lshl_b32 s54, s54, 2
    s_and_b32 s55, s{S_WAVE}, 3
    s_add_u32 s54, s54, s55        ; T
    s_lshr_b32 s45, s54, 1
    s_mul_i32 s45, s45, 1536
    s_and_b32 s57, s54, 1
    s_lshl_b32 s57, s57, 8
    s_add_u32 s45, s45, s57
    s_add_u32 s45, s45, {WS_O}
    s_lshr_b32 s57, s{S_WAVE}, 2
    s_mul_i32 s57, s57, {16*64*1536}
    s_add_u32 s62, s45, s57
    v_lshrrev_b32 v5, 4, v0            ; kg
    v_and_b32 v6, 15, v0
    v_lshlrev_b32 v6, 4, v6
    """)
    for c in range(3):
        A(f"""
        v_add_u32 v8, {4*c}, v5
        v_mul_u32_u24 v9, 21846, v8
        v_lshrrev_b32 v9, 16, v9
        v_mul_u32_u24 v10, 3, v9
        v_sub_u32 v10, v8, v10
        v_mul_u32_u24 v9, 1536, v9
        v_lshlrev_b32 v9, 6, v9
        v_lshl_add_u32 v9, v10, 9, v9
        v_add_u32 v{OA+c}, v9, v6""")
    A(f"""
    v_and_b32 v3, 15, v0
    s_lshl_b32 s55, s54, 4
    v_add_u32 v3, s55, v3
    v_mul_u32_u24 v3, 2560, v3
    v_lshrrev_b32 v4, 4, v0
    v_lshl_add_u32 v3, v4, 3, v3
    s_and_b32 s55, s{S_J}, 7
    s_mul_i32 s55, s55, 160
    v_add_u32 v{VOUT}, s55, v3
    v_lshlrev_b32 v3, 4, v0
    s_and_b32 s55, s{S_WAVE}, 3
    s_mul_i32 s55, s55, 5120
    s_add_u32 s55, s55, {RED}
    v_add_u32 v{VRED}, s55, v3
    v_bfe_u32 v6, v0, 2, 2             ; r
    v_and_b32 v7, 3, v0
    v_lshlrev_b32 v7, 3, v7            ; 8*c4
    s_mov_b32 s59, {WO_A}
    """)
    def row_addr(dst0, s, region):
        A(f"""
        v_add_u32 v8, {4*s}, v5
        v_mul_u32_u24 v9, 21846, v8
        v_lshrrev_b32 v9, 16, v9
        v_mul_u32_u24 v10, 3, v9
        v_sub_u32 v10, v8, v10
        v_mul_u32_u24 v9, 20, v9
        v_add_u32 v9, v9, v6
        v_lshlrev_b32 v11, 2, v10
        v_cmp_eq_u32 vcc, 2, v10
        v_add_u32 v12, 8, v11
        v_lshlrev_b32 v13, 1, v11
        v_cndmask_b32 v11, v11, v13, vcc
        v_add_u32 v11, v11, v9
        v_add_u32 v12, v12, v9
        """)
        for hh, rv in enumerate((11, 12)):
            if region == "A":
                A(f"v_mul_u32_u24 v13, 160, v{rv}\nv_add3_u32 v{dst0+hh}, v13, v7, s59")
            elif region == "B":
                A(f"v_subrev_u32 v13, {WO_BROW}, v{rv}\nv_mul_u32_u24 v13, 160, v13\nv_add_u32 v{dst0+hh}, v13, v7")
            else:
                A(f"""
                v_mul_u32_u24 v13, 160, v{rv}
                v_add3_u32 v14, v13, v7, s59
                v_subrev_u32 v13, {WO_BROW*160}, v13
                v_add_u32 v13, v13, v7
                v_cmp_gt_u32 vcc, {WO_BROW}, v{rv}
                s_nop 1
                v_cndmask_b32 v{dst0+hh}, v13, v14, vcc""")
    L_ahi = A.newlabel("ahi"); L_adone = A.newlabel("adone")
    stp(A, "ostored")
    A("s_waitcnt vmcnt(0)")
    stp(A, "odrained")
    L_os = A.newlabel("os")
    lds_arrive_last(A, C_O, 8, L_os, 2, 3)
    A(f"s_add_u32 s65, s44, {L_O}")
    global_arrive(A, "s65", 32, 2, 3)
    A.label(L_os)
    A(f"""
    s_cmp_ge_u32 s{S_WAVE}, 4
    s_cbranch_scc1 {L_ahi}
    """)
    for c in range(3): row_addr(AD + 2*c, c, "A")
    A(f"s_branch {L_adone}")
    A.label(L_ahi)
    row_addr(AD + 6, 12, None)
    for c in range(3): row_addr(AD + 2*c, 13 + c, "B")
    A.label(L_adone)
    srd(A, R_B, P_OUT, 2048 * 1280 * 2)
    L_p3a = A.newlabel("p3a"); L_post = A.newlabel("post"); L_wb = A.newlabel("wb")
    post_task(L_wb)
    for j in range(4):
        for q in range(4):
            za = PZ + 2*(2*q) + j//2; zb = PZ + 2*(2*q+1) + j//2
            if j % 2 == 0:
                A(f"v_lshlrev_b32 v48, 16, v{za}\nv_lshlrev_b32 v49, 16, v{zb}")
            else:
                A(f"v_and_b32 v48, 0xffff0000, v{za}\nv_and_b32 v49, 0xffff0000, v{zb}")
            qq = PQ + 4*j + q
            A(f"v_lshlrev_b32 v50, 16, v{qq}\nv_and_b32 v51, 0xffff0000, v{qq}")
            A(f"v_pk_mul_f32 v[48:49], v[48:49], v[50:51]")
            A(f"v_cvt_pk_bf16_f32 v{52+4*j+q}, v48, v49")
        A(f"s_mov_b32 s54, {j*2560}")
        A(f"buffer_store_dwordx4 {v(52+4*j,4)}, v{PO}, s[{R_B}:{R_B+3}], s54 offen{os.environ.get('OUTB', '')}")
    A.label(L_wb)
    A("s_barrier")
    def sel_of(hi):
        if not hi: return lambda st: (AD + 2*(st % 3), (st // 3) * 12800)
        return lambda st: (AD + 6, 0) if st == 0 else (AD + 2*((st - 1) % 3), ((st - 1) // 3) * 12800)
    def rd(hi, st):
        base, so = sel_of(hi)(st); r = []
        for T in range(5):
            r.append(f"ds_read_b64_tr_b16 {v(WFS[st % 4][T],2)}, v{base} offset:{so + 32*T}")
            r.append(f"ds_read_b64_tr_b16 {v(WFS[st % 4][T]+2,2)}, v{base+1} offset:{so + 32*T}")
        return r
    PD = E("P3D", 3)
    assert PD <= 3
    def o_load(st):
        A(f"s_add_u32 s58, s62, {(st//3)*4*64*1536}")
        A(f"buffer_load_dwordx4 {v(OFS[st % 5],4)}, v{OA + st % 3}, s[{R_WS}:{R_WS+3}], s58 offen{SC}")
    def p3_pre(hi):
        for st in range(4):
            for r in rd(hi, st): A(r)
            A("s_waitcnt lgkmcnt(4)")
    def p3_wait_o(poller):
        if poller:
            Lnp = A.newlabel("np")
            A(f"""
            s_cmp_eq_u32 s{S_WAVE}, 0
            s_cbranch_scc0 {Lnp}
            s_lshl_b32 s54, s{S_XCD}, 7
            s_add_u32 s54, s54, {SYNC + 128*(FLG + L_O)}
            v_mov_b32 v2, s54
            v_cmp_eq_u32 vcc, 0, v0
            v_mov_b32 v3, 1
            s_nop 0
            v_cndmask_b32 v4, 0, v3, vcc
            """)
            poll(A, 2, 4, 3, sleep=E("PS_O", 2))
            stp(A, "ook")
            A.label(Lnp)
        stp(A, "prep3a")
        A("s_waitcnt lgkmcnt(0)\ns_barrier")
        stp(A, "p3a")
        for st in range(PD + 1): o_load(st)
    def p3_loop(hi):
        for st in range(12):
            A(f"s_waitcnt vmcnt({min(PD, 11-st)})" + (" lgkmcnt(10)" if st >= 4 and st < 9 else (" lgkmcnt(0)" if st >= 9 else "")))
            if st + PD + 1 < 12: o_load(st + PD + 1)
            if st == 0: stp(A, "p3first")
            if st == 6: stp(A, "p3mid")
            rs = rd(hi, st + 4) if st + 4 < 12 else []
            for T in range(5):
                cc = "0" if st == 0 else v(ACC3+4*T, 4)
                A(f"v_mfma_f32_16x16x32_bf16 {v(ACC3+4*T,4)}, {v(WFS[st % 4][T],4)}, {v(OFS[st % 5],4)}, {cc}")
                for r in rs[2*T:2*T+2]: A(r)
        A("s_nop 7")
    L_hi = A.newlabel("p3hi")
    A(f"""
    s_cmp_ge_u32 s{S_WAVE}, 4
    s_cbranch_scc1 {L_hi}
    """)
    p3_pre(False)
    p3_wait_o(True)
    p3_loop(False)
    stp(A, "p3loop")
    A("s_barrier")
    stp(A, "p3red")
    for T in range(5): A(f"ds_read_b128 {v(32+4*T,4)}, v{VRED} offset:{1024*T}")
    A("s_waitcnt lgkmcnt(0)")
    for T in range(5):
        d = ACC3 + 4*T
        A(f"v_pk_add_f32 {v(d,2)}, {v(d,2)}, {v(32+4*T,2)}")
        A(f"v_pk_add_f32 {v(d+2,2)}, {v(d+2,2)}, {v(34+4*T,2)}")
        A(f"v_cvt_pk_bf16_f32 v{d}, v{d}, v{d+1}")
        A(f"v_cvt_pk_bf16_f32 v{d+1}, v{d+2}, v{d+3}")
        A(f"buffer_store_dwordx2 {v(d,2)}, v{VOUT}, s[{R_B}:{R_B+3}], 0 offen offset:{32*T}{os.environ.get('OUTA', '')}")
    prof_dump(A, 0, wsptr=P_WS)
    A("s_endpgm")
    A.label(L_hi)
    p3_pre(True)
    p3_wait_o(False)
    p3_loop(True)
    for T in range(5): A(f"ds_write_b128 v{VRED}, {v(ACC3+4*T,4)} offset:{1024*T}")
    A("s_waitcnt lgkmcnt(0)\ns_barrier")
    prof_dump(A, 0, wsptr=P_WS)
    A("s_endpgm")

    A.mark("bw")
    A.label(L_bw)
    BK, BV, BW = 16, 44, 60
    def b_setup(notask, chan_only):
        L2_ = A.newlabel("b2")
        A(f"""
        s_cmp_eq_u32 s{S_WAVE}, 10
        s_cbranch_scc1 {L2_}
        s_lshl_b32 s56, s2, 1
        s_sub_u32 s57, s{S_WAVE}, 8
        s_add_u32 s56, s56, s57
        """)
        b_addr()
        Lc = A.newlabel("bcont")
        A(f"""
        s_branch {Lc}
        {L2_}:
        s_cmp_ge_u32 s2, 128
        s_cbranch_scc1 {notask}
        s_add_u32 s56, s2, 512
        s_mov_b32 s65, 0
        s_branch {chan_only}
        {Lc}:
        """)
    def b_addr():
        A(f"""
        s_mul_i32 s57, s56, 52429
        s_lshr_b32 s57, s57, 19        ; tblk
        s_mul_i32 s58, s57, 10
        s_sub_u32 s58, s56, s58        ; dblk
        v_and_b32 v2, 7, v0            ; dg
        v_lshrrev_b32 v3, 3, v0        ; tg
        v_lshlrev_b32 v12, 6, v2
        v_lshl_add_u32 v12, v3, 3, v12
        s_lshl_b32 s54, s56, 12
        s_add_u32 s54, s54, {WS_U}
        v_add_u32 v12, s54, v12
        s_lshl_b32 s54, s58, 6
        v_lshl_add_u32 v2, v2, 3, s54  ; d0
        s_lshl_b32 s55, s57, 5
        v_lshl_add_u32 v3, v3, 2, s55  ; t0
        v_mul_u32_u24 v4, 1280, v3
        v_lshl_add_u32 v10, v2, 1, v4
        v_lshlrev_b32 v11, 3, v2
        v_subrev_u32 v5, 3840, v10
        v_subrev_u32 v6, 2560, v10
        v_subrev_u32 v7, 1280, v10
        """)
    def b_loads():
        srd(A, R_C, P_BK, 2048 * 640 * 2)
        A(f"""
        buffer_load_dwordx4 {v(BK,4)}, v5, s[{R_C}:{R_C+3}], 0 offen
        buffer_load_dwordx4 {v(BK+4,4)}, v6, s[{R_C}:{R_C+3}], 0 offen
        buffer_load_dwordx4 {v(BK+8,4)}, v7, s[{R_C}:{R_C+3}], 0 offen
        """)
        for j in range(4): A(f"buffer_load_dwordx4 {v(BK+12+4*j,4)}, v10, s[{R_C}:{R_C+3}], 0 offen offset:{1280*j}")
        srd(A, R_C, P_BV, 2048 * 640 * 2)
        for j in range(4): A(f"buffer_load_dwordx4 {v(BV+4*j,4)}, v10, s[{R_C}:{R_C+3}], 0 offen offset:{1280*j}")
        srd(A, R_C, P_SH, 640 * 4 * 2)
        for j in range(4): A(f"buffer_load_dwordx4 {v(BW+4*j,4)}, v11, s[{R_C}:{R_C+3}], 0 offen offset:{16*j}")
    def b_compute(q):
        KP, VP, WP, AC, OUT = 80, 94, 102, 110, 120
        for j in range(7):
            A(f"v_lshlrev_b32 v{KP+2*j}, 16, v{BK+4*j+q}\nv_and_b32 v{KP+1+2*j}, 0xffff0000, v{BK+4*j+q}")
        for t in range(4):
            A(f"v_lshlrev_b32 v{VP+2*t}, 16, v{BV+4*t+q}\nv_and_b32 v{VP+1+2*t}, 0xffff0000, v{BV+4*t+q}")
        for u in range(2):
            bb = BW + 4*q + 2*u
            A(f"v_lshlrev_b32 v{WP+u}, 16, v{bb}\nv_and_b32 v{WP+2+u}, 0xffff0000, v{bb}")
            A(f"v_lshlrev_b32 v{WP+4+u}, 16, v{bb+1}\nv_and_b32 v{WP+6+u}, 0xffff0000, v{bb+1}")
        for t in range(4):
            acc = AC + 2*t
            A(f"v_pk_mul_f32 {v(acc,2)}, {v(KP+2*(t+0),2)}, {v(WP+6,2)}")
            A(f"v_pk_fma_f32 {v(acc,2)}, {v(KP+2*(t+1),2)}, {v(WP+4,2)}, {v(acc,2)}")
            A(f"v_pk_fma_f32 {v(acc,2)}, {v(KP+2*(t+2),2)}, {v(WP+2,2)}, {v(acc,2)}")
            A(f"v_pk_fma_f32 {v(acc,2)}, {v(KP+2*(t+3),2)}, {v(WP,2)}, {v(acc,2)}")
            A(f"v_pk_mul_f32 {v(acc,2)}, {v(acc,2)}, {v(VP+2*t,2)}")
        for u in range(2):
            o = OUT + 4*q + 2*u
            A(f"v_cvt_pk_bf16_f32 v{o}, v{AC+u}, v{AC+2+u}\nv_cvt_pk_bf16_f32 v{o+1}, v{AC+4+u}, v{AC+6+u}")
        for u in range(2):
            o = OUT + 4*q + 2*u
            A(f"buffer_store_dwordx2 {v(o,2)}, v12, s[{R_WS}:{R_WS+3}], 0 offen offset:{(2*q+u)*512}{SC}")
    def init_load():
        A(f"v_mov_b32 v2, 0\nglobal_load_dword v9, v2, s[{P_DBG}:{P_DBG+1}] sc1")
    def u_publish(n):
        A(f"s_waitcnt vmcnt({n})\ns_mov_b32 s65, 0")
        Lok = A.newlabel("iok"); Lsk = A.newlabel("usk")
        A(f"""
        v_readfirstlane_b32 s66, v9
        s_nop 3
        s_cmp_lg_u32 s66, 0
        s_cbranch_scc1 {Lok}
        v_mov_b32 v2, 0
        v_mov_b32 v3, 1
        """)
        poll(A, 2, 3, 4, sleep=8, base=P_DBG)
        A.label(Lok)
        lds_set(A, C_INIT, 2, 3)
        A(f"s_cmp_ge_u32 s{S_CBK}, 15\ns_cselect_b32 s64, 10, 2")
        lds_arrive_last(A, C_U, "s64", Lsk, 2, 3)
        A(f"""
        s_and_b32 s66, s2, 7
        s_add_u32 s66, s66, {L_U}
        s_lshl_b32 s66, s66, 7
        s_add_u32 s66, s66, {SYNC}
        v_mov_b32 v10, s66
        v_mov_b32 v11, 1
        s_mov_b64 exec, 1
        global_atomic_add v11, v10, v11, s[{P_WS}:{P_WS+1}] sc0 sc1
        s_mov_b64 exec, -1
        s_mov_b32 s65, 1
        {Lsk}:
        """)
    def u_flag():
        L = A.newlabel("uf")
        A(f"""
        s_cmp_eq_u32 s65, 0
        s_cbranch_scc1 {L}
        s_waitcnt vmcnt(0)
        v_readfirstlane_b32 s66, v11
        s_nop 3
        s_cmp_lg_u32 s66, 31
        s_cbranch_scc1 {L}
        v_add_u32 v10, {128*40}, v10
        v_mov_b32 v11, 1
        s_mov_b64 exec, 1
        global_store_dword v10, v11, s[{P_WS}:{P_WS+1}] sc1
        s_mov_b64 exec, -1
        {L}:
        """)
    HR = 136
    def h_loads():
        srd(A, R_C, P_SK, 640 * 4096)
        A(f"""
        s_sub_u32 s57, s{S_WAVE}, 8
        s_mul_i32 s57, s57, {CONV_SZ}
        s_add_u32 s57, s57, {CONV_BASE}
        s_lshl_b32 s58, s56, 12
        v_lshlrev_b32 v13, 4, v0
        v_add_u32 v13, s58, v13
        v_subrev_u32 v14, 8, v13
        """)
        for p in range(4):
            if p == 0:
                A(f"buffer_load_dwordx2 {v(HR,2)}, v14, s[{R_C}:{R_C+3}], 0 offen")
            else:
                A(f"buffer_load_dwordx2 {v(HR+6*p,2)}, v13, s[{R_C}:{R_C+3}], 0 offen offset:{1024*p - 8}")
            A(f"buffer_load_dwordx4 {v(HR+6*p+2,4)}, v13, s[{R_C}:{R_C+3}], 0 offen offset:{1024*p}")
    def h_build():
        A(f"""
        v_cmp_eq_u32 vcc, 0, v0
        v_lshlrev_b32 v6, 4, v0
        v_add_u32 v6, s57, v6
        v_add_u32 v6, 32, v6
        v_cndmask_b32 v{HR}, v{HR}, 0, vcc
        v_cndmask_b32 v{HR+1}, v{HR+1}, 0, vcc
        """)
        for p in range(4):
            b = HR + 6*p; P1, P0, D = b, b + 1, b + 2
            T1, T2, T3 = 16 + 12*(p % 2), 20 + 12*(p % 2), 24 + 12*(p % 2)
            A(f"""
            ds_write_b128 v6, {v(D,4)} offset:{0*COPY + 1024*p}
            v_alignbit_b32 v{T1}, v{D}, v{P0}, 16
            v_alignbit_b32 v{T1+1}, v{D+1}, v{D}, 16
            v_alignbit_b32 v{T1+2}, v{D+2}, v{D+1}, 16
            v_alignbit_b32 v{T1+3}, v{D+3}, v{D+2}, 16
            v_mov_b32 v{T2}, v{P0}
            v_mov_b32 v{T2+1}, v{D}
            v_mov_b32 v{T2+2}, v{D+1}
            v_mov_b32 v{T2+3}, v{D+2}
            v_alignbit_b32 v{T3}, v{P0}, v{P1}, 16
            v_mov_b32 v{T3+1}, v{T1}
            v_mov_b32 v{T3+2}, v{T1+1}
            v_mov_b32 v{T3+3}, v{T1+2}
            ds_write_b128 v6, {v(T1,4)} offset:{1*COPY + 1024*p}
            ds_write_b128 v6, {v(T2,4)} offset:{2*COPY + 1024*p}
            ds_write_b128 v6, {v(T3,4)} offset:{3*COPY + 1024*p}
            """)
    L_bnog = A.newlabel("bnog"); L_bnt = A.newlabel("bnt"); L_sync = A.newlabel("sync"); L_bntn = A.newlabel("bntn")
    A(f"""
    s_cmp_ge_u32 s{S_CB}, 15
    s_cbranch_scc1 {L_bnog}
    """)
    L_chonly = A.newlabel("chonly")
    b_setup(L_bnt, L_chonly)
    if E("BISS", 0): lds_wait(A, C_ISS, 2, 3, val=4, sleep=1)
    if E("NOBW", 0):
        lds_set(A, C_INIT, 2, 3)
        for _ in range(10): A("s_barrier")
        A(f"s_branch {L_exit}")
    MODE = E("BMODE", 3)
    if MODE == 3:
        hl3 = E("HL3", 0)
        b_loads()
        if not hl3: h_loads()
        A("s_branch L_bw1")
        A.mark("bw1")
        A.label("L_bw1")
        if EARLY: A("s_barrier")
        k = E("BWAIT", 4)
        for _ in range(k): A("s_barrier")
        A(f"s_waitcnt vmcnt({0 if hl3 else 8})")
        stp(A, "blok")
        if E("BPRIO", 0): A(f"s_setprio {E('BPRIO', 0)}")
        nsp = E("BSPLIT", 2)
        for q in range(4):
            b_compute(q)
            if (nsp == 2 and q == 1) or (nsp == 4 and q < 3): A("s_barrier")
        used = 1 if nsp == 2 else (3 if nsp == 4 else 0)
        A("s_setprio 0")
        init_load()
        g = E("BGAP", 2)
        for _ in range(g): A("s_barrier")
        u_publish(0)
        stp(A, "upub")
        if hl3: h_loads()
        rest = 10 - k - used - g
        uf = E("UFAT", 2)
        for i in range(rest):
            A("s_barrier")
            if i + 1 == uf and uf < rest:
                u_flag()
                A("s_mov_b32 s65, 0")
    elif MODE == 2:
        if EARLY: A("s_barrier")
        for _ in range(E("BAT", 1)): A("s_barrier")
        b_loads()
        h_loads()
        for _ in range(10 - E("BAT", 1)): A("s_barrier")
        A("s_waitcnt vmcnt(8)")
        stp(A, "blok")
        for q in range(4): b_compute(q)
        init_load()
        u_publish(0)
        stp(A, "upub")
    else:
        hl = E("HLATE", 1)
        b_loads()
        if not hl: h_loads()
        A(f"s_waitcnt vmcnt({0 if hl else 8})")
        stp(A, "blok")
        for q in range(4): b_compute(q)
        init_load()
        npub = E("NPUB", 2)
        for _ in range(npub): A("s_barrier")
        u_publish(0)
        stp(A, "upub")
        if hl:
            for _ in range(hl): A("s_barrier")
            h_loads()
        for _ in range(10 - npub - hl): A("s_barrier")
    stp(A, "b9")
    A(f"s_branch {L_conv}")
    A.label(L_bnt)
    A(f"s_branch {L_exit}")
    A.label(L_chonly)
    nh = E("HLC", 0)
    if EARLY and nh: A("s_barrier")
    for _ in range(nh): A("s_barrier")
    h_loads()
    if EARLY and not nh: A("s_barrier")
    for _ in range(10 - nh): A("s_barrier")
    A(f"s_branch {L_conv}")
    A.label(L_bnog)
    if E("NOBW", 0):
        lds_set(A, C_INIT, 2, 3)
        A(f"s_branch {L_exit}")
    b_setup(L_exit, L_exit)
    b_loads()
    h_loads()
    if EARLY: A("s_barrier")
    A("s_waitcnt vmcnt(8)")
    for q in range(4): b_compute(q)
    init_load()
    u_publish(0)
    A(f"s_branch {L_conv}")
    A.label("L_nogtask")
    A(f"""
    s_sub_u32 s56, s{S_J}, 28
    s_lshl_b32 s56, s56, 2
    s_lshr_b32 s57, s{S_XCD}, 1
    s_add_u32 s56, s56, s57
    s_lshl_b32 s56, s56, 3
    s_add_u32 s56, s56, s{S_WAVE}
    s_add_u32 s56, s56, 512
    """)
    b_addr()
    b_loads()
    A("s_waitcnt vmcnt(0)")
    for q in range(4): b_compute(q)
    init_load()
    u_publish(0)
    u_flag()
    A("s_branch L_nogdone")

    A.mark("conv")
    A.label(L_conv)
    u_flag()
    A(f"""
    s_lshr_b32 s59, s56, 1
    s_lshl_b32 s59, s59, 2
    s_load_dword s60, s[{P_SD}:{P_SD+1}], s59
    v_mov_b32 v12, 0
    v_mov_b32 v13, 0
    v_mov_b32 v14, 0
    v_mov_b32 v15, 0
    v_lshlrev_b32 v6, 3, v0
    v_add_u32 v6, s57, v6
    v_add_u32 v6, {4*COPY}, v6
    v_cmp_gt_u32 vcc, 60, v0
    s_and_saveexec_b64 s[54:55], vcc
    ds_write_b64 v6, v[12:13]
    s_mov_b64 exec, s[54:55]
    v_and_b32 v6, 1, v0
    v_lshlrev_b32 v6, 4, v6
    v_lshrrev_b32 v7, 1, v0
    v_mul_u32_u24 v7, {COPY}, v7
    v_add3_u32 v6, v6, v7, s57
    v_cmp_gt_u32 vcc, 8, v0
    s_and_saveexec_b64 s[54:55], vcc
    ds_write_b128 v6, v[12:15]
    s_mov_b64 exec, s[54:55]
    s_waitcnt vmcnt(0)
    """)
    h_build()
    VGB = [160, 161, 162]; WOVB = 163
    if E("SRV", 1): gather_setup(VGB, 40, 41, 42, WOVB)
    A(f"""
    s_lshr_b32 s54, s56, 6
    s_and_b32 s55, s56, 63
    s_and_b32 s61, s55, 7
    s_lshr_b32 s55, s55, 3
    s_lshl_b32 s61, s61, 9
    s_lshl_b32 s55, s55, 6
    s_add_u32 s61, s61, s55
    s_lshl_b32 s54, s54, 12
    s_add_u32 s61, s61, s54
    s_add_u32 s61, s61, {WS_U}
    v_lshrrev_b32 v8, 2, v0
    v_mul_u32_u24 v8, 40960, v8
    v_and_b32 v9, 3, v0
    v_lshl_add_u32 v8, v9, 4, v8
    """)
    L_uw = A.newlabel("uw"); L_ud = A.newlabel("ud")
    A(f"s_cmp_lg_u32 s{S_WAVE}, 8\ns_cbranch_scc1 {L_uw}")
    if E("UGATE", 0) == 1: lds_wait(A, C_GO, 2, 3, sleep=4)
    if E("UGATE", 0) == 2: lds_wait(A, C_QKV, 2, 3, val=4, sleep=4)
    A(f"""
    v_lshlrev_b32 v2, 7, v0
    v_add_u32 v2, {SYNC + 128*(L_U + 40)}, v2
    v_cmp_gt_u32 vcc, 8, v0
    v_mov_b32 v3, 1
    s_nop 0
    v_cndmask_b32 v4, 0, v3, vcc
    """)
    poll(A, 2, 4, 3, sleep=E("PS_U", 6))
    lds_set(A, C_UOK, 2, 3)
    A(f"s_branch {L_ud}")
    A.label(L_uw)
    lds_wait(A, C_UOK, 2, 3)
    A("s_waitcnt vmcnt(0)")
    A.label(L_ud)
    stp(A, "uok")
    for p in range(4):
        A(f"""
        s_add_u32 m0, s57, {4*COPY + 480 + p*1024}
        s_add_u32 s54, s61, {p*16*40960}
        buffer_load_dwordx4 v8, s[{R_WS}:{R_WS+3}], s54 offen{SC} lds""")
    A(f"""
    v_lshrrev_b32 v6, 4, v0             ; kg
    v_bfe_u32 v7, v0, 2, 2              ; r
    v_and_b32 v8, 3, v0                 ; c
    v_mul_u32_u24 v7, {COPY}, v7
    v_lshlrev_b32 v8, 3, v8
    v_lshlrev_b32 v9, 4, v6
    v_sub_u32 v8, v8, v9
    v_add_u32 v8, 56, v8
    v_add3_u32 v4, v7, v8, s57          ; vA
    v_and_b32 v7, 15, v0
    v_lshlrev_b32 v7, 5, v7
    v_lshl_add_u32 v7, v6, 4, v7
    v_add_u32 v7, {4*COPY}, v7
    v_add_u32 v5, s57, v7               ; vB
    s_waitcnt vmcnt(0) lgkmcnt(0)
    s_and_b32 s54, s56, 1
    s_lshl_b32 s54, s54, 4
    s_lshr_b32 s60, s60, s54
    s_lshl_b32 s60, s60, 16             ; D as f32
    """)
    stp(A, "conv0")
    Y = 32; AT = 64; BT = 128
    def a_reads(rho, p):
        mu = rho + 8 * p
        return [f"ds_read_b64_tr_b16 {v(AT+4*p,2)}, v4 offset:{64*mu + 8}",
                f"ds_read_b64_tr_b16 {v(AT+4*p+2,2)}, v4 offset:{64*mu}"]
    def b_read(rho, q): return f"ds_read_b128 {v(BT+4*q,4)}, v5 offset:{64*(8*q - rho + 7)}"
    A(f"s_setprio {E('CPRIO', 0)}")
    if E("CPACE", 0):
        for q in range(7, -1, -1): A(b_read(0, q))
        for rho in range(8):
            for p in range(8):
                for r in a_reads(rho, p): A(r)
                A("s_waitcnt lgkmcnt(0)")
                for q in range(7 - p, -1, -1):
                    i = p + q
                    cc = "0" if (rho == 0 and p == 0) else v(Y+4*i, 4)
                    A(f"v_mfma_f32_16x16x32_bf16 {v(Y+4*i,4)}, {v(AT+4*p,4)}, {v(BT+4*q,4)}, {cc}")
                if rho < 7: A(b_read(rho + 1, 7 - p))
            if rho == 3:
                stp(A, "convh")
                A("s_barrier")
    else:
        ATS = [64, 96]
        def a_reads2(rho, p, sid):
            mu = rho + 8 * p
            return [f"ds_read_b64_tr_b16 {v(ATS[sid]+4*p,2)}, v4 offset:{64*mu + 8}",
                    f"ds_read_b64_tr_b16 {v(ATS[sid]+4*p+2,2)}, v4 offset:{64*mu}"]
        for q in range(7, -1, -1): A(b_read(0, q))
        A("s_waitcnt lgkmcnt(4)")
        for p in range(8):
            for r in a_reads2(0, p, 0): A(r)
            if p == 3: A("s_waitcnt lgkmcnt(4)")
        for rho in range(8):
            sid = rho % 2
            nxtA = [x for p in range(8) for x in a_reads2(rho + 1, p, 1 - sid)] if rho < 7 else []
            A("s_waitcnt lgkmcnt(0)" if rho == 0 else "s_waitcnt lgkmcnt(4)")
            for p in range(8):
                for q in range(7 - p, -1, -1):
                    i = p + q
                    cc = "0" if (rho == 0 and p == 0) else v(Y+4*i, 4)
                    if p == 0 and rho > 0 and q <= 3:
                        A(f"s_waitcnt lgkmcnt({7 if rho < 7 else q})")
                    A(f"v_mfma_f32_16x16x32_bf16 {v(Y+4*i,4)}, {v(ATS[sid]+4*p,4)}, {v(BT+4*q,4)}, {cc}")
                    if nxtA: A(nxtA.pop(0))
                if rho < 7: A(b_read(rho + 1, 7 - p))
            if rho == E("CBAR", -1):
                stp(A, "convh")
                A("s_barrier")
    stp(A, "conv1")
    if E("TPRIO", 3): A(f"s_setprio {E('TPRIO', 3)}")
    def srv_kv(chunk):
        slot = chunk % 2
        for r in range(8):
            for part in range(3):
                A(f"""
                s_add_u32 m0, s49, {slot*CHUNK + r*REC + part*1024}
                s_add_u32 s51, s50, {(chunk*16 + r)*TB}
                buffer_load_dwordx4 v{VGB[part]}, s[{R_WS}:{R_WS+3}], s51 offen{SC} lds""")
    if E("SRV", 1):
        A(f"""
        s_sub_u32 s54, s{S_WAVE}, 8            ; bw
        s_mul_i32 s49, s54, {8*REC}
        s_mul_i32 s50, s54, {8*TB}
        """)
    if E("SRV", 1) and E("SRV1", 0):
        Lsk1 = A.newlabel("srv1")
        A(f"s_cmp_eq_u32 s{S_WAVE}, 10\ns_cbranch_scc1 {Lsk1}")
        lds_wait(A, C_GO, 2, 3, sleep=2)
        srv_kv(1)
        A.label(Lsk1)
    A(f"""
    v_and_b32 v7, 15, v0
    v_lshrrev_b32 v6, 4, v0
    v_lshlrev_b32 v7, 5, v7
    v_lshl_add_u32 v7, v6, 3, v7        ; 32n + 8g
    v_add_u32 v8, s57, v7
    v_add_u32 v8, {4*COPY + 480}, v8
    s_add_u32 s61, s58, {WS_Z}
    """)
    for i in range(8): A(f"ds_read_b64 {v(64+2*i,2)}, v8 offset:{512*i}")
    A("s_waitcnt lgkmcnt(0)\ns_nop 3")
    for i in range(8):
        u0, u1 = 64 + 2*i, 64 + 2*i + 1
        y = Y + 4*i
        A(f"""
        v_lshlrev_b32 v96, 16, v{u0}
        v_and_b32 v97, 0xffff0000, v{u0}
        v_lshlrev_b32 v98, 16, v{u1}
        v_and_b32 v99, 0xffff0000, v{u1}
        v_fma_f32 v{y}, v96, s60, v{y}
        v_fma_f32 v{y+1}, v97, s60, v{y+1}
        v_fma_f32 v{y+2}, v98, s60, v{y+2}
        v_fma_f32 v{y+3}, v99, s60, v{y+3}
        v_cvt_pk_bf16_f32 v{y}, v{y}, v{y+1}
        v_cvt_pk_bf16_f32 v{y+1}, v{y+2}, v{y+3}
        buffer_store_dwordx2 {v(y,2)}, v7, s[{R_WS}:{R_WS+3}], s61 offen offset:{512*i}{SC}""")
    def z_publish():
        A("s_waitcnt vmcnt(0)")
        stp(A, "zdrained")
        L_zs = A.newlabel("zs")
        A("s_cmp_lt_u32 s2, 128\ns_cselect_b32 s64, 3, 2")
        lds_arrive_last(A, C_Z, "s64", L_zs, 2, 3)
        A(f"s_and_b32 s65, s2, 7\ns_add_u32 s65, s65, {L_Z}")
        global_arrive(A, "s65", 32, 2, 3)
        A.label(L_zs)
    if not E("SRV", 1):
        A("s_barrier")
        z_publish()
    else:
        L_srv = A.newlabel("srv")
        A(f"s_cmp_lg_u32 s{S_WAVE}, 10\ns_cbranch_scc1 {L_srv}")
        A("s_barrier")
        z_publish()
        prof_dump(A, 0, wsptr=P_WS)
        A("s_endpgm")
        A.label(L_srv)
        A(f"""
        s_sub_u32 s56, s{S_WAVE}, 8            ; bw
        s_mul_i32 s53, s56, 5120
        s_mul_i32 s62, s56, 40960
        """)
        if E("SRV1", 0): A("s_waitcnt vmcnt(8)")
        A("s_barrier")
        if E("TPRIO", 3) and not E("TPKEEP", 1): A("s_setprio 0")
        z_publish()
        def srv_wo(region):
            n = 0
            groups = range(0, 12, 2) if region == "A" else range(0, 10, 2)
            for a2 in groups:
                for b in range(5):
                    lab = None
                    if region == "A" and a2 == 10:
                        lab = A.newlabel("wsk"); A(f"s_cmp_lg_u32 s56, 0\ns_cbranch_scc1 {lab}")
                    if region == "B" and a2 == 8 and b >= 2:
                        lab = A.newlabel("wsk"); A(f"s_cmp_lg_u32 s56, 0\ns_cbranch_scc1 {lab}")
                    ldso = (WO_A if region == "A" else 0) + a2*5120 + b*1024
                    go = a2*40960 + (0 if region == "A" else WO_BROW*1280)
                    A(f"""
                    s_add_u32 m0, s53, {ldso}
                    s_add_u32 s51, s62, {go}
                    buffer_load_dwordx4 v{WOVB+b}, s[{R_A}:{R_A+3}], s51 offen lds""")
                    if lab: A.label(lab)
                    else: n += 1
            return n
        srv_kv(2)
        n = srv_wo("A")
        A(f"s_waitcnt vmcnt({n})\ns_barrier")
        srv_kv(3)
        A("s_waitcnt vmcnt(0)\ns_barrier")
        srv_wo("B")
        A("s_waitcnt vmcnt(0)")
    prof_dump(A, 0, wsptr=P_WS)
    A.label(L_exit)
    A("s_endpgm")

DOC = """;
"""

def build():
    hdr = open("cdna_kernels/" + NAME + ".s.ref").read().split("; Override launch geometry")[0]
    A = Asm(); gen(A)
    A.reorder(os.environ.get("ORDER", "prod,bw,prod1,bw1,cons,main,conv").split(","))
    out = hdr + f"; @launch grid=(256,1,1) block=(704,1,1) lds={LDS}\n" + DOC
    out += '.amdgcn_target "amdgcn-amd-amdhsa--gfx950"\n.text\n' + A.text()
    out += f""".section .rodata,"a"
.p2align 6
.amdhsa_kernel {KNAME}
  .amdhsa_next_free_vgpr {VGPRS}
  .amdhsa_next_free_sgpr 102
  .amdhsa_accum_offset {VGPRS}
  .amdhsa_group_segment_fixed_size 0
  .amdhsa_kernarg_size 96
  .amdhsa_user_sgpr_count 2
  .amdhsa_user_sgpr_kernarg_segment_ptr 1
  .amdhsa_system_sgpr_workgroup_id_x 1
  .amdhsa_float_denorm_mode_32 3
.end_amdhsa_kernel
"""
    return out

if __name__ == "__main__":
    open(sys.argv[1], "w").write(build())
```
